```python
import torch

def _softmax(x, axis=-1):
    return torch.softmax(x, dim=axis)
def _gelu(x):
    return torch.nn.functional.gelu(x, approximate="tanh")
def _silu(x):
    return torch.nn.functional.silu(x)
def _sigmoid(x):
    return torch.sigmoid(x)
def _layernorm(x, axis=-1, eps=1e-5):
    m = x.mean(dim=axis, keepdim=True)
    v = x.var(dim=axis, keepdim=True, unbiased=False)
    return (x - m) / torch.sqrt(v + eps)
def _scatter_add(tgt, idx, src, axis=0):
    return tgt.clone().index_add_(axis, idx, src)
def _segment_sum(src, seg, n):
    out = torch.zeros((n,) + src.shape[1:], dtype=src.dtype)
    return out.index_add_(0, seg, src)
def _pad(x, pw):
    flat = tuple(v for pair in reversed(pw) for v in pair)
    return torch.nn.functional.pad(x, flat)

kernel_name = 'concat_heads__softmax_full_mha__ssm_conv_s5__prompt'

def setup_inputs():

    _w = (lambda a: (lambda t: t.to(torch.bfloat16) if t.is_floating_point() else t)(torch.as_tensor(a)))
    def _A_setup():
        B, S, D = 1, 2048, 640
        return {
            "x": _w((lambda *s: torch.randn(*s, dtype=torch.bfloat16) * 0.2)(B, S, D)),
            "wqkv": _w((lambda *s: torch.randn(*s, dtype=torch.bfloat16) * 0.2)(D, 3 * D)),
            "wo": _w((lambda *s: torch.randn(*s, dtype=torch.bfloat16) * 0.05)(D, D)),
        }
    _A_in = _A_setup()

    def _B_setup():
        B, S, D = 1, 2048, 640
        P = D
        Lambda_re = -0.5 * (lambda _x: torch.exp(torch.as_tensor(_x)))((lambda *s: torch.randn(*s, dtype=torch.bfloat16) * 0.8)(P))
        Lambda_im = (lambda *s: torch.randn(*s, dtype=torch.bfloat16) * 0.8)(P) * 1.0
        B_re = (lambda *s: torch.randn(*s, dtype=torch.bfloat16) * 0.8)(P, D) * (D ** -0.5)
        B_im = (lambda *s: torch.randn(*s, dtype=torch.bfloat16) * 0.8)(P, D) * (D ** -0.5)
        C_re = (lambda *s: torch.randn(*s, dtype=torch.bfloat16) * 0.8)(D, P) * (P ** -0.5)
        C_im = (lambda *s: torch.randn(*s, dtype=torch.bfloat16) * 0.8)(D, P) * (P ** -0.5)
        log_dt = (lambda *s: torch.randn(*s, dtype=torch.bfloat16) * 0.8)(P) * 0.3 - 2.0
        Dskip = (lambda *s: torch.randn(*s, dtype=torch.bfloat16) * 0.8)(D)
        return {
            "x": _w((lambda *s: torch.randn(*s, dtype=torch.bfloat16) * 0.05)(B, S, D)),
            "Lambda_re": _w(Lambda_re),
            "Lambda_im": _w(Lambda_im),
            "B_re": _w(B_re),
            "B_im": _w(B_im),
            "C_re": _w(C_re),
            "C_im": _w(C_im),
            "log_dt": _w(log_dt),
            "Dskip": _w(Dskip),
        }
    _B_in = _B_setup()

    return {
        "A_x": _A_in["x"],
        "A_wqkv": _A_in["wqkv"],
        "A_wo": _A_in["wo"],
        "B_x": _B_in["x"],
        "B_Lambda_re": _B_in["Lambda_re"],
        "B_Lambda_im": _B_in["Lambda_im"],
        "B_B_re": _B_in["B_re"],
        "B_B_im": _B_in["B_im"],
        "B_C_re": _B_in["C_re"],
        "B_C_im": _B_in["C_im"],
        "B_log_dt": _B_in["log_dt"],
        "B_Dskip": _B_in["Dskip"],
    }

def reference(A_x, A_wqkv, A_wo, B_x, B_Lambda_re, B_Lambda_im, B_B_re, B_B_im, B_C_re, B_C_im, B_log_dt, B_Dskip):
    def _A_ref(x, wqkv, wo):
        B, S, D = x.shape
        H = 32; Dh = D // H
        qkv = (lambda x, *d: x.permute(*d))((x @ wqkv).reshape(B, S, 3, H, Dh), 2, 0, 3, 1, 4)
        q, k, v = qkv[0], qkv[1], qkv[2]
        scale = Dh ** -0.5
        scores = torch.einsum("bhqd,bhkd->bhqk", q, k) * scale
        p = _softmax(scores, axis=-1)
        o = torch.einsum("bhqk,bhkd->bhqd", p, v)
        return (lambda x, *d: x.permute(*d))(o, 0, 2, 1, 3).reshape(B, S, D) @ wo

    def _B_ref(x, Lambda_re, Lambda_im, B_re, B_im, C_re, C_im, log_dt, Dskip):
        Bsz, L, H = x.shape
        Lam = Lambda_re + 1j * Lambda_im
        Bmat = B_re + 1j * B_im
        Cmat = C_re + 1j * C_im
        dt = torch.exp(log_dt)
        Lam_bar = torch.exp(dt * Lam)
        B_bar = ((Lam_bar - 1.0) / Lam)[:, None] * Bmat
        Bu = torch.einsum("bld,pd->blp", x + 0j, B_bar)
        h = torch.zeros_like(Bu[:, 0, :])
        hs = []
        for t in range(L):
            h = Lam_bar[None, :] * h + Bu[:, t, :]
            hs.append(h)
        hseq = torch.stack(hs, 1)
        y = 2.0 * torch.einsum("blp,dp->bld", hseq, Cmat).real + x * Dskip[None, None, :]
        return y

    a = _A_ref(A_x, A_wqkv, A_wo)
    b = _B_ref(B_x, B_Lambda_re, B_Lambda_im, B_B_re, B_B_im, B_C_re, B_C_im, B_log_dt, B_Dskip)
    return torch.concatenate([a, b], axis=-1)
```

```python
import re, sys

TRANS = ("v_exp_", "v_log_", "v_rcp_", "v_rsq_", "v_sqrt_", "v_sin_", "v_cos_")
CAP = 24


def regs_of(tok):
    tok = tok.strip()
    tok = tok.lstrip("-")
    if tok.startswith("abs(") or tok.startswith("|"):
        tok = tok.replace("abs(", "").replace(")", "").replace("|", "")
    m = re.fullmatch(r"([vsa])\[(\d+):(\d+)\]", tok)
    if m:
        return {f"{m.group(1)}{i}" for i in range(int(m.group(2)), int(m.group(3)) + 1)}
    m = re.fullmatch(r"([vsa])(\d+)", tok)
    if m:
        return {tok}
    if tok == "vcc":
        return {"vcc"}
    if tok in ("vcc_lo", "vcc_hi"):
        return {"vcc"}
    if tok == "exec":
        return {"exec"}
    if tok == "m0":
        return {"m0"}
    return set()


class I:
    def __init__(self, text, ln):
        self.text = text
        self.ln = ln
        parts = text.split(None, 1)
        self.mn = parts[0]
        rest = parts[1] if len(parts) > 1 else ""
        ops, depth, cur = [], 0, ""
        for ch in rest:
            if ch == "[":
                depth += 1
            if ch == "]":
                depth -= 1
            if ch == "," and depth == 0:
                ops.append(cur.strip())
                cur = ""
            else:
                cur += ch
        if cur.strip():
            ops.append(cur.strip())
        if ops:
            l = ops[-1].split()
            self.mods = l[1:]
            ops[-1] = l[0]
        else:
            self.mods = []
        self.ops = ops
        mn = self.mn
        self.valu = mn.startswith("v_") and not mn.startswith("v_mfma")
        self.mfma = mn.startswith("v_mfma")
        self.trans = mn.startswith(TRANS)
        self.vmem = mn.startswith(("buffer_", "global_", "flat_"))
        self.ds = mn.startswith("ds_")
        self.salu = mn.startswith("s_")
        self.defs, self.uses = set(), set()
        R = [regs_of(o) for o in ops]
        if self.mfma:
            self.defs = R[0]
            self.A, self.B, self.C = R[1], R[2], R[3]
            self.uses = R[1] | R[2] | R[3]
            self.passes = 4 if "16x16" in mn else 8
        elif self.valu:
            if mn.startswith("v_cmp"):
                self.defs = R[0]
                self.uses = set().union(*R[1:])
            elif mn.startswith(("v_permlane16_swap", "v_permlane32_swap", "v_swap")):
                self.defs = R[0] | R[1]
                self.uses = R[0] | R[1]
            elif mn.startswith(("v_add_co", "v_sub_co", "v_addc_co", "v_subb_co", "v_div_scale")):
                self.defs = R[0] | R[1]
                self.uses = set().union(*R[2:])
            else:
                self.defs = R[0]
                self.uses = set().union(*R[1:]) if len(R) > 1 else set()
                if mn.startswith(("v_fmac", "v_writelane")) or "UNUSED_PRESERVE" in text:
                    self.uses |= R[0]
                if mn.startswith("v_cndmask") and len(ops) == 3:
                    self.uses |= {"vcc"}
        elif self.vmem:
            lds = "lds" in self.mods or (ops and ops[-1] == "lds")
            self.lds = lds
            if "load" in mn and not lds:
                self.defs = R[0]
                self.uses = set().union(*R[1:])
            elif "atomic" in mn:
                self.uses = set().union(*R)
                if "sc0" in self.mods:
                    self.defs = R[0]
            else:
                self.uses = set().union(*R) if R else set()
                if lds:
                    self.uses |= {"m0"}
            self.wide_store = ("store" in mn) and ("x3" in mn or "x4" in mn)
            if self.wide_store:
                self.sdata = R[0] if mn.startswith("buffer") else R[1]
        elif self.ds:
            if "read" in mn or "bpermute" in mn or "swizzle" in mn or "rtn" in mn:
                self.defs = R[0]
                self.uses = set().union(*R[1:])
            else:
                self.uses = set().union(*R)
        elif self.salu:
            if mn.startswith(("s_cmp", "s_cbranch", "s_branch", "s_waitcnt", "s_barrier", "s_nop", "s_sleep", "s_setprio", "s_endpgm", "s_bitcmp")):
                self.uses = set().union(*R) if R else set()
            else:
                self.defs = R[0] if R else set()
                self.uses = set().union(*R[1:]) if len(R) > 1 else set()
                if "saveexec" in mn:
                    self.defs |= {"exec"}
        self.slots = 1
        if mn == "s_nop":
            self.slots = int(ops[0], 0) + 1


def parse(text):
    insts, labels = [], {}
    insec = True
    for ln, raw in enumerate(text.split("\n"), 1):
        s = raw.split(";")[0].split("//")[0].strip()
        if not s:
            continue
        if s.startswith(".section"):
            insec = False
        if s.startswith(".text"):
            insec = True
        if s.startswith("."):
            continue
        if not insec:
            continue
        m = re.match(r"^([\w.$]+):\s*(.*)$", s)
        if m:
            labels[m.group(1)] = len(insts)
            s = m.group(2).strip()
            if not s:
                continue
        insts.append(I(s, ln))
    return insts, labels


def step(st, i, report):
    def d(key):
        return st.get(key, CAP)

    def need(key, n, why):
        if d(key) < n:
            report(i, f"{why}: {key} distance {d(key)} < {n}")

    vuses = {r for r in i.uses if r[0] in "va" and r != "vcc"}
    vdefs = {r for r in i.defs if r[0] in "va" and r != "vcc"}
    suses = {r for r in i.uses if r[0] == "s" or r == "vcc"}
    if i.mfma:
        for r in vuses:
            need(("valu", r), 2, "VALU write -> MFMA read")
        for p, n in ((4, 8), (8, 12)):
            for r in i.A | i.B:
                need(("xdl", r, p), n, "XDL write -> MFMA A/B read")
        for p, n in ((4, 6), (8, 10)):
            for r in i.C:
                if d(("xdl", r, p)) < n:
                    ident = st.get(("xdlid", r))
                    if not (ident == (tuple(sorted(i.C)), i.passes) and p == i.passes):
                        report(i, f"XDL write -> overlapping SrcC {r}")
        if i.C != i.defs:
            for p, n in ((4, 6), (8, 10)):
                for r in i.defs:
                    if d(("xdl", r, p)) < n:
                        report(i, f"XDL write -> XDL write (WAW, C not D) {r}")
        need(("valuexec",), 4, "VALU exec write -> MFMA")
    if i.valu or i.vmem or i.ds:
        for p, n in ((4, 8), (8, 12)):
            for r in vuses | vdefs:
                need(("xdl", r, p), n, "XDL write -> VALU/VMEM/DS access")
    if i.valu:
        for p, n in ((4, 3), (8, 7)):
            for r in vdefs:
                need(("xdlc", r, p), n, "XDL SrcC read -> VALU write")
        if not i.trans:
            for r in vuses:
                need(("trans", r), 1, "trans -> VALU use")
        if i.mn.startswith("v_permlane"):
            for r in vuses:
                need(("valu", r), 2, "VALU write -> permlane")
        if i.mn.startswith(("v_readfirstlane", "v_readlane")):
            for r in vuses:
                need(("valu", r), 1, "VALU write -> readlane")
        for r in suses:
            need(("vsgpr", r), 2, "VALU SGPR write -> VALU read")
        for r in vdefs:
            need(("wstore", r), 2, "wide store data WAR")
    if i.mfma:
        for r in vuses:
            need(("trans", r), 2, "trans -> MFMA")
    if i.vmem:
        for r in suses:
            need(("vsgpr", r), 5, "VALU SGPR write -> VMEM read")
        if getattr(i, "lds", False):
            need(("m0",), 1, "M0 write -> LDS DMA")
    if (i.vmem or i.ds) and vdefs:
        for r in vdefs:
            need(("wstore", r), 1, "wide store data WAR (load)")
    ns = {}
    for k, v in st.items():
        if k[0] == "xdlid":
            ns[k] = v
        elif v + i.slots < CAP:
            ns[k] = v + i.slots
    if i.mfma:
        for r in i.defs:
            ns[("xdl", r, i.passes)] = 0
            ns[("xdlid", r)] = (tuple(sorted(i.defs)), i.passes)
        for r in i.C:
            ns[("xdlc", r, i.passes)] = 0
    if i.valu:
        for r in vdefs:
            ns[("valu", r)] = 0
            if i.trans:
                ns[("trans", r)] = 0
            else:
                ns.pop(("trans", r), None)
        for r in i.defs:
            if r[0] == "s" or r == "vcc":
                ns[("vsgpr", r)] = 0
            if r == "exec":
                ns[("valuexec",)] = 0
    if i.salu:
        for r in i.defs:
            ns.pop(("vsgpr", r), None)
        if "m0" in i.defs:
            ns[("m0",)] = 0
    if i.vmem and getattr(i, "wide_store", False):
        for r in i.sdata:
            ns[("wstore", r)] = 0
    for k in [k for k in ns if k[0] == "xdlid"]:
        if ("xdl", k[1], 4) not in ns and ("xdl", k[1], 8) not in ns:
            del ns[k]
    return ns


def merge(a, b):
    out = dict(a)
    ch = False
    for k, v in b.items():
        if k[0] == "xdlid":
            if k in out and out[k] != v:
                if out[k] != "mixed":
                    out[k] = "mixed"
                    ch = True
            elif k not in out:
                out[k] = v
                ch = True
        elif k not in out or v < out[k]:
            out[k] = v
            ch = True
    return out, ch


def check(text):
    insts, labels = parse(text)
    n = len(insts)
    states = [None] * (n + 1)
    states[0] = {}
    work = [0]
    errs = {}

    def report(i, msg):
        errs[(i.ln, msg)] = i.text

    while work:
        p = work.pop()
        if p >= n:
            continue
        i = insts[p]
        ns = step(states[p], i, report)
        succ = []
        if i.mn == "s_endpgm":
            succ = []
        elif i.mn == "s_branch":
            succ = [labels[i.ops[0]]]
        elif i.mn.startswith("s_cbranch"):
            succ = [labels[i.ops[0]], p + 1]
        else:
            succ = [p + 1]
        for s in succ:
            if states[s] is None:
                states[s] = ns
                work.append(s)
            else:
                m, ch = merge(states[s], ns)
                if ch:
                    states[s] = m
                    work.append(s)
    out = sorted(errs.items())
    return [f"line {ln}: {msg}   [{t}]" for (ln, msg), t in out]


if __name__ == "__main__":
    e = check(open(sys.argv[1]).read())
    print("\n".join(e) if e else "no hazards found")
```

```python
import sys, struct, math

NAME = "concat_heads__softmax_full_mha__ssm_conv_s5__prompt"

OPT = dict(stamps=0, spin=400000, hint=1, hint_step=16, plpad=0, aprio=0, bprio=0, force_fb=0)
for a in sys.argv[2:]:
    k, v = a.split("=")
    OPT[k] = int(v)

PL = 16384 + OPT["plpad"]
EPOCH = 0
F1 = 0x1000
F2 = 0x2000
F3 = 0x3000
F4 = 0x4000
F0 = 0x8000
STAMP = 0x20000
EB = 0x40000
QKVP = 0x100000
OP = 0xA00000
HB = 0xD00000
WS_USED = 0x1300000
assert QKVP + 480 * PL <= OP and OP + 160 * PL <= HB
OOB = 0x80000000

L = []


def A(s):
    for ln in s.strip("\n").split("\n"):
        L.append(ln.strip() if not ln.strip().endswith(":") else ln.strip())


def f2u(x):
    return struct.unpack("<I", struct.pack("<f", x))[0]


def vr(a, n):
    return f"v[{a}:{a+n-1}]" if n > 1 else f"v{a}"


P_AX, P_WQKV, P_WO, P_BX, P_LRE, P_LIM, P_BRE, P_BIM, P_CRE, P_CIM, P_LDT, P_DSK, P_OUT, P_DBG, P_WS = range(8, 38, 2)
S_E = 38
S_W = 40
R0, R1, R2, WS, R3 = 44, 48, 52, 56, 60
ST0 = 70
_uid = [0]


def uid(p):
    _uid[0] += 1
    return f"{p}_{_uid[0]}"


def srd(r, p, n):
    A(f"s_mov_b32 s{r}, s{p}\ns_and_b32 s{r+1}, s{p+1}, 0xffff\ns_mov_b32 s{r+2}, {n}\ns_mov_b32 s{r+3}, 0x20000")


def S(r):
    return f"s[{r}:{r+3}]"


def stamp(k):
    if OPT["stamps"]:
        A(f"s_memrealtime s[{ST0+2*k}:{ST0+2*k+1}]")


def dump_stamps(n):
    if not OPT["stamps"]:
        return
    sk = uid("SK")
    A(f"s_waitcnt lgkmcnt(0)\ns_cmp_lg_u32 s{S_W}, 0\ns_cbranch_scc1 {sk}")
    A(f"s_lshl_b32 s64, s2, 7\ns_add_u32 s64, s64, {STAMP}\ns_mov_b64 exec, 1")
    for k in range(n):
        A(f"v_mov_b32 v120, s{ST0+2*k}\nv_mov_b32 v121, s{ST0+2*k+1}")
        A(f"buffer_store_dwordx2 v[120:121], off, {S(WS)}, s64 offset:{8*k}")
        A("s_waitcnt vmcnt(0)")
    A(f"s_mov_b64 exec, -1\n{sk}:")


def flag_store(soff, t=120, wave0=True):
    sk = uid("FS")
    if wave0:
        A(f"s_cmp_lg_u32 s{S_W}, 0\ns_cbranch_scc1 {sk}")
    A(f"v_mov_b32 v{t}, s{S_E}\nv_mov_b32 v{t+1}, s{S_E+1}\ns_mov_b64 exec, 1")
    A(f"buffer_store_dwordx2 v[{t}:{t+1}], off, {S(WS)}, s{soff} sc1")
    A("s_mov_b64 exec, -1")
    if wave0:
        A(f"{sk}:")


def poll(vaddrs, t=120):
    lp, dn = uid("PL"), uid("PD")
    A(f"s_mov_b32 s64, {OPT['spin']}\n{lp}:")
    for i, va in enumerate(vaddrs):
        A(f"buffer_load_dwordx2 v[{t+2*i}:{t+2*i+1}], v{va}, {S(WS)}, 0 offen sc1")
    A("s_waitcnt vmcnt(0)")
    for i, va in enumerate(vaddrs):
        if i == 0:
            A(f"v_cmp_ne_u64 vcc, s[{S_E}:{S_E+1}], v[{t}:{t+1}]")
        else:
            A(f"v_cmp_ne_u64 s[66:67], s[{S_E}:{S_E+1}], v[{t+2*i}:{t+2*i+1}]\ns_or_b64 vcc, vcc, s[66:67]")
    A(f"s_cbranch_vccz {dn}\ns_sub_u32 s64, s64, 1\ns_cmp_lg_u32 s64, 0\ns_cbranch_scc1 {lp}\n{dn}:")


def mod10(sd, ssrc, tmp):
    A(f"s_mul_i32 s{tmp}, s{ssrc}, 205\ns_lshr_b32 s{tmp}, s{tmp}, 11\ns_mul_i32 s{tmp}, s{tmp}, 10\ns_sub_u32 s{sd}, s{ssrc}, s{tmp}")


def dma(vaddr, rsrc, soff, aux=""):
    A(f"buffer_load_dwordx4 v{vaddr}, {S(rsrc)}, s{soff} offen {aux} lds".replace("  ", " "))


MF32 = "v_mfma_f32_32x32x16_bf16"
MF8 = "v_mfma_f32_32x32x8_bf16"
MF16 = "v_mfma_f32_16x16x32_bf16"


def prologue():
    A(f"s_cmp_ge_u32 s2, 512\ns_cbranch_scc1 L_END")
    stamp(0)
    A("s_load_dwordx16 s[8:23], s[0:1], 0\ns_load_dwordx8 s[24:31], s[0:1], 64\ns_load_dwordx4 s[32:35], s[0:1], 96\ns_load_dwordx2 s[36:37], s[0:1], 112")
    A(f"v_lshrrev_b32 v2, 6, v0\nv_and_b32 v1, 63, v0\nv_readfirstlane_b32 s{S_W}, v2")
    A("s_cmp_ge_u32 s2, 256\ns_cbranch_scc1 L_ROLE_B")


def epoch_fix():
    A(f"s_mul_i32 s{S_E}, s{S_E}, 0x9E3779B1\ns_add_u32 s{S_E}, s{S_E}, 0x7F4A7C15\ns_xor_b32 s{S_E+1}, s{S_E}, 0x5bd1e995")


def qkv():
    sRB, sCB, sKX, sKW, sMX, sMW, sT = 41, 42, 43, 64, 65, 66, 67
    vX0, vX1, vWs, vWr, vXr = 2, 3, 4, 5, 6
    ACC = 32
    FR = [64, 88]
    A(f"s_and_b32 s68, s2, 7\ns_lshr_b32 s69, s2, 3")
    A(f"s_and_b32 s{sRB}, s68, 3\ns_lshl_b32 s{sRB}, s{sRB}, 2\ns_and_b32 s{sT}, s69, 3\ns_add_u32 s{sRB}, s{sRB}, s{sT}")
    A(f"s_lshr_b32 s{sCB}, s68, 2\ns_lshl_b32 s{sCB}, s{sCB}, 3\ns_lshr_b32 s{sT}, s69, 2\ns_add_u32 s{sCB}, s{sCB}, s{sT}")
    A(f"s_mul_i32 s{sKX}, s{sRB}, 3\ns_add_u32 s{sKX}, s{sKX}, s{sCB}")
    mod10(sKX, sKX, sT)
    A(f"s_mul_i32 s{sKW}, s{sKX}, {2*122880}\ns_lshl_b32 s{sKX}, s{sKX}, 7")
    A(f"s_lshl_b32 s{sT}, s{sRB}, 7\ns_lshl_b32 s68, s{S_W}, 4\ns_add_u32 s{sT}, s{sT}, s68")
    A(f"v_lshrrev_b32 v10, 3, v1\nv_add_u32 v10, s{sT}, v10\nv_mul_u32_u24 v10, 1280, v10")
    A(f"v_lshrrev_b32 v11, 4, v1\nv_and_b32 v12, 7, v1\nv_xor_b32 v12, v12, v11\nv_lshl_add_u32 v{vX0}, v12, 4, v10")
    A(f"v_xor_b32 v{vX1}, 64, v{vX0}\nv_add_u32 v{vX1}, 10240, v{vX1}")
    A(f"s_lshl_b32 s68, s{S_W}, 2\nv_add_u32 v10, s68, v11\nv_mul_u32_u24 v10, 3840, v10")
    A(f"v_and_b32 v12, 15, v1\nv_lshlrev_b32 v13, 2, v11\nv_xor_b32 v12, v12, v13\nv_lshl_add_u32 v10, v12, 4, v10")
    A(f"s_lshl_b32 s68, s{sCB}, 8\nv_add_u32 v{vWs}, s68, v10")
    A(f"s_lshl_b32 s{sMX}, s{S_W}, 11\ns_lshl_b32 s{sMW}, s{S_W}, 10\ns_add_u32 s{sMW}, s{sMW}, 49152")
    A("s_waitcnt lgkmcnt(0)")
    A(f"s_load_dword s{S_E}, s[{P_WS}:{P_WS+1}], {EPOCH}")
    srd(R0, P_AX, 2621440)
    srd(R1, P_WQKV, 2457600)
    srd(WS, P_WS, WS_USED)
    A(f"s_cmp_ge_u32 s{sCB}, 15\ns_cbranch_scc1 L_QKV_IDLE")

    issued = []

    def dmaX(Sx):
        for i in range(2):
            A(f"s_add_u32 m0, s{sMX}, {(Sx % 3) * 16384 + i * 1024}\ns_nop 0")
            dma(vX0 + i, R0, sKX)
            issued.append(("X", Sx))
        A(f"s_add_u32 s{sKX}, s{sKX}, 128\ns_cmp_eq_u32 s{sKX}, 1280\ns_cselect_b32 s{sKX}, 0, s{sKX}")

    def dmaW(s):
        A(f"s_add_u32 m0, s{sMW}, {(s % 4) * 8192}\ns_nop 0")
        dma(vWs, R1, sKW)
        issued.append(("W", s))
        A(f"s_add_u32 s{sKW}, s{sKW}, 122880\ns_cmp_eq_u32 s{sKW}, 2457600\ns_cselect_b32 s{sKW}, 0, s{sKW}")

    dmaX(0); dmaW(0); dmaW(1); dmaX(1); dmaW(2); dmaW(3); dmaX(2)
    A(f"v_lshrrev_b32 v10, 5, v1\nv_bfe_u32 v11, v1, 2, 2\nv_lshl_add_u32 v12, v10, 3, v11\nv_lshlrev_b32 v12, 8, v12")
    A(f"s_and_b32 s68, s{S_W}, 3\ns_lshl_b32 s68, s68, 2")
    A(f"v_bfe_u32 v13, v1, 4, 1\nv_lshlrev_b32 v13, 1, v13\nv_bfe_u32 v14, v1, 1, 1\nv_add3_u32 v13, v13, v14, s68")
    A(f"v_lshlrev_b32 v11, 2, v11\nv_xor_b32 v13, v13, v11\nv_lshl_add_u32 v12, v13, 4, v12")
    A(f"v_and_b32 v14, 1, v1\nv_lshl_add_u32 v12, v14, 3, v12\nv_add_u32 v{vWr}, 49152, v12")
    A(f"s_lshr_b32 s68, s{S_W}, 2\ns_lshl_b32 s68, s68, 6\nv_and_b32 v11, 31, v1\nv_add_u32 v12, s68, v11\nv_lshlrev_b32 v12, 7, v12")
    A(f"v_bfe_u32 v13, v1, 1, 3\nv_xor_b32 v13, v13, v10\nv_lshl_add_u32 v{vXr}, v13, 4, v12")
    for k in range(1, 4):
        A(f"v_xor_b32 v{vXr+k}, {32*k}, v{vXr}")
    A(f"s_and_b32 s69, s{S_W}, 3\ns_lshl_b32 s69, s69, 3\nv_add_u32 v10, s69, v10\nv_mul_u32_u24 v10, {PL}, v10")
    A(f"v_add_u32 v11, s68, v11\nv_lshl_add_u32 v10, v11, 3, v10")

    def reads(s):
        f = FR[s & 1]
        ws, xs, b = (s % 4) * 8192, ((s >> 1) % 3) * 16384, s & 1
        for u in range(2):
            for j in range(2):
                A(f"ds_read_b64_tr_b16 {vr(f+4*u+2*j, 2)}, v{vWr} offset:{ws + (16*u+4*j)*256}")
            for nt in range(2):
                A(f"ds_read_b128 {vr(f+8+8*u+4*nt, 4)}, v{vXr+2*b+u} offset:{xs + 4096*nt}")

    def mfmas(s):
        f = FR[s & 1]
        for u in range(2):
            for nt in range(2):
                c = "0" if (s == 0 and u == 0) else vr(ACC + 16 * nt, 16)
                A(f"{MF32} {vr(ACC+16*nt,16)}, {vr(f+4*u,4)}, {vr(f+8+8*u+4*nt,4)}, {c}")

    for s in range(20):
        last = max(i for i, t in enumerate(issued) if t in (("X", s >> 1), ("W", s)))
        A(f"s_waitcnt vmcnt({len(issued) - 1 - last})\ns_barrier")
        if s == 0:
            stamp(1)
        if s >= 1 and s + 3 < 20:
            dmaW(s + 3)
        if s >= 2 and s % 2 == 0 and s // 2 + 2 < 10:
            dmaX(s // 2 + 2)
        if s == 1:
            epoch_fix()
        if s == OPT["hint_step"] and OPT["hint"]:
            A(f"s_lshl_b32 s68, s2, 7\ns_lshl_b32 s69, s{S_W}, 3\ns_add_u32 s68, s68, s69\ns_add_u32 s68, s68, {F0}")
            flag_store(68, t=120, wave0=False)
            issued.append(("H", 0))
        reads(s)
        if s >= 1:
            mfmas(s - 1)
        A("s_waitcnt lgkmcnt(0)")
    mfmas(19)
    stamp(2)
    c = 20 ** -0.5 * math.log2(math.e)
    A(f"s_cmp_lt_u32 s{sCB}, 5\ns_cselect_b32 s68, {f2u(c)}, 1.0\ns_mov_b32 s69, s68")
    A(f"s_mul_i32 s{sT}, s{sCB}, {32*PL}\ns_lshl_b32 s64, s{sRB}, 10\ns_add_u32 s{sT}, s{sT}, s64\ns_add_u32 s{sT}, s{sT}, {QKVP}")
    A("s_nop 4")
    for nt in range(2):
        if nt == 1:
            pass
        for g in range(4):
            a = ACC + 16 * nt + 4 * g
            A(f"v_pk_mul_f32 {vr(a,2)}, {vr(a,2)}, s[68:69]\nv_pk_mul_f32 {vr(a+2,2)}, {vr(a+2,2)}, s[68:69]")
            d = 64 + 8 * nt + 2 * g
            A(f"v_cvt_pk_bf16_f32 v{d}, v{a}, v{a+1}\nv_cvt_pk_bf16_f32 v{d+1}, v{a+2}, v{a+3}")
            A(f"s_add_u32 s64, s{sT}, {2*g*PL}")
            A(f"buffer_store_dwordx2 {vr(d,2)}, v10, {S(WS)}, s64 offen offset:{256*nt} sc1")
    A(f"s_lshl_b32 s68, s{sCB}, 7\ns_lshl_b32 s69, s{sRB}, 3\ns_add_u32 s68, s68, s69\ns_add_u32 s68, s68, {F1}")
    A("s_waitcnt vmcnt(0)\ns_barrier")
    flag_store(68)
    A("s_branch L_ATT")
    A("L_QKV_IDLE:\ns_waitcnt lgkmcnt(0)")
    epoch_fix()
    if OPT["hint"]:
        A(f"s_lshl_b32 s68, s2, 7\ns_add_u32 s68, s68, {F0}")
        flag_store(68)


PS = 2080
SLOT = 11 * PS
RED = 2 * SLOT
BADW = 81912


def attention():
    sH, sQB, sG, sLd, sBlk, sDst, sCnt, sDel, sPass = 41, 42, 44, 48, 43, 52, 53, 54, 55
    vK, vK1, vV, vD = 2, 3, 4, 5
    Q = [8, 14]; O = [20, 36]; SS = [52, 68]; Kf = [84, 90]; Vf = [96, 104]; P = 112
    A("L_ATT:")
    stamp(3)
    A(f"s_and_b32 s68, s2, 7\ns_lshr_b32 s69, s2, 3\ns_and_b32 s{sQB}, s69, 7\ns_lshr_b32 s69, s69, 3\ns_lshl_b32 s{sH}, s68, 2\ns_add_u32 s{sH}, s{sH}, s69")
    A(f"s_mov_b32 s{sPass}, 0\ns_mov_b32 s51, {SLOT}")
    A(f"s_mul_i32 s64, s{sH}, 5\ns_add_u32 s65, s64, 4\ns_lshr_b32 s64, s64, 5\ns_lshr_b32 s65, s65, 5\ns_sub_u32 s65, s65, s64")
    A(f"v_bfe_u32 v6, v1, 4, 1\nv_mul_u32_u24 v6, s65, v6\nv_lshrrev_b32 v7, 5, v1\nv_mul_u32_u24 v7, 5, v7\nv_add3_u32 v6, v6, v7, s64\nv_add_u32 v6, 5, v6")
    A(f"v_lshlrev_b32 v6, 7, v6\nv_and_b32 v7, 15, v1\nv_lshl_add_u32 v6, v7, 3, v6\nv_add_u32 v6, {F1}, v6")
    A(f"v_and_b32 v7, 1, v1\nv_mul_u32_u24 v7, s65, v7\nv_add_u32 v7, s64, v7\nv_lshlrev_b32 v7, 7, v7\nv_bfe_u32 v8, v1, 1, 1\ns_lshl_b32 s66, s{sQB}, 1\nv_add_u32 v8, s66, v8\nv_lshl_add_u32 v7, v8, 3, v7\nv_add_u32 v7, {F1}, v7")
    for m in range(3):
        A(f"s_add_u32 s64, s{S_W}, {8*m}\ns_lshr_b32 s65, s64, 1\ns_and_b32 s64, s64, 1\ns_lshl_b32 s64, s64, 10")
        A(f"s_mul_i32 s{sLd+m}, s65, {PS}\ns_add_u32 s{sLd+m}, s{sLd+m}, s64")
        A(f"s_cmp_ge_u32 s65, 5\ns_cselect_b32 s66, 155, 0\ns_add_u32 s65, s65, s66\ns_add_u32 s65, s65, 160\ns_mul_i32 s66, s{sH}, 5\ns_add_u32 s65, s65, s66")
        A(f"s_mul_i32 s65, s65, {PL}\ns_add_u32 s65, s65, s64\ns_add_u32 s{sG+m}, s65, {QKVP}")
    A(f"v_lshlrev_b32 v{vD}, 4, v1")
    A(f"s_lshr_b32 s64, s{S_W}, 1\ns_min_u32 s64, s64, 2\ns_mul_i32 s64, s64, {SLOT}\ns_and_b32 s65, s{S_W}, 1\ns_lshl_b32 s65, s65, 10\ns_add_u32 s64, s64, s65\ns_add_u32 s64, s64, {10*PS}")
    A(f"v_add_u32 v9, s64, v{vD}")
    for i in range(4):
        A(f"v_mov_b32 v{120+i}, 0x3f803f80")
    A(f"ds_write_b128 v9, v[120:123]\nv_mov_b32 v9, {BADW}\nv_mov_b32 v10, 0\nds_write_b32 v9, v10")
    A(f"s_and_b32 s64, s{S_W}, 3\ns_lshl_b32 s64, s64, 6\ns_lshr_b32 s65, s{S_W}, 2\ns_lshl_b32 s66, s65, 5\ns_add_u32 s64, s64, s66")
    A(f"v_and_b32 v12, 31, v1\nv_add_u32 v13, s64, v12\nv_lshlrev_b32 v13, 3, v13\nv_lshrrev_b32 v14, 5, v1")
    A(f"v_mov_b32 v124, v13")
    A(f"v_mul_u32_u24 v15, {2*PL}, v14\nv_add_u32 v10, v15, v13\nv_lshlrev_b32 v15, 31, v14\nv_or_b32 v11, v15, v13")
    A(f"v_xor_b32 v16, 256, v10\nv_xor_b32 v17, 256, v11") if PL % 512 == 0 else A(
        f"v_xor_b32 v16, 256, v13\nv_sub_u32 v16, v16, v13\nv_add_u32 v17, v16, v11\nv_add_u32 v16, v16, v10")
    A(f"s_lshl_b32 s65, s65, 7\nv_add_u32 v12, s65, v12\nv_lshlrev_b32 v12, 3, v12")
    A(f"v_mul_u32_u24 v15, {2*PS}, v14\nv_add_u32 v125, v15, v12\nv_mul_u32_u24 v15, {6*PS}, v14\nv_add_u32 v15, {4*PS}, v15\nv_add_u32 v126, v15, v12")
    A(f"v_bfe_u32 v15, v1, 4, 1\nv_lshlrev_b32 v15, 2, v15\nv_and_b32 v18, 3, v1\nv_add_u32 v15, v15, v18\nv_min_u32 v15, 5, v15\nv_add_u32 v15, 5, v15\nv_mul_u32_u24 v15, {PS}, v15")
    A(f"v_bfe_u32 v18, v1, 2, 2\nv_lshl_add_u32 v18, v14, 2, v18\nv_add_u32 v18, s65, v18\nv_lshl_add_u32 v127, v18, 3, v15")
    sk = uid("AP")
    A(f"s_cmp_lg_u32 s{S_W}, 0\ns_cbranch_scc1 {sk}")
    poll([6, 7], t=120)
    A(f"{sk}:\ns_waitcnt lgkmcnt(0)\ns_barrier")
    stamp(4)
    A(f"s_mul_i32 s64, s{sH}, {5*PL}\ns_lshl_b32 s65, s{sQB}, 11\ns_add_u32 s64, s64, s65\ns_add_u32 s64, s64, {QKVP}\ns_add_u32 s65, s64, {PL}\ns_add_u32 s66, s64, {4*PL}")

    def dma_stage(cond_label=None):
        for m in range(3):
            if m == 2:
                sk2 = uid("D3")
                A(f"s_cmp_ge_u32 s{S_W}, 4\ns_cbranch_scc1 {sk2}")
            A(f"s_add_u32 m0, s{sDst}, s{sLd+m}\ns_add_u32 s68, s{sG+m}, s{sBlk}")
            dma(vD, WS, 68, "sc1")
            if m == 2:
                A(f"{sk2}:")
        A(f"s_add_u32 s{sBlk}, s{sBlk}, 2048\ns_and_b32 s{sBlk}, s{sBlk}, 16383")
        A(f"s_add_u32 s{sDst}, s{sDst}, {SLOT}\ns_cmp_eq_u32 s{sDst}, {3*SLOT}\ns_cselect_b32 s{sDst}, 0, s{sDst}")

    A(f"s_lshl_b32 s{sBlk}, s{sQB}, 11\ns_mov_b32 s{sDst}, 0")
    dma_stage()
    for x in range(2):
        a0, a1 = (10, 11) if x == 0 else (16, 17)
        A(f"buffer_load_dwordx2 {vr(52+6*x,2)}, v{a0}, {S(WS)}, s64 offen sc1")
        A(f"buffer_load_dwordx2 {vr(54+6*x,2)}, v{a0}, {S(WS)}, s65 offen sc1")
        A(f"buffer_load_dwordx2 {vr(56+6*x,2)}, v{a1}, {S(WS)}, s66 offen sc1")
    dma_stage()
    A("s_waitcnt vmcnt(2)")
    for i in range(12):
        A(f"v_mov_b32 v{8+i}, v{52+i}")
    A("L_ATT_MAIN:")
    A(f"v_mov_b32 v{vK}, v125\nv_mov_b32 v{vK1}, v126\nv_mov_b32 v{vV}, v127")
    for i in range(32):
        A(f"v_mov_b32 v{O[0]+i}, 0")
    for i in range(4):
        A(f"v_mov_b32 v{P+4+i}, 0\nv_mov_b32 v{Vf[1]+4+i}, 0")
    A(f"s_mov_b32 s{sCnt}, 0\ns_mov_b32 s{sDel}, 0")
    A("s_waitcnt vmcnt(2)\ns_barrier")
    stamp(5)

    def kreads(kl, off):
        A(f"ds_read_b64 {vr(kl,2)}, v{vK} offset:{off}\nds_read_b64 {vr(kl+2,2)}, v{vK} offset:{off+PS}\nds_read_b64 {vr(kl+4,2)}, v{vK1} offset:{off}")

    def vreads(vl, off):
        for j in range(4):
            A(f"ds_read_b64_tr_b16 {vr(vl+2*j,2)}, v{vV} offset:{off+64*j}")

    kreads(Kf[0], 0)
    vreads(Vf[0], 0)
    A("s_waitcnt lgkmcnt(4)")
    A(f"{MF32} {vr(SS[0],16)}, {vr(Kf[0],4)}, {vr(Q[0],4)}, 0\n{MF8} {vr(SS[0],16)}, {vr(Kf[0]+4,2)}, {vr(Q[0]+4,2)}, {vr(SS[0],16)}")
    A("s_nop 7\ns_nop 2")
    A(".p2align 6\nL_ATT_LOOP:")

    def unit(x, kt):
        s = SS[x]; sn = SS[1 - x]
        nk = kt if x == 0 else kt + 1
        kf = Kf[nk & 1]; qn = Q[1 - x]
        pk = kt - 1 if x == 0 else kt
        vprev = Vf[pk & 1]; v = Vf[kt & 1]
        e = lambda i: A(f"v_exp_f32 v{s+i}, v{s+i}")
        c = lambda i: A(f"v_cvt_pk_bf16_f32 v{P+i}, v{s+2*i}, v{s+2*i+1}")
        if x == 1:
            A("s_waitcnt lgkmcnt(0)")
        A(f"{MF32} {vr(sn,16)}, {vr(kf,4)}, {vr(qn,4)}, 0")
        e(0); e(1); e(2); e(3)
        A(f"{MF8} {vr(sn,16)}, {vr(kf+4,2)}, {vr(qn+4,2)}, {vr(sn,16)}")
        c(0); c(1); e(4); e(5); e(6); e(7)
        A(f"{MF32} {vr(O[1-x],16)}, {vr(vprev+4,4)}, {vr(P+4,4)}, {vr(O[1-x],16)}")
        if x == 0:
            if kt == 3:
                A(f"s_cmp_eq_u32 s{sDel}, {2*SLOT}\ns_cselect_b32 s68, {-2*SLOT & 0xffffffff}, s51\ns_add_u32 s{sDel}, s{sDel}, s68")
                A(f"v_add_u32 v{vK}, s68, v{vK}\nv_add_u32 v{vK1}, s68, v{vK1}\nv_add_u32 v{vV}, s68, v{vV}")
                A("s_waitcnt vmcnt(0)\ns_barrier")
                kreads(Kf[0], 0)
                sk3 = uid("ND")
                A(f"s_cmp_ge_u32 s{sCnt}, 6\ns_cbranch_scc1 {sk3}")
                dma_stage()
                A(f"{sk3}:")
            else:
                kreads(Kf[(kt + 1) & 1], 256 * (kt + 1))
        else:
            vreads(Vf[(kt + 1) & 1], 256 * ((kt + 1) & 3))
        c(2); c(3); e(8); e(9); e(10); e(11)
        if x == 0:
            A("s_waitcnt lgkmcnt(3)")
        A(f"{MF32} {vr(O[x],16)}, {vr(v,4)}, {vr(P,4)}, {vr(O[x],16)}")
        c(4); c(5); e(12); e(13); e(14); e(15); c(6); c(7)

    for kt in range(4):
        unit(0, kt)
        unit(1, kt)
    A(f"s_add_u32 s{sCnt}, s{sCnt}, 1\ns_cmp_lt_u32 s{sCnt}, 8\ns_cbranch_scc1 L_ATT_LOOP")
    A(f"{MF32} {vr(O[1],16)}, {vr(Vf[1]+4,4)}, {vr(P+4,4)}, {vr(O[1],16)}")
    stamp(6)
    A(f"s_lshl_b32 s64, s{S_W}, 12\ns_add_u32 s64, s64, {RED}")
    assert RED + 8 * 4096 <= BADW
    A(f"s_xor_b32 s65, s{S_W}, 4\ns_lshl_b32 s65, s65, 12\ns_add_u32 s65, s65, {RED}")
    A(f"v_add_u32 v6, s64, v{vD}\nv_add_u32 v7, s65, v{vD}")
    A(f"s_mul_i32 s64, s{sH}, {5*PL}\ns_lshl_b32 s65, s{sQB}, 11\ns_add_u32 s64, s64, s65\ns_add_u32 s64, s64, {OP}\ns_add_u32 s65, s64, {2*PL}\ns_add_u32 s66, s64, {4*PL}")
    A(f"v_lshrrev_b32 v120, 5, v1\nv_mul_u32_u24 v121, {PL}, v120\nv_add_u32 v121, v121, v124\nv_lshlrev_b32 v120, 31, v120\nv_or_b32 v120, v120, v124")
    A("s_waitcnt lgkmcnt(0)\ns_nop 1")
    for g in range(4):
        A(f"ds_write_b128 v6, {vr(O[1]+4*g,4)} offset:{1024*g}")
    A("s_waitcnt lgkmcnt(0)\ns_barrier")
    for g in range(4):
        A(f"ds_read_b128 {vr(52+4*g,4)}, v7 offset:{1024*g}")
    A("s_waitcnt lgkmcnt(0)")
    o = O[0]
    A(f"v_add_f32 v{o+12}, v{o+12}, v{52+12}")
    for i in range(0, 12, 2):
        A(f"v_pk_add_f32 {vr(o+i,2)}, {vr(o+i,2)}, {vr(52+i,2)}")
    A(f"v_rcp_f32 v68, v{o+12}\nv_mov_b32 v70, 0\nv_mov_b32 v71, 0\nv_mov_b32 v69, v68")
    for i in range(0, 12, 2):
        A(f"v_pk_fma_f32 v[70:71], {vr(o+i,2)}, 0, v[70:71] op_sel_hi:[1,0,1]")
    for g in range(3):
        a = o + 4 * g
        A(f"v_pk_mul_f32 {vr(a,2)}, {vr(a,2)}, v[68:69]\nv_pk_mul_f32 {vr(a+2,2)}, {vr(a+2,2)}, v[68:69]")
        A(f"v_cvt_pk_bf16_f32 v{72+2*g}, v{a}, v{a+1}\nv_cvt_pk_bf16_f32 v{73+2*g}, v{a+2}, v{a+3}")
        A(f"buffer_store_dwordx2 {vr(72+2*g,2)}, v{121 if g < 2 else 120}, {S(WS)}, s{64+g} offen sc1")
    lo, hi = f2u(2.0 ** -60), f2u(2.0 ** 60)
    if OPT["force_fb"]:
        hi = f2u(2.0 ** -59)
    A(f"v_cmp_u_f32 vcc, v70, v71\nv_mov_b32 v78, {lo}\nv_mov_b32 v79, {hi}")
    A(f"v_cmp_ngt_f32 s[66:67], v{o+12}, v78\ns_or_b64 vcc, vcc, s[66:67]\nv_cmp_nlt_f32 s[66:67], v{o+12}, v79\ns_or_b64 vcc, vcc, s[66:67]")
    nb = uid("NB")
    A(f"v_mov_b32 v78, {BADW}\ns_cbranch_vccz {nb}\nv_mov_b32 v79, 1\nds_write_b32 v78, v79\n{nb}:")
    A(f"s_lshl_b32 s68, s{sQB}, 8\ns_lshl_b32 s69, s{sH}, 3\ns_add_u32 s68, s68, s69\ns_add_u32 s68, s68, {F4}")
    A("s_waitcnt vmcnt(0) lgkmcnt(0)\ns_barrier")
    A(f"s_cmp_lg_u32 s{sPass}, 0\ns_cbranch_scc1 L_ATT_PUB")
    A("ds_read_b32 v79, v78\ns_waitcnt lgkmcnt(0)\nv_readfirstlane_b32 s64, v79\ns_cmp_lg_u32 s64, 0\ns_cbranch_scc1 L_ATT_FB")
    A("L_ATT_PUB:")
    flag_store(68)
    stamp(7)
    A(f"s_cmp_lg_u32 s2, 0\ns_cbranch_scc1 L_A_DONE\ns_cmp_lg_u32 s{S_W}, 1\ns_cbranch_scc1 L_A_DONE")
    A(f"v_lshlrev_b32 v6, 3, v1")
    for m in range(4):
        A(f"v_add_u32 v{8+m}, {F4 + 512*m}, v6")
    A(f"v_lshrrev_b32 v6, 3, v1\nv_lshlrev_b32 v6, 7, v6\nv_and_b32 v7, 7, v1\nv_lshl_add_u32 v6, v7, 3, v6")
    for m in range(4):
        A(f"v_add_u32 v{12+m}, {F3 + 1024*m}, v6")
    poll(list(range(8, 16)), t=20)
    A(f"v_mov_b32 v20, s{S_E}\ns_mov_b64 exec, 1\nbuffer_store_dword v20, off, {S(WS)}, 0 offset:{EPOCH} sc1\ns_mov_b64 exec, -1")
    A("L_A_DONE:")
    dump_stamps(8)
    A("s_endpgm")

    A("L_ATT_FB:")
    A(f"s_mov_b32 s{sPass}, 1\ns_mov_b32 s{sCnt}, 0\ns_mov_b32 s{sBlk}, 0")
    A(f"v_mov_b32 v20, 0xff800000\nv_mov_b32 v21, 0xff800000")
    A(f"v_mov_b32 v{vK}, v125\nv_mov_b32 v{vK1}, v126")
    A("L_FB_LOOP:")
    A(f"s_mov_b32 s{sDst}, 0\ns_barrier")
    dma_stage()
    A("s_waitcnt vmcnt(0)\ns_barrier")
    for kt in range(4):
        kreads(Kf[0], 256 * kt)
        A("s_waitcnt lgkmcnt(0)")
        for x in range(2):
            A(f"{MF32} {vr(SS[x],16)}, {vr(Kf[0],4)}, {vr(Q[x],4)}, 0\n{MF8} {vr(SS[x],16)}, {vr(Kf[0]+4,2)}, {vr(Q[x]+4,2)}, {vr(SS[x],16)}")
        A("s_nop 15")
        for x in range(2):
            for i in range(0, 16, 2):
                A(f"v_max3_f32 v{20+x}, v{SS[x]+i}, v{SS[x]+i+1}, v{20+x}")
    A(f"s_add_u32 s{sCnt}, s{sCnt}, 1\ns_cmp_lt_u32 s{sCnt}, 8\ns_cbranch_scc1 L_FB_LOOP")
    for x in range(2):
        A(f"v_mov_b32 v22, v{20+x}\ns_nop 1\nv_permlane32_swap_b32 v{20+x}, v22\nv_max_f32 v{20+x}, v{20+x}, v22")
    A(f"s_barrier\nds_write_b64 v6, v[20:21]\ns_waitcnt lgkmcnt(0)\ns_barrier\nds_read_b64 v[22:23], v7\ns_waitcnt lgkmcnt(0)")
    A("v_max_f32 v20, v20, v23\nv_max_f32 v21, v21, v22")
    A("v_cmp_le_u32 vcc, 32, v1")
    for x in range(2):
        A(f"v_sub_f32 v24, 0, v{20+x}\nv_and_b32 v25, 0xffff0000, v24\nv_sub_f32 v24, v24, v25\nv_and_b32 v26, 0xffff0000, v24\nv_sub_f32 v24, v24, v26")
        A(f"v_lshrrev_b32 v25, 16, v25\nv_or_b32 v25, v25, v26\nv_lshrrev_b32 v24, 16, v24")
        A(f"v_cndmask_b32 v{Q[x]+4}, v{Q[x]+4}, v25, vcc\nv_cndmask_b32 v{Q[x]+5}, v{Q[x]+5}, v24, vcc")
    A(f"s_lshr_b32 s64, s{S_W}, 1\ns_min_u32 s64, s64, 2\ns_mul_i32 s64, s64, {SLOT}\ns_and_b32 s65, s{S_W}, 1\ns_lshl_b32 s65, s65, 10\ns_add_u32 s64, s64, s65\ns_add_u32 s64, s64, {10*PS}")
    A(f"v_add_u32 v24, s64, v{vD}")
    for i in range(4):
        A(f"v_mov_b32 v{120+i}, 0x3f803f80")
    A("s_barrier\nds_write_b128 v24, v[120:123]\ns_waitcnt lgkmcnt(0)")
    A(f"s_lshl_b32 s{sBlk}, s{sQB}, 11\ns_mov_b32 s{sDst}, 0")
    dma_stage()
    dma_stage()
    A("s_branch L_ATT_MAIN")


def cmul(d, a, b, t):
    A(f"v_pk_mul_f32 {vr(t,2)}, {vr(a,2)}, {vr(b,2)} op_sel:[0,0] op_sel_hi:[1,0]")
    A(f"v_pk_fma_f32 {vr(d,2)}, {vr(a,2)}, {vr(b,2)}, {vr(t,2)} op_sel:[1,1,0] op_sel_hi:[0,1,1] neg_lo:[0,1,0]")


def cfma(d, a, b, c, t):
    A(f"v_pk_fma_f32 {vr(t,2)}, {vr(a,2)}, {vr(b,2)}, {vr(c,2)} op_sel:[0,0,0] op_sel_hi:[1,0,1]")
    A(f"v_pk_fma_f32 {vr(d,2)}, {vr(a,2)}, {vr(b,2)}, {vr(t,2)} op_sel:[1,1,0] op_sel_hi:[0,1,1] neg_lo:[0,1,0]")


def gather4(src, dst):
    for c in range(2):
        A(f"v_mov_b32 v{dst+c}, v{src+c}\nv_mov_b32 v{dst+2+c}, v{src+c}")
    A("s_nop 0")
    for c in range(2):
        A(f"v_permlane16_swap_b32 v{dst+c}, v{dst+2+c}")
    for c in range(4):
        A(f"v_mov_b32 v{dst+4+c}, v{dst+c}")
    for c in range(4):
        A(f"v_permlane32_swap_b32 v{dst+c}, v{dst+4+c}")


def role_b():
    sTC, sNB, sK = 41, 42, 43
    A("L_ROLE_B:")
    if OPT["bprio"]:
        A(f"s_setprio {OPT['bprio']}")
    A(f"s_and_b32 s68, s2, 7\ns_lshr_b32 s69, s2, 3\ns_and_b32 s69, s69, 31")
    A(f"s_and_b32 s{sTC}, s68, 3\ns_lshl_b32 s{sTC}, s{sTC}, 3\ns_and_b32 s64, s69, 7\ns_add_u32 s{sTC}, s{sTC}, s64")
    A(f"s_lshr_b32 s{sNB}, s68, 2\ns_lshl_b32 s{sNB}, s{sNB}, 2\ns_lshr_b32 s64, s69, 3\ns_add_u32 s{sNB}, s{sNB}, s64")
    A(f"s_mul_i32 s94, s{sNB}, 3\ns_add_u32 s94, s94, s{sTC}")
    mod10(94, 94, 64)
    A("s_waitcnt lgkmcnt(0)")
    A(f"s_load_dword s{S_E}, s[{P_WS}:{P_WS+1}], {EPOCH}")
    srd(WS, P_WS, WS_USED)
    MU, CF, MU16, PW, LAM, LAM8 = 2, 4, 6, 8, 10, 12
    A(f"s_mul_i32 s64, s{sNB}, 80\ns_lshl_b32 s65, s{S_W}, 4\ns_add_u32 s64, s64, s65")
    A(f"v_and_b32 v20, 15, v1\nv_add_u32 v20, s64, v20\nv_lshlrev_b32 v21, 1, v20")
    srd(R0, P_LRE, 1280); srd(R1, P_LIM, 1280); srd(R2, P_LDT, 1280)
    A(f"buffer_load_ushort v22, v21, {S(R0)}, 0 offen\nbuffer_load_ushort v23, v21, {S(R1)}, 0 offen\nbuffer_load_ushort v24, v21, {S(R2)}, 0 offen")
    A("s_waitcnt vmcnt(0) lgkmcnt(0)")
    epoch_fix()
    LOG2E = f2u(math.log2(math.e))
    A("v_lshlrev_b32 v22, 16, v22\nv_lshlrev_b32 v23, 16, v23\nv_lshlrev_b32 v24, 16, v24")
    A(f"v_mul_f32 v24, {LOG2E}, v24\nv_exp_f32 v24, v24\ns_nop 0\nv_cvt_pk_bf16_f32 v24, v24, v24\nv_lshlrev_b32 v24, 16, v24")
    A(f"v_mul_f32 v25, v24, v22\nv_mul_f32 v26, v24, v23\nv_mul_f32 v25, {LOG2E}, v25\nv_exp_f32 v25, v25")
    A(f"v_mul_f32 v26, 0.15915494, v26\nv_fract_f32 v26, v26\nv_cos_f32 v27, v26\nv_sin_f32 v28, v26\ns_nop 0")
    A(f"v_mul_f32 v{MU}, v25, v27\nv_mul_f32 v28, v25, v28\nv_sub_f32 v{MU+1}, 0, v28")
    A(f"v_add_f32 v27, -1.0, v{MU}")
    A("v_mul_f32 v25, v22, v22\nv_fmac_f32 v25, v23, v23\nv_rcp_f32 v25, v25")
    A("v_mul_f32 v26, v27, v22\nv_fmac_f32 v26, v28, v23\nv_mul_f32 v29, v28, v22\nv_fma_f32 v29, -v27, v23, v29")
    A(f"v_add_f32 v25, v25, v25\nv_mul_f32 v{CF}, v26, v25\nv_mul_f32 v29, v29, v25\nv_sub_f32 v{CF+1}, 0, v29")
    cmul(MU16, MU, MU, 22)
    for _ in range(3):
        cmul(MU16, MU16, MU16, 22)
    cmul(24, MU16, MU16, 22)
    cmul(26, 24, MU16, 22)
    cmul(LAM, 24, 24, 22)
    cmul(LAM8, LAM, LAM, 22)
    cmul(LAM8, LAM8, LAM8, 22)
    cmul(LAM8, LAM8, LAM8, 22)
    A("v_mov_b32 v16, v20\nv_lshrrev_b32 v28, 4, v1")
    A(f"v_cmp_eq_u32 s[96:97], 1, v28\nv_cmp_eq_u32 s[98:99], 2, v28\nv_cmp_eq_u32 s[100:101], 3, v28")
    A(f"v_mov_b32 v{PW}, 1.0\nv_mov_b32 v{PW+1}, 0")
    for src, m in ((MU16, 96), (24, 98), (26, 100)):
        for c in range(2):
            A(f"v_cndmask_b32 v{PW+c}, v{PW+c}, v{src+c}, s[{m}:{m+1}]")
    vS0, vRA, vRB = 14, 18, 22
    srd(R0, P_BX, 2621440); srd(R1, P_BRE, 819200); srd(R2, P_BIM, 819200)
    A(f"s_lshl_b32 s{sK}, s94, 7")
    A("v_lshrrev_b32 v30, 4, v1\nv_and_b32 v31, 7, v1\nv_xor_b32 v31, v31, v30\nv_lshlrev_b32 v31, 4, v31")
    ld = uid("G1L")
    A(f"s_cmp_ge_u32 s{S_W}, 5\ns_cbranch_scc1 L_G1_LOADER")
    A(f"v_lshrrev_b32 v30, 3, v1\nv_add_u32 v30, s64, v30\nv_mul_u32_u24 v30, 1280, v30\nv_add_u32 v{vS0}, v30, v31")
    A(f"v_xor_b32 v{vS0+1}, 64, v{vS0}\nv_add_u32 v{vS0+1}, 10240, v{vS0+1}")
    A(f"v_and_b32 v30, 31, v1\nv_lshlrev_b32 v30, 7, v30\nv_lshrrev_b32 v31, 5, v1\nv_bfe_u32 v29, v1, 1, 3\nv_xor_b32 v31, v31, v29\nv_lshl_add_u32 v{vRA}, v31, 4, v30")
    A(f"s_lshl_b32 s65, s{S_W}, 13\ns_add_u32 s65, s65, 24576")
    for u in range(1, 4):
        A(f"v_xor_b32 v{vRA+u}, {32*u}, v{vRA}")
    for u in range(4):
        A(f"v_add_u32 v{vRB+u}, s65, v{vRA+u}")
    if OPT["hint"]:
        sk = uid("HP")
        A(f"s_cmp_lg_u32 s{S_W}, 0\ns_cbranch_scc1 {sk}")
        A(f"s_sub_u32 s66, s2, 256\ns_lshl_b32 s66, s66, 7\ns_add_u32 s66, s66, {F0}\nv_mov_b32 v30, s66")
        poll([30], t=120)
        A(f"{sk}:\ns_barrier")
    stamp(1)

    def advK():
        A(f"s_add_u32 s{sK}, s{sK}, 128\ns_cmp_eq_u32 s{sK}, 1280\ns_cselect_b32 s{sK}, 0, s{sK}")

    def dmaB(Sx):
        for q in range(4):
            A(f"s_add_u32 m0, s65, {(Sx % 2) * 4096 + q * 1024}\ns_nop 0")
            dma(vS0 + (q & 1), R1 if q < 2 else R2, sK)
        advK()

    ACC, BF, AF = 32, 64, 80
    dmaB(0); dmaB(1)
    for Sx in range(10):
        A(f"s_waitcnt vmcnt({4 if Sx < 9 else 0})")
        for u in range(4):
            A(f"ds_read_b128 {vr(BF+4*u,4)}, v{vRB+u} offset:{(Sx % 2) * 4096}")
        A("s_barrier")
        for u in range(4):
            for tt in range(2):
                A(f"ds_read_b128 {vr(AF+8*u+4*tt,4)}, v{vRA+u} offset:{(Sx % 3) * 8192 + 4096*tt}")
        if Sx + 2 < 10:
            A("s_waitcnt lgkmcnt(8)")
            dmaB(Sx + 2)
        for u in range(4):
            A(f"s_waitcnt lgkmcnt({6-2*u})")
            for tt in range(2):
                c = "0" if (Sx == 0 and u == 0) else vr(ACC + 16 * tt, 16)
                A(f"{MF32} {vr(ACC+16*tt,16)}, {vr(AF+8*u+4*tt,4)}, {vr(BF+4*u,4)}, {c}")
    stamp(2)
    A("s_nop 11")
    for i in range(16):
        A(f"v_permlane16_swap_b32 v{ACC+2*i}, v{ACC+2*i+1}")
    for i in range(16):
        u = ACC + 2 * i
        t = 64 + 2 * (i & 1)
        A(f"v_pk_mul_f32 {vr(t,2)}, {vr(u,2)}, {vr(CF,2)} op_sel:[0,0] op_sel_hi:[0,1]")
        A(f"v_pk_fma_f32 {vr(u,2)}, {vr(u,2)}, {vr(CF,2)}, {vr(t,2)} op_sel:[1,1,0] op_sel_hi:[1,0,1] neg_hi:[0,1,0]")
    G, T = 68, 70
    cfma(G, ACC, MU, ACC + 2, T)
    for i in range(2, 16):
        cfma(G, G, MU, ACC + 2 * i, T)
    E4 = 72
    gather4(G, E4)
    PRE = 80
    cfma(82, E4, MU16, E4 + 2, T)
    cfma(84, 82, MU16, E4 + 4, T)
    cfma(86, 84, MU16, E4 + 6, T)
    A(f"v_mov_b32 v{PRE}, 0\nv_mov_b32 v{PRE+1}, 0")
    for src, m in ((E4, 96), (82, 98), (84, 100)):
        for c in range(2):
            A(f"v_cndmask_b32 v{PRE+c}, v{PRE+c}, v{src+c}, s[{m}:{m+1}]")
    A(f"s_mul_i32 s64, s{sNB}, 20480\ns_add_u32 s64, s64, {EB}\ns_add_u32 s{R3}, s{P_WS}, s64\ns_addc_u32 s{R3+1}, s{P_WS+1}, 0\ns_and_b32 s{R3+1}, s{R3+1}, 0xffff\ns_mov_b32 s{R3+2}, 20480\ns_mov_b32 s{R3+3}, 0x20000")
    A(f"v_and_b32 v88, 15, v1\ns_lshl_b32 s64, s{S_W}, 4\nv_add_u32 v88, s64, v88\nv_lshlrev_b32 v88, 3, v88")
    A(f"s_mul_i32 s64, s{sTC}, 640\ns_mov_b64 exec, 0xffff")
    A(f"buffer_store_dwordx2 v[86:87], v88, {S(R3)}, s64 offen sc1\ns_mov_b64 exec, -1")
    A(f"s_lshl_b32 s68, s{sNB}, 8\ns_lshl_b32 s69, s{sTC}, 3\ns_add_u32 s68, s68, s69\ns_add_u32 s68, s68, {F2}")
    A("s_waitcnt vmcnt(0)\ns_barrier")
    flag_store(68)
    stamp(3)
    A(f"v_and_b32 v89, 31, v1\nv_min_u32 v89, s{sTC}, v89\nv_lshlrev_b32 v89, 3, v89\ns_lshl_b32 s68, s{sNB}, 8\ns_add_u32 s68, s68, {F2}\nv_add_u32 v89, s68, v89")
    poll([89], t=120)
    stamp(4)
    A(f"v_lshrrev_b32 v89, 4, v1\nv_mul_u32_u24 v89, {8*640}, v89\ns_mul_i32 s64, s{sTC}, 640\ns_sub_u32 s64, s64, {8*640}\nv_sub_u32 v89, s64, v89\nv_add_u32 v88, v88, v89")
    EL = 96
    for u in range(8):
        if u:
            A("v_add_u32 v88, 640, v88")
        A(f"buffer_load_dwordx2 {vr(EL+2*u,2)}, v88, {S(R3)}, 0 offen sc1")
    A("s_waitcnt vmcnt(6)")
    cfma(G, EL, LAM, EL + 2, T)
    for u in range(2, 8):
        A(f"s_waitcnt vmcnt({7-u})")
        cfma(G, G, LAM, EL + 2 * u, T)
    gather4(G, E4)
    cfma(G, E4 + 6, LAM8, E4 + 4, T)
    cfma(G, G, LAM8, E4 + 2, T)
    cfma(G, G, LAM8, E4, T)
    cfma(G, G, PW, PRE, T)
    cfma(ACC, G, MU, ACC, T)
    for i in range(1, 16):
        cfma(ACC + 2 * i, ACC + 2 * i - 2, MU, ACC + 2 * i, T)
    PK = 64
    A(f"v_lshrrev_b32 v88, 4, v1\nv_mul_u32_u24 v88, 40960, v88\nv_lshl_add_u32 v88, v16, 4, v88")
    A(f"s_mul_i32 s64, s{sTC}, 163840\ns_add_u32 s64, s64, {HB}")
    for tt in range(2):
        for c in range(2):
            d = PK + 8 * tt + 4 * c
            for m in range(4):
                a = ACC + 16 * tt + 4 * m + c
                A(f"v_cvt_pk_bf16_f32 v{d+m}, v{a}, v{a+2}")
            A(f"s_add_u32 s65, s64, {tt*20480 + c*10240}")
            A(f"buffer_store_dwordx4 {vr(d,4)}, v88, {S(WS)}, s65 offen sc1")
    A("s_waitcnt vmcnt(0)\ns_branch L_B_H")

    A("L_G1_LOADER:")
    A(f"s_sub_u32 s65, s{S_W}, 6\ns_max_i32 s65, s65, 0")
    A(f"v_lshrrev_b32 v30, 5, v1\nv_bfe_u32 v29, v1, 3, 1\nv_lshl_add_u32 v30, v30, 1, v29\nv_lshlrev_b32 v30, 4, v30\nv_bfe_u32 v29, v1, 4, 1\nv_add_u32 v30, v30, v29")
    A(f"s_lshl_b32 s66, s{sTC}, 6\ns_lshl_b32 s67, s65, 3\ns_add_u32 s66, s66, s67\nv_add_u32 v30, s66, v30\nv_mul_u32_u24 v30, 1280, v30\nv_add_u32 v{vS0}, v30, v31")
    A(f"v_xor_b32 v{vS0+1}, 64, v{vS0}\nv_add_u32 v{vS0+1}, 2560, v{vS0+1}\nv_add_u32 v{vS0+2}, 5120, v{vS0}\nv_add_u32 v{vS0+3}, 5120, v{vS0+1}")
    A("s_lshl_b32 s65, s65, 12")
    if OPT["hint"]:
        A("s_barrier")
    A(f"s_cmp_eq_u32 s{S_W}, 5\ns_cbranch_scc1 L_G1_IDLE")

    def dmaX(Sx):
        for q in range(4):
            A(f"s_add_u32 m0, s65, {(Sx % 3) * 8192 + q * 1024}\ns_nop 0")
            dma(vS0 + q, R0, sK)
        advK()

    dmaX(0); dmaX(1)
    for Sx in range(10):
        A(f"s_waitcnt vmcnt({4 if Sx < 9 else 0})\ns_barrier")
        if Sx + 2 < 10:
            dmaX(Sx + 2)
    A("s_barrier\ns_branch L_B_H")
    A("L_G1_IDLE:")
    for _ in range(11):
        A("s_barrier")
    A("L_B_H:")
    A(f"s_lshl_b32 s68, s{sTC}, 7\ns_lshl_b32 s69, s{sNB}, 3\ns_add_u32 s68, s68, s69\ns_add_u32 s68, s68, {F3}")
    A("s_barrier")
    flag_store(68)
    stamp(5)
    A(f"s_cmp_ge_u32 s{S_W}, 4\ns_cbranch_scc1 L_B_SMALL")
    tail_gemms(True)
    A("L_B_SMALL:")
    tail_gemms(False)


def tail_gemms(big):
    sTC, sNB, sK = 41, 42, 43
    nacc = 16 if big else 4
    ACC = 32
    nfr = 32 if big else 16
    FR = [64, 64 + nfr]
    MF = MF32 if big else MF16
    per = 2 if big else 3
    A("v_bfe_u32 v2, v1, 2, 2\nv_and_b32 v3, 3, v1")
    if big:
        A(f"v_lshrrev_b32 v4, 5, v1\nv_and_b32 v5, 31, v1\ns_and_b32 s95, s{S_W}, 1\ns_lshr_b32 s96, s{S_W}, 1")
        A(f"s_lshl_b32 s97, s95, 5\ns_lshl_b32 s98, s96, 5")
    else:
        A(f"v_lshrrev_b32 v4, 4, v1\nv_and_b32 v5, 15, v1\ns_sub_u32 s95, s{S_W}, 4")
        A(f"s_lshl_b32 s97, s95, 4\ns_mov_b32 s98, 64")
    A(f"s_lshl_b32 s64, s{sTC}, 6\ns_add_u32 s64, s64, s97\nv_lshl_add_u32 v6, v4, 2, s64")
    A(f"s_mul_i32 s65, s{sNB}, 80\ns_add_u32 s65, s65, s98\nv_add_u32 v7, s65, v5")
    A("v_mul_u32_u24 v8, 1280, v6\nv_lshl_add_u32 v8, v7, 1, v8")
    A("v_mul_u32_u24 v9, 5120, v6\nv_lshl_add_u32 v9, v7, 2, v9")
    rows = [8 * (i >> 2) + (i & 3) for i in range(nacc)]
    srd(R3, P_DSK, 1280)
    A(f"v_lshlrev_b32 v10, 1, v7\nbuffer_load_ushort v10, v10, {S(R3)}, 0 offen")
    for i in range(nacc):
        A(f"s_mov_b32 s64, {rows[i]*1280}\nbuffer_load_ushort v{ACC+i}, v8, {S(R0)}, s64 offen")

    def pipeline(nst, dma_fn, reads_fn, mf_fn, first_c0):
        for Sx in range(nst):
            infl = min(Sx + 3, nst) - Sx - 1
            A(f"s_waitcnt vmcnt({per*infl})\ns_barrier")
            if Sx + 3 < nst:
                dma_fn(Sx + 3)
            reads_fn(Sx)
            if Sx >= 1:
                mf_fn(Sx - 1, first_c0 and Sx == 1)
            A("s_waitcnt lgkmcnt(0)")
        mf_fn(nst - 1, False)

    def mf(Sx, c0):
        f = FR[Sx & 1]
        n = 4 if big else 2
        for u in range(n):
            c = "0" if (c0 and u == 0) else vr(ACC, nacc)
            A(f"{MF} {vr(ACC,nacc)}, {vr(f+8*u,4)}, {vr(f+8*u+4,4)}, {c}")

    def store_out(coloff):
        A("s_nop 11" if big else "s_nop 7")
        for i in range(nacc):
            A(f"s_mov_b32 s64, {rows[i]*5120}\nbuffer_store_dword v{ACC+i}, v9, {S(R2)}, s64 offen offset:{coloff}")

    SL = 18944
    vA, vB, vS = 12, 14, 20
    srd(R1, P_CRE, 819200); srd(R2, P_CIM, 819200)
    if big:
        A(f"s_lshl_b32 s64, s95, 2\nv_bfe_u32 v11, v1, 4, 1\nv_lshlrev_b32 v11, 1, v11\nv_lshrrev_b32 v{vA}, 1, v3\nv_add3_u32 v11, v11, v{vA}, s64")
    else:
        A(f"s_lshl_b32 s64, s95, 1\nv_lshrrev_b32 v11, 1, v3\nv_add_u32 v11, s64, v11")
    A(f"v_mul_u32_u24 v11, 1088, v11\nv_lshl_add_u32 v{vA}, v4, 3, v2\nv_lshl_add_u32 v11, v{vA}, 4, v11\nv_and_b32 v{vA}, 1, v3\nv_lshl_add_u32 v{vA}, v{vA}, 3, v11")
    A(f"v_add_u32 v11, s98, v5\nv_lshlrev_b32 v11, 7, v11\nv_add_u32 v11, 8704, v11\nv_bfe_u32 v{vB}, v5, 1, 3\nv_xor_b32 v{vB}, v{vB}, v4\nv_lshl_add_u32 v{vB}, v{vB}, 4, v11")
    for u in range(1, 4 if big else 2):
        A(f"v_xor_b32 v{vB+u}, {(32 if big else 64)*u}, v{vB}")
    if big:
        A(f"v_lshlrev_b32 v{vS}, 4, v1")
        A(f"s_mul_i32 s44, s{sTC}, 163840\ns_mul_i32 s64, s{S_W}, 40960\ns_add_u32 s44, s44, s64\ns_add_u32 s44, s44, {HB}")
        A(f"s_mul_i32 s46, s{S_W}, 2176\ns_lshl_b32 s{sK}, s94, 10")
        A(f"v_and_b32 v11, 7, v1\nv_lshlrev_b32 v11, 3, v11\ns_lshl_b32 s64, s{sTC}, 7\ns_add_u32 s64, s64, {F3}\nv_add_u32 v11, s64, v11")
    else:
        A(f"v_lshrrev_b32 v11, 3, v1\ns_mul_i32 s64, s{sNB}, 80\ns_lshl_b32 s65, s95, 3\ns_add_u32 s64, s64, s65\nv_add_u32 v11, s64, v11\nv_mul_u32_u24 v11, 1280, v11")
        A(f"v_and_b32 v{vS}, 7, v1\nv_xor_b32 v{vS}, v{vS}, v4\ns_and_b32 s64, s95, 1\ns_lshl_b32 s64, s64, 2\nv_xor_b32 v{vS}, s64, v{vS}\nv_lshl_add_u32 v{vS}, v{vS}, 4, v11")
        A(f"v_add_u32 v{vS+1}, 40960, v{vS}\nv_add_u32 v{vS+2}, 81920, v{vS}")
        A(f"s_cmp_ge_u32 s95, 2\ns_cselect_b32 s64, {OOB}, 0\nv_or_b32 v{vS+2}, s64, v{vS+2}")
        A(f"s_lshl_b32 s46, s95, 10\ns_lshl_b32 s{sK}, s94, 7")
    A("s_waitcnt vmcnt(0)\nv_lshlrev_b32 v10, 16, v10")
    for i in range(nacc):
        A(f"v_lshlrev_b32 v{ACC+i}, 16, v{ACC+i}\nv_mul_f32 v{ACC+i}, v10, v{ACC+i}")

    def small_m0(slot_base, aoff, dummy, m):
        if m < 2:
            A(f"s_add_u32 m0, s46, {slot_base + aoff + 4096*m}\ns_nop 0")
        else:
            A(f"s_add_u32 s64, s46, {slot_base + aoff + 8192}\ns_cmp_ge_u32 s95, 2\ns_cselect_b32 m0, {dummy}, s64\ns_nop 0")

    def g2_dma(Sx):
        sb = (Sx % 4) * SL
        if big:
            for i in range(2):
                A(f"s_add_u32 m0, s46, {sb + 1088*i}\ns_add_u32 s64, s44, s{sK}")
                if i or Sx >= 10:
                    A(f"s_add_u32 s64, s64, {20480*i + (10240 if Sx >= 10 else 0)}")
                dma(vS, WS, 64, "sc1")
            A(f"s_add_u32 s{sK}, s{sK}, 1024\ns_cmp_eq_u32 s{sK}, 10240\ns_cselect_b32 s{sK}, 0, s{sK}")
        else:
            for m in range(3):
                small_m0(sb, 8704, 75776, m)
                dma(vS + m, R1 if Sx < 10 else R2, sK)
            A(f"s_add_u32 s{sK}, s{sK}, 128\ns_cmp_eq_u32 s{sK}, 1280\ns_cselect_b32 s{sK}, 0, s{sK}")

    def g2_reads(Sx):
        f, sb = FR[Sx & 1], (Sx % 4) * SL
        for u in range(4 if big else 2):
            for j in range(2):
                A(f"ds_read_b64_tr_b16 {vr(f+8*u+2*j,2)}, v{vA} offset:{sb + (256 if big else 512)*u + 64*j}")
            A(f"ds_read_b128 {vr(f+8*u+4,4)}, v{vB+u} offset:{sb}")

    if big:
        poll([11], t=120)
        stamp(6)
    for Sx in range(3):
        g2_dma(Sx)
    pipeline(20, g2_dma, g2_reads, mf, False)
    A("s_barrier")
    stamp(7)
    SL2 = 19456
    srd(R2, P_OUT, 10485760)
    vA2, vB2 = 12, 14
    if big:
        A(f"v_mul_u32_u24 v11, 1152, v4\nv_add_u32 v{vA2}, s97, v5\nv_lshl_add_u32 v{vA2}, v{vA2}, 3, v11")
        A(f"v_lshlrev_b32 v11, 1, v2\nv_lshl_add_u32 v11, v4, 3, v11\nv_mul_u32_u24 v11, 160, v11\nv_lshl_add_u32 v11, v3, 3, v11\nv_bfe_u32 v{vB2}, v1, 4, 1\nv_lshl_add_u32 v11, v{vB2}, 5, v11")
        A(f"s_lshl_b32 s64, s96, 6\ns_add_u32 s64, s64, 9216\nv_add_u32 v{vB2}, s64, v11")
        A(f"v_mul_u32_u24 v{vS}, {PL}, v4\nv_lshl_add_u32 v{vS}, v5, 4, v{vS}")
        A(f"s_mul_i32 s44, s{S_W}, {4*PL}\ns_lshl_b32 s64, s{sTC}, 9\ns_add_u32 s44, s44, s64\ns_add_u32 s44, s44, {OP}")
        A(f"s_mul_i32 s46, s{S_W}, 2304\ns_mul_i32 s{sK}, s94, {16*PL}")
        A(f"s_lshr_b32 s64, s{sTC}, 2\ns_lshl_b32 s64, s64, 8\ns_add_u32 s64, s64, {F4}\nv_lshlrev_b32 v11, 3, v5\nv_add_u32 v11, s64, v11")
    else:
        A(f"v_mul_u32_u24 v11, 1152, v4\nv_add_u32 v{vA2}, s97, v5\nv_lshl_add_u32 v{vA2}, v{vA2}, 3, v11")
        A(f"v_lshlrev_b32 v11, 1, v2\nv_lshl_add_u32 v11, v4, 3, v11\nv_mul_u32_u24 v11, 160, v11\nv_lshl_add_u32 v11, v3, 3, v11\nv_add_u32 v{vB2}, {9216+128}, v11")
        srd(R1, P_WO, 819200)
        A(f"s_mul_i32 s65, s{sNB}, 160")
        for m in range(3):
            A(f"s_lshl_b32 s64, s95, 6\ns_add_u32 s64, s64, {256*m}\nv_add_u32 v24, s64, v1")
            A(f"v_mul_u32_u24 v25, 6554, v24\nv_lshrrev_b32 v25, 16, v25\nv_mul_u32_u24 v26, 10, v25\nv_sub_u32 v26, v24, v26")
            A(f"v_and_b32 v27, 0x78, v25\nv_and_b32 v28, 1, v25\nv_lshl_add_u32 v27, v28, 2, v27\nv_bfe_u32 v28, v25, 1, 2\nv_add_u32 v27, v27, v28")
            A(f"v_mul_u32_u24 v27, 1280, v27\nv_lshl_add_u32 v27, v26, 4, v27\nv_add_u32 v{vS+m}, s65, v27")
        A(f"s_cmp_ge_u32 s95, 2\ns_cselect_b32 s64, {OOB}, 0\nv_or_b32 v{vS+2}, s64, v{vS+2}")
        A(f"s_mul_i32 s{sK}, s94, 81920")
    A(f"v_add_u32 v{vA2+1}, {2*SL2}, v{vA2}\nv_add_u32 v{vB2+1}, {2*SL2}, v{vB2}")

    def op_dma(Sx):
        sb = (Sx % 4) * SL2
        if big:
            for i in range(2):
                A(f"s_add_u32 m0, s46, {sb + 1152*i}\ns_add_u32 s64, s44, s{sK}")
                if i:
                    A(f"s_add_u32 s64, s64, {2*PL}")
                dma(vS, WS, 64, "sc1")
            A(f"s_add_u32 s{sK}, s{sK}, {16*PL}\ns_cmp_eq_u32 s{sK}, {160*PL}\ns_cselect_b32 s{sK}, 0, s{sK}")
        else:
            for m in range(3):
                small_m0(sb, 9216, 77824, m)
                dma(vS + m, R1, sK)
            A(f"s_add_u32 s{sK}, s{sK}, 81920\ns_cmp_eq_u32 s{sK}, 819200\ns_cselect_b32 s{sK}, 0, s{sK}")

    def op_reads(Sx):
        f = FR[Sx & 1]
        tw, sb = ((Sx % 4) >> 1), (Sx % 2) * SL2
        for u in range(4 if big else 2):
            for j in range(2):
                A(f"ds_read_b64 {vr(f+8*u+2*j,2)}, v{vA2+tw} offset:{sb + (2304 if big else 4608)*u + 512*j}")
            for j in range(2):
                A(f"ds_read_b64_tr_b16 {vr(f+8*u+4+2*j,2)}, v{vB2+tw} offset:{sb + (2560 if big else 5120)*u + 160*j}")

    if not big:
        for Sx in range(3):
            op_dma(Sx)
    store_out(2560)
    if big:
        poll([11], t=120)
        stamp(8)
        for Sx in range(3):
            op_dma(Sx)
    else:
        A("s_waitcnt vmcnt(0)")
    pipeline(10, op_dma, op_reads, mf, True)
    store_out(0)
    stamp(9)
    if big:
        if OPT["stamps"]:
            A("s_waitcnt vmcnt(0)")
            stamp(10)
        dump_stamps(11)
    A("s_endpgm")


def build():
    hdr = open("cdna_kernels/" + NAME + ".s.ref").read().split("\n")
    out = [l for l in hdr if l.startswith(";") and "@launch" not in l]
    out.append("; @launch grid=(512,1,1) block=(512,1,1) lds=81920")
    out.append('.amdgcn_target "amdgcn-amd-amdhsa--gfx950"\n.text')
    out.append(f".globl {NAME}_kernel\n.p2align 8\n.type {NAME}_kernel,@function\n{NAME}_kernel:")
    prologue()
    if OPT["aprio"]:
        A(f"s_setprio {OPT['aprio']}")
    qkv()
    attention()
    role_b()
    A("L_END:\ns_endpgm")
    for l in L:
        out.append(l if l.endswith(":") or l.startswith(".") else "    " + l)
    out.append(f""".section .rodata,"a"
.p2align 6
.amdhsa_kernel {NAME}_kernel
  .amdhsa_next_free_vgpr 128
  .amdhsa_next_free_sgpr 102
  .amdhsa_accum_offset 128
  .amdhsa_group_segment_fixed_size 0
  .amdhsa_kernarg_size 120
  .amdhsa_user_sgpr_count 2
  .amdhsa_user_sgpr_kernarg_segment_ptr 1
  .amdhsa_system_sgpr_workgroup_id_x 1
.end_amdhsa_kernel""")
    return "\n".join(out) + "\n"


if __name__ == "__main__":
    txt = build()
    open(sys.argv[1], "w").write(txt)
    sys.path.insert(0, "gen")
    import hazard
    e = hazard.check(txt)
    print("\n".join(e) if e else "hazard check: clean")
```

```python
import sys, struct, math

NAME = "concat_heads__softmax_full_mha__ssm_conv_s5__prompt"

OPT = dict(stamps=0, spin=400000, hint=4, hint_step=16, plpad=0, aprio=0, bprio=0, force_fb=0, pace1=0, pace2=0, dynprio=1, touch=0, st4=1, tdelay=1, qsplit=0, ntx=0, ntw=0, ntb=0, ntc=0, sto=0)
for a in sys.argv[2:]:
    k, v = a.split("=")
    OPT[k] = int(v)

PL = 16384 + OPT["plpad"]
EPOCH = 0
F1 = 0x1000
F2 = 0x2000
F3 = 0x3000
F4 = 0x4000
F0 = 0x8000
STAMP = 0x20000
EB = 0x40000
QKVP = 0x100000
OP = 0xA00000
HB = 0xD00000
WS_USED = 0x1300000
assert QKVP + 480 * PL <= OP and OP + 160 * PL <= HB
OOB = 0x80000000

L = []


def A(s):
    for ln in s.strip("\n").split("\n"):
        L.append(ln.strip() if not ln.strip().endswith(":") else ln.strip())


def f2u(x):
    return struct.unpack("<I", struct.pack("<f", x))[0]


def vr(a, n):
    return f"v[{a}:{a+n-1}]" if n > 1 else f"v{a}"


P_AX, P_WQKV, P_WO, P_BX, P_LRE, P_LIM, P_BRE, P_BIM, P_CRE, P_CIM, P_LDT, P_DSK, P_OUT, P_DBG, P_WS = range(8, 38, 2)
S_E = 38
S_W = 40
R0, R1, R2, WS, R3 = 44, 48, 52, 56, 60
ST0 = 70
_uid = [0]


def uid(p):
    _uid[0] += 1
    return f"{p}_{_uid[0]}"


def srd(r, p, n):
    A(f"s_mov_b32 s{r}, s{p}\ns_and_b32 s{r+1}, s{p+1}, 0xffff\ns_mov_b32 s{r+2}, {n}\ns_mov_b32 s{r+3}, 0x20000")


def S(r):
    return f"s[{r}:{r+3}]"


def stamp(k):
    if OPT["stamps"] and not OPT.get("fine"):
        A(f"s_memrealtime s[{ST0+2*k}:{ST0+2*k+1}]")


def cstamp(k):
    if OPT["stamps"]:
        A(f"s_memtime s[{ST0+2*k}:{ST0+2*k+1}]")


def fst(k, cond=True):
    if OPT.get("fine") and cond:
        A(f"s_memtime s[{ST0+2*k}:{ST0+2*k+1}]")


def dump_stamps(n):
    if not OPT["stamps"]:
        return
    sk = uid("SK")
    A(f"s_waitcnt lgkmcnt(0)\ns_cmp_lg_u32 s{S_W}, {OPT.get('fw', 0)}\ns_cbranch_scc1 {sk}")
    A(f"s_lshl_b32 s64, s2, 7\ns_add_u32 s64, s64, {STAMP}\ns_mov_b64 exec, 1")
    for k in range(n):
        A(f"v_mov_b32 v120, s{ST0+2*k}\nv_mov_b32 v121, s{ST0+2*k+1}")
        A(f"buffer_store_dwordx2 v[120:121], off, {S(WS)}, s64 offset:{8*k}")
        A("s_waitcnt vmcnt(0)")
    A(f"s_mov_b64 exec, -1\n{sk}:")


def flag_store(soff, t=120, wave0=True):
    sk = uid("FS")
    if wave0:
        A(f"s_cmp_lg_u32 s{S_W}, 0\ns_cbranch_scc1 {sk}")
    A(f"v_mov_b32 v{t}, s{S_E}\nv_mov_b32 v{t+1}, s{S_E+1}\ns_mov_b64 exec, 1")
    A(f"buffer_store_dwordx2 v[{t}:{t+1}], off, {S(WS)}, s{soff} sc1")
    A("s_mov_b64 exec, -1")
    if wave0:
        A(f"{sk}:")


def poll(vaddrs, t=120):
    lp, dn = uid("PL"), uid("PD")
    A(f"s_mov_b32 s64, {OPT['spin']}\n{lp}:")
    for i, va in enumerate(vaddrs):
        A(f"buffer_load_dwordx2 v[{t+2*i}:{t+2*i+1}], v{va}, {S(WS)}, 0 offen sc1")
    A("s_waitcnt vmcnt(0)")
    for i, va in enumerate(vaddrs):
        if i == 0:
            A(f"v_cmp_ne_u64 vcc, s[{S_E}:{S_E+1}], v[{t}:{t+1}]")
        else:
            A(f"v_cmp_ne_u64 s[66:67], s[{S_E}:{S_E+1}], v[{t+2*i}:{t+2*i+1}]\ns_or_b64 vcc, vcc, s[66:67]")
    A(f"s_cbranch_vccz {dn}\ns_sub_u32 s64, s64, 1\ns_cmp_lg_u32 s64, 0\ns_cbranch_scc1 {lp}\n{dn}:")


def bhi():
    if OPT["dynprio"]:
        A("s_setprio 3")


def blo():
    if OPT["dynprio"]:
        A("s_setprio 0")


def mod10(sd, ssrc, tmp):
    A(f"s_mul_i32 s{tmp}, s{ssrc}, 205\ns_lshr_b32 s{tmp}, s{tmp}, 11\ns_mul_i32 s{tmp}, s{tmp}, 10\ns_sub_u32 s{sd}, s{ssrc}, s{tmp}")


def dma(vaddr, rsrc, soff, aux=""):
    A(f"buffer_load_dwordx4 v{vaddr}, {S(rsrc)}, s{soff} offen {aux} lds".replace("  ", " "))


MF32 = "v_mfma_f32_32x32x16_bf16"
MF8 = "v_mfma_f32_32x32x8_bf16"
MF16 = "v_mfma_f32_16x16x32_bf16"


def prologue():
    A(f"s_cmp_ge_u32 s2, 512\ns_cbranch_scc1 L_END")
    stamp(0)
    A("s_load_dwordx16 s[8:23], s[0:1], 0\ns_load_dwordx8 s[24:31], s[0:1], 64\ns_load_dwordx4 s[32:35], s[0:1], 96\ns_load_dwordx2 s[36:37], s[0:1], 112")
    A(f"v_lshrrev_b32 v2, 6, v0\nv_and_b32 v1, 63, v0\nv_readfirstlane_b32 s{S_W}, v2")
    A("s_cmp_ge_u32 s2, 256\ns_cbranch_scc1 L_ROLE_B")


def epoch_fix():
    A(f"s_mul_i32 s{S_E}, s{S_E}, 0x9E3779B1\ns_add_u32 s{S_E}, s{S_E}, 0x7F4A7C15\ns_xor_b32 s{S_E+1}, s{S_E}, 0x5bd1e995")


def qkv():
    sRB, sCB, sKX, sKW, sMX, sMW, sT = 41, 42, 43, 64, 65, 66, 67
    vX0, vX1, vWs, vWr, vXr = 2, 3, 4, 5, 6
    ACC = 32
    FR = [64, 88]
    A(f"s_and_b32 s68, s2, 7\ns_lshr_b32 s69, s2, 3")
    A(f"s_and_b32 s{sRB}, s68, 3\ns_lshl_b32 s{sRB}, s{sRB}, 2\ns_and_b32 s{sT}, s69, 3\ns_add_u32 s{sRB}, s{sRB}, s{sT}")
    A(f"s_lshr_b32 s{sCB}, s68, 2\ns_lshl_b32 s{sCB}, s{sCB}, 3\ns_lshr_b32 s{sT}, s69, 2\ns_add_u32 s{sCB}, s{sCB}, s{sT}")
    A(f"s_mul_i32 s{sKX}, s{sRB}, 3\ns_add_u32 s{sKX}, s{sKX}, s{sCB}")
    mod10(sKX, sKX, sT)
    A(f"s_mul_i32 s{sKW}, s{sKX}, {2*122880}\ns_lshl_b32 s{sKX}, s{sKX}, 7")
    A(f"s_lshl_b32 s{sT}, s{sRB}, 7\ns_lshr_b32 s68, s{S_W}, 1\ns_lshl_b32 s68, s68, 5\ns_add_u32 s{sT}, s{sT}, s68\ns_and_b32 s68, s{S_W}, 1\ns_add_u32 s{sT}, s{sT}, s68")
    A(f"v_lshrrev_b32 v10, 3, v1\nv_lshl_add_u32 v10, v10, 1, s{sT}\nv_mul_u32_u24 v10, 1280, v10")
    A(f"v_lshrrev_b32 v11, 4, v1\nv_and_b32 v12, 7, v1\nv_xor_b32 v12, v12, v11\nv_lshl_add_u32 v{vX0}, v12, 4, v10")
    A(f"v_xor_b32 v{vX1}, 64, v{vX0}\nv_add_u32 v{vX1}, 20480, v{vX1}")
    A(f"s_lshl_b32 s68, s{S_W}, 2\nv_add_u32 v10, s68, v11\nv_mul_u32_u24 v10, 3840, v10")
    A(f"v_and_b32 v12, 15, v1\nv_lshlrev_b32 v13, 2, v11\nv_xor_b32 v12, v12, v13\nv_lshl_add_u32 v10, v12, 4, v10")
    A(f"s_lshl_b32 s68, s{sCB}, 8\nv_add_u32 v{vWs}, s68, v10")
    A(f"s_lshl_b32 s{sMX}, s{S_W}, 11\ns_lshl_b32 s{sMW}, s{S_W}, 10\ns_add_u32 s{sMW}, s{sMW}, 49152")
    A("s_waitcnt lgkmcnt(0)")
    A(f"s_load_dword s{S_E}, s[{P_WS}:{P_WS+1}], {EPOCH}")
    srd(R0, P_AX, 2621440)
    srd(R1, P_WQKV, 2457600)
    srd(WS, P_WS, WS_USED)
    A(f"s_cmp_ge_u32 s{sCB}, 15\ns_cbranch_scc1 L_QKV_IDLE")

    issued = []

    def dmaX(Sx):
        for i in range(2):
            A(f"s_add_u32 m0, s{sMX}, {(Sx % 3) * 16384 + i * 1024}\ns_nop 0")
            dma(vX0 + i, R0, sKX, 'nt' if OPT['ntx'] else '')
            issued.append(("X", Sx))
        A(f"s_add_u32 s{sKX}, s{sKX}, 128\ns_cmp_eq_u32 s{sKX}, 1280\ns_cselect_b32 s{sKX}, 0, s{sKX}")

    def dmaW(s):
        A(f"s_add_u32 m0, s{sMW}, {(s % 4) * 8192}\ns_nop 0")
        dma(vWs, R1, sKW, 'nt' if OPT['ntw'] else '')
        issued.append(("W", s))
        A(f"s_add_u32 s{sKW}, s{sKW}, 122880\ns_cmp_eq_u32 s{sKW}, 2457600\ns_cselect_b32 s{sKW}, 0, s{sKW}")

    dmaX(0); dmaW(0); dmaW(1); dmaX(1); dmaW(2); dmaW(3); dmaX(2)
    A(f"v_lshrrev_b32 v10, 5, v1\nv_bfe_u32 v11, v1, 2, 2\nv_lshl_add_u32 v12, v10, 3, v11\nv_lshlrev_b32 v12, 8, v12")
    A(f"s_and_b32 s68, s{S_W}, 3\ns_lshl_b32 s68, s68, 2")
    A(f"v_bfe_u32 v13, v1, 4, 1\nv_lshlrev_b32 v13, 1, v13\nv_bfe_u32 v14, v1, 1, 1\nv_add3_u32 v13, v13, v14, s68")
    A(f"v_lshlrev_b32 v11, 2, v11\nv_xor_b32 v13, v13, v11\nv_lshl_add_u32 v12, v13, 4, v12")
    A(f"v_and_b32 v14, 1, v1\nv_lshl_add_u32 v12, v14, 3, v12\nv_add_u32 v{vWr}, 49152, v12")
    A(f"s_lshr_b32 s68, s{S_W}, 2\ns_lshl_b32 s68, s68, 6\nv_and_b32 v11, 31, v1\nv_add_u32 v12, s68, v11\nv_lshlrev_b32 v12, 7, v12")
    A(f"v_bfe_u32 v13, v1, 1, 3\nv_xor_b32 v13, v13, v10\nv_lshl_add_u32 v{vXr}, v13, 4, v12")
    for k in range(1, 4):
        A(f"v_xor_b32 v{vXr+k}, {32*k}, v{vXr}")
    A(f"s_and_b32 s69, s{S_W}, 3\ns_lshl_b32 s69, s69, 3\nv_bfe_u32 v11, v1, 4, 1\nv_lshl_add_u32 v10, v11, 1, v10\nv_add_u32 v10, s69, v10\nv_mul_u32_u24 v10, {PL}, v10")
    A(f"v_and_b32 v11, 15, v1\nv_lshl_add_u32 v10, v11, 4, v10\ns_lshl_b32 s68, s68, 3\nv_add_u32 v10, s68, v10")

    def reads(s):
        f = FR[s & 1]
        ws, xs, b = (s % 4) * 8192, ((s >> 1) % 3) * 16384, s & 1
        for u in range(2):
            for j in range(2):
                A(f"ds_read_b64_tr_b16 {vr(f+4*u+2*j, 2)}, v{vWr} offset:{ws + (16*u+4*j)*256}")
            for nt in range(2):
                A(f"ds_read_b128 {vr(f+8+8*u+4*nt, 4)}, v{vXr+2*b+u} offset:{xs + 4096*nt}")

    def mfma1(s, i):
        if s < 0:
            return
        f = FR[s & 1]
        u, nt = i >> 1, i & 1
        c = "0" if (s == 0 and u == 0) else vr(ACC + 16 * nt, 16)
        A(f"{MF32} {vr(ACC+16*nt,16)}, {vr(f+4*u,4)}, {vr(f+8+8*u+4*nt,4)}, {c}")

    def mfmas(s):
        for i in range(4):
            mfma1(s, i)

    issued0 = list(issued)

    def qloop(early):
        issued[:] = issued0
        for s in range(20):
            last = max(i for i, t in enumerate(issued) if t in (("X", s >> 1), ("W", s)))
            A(f"s_waitcnt vmcnt({len(issued) - 1 - last})\ns_barrier")
            if s == 0:
                stamp(1)
                cstamp(10)
            def dm():
                if s >= 1 and s + 3 < 20:
                    dmaW(s + 3)
                if s >= 2 and s % 2 == 0 and s // 2 + 2 < 10:
                    dmaX(s // 2 + 2)
                if s == 1:
                    epoch_fix()
                if s == OPT["hint_step"] and OPT["hint"] == 1:
                    A(f"s_lshl_b32 s68, s2, 7\ns_lshl_b32 s69, s{S_W}, 3\ns_add_u32 s68, s68, s69\ns_add_u32 s68, s68, {F0}")
                    flag_store(68, t=120, wave0=False)
                    issued.append(("H", 0))

            if early:
                reads(s)
                dm()
                for i in range(4):
                    mfma1(s - 1, i)
            else:
                mfma1(s - 1, 0)
                reads(s)
                for i in range(1, 4):
                    mfma1(s - 1, i)
                dm()
            A("s_waitcnt lgkmcnt(0)")

    if OPT["qsplit"]:
        A(f"s_cmp_ge_u32 s{S_W}, 4\ns_cbranch_scc1 L_QKV_LATE")
        qloop(True)
        A("s_branch L_QKV_EPI\nL_QKV_LATE:")
        qloop(False)
        A("L_QKV_EPI:")
    else:
        qloop(False)
    mfmas(19)
    stamp(2)
    cstamp(11)
    c = 20 ** -0.5 * math.log2(math.e)
    A(f"s_cmp_lt_u32 s{sCB}, 5\ns_cselect_b32 s68, {f2u(c)}, 1.0\ns_mov_b32 s69, s68")
    A(f"s_mul_i32 s{sT}, s{sCB}, {32*PL}\ns_lshl_b32 s64, s{sRB}, 10\ns_add_u32 s{sT}, s{sT}, s64\ns_add_u32 s{sT}, s{sT}, {QKVP}")
    A("s_nop 4")
    A(f"s_add_u32 s64, s{sT}, {4*PL}")
    for nt in range(2):
        for g in range(4):
            a = ACC + 16 * nt + 4 * g
            A(f"v_pk_mul_f32 {vr(a,2)}, {vr(a,2)}, s[68:69]\nv_pk_mul_f32 {vr(a+2,2)}, {vr(a+2,2)}, s[68:69]")
            d = 64 + 8 * nt + 2 * g
            A(f"v_cvt_pk_bf16_f32 v{d}, v{a}, v{a+1}\nv_cvt_pk_bf16_f32 v{d+1}, v{a+2}, v{a+3}")
            if g & 1:
                d -= 2
                A(f"s_nop 0\nv_permlane16_swap_b32 v{d}, v{d+2}\nv_permlane16_swap_b32 v{d+1}, v{d+3}")
                A(f"buffer_store_dwordx4 {vr(d,4)}, v10, {S(WS)}, s{sT if g == 1 else 64} offen offset:{256*nt} sc1")
    A(f"s_lshl_b32 s68, s{sCB}, 7\ns_lshl_b32 s69, s{sRB}, 3\ns_add_u32 s68, s68, s69\ns_add_u32 s68, s68, {F1}")
    A("s_waitcnt vmcnt(0)\ns_barrier")
    flag_store(68)
    A("s_branch L_ATT")
    A("L_QKV_IDLE:\ns_waitcnt lgkmcnt(0)")
    epoch_fix()
    if OPT["hint"] == 1:
        A(f"s_lshl_b32 s68, s2, 7\ns_add_u32 s68, s68, {F0}")
        flag_store(68)


PS = 2080
SLOT = 11 * PS
RED = 2 * SLOT
BADW = 81912


def attention():
    sH, sQB, sG, sLd, sBlk, sDst, sCnt, sDel, sPass = 41, 42, 44, 48, 43, 52, 53, 54, 55
    vK, vK1, vV, vD = 2, 3, 4, 5
    Q = [8, 14]; O = [20, 36]; SS = [52, 68]; Kf = [84, 90]; Vf = [96, 104]; P = 112
    A("L_ATT:")
    stamp(3)
    A(f"s_and_b32 s68, s2, 7\ns_lshr_b32 s69, s2, 3\ns_and_b32 s{sQB}, s69, 7\ns_lshr_b32 s69, s69, 3\ns_lshl_b32 s{sH}, s68, 2\ns_add_u32 s{sH}, s{sH}, s69")
    A(f"s_mov_b32 s{sPass}, 0\ns_mov_b32 s51, {SLOT}")
    A(f"s_mul_i32 s64, s{sH}, 5\ns_add_u32 s65, s64, 4\ns_lshr_b32 s64, s64, 5\ns_lshr_b32 s65, s65, 5\ns_sub_u32 s65, s65, s64")
    A(f"v_bfe_u32 v6, v1, 4, 1\nv_mul_u32_u24 v6, s65, v6\nv_lshrrev_b32 v7, 5, v1\nv_mul_u32_u24 v7, 5, v7\nv_add3_u32 v6, v6, v7, s64\nv_add_u32 v6, 5, v6")
    A(f"v_lshlrev_b32 v6, 7, v6\nv_and_b32 v7, 15, v1\nv_lshl_add_u32 v6, v7, 3, v6\nv_add_u32 v6, {F1}, v6")
    A(f"v_and_b32 v7, 1, v1\nv_mul_u32_u24 v7, s65, v7\nv_add_u32 v7, s64, v7\nv_lshlrev_b32 v7, 7, v7\nv_bfe_u32 v8, v1, 1, 1\ns_lshl_b32 s66, s{sQB}, 1\nv_add_u32 v8, s66, v8\nv_lshl_add_u32 v7, v8, 3, v7\nv_add_u32 v7, {F1}, v7")
    for m in range(3):
        A(f"s_add_u32 s64, s{S_W}, {8*m}\ns_lshr_b32 s65, s64, 1\ns_and_b32 s64, s64, 1\ns_lshl_b32 s64, s64, 10")
        A(f"s_mul_i32 s{sLd+m}, s65, {PS}\ns_add_u32 s{sLd+m}, s{sLd+m}, s64")
        A(f"s_cmp_ge_u32 s65, 5\ns_cselect_b32 s66, 155, 0\ns_add_u32 s65, s65, s66\ns_add_u32 s65, s65, 160\ns_mul_i32 s66, s{sH}, 5\ns_add_u32 s65, s65, s66")
        A(f"s_mul_i32 s65, s65, {PL}\ns_add_u32 s65, s65, s64\ns_add_u32 s{sG+m}, s65, {QKVP}")
    A(f"v_lshlrev_b32 v{vD}, 4, v1")
    A(f"s_lshr_b32 s64, s{S_W}, 1\ns_min_u32 s64, s64, 2\ns_mul_i32 s64, s64, {SLOT}\ns_and_b32 s65, s{S_W}, 1\ns_lshl_b32 s65, s65, 10\ns_add_u32 s64, s64, s65\ns_add_u32 s64, s64, {10*PS}")
    A(f"v_add_u32 v9, s64, v{vD}")
    for i in range(4):
        A(f"v_mov_b32 v{120+i}, 0x3f803f80")
    A(f"ds_write_b128 v9, v[120:123]\nv_mov_b32 v9, {BADW}\nv_mov_b32 v10, 0\nds_write_b32 v9, v10")
    A(f"s_and_b32 s64, s{S_W}, 3\ns_lshl_b32 s64, s64, 6\ns_lshr_b32 s65, s{S_W}, 2\ns_lshl_b32 s66, s65, 5\ns_add_u32 s64, s64, s66")
    A(f"v_and_b32 v12, 15, v1\nv_lshl_add_u32 v13, v12, 1, s64\nv_lshlrev_b32 v124, 3, v13\nv_bfe_u32 v12, v1, 4, 1\nv_lshl_add_u32 v13, v12, 3, v124")
    A(f"v_and_b32 v12, 31, v1\nv_lshrrev_b32 v14, 5, v1")
    A(f"v_mul_u32_u24 v15, {2*PL}, v14\nv_add_u32 v10, v15, v13\nv_lshlrev_b32 v15, 31, v14\nv_or_b32 v11, v15, v13")
    A(f"v_xor_b32 v16, 256, v10\nv_xor_b32 v17, 256, v11") if PL % 512 == 0 else A(
        f"v_xor_b32 v16, 256, v13\nv_sub_u32 v16, v16, v13\nv_add_u32 v17, v16, v11\nv_add_u32 v16, v16, v10")
    A(f"s_lshl_b32 s65, s65, 7\nv_add_u32 v12, s65, v12\nv_lshlrev_b32 v12, 3, v12")
    A(f"v_mul_u32_u24 v15, {2*PS}, v14\nv_add_u32 v125, v15, v12\nv_mul_u32_u24 v15, {6*PS}, v14\nv_add_u32 v15, {4*PS}, v15\nv_add_u32 v126, v15, v12")
    A(f"v_bfe_u32 v15, v1, 4, 1\nv_lshlrev_b32 v15, 2, v15\nv_and_b32 v18, 3, v1\nv_add_u32 v15, v15, v18\nv_min_u32 v15, 5, v15\nv_add_u32 v15, 5, v15\nv_mul_u32_u24 v15, {PS}, v15")
    A(f"v_bfe_u32 v18, v1, 2, 2\nv_lshl_add_u32 v18, v14, 2, v18\nv_add_u32 v18, s65, v18\nv_lshl_add_u32 v127, v18, 3, v15")
    sk = uid("AP")
    A(f"s_cmp_lg_u32 s{S_W}, 0\ns_cbranch_scc1 {sk}")
    if OPT["hint"] == 3:
        A(f"s_lshl_b32 s68, s2, 7\ns_add_u32 s68, s68, {F0}")
        flag_store(68, wave0=False)
    poll([6, 7], t=120)
    if OPT["hint"] == 2:
        A(f"s_lshl_b32 s68, s2, 7\ns_add_u32 s68, s68, {F0}")
        flag_store(68, wave0=False)
    A(f"{sk}:\ns_waitcnt lgkmcnt(0)\ns_barrier")
    stamp(4)
    A(f"s_mul_i32 s64, s{sH}, {5*PL}\ns_lshl_b32 s65, s{sQB}, 11\ns_add_u32 s64, s64, s65\ns_add_u32 s64, s64, {QKVP}\ns_add_u32 s65, s64, {PL}\ns_add_u32 s66, s64, {4*PL}")

    def dma_stage(cond_label=None):
        for m in range(3):
            if m == 2:
                sk2 = uid("D3")
                A(f"s_cmp_ge_u32 s{S_W}, 4\ns_cbranch_scc1 {sk2}")
            A(f"s_add_u32 m0, s{sDst}, s{sLd+m}\ns_add_u32 s68, s{sG+m}, s{sBlk}")
            dma(vD, WS, 68, "sc1")
            if m == 2:
                A(f"{sk2}:")
        A(f"s_add_u32 s{sBlk}, s{sBlk}, 2048\ns_and_b32 s{sBlk}, s{sBlk}, 16383")
        A(f"s_add_u32 s{sDst}, s{sDst}, {SLOT}\ns_cmp_eq_u32 s{sDst}, {3*SLOT}\ns_cselect_b32 s{sDst}, 0, s{sDst}")

    A(f"s_lshl_b32 s{sBlk}, s{sQB}, 11\ns_mov_b32 s{sDst}, 0")
    dma_stage()
    for x in range(2):
        a0, a1 = (10, 11) if x == 0 else (16, 17)
        A(f"buffer_load_dwordx2 {vr(52+6*x,2)}, v{a0}, {S(WS)}, s64 offen sc1")
        A(f"buffer_load_dwordx2 {vr(54+6*x,2)}, v{a0}, {S(WS)}, s65 offen sc1")
        A(f"buffer_load_dwordx2 {vr(56+6*x,2)}, v{a1}, {S(WS)}, s66 offen sc1")
    dma_stage()
    A("s_waitcnt vmcnt(2)")
    for i in range(12):
        A(f"v_mov_b32 v{8+i}, v{52+i}")
    A("L_ATT_MAIN:")
    A(f"v_mov_b32 v{vK}, v125\nv_mov_b32 v{vK1}, v126\nv_mov_b32 v{vV}, v127")
    for i in range(32):
        A(f"v_mov_b32 v{O[0]+i}, 0")
    for i in range(4):
        A(f"v_mov_b32 v{P+4+i}, 0\nv_mov_b32 v{Vf[1]+4+i}, 0")
    A(f"s_mov_b32 s{sCnt}, 0\ns_mov_b32 s{sDel}, 0")
    A("s_waitcnt vmcnt(2)\ns_barrier")
    stamp(5)
    cstamp(8)
    if OPT["hint"] == 4:
        A(f"s_lshl_b32 s68, s2, 7\ns_add_u32 s68, s68, {F0}")
        flag_store(68)

    def kreads(kl, off):
        A(f"ds_read_b64 {vr(kl,2)}, v{vK} offset:{off}\nds_read_b64 {vr(kl+2,2)}, v{vK} offset:{off+PS}\nds_read_b64 {vr(kl+4,2)}, v{vK1} offset:{off}")

    def vreads(vl, off):
        for j in range(4):
            A(f"ds_read_b64_tr_b16 {vr(vl+2*j,2)}, v{vV} offset:{off+64*j}")

    kreads(Kf[0], 0)
    vreads(Vf[0], 0)
    A("s_waitcnt lgkmcnt(4)")
    A(f"{MF32} {vr(SS[0],16)}, {vr(Kf[0],4)}, {vr(Q[0],4)}, 0\n{MF8} {vr(SS[0],16)}, {vr(Kf[0]+4,2)}, {vr(Q[0]+4,2)}, {vr(SS[0],16)}")
    A("s_nop 7\ns_nop 2")
    A(".p2align 6\nL_ATT_LOOP:")

    def unit(x, kt):
        s = SS[x]; sn = SS[1 - x]
        nk = kt if x == 0 else kt + 1
        kf = Kf[nk & 1]; qn = Q[1 - x]
        pk = kt - 1 if x == 0 else kt
        vprev = Vf[pk & 1]; v = Vf[kt & 1]
        e = lambda i: A(f"v_exp_f32 v{s+i}, v{s+i}")
        c = lambda i: A(f"v_cvt_pk_bf16_f32 v{P+i}, v{s+2*i}, v{s+2*i+1}")
        if x == 1:
            A("s_waitcnt lgkmcnt(0)")
        A(f"{MF32} {vr(sn,16)}, {vr(kf,4)}, {vr(qn,4)}, 0")
        e(0); e(1); e(2); e(3)
        A(f"{MF8} {vr(sn,16)}, {vr(kf+4,2)}, {vr(qn+4,2)}, {vr(sn,16)}")
        c(0); c(1); e(4); e(5); e(6); e(7)
        A(f"{MF32} {vr(O[1-x],16)}, {vr(vprev+4,4)}, {vr(P+4,4)}, {vr(O[1-x],16)}")
        if x == 0:
            if kt == 3:
                A(f"s_cmp_eq_u32 s{sDel}, {2*SLOT}\ns_cselect_b32 s68, {-2*SLOT & 0xffffffff}, s51\ns_add_u32 s{sDel}, s{sDel}, s68")
                A(f"v_add_u32 v{vK}, s68, v{vK}\nv_add_u32 v{vK1}, s68, v{vK1}\nv_add_u32 v{vV}, s68, v{vV}")
                A("s_waitcnt vmcnt(0)\ns_barrier")
                kreads(Kf[0], 0)
                sk3 = uid("ND")
                A(f"s_cmp_ge_u32 s{sCnt}, 6\ns_cbranch_scc1 {sk3}")
                dma_stage()
                A(f"{sk3}:")
            else:
                kreads(Kf[(kt + 1) & 1], 256 * (kt + 1))
        else:
            vreads(Vf[(kt + 1) & 1], 256 * ((kt + 1) & 3))
        c(2); c(3); e(8); e(9); e(10); e(11)
        if x == 0:
            A("s_waitcnt lgkmcnt(3)")
        A(f"{MF32} {vr(O[x],16)}, {vr(v,4)}, {vr(P,4)}, {vr(O[x],16)}")
        c(4); c(5); e(12); e(13); e(14); e(15); c(6); c(7)

    for kt in range(4):
        unit(0, kt)
        unit(1, kt)
    A(f"s_add_u32 s{sCnt}, s{sCnt}, 1\ns_cmp_lt_u32 s{sCnt}, 8\ns_cbranch_scc1 L_ATT_LOOP")
    A(f"{MF32} {vr(O[1],16)}, {vr(Vf[1]+4,4)}, {vr(P+4,4)}, {vr(O[1],16)}")
    stamp(6)
    cstamp(9)
    A(f"s_lshl_b32 s64, s{S_W}, 12\ns_add_u32 s64, s64, {RED}")
    assert RED + 8 * 4096 <= BADW
    A(f"s_xor_b32 s65, s{S_W}, 4\ns_lshl_b32 s65, s65, 12\ns_add_u32 s65, s65, {RED}")
    A(f"v_add_u32 v6, s64, v{vD}\nv_add_u32 v7, s65, v{vD}")
    A(f"s_mul_i32 s64, s{sH}, {5*PL}\ns_lshl_b32 s65, s{sQB}, 11\ns_add_u32 s64, s64, s65\ns_add_u32 s64, s64, {OP}\ns_add_u32 s65, s64, {2*PL}\ns_add_u32 s66, s64, {4*PL}")
    A(f"v_lshrrev_b32 v120, 5, v1\nv_bfe_u32 v121, v1, 4, 1\nv_lshl_add_u32 v121, v121, 1, v120\nv_mul_u32_u24 v121, {PL}, v121\nv_add_u32 v121, v121, v124")
    A(f"v_cmp_gt_u32 vcc, 16, v1\nv_mov_b32 v120, {OOB}\ns_nop 0\nv_cndmask_b32 v120, v120, v124, vcc")
    A("s_waitcnt lgkmcnt(0)\ns_nop 1")
    for g in range(4):
        A(f"ds_write_b128 v6, {vr(O[1]+4*g,4)} offset:{1024*g}")
    A("s_waitcnt lgkmcnt(0)\ns_barrier")
    for g in range(4):
        A(f"ds_read_b128 {vr(52+4*g,4)}, v7 offset:{1024*g}")
    A("s_waitcnt lgkmcnt(0)")
    o = O[0]
    A(f"v_add_f32 v{o+12}, v{o+12}, v{52+12}")
    for i in range(0, 12, 2):
        A(f"v_pk_add_f32 {vr(o+i,2)}, {vr(o+i,2)}, {vr(52+i,2)}")
    A(f"v_rcp_f32 v68, v{o+12}\nv_mov_b32 v70, 0\nv_mov_b32 v71, 0\nv_mov_b32 v69, v68")
    for i in range(0, 12, 2):
        A(f"v_pk_fma_f32 v[70:71], {vr(o+i,2)}, 0, v[70:71] op_sel_hi:[1,0,1]")
    for g in range(3):
        a = o + 4 * g
        A(f"v_pk_mul_f32 {vr(a,2)}, {vr(a,2)}, v[68:69]\nv_pk_mul_f32 {vr(a+2,2)}, {vr(a+2,2)}, v[68:69]")
        A(f"v_cvt_pk_bf16_f32 v{72+2*g}, v{a}, v{a+1}\nv_cvt_pk_bf16_f32 v{73+2*g}, v{a+2}, v{a+3}")
        if g == 1:
            A(f"s_nop 0\nv_permlane16_swap_b32 v72, v74\nv_permlane16_swap_b32 v73, v75")
            A(f"buffer_store_dwordx4 v[72:75], v121, {S(WS)}, s64 offen sc1")
        if g == 2:
            A(f"v_mov_b32 v78, v76\nv_mov_b32 v79, v77\ns_nop 0\nv_permlane16_swap_b32 v76, v78\nv_permlane16_swap_b32 v77, v79")
            A(f"buffer_store_dwordx4 v[76:79], v120, {S(WS)}, s66 offen sc1")
    lo, hi = f2u(2.0 ** -60), f2u(2.0 ** 60)
    if OPT["force_fb"]:
        hi = f2u(2.0 ** -59)
    A(f"v_cmp_u_f32 vcc, v70, v71\nv_mov_b32 v80, {lo}\nv_mov_b32 v81, {hi}")
    A(f"v_cmp_ngt_f32 s[66:67], v{o+12}, v80\ns_or_b64 vcc, vcc, s[66:67]\nv_cmp_nlt_f32 s[66:67], v{o+12}, v81\ns_or_b64 vcc, vcc, s[66:67]")
    nb = uid("NB")
    A(f"v_mov_b32 v80, {BADW}\ns_cbranch_vccz {nb}\nv_mov_b32 v81, 1\nds_write_b32 v80, v81\n{nb}:")
    A(f"s_lshl_b32 s68, s{sQB}, 8\ns_lshl_b32 s69, s{sH}, 3\ns_add_u32 s68, s68, s69\ns_add_u32 s68, s68, {F4}")
    A("s_waitcnt vmcnt(0) lgkmcnt(0)\ns_barrier")
    A(f"s_cmp_lg_u32 s{sPass}, 0\ns_cbranch_scc1 L_ATT_PUB")
    A("ds_read_b32 v81, v80\ns_waitcnt lgkmcnt(0)\nv_readfirstlane_b32 s64, v81\ns_cmp_lg_u32 s64, 0\ns_cbranch_scc1 L_ATT_FB")
    A("L_ATT_PUB:")
    flag_store(68)
    stamp(7)
    A(f"s_cmp_lg_u32 s2, 0\ns_cbranch_scc1 L_A_DONE\ns_cmp_lg_u32 s{S_W}, 1\ns_cbranch_scc1 L_A_DONE")
    A(f"v_lshlrev_b32 v6, 3, v1")
    for m in range(4):
        A(f"v_add_u32 v{8+m}, {F4 + 512*m}, v6")
    A(f"v_lshrrev_b32 v6, 3, v1\nv_lshlrev_b32 v6, 7, v6\nv_and_b32 v7, 7, v1\nv_lshl_add_u32 v6, v7, 3, v6")
    for m in range(4):
        A(f"v_add_u32 v{12+m}, {F3 + 1024*m}, v6")
    poll(list(range(8, 16)), t=20)
    A(f"v_mov_b32 v20, s{S_E}\ns_mov_b64 exec, 1\nbuffer_store_dword v20, off, {S(WS)}, 0 offset:{EPOCH} sc1\ns_mov_b64 exec, -1")
    A("L_A_DONE:")
    dump_stamps(12)
    A("s_endpgm")

    A("L_ATT_FB:")
    A(f"s_mov_b32 s{sPass}, 1\ns_mov_b32 s{sCnt}, 0\ns_mov_b32 s{sBlk}, 0")
    A(f"v_mov_b32 v20, 0xff800000\nv_mov_b32 v21, 0xff800000")
    A(f"v_mov_b32 v{vK}, v125\nv_mov_b32 v{vK1}, v126")
    A("L_FB_LOOP:")
    A(f"s_mov_b32 s{sDst}, 0\ns_barrier")
    dma_stage()
    A("s_waitcnt vmcnt(0)\ns_barrier")
    for kt in range(4):
        kreads(Kf[0], 256 * kt)
        A("s_waitcnt lgkmcnt(0)")
        for x in range(2):
            A(f"{MF32} {vr(SS[x],16)}, {vr(Kf[0],4)}, {vr(Q[x],4)}, 0\n{MF8} {vr(SS[x],16)}, {vr(Kf[0]+4,2)}, {vr(Q[x]+4,2)}, {vr(SS[x],16)}")
        A("s_nop 15")
        for x in range(2):
            for i in range(0, 16, 2):
                A(f"v_max3_f32 v{20+x}, v{SS[x]+i}, v{SS[x]+i+1}, v{20+x}")
    A(f"s_add_u32 s{sCnt}, s{sCnt}, 1\ns_cmp_lt_u32 s{sCnt}, 8\ns_cbranch_scc1 L_FB_LOOP")
    for x in range(2):
        A(f"v_mov_b32 v22, v{20+x}\ns_nop 1\nv_permlane32_swap_b32 v{20+x}, v22\nv_max_f32 v{20+x}, v{20+x}, v22")
    A(f"s_barrier\nds_write_b64 v6, v[20:21]\ns_waitcnt lgkmcnt(0)\ns_barrier\nds_read_b64 v[22:23], v7\ns_waitcnt lgkmcnt(0)")
    A("v_max_f32 v20, v20, v23\nv_max_f32 v21, v21, v22")
    A("v_cmp_le_u32 vcc, 32, v1")
    for x in range(2):
        A(f"v_sub_f32 v24, 0, v{20+x}\nv_and_b32 v25, 0xffff0000, v24\nv_sub_f32 v24, v24, v25\nv_and_b32 v26, 0xffff0000, v24\nv_sub_f32 v24, v24, v26")
        A(f"v_lshrrev_b32 v25, 16, v25\nv_or_b32 v25, v25, v26\nv_lshrrev_b32 v24, 16, v24")
        A(f"v_cndmask_b32 v{Q[x]+4}, v{Q[x]+4}, v25, vcc\nv_cndmask_b32 v{Q[x]+5}, v{Q[x]+5}, v24, vcc")
    A(f"s_lshr_b32 s64, s{S_W}, 1\ns_min_u32 s64, s64, 2\ns_mul_i32 s64, s64, {SLOT}\ns_and_b32 s65, s{S_W}, 1\ns_lshl_b32 s65, s65, 10\ns_add_u32 s64, s64, s65\ns_add_u32 s64, s64, {10*PS}")
    A(f"v_add_u32 v24, s64, v{vD}")
    for i in range(4):
        A(f"v_mov_b32 v{120+i}, 0x3f803f80")
    A("s_barrier\nds_write_b128 v24, v[120:123]\ns_waitcnt lgkmcnt(0)")
    A(f"s_lshl_b32 s{sBlk}, s{sQB}, 11\ns_mov_b32 s{sDst}, 0")
    dma_stage()
    dma_stage()
    A("s_branch L_ATT_MAIN")


def cmul(d, a, b, t):
    A(f"v_pk_mul_f32 {vr(t,2)}, {vr(a,2)}, {vr(b,2)} op_sel:[0,0] op_sel_hi:[1,0]")
    A(f"v_pk_fma_f32 {vr(d,2)}, {vr(a,2)}, {vr(b,2)}, {vr(t,2)} op_sel:[1,1,0] op_sel_hi:[0,1,1] neg_lo:[0,1,0]")


def cfma(d, a, b, c, t):
    A(f"v_pk_fma_f32 {vr(t,2)}, {vr(a,2)}, {vr(b,2)}, {vr(c,2)} op_sel:[0,0,0] op_sel_hi:[1,0,1]")
    A(f"v_pk_fma_f32 {vr(d,2)}, {vr(a,2)}, {vr(b,2)}, {vr(t,2)} op_sel:[1,1,0] op_sel_hi:[0,1,1] neg_lo:[0,1,0]")


def gather4(src, dst):
    for c in range(2):
        A(f"v_mov_b32 v{dst+c}, v{src+c}\nv_mov_b32 v{dst+2+c}, v{src+c}")
    A("s_nop 0")
    for c in range(2):
        A(f"v_permlane16_swap_b32 v{dst+c}, v{dst+2+c}")
    for c in range(4):
        A(f"v_mov_b32 v{dst+4+c}, v{dst+c}")
    for c in range(4):
        A(f"v_permlane32_swap_b32 v{dst+c}, v{dst+4+c}")


def role_b():
    sTC, sNB, sK = 41, 42, 43
    A("L_ROLE_B:")
    if OPT.get("nob"):
        A("s_endpgm")
    if OPT["bprio"]:
        A(f"s_setprio {OPT['bprio']}")
    bhi()
    A(f"s_and_b32 s68, s2, 7\ns_lshr_b32 s69, s2, 3\ns_and_b32 s69, s69, 31")
    A(f"s_and_b32 s{sTC}, s68, 3\ns_lshl_b32 s{sTC}, s{sTC}, 3\ns_and_b32 s64, s69, 7\ns_add_u32 s{sTC}, s{sTC}, s64")
    A(f"s_lshr_b32 s{sNB}, s68, 2\ns_lshl_b32 s{sNB}, s{sNB}, 2\ns_lshr_b32 s64, s69, 3\ns_add_u32 s{sNB}, s{sNB}, s64")
    A(f"s_mul_i32 s94, s{sNB}, 3\ns_add_u32 s94, s94, s{sTC}")
    mod10(94, 94, 64)
    A("s_waitcnt lgkmcnt(0)")
    A(f"s_load_dword s{S_E}, s[{P_WS}:{P_WS+1}], {EPOCH}")
    srd(WS, P_WS, WS_USED)
    MU, CF, MU16, PW, LAM, LAM8 = 2, 4, 6, 8, 10, 12
    A(f"s_mul_i32 s64, s{sNB}, 80\ns_lshl_b32 s65, s{S_W}, 4\ns_add_u32 s64, s64, s65")
    A(f"v_and_b32 v20, 15, v1\nv_add_u32 v20, s64, v20\nv_lshlrev_b32 v21, 1, v20")
    srd(R0, P_LRE, 1280); srd(R1, P_LIM, 1280); srd(R2, P_LDT, 1280)
    A(f"buffer_load_ushort v22, v21, {S(R0)}, 0 offen\nbuffer_load_ushort v23, v21, {S(R1)}, 0 offen\nbuffer_load_ushort v24, v21, {S(R2)}, 0 offen")
    A("s_waitcnt vmcnt(0) lgkmcnt(0)")
    epoch_fix()
    LOG2E = f2u(math.log2(math.e))
    A("v_lshlrev_b32 v22, 16, v22\nv_lshlrev_b32 v23, 16, v23\nv_lshlrev_b32 v24, 16, v24")
    A(f"v_mul_f32 v24, {LOG2E}, v24\nv_exp_f32 v24, v24\ns_nop 0\nv_cvt_pk_bf16_f32 v24, v24, v24\nv_lshlrev_b32 v24, 16, v24")
    A(f"v_mul_f32 v25, v24, v22\nv_mul_f32 v26, v24, v23\nv_mul_f32 v25, {LOG2E}, v25\nv_exp_f32 v25, v25")
    A(f"v_mul_f32 v26, 0.15915494, v26\nv_fract_f32 v26, v26\nv_cos_f32 v27, v26\nv_sin_f32 v28, v26\ns_nop 0")
    A(f"v_mul_f32 v{MU}, v25, v27\nv_mul_f32 v28, v25, v28\nv_sub_f32 v{MU+1}, 0, v28")
    A(f"v_add_f32 v27, -1.0, v{MU}")
    A("v_mul_f32 v25, v22, v22\nv_fmac_f32 v25, v23, v23\nv_rcp_f32 v25, v25")
    A("v_mul_f32 v26, v27, v22\nv_fmac_f32 v26, v28, v23\nv_mul_f32 v29, v28, v22\nv_fma_f32 v29, -v27, v23, v29")
    A(f"v_add_f32 v25, v25, v25\nv_mul_f32 v{CF}, v26, v25\nv_mul_f32 v29, v29, v25\nv_sub_f32 v{CF+1}, 0, v29")
    cmul(MU16, MU, MU, 22)
    for _ in range(3):
        cmul(MU16, MU16, MU16, 22)
    cmul(24, MU16, MU16, 22)
    cmul(26, 24, MU16, 22)
    cmul(LAM, 24, 24, 22)
    cmul(LAM8, LAM, LAM, 22)
    cmul(LAM8, LAM8, LAM8, 22)
    cmul(LAM8, LAM8, LAM8, 22)
    A("v_mov_b32 v16, v20\nv_lshrrev_b32 v28, 4, v1")
    A(f"v_cmp_eq_u32 s[96:97], 1, v28\nv_cmp_eq_u32 s[98:99], 2, v28\nv_cmp_eq_u32 s[100:101], 3, v28")
    A(f"v_mov_b32 v{PW}, 1.0\nv_mov_b32 v{PW+1}, 0")
    for src, m in ((MU16, 96), (24, 98), (26, 100)):
        for c in range(2):
            A(f"v_cndmask_b32 v{PW+c}, v{PW+c}, v{src+c}, s[{m}:{m+1}]")
    vS0, vRA, vRB = 14, 18, 22
    srd(R0, P_BX, 2621440); srd(R1, P_BRE, 819200); srd(R2, P_BIM, 819200)
    if OPT["touch"]:
        A(f"s_cmp_lt_u32 s{S_W}, 3\ns_cselect_b32 s65, 0, 3\ns_cmp_ge_u32 s{S_W}, 5\ns_cselect_b32 s65, 5, s65\ns_sub_u32 s65, s{S_W}, s65\ns_lshl_b32 s65, s65, 6")
        A(f"v_add_u32 v28, s65, v1\nv_mul_u32_u24 v29, 6554, v28\nv_lshrrev_b32 v29, 16, v29\nv_mul_u32_u24 v30, 10, v29\nv_sub_u32 v30, v28, v30")
        A(f"s_and_b32 s65, s{sNB}, 3\ns_lshl_b32 s65, s65, 4\ns_lshl_b32 s66, s{sTC}, 6\ns_add_u32 s65, s65, s66")
        A(f"s_and_b32 s66, s{sTC}, 7\ns_mul_i32 s67, s66, 10\ns_mul_i32 s68, s{sNB}, 80\ns_add_u32 s67, s67, s68")
        A(f"s_cmp_lt_u32 s{S_W}, 3\ns_cselect_b32 s65, s65, s67\ns_cselect_b32 s67, 160, 64\ns_cselect_b32 s68, 0, 36\ns_add_u32 s67, s67, s68")
        A(f"s_cmp_eq_u32 s{S_W}, 7\ns_cselect_b32 s67, 0, s67")
        A(f"v_add_u32 v29, s65, v29\nv_mul_u32_u24 v29, 1280, v29\nv_lshl_add_u32 v29, v30, 7, v29\nv_cmp_gt_u32 vcc, s67, v28\nv_mov_b32 v30, {OOB}")
        A(f"s_mul_i32 s66, s66, 80\nv_cndmask_b32 v26, v30, v29, vcc")
        A(f"v_lshrrev_b32 v29, 1, v28\nv_add_u32 v29, s66, v29\nv_mul_u32_u24 v29, 1280, v29\nv_and_b32 v31, 1, v28\nv_mul_u32_u24 v31, 156, v31\ns_mul_i32 s66, s{sNB}, 160\nv_add3_u32 v29, v29, v31, s66")
        A(f"v_cndmask_b32 v27, v30, v29, vcc")
        if OPT["tdelay"]:
            srd(R3, P_DSK, 1280)
            A(f"buffer_load_ushort v28, v21, {S(R3)}, 0 offen\ns_waitcnt vmcnt(0)")
        t1, t2, t3 = uid("T1"), uid("T2"), uid("T3")
        A(f"s_cmp_ge_u32 s{S_W}, 3\ns_cbranch_scc1 {t1}\nbuffer_load_dword v28, v26, {S(R0)}, 0 offen\ns_branch {t3}")
        A(f"{t1}:\ns_cmp_ge_u32 s{S_W}, 5\ns_cbranch_scc1 {t2}\nbuffer_load_dword v28, v26, {S(R1)}, 0 offen\ns_branch {t3}")
        A(f"{t2}:\nbuffer_load_dword v28, v26, {S(R2)}, 0 offen\n{t3}:")
    A(f"s_lshl_b32 s{sK}, s94, 7")
    A("v_lshrrev_b32 v30, 4, v1\nv_and_b32 v31, 7, v1\nv_xor_b32 v31, v31, v30\nv_lshlrev_b32 v31, 4, v31")
    A(f"v_and_b32 v30, 31, v1\nv_lshlrev_b32 v30, 7, v30\nv_lshrrev_b32 v17, 5, v1\nv_bfe_u32 v29, v1, 1, 3\nv_xor_b32 v29, v17, v29\nv_lshl_add_u32 v{vRA}, v29, 4, v30")

    def touch2():
        if not OPT["touch"]:
            return
        t1, t2, t3 = uid("U1"), uid("U2"), uid("U3")
        A(f"s_cmp_ge_u32 s{S_W}, 3\ns_cbranch_scc1 {t1}")
        srd(R1, P_WO, 819200)
        A(f"buffer_load_dword v28, v27, {S(R1)}, 0 offen\ns_branch {t3}")
        A(f"{t1}:\ns_cmp_ge_u32 s{S_W}, 5\ns_cbranch_scc1 {t2}")
        srd(R1, P_CRE, 819200)
        A(f"buffer_load_dword v28, v26, {S(R1)}, 0 offen\ns_branch {t3}\n{t2}:")
        srd(R1, P_CIM, 819200)
        A(f"buffer_load_dword v28, v26, {S(R1)}, 0 offen\n{t3}:")

    def advK():
        A(f"s_add_u32 s{sK}, s{sK}, 128\ns_cmp_eq_u32 s{sK}, 1280\ns_cselect_b32 s{sK}, 0, s{sK}")

    ACC, BF, AF = 32, 64, 80
    SH = 12288
    A(f"s_cmp_ge_u32 s{S_W}, 4\ns_cbranch_scc1 L_G1_AUX")
    A(f"v_lshrrev_b32 v30, 3, v1\nv_add_u32 v30, s64, v30\nv_mul_u32_u24 v30, 1280, v30\nv_add_u32 v{vS0}, v30, v31")
    A(f"v_xor_b32 v{vS0+1}, 64, v{vS0}\nv_add_u32 v{vS0+1}, 10240, v{vS0+1}")
    A(f"s_lshl_b32 s65, s{S_W}, 13\ns_add_u32 s65, s65, {3*SH}")
    for u in range(1, 4):
        A(f"v_xor_b32 v{vRA+u}, {32*u}, v{vRA}")
    for u in range(4):
        A(f"v_add_u32 v{vRB+u}, s65, v{vRA+u}")
    if OPT["hint"]:
        sk = uid("HP")
        A(f"s_cmp_lg_u32 s{S_W}, 0\ns_cbranch_scc1 {sk}")
        A(f"s_sub_u32 s66, s2, 256\ns_lshl_b32 s66, s66, 7\ns_add_u32 s66, s66, {F0}\nv_mov_b32 v30, s66")
        poll([30], t=120)
        A(f"{sk}:\ns_waitcnt vmcnt(0)\ns_barrier")
    else:
        A("s_waitcnt vmcnt(0)")
    stamp(1)
    blo()

    def dmaB(Sx):
        for q in range(4):
            A(f"s_add_u32 m0, s65, {(Sx % 2) * 4096 + q * 1024}\ns_nop 0")
            dma(vS0 + (q & 1), R1 if q < 2 else R2, sK, 'nt' if OPT['ntb'] else '')
        advK()

    def g1_mm(Sx, u, tts=(0, 1)):
        for tt in tts:
            c = "0" if (Sx == 0 and u == 0) else vr(ACC + 16 * tt, 16)
            A(f"{MF32} {vr(ACC+16*tt,16)}, {vr(AF+8*u+4*tt,4)}, {vr(BF+4*u,4)}, {c}")

    dmaB(0); dmaB(1)
    for Sx in range(10):
        fst(Sx, OPT.get('fm') == 1)
        A(f"s_waitcnt vmcnt({4 if Sx < 9 else 0})")
        fst(Sx, OPT.get('fm') == 2)
        for u in range(3):
            A(f"ds_read_b128 {vr(BF+4*u,4)}, v{vRB+u} offset:{(Sx % 2) * 4096}")
        A("s_barrier")
        fst(Sx, OPT.get('fm') == 0)
        if Sx:
            g1_mm(Sx - 1, 3, (0,))
        for u in range(3):
            for tt in range(2):
                A(f"ds_read_b128 {vr(AF+8*u+4*tt,4)}, v{vRA+u} offset:{(Sx % 3) * SH + 4096*tt}")
        if Sx:
            g1_mm(Sx - 1, 3, (1,))
        A(f"ds_read_b128 {vr(BF+12,4)}, v{vRB+3} offset:{(Sx % 2) * 4096}")
        for tt in range(2):
            A(f"ds_read_b128 {vr(AF+24+4*tt,4)}, v{vRA+3} offset:{(Sx % 3) * SH + 4096*tt}")
        A("s_waitcnt lgkmcnt(7)")
        g1_mm(Sx, 0)
        A("s_waitcnt lgkmcnt(5)")
        g1_mm(Sx, 1, (0,))
        g1_mm(Sx, 1, (1,))
        A("s_waitcnt lgkmcnt(3)")
        g1_mm(Sx, 2)
        A("s_waitcnt lgkmcnt(0)")
        if Sx + 2 < 10:
            dmaB(Sx + 2)
    g1_mm(9, 3)
    A("s_barrier")
    A("s_branch L_SCAN")

    A("L_G1_AUX:")
    A(f"s_sub_u32 s65, s{S_W}, 4")
    A(f"v_bfe_u32 v29, v1, 3, 1\nv_lshl_add_u32 v30, v17, 1, v29\nv_lshlrev_b32 v30, 4, v30\nv_bfe_u32 v29, v1, 4, 1\nv_add_u32 v30, v30, v29")
    A(f"s_lshl_b32 s66, s{sTC}, 6\ns_lshr_b32 s67, s65, 1\ns_lshl_b32 s67, s67, 3\ns_add_u32 s66, s66, s67\ns_and_b32 s67, s65, 1\ns_lshl_b32 s67, s67, 2\ns_add_u32 s66, s66, s67")
    A(f"v_add_u32 v30, s66, v30\nv_mul_u32_u24 v30, 1280, v30\nv_add_u32 v{vS0}, v30, v31")
    A(f"v_xor_b32 v{vS0+1}, 64, v{vS0}\nv_add_u32 v{vS0+1}, 2560, v{vS0+1}")
    A(f"s_mul_i32 s66, s{sNB}, 80\ns_and_b32 s67, s65, 1\ns_lshl_b32 s68, s67, 3\ns_add_u32 s66, s66, s68\ns_add_u32 s66, s66, 64\ns_lshl_b32 s67, s67, 6")
    A(f"v_lshrrev_b32 v30, 3, v1\nv_add_u32 v30, s66, v30\nv_mul_u32_u24 v30, 1280, v30\nv_xor_b32 v29, s67, v31\nv_add_u32 v17, v30, v29")
    A(f"s_cmp_lt_u32 s65, 2\ns_cselect_b32 s{R3}, s{R1}, s{R2}\ns_cselect_b32 s{R3+1}, s{R1+1}, s{R2+1}\ns_mov_b32 s{R3+2}, 819200\ns_mov_b32 s{R3+3}, 0x20000")
    A(f"s_lshl_b32 s66, s65, 5\nv_xor_b32 v{vRA}, s66, v{vRA}")
    A(f"s_lshl_b32 s95, s65, 10\ns_lshl_b32 s65, s65, 11")
    A("s_waitcnt vmcnt(0)")
    if OPT["hint"]:
        A("s_barrier")
    blo()

    def dmaX(Sx):
        for q in range(2):
            A(f"s_add_u32 m0, s65, {(Sx % 3) * SH + q * 1024}\ns_nop 0")
            dma(vS0 + q, R0, sK, 'nt' if OPT['ntb'] else '')
        A(f"s_add_u32 m0, s95, {(Sx % 3) * SH + 8192}\ns_nop 0")
        dma(17, R3, sK, 'nt' if OPT['ntb'] else '')
        advK()

    dmaX(0); dmaX(1)
    for Sx in range(10):
        fst(Sx, OPT.get('fm') == 1)
        A(f"s_waitcnt vmcnt({3 if Sx < 9 else 0})")
        fst(Sx, OPT.get('fm') == 2)
        A("s_barrier")
        fst(Sx, OPT.get('fm') == 0)
        A(f"ds_read_b128 {vr(BF,4)}, v{vRA} offset:{(Sx % 3) * SH + 8192}")
        for tt in range(2):
            A(f"ds_read_b128 {vr(AF+4*tt,4)}, v{vRA} offset:{(Sx % 3) * SH + 4096*tt}")
        if Sx + 2 < 10:
            dmaX(Sx + 2)
        A("s_waitcnt lgkmcnt(0)")
        g1_mm(Sx, 0)
    bhi()
    A(f"v_lshlrev_b32 v30, 4, v1\ns_cmp_eq_u32 s{S_W}, 4\ns_cbranch_scc1 L_G1_RED")
    A(f"s_lshl_b32 s66, s{S_W}, 13\ns_add_u32 s66, s66, {SH - 5*8192}\nv_add_u32 v30, s66, v30\ns_nop 7")
    for g in range(8):
        A(f"ds_write_b128 v30, {vr(ACC+4*g,4)} offset:{1024*g}")
    touch2()
    A("s_waitcnt lgkmcnt(0)\ns_barrier\ns_barrier\ns_branch L_B_H")
    A("L_G1_RED:\ns_barrier")
    for p in range(3):
        for g in range(8):
            A(f"ds_read_b128 {vr(64+4*g,4)}, v30 offset:{SH + 8192*p + 1024*g}")
        for g in range(8):
            A(f"s_waitcnt lgkmcnt({7-g})")
            for c in range(2):
                A(f"v_pk_add_f32 {vr(ACC+4*g+2*c,2)}, {vr(ACC+4*g+2*c,2)}, {vr(64+4*g+2*c,2)}")
    A("L_SCAN:")
    stamp(2)
    bhi()
    touch2()
    A("s_nop 11")
    for i in range(16):
        A(f"v_permlane16_swap_b32 v{ACC+2*i}, v{ACC+2*i+1}")
    for i in range(16):
        u = ACC + 2 * i
        t = 64 + 2 * (i & 1)
        A(f"v_pk_mul_f32 {vr(t,2)}, {vr(u,2)}, {vr(CF,2)} op_sel:[0,0] op_sel_hi:[0,1]")
        A(f"v_pk_fma_f32 {vr(u,2)}, {vr(u,2)}, {vr(CF,2)}, {vr(t,2)} op_sel:[1,1,0] op_sel_hi:[1,0,1] neg_hi:[0,1,0]")
    G, T = 68, 70
    cfma(G, ACC, MU, ACC + 2, T)
    for i in range(2, 16):
        cfma(G, G, MU, ACC + 2 * i, T)
    E4 = 72
    gather4(G, E4)
    PRE = 80
    cfma(82, E4, MU16, E4 + 2, T)
    cfma(84, 82, MU16, E4 + 4, T)
    cfma(86, 84, MU16, E4 + 6, T)
    A(f"v_mov_b32 v{PRE}, 0\nv_mov_b32 v{PRE+1}, 0")
    for src, m in ((E4, 96), (82, 98), (84, 100)):
        for c in range(2):
            A(f"v_cndmask_b32 v{PRE+c}, v{PRE+c}, v{src+c}, s[{m}:{m+1}]")
    A(f"s_mul_i32 s64, s{sNB}, 20480\ns_add_u32 s64, s64, {EB}\ns_add_u32 s{R3}, s{P_WS}, s64\ns_addc_u32 s{R3+1}, s{P_WS+1}, 0\ns_and_b32 s{R3+1}, s{R3+1}, 0xffff\ns_mov_b32 s{R3+2}, 20480\ns_mov_b32 s{R3+3}, 0x20000")
    A(f"v_and_b32 v88, 15, v1\ns_lshl_b32 s64, s{S_W}, 4\nv_add_u32 v88, s64, v88\nv_lshlrev_b32 v88, 3, v88")
    A(f"s_mul_i32 s64, s{sTC}, 640\ns_mov_b64 exec, 0xffff")
    A(f"buffer_store_dwordx2 v[86:87], v88, {S(R3)}, s64 offen sc1\ns_mov_b64 exec, -1")
    A(f"s_lshl_b32 s68, s{sNB}, 8\ns_lshl_b32 s69, s{sTC}, 3\ns_add_u32 s68, s68, s69\ns_add_u32 s68, s68, {F2}")
    A("s_waitcnt vmcnt(0)\ns_barrier")
    flag_store(68)
    stamp(3)
    A(f"v_and_b32 v89, 31, v1\nv_min_u32 v89, s{sTC}, v89\nv_lshlrev_b32 v89, 3, v89\ns_lshl_b32 s68, s{sNB}, 8\ns_add_u32 s68, s68, {F2}\nv_add_u32 v89, s68, v89")
    poll([89], t=120)
    stamp(4)
    A(f"v_lshrrev_b32 v89, 4, v1\nv_mul_u32_u24 v89, {8*640}, v89\ns_mul_i32 s64, s{sTC}, 640\ns_sub_u32 s64, s64, {8*640}\nv_sub_u32 v89, s64, v89\nv_add_u32 v88, v88, v89")
    EL = 96
    for u in range(8):
        if u:
            A("v_add_u32 v88, 640, v88")
        A(f"buffer_load_dwordx2 {vr(EL+2*u,2)}, v88, {S(R3)}, 0 offen sc1")
    A("s_waitcnt vmcnt(6)")
    cfma(G, EL, LAM, EL + 2, T)
    for u in range(2, 8):
        A(f"s_waitcnt vmcnt({7-u})")
        cfma(G, G, LAM, EL + 2 * u, T)
    gather4(G, E4)
    cfma(G, E4 + 6, LAM8, E4 + 4, T)
    cfma(G, G, LAM8, E4 + 2, T)
    cfma(G, G, LAM8, E4, T)
    cfma(G, G, PW, PRE, T)
    cfma(ACC, G, MU, ACC, T)
    for i in range(1, 16):
        cfma(ACC + 2 * i, ACC + 2 * i - 2, MU, ACC + 2 * i, T)
    PK = 64
    A(f"v_lshrrev_b32 v88, 4, v1\nv_mul_u32_u24 v88, 40960, v88\nv_lshl_add_u32 v88, v16, 4, v88")
    A(f"s_mul_i32 s64, s{sTC}, 163840\ns_add_u32 s64, s64, {HB}")
    for tt in range(2):
        for c in range(2):
            d = PK + 8 * tt + 4 * c
            for m in range(4):
                a = ACC + 16 * tt + 4 * m + c
                A(f"v_cvt_pk_bf16_f32 v{d+m}, v{a}, v{a+2}")
            A(f"s_add_u32 s65, s64, {tt*20480 + c*10240}")
            A(f"buffer_store_dwordx4 {vr(d,4)}, v88, {S(WS)}, s65 offen sc1")
    A("s_waitcnt vmcnt(0)")
    A("L_B_H:")
    A(f"s_lshl_b32 s68, s{sTC}, 7\ns_lshl_b32 s69, s{sNB}, 3\ns_add_u32 s68, s68, s69\ns_add_u32 s68, s68, {F3}")
    A("s_barrier")
    flag_store(68)
    stamp(5)
    A(f"s_cmp_ge_u32 s{S_W}, 4\ns_cbranch_scc1 L_B_SMALL")
    tail_gemms(True)
    A("L_B_SMALL:")
    tail_gemms(False)


def tail_gemms(big):
    sTC, sNB, sK = 41, 42, 43
    nacc = 16 if big else 4
    ACC = 32
    nfr = 32 if big else 16
    FR = [64, 64 + nfr]
    MF = MF32 if big else MF16
    per = 2
    A("v_bfe_u32 v2, v1, 2, 2\nv_and_b32 v3, 3, v1")
    if big:
        A(f"v_lshrrev_b32 v4, 5, v1\nv_and_b32 v5, 31, v1\ns_and_b32 s95, s{S_W}, 1\ns_lshr_b32 s96, s{S_W}, 1")
        A(f"s_lshl_b32 s97, s95, 5\ns_lshl_b32 s98, s96, 5")
    else:
        A(f"v_lshrrev_b32 v4, 4, v1\nv_and_b32 v5, 15, v1\ns_sub_u32 s95, s{S_W}, 4")
        A(f"s_lshl_b32 s97, s95, 4\ns_mov_b32 s98, 64")
    A(f"s_lshl_b32 s64, s{sTC}, 6\ns_add_u32 s64, s64, s97\nv_lshl_add_u32 v6, v4, 2, s64")
    A(f"s_mul_i32 s65, s{sNB}, 80\ns_add_u32 s65, s65, s98\nv_add_u32 v7, s65, v5")
    A("v_mul_u32_u24 v8, 1280, v6\nv_lshl_add_u32 v8, v7, 1, v8")
    A("v_mul_u32_u24 v9, 5120, v6\nv_lshl_add_u32 v9, v7, 2, v9")
    rows = [8 * (i >> 2) + (i & 3) for i in range(nacc)]
    srd(R3, P_DSK, 1280)
    A(f"v_lshlrev_b32 v10, 1, v7\nbuffer_load_ushort v10, v10, {S(R3)}, 0 offen")
    for i in range(nacc):
        A(f"s_mov_b32 s64, {rows[i]*1280}\nbuffer_load_ushort v{ACC+i}, v8, {S(R0)}, s64 offen")

    nu = 4 if big else 2

    def mf1(Sx, u, c0, f=None):
        if Sx < 0:
            return
        f = FR[Sx & 1] if f is None else f
        c = "0" if (c0 and Sx == 0 and u == 0) else vr(ACC, nacc)
        A(f"{MF} {vr(ACC,nacc)}, {vr(f+8*u,4)}, {vr(f+8*u+4,4)}, {c}")

    def pipeline(nst, dma_fn, reads_fn, c0, paced):
        for Sx in range(nst):
            infl = min(Sx + 3, nst) - Sx - 1
            A(f"s_waitcnt vmcnt({per*infl})\ns_barrier")
            if paced:
                if Sx + 3 < nst:
                    dma_fn(Sx + 3)
                for u in range(nu):
                    reads_fn(Sx, [u])
                    A("s_waitcnt lgkmcnt(0)")
                    mf1(Sx, u, c0)
                continue
            mf1(Sx - 1, 0, c0)
            reads_fn(Sx, range(nu))
            for u in range(1, nu):
                mf1(Sx - 1, u, c0)
            if Sx + 3 < nst:
                dma_fn(Sx + 3)
            A("s_waitcnt lgkmcnt(0)")
        if not paced:
            for u in range(nu):
                mf1(nst - 1, u, c0)

    def store_out(coloff):
        A("s_nop 11" if big else "s_nop 7")
        for i in range(nacc):
            A(f"s_mov_b32 s64, {rows[i]*5120}\nbuffer_store_dword v{ACC+i}, v9, {S(R2)}, s64 offen offset:{coloff} {['', 'nt', 'sc1', 'sc1 nt', 'sc0 sc1'][OPT['sto']]}")

    SL = 18944
    vA, vB, vS = 12, 14, 20
    srd(R1, P_CRE, 819200); srd(R2, P_CIM, 819200)
    if big:
        A(f"s_lshl_b32 s64, s95, 2\nv_bfe_u32 v11, v1, 4, 1\nv_lshlrev_b32 v11, 1, v11\nv_lshrrev_b32 v{vA}, 1, v3\nv_add3_u32 v11, v11, v{vA}, s64")
    else:
        A(f"s_lshl_b32 s64, s95, 1\nv_lshrrev_b32 v11, 1, v3\nv_add_u32 v11, s64, v11")
    A(f"v_mul_u32_u24 v11, 1088, v11\nv_lshl_add_u32 v{vA}, v4, 3, v2\nv_lshl_add_u32 v11, v{vA}, 4, v11\nv_and_b32 v{vA}, 1, v3\nv_lshl_add_u32 v{vA}, v{vA}, 3, v11")
    A(f"v_add_u32 v11, s98, v5\nv_lshlrev_b32 v11, 7, v11\nv_add_u32 v11, 8704, v11\nv_bfe_u32 v{vB}, v5, 1, 3\nv_xor_b32 v{vB}, v{vB}, v4\nv_lshl_add_u32 v{vB}, v{vB}, 4, v11")
    for u in range(1, 4 if big else 2):
        A(f"v_xor_b32 v{vB+u}, {(32 if big else 64)*u}, v{vB}")
    if big:
        A(f"v_lshlrev_b32 v{vS}, 4, v1")
        A(f"s_mul_i32 s44, s{sTC}, 163840\ns_mul_i32 s64, s{S_W}, 40960\ns_add_u32 s44, s44, s64\ns_add_u32 s44, s44, {HB}")
        A(f"s_mul_i32 s46, s{S_W}, 2176\ns_lshl_b32 s{sK}, s94, 10")
        A(f"v_and_b32 v11, 7, v1\nv_lshlrev_b32 v11, 3, v11\ns_lshl_b32 s64, s{sTC}, 7\ns_add_u32 s64, s64, {F3}\nv_add_u32 v11, s64, v11")
    else:
        A(f"v_lshrrev_b32 v11, 3, v1\ns_mul_i32 s64, s{sNB}, 80\ns_lshl_b32 s65, s95, 3\ns_add_u32 s64, s64, s65\nv_add_u32 v11, s64, v11\nv_mul_u32_u24 v11, 1280, v11")
        A(f"v_and_b32 v{vS}, 7, v1\nv_xor_b32 v{vS}, v{vS}, v4\ns_and_b32 s64, s95, 1\ns_lshl_b32 s64, s64, 2\nv_xor_b32 v{vS}, s64, v{vS}\nv_lshl_add_u32 v{vS}, v{vS}, 4, v11")
        A(f"v_add_u32 v{vS+1}, 40960, v{vS}\nv_add_u32 v{vS+2}, 81920, v{vS}")
        A(f"s_lshl_b32 s46, s95, 10\ns_lshl_b32 s{sK}, s94, 7")
    A("s_waitcnt vmcnt(0)\nv_lshlrev_b32 v10, 16, v10")
    for i in range(nacc):
        A(f"v_lshlrev_b32 v{ACC+i}, 16, v{ACC+i}\nv_mul_f32 v{ACC+i}, v10, v{ACC+i}")

    def small_dma(slot_base, aoff, rs):
        for m in range(3):
            if m == 2:
                sk = uid("SD")
                A(f"s_cmp_ge_u32 s95, 2\ns_cbranch_scc1 {sk}")
            A(f"s_add_u32 m0, s46, {slot_base + aoff + 4096*m}\ns_nop 0")
            dma(vS + m, rs, sK, 'nt' if OPT['ntc'] else '')
        A(f"{sk}:")

    def g2_dma(Sx):
        sb = (Sx % 4) * SL
        if big:
            for i in range(2):
                A(f"s_add_u32 m0, s46, {sb + 1088*i}\ns_add_u32 s64, s44, s{sK}")
                if i or Sx >= 10:
                    A(f"s_add_u32 s64, s64, {20480*i + (10240 if Sx >= 10 else 0)}")
                dma(vS, WS, 64, "sc1")
            A(f"s_add_u32 s{sK}, s{sK}, 1024\ns_cmp_eq_u32 s{sK}, 10240\ns_cselect_b32 s{sK}, 0, s{sK}")
        else:
            small_dma(sb, 8704, R1 if Sx < 10 else R2)
            A(f"s_add_u32 s{sK}, s{sK}, 128\ns_cmp_eq_u32 s{sK}, 1280\ns_cselect_b32 s{sK}, 0, s{sK}")

    def g2_reads(Sx, us):
        f, sb = FR[Sx & 1], (Sx % 4) * SL
        for u in us:
            for j in range(2):
                A(f"ds_read_b64_tr_b16 {vr(f+8*u+2*j,2)}, v{vA} offset:{sb + (256 if big else 512)*u + 64*j}")
            A(f"ds_read_b128 {vr(f+8*u+4,4)}, v{vB+u} offset:{sb}")

    if big:
        if OPT["touch"]:
            A(f"v_lshlrev_b32 v24, 7, v1\nv_cmp_gt_u32 vcc, 16, v1\nv_mov_b32 v25, {OOB}\nv_add_u32 v26, 8192, v24\nv_cndmask_b32 v25, v25, v26, vcc")
            A(f"s_and_b32 s65, s{sNB}, 3\ns_mul_i32 s65, s65, 40960\ns_mul_i32 s66, s{S_W}, 30720\ns_sub_u32 s65, s65, s66\ns_add_u32 s65, s65, s44")
        poll([11], t=120)
        if OPT.get("g2late"):
            A(f"s_and_b32 s66, s2, 7\ns_lshr_b32 s67, s2, 3\ns_and_b32 s68, s67, 7\ns_lshl_b32 s68, s68, 8\ns_lshr_b32 s67, s67, 3\ns_and_b32 s67, s67, 3\ns_lshl_b32 s66, s66, 2\ns_add_u32 s66, s66, s67\ns_lshl_b32 s66, s66, 3\ns_add_u32 s66, s66, s68\ns_add_u32 s66, s66, {F4}\nv_mov_b32 v28, s66")
            poll([28], t=120)
        stamp(6)
        if OPT["touch"]:
            A(f"buffer_load_dword v26, v24, {S(WS)}, s65 offen sc1\nbuffer_load_dword v27, v25, {S(WS)}, s65 offen sc1")
    blo()
    for Sx in range(3):
        g2_dma(Sx)
    pipeline(20, g2_dma, g2_reads, False, OPT['pace2'])
    A("s_barrier")
    stamp(7)
    bhi()
    SL2 = 19456
    srd(R2, P_OUT, 10485760)
    vA2, vB2 = 12, 14
    if big:
        A(f"v_mul_u32_u24 v11, 1152, v4\nv_add_u32 v{vA2}, s97, v5\nv_lshl_add_u32 v{vA2}, v{vA2}, 3, v11")
        A(f"v_lshlrev_b32 v11, 1, v2\nv_lshl_add_u32 v11, v4, 3, v11\nv_mul_u32_u24 v11, 160, v11\nv_lshl_add_u32 v11, v3, 3, v11\nv_bfe_u32 v{vB2}, v1, 4, 1\nv_lshl_add_u32 v11, v{vB2}, 5, v11")
        A(f"s_lshl_b32 s64, s96, 6\ns_add_u32 s64, s64, 9216\nv_add_u32 v{vB2}, s64, v11")
        A(f"v_mul_u32_u24 v{vS}, {PL}, v4\nv_lshl_add_u32 v{vS}, v5, 4, v{vS}")
        A(f"s_mul_i32 s44, s{S_W}, {4*PL}\ns_lshl_b32 s64, s{sTC}, 9\ns_add_u32 s44, s44, s64\ns_add_u32 s44, s44, {OP}")
        A(f"s_mul_i32 s46, s{S_W}, 2304\ns_mul_i32 s{sK}, s94, {16*PL}")
        A(f"s_lshr_b32 s64, s{sTC}, 2\ns_lshl_b32 s64, s64, 8\ns_add_u32 s64, s64, {F4}\nv_lshlrev_b32 v11, 3, v5\nv_add_u32 v11, s64, v11")
    else:
        A(f"v_mul_u32_u24 v11, 1152, v4\nv_add_u32 v{vA2}, s97, v5\nv_lshl_add_u32 v{vA2}, v{vA2}, 3, v11")
        A(f"v_lshlrev_b32 v11, 1, v2\nv_lshl_add_u32 v11, v4, 3, v11\nv_mul_u32_u24 v11, 160, v11\nv_lshl_add_u32 v11, v3, 3, v11\nv_add_u32 v{vB2}, {9216+128}, v11")
        srd(R1, P_WO, 819200)
        A(f"s_mul_i32 s65, s{sNB}, 160")
        for m in range(3):
            A(f"s_lshl_b32 s64, s95, 6\ns_add_u32 s64, s64, {256*m}\nv_add_u32 v24, s64, v1")
            A(f"v_mul_u32_u24 v25, 6554, v24\nv_lshrrev_b32 v25, 16, v25\nv_mul_u32_u24 v26, 10, v25\nv_sub_u32 v26, v24, v26")
            A(f"v_and_b32 v27, 0x78, v25\nv_and_b32 v28, 1, v25\nv_lshl_add_u32 v27, v28, 2, v27\nv_bfe_u32 v28, v25, 1, 2\nv_add_u32 v27, v27, v28")
            A(f"v_mul_u32_u24 v27, 1280, v27\nv_lshl_add_u32 v27, v26, 4, v27\nv_add_u32 v{vS+m}, s65, v27")
        A(f"s_mul_i32 s{sK}, s94, 81920")
    A(f"v_add_u32 v{vA2+1}, {2*SL2}, v{vA2}\nv_add_u32 v{vB2+1}, {2*SL2}, v{vB2}")

    def op_dma(Sx):
        sb = (Sx % 4) * SL2
        if big:
            for i in range(2):
                A(f"s_add_u32 m0, s46, {sb + 1152*i}\ns_add_u32 s64, s44, s{sK}")
                if i:
                    A(f"s_add_u32 s64, s64, {2*PL}")
                dma(vS, WS, 64, "sc1")
            A(f"s_add_u32 s{sK}, s{sK}, {16*PL}\ns_cmp_eq_u32 s{sK}, {160*PL}\ns_cselect_b32 s{sK}, 0, s{sK}")
        else:
            small_dma(sb, 9216, R1)
            A(f"s_add_u32 s{sK}, s{sK}, 81920\ns_cmp_eq_u32 s{sK}, 819200\ns_cselect_b32 s{sK}, 0, s{sK}")

    def op_reads(Sx, us):
        f = FR[Sx & 1]
        tw, sb = ((Sx % 4) >> 1), (Sx % 2) * SL2
        for u in us:
            for j in range(2):
                A(f"ds_read_b64 {vr(f+8*u+2*j,2)}, v{vA2+tw} offset:{sb + (2304 if big else 4608)*u + 512*j}")
            for j in range(2):
                A(f"ds_read_b64_tr_b16 {vr(f+8*u+4+2*j,2)}, v{vB2+tw} offset:{sb + (2560 if big else 5120)*u + 160*j}")

    if not big:
        for Sx in range(3):
            op_dma(Sx)
    store_out(2560)
    if big:
        if OPT["touch"]:
            A(f"v_lshrrev_b32 v24, 2, v1\nv_mul_u32_u24 v24, {PL}, v24\nv_and_b32 v25, 3, v1\nv_lshl_add_u32 v24, v25, 7, v24\nv_cmp_gt_u32 vcc, 40, v1\nv_mov_b32 v25, {OOB}")
            A(f"s_and_b32 s65, s{sNB}, 3\ns_mul_i32 s65, s65, {40*PL}\ns_mul_i32 s66, s{S_W}, {6*PL}\ns_add_u32 s65, s65, s66\ns_add_u32 s65, s65, s44\nv_cndmask_b32 v24, v25, v24, vcc")
        poll([11], t=120)
        stamp(8)
        if OPT["touch"]:
            A(f"buffer_load_dword v26, v24, {S(WS)}, s65 offen sc1")
        for Sx in range(3):
            op_dma(Sx)
    else:
        A("s_waitcnt vmcnt(0)")
    pipeline(10, op_dma, op_reads, True, False)
    store_out(0)
    stamp(9)
    if OPT["stamps"]:
        A("s_waitcnt vmcnt(0)")
        stamp(10)
    dump_stamps(11)
    A("s_endpgm")


def build():
    hdr = open("cdna_kernels/" + NAME + ".s.ref").read().split("\n")
    out = [l for l in hdr if l.startswith(";") and "@launch" not in l]
    out.append("; @launch grid=(512,1,1) block=(512,1,1) lds=81920")
    out.append('.amdgcn_target "amdgcn-amd-amdhsa--gfx950"\n.text')
    out.append(f".globl {NAME}_kernel\n.p2align 8\n.type {NAME}_kernel,@function\n{NAME}_kernel:")
    prologue()
    if OPT.get("noa"):
        A("s_endpgm")
    if OPT["aprio"]:
        A(f"s_setprio {OPT['aprio']}")
    qkv()
    attention()
    role_b()
    A("L_END:\ns_endpgm")
    for l in L:
        out.append(l if l.endswith(":") or l.startswith(".") else "    " + l)
    out.append(f""".section .rodata,"a"
.p2align 6
.amdhsa_kernel {NAME}_kernel
  .amdhsa_next_free_vgpr 128
  .amdhsa_next_free_sgpr 102
  .amdhsa_accum_offset 128
  .amdhsa_group_segment_fixed_size 0
  .amdhsa_kernarg_size 120
  .amdhsa_user_sgpr_count 2
  .amdhsa_user_sgpr_kernarg_segment_ptr 1
  .amdhsa_system_sgpr_workgroup_id_x 1
.end_amdhsa_kernel""")
    return "\n".join(out) + "\n"


if __name__ == "__main__":
    txt = build()
    open(sys.argv[1], "w").write(txt)
    sys.path.insert(0, "gen")
    import hazard
    e = hazard.check(txt)
    print("\n".join(e) if e else "hazard check: clean")
```

```python
import re, sys

TRANS = ("v_exp_", "v_log_", "v_rcp_", "v_rsq_", "v_sqrt_", "v_sin_", "v_cos_")
CAP = 24


def regs_of(tok):
    tok = tok.strip()
    tok = tok.lstrip("-")
    if tok.startswith("abs(") or tok.startswith("|"):
        tok = tok.replace("abs(", "").replace(")", "").replace("|", "")
    m = re.fullmatch(r"([vsa])\[(\d+):(\d+)\]", tok)
    if m:
        return {f"{m.group(1)}{i}" for i in range(int(m.group(2)), int(m.group(3)) + 1)}
    m = re.fullmatch(r"([vsa])(\d+)", tok)
    if m:
        return {tok}
    if tok == "vcc":
        return {"vcc"}
    if tok in ("vcc_lo", "vcc_hi"):
        return {"vcc"}
    if tok == "exec":
        return {"exec"}
    if tok == "m0":
        return {"m0"}
    return set()


class I:
    def __init__(self, text, ln):
        self.text = text
        self.ln = ln
        parts = text.split(None, 1)
        self.mn = parts[0]
        rest = parts[1] if len(parts) > 1 else ""
        ops, depth, cur = [], 0, ""
        for ch in rest:
            if ch == "[":
                depth += 1
            if ch == "]":
                depth -= 1
            if ch == "," and depth == 0:
                ops.append(cur.strip())
                cur = ""
            else:
                cur += ch
        if cur.strip():
            ops.append(cur.strip())
        if ops:
            l = ops[-1].split()
            self.mods = l[1:]
            ops[-1] = l[0]
        else:
            self.mods = []
        self.ops = ops
        mn = self.mn
        self.valu = mn.startswith("v_") and not mn.startswith("v_mfma")
        self.mfma = mn.startswith("v_mfma")
        self.trans = mn.startswith(TRANS)
        self.vmem = mn.startswith(("buffer_", "global_", "flat_"))
        self.ds = mn.startswith("ds_")
        self.salu = mn.startswith("s_")
        self.defs, self.uses = set(), set()
        R = [regs_of(o) for o in ops]
        if self.mfma:
            self.defs = R[0]
            self.A, self.B, self.C = R[1], R[2], R[3]
            self.uses = R[1] | R[2] | R[3]
            self.passes = 4 if "16x16" in mn else 8
        elif self.valu:
            if mn.startswith("v_cmp"):
                self.defs = R[0]
                self.uses = set().union(*R[1:])
            elif mn.startswith(("v_permlane16_swap", "v_permlane32_swap", "v_swap")):
                self.defs = R[0] | R[1]
                self.uses = R[0] | R[1]
            elif mn.startswith(("v_add_co", "v_sub_co", "v_addc_co", "v_subb_co", "v_div_scale")):
                self.defs = R[0] | R[1]
                self.uses = set().union(*R[2:])
            else:
                self.defs = R[0]
                self.uses = set().union(*R[1:]) if len(R) > 1 else set()
                if mn.startswith(("v_fmac", "v_writelane", "v_dot2c")) or "UNUSED_PRESERVE" in text:
                    self.uses |= R[0]
                if mn.startswith("v_cndmask") and len(ops) == 3:
                    self.uses |= {"vcc"}
        elif self.vmem:
            lds = "lds" in self.mods or (ops and ops[-1] == "lds")
            self.lds = lds
            if "load" in mn and not lds:
                self.defs = R[0]
                self.uses = set().union(*R[1:])
            elif "atomic" in mn:
                self.uses = set().union(*R)
                if "sc0" in self.mods:
                    self.defs = R[0]
            else:
                self.uses = set().union(*R) if R else set()
                if lds:
                    self.uses |= {"m0"}
            self.wide_store = ("store" in mn) and ("x3" in mn or "x4" in mn)
            if self.wide_store:
                self.sdata = R[0] if mn.startswith("buffer") else R[1]
        elif self.ds:
            if "read" in mn or "bpermute" in mn or "swizzle" in mn or "rtn" in mn:
                self.defs = R[0]
                self.uses = set().union(*R[1:])
            else:
                self.uses = set().union(*R)
        elif self.salu:
            if mn.startswith(("s_cmp", "s_cbranch", "s_branch", "s_waitcnt", "s_barrier", "s_nop", "s_sleep", "s_setprio", "s_endpgm", "s_bitcmp")):
                self.uses = set().union(*R) if R else set()
            else:
                self.defs = R[0] if R else set()
                self.uses = set().union(*R[1:]) if len(R) > 1 else set()
                if "saveexec" in mn:
                    self.defs |= {"exec"}
        self.slots = 1
        if mn == "s_nop":
            self.slots = int(ops[0], 0) + 1


def parse(text):
    insts, labels = [], {}
    insec = True
    for ln, raw in enumerate(text.split("\n"), 1):
        s = raw.split(";")[0].split("//")[0].strip()
        if not s:
            continue
        if s.startswith(".section"):
            insec = False
        if s.startswith(".text"):
            insec = True
        if s.startswith("."):
            continue
        if not insec:
            continue
        m = re.match(r"^([\w.$]+):\s*(.*)$", s)
        if m:
            labels[m.group(1)] = len(insts)
            s = m.group(2).strip()
            if not s:
                continue
        insts.append(I(s, ln))
    return insts, labels


def step(st, i, report):
    def d(key):
        return st.get(key, CAP)

    def need(key, n, why):
        if d(key) < n:
            report(i, f"{why}: {key} distance {d(key)} < {n}")

    vuses = {r for r in i.uses if r[0] in "va" and r != "vcc"}
    vdefs = {r for r in i.defs if r[0] in "va" and r != "vcc"}
    suses = {r for r in i.uses if r[0] == "s" or r == "vcc"}
    if i.mfma:
        for r in vuses:
            need(("valu", r), 2, "VALU write -> MFMA read")
        for p, n in ((4, 8), (8, 12)):
            for r in i.A | i.B:
                need(("xdl", r, p), n, "XDL write -> MFMA A/B read")
        for p, n in ((4, 6), (8, 10)):
            for r in i.C:
                if d(("xdl", r, p)) < n:
                    ident = st.get(("xdlid", r))
                    if not (ident == (tuple(sorted(i.C)), i.passes) and p == i.passes):
                        report(i, f"XDL write -> overlapping SrcC {r}")
        if i.C != i.defs:
            for p, n in ((4, 6), (8, 10)):
                for r in i.defs:
                    if d(("xdl", r, p)) < n:
                        report(i, f"XDL write -> XDL write (WAW, C not D) {r}")
        need(("valuexec",), 4, "VALU exec write -> MFMA")
    if i.valu or i.vmem or i.ds:
        for p, n in ((4, 8), (8, 12)):
            for r in vuses | vdefs:
                need(("xdl", r, p), n, "XDL write -> VALU/VMEM/DS access")
    if i.valu:
        for p, n in ((4, 3), (8, 7)):
            for r in vdefs:
                need(("xdlc", r, p), n, "XDL SrcC read -> VALU write")
        if not i.trans:
            for r in vuses:
                need(("trans", r), 1, "trans -> VALU use")
        if i.mn.startswith("v_permlane"):
            for r in vuses:
                need(("valu", r), 2, "VALU write -> permlane")
        if i.mn.startswith(("v_readfirstlane", "v_readlane")):
            for r in vuses:
                need(("valu", r), 1, "VALU write -> readlane")
        for r in suses:
            need(("vsgpr", r), 2, "VALU SGPR write -> VALU read")
        for r in vdefs:
            need(("wstore", r), 2, "wide store data WAR")
    if i.mfma:
        for r in vuses:
            need(("trans", r), 2, "trans -> MFMA")
    if (i.valu or i.vmem or i.ds or i.mfma) and not i.mn.startswith("v_dot"):
        for r in vuses | vdefs:
            need(("dot", r), 3, "DLop write -> other access")
    if i.vmem:
        for r in suses:
            need(("vsgpr", r), 5, "VALU SGPR write -> VMEM read")
        if getattr(i, "lds", False):
            need(("m0",), 1, "M0 write -> LDS DMA")
    if (i.vmem or i.ds) and vdefs:
        for r in vdefs:
            need(("wstore", r), 1, "wide store data WAR (load)")
    ns = {}
    for k, v in st.items():
        if k[0] == "xdlid":
            ns[k] = v
        elif v + i.slots < CAP:
            ns[k] = v + i.slots
    if i.mfma:
        for r in i.defs:
            ns[("xdl", r, i.passes)] = 0
            ns[("xdlid", r)] = (tuple(sorted(i.defs)), i.passes)
        for r in i.C:
            ns[("xdlc", r, i.passes)] = 0
    if i.valu:
        for r in vdefs:
            ns[("valu", r)] = 0
            if i.mn.startswith("v_dot"):
                ns[("dot", r)] = 0
            if i.trans:
                ns[("trans", r)] = 0
            else:
                ns.pop(("trans", r), None)
        for r in i.defs:
            if r[0] == "s" or r == "vcc":
                ns[("vsgpr", r)] = 0
            if r == "exec":
                ns[("valuexec",)] = 0
    if i.salu:
        for r in i.defs:
            ns.pop(("vsgpr", r), None)
        if "m0" in i.defs:
            ns[("m0",)] = 0
    if i.vmem and getattr(i, "wide_store", False):
        for r in i.sdata:
            ns[("wstore", r)] = 0
    for k in [k for k in ns if k[0] == "xdlid"]:
        if ("xdl", k[1], 4) not in ns and ("xdl", k[1], 8) not in ns:
            del ns[k]
    return ns


def merge(a, b):
    out = dict(a)
    ch = False
    for k, v in b.items():
        if k[0] == "xdlid":
            if k in out and out[k] != v:
                if out[k] != "mixed":
                    out[k] = "mixed"
                    ch = True
            elif k not in out:
                out[k] = v
                ch = True
        elif k not in out or v < out[k]:
            out[k] = v
            ch = True
    return out, ch


def check(text):
    insts, labels = parse(text)
    n = len(insts)
    states = [None] * (n + 1)
    states[0] = {}
    work = [0]
    errs = {}

    def report(i, msg):
        errs[(i.ln, msg)] = i.text

    while work:
        p = work.pop()
        if p >= n:
            continue
        i = insts[p]
        ns = step(states[p], i, report)
        succ = []
        if i.mn == "s_endpgm":
            succ = []
        elif i.mn == "s_branch":
            succ = [labels[i.ops[0]]]
        elif i.mn.startswith("s_cbranch"):
            succ = [labels[i.ops[0]], p + 1]
        else:
            succ = [p + 1]
        for s in succ:
            if states[s] is None:
                states[s] = ns
                work.append(s)
            else:
                m, ch = merge(states[s], ns)
                if ch:
                    states[s] = m
                    work.append(s)
    out = sorted(errs.items())
    return [f"line {ln}: {msg}   [{t}]" for (ln, msg), t in out]


if __name__ == "__main__":
    e = check(open(sys.argv[1]).read())
    print("\n".join(e) if e else "no hazards found")
```

```python
import sys, struct, math

NAME = "concat_heads__softmax_full_mha__ssm_conv_s5__prompt"

OPT = dict(stamps=0, spin=400000, hint=1, hint_step=16, plpad=0, aprio=0, bprio=0, force_fb=0, pace1=0, pace2=0, dynprio=1, touch=0, st4=1, tdelay=1, qsplit=0, ntx=0, ntw=0, ntb=0, ntc=0, sto=0, psleep=0, pdelay=0, qpro=2, g2s=0, pw=1, pp=1, sp1=1, itouch=0, g1prio=0, urg=4, rot=0, g2prio=0, yprio=0, dspread=1, stouch=0, htouch=1, ctouch=1)
for a in sys.argv[2:]:
    k, v = a.split("=")
    OPT[k] = int(v)

PL = 16384 + OPT["plpad"]
EPOCH = 0
F1 = 0x1000
F1S = 128
F2 = 0x2000
F3 = 0x3000
F4 = 0x4000
F0 = 0x8000
F0B = 0x10000
PV1 = 0xA0000
PV4 = 0xB0000
STAMP = 0x20000
EB = 0x48000
QKVP = 0x100000
OP = 0xA00000
HB = 0xD00000
WS_USED = 0x1300000
assert QKVP + 480 * PL <= OP and OP + 160 * PL <= HB
OOB = 0x80000000

L = []


def A(s):
    for ln in s.strip("\n").split("\n"):
        L.append(ln.strip() if not ln.strip().endswith(":") else ln.strip())


def f2u(x):
    return struct.unpack("<I", struct.pack("<f", x))[0]


def vr(a, n):
    return f"v[{a}:{a+n-1}]" if n > 1 else f"v{a}"


P_AX, P_WQKV, P_WO, P_BX, P_LRE, P_LIM, P_BRE, P_BIM, P_CRE, P_CIM, P_LDT, P_DSK, P_OUT, P_DBG = range(8, 36, 2)
P_WS = 4
S_E = 6
S_W = 40
R0, R1, R2, WS, R3 = 44, 48, 52, 56, 60
ST0 = 70
_uid = [0]


def uid(p):
    _uid[0] += 1
    return f"{p}_{_uid[0]}"


def srd(r, p, n):
    A(f"s_mov_b32 s{r}, s{p}\ns_and_b32 s{r+1}, s{p+1}, 0xffff\ns_mov_b32 s{r+2}, {n}\ns_mov_b32 s{r+3}, 0x20000")


def S(r):
    return f"s[{r}:{r+3}]"


def stamp(k):
    if OPT["stamps"] and not OPT.get("fine"):
        A(f"s_memrealtime s[{ST0+2*k}:{ST0+2*k+1}]")


def cstamp(k):
    if OPT["stamps"]:
        A(f"s_memtime s[{ST0+2*k}:{ST0+2*k+1}]")


def fst(k, cond=True):
    if OPT.get("fine") and cond:
        A(f"s_memtime s[{ST0+2*k}:{ST0+2*k+1}]")


def dump_stamps(n):
    if not OPT["stamps"]:
        return
    sk = uid("SK")
    A(f"s_waitcnt lgkmcnt(0)\ns_cmp_lg_u32 s{S_W}, {OPT.get('fw', 0)}\ns_cbranch_scc1 {sk}")
    A(f"s_lshl_b32 s64, s2, 7\ns_add_u32 s64, s64, {STAMP}\ns_mov_b64 exec, 1")
    for k in range(n):
        A(f"v_mov_b32 v120, s{ST0+2*k}\nv_mov_b32 v121, s{ST0+2*k+1}")
        A(f"buffer_store_dwordx2 v[120:121], off, {S(WS)}, s64 offset:{8*k}")
        A("s_waitcnt vmcnt(0)")
    A(f"s_mov_b64 exec, -1\n{sk}:")


def flag_store(soff, t=120, wave0=True):
    sk = uid("FS")
    if wave0:
        A(f"s_cmp_lg_u32 s{S_W}, 0\ns_cbranch_scc1 {sk}")
    A(f"v_mov_b32 v{t}, s{S_E}\nv_mov_b32 v{t+1}, s{S_E+1}\ns_mov_b64 exec, 1")
    A(f"buffer_store_dwordx2 v[{t}:{t+1}], off, {S(WS)}, s{soff} sc1")
    A("s_mov_b64 exec, -1")
    if wave0:
        A(f"{sk}:")


def poll(vaddrs, t=120, sleep=0):
    lp, dn = uid("PL"), uid("PD")
    A(f"s_mov_b32 s64, {OPT['spin']}\n{lp}:")
    for i, va in enumerate(vaddrs):
        A(f"buffer_load_dwordx2 v[{t+2*i}:{t+2*i+1}], v{va}, {S(WS)}, 0 offen sc1")
    A("s_waitcnt vmcnt(0)")
    for i, va in enumerate(vaddrs):
        if i == 0:
            A(f"v_cmp_ne_u64 vcc, s[{S_E}:{S_E+1}], v[{t}:{t+1}]")
        else:
            A(f"v_cmp_ne_u64 s[66:67], s[{S_E}:{S_E+1}], v[{t+2*i}:{t+2*i+1}]\ns_or_b64 vcc, vcc, s[66:67]")
    A(f"s_cbranch_vccz {dn}")
    if sleep:
        A(f"s_sleep {sleep}")
    A(f"s_sub_u32 s64, s64, 1\ns_cmp_lg_u32 s64, 0\ns_cbranch_scc1 {lp}\n{dn}:")


def ppoll(va, t):
    lp, dn = uid("PP"), uid("PQ")
    ld = lambda i: A(f"buffer_load_dwordx2 v[{t+2*i}:{t+2*i+1}], v{va}, {S(WS)}, 0 offen sc1")
    A(f"s_mov_b32 s64, {OPT['spin']}")
    ld(0); A("s_sleep 1"); ld(1); A("s_sleep 1"); ld(2)
    A(f"{lp}:")
    for i in range(3):
        A(f"s_waitcnt vmcnt(2)\nv_cmp_ne_u64 vcc, s[{S_E}:{S_E+1}], v[{t+2*i}:{t+2*i+1}]\ns_cbranch_vccz {dn}")
        ld(i)
    A(f"s_sub_u32 s64, s64, 1\ns_cmp_lg_u32 s64, 0\ns_cbranch_scc1 {lp}\n{dn}:")


def spoll(dst, nflags, soff, need=None):
    lp, dn = uid("SP"), uid("SD")
    A(f"s_mov_b32 s64, {OPT['spin']}\n{lp}:")
    if nflags == 1:
        A(f"s_load_dwordx2 s[{dst}:{dst+1}], s[{P_WS}:{P_WS+1}], s{soff} glc")
    else:
        for b in range(nflags // 8):
            A(f"s_load_dwordx16 s[{dst+16*b}:{dst+16*b+15}], s[{P_WS}:{P_WS+1}], s{soff} offset:{64*b} glc")
    A("s_mov_b32 s65, 0\ns_waitcnt lgkmcnt(0)")
    for i in range(nflags):
        A(f"s_cmp_eq_u64 s[{dst+2*i}:{dst+2*i+1}], s[{S_E}:{S_E+1}]\ns_addc_u32 s65, s65, s65")
    if need is None:
        A(f"s_cmp_eq_u32 s65, {(1 << nflags) - 1}")
    else:
        A(f"s_andn2_b32 s65, s{need}, s65\ns_cmp_eq_u32 s65, 0")
    A(f"s_cbranch_scc1 {dn}")
    A("s_sleep 2")
    A(f"s_sub_u32 s64, s64, 1\ns_cmp_lg_u32 s64, 0\ns_cbranch_scc1 {lp}\n{dn}:")


def bhi():
    if OPT["dynprio"]:
        A("s_setprio 3")


def blo():
    if OPT["dynprio"]:
        A("s_setprio 0")


def mod10(sd, ssrc, tmp):
    A(f"s_mul_i32 s{tmp}, s{ssrc}, 205\ns_lshr_b32 s{tmp}, s{tmp}, 11\ns_mul_i32 s{tmp}, s{tmp}, 10\ns_sub_u32 s{sd}, s{ssrc}, s{tmp}")


def dma(vaddr, rsrc, soff, aux=""):
    A(f"buffer_load_dwordx4 v{vaddr}, {S(rsrc)}, s{soff} offen {aux} lds".replace("  ", " "))


MF32 = "v_mfma_f32_32x32x16_bf16"
MF8 = "v_mfma_f32_32x32x8_bf16"
MF16 = "v_mfma_f32_16x16x32_bf16"


def prologue():
    A(f"s_cmp_ge_u32 s2, 512\ns_cbranch_scc1 L_END")
    stamp(0)
    A("s_load_dwordx16 s[8:23], s[0:1], 0\ns_load_dwordx8 s[24:31], s[0:1], 64\ns_load_dwordx4 s[32:35], s[0:1], 96\ns_load_dwordx2 s[4:5], s[0:1], 112")
    A(f"v_lshrrev_b32 v2, 6, v0\nv_and_b32 v1, 63, v0\nv_readfirstlane_b32 s{S_W}, v2")
    A("s_cmp_ge_u32 s2, 256\ns_cbranch_scc1 L_ROLE_B")


def epoch_fix():
    A(f"s_mul_i32 s{S_E}, s{S_E}, 0x9E3779B1\ns_add_u32 s{S_E}, s{S_E}, 0x7F4A7C15\ns_xor_b32 s{S_E+1}, s{S_E}, 0x5bd1e995")


def qkv():
    sRB, sCB, sKX, sKW, sMX, sMW, sT = 41, 42, 43, 64, 65, 66, 67
    vX0, vX1, vWs, vWr, vXr = 2, 3, 4, 5, 6
    ACC = 32
    FR = [64, 88]
    A(f"s_and_b32 s68, s2, 7\ns_lshr_b32 s69, s2, 3")
    A(f"s_and_b32 s{sRB}, s68, 3\ns_lshl_b32 s{sRB}, s{sRB}, 2\ns_and_b32 s{sT}, s69, 3\ns_add_u32 s{sRB}, s{sRB}, s{sT}")
    A(f"s_lshr_b32 s{sCB}, s68, 2\ns_lshl_b32 s{sCB}, s{sCB}, 3\ns_lshr_b32 s{sT}, s69, 2\ns_add_u32 s{sCB}, s{sCB}, s{sT}")
    A(f"s_cmp_eq_u32 s{sCB}, 15\ns_cselect_b32 s{sT}, 2, 0\ns_add_u32 s{sRB}, s{sRB}, s{sT}\ns_cmp_eq_u32 s{sCB}, 15\ns_cselect_b32 s{sCB}, 7, s{sCB}")
    A(f"s_mul_i32 s{sKX}, s{sRB}, 3\ns_add_u32 s{sKX}, s{sKX}, s{sCB}")
    mod10(sKX, sKX, sT)
    A(f"s_mul_i32 s{sKW}, s{sKX}, {2*122880}\ns_lshl_b32 s{sKX}, s{sKX}, 7")
    A(f"s_lshl_b32 s{sT}, s{sRB}, 7\ns_lshr_b32 s68, s{S_W}, 1\ns_lshl_b32 s68, s68, 5\ns_add_u32 s{sT}, s{sT}, s68\ns_and_b32 s68, s{S_W}, 1\ns_add_u32 s{sT}, s{sT}, s68")
    A(f"v_lshrrev_b32 v10, 3, v1\nv_lshl_add_u32 v10, v10, 1, s{sT}\nv_mul_u32_u24 v10, 1280, v10")
    A(f"v_lshrrev_b32 v11, 4, v1\nv_and_b32 v12, 7, v1\nv_xor_b32 v12, v12, v11\nv_lshl_add_u32 v{vX0}, v12, 4, v10")
    A(f"v_xor_b32 v{vX1}, 64, v{vX0}\nv_add_u32 v{vX1}, 20480, v{vX1}")
    A(f"s_lshl_b32 s68, s{S_W}, 2\nv_add_u32 v10, s68, v11\nv_mul_u32_u24 v10, 3840, v10")
    A(f"v_and_b32 v12, 15, v1\nv_lshlrev_b32 v13, 2, v11\nv_xor_b32 v12, v12, v13\nv_lshl_add_u32 v10, v12, 4, v10")
    A(f"s_lshl_b32 s68, s{sCB}, 8\nv_add_u32 v{vWs}, s68, v10")
    A(f"s_lshl_b32 s{sMX}, s{S_W}, 11\ns_lshl_b32 s{sMW}, s{S_W}, 10\ns_add_u32 s{sMW}, s{sMW}, 49152")
    A("s_waitcnt lgkmcnt(0)")
    A(f"s_load_dword s{S_E}, s[{P_WS}:{P_WS+1}], {EPOCH}")
    srd(R0, P_AX, 2621440)
    srd(R1, P_WQKV, 2457600)
    srd(WS, P_WS, WS_USED)
    A(f"s_cmp_ge_u32 s2, 240\ns_cbranch_scc1 L_QKV_IDLE")

    issued = []

    def dmaX(Sx):
        for i in range(2):
            A(f"s_add_u32 m0, s{sMX}, {(Sx % 3) * 16384 + i * 1024}\ns_nop 0")
            dma(vX0 + i, R0, sKX, 'nt' if OPT['ntx'] else '')
            issued.append(("X", Sx))
        A(f"s_add_u32 s{sKX}, s{sKX}, 128\ns_cmp_eq_u32 s{sKX}, 1280\ns_cselect_b32 s{sKX}, 0, s{sKX}")

    def dmaW(s):
        A(f"s_add_u32 m0, s{sMW}, {(s % 4) * 8192}\ns_nop 0")
        dma(vWs, R1, sKW, 'nt' if OPT['ntw'] else '')
        issued.append(("W", s))
        A(f"s_add_u32 s{sKW}, s{sKW}, 122880\ns_cmp_eq_u32 s{sKW}, 2457600\ns_cselect_b32 s{sKW}, 0, s{sKW}")

    dmaX(0); dmaW(0)
    if not OPT["qpro"]:
        dmaW(1); dmaX(1); dmaW(2); dmaW(3); dmaX(2)
    A(f"v_lshrrev_b32 v10, 5, v1\nv_bfe_u32 v11, v1, 2, 2\nv_lshl_add_u32 v12, v10, 3, v11\nv_lshlrev_b32 v12, 8, v12")
    A(f"s_and_b32 s68, s{S_W}, 3\ns_lshl_b32 s68, s68, 2")
    A(f"v_bfe_u32 v13, v1, 4, 1\nv_lshlrev_b32 v13, 1, v13\nv_bfe_u32 v14, v1, 1, 1\nv_add3_u32 v13, v13, v14, s68")
    A(f"v_lshlrev_b32 v11, 2, v11\nv_xor_b32 v13, v13, v11\nv_lshl_add_u32 v12, v13, 4, v12")
    A(f"v_and_b32 v14, 1, v1\nv_lshl_add_u32 v12, v14, 3, v12\nv_add_u32 v{vWr}, 49152, v12")
    A(f"s_lshr_b32 s68, s{S_W}, 2\ns_lshl_b32 s68, s68, 6\nv_and_b32 v11, 31, v1\nv_add_u32 v12, s68, v11\nv_lshlrev_b32 v12, 7, v12")
    A(f"v_bfe_u32 v13, v1, 1, 3\nv_xor_b32 v13, v13, v10\nv_lshl_add_u32 v{vXr}, v13, 4, v12")
    for k in range(1, 4):
        A(f"v_xor_b32 v{vXr+k}, {32*k}, v{vXr}")
    A(f"s_and_b32 s69, s{S_W}, 3\ns_lshl_b32 s69, s69, 3\nv_bfe_u32 v11, v1, 4, 1\nv_lshl_add_u32 v10, v11, 1, v10\nv_add_u32 v10, s69, v10\nv_mul_u32_u24 v10, {PL}, v10")
    A(f"v_and_b32 v11, 15, v1\nv_lshl_add_u32 v10, v11, 4, v10\ns_lshl_b32 s68, s68, 3\nv_add_u32 v10, s68, v10")

    if OPT["qpro"]:
        if OPT["qpro"] == 2:
            A("s_barrier")
        dmaW(1); dmaX(1); dmaW(2); dmaW(3); dmaX(2)

    def reads(s):
        f = FR[s & 1]
        ws, xs, b = (s % 4) * 8192, ((s >> 1) % 3) * 16384, s & 1
        for u in range(2):
            for j in range(2):
                A(f"ds_read_b64_tr_b16 {vr(f+4*u+2*j, 2)}, v{vWr} offset:{ws + (16*u+4*j)*256}")
            for nt in range(2):
                A(f"ds_read_b128 {vr(f+8+8*u+4*nt, 4)}, v{vXr+2*b+u} offset:{xs + 4096*nt}")

    def mfma1(s, i):
        if s < 0:
            return
        f = FR[s & 1]
        u, nt = i >> 1, i & 1
        c = "0" if (s == 0 and u == 0) else vr(ACC + 16 * nt, 16)
        A(f"{MF32} {vr(ACC+16*nt,16)}, {vr(f+4*u,4)}, {vr(f+8+8*u+4*nt,4)}, {c}")

    def mfmas(s):
        for i in range(4):
            mfma1(s, i)

    issued0 = list(issued)

    def qloop(early):
        issued[:] = issued0
        for s in range(20):
            last = max(i for i, t in enumerate(issued) if t in (("X", s >> 1), ("W", s)))
            A(f"s_waitcnt vmcnt({len(issued) - 1 - last})\ns_barrier")
            if s == 0:
                stamp(1)
                cstamp(10)
            def dm():
                if s >= 2 and s % 2 == 0 and s // 2 + 2 < 10:
                    dmaX(s // 2 + 2)
                if s == 1:
                    epoch_fix()
                if s == OPT["hint_step"] and OPT["hint"] == 1:
                    A(f"s_lshl_b32 s68, s2, 7\ns_lshl_b32 s69, s{S_W}, 3\ns_add_u32 s68, s68, s69\ns_add_u32 s68, s68, {F0}")
                    flag_store(68, t=120, wave0=False)
                    issued.append(("H", 0))

            mfma1(s - 1, 0)
            reads(s)
            mfma1(s - 1, 1)
            if s >= 1 and s + 3 < 20:
                dmaW(s + 3)
            mfma1(s - 1, 2)
            dm()
            mfma1(s - 1, 3)
            A("s_waitcnt lgkmcnt(0)")

    if OPT["qsplit"]:
        A(f"s_cmp_ge_u32 s{S_W}, 4\ns_cbranch_scc1 L_QKV_LATE")
        qloop(True)
        A("s_branch L_QKV_EPI\nL_QKV_LATE:")
        qloop(False)
        A("L_QKV_EPI:")
    else:
        qloop(False)
    mfmas(19)
    stamp(2)
    cstamp(11)
    if OPT.get("astop") == 2:
        A("s_endpgm")
    c = 20 ** -0.5 * math.log2(math.e)
    A(f"s_cmp_lt_u32 s{sCB}, 5\ns_cselect_b32 s68, {f2u(c)}, 1.0\ns_mov_b32 s69, s68\ns_cselect_b32 s11, 0, 1\ns_cmp_lt_u32 s{sRB}, {OPT['urg']}\ns_cselect_b32 s11, 0, s11")
    A(f"s_mul_i32 s8, s{sCB}, {32*PL}\ns_lshl_b32 s64, s{sRB}, 10\ns_add_u32 s8, s8, s64\ns_add_u32 s8, s8, {QKVP}\ns_add_u32 s9, s8, {4*PL}")
    A(f"s_mul_i32 s10, s{sCB}, {F1S}\ns_lshl_b32 s64, s{sRB}, 3\ns_add_u32 s10, s10, s64\ns_add_u32 s10, s10, {F1}")
    A(f"s_cmp_ge_u32 s{sCB}, 10\ns_cselect_b32 s64, 10, 5\ns_cselect_b32 s13, 8, 0\ns_sub_u32 s12, s{sCB}, s64\ns_add_u32 s13, s13, s{sRB}\ns_mov_b32 s14, 4\ns_cmp_lt_u32 s{sRB}, 4\ns_cselect_b32 s15, 1, 0")
    A(f"s_and_b32 s64, s{sRB}, 1\ns_add_u32 s64, s64, 16\ns_lshr_b32 s16, s{sRB}, 1\ns_cmp_lt_u32 s{sCB}, 5\ns_cselect_b32 s12, s{sCB}, s12\ns_cselect_b32 s13, s64, s13\ns_cselect_b32 s14, 2, s14\ns_cselect_b32 s15, 2, s15")
    for nt in range(2):
        for g in range(4):
            a = ACC + 16 * nt + 4 * g
            A(f"v_pk_mul_f32 {vr(a,2)}, {vr(a,2)}, s[68:69]\nv_pk_mul_f32 {vr(a+2,2)}, {vr(a+2,2)}, s[68:69]")
            d = 64 + 8 * nt + 2 * g
            A(f"v_cvt_pk_bf16_f32 v{d}, v{a}, v{a+1}\nv_cvt_pk_bf16_f32 v{d+1}, v{a+2}, v{a+3}")
            if g & 1:
                d -= 2
                A(f"s_nop 0\nv_permlane16_swap_b32 v{d}, v{d+2}\nv_permlane16_swap_b32 v{d+1}, v{d+3}")
    A("s_cmp_lg_u32 s11, 0\ns_cbranch_scc1 L_SETUP")
    qkv_stores()
    A("s_branch L_SETUP")
    A("L_QKV_IDLE:\ns_waitcnt lgkmcnt(0)")
    epoch_fix()
    if OPT["itouch"]:
        srd(R0, P_BX, 2621440); srd(R1, P_BRE, 819200); srd(R2, P_BIM, 819200)
        A(f"s_lshr_b32 s64, s2, 3\ns_and_b32 s64, s64, 1\ns_lshl_b32 s64, s64, 3\ns_add_u32 s64, s64, s{S_W}")
        A(f"s_and_b32 s65, s2, 3\ns_mul_i32 s65, s65, 655360\ns_mul_i32 s66, s64, 40960\ns_add_u32 s65, s65, s66")
        A(f"s_bfe_u32 s66, s2, 0x10002\ns_mul_i32 s66, s66, 409600\ns_mul_i32 s67, s64, 25600\ns_add_u32 s66, s66, s67")
        A("v_lshlrev_b32 v2, 7, v1\nv_min_u32 v3, 7, v1\nv_lshlrev_b32 v3, 7, v3")
        if OPT["itouch"] > 1:
            A(f"s_sleep {OPT['itouch']}")
        for i in range(5):
            A(f"buffer_load_dword v{20+i}, v2, {S(R0)}, s65 offen\ns_add_u32 s65, s65, 8192")
            if i < 4:
                for k, r in enumerate((R1, R2)):
                    A(f"buffer_load_dword v{30+2*i+k}, v{2 if i < 3 else 3}, {S(r)}, s66 offen")
                A("s_add_u32 s66, s66, 8192")
        A("s_waitcnt vmcnt(0)")
    A(f"s_sub_u32 s10, s2, 240\ns_lshl_b32 s10, s10, 3\ns_add_u32 s10, s10, {F1 + 15*F1S}\ns_mov_b32 s11, 2\ns_mov_b32 s12, 0\ns_mov_b32 s13, 0\ns_mov_b32 s14, 0\ns_mov_b32 s15, 0\ns_mov_b32 s16, 0\nv_mov_b32 v10, {OOB}")
    if OPT["hint"] == 1:
        A(f"s_lshl_b32 s68, s2, 7\ns_add_u32 s68, s68, {F0}")
        flag_store(68)


def qkv_stores():
    for nt in range(2):
        for p in range(2):
            A(f"buffer_store_dwordx4 {vr(64+8*nt+4*p,4)}, v10, {S(WS)}, s{8+p} offen offset:{256*nt} sc1")


PS = 2080
SLOT = 11 * PS
RED = 2 * SLOT
BADW = 81912


def attention():
    sH, sQB, sG, sLd, sBlk, sDst, sCnt, sDel, sPass = 41, 42, 44, 48, 43, 52, 53, 54, 55
    vK, vK1, vV, vD = 2, 3, 4, 5
    Q = [8, 14]; O = [20, 36]; SS = [52, 68]; Kf = [84, 90]; Vf = [96, 104]; P = 112
    A("L_SETUP:")
    if OPT.get("astop"):
        A("s_endpgm")
    A(f"s_and_b32 s68, s2, 7\ns_lshr_b32 s69, s2, 3\ns_and_b32 s{sQB}, s69, 7\ns_lshr_b32 s69, s69, 3\ns_lshl_b32 s{sH}, s68, 2\ns_add_u32 s{sH}, s{sH}, s69")
    A(f"s_mov_b32 s{sPass}, 0\ns_mov_b32 s51, {SLOT}\ns_mov_b32 s33, {F1S}")
    A(f"s_mul_i32 s64, s{sH}, 5\ns_add_u32 s65, s64, 4\ns_lshr_b32 s64, s64, 5\ns_lshr_b32 s65, s65, 5\ns_sub_u32 s65, s65, s64")
    A(f"s_lshl_b32 s60, s{sH}, 3\ns_add_u32 s60, s60, s{sQB}\ns_lshl_b32 s60, s60, 8\ns_add_u32 s60, s60, {PV1}")
    A(f"s_mov_b32 s63, 0xf0f0c\ns_cmp_eq_u32 s65, 0\ns_cselect_b32 s63, s63, 0xfffff")
    A(f"v_bfe_u32 v6, v1, 4, 1\nv_mul_u32_u24 v6, s65, v6\nv_add_u32 v6, s64, v6\nv_lshrrev_b32 v8, 5, v1\nv_mul_u32_u24 v9, 15, v8\nv_max_u32 v7, v6, v9")
    A(f"v_mul_u32_u24 v8, 5, v8\nv_add3_u32 v6, v6, v8, 5\nv_and_b32 v8, 15, v1\nv_lshlrev_b32 v8, 3, v8\nv_add_u32 v8, {F1}, v8")
    A(f"v_mad_u32_u24 v6, v6, s33, v8\nv_mad_u32_u24 v7, v7, s33, v8")
    A(f"v_bfe_u32 v8, v1, 2, 1\nv_mul_u32_u24 v8, s65, v8\nv_bfe_u32 v9, v1, 3, 1\nv_mul_u32_u24 v9, 5, v9\nv_add3_u32 v8, v8, v9, 5\nv_and_b32 v9, 3, v1")
    if OPT["rot"]:
        A(f"s_lshr_b32 s66, s{sQB}, 1\ns_lshl_b32 s66, s66, 2\nv_add_u32 v9, s66, v9")
    A(f"v_and_b32 v11, 1, v1\nv_mul_u32_u24 v11, s65, v11\nv_bfe_u32 v12, v1, 1, 1\ns_lshl_b32 s66, s{sQB}, 1\nv_add_u32 v12, s66, v12\nv_cmp_gt_u32 vcc, 16, v1")
    A(f"s_cmp_eq_u32 s{S_W}, 0\ns_cselect_b32 s47, {max(OPT['g2s'] - 1, 0)}, 99\ns_cselect_b32 s35, 0, 99\ns_lshl_b32 s34, s2, 7\ns_add_u32 s34, s34, {F0B}")
    A(f"v_cndmask_b32 v8, v11, v8, vcc\nv_cndmask_b32 v9, v12, v9, vcc\nv_add_u32 v8, s64, v8\nv_lshlrev_b32 v9, 3, v9\nv_add_u32 v9, {F1}, v9\nv_mad_u32_u24 v8, v8, s33, v9")
    if OPT["yprio"]:
        A(f"s_cmp_lt_u32 s{S_W}, 4\ns_cbranch_scc1 L_NOYP\ns_setprio 1\nL_NOYP:")
    for m in range(3):
        A(f"s_add_u32 s64, s{S_W}, {8*m}\ns_lshr_b32 s65, s64, 1\ns_and_b32 s64, s64, 1\ns_lshl_b32 s64, s64, 10")
        A(f"s_mul_i32 s{sLd+m}, s65, {PS}\ns_add_u32 s{sLd+m}, s{sLd+m}, s64")
        A(f"s_cmp_ge_u32 s65, 5\ns_cselect_b32 s66, 155, 0\ns_add_u32 s65, s65, s66\ns_add_u32 s65, s65, 160\ns_mul_i32 s66, s{sH}, 5\ns_add_u32 s65, s65, s66")
        A(f"s_mul_i32 s65, s65, {PL}\ns_add_u32 s65, s65, s64\ns_add_u32 s{sG+m}, s65, {QKVP}")
    A(f"v_lshlrev_b32 v{vD}, 4, v1")
    A(f"s_lshr_b32 s64, s{S_W}, 1\ns_min_u32 s64, s64, 2\ns_mul_i32 s64, s64, {SLOT}\ns_and_b32 s65, s{S_W}, 1\ns_lshl_b32 s65, s65, 10\ns_add_u32 s64, s64, s65\ns_add_u32 s64, s64, {10*PS}")
    A(f"v_add_u32 v9, s64, v{vD}")
    A(f"s_and_b32 s64, s{S_W}, 3\ns_lshl_b32 s64, s64, 6\ns_lshr_b32 s65, s{S_W}, 2\ns_lshl_b32 s66, s65, 5\ns_add_u32 s64, s64, s66")
    A(f"v_and_b32 v12, 15, v1\nv_lshl_add_u32 v13, v12, 1, s64\nv_lshlrev_b32 v124, 3, v13\nv_bfe_u32 v12, v1, 4, 1\nv_lshl_add_u32 v13, v12, 3, v124")
    A(f"v_and_b32 v12, 31, v1\nv_lshrrev_b32 v14, 5, v1\nv_xor_b32 v16, 256, v13")
    A(f"v_mul_u32_u24 v15, {2*PL}, v14\nv_add_u32 v84, v15, v13\nv_add_u32 v86, v15, v16\nv_lshlrev_b32 v15, 31, v14\nv_or_b32 v85, v15, v13\nv_or_b32 v87, v15, v16")
    A(f"s_lshl_b32 s65, s65, 7\nv_add_u32 v12, s65, v12\nv_lshlrev_b32 v12, 3, v12")
    A(f"v_mul_u32_u24 v15, {2*PS}, v14\nv_add_u32 v125, v15, v12\nv_mul_u32_u24 v15, {6*PS}, v14\nv_add_u32 v15, {4*PS}, v15\nv_add_u32 v126, v15, v12")
    A(f"v_bfe_u32 v15, v1, 4, 1\nv_lshlrev_b32 v15, 2, v15\nv_and_b32 v18, 3, v1\nv_add_u32 v15, v15, v18\nv_min_u32 v15, 5, v15\nv_add_u32 v15, 5, v15\nv_mul_u32_u24 v15, {PS}, v15")
    A(f"v_bfe_u32 v18, v1, 2, 2\nv_lshl_add_u32 v18, v14, 2, v18\nv_add_u32 v18, s65, v18\nv_lshl_add_u32 v127, v18, 3, v15")
    A(f"s_mul_i32 s36, s{sH}, {5*PL}\ns_lshl_b32 s65, s{sQB}, 11\ns_add_u32 s36, s36, s65\ns_add_u32 s36, s36, {QKVP}\ns_add_u32 s37, s36, {PL}\ns_add_u32 s38, s36, {4*PL}")

    A(f"s_mul_i32 s64, s12, 6554*32\ns_lshr_b32 s64, s64, 15\nv_lshrrev_b32 v11, 3, v1\nv_add_u32 v11, s64, v11\nv_mul_u32_u24 v12, 5, v11\nv_lshrrev_b32 v13, 5, v12")
    A(f"v_cmp_ge_u32 s[66:67], s12, v13\nv_cmp_ne_u32 vcc, s12, v13\nv_and_b32 v13, 7, v1\ns_nop 0\nv_cndmask_b32 v12, 0, 1, vcc\nv_mul_u32_u24 v12, s14, v12\nv_add_u32 v12, s13, v12")
    A(f"v_cmp_eq_u32 vcc, s16, v13\ns_cmp_eq_u32 s15, 2\ns_cselect_b64 s[64:65], vcc, -1\ns_and_b64 s[66:67], s[66:67], s[64:65]\ns_cmp_eq_u32 s15, 0\ns_cselect_b64 s[66:67], 0, s[66:67]")
    A(f"v_lshl_add_u32 v11, v11, 3, v13\nv_lshlrev_b32 v11, 8, v11\nv_lshl_add_u32 v11, v12, 3, v11\nv_add_u32 v11, {PV1}, v11\nv_mov_b32 v19, {OOB}\nv_cndmask_b32 v19, v19, v11, s[66:67]")

    def main_init():
        A(f"v_mov_b32 v{vK}, v125\nv_mov_b32 v{vK1}, v126\nv_mov_b32 v{vV}, v127")
        for i in range(32):
            A(f"v_mov_b32 v{O[0]+i}, 0")
        for i in range(4):
            A(f"v_mov_b32 v{P+4+i}, 0\nv_mov_b32 v{Vf[1]+4+i}, 0")
        A(f"s_mov_b32 s{sCnt}, 0\ns_mov_b32 s{sDel}, 0\ns_mov_b32 s{sDst}, 0")
        if OPT["rot"]:
            A(f"s_lshr_b32 s{sBlk}, s{sQB}, 1\ns_lshl_b32 s{sBlk}, s{sBlk}, 12")
        else:
            A(f"s_mov_b32 s{sBlk}, 0")

    main_init()
    for i in range(4):
        A(f"v_mov_b32 v{120+i}, 0x3f803f80")
    A("s_cmp_lg_u32 s11, 1\ns_cbranch_scc1 L_NOST")
    qkv_stores()
    A("L_NOST:\ns_waitcnt vmcnt(0)\ns_barrier")
    if OPT["sp1"]:
        A(f"s_cmp_lg_u32 s{S_W}, 0\ns_cbranch_scc1 L_NOF1B\nv_mov_b32 v16, s{S_E}\nv_mov_b32 v17, s{S_E+1}")
        A(f"buffer_store_dwordx2 v[16:17], v19, {S(WS)}, 0 offen sc1\nL_NOF1B:")
    flag_store(10, t=16)
    stamp(3)
    A(f"ds_write_b128 v9, v[120:123]\nv_mov_b32 v9, {BADW}\nv_mov_b32 v10, 0\nds_write_b32 v9, v10")
    sk = uid("AP")
    if OPT["hint"] == 3:
        A(f"s_lshl_b32 s68, s2, 7\ns_add_u32 s68, s68, {F0}")
        flag_store(68, t=16)
    A(f"s_waitcnt lgkmcnt(0)\ns_cmp_lg_u32 s{S_W}, {OPT['pw']}\ns_cbranch_scc1 {sk}")
    if OPT["sp1"]:
        lp, dn = uid("S1"), uid("S2")
        A(f"s_mov_b32 s64, {OPT['spin']}\n{lp}:")
        A(f"s_load_dwordx16 s[8:23], s[{P_WS}:{P_WS+1}], s60 glc\ns_load_dwordx16 s[72:87], s[{P_WS}:{P_WS+1}], s60 offset:64 glc\ns_load_dwordx8 s[24:31], s[{P_WS}:{P_WS+1}], s60 offset:128 glc")
        A("s_mov_b32 s65, 0\ns_waitcnt lgkmcnt(0)")
        for r in list(range(8, 24, 2)) + list(range(72, 88, 2)) + list(range(24, 32, 2)):
            A(f"s_cmp_eq_u64 s[{r}:{r+1}], s[{S_E}:{S_E+1}]\ns_addc_u32 s65, s65, s65")
        A(f"s_andn2_b32 s65, s63, s65\ns_cmp_eq_u32 s65, 0\ns_cbranch_scc1 {dn}")
        if OPT["psleep"]:
            A(f"s_sleep {OPT['psleep']}")
        A(f"s_sub_u32 s64, s64, 1\ns_cmp_lg_u32 s64, 0\ns_cbranch_scc1 {lp}\n{dn}:")
    elif OPT["pp"]:
        ppoll(8, 88)
    else:
        poll([8], t=120, sleep=OPT["psleep"])
    A(f"{sk}:\ns_barrier")
    stamp(4)

    def dma_one(m):
        if m == 2:
            sk2 = uid("D3")
            A(f"s_cmp_ge_u32 s{S_W}, 4\ns_cbranch_scc1 {sk2}")
        A(f"s_add_u32 m0, s{sDst}, s{sLd+m}\ns_add_u32 s68, s{sG+m}, s{sBlk}")
        dma(vD, WS, 68, "sc1")
        if m == 2:
            A(f"{sk2}:")
            A(f"s_add_u32 s{sBlk}, s{sBlk}, 2048\ns_and_b32 s{sBlk}, s{sBlk}, 16383")
            A(f"s_add_u32 s{sDst}, s{sDst}, {SLOT}\ns_cmp_eq_u32 s{sDst}, {3*SLOT}\ns_cselect_b32 s{sDst}, 0, s{sDst}")

    def dma_stage():
        for m in range(3):
            dma_one(m)

    for x in range(2):
        A(f"buffer_load_dwordx2 {vr(Q[x],2)}, v{84+2*x}, {S(WS)}, s36 offen sc1")
        A(f"buffer_load_dwordx2 {vr(Q[x]+2,2)}, v{84+2*x}, {S(WS)}, s37 offen sc1")
        A(f"buffer_load_dwordx2 {vr(Q[x]+4,2)}, v{85+2*x}, {S(WS)}, s38 offen sc1")
    A("L_ATT_MAIN:")
    dma_stage()
    if OPT["hint"] == 2:
        A(f"s_lshl_b32 s68, s2, 7\ns_add_u32 s68, s68, {F0}")
        flag_store(68)
    A("s_waitcnt vmcnt(0)\ns_barrier")
    stamp(5)
    cstamp(8)
    dma_stage()
    if OPT["hint"] == 4:
        A(f"s_lshl_b32 s68, s2, 7\ns_add_u32 s68, s68, {F0}")
        flag_store(68)
    nf = uid("NF")
    A(f"s_cmp_lg_u32 s35, 0\ns_cbranch_scc1 {nf}")
    A(f"buffer_load_dwordx2 v[120:121], v6, {S(WS)}, 0 offen sc1\nbuffer_load_dwordx2 v[122:123], v7, {S(WS)}, 0 offen sc1\n{nf}:")

    def kreads(kl, off):
        A(f"ds_read_b64 {vr(kl,2)}, v{vK} offset:{off}\nds_read_b64 {vr(kl+2,2)}, v{vK} offset:{off+PS}\nds_read_b64 {vr(kl+4,2)}, v{vK1} offset:{off}")

    def vreads(vl, off):
        for j in range(4):
            A(f"ds_read_b64_tr_b16 {vr(vl+2*j,2)}, v{vV} offset:{off+64*j}")

    kreads(Kf[0], 0)
    vreads(Vf[0], 0)
    A("s_waitcnt lgkmcnt(4)")
    A(f"{MF32} {vr(SS[0],16)}, {vr(Kf[0],4)}, {vr(Q[0],4)}, 0\n{MF8} {vr(SS[0],16)}, {vr(Kf[0]+4,2)}, {vr(Q[0]+4,2)}, {vr(SS[0],16)}")
    A("s_nop 7\ns_nop 2")
    A(".p2align 6\nL_ATT_LOOP:")

    def prof():
        if OPT.get("clkprof"):
            A(f"s_memtime s[60:61]\ns_memrealtime s[62:63]\ns_mov_b32 m0, s{sCnt}\ns_waitcnt lgkmcnt(0)\nv_writelane_b32 v0, s60, m0\ns_add_u32 m0, m0, 16\nv_writelane_b32 v0, s62, m0")
    prof()

    def unit(x, kt):
        s = SS[x]; sn = SS[1 - x]
        nk = kt if x == 0 else kt + 1
        kf = Kf[nk & 1]; qn = Q[1 - x]
        pk = kt - 1 if x == 0 else kt
        vprev = Vf[pk & 1]; v = Vf[kt & 1]
        e = lambda i: A(f"v_exp_f32 v{s+i}, v{s+i}")
        c = lambda i: A(f"v_cvt_pk_bf16_f32 v{P+i}, v{s+2*i}, v{s+2*i+1}")
        if x == 1:
            A("s_waitcnt lgkmcnt(0)")
        A(f"{MF32} {vr(sn,16)}, {vr(kf,4)}, {vr(qn,4)}, 0")
        e(0); e(1); e(2); e(3)
        A(f"{MF8} {vr(sn,16)}, {vr(kf+4,2)}, {vr(qn+4,2)}, {vr(sn,16)}")
        c(0); c(1); e(4); e(5); e(6); e(7)
        A(f"{MF32} {vr(O[1-x],16)}, {vr(vprev+4,4)}, {vr(P+4,4)}, {vr(O[1-x],16)}")
        if x == 0:
            if kt == 3:
                A(f"s_cmp_eq_u32 s{sDel}, {2*SLOT}\ns_cselect_b32 s68, {-2*SLOT & 0xffffffff}, s51\ns_add_u32 s{sDel}, s{sDel}, s68")
                A(f"v_add_u32 v{vK}, s68, v{vK}\nv_add_u32 v{vK1}, s68, v{vK1}\nv_add_u32 v{vV}, s68, v{vV}")
                A("s_waitcnt vmcnt(0)")
                fc = uid("FC")
                A(f"s_cmp_lg_u32 s{sCnt}, s35\ns_cbranch_scc1 {fc}")
                A(f"v_cmp_ne_u64 vcc, s[{S_E}:{S_E+1}], v[120:121]\nv_cmp_ne_u64 s[66:67], s[{S_E}:{S_E+1}], v[122:123]\ns_or_b64 vcc, vcc, s[66:67]\ns_cbranch_vccz {fc}")
                poll([6, 7], t=120)
                A(f"{fc}:\ns_barrier")
                kreads(Kf[0], 0)
                if not OPT["dspread"]:
                    sk3 = uid("ND")
                    A(f"s_cmp_ge_u32 s{sCnt}, 6\ns_cbranch_scc1 {sk3}")
                    dma_stage()
                    A(f"{sk3}:")
                if OPT["g2s"] < 8:
                    sk4 = uid("H2")
                    A(f"s_cmp_lg_u32 s{sCnt}, s47\ns_cbranch_scc1 {sk4}")
                    flag_store(34, t=122, wave0=False)
                    A(f"{sk4}:")
            else:
                kreads(Kf[(kt + 1) & 1], 256 * (kt + 1))
        else:
            vreads(Vf[(kt + 1) & 1], 256 * ((kt + 1) & 3))
        if OPT["dspread"]:
            site = {(1, 3): (0, 0, 5), (0, 0): (1, 1, 6), (1, 0): (2, 1, 6)}.get((x, kt))
            if site:
                m, lo, hi = site
                sk3 = uid("ND")
                if lo:
                    A(f"s_sub_u32 s68, s{sCnt}, 1\ns_cmp_ge_u32 s68, 6\ns_cbranch_scc1 {sk3}")
                else:
                    A(f"s_cmp_ge_u32 s{sCnt}, 6\ns_cbranch_scc1 {sk3}")
                dma_one(m)
                A(f"{sk3}:")
        c(2); c(3); e(8); e(9); e(10); e(11)
        if x == 0:
            A("s_waitcnt lgkmcnt(3)")
        A(f"{MF32} {vr(O[x],16)}, {vr(v,4)}, {vr(P,4)}, {vr(O[x],16)}")
        c(4); c(5); e(12); e(13); e(14); e(15); c(6); c(7)

    for kt in range(4):
        unit(0, kt)
        unit(1, kt)
    A(f"s_add_u32 s{sCnt}, s{sCnt}, 1\ns_cmp_lt_u32 s{sCnt}, 8\ns_cbranch_scc1 L_ATT_LOOP")
    A(f"{MF32} {vr(O[1],16)}, {vr(Vf[1]+4,4)}, {vr(P+4,4)}, {vr(O[1],16)}")
    stamp(6)
    cstamp(9)
    if OPT["g2s"] >= 8:
        flag_store(34, t=122)
    if OPT.get("clkprof"):
        prof()
        A(f"s_lshl_b32 s64, s2, 9\ns_add_u32 s64, s64, {0x80000}\nv_lshlrev_b32 v6, 2, v1\ns_cmp_lg_u32 s{S_W}, 0\ns_cbranch_scc1 L_NOPROF\nbuffer_store_dword v0, v6, {S(WS)}, s64 offen\nL_NOPROF:")
    A(f"s_lshl_b32 s64, s{S_W}, 12\ns_add_u32 s64, s64, {RED}")
    assert RED + 8 * 4096 <= BADW
    A(f"s_xor_b32 s65, s{S_W}, 4\ns_lshl_b32 s65, s65, 12\ns_add_u32 s65, s65, {RED}")
    A(f"v_add_u32 v6, s64, v{vD}\nv_add_u32 v7, s65, v{vD}")
    A(f"s_mul_i32 s64, s{sH}, {5*PL}\ns_lshl_b32 s65, s{sQB}, 11\ns_add_u32 s64, s64, s65\ns_add_u32 s64, s64, {OP}\ns_add_u32 s65, s64, {2*PL}\ns_add_u32 s66, s64, {4*PL}")
    A(f"v_lshrrev_b32 v120, 5, v1\nv_bfe_u32 v121, v1, 4, 1\nv_lshl_add_u32 v121, v121, 1, v120\nv_mul_u32_u24 v121, {PL}, v121\nv_add_u32 v121, v121, v124")
    A(f"v_cmp_gt_u32 vcc, 16, v1\nv_mov_b32 v120, {OOB}\ns_nop 0\nv_cndmask_b32 v120, v120, v124, vcc")
    A("s_waitcnt lgkmcnt(0)\ns_nop 1")
    for g in range(4):
        A(f"ds_write_b128 v6, {vr(O[1]+4*g,4)} offset:{1024*g}")
    A("s_waitcnt lgkmcnt(0)\ns_barrier")
    for g in range(4):
        A(f"ds_read_b128 {vr(52+4*g,4)}, v7 offset:{1024*g}")
    A("s_waitcnt lgkmcnt(0)")
    o = O[0]
    A(f"v_add_f32 v{o+12}, v{o+12}, v{52+12}")
    for i in range(0, 12, 2):
        A(f"v_pk_add_f32 {vr(o+i,2)}, {vr(o+i,2)}, {vr(52+i,2)}")
    A(f"v_rcp_f32 v68, v{o+12}\nv_mov_b32 v70, 0\nv_mov_b32 v71, 0\nv_mov_b32 v69, v68")
    for i in range(0, 12, 2):
        A(f"v_pk_fma_f32 v[70:71], {vr(o+i,2)}, 0, v[70:71] op_sel_hi:[1,0,1]")
    for g in range(3):
        a = o + 4 * g
        A(f"v_pk_mul_f32 {vr(a,2)}, {vr(a,2)}, v[68:69]\nv_pk_mul_f32 {vr(a+2,2)}, {vr(a+2,2)}, v[68:69]")
        A(f"v_cvt_pk_bf16_f32 v{72+2*g}, v{a}, v{a+1}\nv_cvt_pk_bf16_f32 v{73+2*g}, v{a+2}, v{a+3}")
        if g == 1:
            A(f"s_nop 0\nv_permlane16_swap_b32 v72, v74\nv_permlane16_swap_b32 v73, v75")
            A(f"buffer_store_dwordx4 v[72:75], v121, {S(WS)}, s64 offen sc1")
        if g == 2:
            A(f"v_mov_b32 v78, v76\nv_mov_b32 v79, v77\ns_nop 0\nv_permlane16_swap_b32 v76, v78\nv_permlane16_swap_b32 v77, v79")
            A(f"buffer_store_dwordx4 v[76:79], v120, {S(WS)}, s66 offen sc1")
    lo, hi = f2u(2.0 ** -60), f2u(2.0 ** 60)
    if OPT["force_fb"]:
        hi = f2u(2.0 ** -59)
    A(f"v_cmp_u_f32 vcc, v70, v71\nv_mov_b32 v80, {lo}\nv_mov_b32 v81, {hi}")
    A(f"v_cmp_ngt_f32 s[66:67], v{o+12}, v80\ns_or_b64 vcc, vcc, s[66:67]\nv_cmp_nlt_f32 s[66:67], v{o+12}, v81\ns_or_b64 vcc, vcc, s[66:67]")
    nb = uid("NB")
    A(f"v_mov_b32 v80, {BADW}\ns_cbranch_vccz {nb}\nv_mov_b32 v81, 1\nds_write_b32 v80, v81\n{nb}:")
    A(f"s_lshl_b32 s68, s{sQB}, 13\ns_lshl_b32 s69, s{sH}, 3\ns_add_u32 s68, s68, s69\ns_add_u32 s68, s68, {PV4}\nv_lshlrev_b32 v82, 8, v1\nv_mov_b32 v84, s{S_E}\nv_mov_b32 v85, s{S_E+1}")
    A("s_waitcnt vmcnt(0) lgkmcnt(0)\ns_barrier")
    A(f"s_cmp_lg_u32 s{sPass}, 0\ns_cbranch_scc1 L_ATT_PUB")
    A("ds_read_b32 v81, v80\ns_waitcnt lgkmcnt(0)\nv_readfirstlane_b32 s64, v81\ns_cmp_lg_u32 s64, 0\ns_cbranch_scc1 L_ATT_FB")
    A("L_ATT_PUB:")
    A(f"s_cmp_lg_u32 s{S_W}, 0\ns_cbranch_scc1 L_A_DONE\ns_mov_b32 exec_hi, 0\nbuffer_store_dwordx2 v[84:85], v82, {S(WS)}, s68 offen sc1\ns_mov_b64 exec, -1")
    stamp(7)
    A("L_A_DONE:")
    dump_stamps(12)
    A("s_endpgm")

    A("L_ATT_FB:")
    A(f"s_mov_b32 s{sPass}, 1\ns_mov_b32 s{sCnt}, 0\ns_mov_b32 s{sBlk}, 0")
    A(f"v_mov_b32 v20, 0xff800000\nv_mov_b32 v21, 0xff800000")
    A(f"v_mov_b32 v{vK}, v125\nv_mov_b32 v{vK1}, v126")
    A("L_FB_LOOP:")
    A(f"s_mov_b32 s{sDst}, 0\ns_barrier")
    dma_stage()
    A("s_waitcnt vmcnt(0)\ns_barrier")
    for kt in range(4):
        kreads(Kf[0], 256 * kt)
        A("s_waitcnt lgkmcnt(0)")
        for x in range(2):
            A(f"{MF32} {vr(SS[x],16)}, {vr(Kf[0],4)}, {vr(Q[x],4)}, 0\n{MF8} {vr(SS[x],16)}, {vr(Kf[0]+4,2)}, {vr(Q[x]+4,2)}, {vr(SS[x],16)}")
        A("s_nop 15")
        for x in range(2):
            for i in range(0, 16, 2):
                A(f"v_max3_f32 v{20+x}, v{SS[x]+i}, v{SS[x]+i+1}, v{20+x}")
    A(f"s_add_u32 s{sCnt}, s{sCnt}, 1\ns_cmp_lt_u32 s{sCnt}, 8\ns_cbranch_scc1 L_FB_LOOP")
    for x in range(2):
        A(f"v_mov_b32 v22, v{20+x}\ns_nop 1\nv_permlane32_swap_b32 v{20+x}, v22\nv_max_f32 v{20+x}, v{20+x}, v22")
    A(f"s_barrier\nds_write_b64 v6, v[20:21]\ns_waitcnt lgkmcnt(0)\ns_barrier\nds_read_b64 v[22:23], v7\ns_waitcnt lgkmcnt(0)")
    A("v_max_f32 v20, v20, v23\nv_max_f32 v21, v21, v22")
    A("v_cmp_le_u32 vcc, 32, v1")
    for x in range(2):
        A(f"v_sub_f32 v24, 0, v{20+x}\nv_and_b32 v25, 0xffff0000, v24\nv_sub_f32 v24, v24, v25\nv_and_b32 v26, 0xffff0000, v24\nv_sub_f32 v24, v24, v26")
        A(f"v_lshrrev_b32 v25, 16, v25\nv_or_b32 v25, v25, v26\nv_lshrrev_b32 v24, 16, v24")
        A(f"v_cndmask_b32 v{Q[x]+4}, v{Q[x]+4}, v25, vcc\nv_cndmask_b32 v{Q[x]+5}, v{Q[x]+5}, v24, vcc")
    A(f"s_lshr_b32 s64, s{S_W}, 1\ns_min_u32 s64, s64, 2\ns_mul_i32 s64, s64, {SLOT}\ns_and_b32 s65, s{S_W}, 1\ns_lshl_b32 s65, s65, 10\ns_add_u32 s64, s64, s65\ns_add_u32 s64, s64, {10*PS}")
    A(f"v_add_u32 v24, s64, v{vD}")
    for i in range(4):
        A(f"v_mov_b32 v{120+i}, 0x3f803f80")
    A("s_barrier\nds_write_b128 v24, v[120:123]\ns_waitcnt lgkmcnt(0)")
    main_init()
    A("s_mov_b32 s35, 99\ns_branch L_ATT_MAIN")


def cmul(d, a, b, t):
    A(f"v_pk_mul_f32 {vr(t,2)}, {vr(a,2)}, {vr(b,2)} op_sel:[0,0] op_sel_hi:[1,0]")
    A(f"v_pk_fma_f32 {vr(d,2)}, {vr(a,2)}, {vr(b,2)}, {vr(t,2)} op_sel:[1,1,0] op_sel_hi:[0,1,1] neg_lo:[0,1,0]")


def cfma(d, a, b, c, t):
    A(f"v_pk_fma_f32 {vr(t,2)}, {vr(a,2)}, {vr(b,2)}, {vr(c,2)} op_sel:[0,0,0] op_sel_hi:[1,0,1]")
    A(f"v_pk_fma_f32 {vr(d,2)}, {vr(a,2)}, {vr(b,2)}, {vr(t,2)} op_sel:[1,1,0] op_sel_hi:[0,1,1] neg_lo:[0,1,0]")


def gather4(src, dst):
    for c in range(2):
        A(f"v_mov_b32 v{dst+c}, v{src+c}\nv_mov_b32 v{dst+2+c}, v{src+c}")
    A("s_nop 0")
    for c in range(2):
        A(f"v_permlane16_swap_b32 v{dst+c}, v{dst+2+c}")
    for c in range(4):
        A(f"v_mov_b32 v{dst+4+c}, v{dst+c}")
    for c in range(4):
        A(f"v_permlane32_swap_b32 v{dst+c}, v{dst+4+c}")


def role_b():
    sTC, sNB, sK = 41, 42, 43
    A("L_ROLE_B:")
    if OPT.get("nob"):
        A("s_endpgm")
    if OPT["bprio"]:
        A(f"s_setprio {OPT['bprio']}")
    bhi()
    A(f"s_and_b32 s68, s2, 7\ns_lshr_b32 s69, s2, 3\ns_and_b32 s69, s69, 31")
    A(f"s_and_b32 s{sTC}, s68, 3\ns_lshl_b32 s{sTC}, s{sTC}, 3\ns_and_b32 s64, s69, 7\ns_add_u32 s{sTC}, s{sTC}, s64")
    A(f"s_lshr_b32 s{sNB}, s68, 2\ns_lshl_b32 s{sNB}, s{sNB}, 2\ns_lshr_b32 s64, s69, 3\ns_add_u32 s{sNB}, s{sNB}, s64")
    A(f"s_mul_i32 s37, s{sNB}, 3\ns_add_u32 s37, s37, s{sTC}")
    mod10(37, 37, 64)
    A("s_waitcnt lgkmcnt(0)")
    A(f"s_load_dword s{S_E}, s[{P_WS}:{P_WS+1}], {EPOCH}")
    srd(WS, P_WS, WS_USED)
    MU, CF, MU16, PW, LAM, LAM8 = 2, 4, 6, 8, 10, 12
    A(f"s_min_u32 s36, s{S_W}, 4\ns_lshl_b32 s36, s36, 4\ns_mul_i32 s64, s{sNB}, 80\ns_add_u32 s64, s64, s36")
    A(f"v_and_b32 v20, 15, v1\nv_add_u32 v20, s64, v20\nv_lshlrev_b32 v21, 1, v20")
    srd(R0, P_LRE, 1280); srd(R1, P_LIM, 1280); srd(R2, P_LDT, 1280)
    A(f"buffer_load_ushort v22, v21, {S(R0)}, 0 offen\nbuffer_load_ushort v23, v21, {S(R1)}, 0 offen\nbuffer_load_ushort v24, v21, {S(R2)}, 0 offen")
    A("s_waitcnt vmcnt(0) lgkmcnt(0)")
    epoch_fix()
    LOG2E = f2u(math.log2(math.e))
    A("v_lshlrev_b32 v22, 16, v22\nv_lshlrev_b32 v23, 16, v23\nv_lshlrev_b32 v24, 16, v24")
    A(f"v_mul_f32 v24, {LOG2E}, v24\nv_exp_f32 v24, v24\ns_nop 0\nv_cvt_pk_bf16_f32 v24, v24, v24\nv_lshlrev_b32 v24, 16, v24")
    A(f"v_mul_f32 v25, v24, v22\nv_mul_f32 v26, v24, v23\nv_mul_f32 v25, {LOG2E}, v25\nv_exp_f32 v25, v25")
    A(f"v_mul_f32 v26, 0.15915494, v26\nv_fract_f32 v26, v26\nv_cos_f32 v27, v26\nv_sin_f32 v28, v26\ns_nop 0")
    A(f"v_mul_f32 v{MU}, v25, v27\nv_mul_f32 v28, v25, v28\nv_sub_f32 v{MU+1}, 0, v28")
    A(f"v_add_f32 v27, -1.0, v{MU}")
    A("v_mul_f32 v25, v22, v22\nv_fmac_f32 v25, v23, v23\nv_rcp_f32 v25, v25")
    A("v_mul_f32 v26, v27, v22\nv_fmac_f32 v26, v28, v23\nv_mul_f32 v29, v28, v22\nv_fma_f32 v29, -v27, v23, v29")
    A(f"v_add_f32 v25, v25, v25\nv_mul_f32 v{CF}, v26, v25\nv_mul_f32 v29, v29, v25\nv_sub_f32 v{CF+1}, 0, v29")
    cmul(MU16, MU, MU, 22)
    for _ in range(3):
        cmul(MU16, MU16, MU16, 22)
    cmul(24, MU16, MU16, 22)
    cmul(26, 24, MU16, 22)
    cmul(LAM, 24, 24, 22)
    cmul(LAM8, LAM, LAM, 22)
    cmul(LAM8, LAM8, LAM8, 22)
    cmul(LAM8, LAM8, LAM8, 22)
    A("v_mov_b32 v16, v20\nv_lshrrev_b32 v28, 4, v1")
    A(f"v_cmp_eq_u32 s[96:97], 1, v28\nv_cmp_eq_u32 s[98:99], 2, v28\nv_cmp_eq_u32 s[100:101], 3, v28")
    A(f"v_mov_b32 v{PW}, 1.0\nv_mov_b32 v{PW+1}, 0")
    for src, m in ((MU16, 96), (24, 98), (26, 100)):
        for c in range(2):
            A(f"v_cndmask_b32 v{PW+c}, v{PW+c}, v{src+c}, s[{m}:{m+1}]")
    vS0, vRA, vRB = 14, 18, 22
    srd(R0, P_BX, 2621440); srd(R1, P_BRE, 819200); srd(R2, P_BIM, 819200)
    hoist(sTC, sNB)

    def stouch(ptr, soff, nrows, lines):
        for r in range(nrows):
            for ln in lines:
                A(f"s_load_dword s3, s[{ptr}:{ptr+1}], s{soff} offset:{r*1280 + ln}")

    if OPT["stouch"]:
        if OPT["tdelay"]:
            A(f"s_load_dword s3, s[{P_DSK}:{P_DSK+1}], 0\ns_waitcnt lgkmcnt(0)")
        A(f"s_and_b32 s65, s{sNB}, 3\ns_lshl_b32 s65, s65, 4\ns_lshl_b32 s66, s{sTC}, 6\ns_add_u32 s65, s65, s66\ns_lshl_b32 s66, s{S_W}, 1\ns_add_u32 s65, s65, s66\ns_mul_i32 s65, s65, 1280")
        stouch(P_BX, 65, 1, range(0, 1280, 128))
        A("s_add_u32 s65, s65, 1280\ns_waitcnt lgkmcnt(0)")
        stouch(P_BX, 65, 1, range(0, 1280, 128))
        A(f"s_and_b32 s66, s{sTC}, 7\ns_mul_i32 s67, s66, 10\ns_mul_i32 s68, s{sNB}, 80\ns_add_u32 s67, s67, s68\ns_mul_i32 s67, s67, 1280\ns_mul_i32 s68, s{S_W}, 1664\ns_add_u32 s38, s67, s68\ns_min_u32 s38, s38, {819200 - 13*128}\ns_mov_b32 s39, s67")
        for p in (P_BRE, P_BIM):
            A("s_waitcnt lgkmcnt(0)")
            for i in range(13):
                A(f"s_load_dword s3, s[{p}:{p+1}], s38 offset:{128*i}")
        A("s_waitcnt lgkmcnt(0)")
    A(f"s_lshl_b32 s{sK}, s37, 7")
    A("v_lshrrev_b32 v30, 4, v1\nv_and_b32 v31, 7, v1\nv_xor_b32 v31, v31, v30\nv_lshlrev_b32 v31, 4, v31")
    A(f"v_and_b32 v30, 31, v1\nv_lshlrev_b32 v30, 7, v30\nv_lshrrev_b32 v17, 5, v1\nv_bfe_u32 v29, v1, 1, 3\nv_xor_b32 v29, v17, v29\nv_lshl_add_u32 v{vRA}, v29, 4, v30")

    def touch2():
        if not OPT["ctouch"]:
            return
        t1, t2 = uid("U1"), uid("U2")
        A(f"s_and_b32 s66, s{sTC}, 7\ns_mul_i32 s39, s66, 10\ns_mul_i32 s68, s{sNB}, 80\ns_add_u32 s39, s39, s68\ns_mul_i32 s39, s39, 1280")
        A(f"s_cmp_eq_u32 s{S_W}, 7\ns_cbranch_scc1 {t1}")
        A(f"s_cmp_eq_u32 s{S_W}, 4\ns_cselect_b32 s{R1}, s{P_CRE}, s{P_CIM}\ns_cselect_b32 s{R1+1}, s{P_CRE+1}, s{P_CIM+1}\ns_and_b32 s{R1+1}, s{R1+1}, 0xffff")
        A(f"v_lshlrev_b32 v66, 7, v1\nv_min_u32 v67, 35, v1\nv_lshlrev_b32 v67, 7, v67\nv_add_u32 v67, 8192, v67")
        A(f"buffer_load_dword v64, v66, {S(R1)}, s39 offen\nbuffer_load_dword v65, v67, {S(R1)}, s39 offen\ns_branch {t2}\n{t1}:")
        srd(R1, P_WO, 819200)
        A(f"s_and_b32 s66, s{sTC}, 7\ns_mul_i32 s66, s66, {80*1280}\ns_mul_i32 s67, s{sNB}, 160\ns_add_u32 s66, s66, s67")
        A(f"v_lshrrev_b32 v66, 1, v1\nv_mul_u32_u24 v66, 1280, v66\nv_and_b32 v67, 1, v1\nv_mul_u32_u24 v67, 156, v67\nv_add_u32 v66, v66, v67")
        A(f"buffer_load_dword v64, v66, {S(R1)}, s66 offen\ns_add_u32 s66, s66, {32*1280}\nbuffer_load_dword v65, v66, {S(R1)}, s66 offen")
        A(f"s_add_u32 s66, s66, {16*1280}\nbuffer_load_dword v67, v66, {S(R1)}, s66 offen\n{t2}:")

    def advK():
        A(f"s_add_u32 s{sK}, s{sK}, 128\ns_cmp_eq_u32 s{sK}, 1280\ns_cselect_b32 s{sK}, 0, s{sK}")

    ACC, BF, AF = 32, 64, 80
    SH = 12288
    A(f"s_cmp_ge_u32 s{S_W}, 4\ns_cbranch_scc1 L_G1_AUX")
    A(f"v_lshrrev_b32 v30, 3, v1\nv_add_u32 v30, s64, v30\nv_mul_u32_u24 v30, 1280, v30\nv_add_u32 v{vS0}, v30, v31")
    A(f"v_xor_b32 v{vS0+1}, 64, v{vS0}\nv_add_u32 v{vS0+1}, 10240, v{vS0+1}")
    A(f"s_lshl_b32 s65, s{S_W}, 13\ns_add_u32 s65, s65, {3*SH}")
    for u in range(1, 4):
        A(f"v_xor_b32 v{vRA+u}, {32*u}, v{vRA}")
    for u in range(4):
        A(f"v_add_u32 v{vRB+u}, s65, v{vRA+u}")
    if OPT["hint"]:
        sk = uid("HP")
        A(f"s_cmp_lg_u32 s{S_W}, 0\ns_cbranch_scc1 {sk}")
        A(f"s_sub_u32 s66, s2, 256\ns_lshl_b32 s66, s66, 7\ns_add_u32 s66, s66, {F0}")
        A("s_mov_b32 s67, s65")
        spoll(8, 1, 66)
        A("s_mov_b32 s65, s67")
        A(f"{sk}:\ns_waitcnt vmcnt(0)\ns_barrier")
    else:
        A("s_waitcnt vmcnt(0)")
    stamp(1)
    if not OPT["g1prio"]:
        blo()

    def dmaB(Sx):
        for q in range(4):
            A(f"s_add_u32 m0, s65, {(Sx % 2) * 4096 + q * 1024}\ns_nop 0")
            dma(vS0 + (q & 1), R1 if q < 2 else R2, sK, 'nt' if OPT['ntb'] else '')
        advK()

    def g1_mm(Sx, u, tts=(0, 1)):
        for tt in tts:
            c = "0" if (Sx == 0 and u == 0) else vr(ACC + 16 * tt, 16)
            A(f"{MF32} {vr(ACC+16*tt,16)}, {vr(AF+8*u+4*tt,4)}, {vr(BF+4*u,4)}, {c}")

    dmaB(0); dmaB(1)
    for Sx in range(10):
        fst(Sx, OPT.get('fm') == 1)
        A(f"s_waitcnt vmcnt({4 if Sx < 9 else 0})")
        fst(Sx, OPT.get('fm') == 2)
        for u in range(3):
            A(f"ds_read_b128 {vr(BF+4*u,4)}, v{vRB+u} offset:{(Sx % 2) * 4096}")
        A("s_barrier")
        fst(Sx, OPT.get('fm') == 0)
        if Sx:
            g1_mm(Sx - 1, 3, (0,))
        for u in range(3):
            for tt in range(2):
                A(f"ds_read_b128 {vr(AF+8*u+4*tt,4)}, v{vRA+u} offset:{(Sx % 3) * SH + 4096*tt}")
        if Sx:
            g1_mm(Sx - 1, 3, (1,))
        A(f"ds_read_b128 {vr(BF+12,4)}, v{vRB+3} offset:{(Sx % 2) * 4096}")
        for tt in range(2):
            A(f"ds_read_b128 {vr(AF+24+4*tt,4)}, v{vRA+3} offset:{(Sx % 3) * SH + 4096*tt}")
        A("s_waitcnt lgkmcnt(7)")
        g1_mm(Sx, 0)
        A("s_waitcnt lgkmcnt(5)")
        g1_mm(Sx, 1, (0,))
        g1_mm(Sx, 1, (1,))
        A("s_waitcnt lgkmcnt(3)")
        g1_mm(Sx, 2)
        A("s_waitcnt lgkmcnt(0)")
        if Sx + 2 < 10:
            dmaB(Sx + 2)
    g1_mm(9, 3)
    A("s_barrier")
    A("s_branch L_SCAN")

    A("L_G1_AUX:")
    A(f"s_cmp_eq_u32 s{S_W}, 4\ns_cbranch_scc1 L_G1_LD\ns_cmp_eq_u32 s{S_W}, 7\ns_cbranch_scc1 L_G1_LD")
    A(f"v_lshrrev_b32 v30, 3, v1\nv_add_u32 v30, s64, v30\nv_mul_u32_u24 v30, 1280, v30\nv_add_u32 v{vS0}, v30, v31")
    A(f"v_xor_b32 v{vS0+1}, 64, v{vS0}\nv_add_u32 v{vS0+1}, 10240, v{vS0+1}")
    A(f"s_cmp_eq_u32 s{S_W}, 5\ns_cselect_b32 s{R3}, s{R1}, s{R2}\ns_cselect_b32 s{R3+1}, s{R1+1}, s{R2+1}\ns_mov_b32 s{R3+2}, 819200\ns_mov_b32 s{R3+3}, 0x20000")
    A(f"s_sub_u32 s65, s{S_W}, 5\ns_lshl_b32 s66, s65, 12\ns_lshl_b32 s65, s65, 11")
    for u in range(1, 4):
        A(f"v_xor_b32 v{vRA+u}, {32*u}, v{vRA}")
    for u in range(4):
        A(f"v_add_u32 v{vRB+u}, s66, v{vRA+u}")
    A("s_waitcnt vmcnt(0)")
    if OPT["hint"]:
        A("s_barrier")
    if not OPT["g1prio"]:
        blo()

    def dmaB4(Sx):
        for q in range(2):
            A(f"s_add_u32 m0, s65, {(Sx % 3) * SH + 8192 + q * 1024}\ns_nop 0")
            dma(vS0 + q, R3, sK)
        advK()

    dmaB4(0); dmaB4(1)
    for Sx in range(10):
        A(f"s_waitcnt vmcnt({2 if Sx < 9 else 0})\ns_barrier")
        for u in range(4):
            A(f"ds_read_b128 {vr(BF+4*u,4)}, v{vRA+u} offset:{(Sx % 3) * SH + 8192}")
            A(f"ds_read_b128 {vr(AF+4*u,4)}, v{vRB+u} offset:{(Sx % 3) * SH}")
        for u in range(4):
            A(f"s_waitcnt lgkmcnt({6-2*u})")
            c = "0" if (Sx == 0 and u == 0) else vr(ACC, 16)
            A(f"{MF32} {vr(ACC,16)}, {vr(AF+4*u,4)}, {vr(BF+4*u,4)}, {c}")
        if Sx + 2 < 10:
            dmaB4(Sx + 2)
    bhi()
    A(f"v_lshlrev_b32 v30, 4, v1\ns_cmp_eq_u32 s{S_W}, 5\ns_cbranch_scc1 L_G1_RED\ns_nop 8")
    for g in range(4):
        A(f"ds_write_b128 v30, {vr(ACC+4*g,4)} offset:{SH + 1024*g}")
    A("s_waitcnt lgkmcnt(0)\ns_branch L_G1_AUXEND")

    A("L_G1_LD:")
    A(f"s_cmp_eq_u32 s{S_W}, 7\ns_cselect_b32 s65, 1, 0")
    A(f"v_bfe_u32 v29, v1, 3, 1\nv_lshl_add_u32 v30, v17, 1, v29\nv_lshlrev_b32 v30, 4, v30\nv_bfe_u32 v29, v1, 4, 1\nv_add_u32 v30, v30, v29")
    A(f"s_lshl_b32 s66, s{sTC}, 6\ns_lshl_b32 s67, s65, 3\ns_add_u32 s66, s66, s67\nv_add_u32 v30, s66, v30\nv_mul_u32_u24 v30, 1280, v30\nv_add_u32 v{vS0}, v30, v31")
    A(f"v_xor_b32 v{vS0+1}, 64, v{vS0}\nv_add_u32 v{vS0+1}, 2560, v{vS0+1}\nv_add_u32 v{vS0+2}, 5120, v{vS0}\nv_add_u32 v{vS0+3}, 5120, v{vS0+1}")
    A("s_lshl_b32 s65, s65, 12\ns_waitcnt vmcnt(0)")
    if OPT["hint"]:
        A("s_barrier")

    def dmaX(Sx):
        for q in range(4):
            A(f"s_add_u32 m0, s65, {(Sx % 3) * SH + q * 1024}\ns_nop 0")
            dma(vS0 + q, R0, sK)
        advK()

    dmaX(0); dmaX(1)
    for Sx in range(10):
        A(f"s_waitcnt vmcnt({4 if Sx < 9 else 0})\ns_barrier")
        if Sx + 2 < 10:
            dmaX(Sx + 2)
    A("L_G1_AUXEND:")
    touch2()
    A("s_barrier")
    if OPT.get("bstop") in (1, 2):
        A("s_endpgm")
    A("s_barrier")
    A(f"s_cmp_lg_u32 s{S_W}, 7\ns_cbranch_scc1 L_NOF2")
    A(f"v_and_b32 v89, 31, v1\nv_min_u32 v89, s{sTC}, v89\nv_lshlrev_b32 v89, 3, v89\ns_lshl_b32 s68, s{sNB}, 8\ns_add_u32 s68, s68, {F2}\nv_add_u32 v89, s68, v89")
    poll([89], t=120)
    A("L_NOF2:\ns_barrier\ns_branch L_B_H")
    A("L_G1_RED:\ns_barrier")
    for g in range(4):
        A(f"ds_read_b128 {vr(ACC+16+4*g,4)}, v30 offset:{SH + 1024*g}")
    A("s_waitcnt lgkmcnt(0)")
    A("L_SCAN:")
    if OPT.get("bstop") == 1:
        A("s_endpgm")
    stamp(2)
    bhi()
    A("s_nop 11")
    for i in range(16):
        A(f"v_permlane16_swap_b32 v{ACC+2*i}, v{ACC+2*i+1}")
    for i in range(16):
        u = ACC + 2 * i
        t = 64 + 2 * (i & 1)
        A(f"v_pk_mul_f32 {vr(t,2)}, {vr(u,2)}, {vr(CF,2)} op_sel:[0,0] op_sel_hi:[0,1]")
        A(f"v_pk_fma_f32 {vr(u,2)}, {vr(u,2)}, {vr(CF,2)}, {vr(t,2)} op_sel:[1,1,0] op_sel_hi:[1,0,1] neg_hi:[0,1,0]")
    G, T = 68, 70
    cfma(G, ACC, MU, ACC + 2, T)
    for i in range(2, 16):
        cfma(G, G, MU, ACC + 2 * i, T)
    E4 = 72
    gather4(G, E4)
    PRE = 80
    cfma(82, E4, MU16, E4 + 2, T)
    cfma(84, 82, MU16, E4 + 4, T)
    cfma(86, 84, MU16, E4 + 6, T)
    A(f"v_mov_b32 v{PRE}, 0\nv_mov_b32 v{PRE+1}, 0")
    for src, m in ((E4, 96), (82, 98), (84, 100)):
        for c in range(2):
            A(f"v_cndmask_b32 v{PRE+c}, v{PRE+c}, v{src+c}, s[{m}:{m+1}]")
    A(f"s_mul_i32 s64, s{sNB}, 20480\ns_add_u32 s64, s64, {EB}\ns_add_u32 s{R3}, s{P_WS}, s64\ns_addc_u32 s{R3+1}, s{P_WS+1}, 0\ns_and_b32 s{R3+1}, s{R3+1}, 0xffff\ns_mov_b32 s{R3+2}, 20480\ns_mov_b32 s{R3+3}, 0x20000")
    A(f"s_mul_i32 s64, s{sTC}, 640\ns_mov_b64 exec, 0xffff")
    A(f"buffer_store_dwordx2 v[86:87], v123, {S(R3)}, s64 offen sc1\ns_mov_b64 exec, -1")
    A(f"s_lshl_b32 s68, s{sNB}, 8\ns_lshl_b32 s69, s{sTC}, 3\ns_add_u32 s68, s68, s69\ns_add_u32 s68, s68, {F2}")
    if OPT.get("bstop") == 2:
        A("s_endpgm")
    A("s_waitcnt vmcnt(0)\ns_barrier")
    flag_store(68)
    stamp(3)
    A("s_barrier")
    stamp(4)
    EL = 96
    for u in range(8):
        if u:
            A("v_add_u32 v124, 640, v124")
        A(f"buffer_load_dwordx2 {vr(EL+2*u,2)}, v124, {S(R3)}, 0 offen sc1")
    A("s_waitcnt vmcnt(6)")
    cfma(G, EL, LAM, EL + 2, T)
    for u in range(2, 8):
        A(f"s_waitcnt vmcnt({7-u})")
        cfma(G, G, LAM, EL + 2 * u, T)
    gather4(G, E4)
    cfma(G, E4 + 6, LAM8, E4 + 4, T)
    cfma(G, G, LAM8, E4 + 2, T)
    cfma(G, G, LAM8, E4, T)
    cfma(G, G, PW, PRE, T)
    cfma(ACC, G, MU, ACC, T)
    for i in range(1, 16):
        cfma(ACC + 2 * i, ACC + 2 * i - 2, MU, ACC + 2 * i, T)
    PK = 64
    A(f"s_mul_i32 s64, s{sTC}, 163840\ns_add_u32 s64, s64, {HB}")
    for tt in range(2):
        for c in range(2):
            d = PK + 8 * tt + 4 * c
            for m in range(4):
                a = ACC + 16 * tt + 4 * m + c
                A(f"v_cvt_pk_bf16_f32 v{d+m}, v{a}, v{a+2}")
            A(f"s_add_u32 s65, s64, {tt*20480 + c*10240}")
            A(f"buffer_store_dwordx4 {vr(d,4)}, v125, {S(WS)}, s65 offen sc1")
    A("s_waitcnt vmcnt(0)")
    A("L_B_H:")
    A(f"s_lshl_b32 s68, s{sTC}, 7\ns_lshl_b32 s69, s{sNB}, 3\ns_add_u32 s68, s68, s69\ns_add_u32 s68, s68, {F3}")
    A("s_barrier")
    flag_store(68)
    stamp(5)
    if OPT.get("bstop") == 3:
        A("s_endpgm")
    A(f"s_cmp_ge_u32 s{S_W}, 4\ns_cbranch_scc1 L_B_SMALL")
    tail_gemms(True)
    A("L_B_SMALL:")
    tail_gemms(False)


def hoist(sTC, sNB):
    A(f"v_and_b32 v26, 15, v1\nv_add_u32 v123, s36, v26\nv_lshlrev_b32 v123, 3, v123")
    A(f"v_lshrrev_b32 v27, 4, v1\nv_mul_u32_u24 v28, {8*640}, v27\ns_mul_i32 s65, s{sTC}, 640\ns_sub_u32 s65, s65, {8*640}\nv_sub_u32 v28, s65, v28\nv_add_u32 v124, v123, v28")
    A(f"v_mul_u32_u24 v28, 40960, v27\nv_lshl_add_u32 v125, v16, 4, v28")
    A(f"s_lshl_b32 s65, s{S_W}, 6\nv_add_u32 v28, s65, v1\nv_mul_u32_u24 v29, 6554, v28\nv_lshrrev_b32 v29, 16, v29\nv_mul_u32_u24 v30, 10, v29\nv_sub_u32 v30, v28, v30")
    A(f"v_and_b32 v28, 0x78, v29\nv_and_b32 v31, 1, v29\nv_lshl_add_u32 v28, v31, 2, v28\nv_bfe_u32 v31, v29, 1, 2\nv_add_u32 v28, v28, v31")
    A(f"v_mul_u32_u24 v28, 1280, v28\nv_lshl_add_u32 v28, v30, 4, v28\ns_mul_i32 s65, s{sNB}, 160\nv_add_u32 v117, s65, v28")
    A(f"v_lshrrev_b32 v28, 5, v1\nv_mul_u32_u24 v28, {PL}, v28\nv_and_b32 v29, 31, v1\nv_lshlrev_b32 v29, 4, v29\ns_and_b32 s65, s{S_W}, 1\ns_lshl_b32 s65, s65, 7\nv_xor_b32 v29, s65, v29\nv_add_u32 v119, v28, v29")
    A("v_bfe_u32 v30, v1, 2, 2\nv_and_b32 v31, 3, v1")
    sm, dn = uid("HS"), uid("HD")
    A(f"s_cmp_ge_u32 s{S_W}, 4\ns_cbranch_scc1 {sm}")
    for big in (True, False):
        if big:
            A(f"v_lshrrev_b32 v27, 5, v1\nv_and_b32 v26, 31, v1\ns_lshr_b32 s65, s{S_W}, 1\ns_and_b32 s66, s{S_W}, 1")
            A(f"s_lshl_b32 s67, s65, 5\ns_lshl_b32 s68, s66, 5")
            A(f"s_lshl_b32 s69, s65, 2\nv_bfe_u32 v28, v1, 4, 1\nv_lshlrev_b32 v28, 1, v28\nv_lshrrev_b32 v29, 1, v31\nv_add3_u32 v28, v28, v29, s69")
        else:
            A(f"{sm}:\ns_sub_u32 s65, s{S_W}, 4\ns_lshl_b32 s67, s65, 4\ns_mov_b32 s68, 64")
            A(f"s_lshl_b32 s69, s65, 1\nv_lshrrev_b32 v28, 1, v31\nv_add_u32 v28, s69, v28")
        A(f"v_mul_u32_u24 v28, 1088, v28\nv_lshl_add_u32 v29, v27, 3, v30\nv_lshl_add_u32 v28, v29, 4, v28\nv_and_b32 v29, 1, v31\nv_lshl_add_u32 v112, v29, 3, v28")
        A(f"v_add_u32 v28, s68, v26\nv_lshlrev_b32 v28, 7, v28\nv_add_u32 v28, 8704, v28\nv_bfe_u32 v29, v26, 1, 3\nv_xor_b32 v29, v29, v27\nv_lshl_add_u32 v113, v29, 4, v28")
        A(f"s_lshl_b32 s69, s{sTC}, 6\ns_add_u32 s69, s69, s67\nv_lshl_add_u32 v28, v27, 2, s69\ns_mul_i32 s69, s{sNB}, 80\ns_add_u32 s69, s69, s68\nv_add_u32 v29, s69, v26")
        A("v_mul_u32_u24 v114, 1280, v28\nv_lshl_add_u32 v114, v29, 1, v114\nv_mul_u32_u24 v115, 5120, v28\nv_lshl_add_u32 v115, v29, 2, v115\nv_lshlrev_b32 v126, 1, v29")
        A("v_lshlrev_b32 v28, 1, v30\nv_lshl_add_u32 v28, v27, 3, v28\nv_mul_u32_u24 v28, 160, v28\nv_lshl_add_u32 v28, v31, 3, v28")
        if big:
            A("v_bfe_u32 v29, v1, 4, 1\nv_lshl_add_u32 v28, v29, 5, v28\ns_lshl_b32 s69, s66, 6\nv_add_u32 v116, s69, v28")
            A("v_add_u32 v28, s67, v26\nv_lshlrev_b32 v28, 3, v28\nv_lshlrev_b32 v29, 7, v27\nv_xor_b32 v28, v28, v29\nv_lshl_add_u32 v28, v27, 10, v28\ns_mul_i32 s69, s65, 40960\nv_add_u32 v118, s69, v28")
            A(f"v_lshlrev_b32 v122, 4, v1\nv_xor_b32 v127, 32, v113\nv_xor_b32 v26, 64, v113\nv_xor_b32 v27, 96, v113\nv_mov_b32 v28, 0\ns_branch {dn}")
        else:
            A("v_add_u32 v116, 128, v28")
            A("v_add_u32 v28, s67, v26\nv_lshlrev_b32 v28, 3, v28\nv_and_b32 v29, 1, v27\nv_lshlrev_b32 v29, 7, v29\nv_xor_b32 v28, v28, v29\nv_lshl_add_u32 v118, v27, 10, v28")
            A(f"v_lshrrev_b32 v28, 3, v1\ns_mul_i32 s69, s{sNB}, 80\ns_lshl_b32 s66, s65, 3\ns_add_u32 s69, s69, s66\nv_add_u32 v28, s69, v28\nv_mul_u32_u24 v28, 1280, v28")
            A(f"v_and_b32 v29, 7, v1\nv_xor_b32 v29, v29, v27\ns_and_b32 s69, s65, 1\ns_lshl_b32 s69, s69, 2\nv_xor_b32 v29, s69, v29\nv_lshl_add_u32 v122, v29, 4, v28")
            A("v_xor_b32 v127, 64, v113\nv_add_u32 v26, 40960, v122\nv_add_u32 v27, 81920, v122\nv_add_u32 v28, 40960, v118")
    A(f"{dn}:")


def tail_gemms(big):
    sTC, sNB, sK = 41, 42, 43
    nacc = 16 if big else 4
    ACC = 32
    WF = 48
    MF = MF32 if big else MF16
    rows = [8 * (i >> 2) + (i & 3) for i in range(nacc)]
    vA, vOut = 112, 115
    vBs = [113, 127, 26, 27]
    vSs = [122, 26, 27]
    srd(R3, P_DSK, 1280)
    A(f"buffer_load_ushort v2, v126, {S(R3)}, 0 offen")
    for i in range(nacc):
        A(f"s_mov_b32 s64, {rows[i]*1280}\nbuffer_load_ushort v{3+i}, v114, {S(R0)}, s64 offen")
    SL = 18944
    srd(R1, P_CRE, 819200); srd(R2, P_CIM, 819200)
    if big:
        A(f"s_mul_i32 s44, s{sTC}, 163840\ns_mul_i32 s64, s{S_W}, 40960\ns_add_u32 s44, s44, s64\ns_add_u32 s44, s44, {HB}")
        A(f"s_mul_i32 s46, s{S_W}, 2176\ns_lshl_b32 s{sK}, s37, 10")
        A(f"s_lshl_b32 s45, s{sTC}, 7\ns_add_u32 s45, s45, {F3}")
        A(f"s_and_b32 s47, s{sNB}, 3\ns_mul_i32 s47, s47, 40960\ns_mul_i32 s66, s{S_W}, 30720\ns_sub_u32 s47, s47, s66\ns_add_u32 s47, s47, s44")
        A("v_and_b32 v20, 7, v1\nv_lshl_add_u32 v20, v20, 3, s45")
        if OPT["htouch"]:
            A(f"v_lshlrev_b32 v21, 7, v1\nv_min_u32 v22, 15, v1\nv_lshlrev_b32 v22, 7, v22\nv_add_u32 v22, 8192, v22")
        poll([20], t=120)
        stamp(6)
        if OPT["htouch"]:
            A(f"buffer_load_dword v23, v21, {S(WS)}, s47 offen sc1\nbuffer_load_dword v24, v22, {S(WS)}, s47 offen sc1")
    else:
        A(f"s_sub_u32 s95, s{S_W}, 4\ns_lshl_b32 s46, s95, 10\ns_lshl_b32 s{sK}, s37, 7")
    if not OPT["g2prio"]:
        blo()

    def g2_dma(Sx):
        sb = (Sx % 4) * SL
        if big:
            for i in range(2):
                A(f"s_add_u32 m0, s46, {sb + 1088*i}\ns_add_u32 s64, s44, s{sK}")
                if i or Sx >= 10:
                    A(f"s_add_u32 s64, s64, {20480*i + (10240 if Sx >= 10 else 0)}")
                dma(vSs[0], WS, 64, "sc1")
            A(f"s_add_u32 s{sK}, s{sK}, 1024\ns_cmp_eq_u32 s{sK}, 10240\ns_cselect_b32 s{sK}, 0, s{sK}")
        else:
            for m in range(3):
                if m == 2:
                    sk = uid("SD")
                    A(f"s_cmp_ge_u32 s95, 2\ns_cbranch_scc1 {sk}")
                A(f"s_add_u32 m0, s46, {sb + 8704 + 4096*m}\ns_nop 0")
                dma(vSs[m], R1 if Sx < 10 else R2, sK)
            A(f"{sk}:")
            A(f"s_add_u32 s{sK}, s{sK}, 128\ns_cmp_eq_u32 s{sK}, 1280\ns_cselect_b32 s{sK}, 0, s{sK}")

    for Sx in range(3):
        g2_dma(Sx)
    if big and OPT["g2s"] > 0:
        sk = uid("G2W")
        A(f"s_cmp_lg_u32 s{S_W}, 0\ns_cbranch_scc1 {sk}\ns_sub_u32 s66, s2, 256\ns_lshl_b32 s66, s66, 7\ns_add_u32 s66, s66, {F0B}")
        spoll(8, 1, 66)
        A(f"{sk}:")
    nu = 4 if big else 2
    FR = [48, 48 + 8 * nu]

    def mm(Sx, u):
        if Sx >= 0:
            f = FR[Sx & 1]
            c = "0" if (Sx == 0 and u == 0) else vr(ACC, nacc)
            A(f"{MF} {vr(ACC,nacc)}, {vr(f+8*u,4)}, {vr(f+8*u+4,4)}, {c}")

    for Sx in range(20):
        infl = min(Sx + 3, 20) - Sx - 1
        f, sb = FR[Sx & 1], (Sx % 4) * SL
        A(f"s_waitcnt vmcnt({2*infl})\ns_barrier")
        if Sx == 0:
            stamp(11)
        mm(Sx - 1, 0)
        for u in range(nu):
            for j in range(2):
                A(f"ds_read_b64_tr_b16 {vr(f+8*u+2*j,2)}, v{vA} offset:{sb + (256 if big else 512)*u + 64*j}")
            A(f"ds_read_b128 {vr(f+8*u+4,4)}, v{vBs[u]} offset:{sb}")
        for u in range(1, nu):
            mm(Sx - 1, u)
        if Sx + 3 < 20:
            g2_dma(Sx + 3)
        A("s_waitcnt lgkmcnt(0)")
    for u in range(nu):
        mm(19, u)
    A("s_barrier")
    stamp(7)
    bhi()
    srd(R2, P_OUT, 10485760)
    srd(R1, P_WO, 819200)
    A(f"s_lshl_b32 s46, s{S_W}, 10\ns_nop 1")

    def wo_dma(r, vWs):
        sk = uid("WD")
        if not big:
            A(f"s_cmp_ge_u32 s{S_W}, 5\ns_cbranch_scc1 {sk}")
        for m in range(10):
            A(f"s_add_u32 m0, s46, {5120*m}\ns_mov_b32 s64, {(320*r + 32*m) * 1280}")
            dma(vWs, R1, 64)
        A(f"{sk}:")

    def store_out(coloff, vo):
        for i in range(nacc):
            A(f"s_mov_b32 s64, {rows[i]*5120}\nbuffer_store_dword v{ACC+i}, v{vo}, {S(R2)}, s64 offen offset:{coloff} {['', 'nt', 'sc1', 'sc1 nt', 'sc0 sc1'][OPT['sto']]}")

    for i in range(nacc):
        A(f"v_dot2c_f32_bf16 v{ACC+i}, v{3+i}, v2")
    wo_dma(0, 117)
    A("s_nop 2")
    store_out(2560, vOut)
    vOut, vO, vOs, vW, vWs = 5, 6, (7 if big else 10), 2, 3
    A(f"v_mov_b32 v4, v122\nv_mov_b32 v{vOut}, v115\nv_mov_b32 v{vO}, v118\nv_mov_b32 v{vOs}, v119\nv_mov_b32 v{vW}, v116\nv_mov_b32 v{vWs}, v117")
    if not big:
        A("v_mov_b32 v7, v28")
    A(f"s_mul_i32 s44, s{S_W}, {2*PL}\ns_lshl_b32 s64, s{sTC}, 9\ns_add_u32 s44, s44, s64\ns_add_u32 s44, s44, {OP}")
    if big:
        A(f"s_lshl_b32 s45, s{sTC}, 3\ns_add_u32 s45, s45, s{sNB}\ns_lshl_b32 s45, s45, 8\ns_lshl_b32 s64, s{S_W}, 6\ns_add_u32 s45, s45, s64\ns_add_u32 s45, s45, {PV4}")
    for r in range(2):
        if r:
            wo_dma(1, vWs)
        A("s_waitcnt vmcnt(0)\ns_barrier")
        if big:
            sk2 = uid("WR")
            A(f"s_lshr_b32 s64, s{S_W}, 1\ns_cmp_lg_u32 s64, {r}\ns_cbranch_scc1 {sk2}")
            for u in range(20):
                for j in range(2):
                    A(f"ds_read_b64_tr_b16 {vr(WF+4*u+2*j,2)}, v{vW} offset:{2560*u + 160*j}")
            A(f"{sk2}:")
        else:
            for U in range(10):
                for j in range(2):
                    A(f"ds_read_b64_tr_b16 {vr(WF+40*r+4*U+2*j,2)}, v{vW} offset:{5120*U + 160*j}")
        A("s_waitcnt lgkmcnt(0)")
        if r == 0:
            A("s_barrier")
    ACC = 16 if big else 12
    if big:
        spoll(8, 8, 45)
    A("s_barrier")
    stamp(8)
    for i in range(5):
        for st in (i, 5 + i):
            A(f"s_add_u32 m0, s46, {8192*st}\ns_add_u32 s64, s44, {16*PL*st}")
            dma(vOs, WS, 64, "sc1")
    if big:
        ne = uid("NE")
        A(f"v_xor_b32 v1, 256, v{vO}")
        A(f"s_cmp_lg_u32 s{sTC}, 31\ns_cbranch_scc1 {ne}\ns_or_b32 s64, s{sNB}, s{S_W}\ns_cmp_lg_u32 s64, 0\ns_cbranch_scc1 {ne}")
        A(f"s_waitcnt vmcnt(0)\nv_mov_b32 v8, s{S_E}\ns_mov_b64 exec, 1\nbuffer_store_dword v8, off, {S(WS)}, 0 offset:{EPOCH} sc1\ns_mov_b64 exec, -1\ns_waitcnt vmcnt(0)\n{ne}:")
        free = [8, 12]
        loc = {}
        order = []

        def issue(n, t):
            f = free.pop(0)
            loc[(n, t)] = f
            i, u = n >> 2, n & 3
            for j in range(2):
                A(f"ds_read_b64 {vr(f+2*j,2)}, v{vO if t == 0 else 1} offset:{8192*i + 2048*u + 512*j}")
            order.append((n, t))

        todo = [(n, t) for n in range(20) for t in range(2)]
        nxt = 0
        for k, (n, t) in enumerate(todo):
            if (n & 3) == 0 and t == 0:
                A(f"s_waitcnt vmcnt({8 - 2*(n >> 2)})\ns_barrier")
            lim = 8 * ((n >> 2) + 1)
            while nxt < lim and free and nxt - k < 6:
                issue(*todo[nxt]); nxt += 1
            pend = len(order) - 1 - order.index((n, t))
            A(f"s_waitcnt lgkmcnt({2*pend})")
            c = "0" if n == 0 else vr(ACC + 16 * t, 16)
            A(f"{MF} {vr(ACC+16*t,16)}, {vr(loc[(n,t)],4)}, {vr(WF+4*n,4)}, {c}")
            free.append(loc[(n, t)])
            if t == 1:
                free.append(WF + 4 * n)
        A(f"s_lshl_b32 s64, s{S_W}, 12\ns_xor_b32 s65, s64, 8192\nv_add_u32 v0, s64, v4\nv_add_u32 v1, s65, v4\ns_nop 7")
        for g in range(4):
            A(f"ds_write_b128 v0, {vr(ACC+16+4*g,4)} offset:{1024*g}")
        A("s_waitcnt lgkmcnt(0)\ns_barrier")
        for g in range(4):
            A(f"ds_read_b128 {vr(48+4*g,4)}, v1 offset:{1024*g}")
        for g in range(4):
            A(f"s_waitcnt lgkmcnt({3-g})")
            for c in range(2):
                A(f"v_pk_add_f32 {vr(ACC+4*g+2*c,2)}, {vr(ACC+4*g+2*c,2)}, {vr(48+4*g+2*c,2)}")
    else:
        for i in range(5):
            A(f"s_waitcnt vmcnt({8 - 2*i})\ns_barrier")
            f = 16 + 16 * (i & 1)
            for h in range(2):
                for U in range(2):
                    for j in range(2):
                        A(f"ds_read_b64 {vr(f+8*h+4*U+2*j,2)}, v{vO+h} offset:{8192*i + 4096*U + 512*j}")
            for h in range(2):
                for U in range(2):
                    A(f"s_waitcnt lgkmcnt({6 - 4*h - 2*U})")
                    c = "0" if (i == 0 and h == 0 and U == 0) else vr(ACC, 4)
                    A(f"{MF} {vr(ACC,4)}, {vr(f+8*h+4*U,4)}, {vr(WF+40*h+8*i+4*U,4)}, {c}")
        A("s_barrier\ns_nop 7")
    store_out(0, vOut)
    stamp(9)
    if OPT["stamps"]:
        A("s_waitcnt vmcnt(0)")
        stamp(10)
    dump_stamps(12)
    A("s_endpgm")


def build():
    hdr = open("cdna_kernels/" + NAME + ".s.ref").read().split("\n")
    out = [l for l in hdr if l.startswith(";") and "@launch" not in l]
    out.append("; @launch grid=(512,1,1) block=(512,1,1) lds=81920")
    out.append('.amdgcn_target "amdgcn-amd-amdhsa--gfx950"\n.text')
    out.append(f".globl {NAME}_kernel\n.p2align 8\n.type {NAME}_kernel,@function\n{NAME}_kernel:")
    prologue()
    if OPT.get("noa"):
        A("s_endpgm")
    if OPT["aprio"]:
        A(f"s_setprio {OPT['aprio']}")
    qkv()
    attention()
    role_b()
    A("L_END:\ns_endpgm")
    for l in L:
        out.append(l if l.endswith(":") or l.startswith(".") else "    " + l)
    out.append(f""".section .rodata,"a"
.p2align 6
.amdhsa_kernel {NAME}_kernel
  .amdhsa_next_free_vgpr 128
  .amdhsa_next_free_sgpr 102
  .amdhsa_accum_offset 128
  .amdhsa_group_segment_fixed_size 0
  .amdhsa_kernarg_size 120
  .amdhsa_user_sgpr_count 2
  .amdhsa_user_sgpr_kernarg_segment_ptr 1
  .amdhsa_system_sgpr_workgroup_id_x 1
.end_amdhsa_kernel""")
    return "\n".join(out) + "\n"


if __name__ == "__main__":
    txt = build()
    open(sys.argv[1], "w").write(txt)
    sys.path.insert(0, "gen")
    import hazard
    e = hazard.check(txt)
    print("\n".join(e) if e else "hazard check: clean")
```

```python
import sys, struct, math

NAME = "concat_heads__softmax_full_mha__ssm_conv_s5__prompt"

OPT = dict(stamps=0, spin=400000, hint=1, hint_step=16, plpad=0, aprio=0, bprio=0, force_fb=0, pace1=0, pace2=0, dynprio=1, touch=0, st4=1, tdelay=1, qsplit=0, ntx=0, ntw=0, ntb=0, ntc=0, sto=0, psleep=0, pdelay=0, qpro=2, g2s=0, pw=1, pp=1, sp1=1, itouch=0, g1prio=0, urg=4, rot=0, g2prio=0, yprio=0, dspread=1, stouch=0, htouch=1, ctouch=1)
for a in sys.argv[2:]:
    k, v = a.split("=")
    OPT[k] = int(v)

PL = 16384 + OPT["plpad"]
EPOCH = 0
F1 = 0x1000
F1S = 128
F2 = 0x2000
F3 = 0x3000
F4 = 0x4000
F0 = 0x8000
F0B = 0x10000
PV1 = 0xA0000
PV4 = 0xB0000
STAMP = 0x20000
EB = 0x48000
QKVP = 0x100000
OP = 0xA00000
HB = 0xD00000
WS_USED = 0x1300000
assert QKVP + 480 * PL <= OP and OP + 160 * PL <= HB
OOB = 0x80000000

L = []


def A(s):
    for ln in s.strip("\n").split("\n"):
        L.append(ln.strip() if not ln.strip().endswith(":") else ln.strip())


def f2u(x):
    return struct.unpack("<I", struct.pack("<f", x))[0]


def vr(a, n):
    return f"v[{a}:{a+n-1}]" if n > 1 else f"v{a}"


P_AX, P_WQKV, P_WO, P_BX, P_LRE, P_LIM, P_BRE, P_BIM, P_CRE, P_CIM, P_LDT, P_DSK, P_OUT, P_DBG = range(8, 36, 2)
P_WS = 4
S_E = 6
S_W = 40
R0, R1, R2, WS, R3 = 44, 48, 52, 56, 60
ST0 = 70
_uid = [0]


def uid(p):
    _uid[0] += 1
    return f"{p}_{_uid[0]}"


def srd(r, p, n):
    A(f"s_mov_b32 s{r}, s{p}\ns_and_b32 s{r+1}, s{p+1}, 0xffff\ns_mov_b32 s{r+2}, {n}\ns_mov_b32 s{r+3}, 0x20000")


def S(r):
    return f"s[{r}:{r+3}]"


def stamp(k):
    if OPT["stamps"] and not OPT.get("fine"):
        A(f"s_memrealtime s[{ST0+2*k}:{ST0+2*k+1}]")


def cstamp(k):
    if OPT["stamps"]:
        A(f"s_memtime s[{ST0+2*k}:{ST0+2*k+1}]")


def fst(k, cond=True):
    if OPT.get("fine") and cond:
        A(f"s_memtime s[{ST0+2*k}:{ST0+2*k+1}]")


def dump_stamps(n, role='B'):
    if not OPT["stamps"]:
        return
    sk = uid("SK")
    A(f"s_waitcnt lgkmcnt(0)\ns_cmp_lg_u32 s{S_W}, {OPT.get('fw', 0)}\ns_cbranch_scc1 {sk}")
    if OPT.get("dbg"):
        A(f"s_load_dwordx2 s[64:65], s[0:1], 104\ns_waitcnt lgkmcnt(0)\ns_mov_b32 s{R3}, s64\ns_and_b32 s{R3+1}, s65, 0xffff\ns_mov_b32 s{R3+2}, 256\ns_mov_b32 s{R3+3}, 0x20000\ns_mov_b64 exec, 1")
        lst = [(0, 0)] + ([(k, k) for k in range(1, 8)] if role == "A" else list(zip((1, 2, 3, 5, 6, 7, 8, 10), range(8, 16))))
        for k, wd in lst:
            A(f"s_not_b32 s64, s{ST0}\nv_mov_b32 v120, s64" if k == 0 else f"v_mov_b32 v120, s{ST0+2*k}")
            if role == "A" and k in (1, 2):
                A(f"s_cmp_ge_u32 s2, 240\ns_cselect_b32 s64, 0, s{ST0+2*k}\nv_mov_b32 v120, s64")
            A(f"buffer_atomic_umax v120, off, {S(R3)}, 0 offset:{4*wd}\ns_waitcnt vmcnt(0)")
        A(f"s_mov_b64 exec, -1\n{sk}:")
        return
    A(f"s_lshl_b32 s64, s2, 7\ns_add_u32 s64, s64, {STAMP}\ns_mov_b64 exec, 1")
    for k in range(n):
        A(f"v_mov_b32 v120, s{ST0+2*k}\nv_mov_b32 v121, s{ST0+2*k+1}")
        A(f"buffer_store_dwordx2 v[120:121], off, {S(WS)}, s64 offset:{8*k}")
        A("s_waitcnt vmcnt(0)")
    A(f"s_mov_b64 exec, -1\n{sk}:")


def flag_store(soff, t=120, wave0=True):
    sk = uid("FS")
    if wave0:
        A(f"s_cmp_lg_u32 s{S_W}, 0\ns_cbranch_scc1 {sk}")
    A(f"v_mov_b32 v{t}, s{S_E}\nv_mov_b32 v{t+1}, s{S_E+1}\ns_mov_b64 exec, 1")
    A(f"buffer_store_dwordx2 v[{t}:{t+1}], off, {S(WS)}, s{soff} sc1")
    A("s_mov_b64 exec, -1")
    if wave0:
        A(f"{sk}:")


def poll(vaddrs, t=120, sleep=0):
    lp, dn = uid("PL"), uid("PD")
    A(f"s_mov_b32 s64, {OPT['spin']}\n{lp}:")
    for i, va in enumerate(vaddrs):
        A(f"buffer_load_dwordx2 v[{t+2*i}:{t+2*i+1}], v{va}, {S(WS)}, 0 offen sc1")
    A("s_waitcnt vmcnt(0)")
    for i, va in enumerate(vaddrs):
        if i == 0:
            A(f"v_cmp_ne_u64 vcc, s[{S_E}:{S_E+1}], v[{t}:{t+1}]")
        else:
            A(f"v_cmp_ne_u64 s[66:67], s[{S_E}:{S_E+1}], v[{t+2*i}:{t+2*i+1}]\ns_or_b64 vcc, vcc, s[66:67]")
    A(f"s_cbranch_vccz {dn}")
    if sleep:
        A(f"s_sleep {sleep}")
    A(f"s_sub_u32 s64, s64, 1\ns_cmp_lg_u32 s64, 0\ns_cbranch_scc1 {lp}\n{dn}:")


def ppoll(va, t):
    lp, dn = uid("PP"), uid("PQ")
    ld = lambda i: A(f"buffer_load_dwordx2 v[{t+2*i}:{t+2*i+1}], v{va}, {S(WS)}, 0 offen sc1")
    A(f"s_mov_b32 s64, {OPT['spin']}")
    ld(0); A("s_sleep 1"); ld(1); A("s_sleep 1"); ld(2)
    A(f"{lp}:")
    for i in range(3):
        A(f"s_waitcnt vmcnt(2)\nv_cmp_ne_u64 vcc, s[{S_E}:{S_E+1}], v[{t+2*i}:{t+2*i+1}]\ns_cbranch_vccz {dn}")
        ld(i)
    A(f"s_sub_u32 s64, s64, 1\ns_cmp_lg_u32 s64, 0\ns_cbranch_scc1 {lp}\n{dn}:")


def spoll(dst, nflags, soff, need=None):
    lp, dn = uid("SP"), uid("SD")
    A(f"s_mov_b32 s64, {OPT['spin']}\n{lp}:")
    if nflags == 1:
        A(f"s_load_dwordx2 s[{dst}:{dst+1}], s[{P_WS}:{P_WS+1}], s{soff} glc")
    else:
        for b in range(nflags // 8):
            A(f"s_load_dwordx16 s[{dst+16*b}:{dst+16*b+15}], s[{P_WS}:{P_WS+1}], s{soff} offset:{64*b} glc")
    A("s_mov_b32 s65, 0\ns_waitcnt lgkmcnt(0)")
    for i in range(nflags):
        A(f"s_cmp_eq_u64 s[{dst+2*i}:{dst+2*i+1}], s[{S_E}:{S_E+1}]\ns_addc_u32 s65, s65, s65")
    if need is None:
        A(f"s_cmp_eq_u32 s65, {(1 << nflags) - 1}")
    else:
        A(f"s_andn2_b32 s65, s{need}, s65\ns_cmp_eq_u32 s65, 0")
    A(f"s_cbranch_scc1 {dn}")
    A("s_sleep 2")
    A(f"s_sub_u32 s64, s64, 1\ns_cmp_lg_u32 s64, 0\ns_cbranch_scc1 {lp}\n{dn}:")


def bhi():
    if OPT["dynprio"]:
        A("s_setprio 3")


def blo():
    if OPT["dynprio"]:
        A("s_setprio 0")


def mod10(sd, ssrc, tmp):
    A(f"s_mul_i32 s{tmp}, s{ssrc}, 205\ns_lshr_b32 s{tmp}, s{tmp}, 11\ns_mul_i32 s{tmp}, s{tmp}, 10\ns_sub_u32 s{sd}, s{ssrc}, s{tmp}")


def dma(vaddr, rsrc, soff, aux=""):
    A(f"buffer_load_dwordx4 v{vaddr}, {S(rsrc)}, s{soff} offen {aux} lds".replace("  ", " "))


MF32 = "v_mfma_f32_32x32x16_bf16"
MF8 = "v_mfma_f32_32x32x8_bf16"
MF16 = "v_mfma_f32_16x16x32_bf16"


def prologue():
    A(f"s_cmp_ge_u32 s2, 512\ns_cbranch_scc1 L_END")
    stamp(0)
    A("s_load_dwordx16 s[8:23], s[0:1], 0\ns_load_dwordx8 s[24:31], s[0:1], 64\ns_load_dwordx4 s[32:35], s[0:1], 96\ns_load_dwordx2 s[4:5], s[0:1], 112")
    A(f"v_lshrrev_b32 v2, 6, v0\nv_and_b32 v1, 63, v0\nv_readfirstlane_b32 s{S_W}, v2")
    A("s_cmp_ge_u32 s2, 256\ns_cbranch_scc1 L_ROLE_B")


def epoch_fix():
    A(f"s_mul_i32 s{S_E}, s{S_E}, 0x9E3779B1\ns_add_u32 s{S_E}, s{S_E}, 0x7F4A7C15\ns_xor_b32 s{S_E+1}, s{S_E}, 0x5bd1e995")


def qkv():
    sRB, sCB, sKX, sKW, sMX, sMW, sT = 41, 42, 43, 64, 65, 66, 67
    vX0, vX1, vWs, vWr, vXr = 2, 3, 4, 5, 6
    ACC = 32
    FR = [64, 88]
    A(f"s_and_b32 s68, s2, 7\ns_lshr_b32 s69, s2, 3")
    A(f"s_and_b32 s{sRB}, s68, 3\ns_lshl_b32 s{sRB}, s{sRB}, 2\ns_and_b32 s{sT}, s69, 3\ns_add_u32 s{sRB}, s{sRB}, s{sT}")
    A(f"s_lshr_b32 s{sCB}, s68, 2\ns_lshl_b32 s{sCB}, s{sCB}, 3\ns_lshr_b32 s{sT}, s69, 2\ns_add_u32 s{sCB}, s{sCB}, s{sT}")
    A(f"s_cmp_eq_u32 s{sCB}, 15\ns_cselect_b32 s{sT}, 2, 0\ns_add_u32 s{sRB}, s{sRB}, s{sT}\ns_cmp_eq_u32 s{sCB}, 15\ns_cselect_b32 s{sCB}, 7, s{sCB}")
    A(f"s_mul_i32 s{sKX}, s{sRB}, 3\ns_add_u32 s{sKX}, s{sKX}, s{sCB}")
    mod10(sKX, sKX, sT)
    A(f"s_mul_i32 s{sKW}, s{sKX}, {2*122880}\ns_lshl_b32 s{sKX}, s{sKX}, 7")
    A(f"s_lshl_b32 s{sT}, s{sRB}, 7\ns_lshr_b32 s68, s{S_W}, 1\ns_lshl_b32 s68, s68, 5\ns_add_u32 s{sT}, s{sT}, s68\ns_and_b32 s68, s{S_W}, 1\ns_add_u32 s{sT}, s{sT}, s68")
    A(f"v_lshrrev_b32 v10, 3, v1\nv_lshl_add_u32 v10, v10, 1, s{sT}\nv_mul_u32_u24 v10, 1280, v10")
    A(f"v_lshrrev_b32 v11, 4, v1\nv_and_b32 v12, 7, v1\nv_xor_b32 v12, v12, v11\nv_lshl_add_u32 v{vX0}, v12, 4, v10")
    A(f"v_xor_b32 v{vX1}, 64, v{vX0}\nv_add_u32 v{vX1}, 20480, v{vX1}")
    A(f"s_lshl_b32 s68, s{S_W}, 2\nv_add_u32 v10, s68, v11\nv_mul_u32_u24 v10, 3840, v10")
    A(f"v_and_b32 v12, 15, v1\nv_lshlrev_b32 v13, 2, v11\nv_xor_b32 v12, v12, v13\nv_lshl_add_u32 v10, v12, 4, v10")
    A(f"s_lshl_b32 s68, s{sCB}, 8\nv_add_u32 v{vWs}, s68, v10")
    A(f"s_lshl_b32 s{sMX}, s{S_W}, 11\ns_lshl_b32 s{sMW}, s{S_W}, 10\ns_add_u32 s{sMW}, s{sMW}, 49152")
    A("s_waitcnt lgkmcnt(0)")
    A(f"s_load_dword s{S_E}, s[{P_WS}:{P_WS+1}], {EPOCH}")
    srd(R0, P_AX, 2621440)
    srd(R1, P_WQKV, 2457600)
    srd(WS, P_WS, WS_USED)
    A(f"s_cmp_ge_u32 s2, 240\ns_cbranch_scc1 L_QKV_IDLE")

    issued = []

    def dmaX(Sx):
        for i in range(2):
            A(f"s_add_u32 m0, s{sMX}, {(Sx % 3) * 16384 + i * 1024}\ns_nop 0")
            dma(vX0 + i, R0, sKX, 'nt' if OPT['ntx'] else '')
            issued.append(("X", Sx))
        A(f"s_add_u32 s{sKX}, s{sKX}, 128\ns_cmp_eq_u32 s{sKX}, 1280\ns_cselect_b32 s{sKX}, 0, s{sKX}")

    def dmaW(s):
        A(f"s_add_u32 m0, s{sMW}, {(s % 4) * 8192}\ns_nop 0")
        dma(vWs, R1, sKW, 'nt' if OPT['ntw'] else '')
        issued.append(("W", s))
        A(f"s_add_u32 s{sKW}, s{sKW}, 122880\ns_cmp_eq_u32 s{sKW}, 2457600\ns_cselect_b32 s{sKW}, 0, s{sKW}")

    dmaX(0); dmaW(0)
    if not OPT["qpro"]:
        dmaW(1); dmaX(1); dmaW(2); dmaW(3); dmaX(2)
    A(f"v_lshrrev_b32 v10, 5, v1\nv_bfe_u32 v11, v1, 2, 2\nv_lshl_add_u32 v12, v10, 3, v11\nv_lshlrev_b32 v12, 8, v12")
    A(f"s_and_b32 s68, s{S_W}, 3\ns_lshl_b32 s68, s68, 2")
    A(f"v_bfe_u32 v13, v1, 4, 1\nv_lshlrev_b32 v13, 1, v13\nv_bfe_u32 v14, v1, 1, 1\nv_add3_u32 v13, v13, v14, s68")
    A(f"v_lshlrev_b32 v11, 2, v11\nv_xor_b32 v13, v13, v11\nv_lshl_add_u32 v12, v13, 4, v12")
    A(f"v_and_b32 v14, 1, v1\nv_lshl_add_u32 v12, v14, 3, v12\nv_add_u32 v{vWr}, 49152, v12")
    A(f"s_lshr_b32 s68, s{S_W}, 2\ns_lshl_b32 s68, s68, 6\nv_and_b32 v11, 31, v1\nv_add_u32 v12, s68, v11\nv_lshlrev_b32 v12, 7, v12")
    A(f"v_bfe_u32 v13, v1, 1, 3\nv_xor_b32 v13, v13, v10\nv_lshl_add_u32 v{vXr}, v13, 4, v12")
    for k in range(1, 4):
        A(f"v_xor_b32 v{vXr+k}, {32*k}, v{vXr}")
    A(f"s_and_b32 s69, s{S_W}, 3\ns_lshl_b32 s69, s69, 3\nv_bfe_u32 v11, v1, 4, 1\nv_lshl_add_u32 v10, v11, 1, v10\nv_add_u32 v10, s69, v10\nv_mul_u32_u24 v10, {PL}, v10")
    A(f"v_and_b32 v11, 15, v1\nv_lshl_add_u32 v10, v11, 4, v10\ns_lshl_b32 s68, s68, 3\nv_add_u32 v10, s68, v10")

    if OPT["qpro"]:
        if OPT["qpro"] == 2:
            A("s_barrier")
        dmaW(1); dmaX(1); dmaW(2); dmaW(3); dmaX(2)

    def reads(s):
        f = FR[s & 1]
        ws, xs, b = (s % 4) * 8192, ((s >> 1) % 3) * 16384, s & 1
        for u in range(2):
            for j in range(2):
                A(f"ds_read_b64_tr_b16 {vr(f+4*u+2*j, 2)}, v{vWr} offset:{ws + (16*u+4*j)*256}")
            for nt in range(2):
                A(f"ds_read_b128 {vr(f+8+8*u+4*nt, 4)}, v{vXr+2*b+u} offset:{xs + 4096*nt}")

    def mfma1(s, i):
        if s < 0:
            return
        f = FR[s & 1]
        u, nt = i >> 1, i & 1
        c = "0" if (s == 0 and u == 0) else vr(ACC + 16 * nt, 16)
        A(f"{MF32} {vr(ACC+16*nt,16)}, {vr(f+4*u,4)}, {vr(f+8+8*u+4*nt,4)}, {c}")

    def mfmas(s):
        for i in range(4):
            mfma1(s, i)

    issued0 = list(issued)

    def qloop(early):
        issued[:] = issued0
        for s in range(20):
            last = max(i for i, t in enumerate(issued) if t in (("X", s >> 1), ("W", s)))
            A(f"s_waitcnt vmcnt({len(issued) - 1 - last})\ns_barrier")
            if s == 0:
                stamp(1)
                cstamp(10)
            def dm():
                if s >= 2 and s % 2 == 0 and s // 2 + 2 < 10:
                    dmaX(s // 2 + 2)
                if s == 1:
                    epoch_fix()
                if s == OPT["hint_step"] and OPT["hint"] == 1:
                    A(f"s_lshl_b32 s68, s2, 7\ns_lshl_b32 s69, s{S_W}, 3\ns_add_u32 s68, s68, s69\ns_add_u32 s68, s68, {F0}")
                    flag_store(68, t=120, wave0=False)
                    issued.append(("H", 0))

            mfma1(s - 1, 0)
            reads(s)
            mfma1(s - 1, 1)
            if s >= 1 and s + 3 < 20:
                dmaW(s + 3)
            mfma1(s - 1, 2)
            dm()
            mfma1(s - 1, 3)
            A("s_waitcnt lgkmcnt(0)")

    if OPT["qsplit"]:
        A(f"s_cmp_ge_u32 s{S_W}, 4\ns_cbranch_scc1 L_QKV_LATE")
        qloop(True)
        A("s_branch L_QKV_EPI\nL_QKV_LATE:")
        qloop(False)
        A("L_QKV_EPI:")
    else:
        qloop(False)
    mfmas(19)
    stamp(2)
    cstamp(11)
    if OPT.get("astop") == 2:
        A("s_endpgm")
    c = 20 ** -0.5 * math.log2(math.e)
    A(f"s_cmp_lt_u32 s{sCB}, 5\ns_cselect_b32 s68, {f2u(c)}, 1.0\ns_mov_b32 s69, s68\ns_cselect_b32 s11, 0, 1\ns_cmp_lt_u32 s{sRB}, {OPT['urg']}\ns_cselect_b32 s11, 0, s11")
    A(f"s_mul_i32 s8, s{sCB}, {32*PL}\ns_lshl_b32 s64, s{sRB}, 10\ns_add_u32 s8, s8, s64\ns_add_u32 s8, s8, {QKVP}\ns_add_u32 s9, s8, {4*PL}")
    A(f"s_mul_i32 s10, s{sCB}, {F1S}\ns_lshl_b32 s64, s{sRB}, 3\ns_add_u32 s10, s10, s64\ns_add_u32 s10, s10, {F1}")
    A(f"s_cmp_ge_u32 s{sCB}, 10\ns_cselect_b32 s64, 10, 5\ns_cselect_b32 s13, 8, 0\ns_sub_u32 s12, s{sCB}, s64\ns_add_u32 s13, s13, s{sRB}\ns_mov_b32 s14, 4\ns_cmp_lt_u32 s{sRB}, 4\ns_cselect_b32 s15, 1, 0")
    A(f"s_and_b32 s64, s{sRB}, 1\ns_add_u32 s64, s64, 16\ns_lshr_b32 s16, s{sRB}, 1\ns_cmp_lt_u32 s{sCB}, 5\ns_cselect_b32 s12, s{sCB}, s12\ns_cselect_b32 s13, s64, s13\ns_cselect_b32 s14, 2, s14\ns_cselect_b32 s15, 2, s15")
    for nt in range(2):
        for g in range(4):
            a = ACC + 16 * nt + 4 * g
            A(f"v_pk_mul_f32 {vr(a,2)}, {vr(a,2)}, s[68:69]\nv_pk_mul_f32 {vr(a+2,2)}, {vr(a+2,2)}, s[68:69]")
            d = 64 + 8 * nt + 2 * g
            A(f"v_cvt_pk_bf16_f32 v{d}, v{a}, v{a+1}\nv_cvt_pk_bf16_f32 v{d+1}, v{a+2}, v{a+3}")
            if g & 1:
                d -= 2
                A(f"s_nop 0\nv_permlane16_swap_b32 v{d}, v{d+2}\nv_permlane16_swap_b32 v{d+1}, v{d+3}")
    A("s_cmp_lg_u32 s11, 0\ns_cbranch_scc1 L_SETUP")
    qkv_stores()
    A("s_branch L_SETUP")
    A("L_QKV_IDLE:\ns_waitcnt lgkmcnt(0)")
    epoch_fix()
    if OPT["itouch"]:
        srd(R0, P_BX, 2621440); srd(R1, P_BRE, 819200); srd(R2, P_BIM, 819200)
        A(f"s_lshr_b32 s64, s2, 3\ns_and_b32 s64, s64, 1\ns_lshl_b32 s64, s64, 3\ns_add_u32 s64, s64, s{S_W}")
        A(f"s_and_b32 s65, s2, 3\ns_mul_i32 s65, s65, 655360\ns_mul_i32 s66, s64, 40960\ns_add_u32 s65, s65, s66")
        A(f"s_bfe_u32 s66, s2, 0x10002\ns_mul_i32 s66, s66, 409600\ns_mul_i32 s67, s64, 25600\ns_add_u32 s66, s66, s67")
        A("v_lshlrev_b32 v2, 7, v1\nv_min_u32 v3, 7, v1\nv_lshlrev_b32 v3, 7, v3")
        if OPT["itouch"] > 1:
            A(f"s_sleep {OPT['itouch']}")
        for i in range(5):
            A(f"buffer_load_dword v{20+i}, v2, {S(R0)}, s65 offen\ns_add_u32 s65, s65, 8192")
            if i < 4:
                for k, r in enumerate((R1, R2)):
                    A(f"buffer_load_dword v{30+2*i+k}, v{2 if i < 3 else 3}, {S(r)}, s66 offen")
                A("s_add_u32 s66, s66, 8192")
        A("s_waitcnt vmcnt(0)")
    A(f"s_sub_u32 s10, s2, 240\ns_lshl_b32 s10, s10, 3\ns_add_u32 s10, s10, {F1 + 15*F1S}\ns_mov_b32 s11, 2\ns_mov_b32 s12, 0\ns_mov_b32 s13, 0\ns_mov_b32 s14, 0\ns_mov_b32 s15, 0\ns_mov_b32 s16, 0\nv_mov_b32 v10, {OOB}")
    if OPT["hint"] == 1:
        A(f"s_lshl_b32 s68, s2, 7\ns_add_u32 s68, s68, {F0}")
        flag_store(68)


def qkv_stores():
    for nt in range(2):
        for p in range(2):
            A(f"buffer_store_dwordx4 {vr(64+8*nt+4*p,4)}, v10, {S(WS)}, s{8+p} offen offset:{256*nt} sc1")


PS = 2080
SLOT = 11 * PS
RED = 2 * SLOT
BADW = 81912


def attention():
    sH, sQB, sG, sLd, sBlk, sDst, sCnt, sDel, sPass = 41, 42, 44, 48, 43, 52, 53, 54, 55
    vK, vK1, vV, vD = 2, 3, 4, 5
    Q = [8, 14]; O = [20, 36]; SS = [52, 68]; Kf = [84, 90]; Vf = [96, 104]; P = 112
    A("L_SETUP:")
    if OPT.get("astop"):
        A("s_endpgm")
    A(f"s_and_b32 s68, s2, 7\ns_lshr_b32 s69, s2, 3\ns_and_b32 s{sQB}, s69, 7\ns_lshr_b32 s69, s69, 3\ns_lshl_b32 s{sH}, s68, 2\ns_add_u32 s{sH}, s{sH}, s69")
    A(f"s_mov_b32 s{sPass}, 0\ns_mov_b32 s51, {SLOT}\ns_mov_b32 s33, {F1S}")
    A(f"s_mul_i32 s64, s{sH}, 5\ns_add_u32 s65, s64, 4\ns_lshr_b32 s64, s64, 5\ns_lshr_b32 s65, s65, 5\ns_sub_u32 s65, s65, s64")
    A(f"s_lshl_b32 s60, s{sH}, 3\ns_add_u32 s60, s60, s{sQB}\ns_lshl_b32 s60, s60, 8\ns_add_u32 s60, s60, {PV1}")
    A(f"s_mov_b32 s63, 0xf0f0c\ns_cmp_eq_u32 s65, 0\ns_cselect_b32 s63, s63, 0xfffff")
    A(f"v_bfe_u32 v6, v1, 4, 1\nv_mul_u32_u24 v6, s65, v6\nv_add_u32 v6, s64, v6\nv_lshrrev_b32 v8, 5, v1\nv_mul_u32_u24 v9, 15, v8\nv_max_u32 v7, v6, v9")
    A(f"v_mul_u32_u24 v8, 5, v8\nv_add3_u32 v6, v6, v8, 5\nv_and_b32 v8, 15, v1\nv_lshlrev_b32 v8, 3, v8\nv_add_u32 v8, {F1}, v8")
    A(f"v_mad_u32_u24 v6, v6, s33, v8\nv_mad_u32_u24 v7, v7, s33, v8")
    A(f"v_bfe_u32 v8, v1, 2, 1\nv_mul_u32_u24 v8, s65, v8\nv_bfe_u32 v9, v1, 3, 1\nv_mul_u32_u24 v9, 5, v9\nv_add3_u32 v8, v8, v9, 5\nv_and_b32 v9, 3, v1")
    if OPT["rot"]:
        A(f"s_lshr_b32 s66, s{sQB}, 1\ns_lshl_b32 s66, s66, 2\nv_add_u32 v9, s66, v9")
    A(f"v_and_b32 v11, 1, v1\nv_mul_u32_u24 v11, s65, v11\nv_bfe_u32 v12, v1, 1, 1\ns_lshl_b32 s66, s{sQB}, 1\nv_add_u32 v12, s66, v12\nv_cmp_gt_u32 vcc, 16, v1")
    A(f"s_cmp_eq_u32 s{S_W}, 0\ns_cselect_b32 s47, {max(OPT['g2s'] - 1, 0)}, 99\ns_cselect_b32 s35, 0, 99\ns_lshl_b32 s34, s2, 7\ns_add_u32 s34, s34, {F0B}")
    A(f"v_cndmask_b32 v8, v11, v8, vcc\nv_cndmask_b32 v9, v12, v9, vcc\nv_add_u32 v8, s64, v8\nv_lshlrev_b32 v9, 3, v9\nv_add_u32 v9, {F1}, v9\nv_mad_u32_u24 v8, v8, s33, v9")
    if OPT["yprio"]:
        A(f"s_cmp_lt_u32 s{S_W}, 4\ns_cbranch_scc1 L_NOYP\ns_setprio 1\nL_NOYP:")
    for m in range(3):
        A(f"s_add_u32 s64, s{S_W}, {8*m}\ns_lshr_b32 s65, s64, 1\ns_and_b32 s64, s64, 1\ns_lshl_b32 s64, s64, 10")
        A(f"s_mul_i32 s{sLd+m}, s65, {PS}\ns_add_u32 s{sLd+m}, s{sLd+m}, s64")
        A(f"s_cmp_ge_u32 s65, 5\ns_cselect_b32 s66, 155, 0\ns_add_u32 s65, s65, s66\ns_add_u32 s65, s65, 160\ns_mul_i32 s66, s{sH}, 5\ns_add_u32 s65, s65, s66")
        A(f"s_mul_i32 s65, s65, {PL}\ns_add_u32 s65, s65, s64\ns_add_u32 s{sG+m}, s65, {QKVP}")
    A(f"v_lshlrev_b32 v{vD}, 4, v1")
    A(f"s_lshr_b32 s64, s{S_W}, 1\ns_min_u32 s64, s64, 2\ns_mul_i32 s64, s64, {SLOT}\ns_and_b32 s65, s{S_W}, 1\ns_lshl_b32 s65, s65, 10\ns_add_u32 s64, s64, s65\ns_add_u32 s64, s64, {10*PS}")
    A(f"v_add_u32 v9, s64, v{vD}")
    A(f"s_and_b32 s64, s{S_W}, 3\ns_lshl_b32 s64, s64, 6\ns_lshr_b32 s65, s{S_W}, 2\ns_lshl_b32 s66, s65, 5\ns_add_u32 s64, s64, s66")
    A(f"v_and_b32 v12, 15, v1\nv_lshl_add_u32 v13, v12, 1, s64\nv_lshlrev_b32 v124, 3, v13\nv_bfe_u32 v12, v1, 4, 1\nv_lshl_add_u32 v13, v12, 3, v124")
    A(f"v_and_b32 v12, 31, v1\nv_lshrrev_b32 v14, 5, v1\nv_xor_b32 v16, 256, v13")
    A(f"v_mul_u32_u24 v15, {2*PL}, v14\nv_add_u32 v84, v15, v13\nv_add_u32 v86, v15, v16\nv_lshlrev_b32 v15, 31, v14\nv_or_b32 v85, v15, v13\nv_or_b32 v87, v15, v16")
    A(f"s_lshl_b32 s65, s65, 7\nv_add_u32 v12, s65, v12\nv_lshlrev_b32 v12, 3, v12")
    A(f"v_mul_u32_u24 v15, {2*PS}, v14\nv_add_u32 v125, v15, v12\nv_mul_u32_u24 v15, {6*PS}, v14\nv_add_u32 v15, {4*PS}, v15\nv_add_u32 v126, v15, v12")
    A(f"v_bfe_u32 v15, v1, 4, 1\nv_lshlrev_b32 v15, 2, v15\nv_and_b32 v18, 3, v1\nv_add_u32 v15, v15, v18\nv_min_u32 v15, 5, v15\nv_add_u32 v15, 5, v15\nv_mul_u32_u24 v15, {PS}, v15")
    A(f"v_bfe_u32 v18, v1, 2, 2\nv_lshl_add_u32 v18, v14, 2, v18\nv_add_u32 v18, s65, v18\nv_lshl_add_u32 v127, v18, 3, v15")
    A(f"s_mul_i32 s36, s{sH}, {5*PL}\ns_lshl_b32 s65, s{sQB}, 11\ns_add_u32 s36, s36, s65\ns_add_u32 s36, s36, {QKVP}\ns_add_u32 s37, s36, {PL}\ns_add_u32 s38, s36, {4*PL}")

    A(f"s_mul_i32 s64, s12, 6554*32\ns_lshr_b32 s64, s64, 15\nv_lshrrev_b32 v11, 3, v1\nv_add_u32 v11, s64, v11\nv_mul_u32_u24 v12, 5, v11\nv_lshrrev_b32 v13, 5, v12")
    A(f"v_cmp_ge_u32 s[66:67], s12, v13\nv_cmp_ne_u32 vcc, s12, v13\nv_and_b32 v13, 7, v1\ns_nop 0\nv_cndmask_b32 v12, 0, 1, vcc\nv_mul_u32_u24 v12, s14, v12\nv_add_u32 v12, s13, v12")
    A(f"v_cmp_eq_u32 vcc, s16, v13\ns_cmp_eq_u32 s15, 2\ns_cselect_b64 s[64:65], vcc, -1\ns_and_b64 s[66:67], s[66:67], s[64:65]\ns_cmp_eq_u32 s15, 0\ns_cselect_b64 s[66:67], 0, s[66:67]")
    A(f"v_lshl_add_u32 v11, v11, 3, v13\nv_lshlrev_b32 v11, 8, v11\nv_lshl_add_u32 v11, v12, 3, v11\nv_add_u32 v11, {PV1}, v11\nv_mov_b32 v19, {OOB}\nv_cndmask_b32 v19, v19, v11, s[66:67]")

    def main_init():
        A(f"v_mov_b32 v{vK}, v125\nv_mov_b32 v{vK1}, v126\nv_mov_b32 v{vV}, v127")
        for i in range(32):
            A(f"v_mov_b32 v{O[0]+i}, 0")
        for i in range(4):
            A(f"v_mov_b32 v{P+4+i}, 0\nv_mov_b32 v{Vf[1]+4+i}, 0")
        A(f"s_mov_b32 s{sCnt}, 0\ns_mov_b32 s{sDel}, 0\ns_mov_b32 s{sDst}, 0")
        if OPT["rot"]:
            A(f"s_lshr_b32 s{sBlk}, s{sQB}, 1\ns_lshl_b32 s{sBlk}, s{sBlk}, 12")
        else:
            A(f"s_mov_b32 s{sBlk}, 0")

    main_init()
    for i in range(4):
        A(f"v_mov_b32 v{120+i}, 0x3f803f80")
    A("s_cmp_lg_u32 s11, 1\ns_cbranch_scc1 L_NOST")
    qkv_stores()
    A("L_NOST:\ns_waitcnt vmcnt(0)\ns_barrier")
    if OPT["sp1"]:
        A(f"s_cmp_lg_u32 s{S_W}, 0\ns_cbranch_scc1 L_NOF1B\nv_mov_b32 v16, s{S_E}\nv_mov_b32 v17, s{S_E+1}")
        A(f"buffer_store_dwordx2 v[16:17], v19, {S(WS)}, 0 offen sc1\nL_NOF1B:")
    flag_store(10, t=16)
    stamp(3)
    A(f"ds_write_b128 v9, v[120:123]\nv_mov_b32 v9, {BADW}\nv_mov_b32 v10, 0\nds_write_b32 v9, v10")
    sk = uid("AP")
    if OPT["hint"] == 3:
        A(f"s_lshl_b32 s68, s2, 7\ns_add_u32 s68, s68, {F0}")
        flag_store(68, t=16)
    A(f"s_waitcnt lgkmcnt(0)\ns_cmp_lg_u32 s{S_W}, {OPT['pw']}\ns_cbranch_scc1 {sk}")
    if OPT["sp1"]:
        lp, dn = uid("S1"), uid("S2")
        A(f"s_mov_b32 s64, {OPT['spin']}\n{lp}:")
        A(f"s_load_dwordx16 s[8:23], s[{P_WS}:{P_WS+1}], s60 glc\ns_load_dwordx16 s[72:87], s[{P_WS}:{P_WS+1}], s60 offset:64 glc\ns_load_dwordx8 s[24:31], s[{P_WS}:{P_WS+1}], s60 offset:128 glc")
        A("s_mov_b32 s65, 0\ns_waitcnt lgkmcnt(0)")
        for r in list(range(8, 24, 2)) + list(range(72, 88, 2)) + list(range(24, 32, 2)):
            A(f"s_cmp_eq_u64 s[{r}:{r+1}], s[{S_E}:{S_E+1}]\ns_addc_u32 s65, s65, s65")
        A(f"s_andn2_b32 s65, s63, s65\ns_cmp_eq_u32 s65, 0\ns_cbranch_scc1 {dn}")
        if OPT["psleep"]:
            A(f"s_sleep {OPT['psleep']}")
        A(f"s_sub_u32 s64, s64, 1\ns_cmp_lg_u32 s64, 0\ns_cbranch_scc1 {lp}\n{dn}:")
    elif OPT["pp"]:
        ppoll(8, 88)
    else:
        poll([8], t=120, sleep=OPT["psleep"])
    A(f"{sk}:\ns_barrier")
    stamp(4)

    def dma_one(m):
        if m == 2:
            sk2 = uid("D3")
            A(f"s_cmp_ge_u32 s{S_W}, 4\ns_cbranch_scc1 {sk2}")
        A(f"s_add_u32 m0, s{sDst}, s{sLd+m}\ns_add_u32 s68, s{sG+m}, s{sBlk}")
        dma(vD, WS, 68, "sc1")
        if m == 2:
            A(f"{sk2}:")
            A(f"s_add_u32 s{sBlk}, s{sBlk}, 2048\ns_and_b32 s{sBlk}, s{sBlk}, 16383")
            A(f"s_add_u32 s{sDst}, s{sDst}, {SLOT}\ns_cmp_eq_u32 s{sDst}, {3*SLOT}\ns_cselect_b32 s{sDst}, 0, s{sDst}")

    def dma_stage():
        for m in range(3):
            dma_one(m)

    for x in range(2):
        A(f"buffer_load_dwordx2 {vr(Q[x],2)}, v{84+2*x}, {S(WS)}, s36 offen sc1")
        A(f"buffer_load_dwordx2 {vr(Q[x]+2,2)}, v{84+2*x}, {S(WS)}, s37 offen sc1")
        A(f"buffer_load_dwordx2 {vr(Q[x]+4,2)}, v{85+2*x}, {S(WS)}, s38 offen sc1")
    A("L_ATT_MAIN:")
    dma_stage()
    if OPT["hint"] == 2:
        A(f"s_lshl_b32 s68, s2, 7\ns_add_u32 s68, s68, {F0}")
        flag_store(68)
    A("s_waitcnt vmcnt(0)\ns_barrier")
    stamp(5)
    cstamp(8)
    dma_stage()
    if OPT["hint"] == 4:
        A(f"s_lshl_b32 s68, s2, 7\ns_add_u32 s68, s68, {F0}")
        flag_store(68)
    nf = uid("NF")
    A(f"s_cmp_lg_u32 s35, 0\ns_cbranch_scc1 {nf}")
    A(f"buffer_load_dwordx2 v[120:121], v6, {S(WS)}, 0 offen sc1\nbuffer_load_dwordx2 v[122:123], v7, {S(WS)}, 0 offen sc1\n{nf}:")

    def kreads(kl, off):
        A(f"ds_read_b64 {vr(kl,2)}, v{vK} offset:{off}\nds_read_b64 {vr(kl+2,2)}, v{vK} offset:{off+PS}\nds_read_b64 {vr(kl+4,2)}, v{vK1} offset:{off}")

    def vreads(vl, off):
        for j in range(4):
            A(f"ds_read_b64_tr_b16 {vr(vl+2*j,2)}, v{vV} offset:{off+64*j}")

    kreads(Kf[0], 0)
    vreads(Vf[0], 0)
    A("s_waitcnt lgkmcnt(4)")
    A(f"{MF32} {vr(SS[0],16)}, {vr(Kf[0],4)}, {vr(Q[0],4)}, 0\n{MF8} {vr(SS[0],16)}, {vr(Kf[0]+4,2)}, {vr(Q[0]+4,2)}, {vr(SS[0],16)}")
    A("s_nop 7\ns_nop 2")
    A(".p2align 6\nL_ATT_LOOP:")

    def prof():
        if OPT.get("clkprof"):
            A(f"s_memtime s[60:61]\ns_memrealtime s[62:63]\ns_mov_b32 m0, s{sCnt}\ns_waitcnt lgkmcnt(0)\nv_writelane_b32 v0, s60, m0\ns_add_u32 m0, m0, 16\nv_writelane_b32 v0, s62, m0")
    prof()

    def unit(x, kt):
        s = SS[x]; sn = SS[1 - x]
        nk = kt if x == 0 else kt + 1
        kf = Kf[nk & 1]; qn = Q[1 - x]
        pk = kt - 1 if x == 0 else kt
        vprev = Vf[pk & 1]; v = Vf[kt & 1]
        e = lambda i: A(f"v_exp_f32 v{s+i}, v{s+i}")
        c = lambda i: A(f"v_cvt_pk_bf16_f32 v{P+i}, v{s+2*i}, v{s+2*i+1}")
        if x == 1:
            A("s_waitcnt lgkmcnt(0)")
        A(f"{MF32} {vr(sn,16)}, {vr(kf,4)}, {vr(qn,4)}, 0")
        e(0); e(1); e(2); e(3)
        A(f"{MF8} {vr(sn,16)}, {vr(kf+4,2)}, {vr(qn+4,2)}, {vr(sn,16)}")
        c(0); c(1); e(4); e(5); e(6); e(7)
        A(f"{MF32} {vr(O[1-x],16)}, {vr(vprev+4,4)}, {vr(P+4,4)}, {vr(O[1-x],16)}")
        if x == 0:
            if kt == 3:
                A(f"s_cmp_eq_u32 s{sDel}, {2*SLOT}\ns_cselect_b32 s68, {-2*SLOT & 0xffffffff}, s51\ns_add_u32 s{sDel}, s{sDel}, s68")
                A(f"v_add_u32 v{vK}, s68, v{vK}\nv_add_u32 v{vK1}, s68, v{vK1}\nv_add_u32 v{vV}, s68, v{vV}")
                A("s_waitcnt vmcnt(0)")
                fc = uid("FC")
                A(f"s_cmp_lg_u32 s{sCnt}, s35\ns_cbranch_scc1 {fc}")
                A(f"v_cmp_ne_u64 vcc, s[{S_E}:{S_E+1}], v[120:121]\nv_cmp_ne_u64 s[66:67], s[{S_E}:{S_E+1}], v[122:123]\ns_or_b64 vcc, vcc, s[66:67]\ns_cbranch_vccz {fc}")
                poll([6, 7], t=120)
                A(f"{fc}:\ns_barrier")
                kreads(Kf[0], 0)
                if not OPT["dspread"]:
                    sk3 = uid("ND")
                    A(f"s_cmp_ge_u32 s{sCnt}, 6\ns_cbranch_scc1 {sk3}")
                    dma_stage()
                    A(f"{sk3}:")
                if OPT["g2s"] < 8:
                    sk4 = uid("H2")
                    A(f"s_cmp_lg_u32 s{sCnt}, s47\ns_cbranch_scc1 {sk4}")
                    flag_store(34, t=122, wave0=False)
                    A(f"{sk4}:")
            else:
                kreads(Kf[(kt + 1) & 1], 256 * (kt + 1))
        else:
            vreads(Vf[(kt + 1) & 1], 256 * ((kt + 1) & 3))
        if OPT["dspread"]:
            site = {(1, 3): (0, 0, 5), (0, 0): (1, 1, 6), (1, 0): (2, 1, 6)}.get((x, kt))
            if site:
                m, lo, hi = site
                sk3 = uid("ND")
                if lo:
                    A(f"s_sub_u32 s68, s{sCnt}, 1\ns_cmp_ge_u32 s68, 6\ns_cbranch_scc1 {sk3}")
                else:
                    A(f"s_cmp_ge_u32 s{sCnt}, 6\ns_cbranch_scc1 {sk3}")
                dma_one(m)
                A(f"{sk3}:")
        c(2); c(3); e(8); e(9); e(10); e(11)
        if x == 0:
            A("s_waitcnt lgkmcnt(3)")
        A(f"{MF32} {vr(O[x],16)}, {vr(v,4)}, {vr(P,4)}, {vr(O[x],16)}")
        c(4); c(5); e(12); e(13); e(14); e(15); c(6); c(7)

    for kt in range(4):
        unit(0, kt)
        unit(1, kt)
    A(f"s_add_u32 s{sCnt}, s{sCnt}, 1\ns_cmp_lt_u32 s{sCnt}, 8\ns_cbranch_scc1 L_ATT_LOOP")
    A(f"{MF32} {vr(O[1],16)}, {vr(Vf[1]+4,4)}, {vr(P+4,4)}, {vr(O[1],16)}")
    stamp(6)
    cstamp(9)
    if OPT["g2s"] >= 8:
        flag_store(34, t=122)
    if OPT.get("clkprof"):
        prof()
        A(f"s_lshl_b32 s64, s2, 9\ns_add_u32 s64, s64, {0x80000}\nv_lshlrev_b32 v6, 2, v1\ns_cmp_lg_u32 s{S_W}, 0\ns_cbranch_scc1 L_NOPROF\nbuffer_store_dword v0, v6, {S(WS)}, s64 offen\nL_NOPROF:")
    A(f"s_lshl_b32 s64, s{S_W}, 12\ns_add_u32 s64, s64, {RED}")
    assert RED + 8 * 4096 <= BADW
    A(f"s_xor_b32 s65, s{S_W}, 4\ns_lshl_b32 s65, s65, 12\ns_add_u32 s65, s65, {RED}")
    A(f"v_add_u32 v6, s64, v{vD}\nv_add_u32 v7, s65, v{vD}")
    A(f"s_mul_i32 s64, s{sH}, {5*PL}\ns_lshl_b32 s65, s{sQB}, 11\ns_add_u32 s64, s64, s65\ns_add_u32 s64, s64, {OP}\ns_add_u32 s65, s64, {2*PL}\ns_add_u32 s66, s64, {4*PL}")
    A(f"v_lshrrev_b32 v120, 5, v1\nv_bfe_u32 v121, v1, 4, 1\nv_lshl_add_u32 v121, v121, 1, v120\nv_mul_u32_u24 v121, {PL}, v121\nv_add_u32 v121, v121, v124")
    A(f"v_cmp_gt_u32 vcc, 16, v1\nv_mov_b32 v120, {OOB}\ns_nop 0\nv_cndmask_b32 v120, v120, v124, vcc")
    A("s_waitcnt lgkmcnt(0)\ns_nop 1")
    for g in range(4):
        A(f"ds_write_b128 v6, {vr(O[1]+4*g,4)} offset:{1024*g}")
    A("s_waitcnt lgkmcnt(0)\ns_barrier")
    for g in range(4):
        A(f"ds_read_b128 {vr(52+4*g,4)}, v7 offset:{1024*g}")
    A("s_waitcnt lgkmcnt(0)")
    o = O[0]
    A(f"v_add_f32 v{o+12}, v{o+12}, v{52+12}")
    for i in range(0, 12, 2):
        A(f"v_pk_add_f32 {vr(o+i,2)}, {vr(o+i,2)}, {vr(52+i,2)}")
    A(f"v_rcp_f32 v68, v{o+12}\nv_mov_b32 v70, 0\nv_mov_b32 v71, 0\nv_mov_b32 v69, v68")
    for i in range(0, 12, 2):
        A(f"v_pk_fma_f32 v[70:71], {vr(o+i,2)}, 0, v[70:71] op_sel_hi:[1,0,1]")
    for g in range(3):
        a = o + 4 * g
        A(f"v_pk_mul_f32 {vr(a,2)}, {vr(a,2)}, v[68:69]\nv_pk_mul_f32 {vr(a+2,2)}, {vr(a+2,2)}, v[68:69]")
        A(f"v_cvt_pk_bf16_f32 v{72+2*g}, v{a}, v{a+1}\nv_cvt_pk_bf16_f32 v{73+2*g}, v{a+2}, v{a+3}")
        if g == 1:
            A(f"s_nop 0\nv_permlane16_swap_b32 v72, v74\nv_permlane16_swap_b32 v73, v75")
            A(f"buffer_store_dwordx4 v[72:75], v121, {S(WS)}, s64 offen sc1")
        if g == 2:
            A(f"v_mov_b32 v78, v76\nv_mov_b32 v79, v77\ns_nop 0\nv_permlane16_swap_b32 v76, v78\nv_permlane16_swap_b32 v77, v79")
            A(f"buffer_store_dwordx4 v[76:79], v120, {S(WS)}, s66 offen sc1")
    lo, hi = f2u(2.0 ** -60), f2u(2.0 ** 60)
    if OPT["force_fb"]:
        hi = f2u(2.0 ** -59)
    A(f"v_cmp_u_f32 vcc, v70, v71\nv_mov_b32 v80, {lo}\nv_mov_b32 v81, {hi}")
    A(f"v_cmp_ngt_f32 s[66:67], v{o+12}, v80\ns_or_b64 vcc, vcc, s[66:67]\nv_cmp_nlt_f32 s[66:67], v{o+12}, v81\ns_or_b64 vcc, vcc, s[66:67]")
    nb = uid("NB")
    A(f"v_mov_b32 v80, {BADW}\ns_cbranch_vccz {nb}\nv_mov_b32 v81, 1\nds_write_b32 v80, v81\n{nb}:")
    A(f"s_lshl_b32 s68, s{sQB}, 13\ns_lshl_b32 s69, s{sH}, 3\ns_add_u32 s68, s68, s69\ns_add_u32 s68, s68, {PV4}\nv_lshlrev_b32 v82, 8, v1\nv_mov_b32 v84, s{S_E}\nv_mov_b32 v85, s{S_E+1}")
    A("s_waitcnt vmcnt(0) lgkmcnt(0)\ns_barrier")
    A(f"s_cmp_lg_u32 s{sPass}, 0\ns_cbranch_scc1 L_ATT_PUB")
    A("ds_read_b32 v81, v80\ns_waitcnt lgkmcnt(0)\nv_readfirstlane_b32 s64, v81\ns_cmp_lg_u32 s64, 0\ns_cbranch_scc1 L_ATT_FB")
    A("L_ATT_PUB:")
    A(f"s_cmp_lg_u32 s{S_W}, 0\ns_cbranch_scc1 L_A_DONE\ns_mov_b32 exec_hi, 0\nbuffer_store_dwordx2 v[84:85], v82, {S(WS)}, s68 offen sc1\ns_mov_b64 exec, -1")
    stamp(7)
    A("L_A_DONE:")
    dump_stamps(12, 'A')
    A("s_endpgm")

    A("L_ATT_FB:")
    A(f"s_mov_b32 s{sPass}, 1\ns_mov_b32 s{sCnt}, 0\ns_mov_b32 s{sBlk}, 0")
    A(f"v_mov_b32 v20, 0xff800000\nv_mov_b32 v21, 0xff800000")
    A(f"v_mov_b32 v{vK}, v125\nv_mov_b32 v{vK1}, v126")
    A("L_FB_LOOP:")
    A(f"s_mov_b32 s{sDst}, 0\ns_barrier")
    dma_stage()
    A("s_waitcnt vmcnt(0)\ns_barrier")
    for kt in range(4):
        kreads(Kf[0], 256 * kt)
        A("s_waitcnt lgkmcnt(0)")
        for x in range(2):
            A(f"{MF32} {vr(SS[x],16)}, {vr(Kf[0],4)}, {vr(Q[x],4)}, 0\n{MF8} {vr(SS[x],16)}, {vr(Kf[0]+4,2)}, {vr(Q[x]+4,2)}, {vr(SS[x],16)}")
        A("s_nop 15")
        for x in range(2):
            for i in range(0, 16, 2):
                A(f"v_max3_f32 v{20+x}, v{SS[x]+i}, v{SS[x]+i+1}, v{20+x}")
    A(f"s_add_u32 s{sCnt}, s{sCnt}, 1\ns_cmp_lt_u32 s{sCnt}, 8\ns_cbranch_scc1 L_FB_LOOP")
    for x in range(2):
        A(f"v_mov_b32 v22, v{20+x}\ns_nop 1\nv_permlane32_swap_b32 v{20+x}, v22\nv_max_f32 v{20+x}, v{20+x}, v22")
    A(f"s_barrier\nds_write_b64 v6, v[20:21]\ns_waitcnt lgkmcnt(0)\ns_barrier\nds_read_b64 v[22:23], v7\ns_waitcnt lgkmcnt(0)")
    A("v_max_f32 v20, v20, v23\nv_max_f32 v21, v21, v22")
    A("v_cmp_le_u32 vcc, 32, v1")
    for x in range(2):
        A(f"v_sub_f32 v24, 0, v{20+x}\nv_and_b32 v25, 0xffff0000, v24\nv_sub_f32 v24, v24, v25\nv_and_b32 v26, 0xffff0000, v24\nv_sub_f32 v24, v24, v26")
        A(f"v_lshrrev_b32 v25, 16, v25\nv_or_b32 v25, v25, v26\nv_lshrrev_b32 v24, 16, v24")
        A(f"v_cndmask_b32 v{Q[x]+4}, v{Q[x]+4}, v25, vcc\nv_cndmask_b32 v{Q[x]+5}, v{Q[x]+5}, v24, vcc")
    A(f"s_lshr_b32 s64, s{S_W}, 1\ns_min_u32 s64, s64, 2\ns_mul_i32 s64, s64, {SLOT}\ns_and_b32 s65, s{S_W}, 1\ns_lshl_b32 s65, s65, 10\ns_add_u32 s64, s64, s65\ns_add_u32 s64, s64, {10*PS}")
    A(f"v_add_u32 v24, s64, v{vD}")
    for i in range(4):
        A(f"v_mov_b32 v{120+i}, 0x3f803f80")
    A("s_barrier\nds_write_b128 v24, v[120:123]\ns_waitcnt lgkmcnt(0)")
    main_init()
    A("s_mov_b32 s35, 99\ns_branch L_ATT_MAIN")


def cmul(d, a, b, t):
    A(f"v_pk_mul_f32 {vr(t,2)}, {vr(a,2)}, {vr(b,2)} op_sel:[0,0] op_sel_hi:[1,0]")
    A(f"v_pk_fma_f32 {vr(d,2)}, {vr(a,2)}, {vr(b,2)}, {vr(t,2)} op_sel:[1,1,0] op_sel_hi:[0,1,1] neg_lo:[0,1,0]")


def cfma(d, a, b, c, t):
    A(f"v_pk_fma_f32 {vr(t,2)}, {vr(a,2)}, {vr(b,2)}, {vr(c,2)} op_sel:[0,0,0] op_sel_hi:[1,0,1]")
    A(f"v_pk_fma_f32 {vr(d,2)}, {vr(a,2)}, {vr(b,2)}, {vr(t,2)} op_sel:[1,1,0] op_sel_hi:[0,1,1] neg_lo:[0,1,0]")


def gather4(src, dst):
    for c in range(2):
        A(f"v_mov_b32 v{dst+c}, v{src+c}\nv_mov_b32 v{dst+2+c}, v{src+c}")
    A("s_nop 0")
    for c in range(2):
        A(f"v_permlane16_swap_b32 v{dst+c}, v{dst+2+c}")
    for c in range(4):
        A(f"v_mov_b32 v{dst+4+c}, v{dst+c}")
    for c in range(4):
        A(f"v_permlane32_swap_b32 v{dst+c}, v{dst+4+c}")


def role_b():
    sTC, sNB, sK = 41, 42, 43
    A("L_ROLE_B:")
    if OPT.get("nob"):
        A("s_endpgm")
    if OPT["bprio"]:
        A(f"s_setprio {OPT['bprio']}")
    bhi()
    A(f"s_and_b32 s68, s2, 7\ns_lshr_b32 s69, s2, 3\ns_and_b32 s69, s69, 31")
    A(f"s_and_b32 s{sTC}, s68, 3\ns_lshl_b32 s{sTC}, s{sTC}, 3\ns_and_b32 s64, s69, 7\ns_add_u32 s{sTC}, s{sTC}, s64")
    A(f"s_lshr_b32 s{sNB}, s68, 2\ns_lshl_b32 s{sNB}, s{sNB}, 2\ns_lshr_b32 s64, s69, 3\ns_add_u32 s{sNB}, s{sNB}, s64")
    A(f"s_mul_i32 s37, s{sNB}, 3\ns_add_u32 s37, s37, s{sTC}")
    mod10(37, 37, 64)
    A("s_waitcnt lgkmcnt(0)")
    A(f"s_load_dword s{S_E}, s[{P_WS}:{P_WS+1}], {EPOCH}")
    srd(WS, P_WS, WS_USED)
    MU, CF, MU16, PW, LAM, LAM8 = 2, 4, 6, 8, 10, 12
    A(f"s_min_u32 s36, s{S_W}, 4\ns_lshl_b32 s36, s36, 4\ns_mul_i32 s64, s{sNB}, 80\ns_add_u32 s64, s64, s36")
    A(f"v_and_b32 v20, 15, v1\nv_add_u32 v20, s64, v20\nv_lshlrev_b32 v21, 1, v20")
    srd(R0, P_LRE, 1280); srd(R1, P_LIM, 1280); srd(R2, P_LDT, 1280)
    A(f"buffer_load_ushort v22, v21, {S(R0)}, 0 offen\nbuffer_load_ushort v23, v21, {S(R1)}, 0 offen\nbuffer_load_ushort v24, v21, {S(R2)}, 0 offen")
    A("s_waitcnt vmcnt(0) lgkmcnt(0)")
    epoch_fix()
    LOG2E = f2u(math.log2(math.e))
    A("v_lshlrev_b32 v22, 16, v22\nv_lshlrev_b32 v23, 16, v23\nv_lshlrev_b32 v24, 16, v24")
    A(f"v_mul_f32 v24, {LOG2E}, v24\nv_exp_f32 v24, v24\ns_nop 0\nv_cvt_pk_bf16_f32 v24, v24, v24\nv_lshlrev_b32 v24, 16, v24")
    A(f"v_mul_f32 v25, v24, v22\nv_mul_f32 v26, v24, v23\nv_mul_f32 v25, {LOG2E}, v25\nv_exp_f32 v25, v25")
    A(f"v_mul_f32 v26, 0.15915494, v26\nv_fract_f32 v26, v26\nv_cos_f32 v27, v26\nv_sin_f32 v28, v26\ns_nop 0")
    A(f"v_mul_f32 v{MU}, v25, v27\nv_mul_f32 v28, v25, v28\nv_sub_f32 v{MU+1}, 0, v28")
    A(f"v_add_f32 v27, -1.0, v{MU}")
    A("v_mul_f32 v25, v22, v22\nv_fmac_f32 v25, v23, v23\nv_rcp_f32 v25, v25")
    A("v_mul_f32 v26, v27, v22\nv_fmac_f32 v26, v28, v23\nv_mul_f32 v29, v28, v22\nv_fma_f32 v29, -v27, v23, v29")
    A(f"v_add_f32 v25, v25, v25\nv_mul_f32 v{CF}, v26, v25\nv_mul_f32 v29, v29, v25\nv_sub_f32 v{CF+1}, 0, v29")
    cmul(MU16, MU, MU, 22)
    for _ in range(3):
        cmul(MU16, MU16, MU16, 22)
    cmul(24, MU16, MU16, 22)
    cmul(26, 24, MU16, 22)
    cmul(LAM, 24, 24, 22)
    cmul(LAM8, LAM, LAM, 22)
    cmul(LAM8, LAM8, LAM8, 22)
    cmul(LAM8, LAM8, LAM8, 22)
    A("v_mov_b32 v16, v20\nv_lshrrev_b32 v28, 4, v1")
    A(f"v_cmp_eq_u32 s[96:97], 1, v28\nv_cmp_eq_u32 s[98:99], 2, v28\nv_cmp_eq_u32 s[100:101], 3, v28")
    A(f"v_mov_b32 v{PW}, 1.0\nv_mov_b32 v{PW+1}, 0")
    for src, m in ((MU16, 96), (24, 98), (26, 100)):
        for c in range(2):
            A(f"v_cndmask_b32 v{PW+c}, v{PW+c}, v{src+c}, s[{m}:{m+1}]")
    vS0, vRA, vRB = 14, 18, 22
    srd(R0, P_BX, 2621440); srd(R1, P_BRE, 819200); srd(R2, P_BIM, 819200)
    hoist(sTC, sNB)

    def stouch(ptr, soff, nrows, lines):
        for r in range(nrows):
            for ln in lines:
                A(f"s_load_dword s3, s[{ptr}:{ptr+1}], s{soff} offset:{r*1280 + ln}")

    if OPT["stouch"]:
        if OPT["tdelay"]:
            A(f"s_load_dword s3, s[{P_DSK}:{P_DSK+1}], 0\ns_waitcnt lgkmcnt(0)")
        A(f"s_and_b32 s65, s{sNB}, 3\ns_lshl_b32 s65, s65, 4\ns_lshl_b32 s66, s{sTC}, 6\ns_add_u32 s65, s65, s66\ns_lshl_b32 s66, s{S_W}, 1\ns_add_u32 s65, s65, s66\ns_mul_i32 s65, s65, 1280")
        stouch(P_BX, 65, 1, range(0, 1280, 128))
        A("s_add_u32 s65, s65, 1280\ns_waitcnt lgkmcnt(0)")
        stouch(P_BX, 65, 1, range(0, 1280, 128))
        A(f"s_and_b32 s66, s{sTC}, 7\ns_mul_i32 s67, s66, 10\ns_mul_i32 s68, s{sNB}, 80\ns_add_u32 s67, s67, s68\ns_mul_i32 s67, s67, 1280\ns_mul_i32 s68, s{S_W}, 1664\ns_add_u32 s38, s67, s68\ns_min_u32 s38, s38, {819200 - 13*128}\ns_mov_b32 s39, s67")
        for p in (P_BRE, P_BIM):
            A("s_waitcnt lgkmcnt(0)")
            for i in range(13):
                A(f"s_load_dword s3, s[{p}:{p+1}], s38 offset:{128*i}")
        A("s_waitcnt lgkmcnt(0)")
    A(f"s_lshl_b32 s{sK}, s37, 7")
    A("v_lshrrev_b32 v30, 4, v1\nv_and_b32 v31, 7, v1\nv_xor_b32 v31, v31, v30\nv_lshlrev_b32 v31, 4, v31")
    A(f"v_and_b32 v30, 31, v1\nv_lshlrev_b32 v30, 7, v30\nv_lshrrev_b32 v17, 5, v1\nv_bfe_u32 v29, v1, 1, 3\nv_xor_b32 v29, v17, v29\nv_lshl_add_u32 v{vRA}, v29, 4, v30")

    def touch2():
        if not OPT["ctouch"]:
            return
        t1, t2 = uid("U1"), uid("U2")
        A(f"s_and_b32 s66, s{sTC}, 7\ns_mul_i32 s39, s66, 10\ns_mul_i32 s68, s{sNB}, 80\ns_add_u32 s39, s39, s68\ns_mul_i32 s39, s39, 1280")
        A(f"s_cmp_eq_u32 s{S_W}, 7\ns_cbranch_scc1 {t1}")
        A(f"s_cmp_eq_u32 s{S_W}, 4\ns_cselect_b32 s{R1}, s{P_CRE}, s{P_CIM}\ns_cselect_b32 s{R1+1}, s{P_CRE+1}, s{P_CIM+1}\ns_and_b32 s{R1+1}, s{R1+1}, 0xffff")
        A(f"v_lshlrev_b32 v66, 7, v1\nv_min_u32 v67, 35, v1\nv_lshlrev_b32 v67, 7, v67\nv_add_u32 v67, 8192, v67")
        A(f"buffer_load_dword v64, v66, {S(R1)}, s39 offen\nbuffer_load_dword v65, v67, {S(R1)}, s39 offen\ns_branch {t2}\n{t1}:")
        srd(R1, P_WO, 819200)
        A(f"s_and_b32 s66, s{sTC}, 7\ns_mul_i32 s66, s66, {80*1280}\ns_mul_i32 s67, s{sNB}, 160\ns_add_u32 s66, s66, s67")
        A(f"v_lshrrev_b32 v66, 1, v1\nv_mul_u32_u24 v66, 1280, v66\nv_and_b32 v67, 1, v1\nv_mul_u32_u24 v67, 156, v67\nv_add_u32 v66, v66, v67")
        A(f"buffer_load_dword v64, v66, {S(R1)}, s66 offen\ns_add_u32 s66, s66, {32*1280}\nbuffer_load_dword v65, v66, {S(R1)}, s66 offen")
        A(f"s_add_u32 s66, s66, {16*1280}\nbuffer_load_dword v67, v66, {S(R1)}, s66 offen\n{t2}:")

    def advK():
        A(f"s_add_u32 s{sK}, s{sK}, 128\ns_cmp_eq_u32 s{sK}, 1280\ns_cselect_b32 s{sK}, 0, s{sK}")

    ACC, BF, AF = 32, 64, 80
    SH = 12288
    A(f"s_cmp_ge_u32 s{S_W}, 4\ns_cbranch_scc1 L_G1_AUX")
    A(f"v_lshrrev_b32 v30, 3, v1\nv_add_u32 v30, s64, v30\nv_mul_u32_u24 v30, 1280, v30\nv_add_u32 v{vS0}, v30, v31")
    A(f"v_xor_b32 v{vS0+1}, 64, v{vS0}\nv_add_u32 v{vS0+1}, 10240, v{vS0+1}")
    A(f"s_lshl_b32 s65, s{S_W}, 13\ns_add_u32 s65, s65, {3*SH}")
    for u in range(1, 4):
        A(f"v_xor_b32 v{vRA+u}, {32*u}, v{vRA}")
    for u in range(4):
        A(f"v_add_u32 v{vRB+u}, s65, v{vRA+u}")
    if OPT["hint"]:
        sk = uid("HP")
        A(f"s_cmp_lg_u32 s{S_W}, 0\ns_cbranch_scc1 {sk}")
        A(f"s_sub_u32 s66, s2, 256\ns_lshl_b32 s66, s66, 7\ns_add_u32 s66, s66, {F0}")
        A("s_mov_b32 s67, s65")
        spoll(8, 1, 66)
        A("s_mov_b32 s65, s67")
        A(f"{sk}:\ns_waitcnt vmcnt(0)\ns_barrier")
    else:
        A("s_waitcnt vmcnt(0)")
    stamp(1)
    if not OPT["g1prio"]:
        blo()

    def dmaB(Sx):
        for q in range(4):
            A(f"s_add_u32 m0, s65, {(Sx % 2) * 4096 + q * 1024}\ns_nop 0")
            dma(vS0 + (q & 1), R1 if q < 2 else R2, sK, 'nt' if OPT['ntb'] else '')
        advK()

    def g1_mm(Sx, u, tts=(0, 1)):
        for tt in tts:
            c = "0" if (Sx == 0 and u == 0) else vr(ACC + 16 * tt, 16)
            A(f"{MF32} {vr(ACC+16*tt,16)}, {vr(AF+8*u+4*tt,4)}, {vr(BF+4*u,4)}, {c}")

    dmaB(0); dmaB(1)
    for Sx in range(10):
        fst(Sx, OPT.get('fm') == 1)
        A(f"s_waitcnt vmcnt({4 if Sx < 9 else 0})")
        fst(Sx, OPT.get('fm') == 2)
        for u in range(3):
            A(f"ds_read_b128 {vr(BF+4*u,4)}, v{vRB+u} offset:{(Sx % 2) * 4096}")
        A("s_barrier")
        fst(Sx, OPT.get('fm') == 0)
        if Sx:
            g1_mm(Sx - 1, 3, (0,))
        for u in range(3):
            for tt in range(2):
                A(f"ds_read_b128 {vr(AF+8*u+4*tt,4)}, v{vRA+u} offset:{(Sx % 3) * SH + 4096*tt}")
        if Sx:
            g1_mm(Sx - 1, 3, (1,))
        A(f"ds_read_b128 {vr(BF+12,4)}, v{vRB+3} offset:{(Sx % 2) * 4096}")
        for tt in range(2):
            A(f"ds_read_b128 {vr(AF+24+4*tt,4)}, v{vRA+3} offset:{(Sx % 3) * SH + 4096*tt}")
        A("s_waitcnt lgkmcnt(7)")
        g1_mm(Sx, 0)
        A("s_waitcnt lgkmcnt(5)")
        g1_mm(Sx, 1, (0,))
        g1_mm(Sx, 1, (1,))
        A("s_waitcnt lgkmcnt(3)")
        g1_mm(Sx, 2)
        A("s_waitcnt lgkmcnt(0)")
        if Sx + 2 < 10:
            dmaB(Sx + 2)
    g1_mm(9, 3)
    A("s_barrier")
    A("s_branch L_SCAN")

    A("L_G1_AUX:")
    A(f"s_cmp_eq_u32 s{S_W}, 4\ns_cbranch_scc1 L_G1_LD\ns_cmp_eq_u32 s{S_W}, 7\ns_cbranch_scc1 L_G1_LD")
    A(f"v_lshrrev_b32 v30, 3, v1\nv_add_u32 v30, s64, v30\nv_mul_u32_u24 v30, 1280, v30\nv_add_u32 v{vS0}, v30, v31")
    A(f"v_xor_b32 v{vS0+1}, 64, v{vS0}\nv_add_u32 v{vS0+1}, 10240, v{vS0+1}")
    A(f"s_cmp_eq_u32 s{S_W}, 5\ns_cselect_b32 s{R3}, s{R1}, s{R2}\ns_cselect_b32 s{R3+1}, s{R1+1}, s{R2+1}\ns_mov_b32 s{R3+2}, 819200\ns_mov_b32 s{R3+3}, 0x20000")
    A(f"s_sub_u32 s65, s{S_W}, 5\ns_lshl_b32 s66, s65, 12\ns_lshl_b32 s65, s65, 11")
    for u in range(1, 4):
        A(f"v_xor_b32 v{vRA+u}, {32*u}, v{vRA}")
    for u in range(4):
        A(f"v_add_u32 v{vRB+u}, s66, v{vRA+u}")
    A("s_waitcnt vmcnt(0)")
    if OPT["hint"]:
        A("s_barrier")
    if not OPT["g1prio"]:
        blo()

    def dmaB4(Sx):
        for q in range(2):
            A(f"s_add_u32 m0, s65, {(Sx % 3) * SH + 8192 + q * 1024}\ns_nop 0")
            dma(vS0 + q, R3, sK)
        advK()

    dmaB4(0); dmaB4(1)
    for Sx in range(10):
        A(f"s_waitcnt vmcnt({2 if Sx < 9 else 0})\ns_barrier")
        for u in range(4):
            A(f"ds_read_b128 {vr(BF+4*u,4)}, v{vRA+u} offset:{(Sx % 3) * SH + 8192}")
            A(f"ds_read_b128 {vr(AF+4*u,4)}, v{vRB+u} offset:{(Sx % 3) * SH}")
        for u in range(4):
            A(f"s_waitcnt lgkmcnt({6-2*u})")
            c = "0" if (Sx == 0 and u == 0) else vr(ACC, 16)
            A(f"{MF32} {vr(ACC,16)}, {vr(AF+4*u,4)}, {vr(BF+4*u,4)}, {c}")
        if Sx + 2 < 10:
            dmaB4(Sx + 2)
    bhi()
    A(f"v_lshlrev_b32 v30, 4, v1\ns_cmp_eq_u32 s{S_W}, 5\ns_cbranch_scc1 L_G1_RED\ns_nop 8")
    for g in range(4):
        A(f"ds_write_b128 v30, {vr(ACC+4*g,4)} offset:{SH + 1024*g}")
    A("s_waitcnt lgkmcnt(0)\ns_branch L_G1_AUXEND")

    A("L_G1_LD:")
    A(f"s_cmp_eq_u32 s{S_W}, 7\ns_cselect_b32 s65, 1, 0")
    A(f"v_bfe_u32 v29, v1, 3, 1\nv_lshl_add_u32 v30, v17, 1, v29\nv_lshlrev_b32 v30, 4, v30\nv_bfe_u32 v29, v1, 4, 1\nv_add_u32 v30, v30, v29")
    A(f"s_lshl_b32 s66, s{sTC}, 6\ns_lshl_b32 s67, s65, 3\ns_add_u32 s66, s66, s67\nv_add_u32 v30, s66, v30\nv_mul_u32_u24 v30, 1280, v30\nv_add_u32 v{vS0}, v30, v31")
    A(f"v_xor_b32 v{vS0+1}, 64, v{vS0}\nv_add_u32 v{vS0+1}, 2560, v{vS0+1}\nv_add_u32 v{vS0+2}, 5120, v{vS0}\nv_add_u32 v{vS0+3}, 5120, v{vS0+1}")
    A("s_lshl_b32 s65, s65, 12\ns_waitcnt vmcnt(0)")
    if OPT["hint"]:
        A("s_barrier")

    def dmaX(Sx):
        for q in range(4):
            A(f"s_add_u32 m0, s65, {(Sx % 3) * SH + q * 1024}\ns_nop 0")
            dma(vS0 + q, R0, sK)
        advK()

    dmaX(0); dmaX(1)
    for Sx in range(10):
        A(f"s_waitcnt vmcnt({4 if Sx < 9 else 0})\ns_barrier")
        if Sx + 2 < 10:
            dmaX(Sx + 2)
    A("L_G1_AUXEND:")
    touch2()
    A("s_barrier")
    if OPT.get("bstop") in (1, 2):
        A("s_endpgm")
    A("s_barrier")
    A(f"s_cmp_lg_u32 s{S_W}, 7\ns_cbranch_scc1 L_NOF2")
    A(f"v_and_b32 v89, 31, v1\nv_min_u32 v89, s{sTC}, v89\nv_lshlrev_b32 v89, 3, v89\ns_lshl_b32 s68, s{sNB}, 8\ns_add_u32 s68, s68, {F2}\nv_add_u32 v89, s68, v89")
    poll([89], t=120)
    A("L_NOF2:\ns_barrier\ns_branch L_B_H")
    A("L_G1_RED:\ns_barrier")
    for g in range(4):
        A(f"ds_read_b128 {vr(ACC+16+4*g,4)}, v30 offset:{SH + 1024*g}")
    A("s_waitcnt lgkmcnt(0)")
    A("L_SCAN:")
    if OPT.get("bstop") == 1:
        A("s_endpgm")
    stamp(2)
    bhi()
    A("s_nop 11")
    for i in range(16):
        A(f"v_permlane16_swap_b32 v{ACC+2*i}, v{ACC+2*i+1}")
    for i in range(16):
        u = ACC + 2 * i
        t = 64 + 2 * (i & 1)
        A(f"v_pk_mul_f32 {vr(t,2)}, {vr(u,2)}, {vr(CF,2)} op_sel:[0,0] op_sel_hi:[0,1]")
        A(f"v_pk_fma_f32 {vr(u,2)}, {vr(u,2)}, {vr(CF,2)}, {vr(t,2)} op_sel:[1,1,0] op_sel_hi:[1,0,1] neg_hi:[0,1,0]")
    G, T = 68, 70
    cfma(G, ACC, MU, ACC + 2, T)
    for i in range(2, 16):
        cfma(G, G, MU, ACC + 2 * i, T)
    E4 = 72
    gather4(G, E4)
    PRE = 80
    cfma(82, E4, MU16, E4 + 2, T)
    cfma(84, 82, MU16, E4 + 4, T)
    cfma(86, 84, MU16, E4 + 6, T)
    A(f"v_mov_b32 v{PRE}, 0\nv_mov_b32 v{PRE+1}, 0")
    for src, m in ((E4, 96), (82, 98), (84, 100)):
        for c in range(2):
            A(f"v_cndmask_b32 v{PRE+c}, v{PRE+c}, v{src+c}, s[{m}:{m+1}]")
    A(f"s_mul_i32 s64, s{sNB}, 20480\ns_add_u32 s64, s64, {EB}\ns_add_u32 s{R3}, s{P_WS}, s64\ns_addc_u32 s{R3+1}, s{P_WS+1}, 0\ns_and_b32 s{R3+1}, s{R3+1}, 0xffff\ns_mov_b32 s{R3+2}, 20480\ns_mov_b32 s{R3+3}, 0x20000")
    A(f"s_mul_i32 s64, s{sTC}, 640\ns_mov_b64 exec, 0xffff")
    A(f"buffer_store_dwordx2 v[86:87], v123, {S(R3)}, s64 offen sc1\ns_mov_b64 exec, -1")
    A(f"s_lshl_b32 s68, s{sNB}, 8\ns_lshl_b32 s69, s{sTC}, 3\ns_add_u32 s68, s68, s69\ns_add_u32 s68, s68, {F2}")
    if OPT.get("bstop") == 2:
        A("s_endpgm")
    A("s_waitcnt vmcnt(0)\ns_barrier")
    flag_store(68)
    stamp(3)
    A("s_barrier")
    stamp(4)
    EL = 96
    for u in range(8):
        if u:
            A("v_add_u32 v124, 640, v124")
        A(f"buffer_load_dwordx2 {vr(EL+2*u,2)}, v124, {S(R3)}, 0 offen sc1")
    A("s_waitcnt vmcnt(6)")
    cfma(G, EL, LAM, EL + 2, T)
    for u in range(2, 8):
        A(f"s_waitcnt vmcnt({7-u})")
        cfma(G, G, LAM, EL + 2 * u, T)
    gather4(G, E4)
    cfma(G, E4 + 6, LAM8, E4 + 4, T)
    cfma(G, G, LAM8, E4 + 2, T)
    cfma(G, G, LAM8, E4, T)
    cfma(G, G, PW, PRE, T)
    cfma(ACC, G, MU, ACC, T)
    for i in range(1, 16):
        cfma(ACC + 2 * i, ACC + 2 * i - 2, MU, ACC + 2 * i, T)
    PK = 64
    A(f"s_mul_i32 s64, s{sTC}, 163840\ns_add_u32 s64, s64, {HB}")
    for tt in range(2):
        for c in range(2):
            d = PK + 8 * tt + 4 * c
            for m in range(4):
                a = ACC + 16 * tt + 4 * m + c
                A(f"v_cvt_pk_bf16_f32 v{d+m}, v{a}, v{a+2}")
            A(f"s_add_u32 s65, s64, {tt*20480 + c*10240}")
            A(f"buffer_store_dwordx4 {vr(d,4)}, v125, {S(WS)}, s65 offen sc1")
    A("s_waitcnt vmcnt(0)")
    A("L_B_H:")
    A(f"s_lshl_b32 s68, s{sTC}, 7\ns_lshl_b32 s69, s{sNB}, 3\ns_add_u32 s68, s68, s69\ns_add_u32 s68, s68, {F3}")
    A("s_barrier")
    flag_store(68)
    stamp(5)
    if OPT.get("bstop") == 3:
        A("s_endpgm")
    A(f"s_cmp_ge_u32 s{S_W}, 4\ns_cbranch_scc1 L_B_SMALL")
    tail_gemms(True)
    A("L_B_SMALL:")
    tail_gemms(False)


def hoist(sTC, sNB):
    A(f"v_and_b32 v26, 15, v1\nv_add_u32 v123, s36, v26\nv_lshlrev_b32 v123, 3, v123")
    A(f"v_lshrrev_b32 v27, 4, v1\nv_mul_u32_u24 v28, {8*640}, v27\ns_mul_i32 s65, s{sTC}, 640\ns_sub_u32 s65, s65, {8*640}\nv_sub_u32 v28, s65, v28\nv_add_u32 v124, v123, v28")
    A(f"v_mul_u32_u24 v28, 40960, v27\nv_lshl_add_u32 v125, v16, 4, v28")
    A(f"s_lshl_b32 s65, s{S_W}, 6\nv_add_u32 v28, s65, v1\nv_mul_u32_u24 v29, 6554, v28\nv_lshrrev_b32 v29, 16, v29\nv_mul_u32_u24 v30, 10, v29\nv_sub_u32 v30, v28, v30")
    A(f"v_and_b32 v28, 0x78, v29\nv_and_b32 v31, 1, v29\nv_lshl_add_u32 v28, v31, 2, v28\nv_bfe_u32 v31, v29, 1, 2\nv_add_u32 v28, v28, v31")
    A(f"v_mul_u32_u24 v28, 1280, v28\nv_lshl_add_u32 v28, v30, 4, v28\ns_mul_i32 s65, s{sNB}, 160\nv_add_u32 v117, s65, v28")
    A(f"v_lshrrev_b32 v28, 5, v1\nv_mul_u32_u24 v28, {PL}, v28\nv_and_b32 v29, 31, v1\nv_lshlrev_b32 v29, 4, v29\ns_and_b32 s65, s{S_W}, 1\ns_lshl_b32 s65, s65, 7\nv_xor_b32 v29, s65, v29\nv_add_u32 v119, v28, v29")
    A("v_bfe_u32 v30, v1, 2, 2\nv_and_b32 v31, 3, v1")
    sm, dn = uid("HS"), uid("HD")
    A(f"s_cmp_ge_u32 s{S_W}, 4\ns_cbranch_scc1 {sm}")
    for big in (True, False):
        if big:
            A(f"v_lshrrev_b32 v27, 5, v1\nv_and_b32 v26, 31, v1\ns_lshr_b32 s65, s{S_W}, 1\ns_and_b32 s66, s{S_W}, 1")
            A(f"s_lshl_b32 s67, s65, 5\ns_lshl_b32 s68, s66, 5")
            A(f"s_lshl_b32 s69, s65, 2\nv_bfe_u32 v28, v1, 4, 1\nv_lshlrev_b32 v28, 1, v28\nv_lshrrev_b32 v29, 1, v31\nv_add3_u32 v28, v28, v29, s69")
        else:
            A(f"{sm}:\ns_sub_u32 s65, s{S_W}, 4\ns_lshl_b32 s67, s65, 4\ns_mov_b32 s68, 64")
            A(f"s_lshl_b32 s69, s65, 1\nv_lshrrev_b32 v28, 1, v31\nv_add_u32 v28, s69, v28")
        A(f"v_mul_u32_u24 v28, 1088, v28\nv_lshl_add_u32 v29, v27, 3, v30\nv_lshl_add_u32 v28, v29, 4, v28\nv_and_b32 v29, 1, v31\nv_lshl_add_u32 v112, v29, 3, v28")
        A(f"v_add_u32 v28, s68, v26\nv_lshlrev_b32 v28, 7, v28\nv_add_u32 v28, 8704, v28\nv_bfe_u32 v29, v26, 1, 3\nv_xor_b32 v29, v29, v27\nv_lshl_add_u32 v113, v29, 4, v28")
        A(f"s_lshl_b32 s69, s{sTC}, 6\ns_add_u32 s69, s69, s67\nv_lshl_add_u32 v28, v27, 2, s69\ns_mul_i32 s69, s{sNB}, 80\ns_add_u32 s69, s69, s68\nv_add_u32 v29, s69, v26")
        A("v_mul_u32_u24 v114, 1280, v28\nv_lshl_add_u32 v114, v29, 1, v114\nv_mul_u32_u24 v115, 5120, v28\nv_lshl_add_u32 v115, v29, 2, v115\nv_lshlrev_b32 v126, 1, v29")
        A("v_lshlrev_b32 v28, 1, v30\nv_lshl_add_u32 v28, v27, 3, v28\nv_mul_u32_u24 v28, 160, v28\nv_lshl_add_u32 v28, v31, 3, v28")
        if big:
            A("v_bfe_u32 v29, v1, 4, 1\nv_lshl_add_u32 v28, v29, 5, v28\ns_lshl_b32 s69, s66, 6\nv_add_u32 v116, s69, v28")
            A("v_add_u32 v28, s67, v26\nv_lshlrev_b32 v28, 3, v28\nv_lshlrev_b32 v29, 7, v27\nv_xor_b32 v28, v28, v29\nv_lshl_add_u32 v28, v27, 10, v28\ns_mul_i32 s69, s65, 40960\nv_add_u32 v118, s69, v28")
            A(f"v_lshlrev_b32 v122, 4, v1\nv_xor_b32 v127, 32, v113\nv_xor_b32 v26, 64, v113\nv_xor_b32 v27, 96, v113\nv_mov_b32 v28, 0\ns_branch {dn}")
        else:
            A("v_add_u32 v116, 128, v28")
            A("v_add_u32 v28, s67, v26\nv_lshlrev_b32 v28, 3, v28\nv_and_b32 v29, 1, v27\nv_lshlrev_b32 v29, 7, v29\nv_xor_b32 v28, v28, v29\nv_lshl_add_u32 v118, v27, 10, v28")
            A(f"v_lshrrev_b32 v28, 3, v1\ns_mul_i32 s69, s{sNB}, 80\ns_lshl_b32 s66, s65, 3\ns_add_u32 s69, s69, s66\nv_add_u32 v28, s69, v28\nv_mul_u32_u24 v28, 1280, v28")
            A(f"v_and_b32 v29, 7, v1\nv_xor_b32 v29, v29, v27\ns_and_b32 s69, s65, 1\ns_lshl_b32 s69, s69, 2\nv_xor_b32 v29, s69, v29\nv_lshl_add_u32 v122, v29, 4, v28")
            A("v_xor_b32 v127, 64, v113\nv_add_u32 v26, 40960, v122\nv_add_u32 v27, 81920, v122\nv_add_u32 v28, 40960, v118")
    A(f"{dn}:")


def tail_gemms(big):
    sTC, sNB, sK = 41, 42, 43
    nacc = 16 if big else 4
    ACC = 32
    WF = 48
    MF = MF32 if big else MF16
    rows = [8 * (i >> 2) + (i & 3) for i in range(nacc)]
    vA, vOut = 112, 115
    vBs = [113, 127, 26, 27]
    vSs = [122, 26, 27]
    srd(R3, P_DSK, 1280)
    A(f"buffer_load_ushort v2, v126, {S(R3)}, 0 offen")
    for i in range(nacc):
        A(f"s_mov_b32 s64, {rows[i]*1280}\nbuffer_load_ushort v{3+i}, v114, {S(R0)}, s64 offen")
    SL = 18944
    srd(R1, P_CRE, 819200); srd(R2, P_CIM, 819200)
    if big:
        A(f"s_mul_i32 s44, s{sTC}, 163840\ns_mul_i32 s64, s{S_W}, 40960\ns_add_u32 s44, s44, s64\ns_add_u32 s44, s44, {HB}")
        A(f"s_mul_i32 s46, s{S_W}, 2176\ns_lshl_b32 s{sK}, s37, 10")
        A(f"s_lshl_b32 s45, s{sTC}, 7\ns_add_u32 s45, s45, {F3}")
        A(f"s_and_b32 s47, s{sNB}, 3\ns_mul_i32 s47, s47, 40960\ns_mul_i32 s66, s{S_W}, 30720\ns_sub_u32 s47, s47, s66\ns_add_u32 s47, s47, s44")
        A("v_and_b32 v20, 7, v1\nv_lshl_add_u32 v20, v20, 3, s45")
        if OPT["htouch"]:
            A(f"v_lshlrev_b32 v21, 7, v1\nv_min_u32 v22, 15, v1\nv_lshlrev_b32 v22, 7, v22\nv_add_u32 v22, 8192, v22")
        poll([20], t=120)
        stamp(6)
        if OPT["htouch"]:
            A(f"buffer_load_dword v23, v21, {S(WS)}, s47 offen sc1\nbuffer_load_dword v24, v22, {S(WS)}, s47 offen sc1")
    else:
        A(f"s_sub_u32 s95, s{S_W}, 4\ns_lshl_b32 s46, s95, 10\ns_lshl_b32 s{sK}, s37, 7")
    if not OPT["g2prio"]:
        blo()

    def g2_dma(Sx):
        sb = (Sx % 4) * SL
        if big:
            for i in range(2):
                A(f"s_add_u32 m0, s46, {sb + 1088*i}\ns_add_u32 s64, s44, s{sK}")
                if i or Sx >= 10:
                    A(f"s_add_u32 s64, s64, {20480*i + (10240 if Sx >= 10 else 0)}")
                dma(vSs[0], WS, 64, "sc1")
            A(f"s_add_u32 s{sK}, s{sK}, 1024\ns_cmp_eq_u32 s{sK}, 10240\ns_cselect_b32 s{sK}, 0, s{sK}")
        else:
            for m in range(3):
                if m == 2:
                    sk = uid("SD")
                    A(f"s_cmp_ge_u32 s95, 2\ns_cbranch_scc1 {sk}")
                A(f"s_add_u32 m0, s46, {sb + 8704 + 4096*m}\ns_nop 0")
                dma(vSs[m], R1 if Sx < 10 else R2, sK)
            A(f"{sk}:")
            A(f"s_add_u32 s{sK}, s{sK}, 128\ns_cmp_eq_u32 s{sK}, 1280\ns_cselect_b32 s{sK}, 0, s{sK}")

    for Sx in range(3):
        g2_dma(Sx)
    if big and OPT["g2s"] > 0:
        sk = uid("G2W")
        A(f"s_cmp_lg_u32 s{S_W}, 0\ns_cbranch_scc1 {sk}\ns_sub_u32 s66, s2, 256\ns_lshl_b32 s66, s66, 7\ns_add_u32 s66, s66, {F0B}")
        spoll(8, 1, 66)
        A(f"{sk}:")
    nu = 4 if big else 2
    FR = [48, 48 + 8 * nu]

    def mm(Sx, u):
        if Sx >= 0:
            f = FR[Sx & 1]
            c = "0" if (Sx == 0 and u == 0) else vr(ACC, nacc)
            A(f"{MF} {vr(ACC,nacc)}, {vr(f+8*u,4)}, {vr(f+8*u+4,4)}, {c}")

    for Sx in range(20):
        infl = min(Sx + 3, 20) - Sx - 1
        f, sb = FR[Sx & 1], (Sx % 4) * SL
        A(f"s_waitcnt vmcnt({2*infl})\ns_barrier")
        if Sx == 0:
            stamp(11)
        mm(Sx - 1, 0)
        for u in range(nu):
            for j in range(2):
                A(f"ds_read_b64_tr_b16 {vr(f+8*u+2*j,2)}, v{vA} offset:{sb + (256 if big else 512)*u + 64*j}")
            A(f"ds_read_b128 {vr(f+8*u+4,4)}, v{vBs[u]} offset:{sb}")
        for u in range(1, nu):
            mm(Sx - 1, u)
        if Sx + 3 < 20:
            g2_dma(Sx + 3)
        A("s_waitcnt lgkmcnt(0)")
    for u in range(nu):
        mm(19, u)
    A("s_barrier")
    stamp(7)
    bhi()
    srd(R2, P_OUT, 10485760)
    srd(R1, P_WO, 819200)
    A(f"s_lshl_b32 s46, s{S_W}, 10\ns_nop 1")

    def wo_dma(r, vWs):
        sk = uid("WD")
        if not big:
            A(f"s_cmp_ge_u32 s{S_W}, 5\ns_cbranch_scc1 {sk}")
        for m in range(10):
            A(f"s_add_u32 m0, s46, {5120*m}\ns_mov_b32 s64, {(320*r + 32*m) * 1280}")
            dma(vWs, R1, 64)
        A(f"{sk}:")

    def store_out(coloff, vo):
        for i in range(nacc):
            A(f"s_mov_b32 s64, {rows[i]*5120}\nbuffer_store_dword v{ACC+i}, v{vo}, {S(R2)}, s64 offen offset:{coloff} {['', 'nt', 'sc1', 'sc1 nt', 'sc0 sc1'][OPT['sto']]}")

    for i in range(nacc):
        A(f"v_dot2c_f32_bf16 v{ACC+i}, v{3+i}, v2")
    wo_dma(0, 117)
    A("s_nop 2")
    store_out(2560, vOut)
    vOut, vO, vOs, vW, vWs = 5, 6, (7 if big else 10), 2, 3
    A(f"v_mov_b32 v4, v122\nv_mov_b32 v{vOut}, v115\nv_mov_b32 v{vO}, v118\nv_mov_b32 v{vOs}, v119\nv_mov_b32 v{vW}, v116\nv_mov_b32 v{vWs}, v117")
    if not big:
        A("v_mov_b32 v7, v28")
    A(f"s_mul_i32 s44, s{S_W}, {2*PL}\ns_lshl_b32 s64, s{sTC}, 9\ns_add_u32 s44, s44, s64\ns_add_u32 s44, s44, {OP}")
    if big:
        A(f"s_lshl_b32 s45, s{sTC}, 3\ns_add_u32 s45, s45, s{sNB}\ns_lshl_b32 s45, s45, 8\ns_lshl_b32 s64, s{S_W}, 6\ns_add_u32 s45, s45, s64\ns_add_u32 s45, s45, {PV4}")
    for r in range(2):
        if r:
            wo_dma(1, vWs)
        A("s_waitcnt vmcnt(0)\ns_barrier")
        if big:
            sk2 = uid("WR")
            A(f"s_lshr_b32 s64, s{S_W}, 1\ns_cmp_lg_u32 s64, {r}\ns_cbranch_scc1 {sk2}")
            for u in range(20):
                for j in range(2):
                    A(f"ds_read_b64_tr_b16 {vr(WF+4*u+2*j,2)}, v{vW} offset:{2560*u + 160*j}")
            A(f"{sk2}:")
        else:
            for U in range(10):
                for j in range(2):
                    A(f"ds_read_b64_tr_b16 {vr(WF+40*r+4*U+2*j,2)}, v{vW} offset:{5120*U + 160*j}")
        A("s_waitcnt lgkmcnt(0)")
        if r == 0:
            A("s_barrier")
    ACC = 16 if big else 12
    if big:
        spoll(8, 8, 45)
    A("s_barrier")
    stamp(8)
    for i in range(5):
        for st in (i, 5 + i):
            A(f"s_add_u32 m0, s46, {8192*st}\ns_add_u32 s64, s44, {16*PL*st}")
            dma(vOs, WS, 64, "sc1")
    if big:
        ne = uid("NE")
        A(f"v_xor_b32 v1, 256, v{vO}")
        A(f"s_cmp_lg_u32 s{sTC}, 31\ns_cbranch_scc1 {ne}\ns_or_b32 s64, s{sNB}, s{S_W}\ns_cmp_lg_u32 s64, 0\ns_cbranch_scc1 {ne}")
        A(f"s_waitcnt vmcnt(0)\nv_mov_b32 v8, s{S_E}\ns_mov_b64 exec, 1\nbuffer_store_dword v8, off, {S(WS)}, 0 offset:{EPOCH} sc1\ns_mov_b64 exec, -1\ns_waitcnt vmcnt(0)\n{ne}:")
        free = [8, 12]
        loc = {}
        order = []

        def issue(n, t):
            f = free.pop(0)
            loc[(n, t)] = f
            i, u = n >> 2, n & 3
            for j in range(2):
                A(f"ds_read_b64 {vr(f+2*j,2)}, v{vO if t == 0 else 1} offset:{8192*i + 2048*u + 512*j}")
            order.append((n, t))

        todo = [(n, t) for n in range(20) for t in range(2)]
        nxt = 0
        for k, (n, t) in enumerate(todo):
            if (n & 3) == 0 and t == 0:
                A(f"s_waitcnt vmcnt({8 - 2*(n >> 2)})\ns_barrier")
            lim = 8 * ((n >> 2) + 1)
            while nxt < lim and free and nxt - k < 6:
                issue(*todo[nxt]); nxt += 1
            pend = len(order) - 1 - order.index((n, t))
            A(f"s_waitcnt lgkmcnt({2*pend})")
            c = "0" if n == 0 else vr(ACC + 16 * t, 16)
            A(f"{MF} {vr(ACC+16*t,16)}, {vr(loc[(n,t)],4)}, {vr(WF+4*n,4)}, {c}")
            free.append(loc[(n, t)])
            if t == 1:
                free.append(WF + 4 * n)
        A(f"s_lshl_b32 s64, s{S_W}, 12\ns_xor_b32 s65, s64, 8192\nv_add_u32 v0, s64, v4\nv_add_u32 v1, s65, v4\ns_nop 7")
        for g in range(4):
            A(f"ds_write_b128 v0, {vr(ACC+16+4*g,4)} offset:{1024*g}")
        A("s_waitcnt lgkmcnt(0)\ns_barrier")
        for g in range(4):
            A(f"ds_read_b128 {vr(48+4*g,4)}, v1 offset:{1024*g}")
        for g in range(4):
            A(f"s_waitcnt lgkmcnt({3-g})")
            for c in range(2):
                A(f"v_pk_add_f32 {vr(ACC+4*g+2*c,2)}, {vr(ACC+4*g+2*c,2)}, {vr(48+4*g+2*c,2)}")
    else:
        for i in range(5):
            A(f"s_waitcnt vmcnt({8 - 2*i})\ns_barrier")
            f = 16 + 16 * (i & 1)
            for h in range(2):
                for U in range(2):
                    for j in range(2):
                        A(f"ds_read_b64 {vr(f+8*h+4*U+2*j,2)}, v{vO+h} offset:{8192*i + 4096*U + 512*j}")
            for h in range(2):
                for U in range(2):
                    A(f"s_waitcnt lgkmcnt({6 - 4*h - 2*U})")
                    c = "0" if (i == 0 and h == 0 and U == 0) else vr(ACC, 4)
                    A(f"{MF} {vr(ACC,4)}, {vr(f+8*h+4*U,4)}, {vr(WF+40*h+8*i+4*U,4)}, {c}")
        A("s_barrier\ns_nop 7")
    store_out(0, vOut)
    stamp(9)
    if OPT["stamps"]:
        A("s_waitcnt vmcnt(0)")
        stamp(10)
    dump_stamps(12)
    A("s_endpgm")


def build():
    hdr = open("cdna_kernels/" + NAME + ".s.ref").read().split("\n")
    out = [l for l in hdr if l.startswith(";") and "@launch" not in l]
    out.append("; @launch grid=(512,1,1) block=(512,1,1) lds=81920")
    out.append('.amdgcn_target "amdgcn-amd-amdhsa--gfx950"\n.text')
    out.append(f".globl {NAME}_kernel\n.p2align 8\n.type {NAME}_kernel,@function\n{NAME}_kernel:")
    prologue()
    if OPT.get("noa"):
        A("s_endpgm")
    if OPT["aprio"]:
        A(f"s_setprio {OPT['aprio']}")
    qkv()
    attention()
    role_b()
    A("L_END:\ns_endpgm")
    for l in L:
        out.append(l if l.endswith(":") or l.startswith(".") else "    " + l)
    out.append(f""".section .rodata,"a"
.p2align 6
.amdhsa_kernel {NAME}_kernel
  .amdhsa_next_free_vgpr 128
  .amdhsa_next_free_sgpr 102
  .amdhsa_accum_offset 128
  .amdhsa_group_segment_fixed_size 0
  .amdhsa_kernarg_size 120
  .amdhsa_user_sgpr_count 2
  .amdhsa_user_sgpr_kernarg_segment_ptr 1
  .amdhsa_system_sgpr_workgroup_id_x 1
.end_amdhsa_kernel""")
    return "\n".join(out) + "\n"


if __name__ == "__main__":
    txt = build()
    open(sys.argv[1], "w").write(txt)
    sys.path.insert(0, "gen")
    import hazard
    e = hazard.check(txt)
    print("\n".join(e) if e else "hazard check: clean")
```

```python
import sys, struct, math

NAME = "concat_heads__softmax_full_mha__ssm_conv_s5__prompt"

OPT = dict(stamps=0, spin=400000, hint=2, hint_step=16, plpad=0, aprio=0, bprio=0, force_fb=0, pace1=0, pace2=0, dynprio=1, touch=0, st4=1, tdelay=1, qsplit=0, ntx=0, ntw=0, ntb=0, ntc=0, sto=2, psleep=0, pdelay=0, qpro=2, g2s=7, g2q=6, pw=1, pp=1, sp1=1, qrot=2, brot=1, sprio=3, nobar=0, ptouch=0, late=1, sty=2, remap=1, defer=0, wsb=0, psl=2, tog=1, lsig=2, itouch=0, g1prio=0, urg=4, rot=0, g2prio=0, yprio=0, dspread=1, stouch=0, htouch=1, ctouch=1)
for a in sys.argv[2:]:
    k, v = a.split("=")
    OPT[k] = int(v)

PL = 16384 + OPT["plpad"]
EPOCH = 0
F1 = 0x1000
F1S = 128
F2 = 0x2000
F3 = 0x3000
F4 = 0x4000
F0 = 0x8000
F0B = 0x10000
PV1 = 0xA0000
PV4 = 0xB0000
STAMP = 0x20000
EB = 0x48000
WSB = OPT["wsb"] << 20
QKVP = 0x100000 + WSB
OP = 0xA00000 + WSB
HB = 0xD00000 + WSB
WS_USED = 0x1300000 + WSB
assert QKVP + 480 * PL <= OP and OP + 160 * PL <= HB
OOB = 0x80000000

L = []
AUX = ['', 'nt', 'sc1', 'sc1 nt', 'sc0 sc1']


def A(s):
    for ln in s.strip("\n").split("\n"):
        L.append(ln.strip() if not ln.strip().endswith(":") else ln.strip())


def f2u(x):
    return struct.unpack("<I", struct.pack("<f", x))[0]


def vr(a, n):
    return f"v[{a}:{a+n-1}]" if n > 1 else f"v{a}"


P_AX, P_WQKV, P_WO, P_BX, P_LRE, P_LIM, P_BRE, P_BIM, P_CRE, P_CIM, P_LDT, P_DSK, P_OUT, P_DBG = range(8, 36, 2)
P_WS = 4
S_E = 6
S_W = 40
R0, R1, R2, WS, R3 = 44, 48, 52, 56, 60
ST0 = 70
_uid = [0]


def uid(p):
    _uid[0] += 1
    return f"{p}_{_uid[0]}"


def srd(r, p, n):
    A(f"s_mov_b32 s{r}, s{p}\ns_and_b32 s{r+1}, s{p+1}, 0xffff\ns_mov_b32 s{r+2}, {n}\ns_mov_b32 s{r+3}, 0x20000")


def S(r):
    return f"s[{r}:{r+3}]"


def stamp(k):
    if OPT["stamps"] and not OPT.get("fine"):
        A(f"s_memrealtime s[{ST0+2*k}:{ST0+2*k+1}]")


def cstamp(k):
    if OPT["stamps"]:
        A(f"s_memtime s[{ST0+2*k}:{ST0+2*k+1}]")


def fst(k, cond=True):
    if OPT.get("fine") and cond:
        A(f"s_memtime s[{ST0+2*k}:{ST0+2*k+1}]")


def dump_stamps(n, role='B'):
    if not OPT["stamps"]:
        return
    sk = uid("SK")
    A(f"s_waitcnt lgkmcnt(0)\ns_cmp_lg_u32 s{S_W}, {OPT.get('fw', 0)}\ns_cbranch_scc1 {sk}")
    if OPT.get("dbg"):
        A(f"s_load_dwordx2 s[64:65], s[0:1], 104\ns_waitcnt lgkmcnt(0)\ns_mov_b32 s{R3}, s64\ns_and_b32 s{R3+1}, s65, 0xffff\ns_mov_b32 s{R3+2}, 256\ns_mov_b32 s{R3+3}, 0x20000\ns_mov_b64 exec, 1")
        lst = [(0, 0)] + ([(k, k) for k in range(1, 8)] if role == "A" else list(zip((1, 2, 3, 5, 6, 7, 8, 10), range(8, 16))))
        for k, wd in lst:
            A(f"s_not_b32 s64, s{ST0}\nv_mov_b32 v120, s64" if k == 0 else f"v_mov_b32 v120, s{ST0+2*k}")
            if role == "A" and k in (1, 2):
                A(f"s_cmp_ge_u32 s2, 240\ns_cselect_b32 s64, 0, s{ST0+2*k}\nv_mov_b32 v120, s64")
            A(f"buffer_atomic_umax v120, off, {S(R3)}, 0 offset:{4*wd}\ns_waitcnt vmcnt(0)")
        A(f"s_mov_b64 exec, -1\n{sk}:")
        return
    A(f"s_lshl_b32 s64, s2, 7\ns_add_u32 s64, s64, {STAMP}\ns_mov_b64 exec, 1")
    for k in range(n):
        A(f"v_mov_b32 v120, s{ST0+2*k}\nv_mov_b32 v121, s{ST0+2*k+1}")
        A(f"buffer_store_dwordx2 v[120:121], off, {S(WS)}, s64 offset:{8*k}")
        A("s_waitcnt vmcnt(0)")
    A(f"s_mov_b64 exec, -1\n{sk}:")


def flag_store(soff, t=120, wave0=True):
    sk = uid("FS")
    if wave0:
        A(f"s_cmp_lg_u32 s{S_W}, 0\ns_cbranch_scc1 {sk}")
    A(f"v_mov_b32 v{t}, s{S_E}\nv_mov_b32 v{t+1}, s{S_E+1}\ns_mov_b64 exec, 1")
    A(f"buffer_store_dwordx2 v[{t}:{t+1}], off, {S(WS)}, s{soff} sc1")
    A("s_mov_b64 exec, -1")
    if wave0:
        A(f"{sk}:")


def poll(vaddrs, t=120, sleep=0):
    lp, dn = uid("PL"), uid("PD")
    A(f"s_mov_b32 s64, {OPT['spin']}\n{lp}:")
    for i, va in enumerate(vaddrs):
        A(f"buffer_load_dwordx2 v[{t+2*i}:{t+2*i+1}], v{va}, {S(WS)}, 0 offen sc1")
    A("s_waitcnt vmcnt(0)")
    for i, va in enumerate(vaddrs):
        if i == 0:
            A(f"v_cmp_ne_u64 vcc, s[{S_E}:{S_E+1}], v[{t}:{t+1}]")
        else:
            A(f"v_cmp_ne_u64 s[66:67], s[{S_E}:{S_E+1}], v[{t+2*i}:{t+2*i+1}]\ns_or_b64 vcc, vcc, s[66:67]")
    A(f"s_cbranch_vccz {dn}")
    if sleep:
        A(f"s_sleep {sleep}")
    A(f"s_sub_u32 s64, s64, 1\ns_cmp_lg_u32 s64, 0\ns_cbranch_scc1 {lp}\n{dn}:")


def ppoll(va, t):
    lp, dn = uid("PP"), uid("PQ")
    ld = lambda i: A(f"buffer_load_dwordx2 v[{t+2*i}:{t+2*i+1}], v{va}, {S(WS)}, 0 offen sc1")
    A(f"s_mov_b32 s64, {OPT['spin']}")
    ld(0); A("s_sleep 1"); ld(1); A("s_sleep 1"); ld(2)
    A(f"{lp}:")
    for i in range(3):
        A(f"s_waitcnt vmcnt(2)\nv_cmp_ne_u64 vcc, s[{S_E}:{S_E+1}], v[{t+2*i}:{t+2*i+1}]\ns_cbranch_vccz {dn}")
        ld(i)
    A(f"s_sub_u32 s64, s64, 1\ns_cmp_lg_u32 s64, 0\ns_cbranch_scc1 {lp}\n{dn}:")


def spoll(dst, nflags, soff, need=None):
    lp, dn = uid("SP"), uid("SD")
    A(f"s_mov_b32 s64, {OPT['spin']}\n{lp}:")
    if nflags == 1:
        A(f"s_load_dwordx2 s[{dst}:{dst+1}], s[{P_WS}:{P_WS+1}], s{soff} glc")
    else:
        for b in range(nflags // 8):
            A(f"s_load_dwordx16 s[{dst+16*b}:{dst+16*b+15}], s[{P_WS}:{P_WS+1}], s{soff} offset:{64*b} glc")
    A("s_mov_b32 s65, 0\ns_waitcnt lgkmcnt(0)")
    for i in range(nflags):
        A(f"s_cmp_eq_u64 s[{dst+2*i}:{dst+2*i+1}], s[{S_E}:{S_E+1}]\ns_addc_u32 s65, s65, s65")
    if need is None:
        A(f"s_cmp_eq_u32 s65, {(1 << nflags) - 1}")
    else:
        A(f"s_andn2_b32 s65, s{need}, s65\ns_cmp_eq_u32 s65, 0")
    A(f"s_cbranch_scc1 {dn}")
    A("s_sleep 2")
    A(f"s_sub_u32 s64, s64, 1\ns_cmp_lg_u32 s64, 0\ns_cbranch_scc1 {lp}\n{dn}:")


def bhi():
    if OPT["dynprio"]:
        A("s_setprio 3")


def blo():
    if OPT["dynprio"]:
        A("s_setprio 0")


def mod10(sd, ssrc, tmp):
    A(f"s_mul_i32 s{tmp}, s{ssrc}, 205\ns_lshr_b32 s{tmp}, s{tmp}, 11\ns_mul_i32 s{tmp}, s{tmp}, 10\ns_sub_u32 s{sd}, s{ssrc}, s{tmp}")


def dma(vaddr, rsrc, soff, aux=""):
    A(f"buffer_load_dwordx4 v{vaddr}, {S(rsrc)}, s{soff} offen {aux} lds".replace("  ", " "))


MF32 = "v_mfma_f32_32x32x16_bf16"
MF8 = "v_mfma_f32_32x32x8_bf16"
MF16 = "v_mfma_f32_16x16x32_bf16"


def prologue():
    A(f"s_cmp_ge_u32 s2, 512\ns_cbranch_scc1 L_END")
    stamp(0)
    A("s_load_dwordx16 s[8:23], s[0:1], 0\ns_load_dwordx8 s[24:31], s[0:1], 64\ns_load_dwordx4 s[32:35], s[0:1], 96\ns_load_dwordx2 s[4:5], s[0:1], 112")
    A(f"v_lshrrev_b32 v2, 6, v0\nv_and_b32 v1, 63, v0\nv_readfirstlane_b32 s{S_W}, v2")
    A("s_cmp_ge_u32 s2, 256\ns_cbranch_scc1 L_ROLE_B")


def epoch_fix():
    A(f"s_mul_i32 s{S_E}, s{S_E}, 0x9E3779B1\ns_add_u32 s{S_E}, s{S_E}, 0x7F4A7C15\ns_xor_b32 s{S_E+1}, s{S_E}, 0x5bd1e995")


def qkv():
    sRB, sCB, sKX, sKW, sMX, sMW, sT = 41, 42, 43, 64, 65, 66, 67
    vX0, vX1, vWs, vWr, vXr = 2, 3, 4, 5, 6
    ACC = 32
    FR = [64, 88]
    A(f"s_and_b32 s68, s2, 7\ns_lshr_b32 s69, s2, 3")
    if OPT["remap"]:
        A(f"s_and_b32 s{sRB}, s69, 3\ns_lshr_b32 s{sCB}, s69, 2\ns_lshl_b32 s{sCB}, s{sCB}, 1\ns_lshr_b32 s{sT}, s68, 2\ns_add_u32 s{sCB}, s{sCB}, s{sT}")
        A(f"s_cmp_eq_u32 s{sCB}, 15\ns_cselect_b32 s{sT}, 2, 0\ns_add_u32 s{sRB}, s{sRB}, s{sT}\ns_min_u32 s{sCB}, s{sCB}, 14")
        A(f"s_lshl_b32 s{sRB}, s{sRB}, 2\ns_and_b32 s{sT}, s68, 3\ns_add_u32 s{sRB}, s{sRB}, s{sT}")
    else:
        A(f"s_and_b32 s{sRB}, s68, 3\ns_lshl_b32 s{sRB}, s{sRB}, 2\ns_and_b32 s{sT}, s69, 3\ns_add_u32 s{sRB}, s{sRB}, s{sT}")
        A(f"s_lshr_b32 s{sCB}, s68, 2\ns_lshl_b32 s{sCB}, s{sCB}, 3\ns_lshr_b32 s{sT}, s69, 2\ns_add_u32 s{sCB}, s{sCB}, s{sT}")
        A(f"s_cmp_eq_u32 s{sCB}, 15\ns_cselect_b32 s{sT}, 2, 0\ns_add_u32 s{sRB}, s{sRB}, s{sT}\ns_cmp_eq_u32 s{sCB}, 15\ns_cselect_b32 s{sCB}, 7, s{sCB}")
    A(f"s_mul_i32 s{sKX}, s{sRB}, 3\ns_add_u32 s{sKX}, s{sKX}, s{sCB}")
    mod10(sKX, sKX, sT)
    if OPT["qrot"] == 0:
        A(f"s_mov_b32 s{sKX}, 0")
    elif OPT["qrot"] == 2:
        A(f"s_and_b32 s{sKX}, s2, 7")
    A(f"s_mul_i32 s{sKW}, s{sKX}, {2*122880}\ns_lshl_b32 s{sKX}, s{sKX}, 7")
    A(f"s_lshl_b32 s{sT}, s{sRB}, 7\ns_lshr_b32 s68, s{S_W}, 1\ns_lshl_b32 s68, s68, 5\ns_add_u32 s{sT}, s{sT}, s68\ns_and_b32 s68, s{S_W}, 1\ns_add_u32 s{sT}, s{sT}, s68")
    A(f"v_lshrrev_b32 v10, 3, v1\nv_lshl_add_u32 v10, v10, 1, s{sT}\nv_mul_u32_u24 v10, 1280, v10")
    A(f"v_lshrrev_b32 v11, 4, v1\nv_and_b32 v12, 7, v1\nv_xor_b32 v12, v12, v11\nv_lshl_add_u32 v{vX0}, v12, 4, v10")
    A(f"v_xor_b32 v{vX1}, 64, v{vX0}\nv_add_u32 v{vX1}, 20480, v{vX1}")
    A(f"s_lshl_b32 s68, s{S_W}, 2\nv_add_u32 v10, s68, v11\nv_mul_u32_u24 v10, 3840, v10")
    A(f"v_and_b32 v12, 15, v1\nv_lshlrev_b32 v13, 2, v11\nv_xor_b32 v12, v12, v13\nv_lshl_add_u32 v10, v12, 4, v10")
    A(f"s_lshl_b32 s68, s{sCB}, 8\nv_add_u32 v{vWs}, s68, v10")
    A(f"s_lshl_b32 s{sMX}, s{S_W}, 11\ns_lshl_b32 s{sMW}, s{S_W}, 10\ns_add_u32 s{sMW}, s{sMW}, 49152")
    A("s_waitcnt lgkmcnt(0)")
    A(f"s_load_dword s{S_E}, s[{P_WS}:{P_WS+1}], {EPOCH}")
    srd(R0, P_AX, 2621440)
    srd(R1, P_WQKV, 2457600)
    srd(WS, P_WS, WS_USED)
    A(f"s_cmp_ge_u32 s2, 240\ns_cbranch_scc1 L_QKV_IDLE")

    issued = []

    def dmaX(Sx):
        for i in range(2):
            A(f"s_add_u32 m0, s{sMX}, {(Sx % 3) * 16384 + i * 1024}\ns_nop 0")
            dma(vX0 + i, R0, sKX, 'nt' if OPT['ntx'] else '')
            issued.append(("X", Sx))
        A(f"s_add_u32 s{sKX}, s{sKX}, 128\ns_cmp_eq_u32 s{sKX}, 1280\ns_cselect_b32 s{sKX}, 0, s{sKX}")

    def dmaW(s):
        A(f"s_add_u32 m0, s{sMW}, {(s % 4) * 8192}\ns_nop 0")
        dma(vWs, R1, sKW, 'nt' if OPT['ntw'] else '')
        issued.append(("W", s))
        A(f"s_add_u32 s{sKW}, s{sKW}, 122880\ns_cmp_eq_u32 s{sKW}, 2457600\ns_cselect_b32 s{sKW}, 0, s{sKW}")

    dmaX(0); dmaW(0)
    if not OPT["qpro"]:
        dmaW(1); dmaX(1); dmaW(2); dmaW(3); dmaX(2)
    A(f"v_lshrrev_b32 v10, 5, v1\nv_bfe_u32 v11, v1, 2, 2\nv_lshl_add_u32 v12, v10, 3, v11\nv_lshlrev_b32 v12, 8, v12")
    A(f"s_and_b32 s68, s{S_W}, 3\ns_lshl_b32 s68, s68, 2")
    A(f"v_bfe_u32 v13, v1, 4, 1\nv_lshlrev_b32 v13, 1, v13\nv_bfe_u32 v14, v1, 1, 1\nv_add3_u32 v13, v13, v14, s68")
    A(f"v_lshlrev_b32 v11, 2, v11\nv_xor_b32 v13, v13, v11\nv_lshl_add_u32 v12, v13, 4, v12")
    A(f"v_and_b32 v14, 1, v1\nv_lshl_add_u32 v12, v14, 3, v12\nv_add_u32 v{vWr}, 49152, v12")
    A(f"s_lshr_b32 s68, s{S_W}, 2\ns_lshl_b32 s68, s68, 6\nv_and_b32 v11, 31, v1\nv_add_u32 v12, s68, v11\nv_lshlrev_b32 v12, 7, v12")
    A(f"v_bfe_u32 v13, v1, 1, 3\nv_xor_b32 v13, v13, v10\nv_lshl_add_u32 v{vXr}, v13, 4, v12")
    for k in range(1, 4):
        A(f"v_xor_b32 v{vXr+k}, {32*k}, v{vXr}")
    A(f"s_and_b32 s69, s{S_W}, 3\ns_lshl_b32 s69, s69, 3\nv_bfe_u32 v11, v1, 4, 1\nv_lshl_add_u32 v10, v11, 1, v10\nv_add_u32 v10, s69, v10\nv_mul_u32_u24 v10, {PL}, v10")
    A(f"v_and_b32 v11, 15, v1\nv_lshl_add_u32 v10, v11, 4, v10\ns_lshl_b32 s68, s68, 3\nv_add_u32 v10, s68, v10")

    if OPT["qpro"]:
        if OPT["qpro"] == 2:
            A("s_barrier")
        dmaW(1); dmaX(1); dmaW(2); dmaW(3); dmaX(2)

    def reads(s):
        f = FR[s & 1]
        ws, xs, b = (s % 4) * 8192, ((s >> 1) % 3) * 16384, s & 1
        for u in range(2):
            for j in range(2):
                A(f"ds_read_b64_tr_b16 {vr(f+4*u+2*j, 2)}, v{vWr} offset:{ws + (16*u+4*j)*256}")
            for nt in range(2):
                A(f"ds_read_b128 {vr(f+8+8*u+4*nt, 4)}, v{vXr+2*b+u} offset:{xs + 4096*nt}")

    def mfma1(s, i):
        if s < 0:
            return
        f = FR[s & 1]
        u, nt = i >> 1, i & 1
        c = "0" if (s == 0 and u == 0) else vr(ACC + 16 * nt, 16)
        A(f"{MF32} {vr(ACC+16*nt,16)}, {vr(f+4*u,4)}, {vr(f+8+8*u+4*nt,4)}, {c}")

    def mfmas(s):
        for i in range(4):
            mfma1(s, i)

    issued0 = list(issued)

    def qloop(early):
        issued[:] = issued0
        for s in range(20):
            last = max(i for i, t in enumerate(issued) if t in (("X", s >> 1), ("W", s)))
            A(f"s_waitcnt vmcnt({len(issued) - 1 - last})\ns_barrier")
            if s == 0:
                stamp(1)
                cstamp(10)
            def dm():
                if s >= 2 and s % 2 == 0 and s // 2 + 2 < 10:
                    dmaX(s // 2 + 2)
                if s == 1:
                    epoch_fix()
                if s == OPT["hint_step"] and OPT["hint"] == 1:
                    A(f"s_lshl_b32 s68, s2, 7\ns_lshl_b32 s69, s{S_W}, 3\ns_add_u32 s68, s68, s69\ns_add_u32 s68, s68, {F0}")
                    flag_store(68, t=120, wave0=False)
                    issued.append(("H", 0))

            mfma1(s - 1, 0)
            reads(s)
            mfma1(s - 1, 1)
            if s >= 1 and s + 3 < 20:
                dmaW(s + 3)
            mfma1(s - 1, 2)
            dm()
            mfma1(s - 1, 3)
            A("s_waitcnt lgkmcnt(0)")

    if OPT["qsplit"]:
        A(f"s_cmp_ge_u32 s{S_W}, 4\ns_cbranch_scc1 L_QKV_LATE")
        qloop(True)
        A("s_branch L_QKV_EPI\nL_QKV_LATE:")
        qloop(False)
        A("L_QKV_EPI:")
    else:
        qloop(False)
    mfmas(19)
    stamp(2)
    cstamp(11)
    if OPT.get("astop") == 2:
        A("s_endpgm")
    c = 20 ** -0.5 * math.log2(math.e)
    A(f"s_cmp_lt_u32 s{sCB}, 5\ns_cselect_b32 s68, {f2u(c)}, 1.0\ns_mov_b32 s69, s68\ns_cselect_b32 s11, 0, 1\ns_cmp_lt_u32 s{sRB}, {OPT['urg']}\ns_cselect_b32 s11, 0, s11")
    A(f"s_mul_i32 s8, s{sCB}, {32*PL}\ns_lshl_b32 s64, s{sRB}, 10\ns_add_u32 s8, s8, s64\ns_add_u32 s8, s8, {QKVP}\ns_add_u32 s9, s8, {4*PL}")
    A(f"s_mul_i32 s10, s{sCB}, {F1S}\ns_lshl_b32 s64, s{sRB}, 3\ns_add_u32 s10, s10, s64\ns_add_u32 s10, s10, {F1}")
    A(f"s_cmp_ge_u32 s{sCB}, 10\ns_cselect_b32 s64, 10, 5\ns_cselect_b32 s13, 8, 0\ns_sub_u32 s12, s{sCB}, s64\ns_add_u32 s13, s13, s{sRB}\ns_mov_b32 s14, 4\ns_cmp_lt_u32 s{sRB}, 4\ns_cselect_b32 s15, 1, 0")
    A(f"s_and_b32 s64, s{sRB}, 1\ns_add_u32 s64, s64, 16\ns_lshr_b32 s16, s{sRB}, 1\ns_cmp_lt_u32 s{sCB}, 5\ns_cselect_b32 s12, s{sCB}, s12\ns_cselect_b32 s13, s64, s13\ns_cselect_b32 s14, 2, s14\ns_cselect_b32 s15, 2, s15")
    for nt in range(2):
        for g in range(4):
            a = ACC + 16 * nt + 4 * g
            A(f"v_pk_mul_f32 {vr(a,2)}, {vr(a,2)}, s[68:69]\nv_pk_mul_f32 {vr(a+2,2)}, {vr(a+2,2)}, s[68:69]")
            d = 64 + 8 * nt + 2 * g
            A(f"v_cvt_pk_bf16_f32 v{d}, v{a}, v{a+1}\nv_cvt_pk_bf16_f32 v{d+1}, v{a+2}, v{a+3}")
            if g & 1:
                d -= 2
                A(f"s_nop 0\nv_permlane16_swap_b32 v{d}, v{d+2}\nv_permlane16_swap_b32 v{d+1}, v{d+3}")
    A("s_cmp_lg_u32 s11, 0\ns_cbranch_scc1 L_SETUP")
    qkv_stores()
    A("s_branch L_SETUP")
    A("L_QKV_IDLE:\ns_waitcnt lgkmcnt(0)")
    epoch_fix()
    if OPT["itouch"]:
        srd(R0, P_BX, 2621440); srd(R1, P_BRE, 819200); srd(R2, P_BIM, 819200)
        A(f"s_lshr_b32 s64, s2, 3\ns_and_b32 s64, s64, 1\ns_lshl_b32 s64, s64, 3\ns_add_u32 s64, s64, s{S_W}")
        A(f"s_and_b32 s65, s2, 3\ns_mul_i32 s65, s65, 655360\ns_mul_i32 s66, s64, 40960\ns_add_u32 s65, s65, s66")
        A(f"s_bfe_u32 s66, s2, 0x10002\ns_mul_i32 s66, s66, 409600\ns_mul_i32 s67, s64, 25600\ns_add_u32 s66, s66, s67")
        A("v_lshlrev_b32 v2, 7, v1\nv_min_u32 v3, 7, v1\nv_lshlrev_b32 v3, 7, v3")
        if OPT["itouch"] > 1:
            A(f"s_sleep {OPT['itouch']}")
        for i in range(5):
            A(f"buffer_load_dword v{20+i}, v2, {S(R0)}, s65 offen\ns_add_u32 s65, s65, 8192")
            if i < 4:
                for k, r in enumerate((R1, R2)):
                    A(f"buffer_load_dword v{30+2*i+k}, v{2 if i < 3 else 3}, {S(r)}, s66 offen")
                A("s_add_u32 s66, s66, 8192")
        A("s_waitcnt vmcnt(0)")
    A(f"s_sub_u32 s10, s2, 240\ns_lshl_b32 s10, s10, 3\ns_add_u32 s10, s10, {F1 + 15*F1S}\ns_mov_b32 s11, 2\ns_mov_b32 s12, 0\ns_mov_b32 s13, 0\ns_mov_b32 s14, 0\ns_mov_b32 s15, 0\ns_mov_b32 s16, 0\nv_mov_b32 v10, {OOB}")
    if OPT["hint"] == 1:
        A(f"s_lshl_b32 s68, s2, 7\ns_add_u32 s68, s68, {F0}")
        flag_store(68)


def qkv_stores(va=10, so=8):
    for nt in range(2):
        for p in range(2):
            A(f"buffer_store_dwordx4 {vr(64+8*nt+4*p,4)}, v{va}, {S(WS)}, s{so+p} offen offset:{256*nt} sc1")


PS = 2080
SLOT = 11 * PS
RED = 2 * SLOT
BADW = 81912
CNT = 78592


def attention():
    sH, sQB, sG, sLd, sBlk, sDst, sCnt, sDel, sPass = 41, 42, 44, 48, 43, 52, 53, 54, 55
    vK, vK1, vV, vD = 2, 3, 4, 5
    Q = [8, 14]; O = [20, 36]; SS = [52, 68]; Kf = [84, 90]; Vf = [96, 104]; P = 112
    A("L_SETUP:")
    if OPT.get("astop"):
        A("s_endpgm")
    A(f"s_and_b32 s68, s2, 7\ns_lshr_b32 s69, s2, 3\ns_and_b32 s{sQB}, s69, 7\ns_lshr_b32 s69, s69, 3\ns_lshl_b32 s{sH}, s68, 2\ns_add_u32 s{sH}, s{sH}, s69")
    A(f"s_mov_b32 s{sPass}, 0\ns_mov_b32 s51, {SLOT}\ns_mov_b32 s33, {F1S}\ns_mov_b32 s39, {CNT}")
    A(f"s_mul_i32 s64, s{sH}, 5\ns_add_u32 s65, s64, 4\ns_lshr_b32 s64, s64, 5\ns_lshr_b32 s65, s65, 5\ns_sub_u32 s65, s65, s64")
    A(f"s_lshl_b32 s60, s{sH}, 3\ns_add_u32 s60, s60, s{sQB}\ns_lshl_b32 s60, s60, 8\ns_add_u32 s60, s60, {PV1}")
    A(f"s_mov_b32 s63, 0xf0f0c\ns_cmp_eq_u32 s65, 0\ns_cselect_b32 s63, s63, 0xfffff")
    A(f"v_bfe_u32 v6, v1, 4, 1\nv_mul_u32_u24 v6, s65, v6\nv_add_u32 v6, s64, v6\nv_lshrrev_b32 v8, 5, v1\nv_mul_u32_u24 v9, 15, v8\nv_max_u32 v7, v6, v9")
    A(f"v_mul_u32_u24 v8, 5, v8\nv_add3_u32 v6, v6, v8, 5\nv_and_b32 v8, 15, v1\nv_lshlrev_b32 v8, 3, v8\nv_add_u32 v8, {F1}, v8")
    A(f"v_mad_u32_u24 v6, v6, s33, v8\nv_mad_u32_u24 v7, v7, s33, v8")
    A(f"v_bfe_u32 v8, v1, 2, 1\nv_mul_u32_u24 v8, s65, v8\nv_bfe_u32 v9, v1, 3, 1\nv_mul_u32_u24 v9, 5, v9\nv_add3_u32 v8, v8, v9, 5\nv_and_b32 v9, 3, v1")
    if OPT["rot"]:
        A(f"s_lshr_b32 s66, s{sQB}, 1\ns_lshl_b32 s66, s66, 2\nv_add_u32 v9, s66, v9")
    A(f"v_and_b32 v11, 1, v1\nv_mul_u32_u24 v11, s65, v11\nv_bfe_u32 v12, v1, 1, 1\ns_lshl_b32 s66, s{sQB}, 1\nv_add_u32 v12, s66, v12\nv_cmp_gt_u32 vcc, 16, v1")
    A(f"s_cmp_eq_u32 s{S_W}, 0\ns_cselect_b32 s47, {max(OPT['g2s'] - 1, 0)}, 99\ns_cselect_b32 s35, 0, 99\ns_lshl_b32 s34, s2, 7\ns_add_u32 s34, s34, {F0B}")
    A(f"v_cndmask_b32 v8, v11, v8, vcc\nv_cndmask_b32 v9, v12, v9, vcc\nv_add_u32 v8, s64, v8\nv_lshlrev_b32 v9, 3, v9\nv_add_u32 v9, {F1}, v9\nv_mad_u32_u24 v8, v8, s33, v9")
    if OPT["yprio"]:
        A(f"s_cmp_lt_u32 s{S_W}, 4\ns_cbranch_scc1 L_NOYP\ns_setprio 1\nL_NOYP:")
    for m in range(3):
        A(f"s_add_u32 s64, s{S_W}, {8*m}\ns_lshr_b32 s65, s64, 1\ns_and_b32 s64, s64, 1\ns_lshl_b32 s64, s64, 10")
        A(f"s_mul_i32 s{sLd+m}, s65, {PS}\ns_add_u32 s{sLd+m}, s{sLd+m}, s64")
        A(f"s_cmp_ge_u32 s65, 5\ns_cselect_b32 s66, 155, 0\ns_add_u32 s65, s65, s66\ns_add_u32 s65, s65, 160\ns_mul_i32 s66, s{sH}, 5\ns_add_u32 s65, s65, s66")
        A(f"s_mul_i32 s65, s65, {PL}\ns_add_u32 s65, s65, s64\ns_add_u32 s{sG+m}, s65, {QKVP}")
    A(f"v_lshlrev_b32 v{vD}, 4, v1")
    A(f"s_lshr_b32 s64, s{S_W}, 1\ns_min_u32 s64, s64, 2\ns_mul_i32 s64, s64, {SLOT}\ns_and_b32 s65, s{S_W}, 1\ns_lshl_b32 s65, s65, 10\ns_add_u32 s64, s64, s65\ns_add_u32 s64, s64, {10*PS}")
    A(f"v_add_u32 v9, s64, v{vD}")
    A(f"s_and_b32 s64, s{S_W}, 3\ns_lshl_b32 s64, s64, 6\ns_lshr_b32 s65, s{S_W}, 2\ns_lshl_b32 s66, s65, 5\ns_add_u32 s64, s64, s66")
    A(f"v_and_b32 v12, 15, v1\nv_lshl_add_u32 v13, v12, 1, s64\nv_lshlrev_b32 v124, 3, v13\nv_bfe_u32 v12, v1, 4, 1\nv_lshl_add_u32 v13, v12, 3, v124")
    A(f"v_and_b32 v12, 31, v1\nv_lshrrev_b32 v14, 5, v1\nv_xor_b32 v16, 256, v13")
    A(f"v_mul_u32_u24 v15, {2*PL}, v14\nv_add_u32 v84, v15, v13\nv_add_u32 v86, v15, v16\nv_lshlrev_b32 v15, 31, v14\nv_or_b32 v85, v15, v13\nv_or_b32 v87, v15, v16")
    A(f"s_lshl_b32 s65, s65, 7\nv_add_u32 v12, s65, v12\nv_lshlrev_b32 v12, 3, v12")
    A(f"v_mul_u32_u24 v15, {2*PS}, v14\nv_add_u32 v125, v15, v12\nv_mul_u32_u24 v15, {6*PS}, v14\nv_add_u32 v15, {4*PS}, v15\nv_add_u32 v126, v15, v12")
    A(f"v_bfe_u32 v15, v1, 4, 1\nv_lshlrev_b32 v15, 2, v15\nv_and_b32 v18, 3, v1\nv_add_u32 v15, v15, v18\nv_min_u32 v15, 5, v15\nv_add_u32 v15, 5, v15\nv_mul_u32_u24 v15, {PS}, v15")
    A(f"v_bfe_u32 v18, v1, 2, 2\nv_lshl_add_u32 v18, v14, 2, v18\nv_add_u32 v18, s65, v18\nv_lshl_add_u32 v127, v18, 3, v15")
    A(f"s_mul_i32 s36, s{sH}, {5*PL}\ns_lshl_b32 s65, s{sQB}, 11\ns_add_u32 s36, s36, s65\ns_add_u32 s36, s36, {QKVP}\ns_add_u32 s37, s36, {PL}\ns_add_u32 s38, s36, {4*PL}")

    A(f"s_mul_i32 s64, s12, 6554*32\ns_lshr_b32 s64, s64, 15\nv_lshrrev_b32 v11, 3, v1\nv_add_u32 v11, s64, v11\nv_mul_u32_u24 v12, 5, v11\nv_lshrrev_b32 v13, 5, v12")
    A(f"v_cmp_ge_u32 s[66:67], s12, v13\nv_cmp_ne_u32 vcc, s12, v13\nv_and_b32 v13, 7, v1\ns_nop 0\nv_cndmask_b32 v12, 0, 1, vcc\nv_mul_u32_u24 v12, s14, v12\nv_add_u32 v12, s13, v12")
    A(f"v_cmp_eq_u32 vcc, s16, v13\ns_cmp_eq_u32 s15, 2\ns_cselect_b64 s[64:65], vcc, -1\ns_and_b64 s[66:67], s[66:67], s[64:65]\ns_cmp_eq_u32 s15, 0\ns_cselect_b64 s[66:67], 0, s[66:67]")
    A(f"v_lshl_add_u32 v11, v11, 3, v13\nv_lshlrev_b32 v11, 8, v11\nv_lshl_add_u32 v11, v12, 3, v11\nv_add_u32 v11, {PV1}, v11\nv_mov_b32 v19, {OOB}\nv_cndmask_b32 v19, v19, v11, s[66:67]")

    def main_init():
        A(f"v_mov_b32 v{vK}, v125\nv_mov_b32 v{vK1}, v126\nv_mov_b32 v{vV}, v127")
        for i in range(32):
            A(f"v_mov_b32 v{O[0]+i}, 0")
        for i in range(4):
            A(f"v_mov_b32 v{P+4+i}, 0\nv_mov_b32 v{Vf[1]+4+i}, 0")
        A(f"s_mov_b32 s{sCnt}, 0\ns_mov_b32 s{sDel}, 0\ns_mov_b32 s{sDst}, 0")
        if OPT["rot"]:
            A(f"s_lshr_b32 s{sBlk}, s{sQB}, 1\ns_lshl_b32 s{sBlk}, s{sBlk}, 12")
        else:
            A(f"s_mov_b32 s{sBlk}, 0")

    main_init()
    for i in range(4):
        A(f"v_mov_b32 v{120+i}, 0x3f803f80")
    def publish():
        if OPT["sp1"]:
            nb_ = uid("NP")
            A(f"s_cmp_lg_u32 s{S_W}, 0\ns_cbranch_scc1 {nb_}\nv_mov_b32 v88, s{S_E}\nv_mov_b32 v89, s{S_E+1}")
            A(f"buffer_store_dwordx2 v[88:89], v19, {S(WS)}, 0 offen sc1\n{nb_}:")
        flag_store(10, t=88)

    if OPT["defer"]:
        A("s_mov_b32 s32, s10\ns_mov_b32 s61, s8\ns_mov_b32 s62, s9\ns_mov_b32 s59x, s11".replace("\ns_mov_b32 s59x, s11", ""))
        A("s_waitcnt vmcnt(0)\ns_barrier\ns_cmp_eq_u32 s11, 1\ns_cselect_b32 s40x, 1, 0".replace("\ns_cselect_b32 s40x, 1, 0", "\ns_cselect_b32 s3, 1, 0") + "\ns_cbranch_scc1 L_NOPUB")
        publish()
        A("L_NOPUB:")
    else:
        A("s_cmp_lg_u32 s11, 1\ns_cbranch_scc1 L_NOST")
        qkv_stores()
        A("L_NOST:\ns_waitcnt vmcnt(0)\ns_barrier")
        publish()
    stamp(3)
    A(f"v_mov_b32 v94, v10\nds_write_b128 v9, v[120:123]\nv_mov_b32 v9, {BADW}\nv_mov_b32 v10, 0\nds_write_b32 v9, v10")
    A(f"v_lshlrev_b32 v0, 2, v1\nv_add_u32 v0, {CNT + 64}, v0\nv_writelane_b32 v0, s39, 0\nds_write_b32 v0, v10\nds_write_b32 v0, v10 offset:4")
    sk = uid("AP")
    if OPT["hint"] == 3:
        A(f"s_lshl_b32 s68, s2, 7\ns_add_u32 s68, s68, {F0}")
        flag_store(68, t=16)
    A(f"s_waitcnt lgkmcnt(0)\ns_cmp_lg_u32 s{S_W}, {OPT['pw']}\ns_cbranch_scc1 {sk}")
    if OPT["sp1"]:
        lp, dn = uid("S1"), uid("S2")
        A(f"s_mov_b32 s64, {OPT['spin']}\n{lp}:")
        A(f"s_load_dwordx16 s[8:23], s[{P_WS}:{P_WS+1}], s60 glc\ns_load_dwordx16 s[72:87], s[{P_WS}:{P_WS+1}], s60 offset:64 glc\ns_load_dwordx8 s[24:31], s[{P_WS}:{P_WS+1}], s60 offset:128 glc")
        A("s_mov_b32 s65, 0\ns_waitcnt lgkmcnt(0)")
        for r in list(range(8, 24, 2)) + list(range(72, 88, 2)) + list(range(24, 32, 2)):
            A(f"s_cmp_eq_u64 s[{r}:{r+1}], s[{S_E}:{S_E+1}]\ns_addc_u32 s65, s65, s65")
        A(f"s_andn2_b32 s65, s63, s65\ns_cmp_eq_u32 s65, 0\ns_cbranch_scc1 {dn}")
        if OPT["psleep"]:
            A(f"s_sleep {OPT['psleep']}")
        A(f"s_sub_u32 s64, s64, 1\ns_cmp_lg_u32 s64, 0\ns_cbranch_scc1 {lp}\n{dn}:")
    elif OPT["pp"]:
        ppoll(8, 88)
    else:
        poll([8], t=120, sleep=OPT["psleep"])
    A(f"{sk}:\ns_barrier")
    stamp(4)

    def dma_one(m):
        if m == 2:
            sk2 = uid("D3")
            A(f"s_cmp_ge_u32 s{S_W}, 4\ns_cbranch_scc1 {sk2}")
        A(f"s_add_u32 m0, s{sDst}, s{sLd+m}\ns_add_u32 s68, s{sG+m}, s{sBlk}")
        dma(vD, WS, 68, "sc1")
        if m == 2:
            A(f"{sk2}:")
            A(f"s_add_u32 s{sBlk}, s{sBlk}, 2048\ns_and_b32 s{sBlk}, s{sBlk}, 16383")
            A(f"s_add_u32 s{sDst}, s{sDst}, {SLOT}\ns_cmp_eq_u32 s{sDst}, {3*SLOT}\ns_cselect_b32 s{sDst}, 0, s{sDst}")

    def dma_stage():
        for m in range(3):
            dma_one(m)

    for x in range(2):
        A(f"buffer_load_dwordx2 {vr(Q[x],2)}, v{84+2*x}, {S(WS)}, s36 offen sc1")
        A(f"buffer_load_dwordx2 {vr(Q[x]+2,2)}, v{84+2*x}, {S(WS)}, s37 offen sc1")
        A(f"buffer_load_dwordx2 {vr(Q[x]+4,2)}, v{85+2*x}, {S(WS)}, s38 offen sc1")
    A("L_ATT_MAIN:")
    dma_stage()
    if OPT["defer"]:
        A("s_cmp_lg_u32 s3, 1\ns_cbranch_scc1 L_NODEF")
        qkv_stores(94, 61)
        A("L_NODEF:")
    if OPT["hint"] == 2:
        A(f"s_lshl_b32 s68, s2, 7\ns_add_u32 s68, s68, {F0}")
        flag_store(68)
    A("s_waitcnt vmcnt(0)\ns_barrier")
    stamp(5)
    cstamp(8)
    if OPT["defer"]:
        A("s_cmp_lg_u32 s3, 1\ns_cbranch_scc1 L_NODEF2")
        flag_store(32, t=92)
        A("s_mov_b32 s3, 0\nL_NODEF2:")
    dma_stage()
    if OPT["hint"] == 4:
        A(f"s_lshl_b32 s68, s2, 7\ns_add_u32 s68, s68, {F0}")
        flag_store(68)

    def kreads(kl, off):
        A(f"ds_read_b64 {vr(kl,2)}, v{vK} offset:{off}\nds_read_b64 {vr(kl+2,2)}, v{vK} offset:{off+PS}\nds_read_b64 {vr(kl+4,2)}, v{vK1} offset:{off}")

    def vreads(vl, off):
        for j in range(4):
            A(f"ds_read_b64_tr_b16 {vr(vl+2*j,2)}, v{vV} offset:{off+64*j}")

    kreads(Kf[0], 0)
    vreads(Vf[0], 0)
    A("s_waitcnt lgkmcnt(4)")
    A(f"{MF32} {vr(SS[0],16)}, {vr(Kf[0],4)}, {vr(Q[0],4)}, 0\n{MF8} {vr(SS[0],16)}, {vr(Kf[0]+4,2)}, {vr(Q[0]+4,2)}, {vr(SS[0],16)}")
    A("s_nop 7\ns_nop 2")
    A(".p2align 6\nL_ATT_LOOP:")

    def prof():
        if OPT.get("clkprof"):
            A(f"s_memtime s[60:61]\ns_memrealtime s[62:63]\ns_mov_b32 m0, s{sCnt}\ns_waitcnt lgkmcnt(0)\nv_writelane_b32 v0, s60, m0\ns_add_u32 m0, m0, 16\nv_writelane_b32 v0, s62, m0")
    prof()

    slows = []

    def landed():
        A("s_waitcnt vmcnt(0)")
        fc = uid("FC")
        A(f"s_cmp_lg_u32 s{sCnt}, s35\ns_cbranch_scc1 {fc}")
        A(f"v_cmp_ne_u64 vcc, s[{S_E}:{S_E+1}], v[120:121]\nv_cmp_ne_u64 s[66:67], s[{S_E}:{S_E+1}], v[122:123]\ns_or_b64 vcc, vcc, s[66:67]\ns_cbranch_vccz {fc}")
        poll([6, 7], t=120)
        A(f"{fc}:")

    def unit(x, kt):
        s = SS[x]; sn = SS[1 - x]
        nk = kt if x == 0 else kt + 1
        kf = Kf[nk & 1]; qn = Q[1 - x]
        pk = kt - 1 if x == 0 else kt
        vprev = Vf[pk & 1]; v = Vf[kt & 1]
        e = lambda i: A(f"v_exp_f32 v{s+i}, v{s+i}")
        c = lambda i: A(f"v_cvt_pk_bf16_f32 v{P+i}, v{s+2*i}, v{s+2*i+1}")
        nb = OPT["nobar"]
        if x == 1:
            A("s_waitcnt lgkmcnt(0)")
        if OPT["tog"] == 3:
            A(f"s_setprio {1 - x}")
        if OPT["tog"] == 5:
            A("s_setprio 1")
        A(f"{MF32} {vr(sn,16)}, {vr(kf,4)}, {vr(qn,4)}, 0")
        if nb and (x, kt) == (1, 3):
            slow, back = uid("DS"), uid("DB")
            A(f"v_readfirstlane_b32 s68, v1\ns_lshl_b32 s69, s{sCnt}, 3\ns_cmp_lt_u32 s68, s69\ns_cbranch_scc1 {slow}\n{back}:")
            slows.append((slow, back, 4))
        e(0); e(1); e(2); e(3)
        A(f"{MF8} {vr(sn,16)}, {vr(kf+4,2)}, {vr(qn+4,2)}, {vr(sn,16)}")
        c(0); c(1); e(4); e(5); e(6); e(7)
        A(f"{MF32} {vr(O[1-x],16)}, {vr(vprev+4,4)}, {vr(P+4,4)}, {vr(O[1-x],16)}")
        if x == 0:
            if kt == 3:
                A(f"s_cmp_eq_u32 s{sDel}, {2*SLOT}\ns_cselect_b32 s68, {-2*SLOT & 0xffffffff}, s51\ns_add_u32 s{sDel}, s{sDel}, s68")
                A(f"v_add_u32 v{vK}, s68, v{vK}\nv_add_u32 v{vK1}, s68, v{vK1}\nv_add_u32 v{vV}, s68, v{vV}")
                if OPT["nobar"]:
                    slow, back = uid("LS"), uid("LB")
                    A(f"s_lshl_b32 s69, s{sCnt}, 3\ns_add_u32 s69, s69, 8\ns_waitcnt lgkmcnt(4)\nv_readfirstlane_b32 s68, v1\ns_cmp_lt_u32 s68, s69\ns_cbranch_scc1 {slow}\n{back}:")
                    slows.append((slow, back, 0))
                    kreads(Kf[0], 0)
                    A("ds_read_b32 v1, v0 offset:4")
                else:
                    landed()
                    A("s_barrier")
                    kreads(Kf[0], 0)
                if not OPT["dspread"]:
                    sk3 = uid("ND")
                    A(f"s_cmp_ge_u32 s{sCnt}, 6\ns_cbranch_scc1 {sk3}")
                    dma_stage()
                    A(f"{sk3}:")
            else:
                kreads(Kf[(kt + 1) & 1], 256 * (kt + 1))
        else:
            if nb and kt == 2:
                A("ds_read_b32 v1, v0")
            vreads(Vf[(kt + 1) & 1], 256 * ((kt + 1) & 3))
        if OPT["dspread"]:
            site = {(1, 3): (0, 0, 5), (0, 0): (1, 1, 6), (1, 0): (2, 1, 6)}.get((x, kt))
            if site:
                m, lo, hi = site
                sk3 = uid("ND")
                if lo:
                    A(f"s_sub_u32 s68, s{sCnt}, 1\ns_cmp_ge_u32 s68, 6\ns_cbranch_scc1 {sk3}")
                else:
                    A(f"s_cmp_ge_u32 s{sCnt}, 6\ns_cbranch_scc1 {sk3}")
                dma_one(m)
                A(f"{sk3}:")
        if 0 < OPT["g2s"] <= 8 and 2 * kt + x == OPT["g2q"]:
            sk4 = uid("H2")
            A(f"s_cmp_lg_u32 s{sCnt}, s47\ns_cbranch_scc1 {sk4}")
            flag_store(34, t=122, wave0=False)
            A(f"{sk4}:")
        if (x, kt) == (0, 2):
            nf = uid("NF")
            A(f"s_cmp_lg_u32 s{sCnt}, s35\ns_cbranch_scc1 {nf}")
            A(f"buffer_load_dwordx2 v[120:121], v6, {S(WS)}, 0 offen sc1\nbuffer_load_dwordx2 v[122:123], v7, {S(WS)}, 0 offen sc1\n{nf}:")
        if OPT["tog"] == 1:
            A(f"s_setprio {1 - x}")
        if OPT["tog"] == 2:
            A(f"s_setprio {2 - x}")
        if OPT["tog"] == 4 and x == 0:
            A(f"s_setprio {1 - (kt & 1)}")
        if OPT["tog"] == 5:
            A("s_setprio 0")
        c(2); c(3); e(8); e(9); e(10); e(11)
        if x == 0:
            A(f"s_waitcnt lgkmcnt({4 if (nb and kt == 3) else 3})")
        A(f"{MF32} {vr(O[x],16)}, {vr(v,4)}, {vr(P,4)}, {vr(O[x],16)}")
        if nb and (x, kt) == (0, OPT["lsig"]):
            landed()
            A("ds_inc_u32 v0, v127")
        if nb and (x, kt) == (0, 3):
            A("ds_inc_u32 v0, v127 offset:4")
        c(4); c(5); e(12); e(13); e(14); e(15); c(6); c(7)

    for kt in range(4):
        unit(0, kt)
        unit(1, kt)
    A(f"s_add_u32 s{sCnt}, s{sCnt}, 1\ns_cmp_lt_u32 s{sCnt}, 8\ns_cbranch_scc1 L_ATT_LOOP")
    A(f"{MF32} {vr(O[1],16)}, {vr(Vf[1]+4,4)}, {vr(P+4,4)}, {vr(O[1],16)}")
    if OPT["nobar"]:
        A(f"s_waitcnt lgkmcnt(0)\nv_lshrrev_b32 v1, 4, v{vD}")
    stamp(6)
    cstamp(9)
    if OPT["g2s"] > 8:
        flag_store(34, t=122)
    if OPT.get("clkprof"):
        prof()
        A(f"s_lshl_b32 s64, s2, 9\ns_add_u32 s64, s64, {0x80000}\nv_lshlrev_b32 v6, 2, v1\ns_cmp_lg_u32 s{S_W}, 0\ns_cbranch_scc1 L_NOPROF\nbuffer_store_dword v0, v6, {S(WS)}, s64 offen\nL_NOPROF:")
    A(f"s_lshl_b32 s64, s{S_W}, 12\ns_add_u32 s64, s64, {RED}")
    assert RED + 8 * 4096 <= BADW
    A(f"s_xor_b32 s65, s{S_W}, 4\ns_lshl_b32 s65, s65, 12\ns_add_u32 s65, s65, {RED}")
    A(f"v_add_u32 v6, s64, v{vD}\nv_add_u32 v7, s65, v{vD}")
    A(f"s_mul_i32 s64, s{sH}, {5*PL}\ns_lshl_b32 s65, s{sQB}, 11\ns_add_u32 s64, s64, s65\ns_add_u32 s64, s64, {OP}\ns_add_u32 s65, s64, {2*PL}\ns_add_u32 s66, s64, {4*PL}")
    A(f"v_lshrrev_b32 v120, 5, v1\nv_bfe_u32 v121, v1, 4, 1\nv_lshl_add_u32 v121, v121, 1, v120\nv_mul_u32_u24 v121, {PL}, v121\nv_add_u32 v121, v121, v124")
    A(f"v_cmp_gt_u32 vcc, 16, v1\nv_mov_b32 v120, {OOB}\ns_nop 0\nv_cndmask_b32 v120, v120, v124, vcc")
    A("s_waitcnt lgkmcnt(0)\ns_nop 1")
    for g in range(4):
        A(f"ds_write_b128 v6, {vr(O[1]+4*g,4)} offset:{1024*g}")
    A("s_waitcnt lgkmcnt(0)\ns_barrier")
    for g in range(4):
        A(f"ds_read_b128 {vr(52+4*g,4)}, v7 offset:{1024*g}")
    A("s_waitcnt lgkmcnt(0)")
    o = O[0]
    A(f"v_add_f32 v{o+12}, v{o+12}, v{52+12}")
    for i in range(0, 12, 2):
        A(f"v_pk_add_f32 {vr(o+i,2)}, {vr(o+i,2)}, {vr(52+i,2)}")
    A(f"v_rcp_f32 v68, v{o+12}\nv_mov_b32 v70, 0\nv_mov_b32 v71, 0\nv_mov_b32 v69, v68")
    for i in range(0, 12, 2):
        A(f"v_pk_fma_f32 v[70:71], {vr(o+i,2)}, 0, v[70:71] op_sel_hi:[1,0,1]")
    for g in range(3):
        a = o + 4 * g
        A(f"v_pk_mul_f32 {vr(a,2)}, {vr(a,2)}, v[68:69]\nv_pk_mul_f32 {vr(a+2,2)}, {vr(a+2,2)}, v[68:69]")
        A(f"v_cvt_pk_bf16_f32 v{72+2*g}, v{a}, v{a+1}\nv_cvt_pk_bf16_f32 v{73+2*g}, v{a+2}, v{a+3}")
        if g == 1:
            A(f"s_nop 0\nv_permlane16_swap_b32 v72, v74\nv_permlane16_swap_b32 v73, v75")
            A(f"buffer_store_dwordx4 v[72:75], v121, {S(WS)}, s64 offen sc1")
        if g == 2:
            A(f"v_mov_b32 v78, v76\nv_mov_b32 v79, v77\ns_nop 0\nv_permlane16_swap_b32 v76, v78\nv_permlane16_swap_b32 v77, v79")
            A(f"buffer_store_dwordx4 v[76:79], v120, {S(WS)}, s66 offen sc1")
    lo, hi = f2u(2.0 ** -60), f2u(2.0 ** 60)
    if OPT["force_fb"]:
        hi = f2u(2.0 ** -59)
    A(f"v_cmp_u_f32 vcc, v70, v71\nv_mov_b32 v80, {lo}\nv_mov_b32 v81, {hi}")
    A(f"v_cmp_ngt_f32 s[66:67], v{o+12}, v80\ns_or_b64 vcc, vcc, s[66:67]\nv_cmp_nlt_f32 s[66:67], v{o+12}, v81\ns_or_b64 vcc, vcc, s[66:67]")
    nb = uid("NB")
    A(f"v_mov_b32 v80, {BADW}\ns_cbranch_vccz {nb}\nv_mov_b32 v81, 1\nds_write_b32 v80, v81\n{nb}:")
    A(f"s_lshl_b32 s68, s{sQB}, 13\ns_lshl_b32 s69, s{sH}, 3\ns_add_u32 s68, s68, s69\ns_add_u32 s68, s68, {PV4}\nv_lshlrev_b32 v82, 8, v1\nv_mov_b32 v84, s{S_E}\nv_mov_b32 v85, s{S_E+1}")
    A("s_waitcnt vmcnt(0) lgkmcnt(0)\ns_barrier")
    A(f"s_cmp_lg_u32 s{sPass}, 0\ns_cbranch_scc1 L_ATT_PUB")
    A("ds_read_b32 v81, v80\ns_waitcnt lgkmcnt(0)\nv_readfirstlane_b32 s64, v81\ns_cmp_lg_u32 s64, 0\ns_cbranch_scc1 L_ATT_FB")
    A("L_ATT_PUB:")
    A(f"s_cmp_lg_u32 s{S_W}, 0\ns_cbranch_scc1 L_A_DONE\ns_mov_b32 exec_hi, 0\nbuffer_store_dwordx2 v[84:85], v82, {S(WS)}, s68 offen sc1\ns_mov_b64 exec, -1")
    stamp(7)
    A("L_A_DONE:")
    dump_stamps(12, 'A')
    A("s_endpgm")

    for slow, back, off in slows:
        lp = uid("SL")
        A(f"{slow}:\ns_mov_b32 s64, {OPT['spin']}\n{lp}:\nds_read_b32 v1, v0 offset:{off}\ns_waitcnt lgkmcnt(0)\nv_readfirstlane_b32 s68, v1\ns_cmp_ge_u32 s68, s69\ns_cbranch_scc1 {back}")
        A(f"s_sub_u32 s64, s64, 1\ns_cmp_lg_u32 s64, 0\ns_cbranch_scc1 {lp}\ns_branch {back}")
    A("L_ATT_FB:")
    A(f"s_mov_b32 s{sPass}, 1\ns_mov_b32 s{sCnt}, 0\ns_mov_b32 s{sBlk}, 0")
    A(f"v_mov_b32 v20, 0xff800000\nv_mov_b32 v21, 0xff800000")
    A(f"v_mov_b32 v{vK}, v125\nv_mov_b32 v{vK1}, v126")
    A("L_FB_LOOP:")
    A(f"s_mov_b32 s{sDst}, 0\ns_barrier")
    dma_stage()
    A("s_waitcnt vmcnt(0)\ns_barrier")
    for kt in range(4):
        kreads(Kf[0], 256 * kt)
        A("s_waitcnt lgkmcnt(0)")
        for x in range(2):
            A(f"{MF32} {vr(SS[x],16)}, {vr(Kf[0],4)}, {vr(Q[x],4)}, 0\n{MF8} {vr(SS[x],16)}, {vr(Kf[0]+4,2)}, {vr(Q[x]+4,2)}, {vr(SS[x],16)}")
        A("s_nop 15")
        for x in range(2):
            for i in range(0, 16, 2):
                A(f"v_max3_f32 v{20+x}, v{SS[x]+i}, v{SS[x]+i+1}, v{20+x}")
    A(f"s_add_u32 s{sCnt}, s{sCnt}, 1\ns_cmp_lt_u32 s{sCnt}, 8\ns_cbranch_scc1 L_FB_LOOP")
    for x in range(2):
        A(f"v_mov_b32 v22, v{20+x}\ns_nop 1\nv_permlane32_swap_b32 v{20+x}, v22\nv_max_f32 v{20+x}, v{20+x}, v22")
    A(f"s_barrier\nds_write_b64 v6, v[20:21]\ns_waitcnt lgkmcnt(0)\ns_barrier\nds_read_b64 v[22:23], v7\ns_waitcnt lgkmcnt(0)")
    A("v_max_f32 v20, v20, v23\nv_max_f32 v21, v21, v22")
    A("v_cmp_le_u32 vcc, 32, v1")
    for x in range(2):
        A(f"v_sub_f32 v24, 0, v{20+x}\nv_and_b32 v25, 0xffff0000, v24\nv_sub_f32 v24, v24, v25\nv_and_b32 v26, 0xffff0000, v24\nv_sub_f32 v24, v24, v26")
        A(f"v_lshrrev_b32 v25, 16, v25\nv_or_b32 v25, v25, v26\nv_lshrrev_b32 v24, 16, v24")
        A(f"v_cndmask_b32 v{Q[x]+4}, v{Q[x]+4}, v25, vcc\nv_cndmask_b32 v{Q[x]+5}, v{Q[x]+5}, v24, vcc")
    A(f"s_lshr_b32 s64, s{S_W}, 1\ns_min_u32 s64, s64, 2\ns_mul_i32 s64, s64, {SLOT}\ns_and_b32 s65, s{S_W}, 1\ns_lshl_b32 s65, s65, 10\ns_add_u32 s64, s64, s65\ns_add_u32 s64, s64, {10*PS}")
    A(f"v_add_u32 v24, s64, v{vD}")
    for i in range(4):
        A(f"v_mov_b32 v{120+i}, 0x3f803f80")
    A("v_mov_b32 v25, 0\ns_barrier\nds_write_b128 v24, v[120:123]\nds_write_b32 v0, v25\nds_write_b32 v0, v25 offset:4\ns_waitcnt lgkmcnt(0)")
    main_init()
    A("s_mov_b32 s35, 99\ns_branch L_ATT_MAIN")


def cmul(d, a, b, t):
    A(f"v_pk_mul_f32 {vr(t,2)}, {vr(a,2)}, {vr(b,2)} op_sel:[0,0] op_sel_hi:[1,0]")
    A(f"v_pk_fma_f32 {vr(d,2)}, {vr(a,2)}, {vr(b,2)}, {vr(t,2)} op_sel:[1,1,0] op_sel_hi:[0,1,1] neg_lo:[0,1,0]")


def cfma(d, a, b, c, t):
    A(f"v_pk_fma_f32 {vr(t,2)}, {vr(a,2)}, {vr(b,2)}, {vr(c,2)} op_sel:[0,0,0] op_sel_hi:[1,0,1]")
    A(f"v_pk_fma_f32 {vr(d,2)}, {vr(a,2)}, {vr(b,2)}, {vr(t,2)} op_sel:[1,1,0] op_sel_hi:[0,1,1] neg_lo:[0,1,0]")


def gather4(src, dst):
    for c in range(2):
        A(f"v_mov_b32 v{dst+c}, v{src+c}\nv_mov_b32 v{dst+2+c}, v{src+c}")
    A("s_nop 0")
    for c in range(2):
        A(f"v_permlane16_swap_b32 v{dst+c}, v{dst+2+c}")
    for c in range(4):
        A(f"v_mov_b32 v{dst+4+c}, v{dst+c}")
    for c in range(4):
        A(f"v_permlane32_swap_b32 v{dst+c}, v{dst+4+c}")


def role_b():
    sTC, sNB, sK = 41, 42, 43
    A("L_ROLE_B:")
    if OPT.get("nob"):
        A("s_endpgm")
    if OPT["bprio"]:
        A(f"s_setprio {OPT['bprio']}")
    bhi()
    A(f"s_and_b32 s68, s2, 7\ns_lshr_b32 s69, s2, 3\ns_and_b32 s69, s69, 31")
    A(f"s_and_b32 s{sTC}, s68, 3\ns_lshl_b32 s{sTC}, s{sTC}, 3\ns_and_b32 s64, s69, 7\ns_add_u32 s{sTC}, s{sTC}, s64")
    A(f"s_lshr_b32 s{sNB}, s68, 2\ns_lshl_b32 s{sNB}, s{sNB}, 2\ns_lshr_b32 s64, s69, 3\ns_add_u32 s{sNB}, s{sNB}, s64")
    A(f"s_mul_i32 s37, s{sNB}, 3\ns_add_u32 s37, s37, s{sTC}")
    mod10(37, 37, 64)
    if OPT["brot"] == 0:
        A("s_mov_b32 s37, 0")
    A("s_waitcnt lgkmcnt(0)")
    A(f"s_load_dword s{S_E}, s[{P_WS}:{P_WS+1}], {EPOCH}")
    srd(WS, P_WS, WS_USED)
    MU, CF, MU16, PW, LAM, LAM8 = 2, 4, 6, 8, 10, 12
    A(f"s_min_u32 s36, s{S_W}, 4\ns_lshl_b32 s36, s36, 4\ns_mul_i32 s64, s{sNB}, 80\ns_add_u32 s64, s64, s36")
    A(f"v_and_b32 v20, 15, v1\nv_add_u32 v20, s64, v20\nv_lshlrev_b32 v21, 1, v20")
    srd(R0, P_LRE, 1280); srd(R1, P_LIM, 1280); srd(R2, P_LDT, 1280)
    A(f"buffer_load_ushort v22, v21, {S(R0)}, 0 offen\nbuffer_load_ushort v23, v21, {S(R1)}, 0 offen\nbuffer_load_ushort v24, v21, {S(R2)}, 0 offen")
    A("s_waitcnt vmcnt(0) lgkmcnt(0)")
    epoch_fix()
    LOG2E = f2u(math.log2(math.e))
    A("v_lshlrev_b32 v22, 16, v22\nv_lshlrev_b32 v23, 16, v23\nv_lshlrev_b32 v24, 16, v24")
    A(f"v_mul_f32 v24, {LOG2E}, v24\nv_exp_f32 v24, v24\ns_nop 0\nv_cvt_pk_bf16_f32 v24, v24, v24\nv_lshlrev_b32 v24, 16, v24")
    A(f"v_mul_f32 v25, v24, v22\nv_mul_f32 v26, v24, v23\nv_mul_f32 v25, {LOG2E}, v25\nv_exp_f32 v25, v25")
    A(f"v_mul_f32 v26, 0.15915494, v26\nv_fract_f32 v26, v26\nv_cos_f32 v27, v26\nv_sin_f32 v28, v26\ns_nop 0")
    A(f"v_mul_f32 v{MU}, v25, v27\nv_mul_f32 v28, v25, v28\nv_sub_f32 v{MU+1}, 0, v28")
    A(f"v_add_f32 v27, -1.0, v{MU}")
    A("v_mul_f32 v25, v22, v22\nv_fmac_f32 v25, v23, v23\nv_rcp_f32 v25, v25")
    A("v_mul_f32 v26, v27, v22\nv_fmac_f32 v26, v28, v23\nv_mul_f32 v29, v28, v22\nv_fma_f32 v29, -v27, v23, v29")
    A(f"v_add_f32 v25, v25, v25\nv_mul_f32 v{CF}, v26, v25\nv_mul_f32 v29, v29, v25\nv_sub_f32 v{CF+1}, 0, v29")
    cmul(MU16, MU, MU, 22)
    for _ in range(3):
        cmul(MU16, MU16, MU16, 22)
    cmul(24, MU16, MU16, 22)
    cmul(26, 24, MU16, 22)
    cmul(LAM, 24, 24, 22)
    cmul(LAM8, LAM, LAM, 22)
    cmul(LAM8, LAM8, LAM8, 22)
    cmul(LAM8, LAM8, LAM8, 22)
    A("v_mov_b32 v16, v20\nv_lshrrev_b32 v28, 4, v1")
    A(f"v_cmp_eq_u32 s[96:97], 1, v28\nv_cmp_eq_u32 s[98:99], 2, v28\nv_cmp_eq_u32 s[100:101], 3, v28")
    A(f"v_mov_b32 v{PW}, 1.0\nv_mov_b32 v{PW+1}, 0")
    for src, m in ((MU16, 96), (24, 98), (26, 100)):
        for c in range(2):
            A(f"v_cndmask_b32 v{PW+c}, v{PW+c}, v{src+c}, s[{m}:{m+1}]")
    vS0, vRA, vRB = 14, 18, 22
    srd(R0, P_BX, 2621440); srd(R1, P_BRE, 819200); srd(R2, P_BIM, 819200)
    hoist(sTC, sNB)

    def stouch(ptr, soff, nrows, lines):
        for r in range(nrows):
            for ln in lines:
                A(f"s_load_dword s3, s[{ptr}:{ptr+1}], s{soff} offset:{r*1280 + ln}")

    if OPT["stouch"]:
        if OPT["tdelay"]:
            A(f"s_load_dword s3, s[{P_DSK}:{P_DSK+1}], 0\ns_waitcnt lgkmcnt(0)")
        A(f"s_and_b32 s65, s{sNB}, 3\ns_lshl_b32 s65, s65, 4\ns_lshl_b32 s66, s{sTC}, 6\ns_add_u32 s65, s65, s66\ns_lshl_b32 s66, s{S_W}, 1\ns_add_u32 s65, s65, s66\ns_mul_i32 s65, s65, 1280")
        stouch(P_BX, 65, 1, range(0, 1280, 128))
        A("s_add_u32 s65, s65, 1280\ns_waitcnt lgkmcnt(0)")
        stouch(P_BX, 65, 1, range(0, 1280, 128))
        A(f"s_and_b32 s66, s{sTC}, 7\ns_mul_i32 s67, s66, 10\ns_mul_i32 s68, s{sNB}, 80\ns_add_u32 s67, s67, s68\ns_mul_i32 s67, s67, 1280\ns_mul_i32 s68, s{S_W}, 1664\ns_add_u32 s38, s67, s68\ns_min_u32 s38, s38, {819200 - 13*128}\ns_mov_b32 s39, s67")
        for p in (P_BRE, P_BIM):
            A("s_waitcnt lgkmcnt(0)")
            for i in range(13):
                A(f"s_load_dword s3, s[{p}:{p+1}], s38 offset:{128*i}")
        A("s_waitcnt lgkmcnt(0)")
    A(f"s_lshl_b32 s{sK}, s37, 7")
    A("v_lshrrev_b32 v30, 4, v1\nv_and_b32 v31, 7, v1\nv_xor_b32 v31, v31, v30\nv_lshlrev_b32 v31, 4, v31")
    A(f"v_and_b32 v30, 31, v1\nv_lshlrev_b32 v30, 7, v30\nv_lshrrev_b32 v17, 5, v1\nv_bfe_u32 v29, v1, 1, 3\nv_xor_b32 v29, v17, v29\nv_lshl_add_u32 v{vRA}, v29, 4, v30")

    def touch2():
        if not OPT["ctouch"]:
            return
        t1, t2 = uid("U1"), uid("U2")
        A(f"s_and_b32 s66, s{sTC}, 7\ns_mul_i32 s39, s66, 10\ns_mul_i32 s68, s{sNB}, 80\ns_add_u32 s39, s39, s68\ns_mul_i32 s39, s39, 1280")
        A(f"s_cmp_eq_u32 s{S_W}, 7\ns_cbranch_scc1 {t1}")
        A(f"s_cmp_eq_u32 s{S_W}, 4\ns_cselect_b32 s{R1}, s{P_CRE}, s{P_CIM}\ns_cselect_b32 s{R1+1}, s{P_CRE+1}, s{P_CIM+1}\ns_and_b32 s{R1+1}, s{R1+1}, 0xffff")
        A(f"v_lshlrev_b32 v66, 7, v1\nv_min_u32 v67, 35, v1\nv_lshlrev_b32 v67, 7, v67\nv_add_u32 v67, 8192, v67")
        A(f"buffer_load_dword v64, v66, {S(R1)}, s39 offen\nbuffer_load_dword v65, v67, {S(R1)}, s39 offen\ns_branch {t2}\n{t1}:")
        srd(R1, P_WO, 819200)
        A(f"s_and_b32 s66, s{sTC}, 7\ns_mul_i32 s66, s66, {80*1280}\ns_mul_i32 s67, s{sNB}, 160\ns_add_u32 s66, s66, s67")
        A(f"v_lshrrev_b32 v66, 1, v1\nv_mul_u32_u24 v66, 1280, v66\nv_and_b32 v67, 1, v1\nv_mul_u32_u24 v67, 156, v67\nv_add_u32 v66, v66, v67")
        A(f"buffer_load_dword v64, v66, {S(R1)}, s66 offen\ns_add_u32 s66, s66, {32*1280}\nbuffer_load_dword v65, v66, {S(R1)}, s66 offen")
        A(f"s_add_u32 s66, s66, {16*1280}\nbuffer_load_dword v67, v66, {S(R1)}, s66 offen\n{t2}:")

    def advK():
        A(f"s_add_u32 s{sK}, s{sK}, 128\ns_cmp_eq_u32 s{sK}, 1280\ns_cselect_b32 s{sK}, 0, s{sK}")

    ACC, BF, AF = 32, 64, 80
    SH = 12288
    A(f"s_cmp_ge_u32 s{S_W}, 4\ns_cbranch_scc1 L_G1_AUX")
    A(f"v_lshrrev_b32 v30, 3, v1\nv_add_u32 v30, s64, v30\nv_mul_u32_u24 v30, 1280, v30\nv_add_u32 v{vS0}, v30, v31")
    A(f"v_xor_b32 v{vS0+1}, 64, v{vS0}\nv_add_u32 v{vS0+1}, 10240, v{vS0+1}")
    A(f"s_lshl_b32 s65, s{S_W}, 13\ns_add_u32 s65, s65, {3*SH}")
    for u in range(1, 4):
        A(f"v_xor_b32 v{vRA+u}, {32*u}, v{vRA}")
    for u in range(4):
        A(f"v_add_u32 v{vRB+u}, s65, v{vRA+u}")
    if OPT["hint"]:
        sk = uid("HP")
        A(f"s_cmp_lg_u32 s{S_W}, 0\ns_cbranch_scc1 {sk}")
        A(f"s_sub_u32 s66, s2, 256\ns_lshl_b32 s66, s66, 7\ns_add_u32 s66, s66, {F0}")
        A("s_mov_b32 s67, s65")
        if OPT["ptouch"]:
            go = uid("GO")
            A(f"s_and_b32 s38, s{sNB}, 3\ns_lshl_b32 s38, s38, 4\ns_lshl_b32 s39, s{sTC}, 6\ns_add_u32 s38, s38, s39\ns_mul_i32 s38, s38, 1280")
            A(f"s_and_b32 s39, s{sTC}, 7\ns_mul_i32 s39, s39, 10\ns_mul_i32 s68, s{sNB}, 80\ns_add_u32 s39, s39, s68\ns_mul_i32 s39, s39, 1280")
            A("v_lshlrev_b32 v64, 7, v1\nv_add_u32 v65, 8192, v64\nv_min_u32 v66, 31, v1\nv_lshlrev_b32 v66, 7, v66\nv_add_u32 v66, 16384, v66\nv_min_u32 v67, 35, v1\nv_lshlrev_b32 v67, 7, v67\nv_add_u32 v67, 8192, v67")
            for i, (va, rs, so) in enumerate(((64, R1, 39), (64, R2, 39), (64, R0, 38), (65, R0, 38), (67, R1, 39), (67, R2, 39), (66, R0, 38))):
                for _ in range(OPT["ptouch"]):
                    A(f"s_load_dwordx2 s[8:9], s[{P_WS}:{P_WS+1}], s66 glc\ns_waitcnt lgkmcnt(0)\ns_cmp_eq_u64 s[8:9], s[{S_E}:{S_E+1}]\ns_cbranch_scc1 {go}\ns_sleep {OPT['psl']}")
                A(f"buffer_load_dword v{68+i}, v{va}, {S(rs)}, s{so} offen")
        spoll(8, 1, 66)
        if OPT["ptouch"]:
            A(f"{go}:")
        A("s_mov_b32 s65, s67")
        A(f"{sk}:\ns_waitcnt vmcnt(0)\ns_barrier")
    else:
        A("s_waitcnt vmcnt(0)")
    stamp(1)
    if not OPT["g1prio"]:
        blo()

    def dmaB(Sx):
        for q in range(4):
            A(f"s_add_u32 m0, s65, {(Sx % 2) * 4096 + q * 1024}\ns_nop 0")
            dma(vS0 + (q & 1), R1 if q < 2 else R2, sK, 'nt' if OPT['ntb'] else '')
        advK()

    def g1_mm(Sx, u, tts=(0, 1)):
        for tt in tts:
            c = "0" if (Sx == 0 and u == 0) else vr(ACC + 16 * tt, 16)
            A(f"{MF32} {vr(ACC+16*tt,16)}, {vr(AF+8*u+4*tt,4)}, {vr(BF+4*u,4)}, {c}")

    dmaB(0); dmaB(1)
    for Sx in range(10):
        fst(Sx, OPT.get('fm') == 1)
        A(f"s_waitcnt vmcnt({4 if Sx < 9 else 0})")
        fst(Sx, OPT.get('fm') == 2)
        for u in range(3):
            A(f"ds_read_b128 {vr(BF+4*u,4)}, v{vRB+u} offset:{(Sx % 2) * 4096}")
        A("s_barrier")
        fst(Sx, OPT.get('fm') == 0)
        if Sx:
            g1_mm(Sx - 1, 3, (0,))
        for u in range(3):
            for tt in range(2):
                A(f"ds_read_b128 {vr(AF+8*u+4*tt,4)}, v{vRA+u} offset:{(Sx % 3) * SH + 4096*tt}")
        if Sx:
            g1_mm(Sx - 1, 3, (1,))
        A(f"ds_read_b128 {vr(BF+12,4)}, v{vRB+3} offset:{(Sx % 2) * 4096}")
        for tt in range(2):
            A(f"ds_read_b128 {vr(AF+24+4*tt,4)}, v{vRA+3} offset:{(Sx % 3) * SH + 4096*tt}")
        A("s_waitcnt lgkmcnt(7)")
        g1_mm(Sx, 0)
        A("s_waitcnt lgkmcnt(5)")
        g1_mm(Sx, 1, (0,))
        g1_mm(Sx, 1, (1,))
        A("s_waitcnt lgkmcnt(3)")
        g1_mm(Sx, 2)
        A("s_waitcnt lgkmcnt(0)")
        if Sx + 2 < 10:
            dmaB(Sx + 2)
    g1_mm(9, 3)
    A("s_barrier")
    A("s_branch L_SCAN")

    A("L_G1_AUX:")
    A(f"s_cmp_eq_u32 s{S_W}, 4\ns_cbranch_scc1 L_G1_LD\ns_cmp_eq_u32 s{S_W}, 7\ns_cbranch_scc1 L_G1_LD")
    A(f"v_lshrrev_b32 v30, 3, v1\nv_add_u32 v30, s64, v30\nv_mul_u32_u24 v30, 1280, v30\nv_add_u32 v{vS0}, v30, v31")
    A(f"v_xor_b32 v{vS0+1}, 64, v{vS0}\nv_add_u32 v{vS0+1}, 10240, v{vS0+1}")
    A(f"s_cmp_eq_u32 s{S_W}, 5\ns_cselect_b32 s{R3}, s{R1}, s{R2}\ns_cselect_b32 s{R3+1}, s{R1+1}, s{R2+1}\ns_mov_b32 s{R3+2}, 819200\ns_mov_b32 s{R3+3}, 0x20000")
    A(f"s_sub_u32 s65, s{S_W}, 5\ns_lshl_b32 s66, s65, 12\ns_lshl_b32 s65, s65, 11")
    for u in range(1, 4):
        A(f"v_xor_b32 v{vRA+u}, {32*u}, v{vRA}")
    for u in range(4):
        A(f"v_add_u32 v{vRB+u}, s66, v{vRA+u}")
    A("s_waitcnt vmcnt(0)")
    if OPT["hint"]:
        A("s_barrier")
    if not OPT["g1prio"]:
        blo()

    def dmaB4(Sx):
        for q in range(2):
            A(f"s_add_u32 m0, s65, {(Sx % 3) * SH + 8192 + q * 1024}\ns_nop 0")
            dma(vS0 + q, R3, sK)
        advK()

    dmaB4(0); dmaB4(1)
    for Sx in range(10):
        A(f"s_waitcnt vmcnt({2 if Sx < 9 else 0})\ns_barrier")
        for u in range(4):
            A(f"ds_read_b128 {vr(BF+4*u,4)}, v{vRA+u} offset:{(Sx % 3) * SH + 8192}")
            A(f"ds_read_b128 {vr(AF+4*u,4)}, v{vRB+u} offset:{(Sx % 3) * SH}")
        for u in range(4):
            A(f"s_waitcnt lgkmcnt({6-2*u})")
            c = "0" if (Sx == 0 and u == 0) else vr(ACC, 16)
            A(f"{MF32} {vr(ACC,16)}, {vr(AF+4*u,4)}, {vr(BF+4*u,4)}, {c}")
        if Sx + 2 < 10:
            dmaB4(Sx + 2)
    bhi()
    A(f"v_lshlrev_b32 v30, 4, v1\ns_cmp_eq_u32 s{S_W}, 5\ns_cbranch_scc1 L_G1_RED\ns_nop 8")
    for g in range(4):
        A(f"ds_write_b128 v30, {vr(ACC+4*g,4)} offset:{SH + 1024*g}")
    A("s_waitcnt lgkmcnt(0)\ns_branch L_G1_AUXEND")

    A("L_G1_LD:")
    A(f"s_cmp_eq_u32 s{S_W}, 7\ns_cselect_b32 s65, 1, 0")
    A(f"v_bfe_u32 v29, v1, 3, 1\nv_lshl_add_u32 v30, v17, 1, v29\nv_lshlrev_b32 v30, 4, v30\nv_bfe_u32 v29, v1, 4, 1\nv_add_u32 v30, v30, v29")
    A(f"s_lshl_b32 s66, s{sTC}, 6\ns_lshl_b32 s67, s65, 3\ns_add_u32 s66, s66, s67\nv_add_u32 v30, s66, v30\nv_mul_u32_u24 v30, 1280, v30\nv_add_u32 v{vS0}, v30, v31")
    A(f"v_xor_b32 v{vS0+1}, 64, v{vS0}\nv_add_u32 v{vS0+1}, 2560, v{vS0+1}\nv_add_u32 v{vS0+2}, 5120, v{vS0}\nv_add_u32 v{vS0+3}, 5120, v{vS0+1}")
    A("s_lshl_b32 s65, s65, 12\ns_waitcnt vmcnt(0)")
    if OPT["hint"]:
        A("s_barrier")

    def dmaX(Sx):
        for q in range(4):
            A(f"s_add_u32 m0, s65, {(Sx % 3) * SH + q * 1024}\ns_nop 0")
            dma(vS0 + q, R0, sK)
        advK()

    dmaX(0); dmaX(1)
    for Sx in range(10):
        A(f"s_waitcnt vmcnt({4 if Sx < 9 else 0})\ns_barrier")
        if Sx + 2 < 10:
            dmaX(Sx + 2)
    A("L_G1_AUXEND:")
    touch2()
    A("s_barrier")
    if OPT.get("bstop") in (1, 2):
        A("s_endpgm")
    A("s_barrier")
    A(f"s_cmp_lg_u32 s{S_W}, 7\ns_cbranch_scc1 L_NOF2")
    A(f"v_and_b32 v89, 31, v1\nv_min_u32 v89, s{sTC}, v89\nv_lshlrev_b32 v89, 3, v89\ns_lshl_b32 s68, s{sNB}, 8\ns_add_u32 s68, s68, {F2}\nv_add_u32 v89, s68, v89")
    poll([89], t=120)
    A("L_NOF2:\ns_barrier\ns_branch L_B_H")
    A("L_G1_RED:\ns_barrier")
    for g in range(4):
        A(f"ds_read_b128 {vr(ACC+16+4*g,4)}, v30 offset:{SH + 1024*g}")
    A("s_waitcnt lgkmcnt(0)")
    A("L_SCAN:")
    if OPT.get("bstop") == 1:
        A("s_endpgm")
    stamp(2)
    if OPT["sprio"] & 1:
        bhi()
    else:
        blo()
    A("s_nop 11")
    for i in range(16):
        A(f"v_permlane16_swap_b32 v{ACC+2*i}, v{ACC+2*i+1}")
    for i in range(16):
        u = ACC + 2 * i
        t = 64 + 2 * (i & 1)
        A(f"v_pk_mul_f32 {vr(t,2)}, {vr(u,2)}, {vr(CF,2)} op_sel:[0,0] op_sel_hi:[0,1]")
        A(f"v_pk_fma_f32 {vr(u,2)}, {vr(u,2)}, {vr(CF,2)}, {vr(t,2)} op_sel:[1,1,0] op_sel_hi:[1,0,1] neg_hi:[0,1,0]")
    G, T = 68, 70
    cfma(G, ACC, MU, ACC + 2, T)
    for i in range(2, 16):
        cfma(G, G, MU, ACC + 2 * i, T)
    E4 = 72
    gather4(G, E4)
    PRE = 80
    cfma(82, E4, MU16, E4 + 2, T)
    cfma(84, 82, MU16, E4 + 4, T)
    cfma(86, 84, MU16, E4 + 6, T)
    A(f"v_mov_b32 v{PRE}, 0\nv_mov_b32 v{PRE+1}, 0")
    for src, m in ((E4, 96), (82, 98), (84, 100)):
        for c in range(2):
            A(f"v_cndmask_b32 v{PRE+c}, v{PRE+c}, v{src+c}, s[{m}:{m+1}]")
    A(f"s_mul_i32 s64, s{sNB}, 20480\ns_add_u32 s64, s64, {EB}\ns_add_u32 s{R3}, s{P_WS}, s64\ns_addc_u32 s{R3+1}, s{P_WS+1}, 0\ns_and_b32 s{R3+1}, s{R3+1}, 0xffff\ns_mov_b32 s{R3+2}, 20480\ns_mov_b32 s{R3+3}, 0x20000")
    A(f"s_mul_i32 s64, s{sTC}, 640\ns_mov_b64 exec, 0xffff")
    A(f"buffer_store_dwordx2 v[86:87], v123, {S(R3)}, s64 offen sc1\ns_mov_b64 exec, -1")
    A(f"s_lshl_b32 s68, s{sNB}, 8\ns_lshl_b32 s69, s{sTC}, 3\ns_add_u32 s68, s68, s69\ns_add_u32 s68, s68, {F2}")
    if OPT.get("bstop") == 2:
        A("s_endpgm")
    A("s_waitcnt vmcnt(0)\ns_barrier")
    flag_store(68)
    stamp(3)
    A("s_barrier")
    stamp(4)
    if OPT["sprio"] & 2:
        bhi()
    else:
        blo()
    EL = 96
    for u in range(8):
        if u:
            A("v_add_u32 v124, 640, v124")
        A(f"buffer_load_dwordx2 {vr(EL+2*u,2)}, v124, {S(R3)}, 0 offen sc1")
    A("s_waitcnt vmcnt(6)")
    cfma(G, EL, LAM, EL + 2, T)
    for u in range(2, 8):
        A(f"s_waitcnt vmcnt({7-u})")
        cfma(G, G, LAM, EL + 2 * u, T)
    gather4(G, E4)
    cfma(G, E4 + 6, LAM8, E4 + 4, T)
    cfma(G, G, LAM8, E4 + 2, T)
    cfma(G, G, LAM8, E4, T)
    cfma(G, G, PW, PRE, T)
    cfma(ACC, G, MU, ACC, T)
    for i in range(1, 16):
        cfma(ACC + 2 * i, ACC + 2 * i - 2, MU, ACC + 2 * i, T)
    PK = 64
    A(f"s_mul_i32 s64, s{sTC}, 163840\ns_add_u32 s64, s64, {HB}")
    for tt in range(2):
        for c in range(2):
            d = PK + 8 * tt + 4 * c
            for m in range(4):
                a = ACC + 16 * tt + 4 * m + c
                A(f"v_cvt_pk_bf16_f32 v{d+m}, v{a}, v{a+2}")
            A(f"s_add_u32 s65, s64, {tt*20480 + c*10240}")
            A(f"buffer_store_dwordx4 {vr(d,4)}, v125, {S(WS)}, s65 offen sc1")
    A("s_waitcnt vmcnt(0)")
    A("L_B_H:")
    A(f"s_lshl_b32 s68, s{sTC}, 7\ns_lshl_b32 s69, s{sNB}, 3\ns_add_u32 s68, s68, s69\ns_add_u32 s68, s68, {F3}")
    bhi()
    A("s_barrier")
    flag_store(68)
    stamp(5)
    if OPT.get("bstop") == 3:
        A("s_endpgm")
    A(f"s_cmp_ge_u32 s{S_W}, 4\ns_cbranch_scc1 L_B_SMALL")
    tl = tail_late if OPT["late"] else tail_gemms
    tl(True)
    A("L_B_SMALL:")
    tl(False)


def hoist(sTC, sNB):
    A(f"v_and_b32 v26, 15, v1\nv_add_u32 v123, s36, v26\nv_lshlrev_b32 v123, 3, v123")
    A(f"v_lshrrev_b32 v27, 4, v1\nv_mul_u32_u24 v28, {8*640}, v27\ns_mul_i32 s65, s{sTC}, 640\ns_sub_u32 s65, s65, {8*640}\nv_sub_u32 v28, s65, v28\nv_add_u32 v124, v123, v28")
    A(f"v_mul_u32_u24 v28, 40960, v27\nv_lshl_add_u32 v125, v16, 4, v28")
    A(f"s_lshl_b32 s65, s{S_W}, 6\nv_add_u32 v28, s65, v1\nv_mul_u32_u24 v29, 6554, v28\nv_lshrrev_b32 v29, 16, v29\nv_mul_u32_u24 v30, 10, v29\nv_sub_u32 v30, v28, v30")
    A(f"v_and_b32 v28, 0x78, v29\nv_and_b32 v31, 1, v29\nv_lshl_add_u32 v28, v31, 2, v28\nv_bfe_u32 v31, v29, 1, 2\nv_add_u32 v28, v28, v31")
    A(f"v_mul_u32_u24 v28, 1280, v28\nv_lshl_add_u32 v28, v30, 4, v28\ns_mul_i32 s65, s{sNB}, 160\nv_add_u32 v117, s65, v28")
    A(f"v_lshrrev_b32 v28, 5, v1\nv_mul_u32_u24 v28, {PL}, v28\nv_and_b32 v29, 31, v1\nv_lshlrev_b32 v29, 4, v29\ns_and_b32 s65, s{S_W}, 1\ns_lshl_b32 s65, s65, 7\nv_xor_b32 v29, s65, v29\nv_add_u32 v119, v28, v29")
    A("v_bfe_u32 v30, v1, 2, 2\nv_and_b32 v31, 3, v1")
    sm, dn = uid("HS"), uid("HD")
    A(f"s_cmp_ge_u32 s{S_W}, 4\ns_cbranch_scc1 {sm}")
    for big in (True, False):
        if big:
            A(f"v_lshrrev_b32 v27, 5, v1\nv_and_b32 v26, 31, v1\ns_lshr_b32 s65, s{S_W}, 1\ns_and_b32 s66, s{S_W}, 1")
            A(f"s_lshl_b32 s67, s65, 5\ns_lshl_b32 s68, s66, 5")
            A(f"s_lshl_b32 s69, s65, 2\nv_bfe_u32 v28, v1, 4, 1\nv_lshlrev_b32 v28, 1, v28\nv_lshrrev_b32 v29, 1, v31\nv_add3_u32 v28, v28, v29, s69")
        else:
            A(f"{sm}:\ns_sub_u32 s65, s{S_W}, 4\ns_lshl_b32 s67, s65, 4\ns_mov_b32 s68, 64")
            A(f"s_lshl_b32 s69, s65, 1\nv_lshrrev_b32 v28, 1, v31\nv_add_u32 v28, s69, v28")
        A(f"v_mul_u32_u24 v28, 1088, v28\nv_lshl_add_u32 v29, v27, 3, v30\nv_lshl_add_u32 v28, v29, 4, v28\nv_and_b32 v29, 1, v31\nv_lshl_add_u32 v112, v29, 3, v28")
        A(f"v_add_u32 v28, s68, v26\nv_lshlrev_b32 v28, 7, v28\nv_add_u32 v28, 8704, v28\nv_bfe_u32 v29, v26, 1, 3\nv_xor_b32 v29, v29, v27\nv_lshl_add_u32 v113, v29, 4, v28")
        A(f"s_lshl_b32 s69, s{sTC}, 6\ns_add_u32 s69, s69, s67\nv_lshl_add_u32 v28, v27, 2, s69\ns_mul_i32 s69, s{sNB}, 80\ns_add_u32 s69, s69, s68\nv_add_u32 v29, s69, v26")
        A("v_mul_u32_u24 v114, 1280, v28\nv_lshl_add_u32 v114, v29, 1, v114\nv_mul_u32_u24 v115, 5120, v28\nv_lshl_add_u32 v115, v29, 2, v115\nv_lshlrev_b32 v126, 1, v29")
        A("v_lshlrev_b32 v28, 1, v30\nv_lshl_add_u32 v28, v27, 3, v28\nv_mul_u32_u24 v28, 160, v28\nv_lshl_add_u32 v28, v31, 3, v28")
        if big:
            A("v_bfe_u32 v29, v1, 4, 1\nv_lshl_add_u32 v28, v29, 5, v28\ns_lshl_b32 s69, s66, 6\nv_add_u32 v116, s69, v28")
            A("v_add_u32 v28, s67, v26\nv_lshlrev_b32 v28, 3, v28\nv_lshlrev_b32 v29, 7, v27\nv_xor_b32 v28, v28, v29\nv_lshl_add_u32 v28, v27, 10, v28\ns_mul_i32 s69, s65, 40960\nv_add_u32 v118, s69, v28")
            A(f"v_lshlrev_b32 v122, 4, v1\nv_xor_b32 v127, 32, v113\nv_xor_b32 v26, 64, v113\nv_xor_b32 v27, 96, v113\nv_mov_b32 v28, 0\ns_branch {dn}")
        else:
            A("v_add_u32 v116, 128, v28")
            A("v_add_u32 v28, s67, v26\nv_lshlrev_b32 v28, 3, v28\nv_and_b32 v29, 1, v27\nv_lshlrev_b32 v29, 7, v29\nv_xor_b32 v28, v28, v29\nv_lshl_add_u32 v118, v27, 10, v28")
            A(f"v_lshrrev_b32 v28, 3, v1\ns_mul_i32 s69, s{sNB}, 80\ns_lshl_b32 s66, s65, 3\ns_add_u32 s69, s69, s66\nv_add_u32 v28, s69, v28\nv_mul_u32_u24 v28, 1280, v28")
            A(f"v_and_b32 v29, 7, v1\nv_xor_b32 v29, v29, v27\ns_and_b32 s69, s65, 1\ns_lshl_b32 s69, s69, 2\nv_xor_b32 v29, s69, v29\nv_lshl_add_u32 v122, v29, 4, v28")
            A("v_xor_b32 v127, 64, v113\nv_add_u32 v26, 40960, v122\nv_add_u32 v27, 81920, v122\nv_add_u32 v28, 40960, v118")
    A(f"{dn}:")


def tail_gemms(big):
    sTC, sNB, sK = 41, 42, 43
    nacc = 16 if big else 4
    ACC = 32
    WF = 48
    MF = MF32 if big else MF16
    rows = [8 * (i >> 2) + (i & 3) for i in range(nacc)]
    vA, vOut = 112, 115
    vBs = [113, 127, 26, 27]
    vSs = [122, 26, 27]
    srd(R3, P_DSK, 1280)
    A(f"buffer_load_ushort v2, v126, {S(R3)}, 0 offen")
    for i in range(nacc):
        A(f"s_mov_b32 s64, {rows[i]*1280}\nbuffer_load_ushort v{3+i}, v114, {S(R0)}, s64 offen")
    SL = 18944
    srd(R1, P_CRE, 819200); srd(R2, P_CIM, 819200)
    if big:
        A(f"s_mul_i32 s44, s{sTC}, 163840\ns_mul_i32 s64, s{S_W}, 40960\ns_add_u32 s44, s44, s64\ns_add_u32 s44, s44, {HB}")
        A(f"s_mul_i32 s46, s{S_W}, 2176\ns_lshl_b32 s{sK}, s37, 10")
        A(f"s_lshl_b32 s45, s{sTC}, 7\ns_add_u32 s45, s45, {F3}")
        A(f"s_and_b32 s47, s{sNB}, 3\ns_mul_i32 s47, s47, 40960\ns_mul_i32 s66, s{S_W}, 30720\ns_sub_u32 s47, s47, s66\ns_add_u32 s47, s47, s44")
        A("v_and_b32 v20, 7, v1\nv_lshl_add_u32 v20, v20, 3, s45")
        if OPT["htouch"]:
            A(f"v_lshlrev_b32 v21, 7, v1\nv_min_u32 v22, 15, v1\nv_lshlrev_b32 v22, 7, v22\nv_add_u32 v22, 8192, v22")
        poll([20], t=120)
        stamp(6)
        if OPT["htouch"]:
            A(f"buffer_load_dword v23, v21, {S(WS)}, s47 offen sc1\nbuffer_load_dword v24, v22, {S(WS)}, s47 offen sc1")
    else:
        A(f"s_sub_u32 s95, s{S_W}, 4\ns_lshl_b32 s46, s95, 10\ns_lshl_b32 s{sK}, s37, 7")
    if not OPT["g2prio"]:
        blo()

    def g2_dma(Sx):
        sb = (Sx % 4) * SL
        if big:
            for i in range(2):
                A(f"s_add_u32 m0, s46, {sb + 1088*i}\ns_add_u32 s64, s44, s{sK}")
                if i or Sx >= 10:
                    A(f"s_add_u32 s64, s64, {20480*i + (10240 if Sx >= 10 else 0)}")
                dma(vSs[0], WS, 64, "sc1")
            A(f"s_add_u32 s{sK}, s{sK}, 1024\ns_cmp_eq_u32 s{sK}, 10240\ns_cselect_b32 s{sK}, 0, s{sK}")
        else:
            for m in range(3):
                if m == 2:
                    sk = uid("SD")
                    A(f"s_cmp_ge_u32 s95, 2\ns_cbranch_scc1 {sk}")
                A(f"s_add_u32 m0, s46, {sb + 8704 + 4096*m}\ns_nop 0")
                dma(vSs[m], R1 if Sx < 10 else R2, sK)
            A(f"{sk}:")
            A(f"s_add_u32 s{sK}, s{sK}, 128\ns_cmp_eq_u32 s{sK}, 1280\ns_cselect_b32 s{sK}, 0, s{sK}")

    for Sx in range(3):
        g2_dma(Sx)
    if big and OPT["g2s"] > 0:
        sk = uid("G2W")
        A(f"s_cmp_lg_u32 s{S_W}, 0\ns_cbranch_scc1 {sk}\ns_sub_u32 s66, s2, 256\ns_lshl_b32 s66, s66, 7\ns_add_u32 s66, s66, {F0B}")
        spoll(8, 1, 66)
        A(f"{sk}:")
    nu = 4 if big else 2
    FR = [48, 48 + 8 * nu]

    def mm(Sx, u):
        if Sx >= 0:
            f = FR[Sx & 1]
            c = "0" if (Sx == 0 and u == 0) else vr(ACC, nacc)
            A(f"{MF} {vr(ACC,nacc)}, {vr(f+8*u,4)}, {vr(f+8*u+4,4)}, {c}")

    for Sx in range(20):
        infl = min(Sx + 3, 20) - Sx - 1
        f, sb = FR[Sx & 1], (Sx % 4) * SL
        A(f"s_waitcnt vmcnt({2*infl})\ns_barrier")
        if Sx == 0:
            stamp(11)
        mm(Sx - 1, 0)
        for u in range(nu):
            for j in range(2):
                A(f"ds_read_b64_tr_b16 {vr(f+8*u+2*j,2)}, v{vA} offset:{sb + (256 if big else 512)*u + 64*j}")
            A(f"ds_read_b128 {vr(f+8*u+4,4)}, v{vBs[u]} offset:{sb}")
        for u in range(1, nu):
            mm(Sx - 1, u)
        if Sx + 3 < 20:
            g2_dma(Sx + 3)
        A("s_waitcnt lgkmcnt(0)")
    for u in range(nu):
        mm(19, u)
    A("s_barrier")
    stamp(7)
    bhi()
    srd(R2, P_OUT, 10485760)
    srd(R1, P_WO, 819200)
    A(f"s_lshl_b32 s46, s{S_W}, 10\ns_nop 1")

    def wo_dma(r, vWs):
        sk = uid("WD")
        if not big:
            A(f"s_cmp_ge_u32 s{S_W}, 5\ns_cbranch_scc1 {sk}")
        for m in range(10):
            A(f"s_add_u32 m0, s46, {5120*m}\ns_mov_b32 s64, {(320*r + 32*m) * 1280}")
            dma(vWs, R1, 64)
        A(f"{sk}:")

    def store_out(coloff, vo):
        for i in range(nacc):
            A(f"s_mov_b32 s64, {rows[i]*5120}\nbuffer_store_dword v{ACC+i}, v{vo}, {S(R2)}, s64 offen offset:{coloff} {['', 'nt', 'sc1', 'sc1 nt', 'sc0 sc1'][OPT['sto']]}")

    for i in range(nacc):
        A(f"v_dot2c_f32_bf16 v{ACC+i}, v{3+i}, v2")
    wo_dma(0, 117)
    A("s_nop 2")
    store_out(2560, vOut)
    vOut, vO, vOs, vW, vWs = 5, 6, (7 if big else 10), 2, 3
    A(f"v_mov_b32 v4, v122\nv_mov_b32 v{vOut}, v115\nv_mov_b32 v{vO}, v118\nv_mov_b32 v{vOs}, v119\nv_mov_b32 v{vW}, v116\nv_mov_b32 v{vWs}, v117")
    if not big:
        A("v_mov_b32 v7, v28")
    A(f"s_mul_i32 s44, s{S_W}, {2*PL}\ns_lshl_b32 s64, s{sTC}, 9\ns_add_u32 s44, s44, s64\ns_add_u32 s44, s44, {OP}")
    if big:
        A(f"s_lshl_b32 s45, s{sTC}, 3\ns_add_u32 s45, s45, s{sNB}\ns_lshl_b32 s45, s45, 8\ns_lshl_b32 s64, s{S_W}, 6\ns_add_u32 s45, s45, s64\ns_add_u32 s45, s45, {PV4}")
    for r in range(2):
        if r:
            wo_dma(1, vWs)
        A("s_waitcnt vmcnt(0)\ns_barrier")
        if big:
            sk2 = uid("WR")
            A(f"s_lshr_b32 s64, s{S_W}, 1\ns_cmp_lg_u32 s64, {r}\ns_cbranch_scc1 {sk2}")
            for u in range(20):
                for j in range(2):
                    A(f"ds_read_b64_tr_b16 {vr(WF+4*u+2*j,2)}, v{vW} offset:{2560*u + 160*j}")
            A(f"{sk2}:")
        else:
            for U in range(10):
                for j in range(2):
                    A(f"ds_read_b64_tr_b16 {vr(WF+40*r+4*U+2*j,2)}, v{vW} offset:{5120*U + 160*j}")
        A("s_waitcnt lgkmcnt(0)")
        if r == 0:
            A("s_barrier")
    ACC = 16 if big else 12
    outproj(big, nacc, ACC, WF, MF, rows, vOut, vO, vOs, 0)


def tail_late(big):
    sTC, sNB, sK = 41, 42, 43
    nacc = 16 if big else 4
    ACC = 16 if big else 12
    WF = 48
    MF = MF32 if big else MF16
    rows = [8 * (i >> 2) + (i & 3) for i in range(nacc)]
    srd(R3, P_DSK, 1280)
    A(f"buffer_load_ushort v0, v126, {S(R3)}, 0 offen")
    for i in range(nacc):
        A(f"s_mov_b32 s64, {rows[i]*1280}\nbuffer_load_ushort v{32+i}, v114, {S(R0)}, s64 offen")
    srd(R1, P_WO, 819200)
    A(f"s_lshl_b32 s46, s{S_W}, 10")

    def wo_dma(r, vWs):
        sk = uid("WD")
        if not big:
            A(f"s_cmp_ge_u32 s{S_W}, 5\ns_cbranch_scc1 {sk}")
        for m in range(10):
            A(f"s_add_u32 m0, s46, {5120*m}\ns_mov_b32 s64, {(320*r + 32*m) * 1280}")
            dma(vWs, R1, 64)
        A(f"{sk}:")

    wo_dma(0, 117)
    if big:
        vA, vB, vS, vOut, vO, vOs, vW, vWs = 2, 3, 4, 5, 6, 7, 8, 9
        mv = ((2, 112), (3, 113), (4, 122), (5, 115), (6, 118), (7, 119), (8, 116), (9, 117))
    else:
        vA, vB, vS, vOut, vO, vOs, vW, vWs = 2, 3, 9, 5, 6, 10, 16, 17
        mv = ((2, 112), (3, 113), (4, 127), (5, 115), (6, 118), (7, 28), (9, 122), (10, 119), (8, 26), (11, 27), (16, 116), (17, 117))
        A(f"s_sub_u32 s95, s{S_W}, 4")
    for d, sreg in mv:
        A(f"v_mov_b32 v{d}, v{sreg}")
    A(f"s_waitcnt vmcnt({10 if big else 0})")
    for i in range(nacc):
        A(f"v_dot2_f32_bf16 v{ACC+i}, v{32+i}, v0, 0")
    blo()
    for r in range(2):
        if r:
            wo_dma(1, vWs)
        A("s_waitcnt vmcnt(0)\ns_barrier")
        if big:
            sk2 = uid("WR")
            A(f"s_lshr_b32 s64, s{S_W}, 1\ns_cmp_lg_u32 s64, {r}\ns_cbranch_scc1 {sk2}")
            for u in range(20):
                for j in range(2):
                    A(f"ds_read_b64_tr_b16 {vr(WF+4*u+2*j,2)}, v{vW} offset:{2560*u + 160*j}")
            A(f"{sk2}:")
        else:
            for U in range(10):
                for j in range(2):
                    A(f"ds_read_b64_tr_b16 {vr(WF+40*r+4*U+2*j,2)}, v{vW} offset:{5120*U + 160*j}")
        A("s_waitcnt lgkmcnt(0)\ns_barrier")
    SL = 18944
    srd(R1, P_CRE, 819200); srd(R2, P_CIM, 819200)
    if big:
        A(f"s_mul_i32 s44, s{sTC}, 163840\ns_mul_i32 s64, s{S_W}, 40960\ns_add_u32 s44, s44, s64\ns_add_u32 s44, s44, {HB}")
        A(f"s_mul_i32 s46, s{S_W}, 2176\ns_lshl_b32 s{sK}, s37, 10")
        A(f"s_lshl_b32 s45, s{sTC}, 7\ns_add_u32 s45, s45, {F3}")
        A(f"s_and_b32 s47, s{sNB}, 3\ns_mul_i32 s47, s47, 40960\ns_mul_i32 s66, s{S_W}, 30720\ns_sub_u32 s47, s47, s66\ns_add_u32 s47, s47, s44")
        bhi()
        A("v_and_b32 v8, 7, v1\nv_lshl_add_u32 v8, v8, 3, s45")
        poll([8], t=10)
        stamp(6)
        if OPT["htouch"]:
            A(f"v_lshlrev_b32 v8, 7, v1\nv_min_u32 v9, 15, v1\nv_lshlrev_b32 v9, 7, v9\nv_add_u32 v9, 8192, v9")
            A(f"buffer_load_dword v10, v8, {S(WS)}, s47 offen sc1\nbuffer_load_dword v11, v9, {S(WS)}, s47 offen sc1")
        A(f"v_xor_b32 v0, 32, v{vB}\nv_xor_b32 v1, 64, v{vB}\nv_xor_b32 v7, 96, v{vB}")
    else:
        A(f"s_lshl_b32 s46, s95, 10\ns_lshl_b32 s{sK}, s37, 7")
        bhi()
    vSs = [vS, 8, 11]

    def g2_dma(Sx):
        sb = (Sx % 4) * SL
        if big:
            for i in range(2):
                A(f"s_add_u32 m0, s46, {sb + 1088*i}\ns_add_u32 s64, s44, s{sK}")
                if i or Sx >= 10:
                    A(f"s_add_u32 s64, s64, {20480*i + (10240 if Sx >= 10 else 0)}")
                dma(vS, WS, 64, "sc1")
            A(f"s_add_u32 s{sK}, s{sK}, 1024\ns_cmp_eq_u32 s{sK}, 10240\ns_cselect_b32 s{sK}, 0, s{sK}")
        else:
            for m in range(3):
                if m == 2:
                    sk = uid("SD")
                    A(f"s_cmp_ge_u32 s95, 2\ns_cbranch_scc1 {sk}")
                A(f"s_add_u32 m0, s46, {sb + 8704 + 4096*m}\ns_nop 0")
                dma(vSs[m], R1 if Sx < 10 else R2, sK)
            A(f"{sk}:")
            A(f"s_add_u32 s{sK}, s{sK}, 128\ns_cmp_eq_u32 s{sK}, 1280\ns_cselect_b32 s{sK}, 0, s{sK}")

    for Sx in range(3):
        g2_dma(Sx)
    if big and OPT["g2s"] > 0:
        sk = uid("G2W")
        A(f"s_cmp_lg_u32 s{S_W}, 0\ns_cbranch_scc1 {sk}\ns_sub_u32 s66, s2, 256\ns_lshl_b32 s66, s66, 7\ns_add_u32 s66, s66, {F0B}")
        spoll(8, 1, 66)
        A(f"{sk}:")
    if not OPT["g2prio"]:
        blo()
    if big:
        SET = [32, 40, 8]

        def rd(n):
            Sx, u = n >> 2, n & 3
            f, sb = SET[n % 3], (Sx % 4) * SL
            va = [vB, 0, 1, 7][u]
            for j in range(2):
                A(f"ds_read_b64_tr_b16 {vr(f+2*j,2)}, v{vA} offset:{sb + 256*u + 64*j}")
            A(f"ds_read_b128 {vr(f+4,4)}, v{va} offset:{sb}")

        def mm(n):
            if n >= 0:
                f = SET[n % 3]
                A(f"{MF} {vr(ACC,16)}, {vr(f,4)}, {vr(f+4,4)}, {vr(ACC,16)}")

        for Sx in range(20):
            infl = min(Sx + 3, 20) - Sx - 1
            n = 4 * Sx
            A(f"s_waitcnt vmcnt({2*infl})\ns_barrier")
            if Sx == 0:
                stamp(11)
            rd(n); rd(n + 1)
            mm(n - 1)
            rd(n + 2)
            A("s_waitcnt lgkmcnt(6)")
            mm(n)
            rd(n + 3)
            if Sx + 3 < 20:
                g2_dma(Sx + 3)
            A("s_waitcnt lgkmcnt(6)")
            mm(n + 1)
            A("s_waitcnt lgkmcnt(3)")
            mm(n + 2)
            A("s_waitcnt lgkmcnt(0)")
        mm(79)
    else:
        FR = [16, 32]

        def mm(Sx, u):
            if Sx >= 0:
                f = FR[Sx & 1]
                A(f"{MF} {vr(ACC,4)}, {vr(f+8*u,4)}, {vr(f+8*u+4,4)}, {vr(ACC,4)}")

        for Sx in range(20):
            infl = min(Sx + 3, 20) - Sx - 1
            f, sb = FR[Sx & 1], (Sx % 4) * SL
            A(f"s_waitcnt vmcnt({2*infl})\ns_barrier")
            if Sx + 3 < 20:
                g2_dma(Sx + 3)
            mm(Sx - 1, 0)
            for u in range(2):
                for j in range(2):
                    A(f"ds_read_b64_tr_b16 {vr(f+8*u+2*j,2)}, v{vA} offset:{sb + 512*u + 64*j}")
                A(f"ds_read_b128 {vr(f+8*u+4,4)}, v{vB + u} offset:{sb}")
            mm(Sx - 1, 1)
            A("s_waitcnt lgkmcnt(0)")
        mm(19, 0); mm(19, 1)
    stamp(7)
    bhi()
    srd(R2, P_OUT, 10485760)
    A(f"s_mul_i32 s44, s{S_W}, {2*PL}\ns_lshl_b32 s64, s{sTC}, 9\ns_add_u32 s44, s44, s64\ns_add_u32 s44, s44, {OP}\ns_lshl_b32 s46, s{S_W}, 10")
    if big:
        A(f"s_lshl_b32 s45, s{sTC}, 3\ns_add_u32 s45, s45, s{sNB}\ns_lshl_b32 s45, s45, 8\ns_lshl_b32 s64, s{S_W}, 6\ns_add_u32 s45, s45, s64\ns_add_u32 s45, s45, {PV4}")
        A(f"v_lshrrev_b32 v0, 9, v4\nv_mul_u32_u24 v0, {PL}, v0\nv_and_b32 v7, 0x1f0, v4\ns_and_b32 s64, s{S_W}, 1\ns_lshl_b32 s64, s64, 7\nv_xor_b32 v7, s64, v7\nv_add_u32 v7, v0, v7")
    for i in range(nacc):
        A(f"s_mov_b32 s64, {rows[i]*5120}\nbuffer_store_dword v{ACC+i}, v{vOut}, {S(R2)}, s64 offen offset:2560 {AUX[OPT['sty']]}")
    outproj(big, nacc, ACC, WF, MF, rows, vOut, vO, vOs, nacc)


def outproj(big, nacc, ACC, WF, MF, rows, vOut, vO, vOs, pend_st):
    sTC, sNB = 41, 42

    def store_out(coloff, vo):
        for i in range(nacc):
            A(f"s_mov_b32 s64, {rows[i]*5120}\nbuffer_store_dword v{ACC+i}, v{vo}, {S(R2)}, s64 offen offset:{coloff} {AUX[OPT['sto']]}")

    if big:
        spoll(8, 8, 45)
    A("s_barrier")
    stamp(8)
    for i in range(5):
        for st in (i, 5 + i):
            A(f"s_add_u32 m0, s46, {8192*st}\ns_add_u32 s64, s44, {16*PL*st}")
            dma(vOs, WS, 64, "sc1")
    if big:
        ne = uid("NE")
        A(f"v_xor_b32 v1, 256, v{vO}")
        A(f"s_cmp_lg_u32 s{sTC}, 31\ns_cbranch_scc1 {ne}\ns_or_b32 s64, s{sNB}, s{S_W}\ns_cmp_lg_u32 s64, 0\ns_cbranch_scc1 {ne}")
        A(f"s_waitcnt vmcnt(0)\nv_mov_b32 v8, s{S_E}\ns_mov_b64 exec, 1\nbuffer_store_dword v8, off, {S(WS)}, 0 offset:{EPOCH} sc1\ns_mov_b64 exec, -1\ns_waitcnt vmcnt(0)\n{ne}:")
        free = [8, 12]
        loc = {}
        order = []

        def issue(n, t):
            f = free.pop(0)
            loc[(n, t)] = f
            i, u = n >> 2, n & 3
            for j in range(2):
                A(f"ds_read_b64 {vr(f+2*j,2)}, v{vO if t == 0 else 1} offset:{8192*i + 2048*u + 512*j}")
            order.append((n, t))

        todo = [(n, t) for n in range(20) for t in range(2)]
        nxt = 0
        for k, (n, t) in enumerate(todo):
            if (n & 3) == 0 and t == 0:
                A(f"s_waitcnt vmcnt({8 - 2*(n >> 2)})\ns_barrier")
            lim = 8 * ((n >> 2) + 1)
            while nxt < lim and free and nxt - k < 6:
                issue(*todo[nxt]); nxt += 1
            pend = len(order) - 1 - order.index((n, t))
            A(f"s_waitcnt lgkmcnt({2*pend})")
            c = "0" if n == 0 else vr(ACC + 16 * t, 16)
            A(f"{MF} {vr(ACC+16*t,16)}, {vr(loc[(n,t)],4)}, {vr(WF+4*n,4)}, {c}")
            free.append(loc[(n, t)])
            if t == 1:
                free.append(WF + 4 * n)
        A(f"s_lshl_b32 s64, s{S_W}, 12\ns_xor_b32 s65, s64, 8192\nv_add_u32 v0, s64, v4\nv_add_u32 v1, s65, v4\ns_nop 7")
        for g in range(4):
            A(f"ds_write_b128 v0, {vr(ACC+16+4*g,4)} offset:{1024*g}")
        A("s_waitcnt lgkmcnt(0)\ns_barrier")
        for g in range(4):
            A(f"ds_read_b128 {vr(48+4*g,4)}, v1 offset:{1024*g}")
        for g in range(4):
            A(f"s_waitcnt lgkmcnt({3-g})")
            for c in range(2):
                A(f"v_pk_add_f32 {vr(ACC+4*g+2*c,2)}, {vr(ACC+4*g+2*c,2)}, {vr(48+4*g+2*c,2)}")
    else:
        for i in range(5):
            A(f"s_waitcnt vmcnt({8 - 2*i})\ns_barrier")
            f = 16 + 16 * (i & 1)
            for h in range(2):
                for U in range(2):
                    for j in range(2):
                        A(f"ds_read_b64 {vr(f+8*h+4*U+2*j,2)}, v{vO+h} offset:{8192*i + 4096*U + 512*j}")
            for h in range(2):
                for U in range(2):
                    A(f"s_waitcnt lgkmcnt({6 - 4*h - 2*U})")
                    c = "0" if (i == 0 and h == 0 and U == 0) else vr(ACC, 4)
                    A(f"{MF} {vr(ACC,4)}, {vr(f+8*h+4*U,4)}, {vr(WF+40*h+8*i+4*U,4)}, {c}")
        A("s_barrier\ns_nop 7")
    store_out(0, vOut)
    stamp(9)
    if OPT["stamps"]:
        A("s_waitcnt vmcnt(0)")
        stamp(10)
    dump_stamps(12)
    A("s_endpgm")


def build():
    hdr = open("cdna_kernels/" + NAME + ".s.ref").read().split("\n")
    out = [l for l in hdr if l.startswith(";") and "@launch" not in l]
    out.append("; @launch grid=(512,1,1) block=(512,1,1) lds=81920")
    out.append('.amdgcn_target "amdgcn-amd-amdhsa--gfx950"\n.text')
    out.append(f".globl {NAME}_kernel\n.p2align 8\n.type {NAME}_kernel,@function\n{NAME}_kernel:")
    prologue()
    if OPT.get("noa"):
        A("s_endpgm")
    if OPT["aprio"]:
        A(f"s_setprio {OPT['aprio']}")
    qkv()
    attention()
    role_b()
    A("L_END:\ns_endpgm")
    for l in L:
        out.append(l if l.endswith(":") or l.startswith(".") else "    " + l)
    out.append(f""".section .rodata,"a"
.p2align 6
.amdhsa_kernel {NAME}_kernel
  .amdhsa_next_free_vgpr 128
  .amdhsa_next_free_sgpr 102
  .amdhsa_accum_offset 128
  .amdhsa_group_segment_fixed_size 0
  .amdhsa_kernarg_size 120
  .amdhsa_user_sgpr_count 2
  .amdhsa_user_sgpr_kernarg_segment_ptr 1
  .amdhsa_system_sgpr_workgroup_id_x 1
.end_amdhsa_kernel""")
    return "\n".join(out) + "\n"


if __name__ == "__main__":
    txt = build()
    open(sys.argv[1], "w").write(txt)
    sys.path.insert(0, "gen")
    import hazard
    e = hazard.check(txt)
    print("\n".join(e) if e else "hazard check: clean")
```

```python
import sys, struct, math

NAME = "concat_heads__softmax_full_mha__ssm_conv_s5__prompt"

OPT = dict(stamps=0, spin=400000, force_fb=0, g2s=6, g2q=6, tog=1, htouch=1, ctouch=1, sty=2, sto=2,
           cpre=1, lscan=0, brot=1, fill0=10, nfill=10, post=1)
for a in sys.argv[2:]:
    k, v = a.split("=")
    OPT[k] = int(v)

PL = 16384
EPOCH = 0
F1 = 0x1000
F2 = 0x2000
F3 = 0x3000
F0 = 0x8000
F0B = 0x10000
STAMP = 0x20000
EB = 0x48000
PV1 = 0xA0000
PV4 = 0xB0000
QKVP = 0x100000
OP = 0xA00000
HB = 0xD00000
WS_USED = 0x1300000
OOB = 0x80000000
AUX = ['', 'nt', 'sc1', 'sc1 nt', 'sc0 sc1']

L = []


def A(s):
    for ln in s.strip("\n").split("\n"):
        L.append(ln.strip())


def f2u(x):
    return struct.unpack("<I", struct.pack("<f", x))[0]


def vr(a, n):
    return f"v[{a}:{a+n-1}]" if n > 1 else f"v{a}"


P_AX, P_WQKV, P_WO, P_BX, P_LRE, P_LIM, P_BRE, P_BIM, P_CRE, P_CIM, P_LDT, P_DSK, P_OUT, P_DBG = range(8, 36, 2)
S_E = 6
S_W = 40
R0, R1, R2, WS, R3 = 44, 48, 52, 56, 60
WSP = f"s[{WS}:{WS+1}]"
EP = f"s[{S_E}:{S_E+1}]"
ST0 = 70
_uid = [0]


def uid(p):
    _uid[0] += 1
    return f"{p}_{_uid[0]}"


def srd(r, p, n):
    A(f"s_mov_b32 s{r}, s{p}\ns_mov_b32 s{r+1}, s{p+1}\ns_mov_b32 s{r+2}, {n}\ns_mov_b32 s{r+3}, 0x20000")


def S(r):
    return f"s[{r}:{r+3}]"


def stamp(k):
    if OPT["stamps"] and not OPT.get("fm"):
        A(f"s_memrealtime s[{ST0+2*k}:{ST0+2*k+1}]")


def cstamp(k):
    if OPT["stamps"] and not OPT.get("fm"):
        A(f"s_memtime s[{ST0+2*k}:{ST0+2*k+1}]")


def fst(mode, k):
    if OPT.get("fm") == mode:
        A(f"s_memtime s[{ST0+2*k}:{ST0+2*k+1}]")


def dump_stamps(n):
    if not OPT["stamps"]:
        return
    sk = uid("SK")
    A(f"s_waitcnt lgkmcnt(0)\ns_cmp_lg_u32 s{S_W}, {OPT.get('fw', 0)}\ns_cbranch_scc1 {sk}")
    A(f"s_lshl_b32 s64, s2, 7\ns_add_u32 s64, s64, {STAMP}\ns_mov_b64 exec, 1")
    for k in range(n):
        A(f"v_mov_b32 v120, s{ST0+2*k}\nv_mov_b32 v121, s{ST0+2*k+1}")
        A(f"buffer_store_dwordx2 v[120:121], off, {S(WS)}, s64 offset:{8*k}")
        A("s_waitcnt vmcnt(0)")
    A(f"s_mov_b64 exec, -1\n{sk}:")


def flag_store(soff, t=120, wave=0):
    sk = uid("FS")
    A(f"s_cmp_lg_u32 s{S_W}, {wave}\ns_cbranch_scc1 {sk}")
    A(f"v_mov_b32 v{t}, s{S_E}\nv_mov_b32 v{t+1}, s{S_E+1}\ns_mov_b64 exec, 1")
    A(f"buffer_store_dwordx2 v[{t}:{t+1}], off, {S(WS)}, s{soff} sc1")
    A(f"s_mov_b64 exec, -1\n{sk}:")


def poll(vaddrs, t=120):
    lp, dn = uid("PL"), uid("PD")
    A(f"s_mov_b32 s64, {OPT['spin']}\n{lp}:")
    for i, va in enumerate(vaddrs):
        A(f"buffer_load_dwordx2 v[{t+2*i}:{t+2*i+1}], v{va}, {S(WS)}, 0 offen sc1")
    A("s_waitcnt vmcnt(0)")
    for i, va in enumerate(vaddrs):
        if i == 0:
            A(f"v_cmp_ne_u64 vcc, {EP}, v[{t}:{t+1}]")
        else:
            A(f"v_cmp_ne_u64 s[66:67], {EP}, v[{t+2*i}:{t+2*i+1}]\ns_or_b64 vcc, vcc, s[66:67]")
    A(f"s_cbranch_vccz {dn}\ns_sub_u32 s64, s64, 1\ns_cmp_lg_u32 s64, 0\ns_cbranch_scc1 {lp}\n{dn}:")


def spoll(blocks, soff, need=None, cnt=64, msk=65):
    lp, dn = uid("SP"), uid("SD")
    A(f"s_mov_b32 s{cnt}, {OPT['spin']}\n{lp}:")
    tot = 0
    for dst, n, off in blocks:
        A(f"s_load_dwordx{2*n} s[{dst}:{dst+2*n-1}], {WSP}, s{soff} offset:{off} glc")
        tot += n
    A(f"s_mov_b32 s{msk}, 0\ns_waitcnt lgkmcnt(0)")
    for dst, n, off in blocks:
        for i in range(n):
            A(f"s_cmp_eq_u64 s[{dst+2*i}:{dst+2*i+1}], {EP}\ns_addc_u32 s{msk}, s{msk}, s{msk}")
    if need is None:
        A(f"s_cmp_eq_u32 s{msk}, {(1 << tot) - 1}")
    else:
        A(f"s_andn2_b32 s{msk}, s{need}, s{msk}\ns_cmp_eq_u32 s{msk}, 0")
    A(f"s_cbranch_scc1 {dn}")
    if tot <= 8:
        A("s_sleep 2")
    A(f"s_sub_u32 s{cnt}, s{cnt}, 1\ns_cmp_lg_u32 s{cnt}, 0\ns_cbranch_scc1 {lp}\n{dn}:")


def bhi():
    A("s_setprio 3")


def blo():
    A("s_setprio 0")


def dma(vaddr, rsrc, soff, aux=""):
    A(f"buffer_load_dwordx4 v{vaddr}, {S(rsrc)}, s{soff} offen {aux} lds".replace("  ", " "))


def epoch_fix():
    A(f"s_mul_i32 s{S_E}, s{S_E}, 0x9E3779B1\ns_add_u32 s{S_E}, s{S_E}, 0x7F4A7C15\ns_xor_b32 s{S_E+1}, s{S_E}, 0x5bd1e995")


MF32 = "v_mfma_f32_32x32x16_bf16"
MF8 = "v_mfma_f32_32x32x8_bf16"
MF16 = "v_mfma_f32_16x16x32_bf16"

PS = 2080
SLOT = 11 * PS
RED = 2 * SLOT
BADW = 81912
sST0, sST1, sF1, sSC, sH, sQB, sG, sLd, sQ, sPV1, sNEED, sH1, sH2, sPass, sChk, sO0, sO1, sPV4 = \
    8, 9, 10, 12, 14, 15, 16, 19, 22, 25, 26, 27, 28, 29, 30, 31, 32, 33
vD, vTok, vK, vK1, vV, vF6, vF7, vPush, vQa, vOnes = 123, 124, 125, 126, 127, 121, 122, 120, 112, 116


def att_setup(sRB, sCB):
    G = []
    g = G.append
    g(f"s_and_b32 s34, s2, 7\ns_bfe_u32 s{sQB}, s2, 0x30003\ns_bfe_u32 s35, s2, 0x20006\ns_lshl_b32 s{sH}, s34, 2\ns_add_u32 s{sH}, s{sH}, s35")
    g(f"s_mul_i32 s36, s{sH}, 5\ns_add_u32 s37, s36, 4\ns_lshr_b32 s38, s36, 5\ns_lshr_b32 s37, s37, 5\ns_sub_u32 s37, s37, s38")
    g(f"s_lshl_b32 s{sPV1}, s{sH}, 3\ns_add_u32 s{sPV1}, s{sPV1}, s{sQB}\ns_lshl_b32 s{sPV1}, s{sPV1}, 8\ns_add_u32 s{sPV1}, s{sPV1}, {PV1}")
    g(f"s_mov_b32 s{sNEED}, 0xf0f0c\ns_cmp_eq_u32 s37, 0\ns_cselect_b32 s{sNEED}, s{sNEED}, 0xfffff\ns_mov_b32 s{sPass}, 0\ns_min_u32 s{sChk}, s{S_W}, 1")
    g(f"v_bfe_u32 v11, v1, 4, 1\nv_mul_u32_u24 v11, s37, v11\nv_add_u32 v11, s38, v11\nv_lshrrev_b32 v14, 5, v1\nv_mul_u32_u24 v12, 15, v14\nv_max_u32 v12, v11, v12")
    g(f"v_mul_u32_u24 v13, 5, v14\nv_add3_u32 v11, v11, v13, 5\nv_and_b32 v13, 15, v1\nv_lshlrev_b32 v15, 3, v13\nv_add_u32 v15, {F1}, v15")
    g(f"v_lshl_add_u32 v{vF6}, v11, 7, v15\nv_lshl_add_u32 v{vF7}, v12, 7, v15\nv_lshlrev_b32 v{vD}, 4, v1")
    g(f"s_lshl_b32 s{sH1}, s2, 7\ns_add_u32 s{sH2}, s{sH1}, {F0B}\ns_add_u32 s{sH1}, s{sH1}, {F0}")
    for m in range(3):
        g(f"s_add_u32 s34, s{S_W}, {8*m}\ns_lshr_b32 s35, s34, 1\ns_and_b32 s34, s34, 1\ns_lshl_b32 s34, s34, 10\ns_mul_i32 s{sLd+m}, s35, {PS}\ns_add_u32 s{sLd+m}, s{sLd+m}, s34")
        g(f"s_cmp_ge_u32 s35, 5\ns_cselect_b32 s39, 155, 0\ns_add_u32 s35, s35, s39\ns_add_u32 s35, s35, s36\ns_mul_i32 s35, s35, {PL}\ns_add_u32 s35, s35, s34\ns_add_u32 s{sG+m}, s35, {QKVP + 160*PL}")
    g(f"s_lshr_b32 s34, s{S_W}, 1\ns_min_u32 s34, s34, 2\ns_mul_i32 s34, s34, {SLOT}\ns_and_b32 s35, s{S_W}, 1\ns_lshl_b32 s35, s35, 10\ns_add_u32 s34, s34, s35\ns_add_u32 s34, s34, {10*PS}\nv_add_u32 v{vOnes}, s34, v{vD}")
    g(f"s_and_b32 s34, s{S_W}, 3\ns_lshl_b32 s34, s34, 6\ns_lshr_b32 s35, s{S_W}, 2\ns_lshl_b32 s39, s35, 5\ns_add_u32 s34, s34, s39\ns_lshl_b32 s35, s35, 7")
    g(f"v_lshl_add_u32 v15, v13, 1, s34\nv_lshlrev_b32 v{vTok}, 3, v15\nv_bfe_u32 v12, v1, 4, 1\nv_lshl_add_u32 v15, v12, 3, v{vTok}\nv_xor_b32 v16, 256, v15")
    g(f"v_mul_u32_u24 v17, {2*PL}, v14\nv_add_u32 v{vQa}, v17, v15\nv_add_u32 v{vQa+2}, v17, v16\nv_lshlrev_b32 v17, 31, v14\nv_or_b32 v{vQa+1}, v17, v15\nv_or_b32 v{vQa+3}, v17, v16")
    g(f"v_and_b32 v15, 31, v1\nv_add_u32 v15, s35, v15\nv_lshlrev_b32 v15, 3, v15\nv_mul_u32_u24 v16, {2*PS}, v14\nv_add_u32 v{vK}, v16, v15")
    g(f"v_mul_u32_u24 v16, {6*PS}, v14\nv_add_u32 v16, {4*PS}, v16\nv_add_u32 v{vK1}, v16, v15\nv_and_b32 v16, 3, v1\nv_lshl_add_u32 v16, v12, 2, v16\nv_min_u32 v16, 5, v16")
    g(f"v_add_u32 v16, 5, v16\nv_mul_u32_u24 v16, {PS}, v16\nv_bfe_u32 v17, v1, 2, 2\nv_lshl_add_u32 v17, v14, 2, v17\nv_add_u32 v17, s35, v17\nv_lshl_add_u32 v{vV}, v17, 3, v16")
    g(f"s_mul_i32 s34, s36, {PL}\ns_lshl_b32 s35, s{sQB}, 11\ns_add_u32 s34, s34, s35\ns_add_u32 s{sQ}, s34, {QKVP}\ns_add_u32 s{sQ+1}, s{sQ}, {PL}\ns_add_u32 s{sQ+2}, s{sQ}, {4*PL}")
    g(f"s_add_u32 s{sO0}, s34, {OP}\ns_add_u32 s{sO1}, s{sO0}, {4*PL}\ns_lshl_b32 s{sPV4}, s{sQB}, 13\ns_lshl_b32 s35, s{sH}, 3\ns_add_u32 s{sPV4}, s{sPV4}, s35\ns_add_u32 s{sPV4}, s{sPV4}, {PV4}")
    if sRB is None:
        g(f"v_mov_b32 v{vPush}, {OOB}\ns_sub_u32 s{sF1}, s2, 240\ns_lshl_b32 s{sF1}, s{sF1}, 3\ns_add_u32 s{sF1}, s{sF1}, {F1 + 15*128}")
        return G
    c = 20 ** -0.5 * math.log2(math.e)
    g(f"s_cmp_lt_u32 s{sCB}, 5\ns_cselect_b32 s{sSC}, {f2u(c)}, 1.0\ns_mov_b32 s{sSC+1}, s{sSC}\ns_lshl_b32 s{sF1}, s{sCB}, 7\ns_lshl_b32 s34, s{sRB}, 3\ns_add_u32 s{sF1}, s{sF1}, s34\ns_add_u32 s{sF1}, s{sF1}, {F1}")
    g(f"s_mul_i32 s{sST0}, s{sCB}, {32*PL}\ns_lshl_b32 s34, s{sRB}, 10\ns_add_u32 s{sST0}, s{sST0}, s34\ns_add_u32 s{sST0}, s{sST0}, {QKVP}\ns_add_u32 s{sST1}, s{sST0}, {4*PL}")
    g(f"s_cmp_ge_u32 s{sCB}, 10\ns_cselect_b32 s38, 10, 5\ns_cselect_b32 s35, 8, 0\ns_sub_u32 s34, s{sCB}, s38\ns_add_u32 s35, s35, s{sRB}\ns_cmp_lt_u32 s{sRB}, 4\ns_cselect_b32 s37, 1, 0")
    g(f"s_and_b32 s38, s{sRB}, 1\ns_add_u32 s38, s38, 16\ns_cmp_lt_u32 s{sCB}, 5\ns_cselect_b32 s34, s{sCB}, s34\ns_cselect_b32 s35, s38, s35\ns_cselect_b32 s36, 2, 4\ns_cselect_b32 s37, 2, s37")
    g(f"s_mul_i32 s38, s34, {6554*32}\ns_lshr_b32 s38, s38, 15\nv_lshrrev_b32 v11, 3, v1\nv_add_u32 v11, s38, v11\nv_mul_u32_u24 v12, 5, v11\nv_lshrrev_b32 v13, 5, v12\ns_lshr_b32 s39, s{sRB}, 1")
    g(f"v_cmp_ge_u32 s[68:69], s34, v13\nv_cmp_ne_u32 vcc, s34, v13\nv_and_b32 v13, 7, v1\nv_lshl_add_u32 v11, v11, 3, v13\nv_cndmask_b32 v12, 0, 1, vcc\nv_mul_u32_u24 v12, s36, v12\nv_add_u32 v12, s35, v12")
    g(f"v_cmp_eq_u32 vcc, s39, v13\ns_cmp_eq_u32 s37, 2\ns_cselect_b64 vcc, vcc, -1\ns_and_b64 s[68:69], s[68:69], vcc\ns_cmp_eq_u32 s37, 0\ns_cselect_b64 s[68:69], 0, s[68:69]")
    g(f"v_lshlrev_b32 v11, 8, v11\nv_lshl_add_u32 v11, v12, 3, v11\nv_add_u32 v11, {PV1}, v11\nv_mov_b32 v{vPush}, {OOB}\nv_cndmask_b32 v{vPush}, v{vPush}, v11, s[68:69]")
    return G


def qkv():
    sRB, sCB, sKX, sKW, sMX, sMW, sT = 41, 42, 43, 64, 65, 66, 67
    vX0, vX1, vWs, vWr, vXr = 2, 3, 4, 5, 6
    ACC = 32
    FR = [64, 88]
    A("s_cmp_ge_u32 s2, 256\ns_cbranch_scc1 L_ROLE_B")
    stamp(0); fst(7, 0)
    A(f"s_load_dwordx2 s[{R0}:{R0+1}], s[0:1], 0\ns_load_dwordx2 s[{R1}:{R1+1}], s[0:1], 8\ns_load_dwordx2 s[{WS}:{WS+1}], s[0:1], 112")
    A(f"v_lshrrev_b32 v2, 6, v0\nv_and_b32 v1, 63, v0\nv_readfirstlane_b32 s{S_W}, v2")
    A(f"s_lshr_b32 s{sCB}, s2, 4\ns_and_b32 s{sCB}, s{sCB}, 14\ns_bfe_u32 s{sT}, s2, 0x10002\ns_or_b32 s{sCB}, s{sCB}, s{sT}")
    A(f"s_lshr_b32 s{sRB}, s2, 1\ns_and_b32 s{sRB}, s{sRB}, 12\ns_and_b32 s{sT}, s2, 3\ns_or_b32 s{sRB}, s{sRB}, s{sT}")
    A(f"s_cmp_eq_u32 s{sCB}, 15\ns_cselect_b32 s{sT}, 8, 0\ns_add_u32 s{sRB}, s{sRB}, s{sT}\ns_min_u32 s{sCB}, s{sCB}, 14")
    A(f"s_and_b32 s{sKX}, s2, 7\ns_mul_i32 s{sKW}, s{sKX}, {2*122880}\ns_lshl_b32 s{sKX}, s{sKX}, 7")
    A(f"s_lshl_b32 s{sT}, s{sRB}, 7\ns_lshr_b32 s68, s{S_W}, 1\ns_lshl_b32 s68, s68, 5\ns_add_u32 s{sT}, s{sT}, s68\ns_and_b32 s68, s{S_W}, 1\ns_add_u32 s{sT}, s{sT}, s68")
    A(f"v_lshrrev_b32 v10, 3, v1\nv_lshl_add_u32 v10, v10, 1, s{sT}\nv_mul_u32_u24 v10, 1280, v10")
    A(f"v_lshrrev_b32 v11, 4, v1\nv_and_b32 v12, 7, v1\nv_xor_b32 v12, v12, v11\nv_lshl_add_u32 v{vX0}, v12, 4, v10")
    A(f"s_lshl_b32 s{sMX}, s{S_W}, 11\ns_mov_b32 s{R0+2}, 2621440\ns_mov_b32 s{R0+3}, 0x20000\ns_mov_b32 m0, s{sMX}")
    A("s_cmp_ge_u32 s2, 240\ns_cbranch_scc1 L_QKV_IDLE")
    fst(7, 1)
    A("s_waitcnt lgkmcnt(0)")
    issued = []

    def dmaX(Sx, between=None):
        for i in range(2):
            if Sx or i:
                A(f"s_add_u32 m0, s{sMX}, {(Sx % 3) * 16384 + i * 1024}\ns_nop 0")
            dma(vX0 + i, R0, sKX)
            issued.append(("X", Sx))
            if between and i == 0:
                between()
        A(f"s_add_u32 s{sKX}, s{sKX}, 128\ns_cmp_eq_u32 s{sKX}, 1280\ns_cselect_b32 s{sKX}, 0, s{sKX}")

    def dmaW(s):
        A(f"s_add_u32 m0, s{sMW}, {(s % 4) * 8192}\ns_nop 0")
        dma(vWs, R1, sKW)
        issued.append(("W", s))
        A(f"s_add_u32 s{sKW}, s{sKW}, 122880\ns_cmp_eq_u32 s{sKW}, 2457600\ns_cselect_b32 s{sKW}, 0, s{sKW}")

    dmaX(0, lambda: A(f"v_xor_b32 v{vX1}, 64, v{vX0}\nv_add_u32 v{vX1}, 20480, v{vX1}"))
    A(f"s_lshl_b32 s68, s{S_W}, 2\nv_add_u32 v10, s68, v11\nv_mul_u32_u24 v10, 3840, v10")
    A(f"v_and_b32 v12, 15, v1\nv_lshlrev_b32 v13, 2, v11\nv_xor_b32 v12, v12, v13\nv_lshl_add_u32 v10, v12, 4, v10")
    A(f"s_lshl_b32 s68, s{sCB}, 8\nv_add_u32 v{vWs}, s68, v10\ns_lshl_b32 s{sMW}, s{S_W}, 10\ns_add_u32 s{sMW}, s{sMW}, 49152")
    A(f"s_mov_b32 s{R1+2}, 2457600\ns_mov_b32 s{R1+3}, 0x20000")
    dmaW(0)
    fst(7, 2)
    A(f"s_load_dword s{S_E}, {WSP}, {EPOCH}\ns_mov_b32 s{WS+2}, {WS_USED}\ns_mov_b32 s{WS+3}, 0x20000\ns_barrier")
    fst(7, 3)
    dmaW(1); dmaX(1); dmaW(2); dmaW(3); dmaX(2)
    fst(7, 4)
    A(f"v_lshrrev_b32 v10, 5, v1\nv_bfe_u32 v11, v1, 2, 2\nv_lshl_add_u32 v12, v10, 3, v11\nv_lshlrev_b32 v12, 8, v12")
    A(f"s_and_b32 s68, s{S_W}, 3\ns_lshl_b32 s68, s68, 2")
    A(f"v_bfe_u32 v13, v1, 4, 1\nv_lshlrev_b32 v13, 1, v13\nv_bfe_u32 v14, v1, 1, 1\nv_add3_u32 v13, v13, v14, s68")
    A(f"v_lshlrev_b32 v11, 2, v11\nv_xor_b32 v13, v13, v11\nv_lshl_add_u32 v12, v13, 4, v12")
    A(f"v_and_b32 v14, 1, v1\nv_lshl_add_u32 v12, v14, 3, v12\nv_add_u32 v{vWr}, 49152, v12")
    A(f"s_lshr_b32 s68, s{S_W}, 2\ns_lshl_b32 s68, s68, 6\nv_and_b32 v11, 31, v1\nv_add_u32 v12, s68, v11\nv_lshlrev_b32 v12, 7, v12")
    A(f"v_bfe_u32 v13, v1, 1, 3\nv_xor_b32 v13, v13, v10\nv_lshl_add_u32 v{vXr}, v13, 4, v12")
    for k in range(1, 4):
        A(f"v_xor_b32 v{vXr+k}, {32*k}, v{vXr}")
    fst(7, 5)
    G = [f"s_and_b32 s34, s{S_W}, 3\ns_lshl_b32 s34, s34, 3\nv_bfe_u32 v11, v1, 4, 1\nv_lshl_add_u32 v10, v11, 1, v10\nv_add_u32 v10, s34, v10\nv_mul_u32_u24 v10, {PL}, v10",
         f"v_and_b32 v11, 15, v1\nv_lshl_add_u32 v10, v11, 4, v10\ns_lshr_b32 s34, s{S_W}, 2\ns_lshl_b32 s34, s34, 9\nv_add_u32 v10, s34, v10"]
    GA = att_setup(sRB, sCB)
    post = []
    if OPT["post"]:
        post, GA = GA[:-8], GA[-8:]
    G += GA
    nf = OPT["nfill"]
    per = [G[len(G) * i // nf:len(G) * (i + 1) // nf] for i in range(nf)]

    def reads(s):
        f = FR[s & 1]
        ws, xs, b = (s % 4) * 8192, ((s >> 1) % 3) * 16384, s & 1
        for u in range(2):
            for j in range(2):
                A(f"ds_read_b64_tr_b16 {vr(f+4*u+2*j, 2)}, v{vWr} offset:{ws + (16*u+4*j)*256}")
            for nt in range(2):
                A(f"ds_read_b128 {vr(f+8+8*u+4*nt, 4)}, v{vXr+2*b+u} offset:{xs + 4096*nt}")

    def mfma1(s, i):
        if s < 0:
            return
        f = FR[s & 1]
        u, nt = i >> 1, i & 1
        c = "0" if (s == 0 and u == 0) else vr(ACC + 16 * nt, 16)
        A(f"{MF32} {vr(ACC+16*nt,16)}, {vr(f+4*u,4)}, {vr(f+8+8*u+4*nt,4)}, {c}")

    for s in range(20):
        last = max(i for i, t in enumerate(issued) if t in (("X", s >> 1), ("W", s)))
        A(f"s_waitcnt vmcnt({len(issued) - 1 - last})\ns_barrier")
        if s == 0:
            stamp(1); cstamp(10)
        if s < 4:
            fst(7, 6 + s)
        fill = per[s - OPT["fill0"]] if 0 <= s - OPT["fill0"] < nf else []
        mfma1(s - 1, 0)
        reads(s)
        mfma1(s - 1, 1)
        if s >= 1 and s + 3 < 20:
            dmaW(s + 3)
        if s & 1 == 0:
            pass
        else:
            for x in fill[:1]:
                A(x)
        mfma1(s - 1, 2)
        if s >= 2 and s % 2 == 0 and s // 2 + 2 < 10:
            dmaX(s // 2 + 2)
        if s == 1:
            epoch_fix()
        for x in (fill[1:] if s & 1 else fill):
            A(x)
        mfma1(s - 1, 3)
        A("s_waitcnt lgkmcnt(0)")
    for i in range(4):
        mfma1(19, i)
    stamp(2); cstamp(11); fst(8, 0)
    A("s_nop 10")
    for nt in range(2):
        for g in range(4):
            a = ACC + 16 * nt + 4 * g
            A(f"v_pk_mul_f32 {vr(a,2)}, {vr(a,2)}, s[{sSC}:{sSC+1}]\nv_pk_mul_f32 {vr(a+2,2)}, {vr(a+2,2)}, s[{sSC}:{sSC+1}]")
            d = 64 + 8 * nt + 2 * g
            A(f"v_cvt_pk_bf16_f32 v{d}, v{a}, v{a+1}\nv_cvt_pk_bf16_f32 v{d+1}, v{a+2}, v{a+3}")
            if g & 1:
                d -= 2
                A(f"s_nop 0\nv_permlane16_swap_b32 v{d}, v{d+2}\nv_permlane16_swap_b32 v{d+1}, v{d+3}")
                A(f"buffer_store_dwordx4 {vr(d,4)}, v10, {S(WS)}, s{sST0 + (g >> 1)} offen offset:{256*nt} sc1")
    fst(8, 1)
    for x in post:
        A(x)


def qkv_idle():
    A(f"L_QKV_IDLE:\ns_waitcnt lgkmcnt(0)\ns_load_dword s{S_E}, {WSP}, {EPOCH}\ns_mov_b32 s{WS+2}, {WS_USED}\ns_mov_b32 s{WS+3}, 0x20000")
    for x in att_setup(None, None):
        A(x)
    A("s_waitcnt lgkmcnt(0)")
    epoch_fix()
    A("s_branch L_PUB")


def attention():
    Q = [8, 14]; O = [20, 36]; SS = [52, 68]; Kf = [84, 90]; Vf = [96, 104]; P = 112
    A("L_PUB:")
    for i in range(4):
        A(f"v_mov_b32 v{4+i}, 0x3f803f80")
    A(f"v_mov_b32 v2, s{S_E}\nv_mov_b32 v3, s{S_E+1}\nv_mov_b32 v8, {BADW}\nv_mov_b32 v9, 0")
    A("s_waitcnt vmcnt(0)")
    fst(8, 2)
    A("s_barrier")
    fst(8, 3)
    A(f"s_cmp_lg_u32 s{S_W}, 0\ns_cbranch_scc1 L_NOPUSH")
    A(f"buffer_store_dwordx2 v[2:3], v{vPush}, {S(WS)}, 0 offen sc1\ns_mov_b64 exec, 1\nbuffer_store_dwordx2 v[2:3], off, {S(WS)}, s{sF1} sc1\ns_mov_b64 exec, -1\nL_NOPUSH:")
    stamp(3)
    A(f"ds_write_b128 v{vOnes}, v[4:7]\nds_write_b32 v8, v9")
    A(f"s_waitcnt lgkmcnt(0)\ns_cmp_lg_u32 s{S_W}, 1\ns_cbranch_scc1 L_NOPOLL")
    spoll([(68, 8, 0), (84, 8, 64), (44, 4, 128)], sPV1, need=sNEED)
    A("L_NOPOLL:\ns_barrier")
    stamp(4); fst(8, 4)

    def dma_static(st, m, blk=None):
        if m == 2:
            sk2 = uid("D3")
            A(f"s_cbranch_vccz {sk2}")
        A(f"s_add_u32 m0, s{sLd+m}, {(st % 3) * SLOT}\ns_add_u32 s68, s{sG+m}, {2048 * st if blk is None else blk}")
        dma(vD, WS, 68, "sc1")
        if m == 2:
            A(f"{sk2}:")

    for x in range(2):
        A(f"buffer_load_dwordx2 {vr(Q[x],2)}, v{vQa+2*x}, {S(WS)}, s{sQ} offen sc1")
        A(f"buffer_load_dwordx2 {vr(Q[x]+2,2)}, v{vQa+2*x}, {S(WS)}, s{sQ+1} offen sc1")
        A(f"buffer_load_dwordx2 {vr(Q[x]+4,2)}, v{vQa+1+2*x}, {S(WS)}, s{sQ+2} offen sc1")
    A("L_ATT_MAIN:")
    A(f"s_cmp_lt_u32 s{S_W}, 4\ns_cselect_b64 vcc, -1, 0")
    for m in range(3):
        dma_static(0, m)
    flag_store(sH1, t=2, wave=7)
    A("s_waitcnt vmcnt(0)\ns_barrier")
    stamp(5); cstamp(8); fst(8, 5)

    def kreads(kl, off):
        A(f"ds_read_b64 {vr(kl,2)}, v{vK} offset:{off}\nds_read_b64 {vr(kl+2,2)}, v{vK} offset:{off+PS}\nds_read_b64 {vr(kl+4,2)}, v{vK1} offset:{off}")

    def vreads(vl, off):
        for j in range(4):
            A(f"ds_read_b64_tr_b16 {vr(vl+2*j,2)}, v{vV} offset:{off+64*j}")

    kreads(Kf[0], 0)
    vreads(Vf[0], 0)
    for m in range(2):
        dma_static(1, m)
    A("s_waitcnt lgkmcnt(4)")
    A(f"{MF32} {vr(SS[0],16)}, {vr(Kf[0],4)}, {vr(Q[0],4)}, 0\n{MF8} {vr(SS[0],16)}, {vr(Kf[0]+4,2)}, {vr(Q[0]+4,2)}, {vr(SS[0],16)}")
    dma_static(1, 2)
    A("s_nop 9")

    def tail_addr():
        A(f"s_lshl_b32 s64, s{S_W}, 12\ns_add_u32 s64, s64, {RED}\ns_xor_b32 s65, s{S_W}, 4\ns_lshl_b32 s65, s65, 12\ns_add_u32 s65, s65, {RED}")
        A(f"v_add_u32 v2, s64, v{vD}\nv_add_u32 v3, s65, v{vD}\ns_movk_i32 s69, 0x100\nv_cmp_gt_u32 s[66:67], s69, v{vD}")
        A(f"v_lshrrev_b32 v4, 9, v{vD}\nv_bfe_u32 v5, v{vD}, 8, 1\nv_lshl_add_u32 v5, v5, 1, v4\nv_mul_u32_u24 v5, {PL}, v5\nv_add_u32 v5, v5, v{vTok}")
        A(f"v_mov_b32 v4, {OOB}\nv_cndmask_b32 v4, v4, v{vTok}, s[66:67]")

    def unit(st, x, kt):
        s = SS[x]; sn = SS[1 - x]
        nk = kt if x == 0 else kt + 1
        kf = Kf[nk & 1]; qn = Q[1 - x]
        pk = kt - 1 if x == 0 else kt
        vprev = Vf[pk & 1]; v = Vf[kt & 1]
        last = st == 7 and kt == 3
        e = lambda i: A(f"v_exp_f32 v{s+i}, v{s+i}")
        c = lambda i: A(f"v_cvt_pk_bf16_f32 v{P+i}, v{s+2*i}, v{s+2*i+1}")
        nxt_off = ((st + 1) % 3) * SLOT if kt == 3 else (st % 3) * SLOT + 256 * (kt + 1)
        if x == 1 and not last:
            A("s_waitcnt lgkmcnt(0)")
        if not (last and x == 1):
            A(f"{MF32} {vr(sn,16)}, {vr(kf,4)}, {vr(qn,4)}, 0")
        e(0); e(1); e(2); e(3)
        if not (last and x == 1):
            A(f"{MF8} {vr(sn,16)}, {vr(kf+4,2)}, {vr(qn+4,2)}, {vr(sn,16)}")
        c(0); c(1); e(4); e(5); e(6); e(7)
        if (st, x, kt) != (0, 0, 0):
            A(f"{MF32} {vr(O[1-x],16)}, {vr(vprev+4,4)}, {vr(P+4,4)}, {vr(O[1-x],16)}")
        if not last:
            if x == 0:
                if kt == 3:
                    A("s_waitcnt vmcnt(0)")
                    if st == 0:
                        fc = uid("FC")
                        A(f"s_cmp_lg_u32 s{sChk}, 0\ns_cbranch_scc1 {fc}")
                        A(f"v_cmp_ne_u64 s[64:65], {EP}, v[2:3]\nv_cmp_ne_u64 s[66:67], {EP}, v[4:5]\ns_or_b64 s[64:65], s[64:65], s[66:67]\ns_cbranch_scc0 {fc}")
                        poll([vF6, vF7], t=2)
                        A(f"s_mov_b64 vcc, -1\n{fc}:")
                    A("s_barrier")
                kreads(Kf[(kt + 1) & 1], nxt_off)
            else:
                vreads(Vf[(kt + 1) & 1], nxt_off)
        site = {(1, 3): (0, st + 2), (0, 0): (1, st + 1), (1, 0): (2, st + 1)}.get((x, kt))
        if site and 2 <= site[1] < 8:
            dma_static(site[1], site[0])
        if st == OPT["g2s"] - 1 and 2 * kt + x == OPT["g2q"]:
            flag_store(sH2, t=6, wave=7)
        if (st, x, kt) == (1, 1, 1):
            tail_addr()
        if (st, x, kt) == (0, 0, 2):
            nf = uid("NF")
            A(f"s_cmp_lg_u32 s{sChk}, 0\ns_cbranch_scc1 {nf}")
            A(f"buffer_load_dwordx2 v[2:3], v{vF6}, {S(WS)}, 0 offen sc1\nbuffer_load_dwordx2 v[4:5], v{vF7}, {S(WS)}, 0 offen sc1\n{nf}:")
        if OPT["tog"]:
            A(f"s_setprio {1 - x}")
        c(2); c(3); e(8); e(9); e(10); e(11)
        if x == 0:
            A(f"s_waitcnt lgkmcnt({0 if last else 3})")
        A(f"{MF32} {vr(O[x],16)}, {vr(v,4)}, {vr(P,4)}, {'0' if (st, kt) == (0, 0) else vr(O[x],16)}")
        c(4); c(5); e(12); e(13); e(14); e(15); c(6); c(7)

    for st in range(8):
        for kt in range(4):
            unit(st, 0, kt)
            unit(st, 1, kt)
    A(f"s_setprio 2\ns_nop 0\n{MF32} {vr(O[1],16)}, {vr(Vf[1]+4,4)}, {vr(P+4,4)}, {vr(O[1],16)}")
    stamp(6); cstamp(9); fst(6, 0)
    assert RED + 8 * 4096 <= BADW
    o = O[0]
    lo, hi = f2u(2.0 ** -60), f2u(2.0 ** 60)
    if OPT["force_fb"]:
        hi = f2u(2.0 ** -59)
    A(f"v_mov_b32 v70, 0\nv_mov_b32 v71, 0\nv_mov_b32 v80, {lo}\nv_mov_b32 v81, {hi}\nv_mov_b32 v83, {BADW}")
    A(f"v_lshlrev_b32 v82, 4, v{vD}\nv_mov_b32 v84, s{S_E}\nv_mov_b32 v85, s{S_E+1}\ns_nop 3")
    for g in range(4):
        A(f"ds_write_b128 v2, {vr(O[1]+4*g,4)} offset:{1024*g}")
    fst(6, 1)
    A("s_waitcnt lgkmcnt(0)\ns_barrier")
    fst(6, 2)
    for g in (3, 0, 1, 2):
        A(f"ds_read_b128 {vr(52+4*g,4)}, v3 offset:{1024*g}")
    A(f"s_waitcnt lgkmcnt(3)\nv_add_f32 v{o+12}, v{o+12}, v{52+12}\nv_rcp_f32 v68, v{o+12}")
    for g in range(3):
        a = o + 4 * g
        A(f"s_waitcnt lgkmcnt({2-g})\nv_pk_add_f32 {vr(a,2)}, {vr(a,2)}, {vr(52+4*g,2)}\nv_pk_add_f32 {vr(a+2,2)}, {vr(a+2,2)}, {vr(54+4*g,2)}")
        A(f"v_pk_mul_f32 {vr(a,2)}, {vr(a,2)}, v[68:69] op_sel_hi:[1,0]\nv_pk_mul_f32 {vr(a+2,2)}, {vr(a+2,2)}, v[68:69] op_sel_hi:[1,0]")
        A(f"v_cvt_pk_bf16_f32 v{72+2*g}, v{a}, v{a+1}\nv_cvt_pk_bf16_f32 v{73+2*g}, v{a+2}, v{a+3}")
        if g == 1:
            A(f"s_nop 0\nv_permlane16_swap_b32 v72, v74\nv_permlane16_swap_b32 v73, v75")
            A(f"buffer_store_dwordx4 v[72:75], v5, {S(WS)}, s{sO0} offen sc1")
        if g == 2:
            A(f"v_mov_b32 v78, v76\nv_mov_b32 v79, v77\ns_nop 0\nv_permlane16_swap_b32 v76, v78\nv_permlane16_swap_b32 v77, v79")
            A(f"buffer_store_dwordx4 v[76:79], v4, {S(WS)}, s{sO1} offen sc1")
    for i in range(0, 12, 2):
        A(f"v_pk_fma_f32 v[70:71], {vr(o+i,2)}, 0, v[70:71] op_sel_hi:[1,0,1]")
    A(f"v_cmp_u_f32 vcc, v70, v71\nv_cmp_ngt_f32 s[66:67], v{o+12}, v80\ns_or_b64 vcc, vcc, s[66:67]\nv_cmp_nlt_f32 s[66:67], v{o+12}, v81\ns_or_b64 vcc, vcc, s[66:67]")
    A(f"s_cbranch_vccz L_NOBAD\nv_mov_b32 v81, 1\nds_write_b32 v83, v81\nL_NOBAD:")
    fst(6, 3)
    A("s_waitcnt lgkmcnt(0)\ns_barrier\nds_read_b32 v81, v83\ns_waitcnt vmcnt(0) lgkmcnt(0)\nv_readfirstlane_b32 s64, v81")
    fst(6, 4)
    A("s_barrier")
    fst(6, 5)
    A(f"s_cmp_gt_u32 s64, s{sPass}\ns_cbranch_scc1 L_ATT_FB")
    A(f"s_cmp_lg_u32 s{S_W}, 0\ns_cbranch_scc1 L_A_DONE\ns_mov_b32 exec_hi, 0\nbuffer_store_dwordx2 v[84:85], v82, {S(WS)}, s{sPV4} offen sc1\ns_mov_b64 exec, -1")
    stamp(7)
    A("L_A_DONE:")
    dump_stamps(12)
    A("s_endpgm")

    A("L_ATT_FB:")
    A(f"s_mov_b32 s{sPass}, 1\ns_mov_b32 s{sChk}, 1\ns_mov_b32 s34, 0\ns_cmp_lt_u32 s{S_W}, 4\ns_cselect_b64 vcc, -1, 0")
    A("v_mov_b32 v20, 0xff800000\nv_mov_b32 v21, 0xff800000")
    A("L_FB_LOOP:\ns_barrier")
    for m in range(3):
        dma_static(0, m, "s34")
    A("s_waitcnt vmcnt(0)\ns_barrier")
    for kt in range(4):
        kreads(Kf[0], 256 * kt)
        A("s_waitcnt lgkmcnt(0)")
        for x in range(2):
            A(f"{MF32} {vr(SS[x],16)}, {vr(Kf[0],4)}, {vr(Q[x],4)}, 0\n{MF8} {vr(SS[x],16)}, {vr(Kf[0]+4,2)}, {vr(Q[x]+4,2)}, {vr(SS[x],16)}")
        A("s_nop 15")
        for x in range(2):
            for i in range(0, 16, 2):
                A(f"v_max3_f32 v{20+x}, v{SS[x]+i}, v{SS[x]+i+1}, v{20+x}")
    A("s_add_u32 s34, s34, 2048\ns_cmp_lt_u32 s34, 16384\ns_cbranch_scc1 L_FB_LOOP")
    for x in range(2):
        A(f"v_mov_b32 v22, v{20+x}\ns_nop 1\nv_permlane32_swap_b32 v{20+x}, v22\nv_max_f32 v{20+x}, v{20+x}, v22")
    A(f"s_barrier\nds_write_b64 v2, v[20:21]\ns_waitcnt lgkmcnt(0)\ns_barrier\nds_read_b64 v[22:23], v3\ns_waitcnt lgkmcnt(0)")
    A("v_max_f32 v20, v20, v23\nv_max_f32 v21, v21, v22\nv_cmp_le_u32 vcc, 32, v1")
    for x in range(2):
        A(f"v_sub_f32 v24, 0, v{20+x}\nv_and_b32 v25, 0xffff0000, v24\nv_sub_f32 v24, v24, v25\nv_and_b32 v26, 0xffff0000, v24\nv_sub_f32 v24, v24, v26")
        A(f"v_lshrrev_b32 v25, 16, v25\nv_or_b32 v25, v25, v26\nv_lshrrev_b32 v24, 16, v24")
        A(f"v_cndmask_b32 v{Q[x]+4}, v{Q[x]+4}, v25, vcc\nv_cndmask_b32 v{Q[x]+5}, v{Q[x]+5}, v24, vcc")
    A(f"s_lshr_b32 s64, s{S_W}, 1\ns_min_u32 s64, s64, 2\ns_mul_i32 s64, s64, {SLOT}\ns_and_b32 s65, s{S_W}, 1\ns_lshl_b32 s65, s65, 10\ns_add_u32 s64, s64, s65\ns_add_u32 s64, s64, {10*PS}")
    A(f"v_add_u32 v24, s64, v{vD}")
    for i in range(4):
        A(f"v_mov_b32 v{28+i}, 0x3f803f80")
    A("s_barrier\nds_write_b128 v24, v[28:31]\ns_waitcnt lgkmcnt(0)\ns_branch L_ATT_MAIN")


def cmul(d, a, b, t):
    A(f"v_pk_mul_f32 {vr(t,2)}, {vr(a,2)}, {vr(b,2)} op_sel:[0,0] op_sel_hi:[1,0]")
    A(f"v_pk_fma_f32 {vr(d,2)}, {vr(a,2)}, {vr(b,2)}, {vr(t,2)} op_sel:[1,1,0] op_sel_hi:[0,1,1] neg_lo:[0,1,0]")


def cfma(d, a, b, c, t):
    A(f"v_pk_fma_f32 {vr(t,2)}, {vr(a,2)}, {vr(b,2)}, {vr(c,2)} op_sel:[0,0,0] op_sel_hi:[1,0,1]")
    A(f"v_pk_fma_f32 {vr(d,2)}, {vr(a,2)}, {vr(b,2)}, {vr(t,2)} op_sel:[1,1,0] op_sel_hi:[0,1,1] neg_lo:[0,1,0]")


def gather4(src, dst):
    if OPT["lscan"]:
        A(f"ds_write_b64 v0, {vr(src,2)}")
        for q in range(4):
            A(f"ds_read_b64 {vr(dst+2*q,2)}, v17 offset:{128*q}")
        A("s_waitcnt lgkmcnt(0)")
        return
    for c in range(2):
        A(f"v_mov_b32 v{dst+c}, v{src+c}\nv_mov_b32 v{dst+2+c}, v{src+c}")
    A("s_nop 0")
    for c in range(2):
        A(f"v_permlane16_swap_b32 v{dst+c}, v{dst+2+c}")
    for c in range(4):
        A(f"v_mov_b32 v{dst+4+c}, v{dst+c}")
    for c in range(4):
        A(f"v_permlane32_swap_b32 v{dst+c}, v{dst+4+c}")


sTC, sNB, sK, sROT, sCT = 41, 42, 43, 37, 36


def hoist():
    A(f"v_and_b32 v26, 15, v1\nv_add_u32 v123, s{sCT}, v26\nv_lshlrev_b32 v123, 3, v123")
    A(f"v_lshrrev_b32 v27, 4, v1\nv_mul_u32_u24 v28, {8*640}, v27\ns_sub_u32 s65, 32, s{sTC}\ns_mul_i32 s65, s65, 640\nv_add3_u32 v124, v123, v28, s65")
    A(f"v_mul_u32_u24 v28, 40960, v27\nv_lshl_add_u32 v125, v16, 4, v28")
    A(f"s_lshl_b32 s65, s{S_W}, 6\nv_add_u32 v28, s65, v1\nv_mul_u32_u24 v29, 6554, v28\nv_lshrrev_b32 v29, 16, v29\nv_mul_u32_u24 v30, 10, v29\nv_sub_u32 v30, v28, v30")
    A(f"v_and_b32 v28, 0x78, v29\nv_and_b32 v31, 1, v29\nv_lshl_add_u32 v28, v31, 2, v28\nv_bfe_u32 v31, v29, 1, 2\nv_add_u32 v28, v28, v31")
    A(f"v_mul_u32_u24 v28, 1280, v28\nv_lshl_add_u32 v28, v30, 4, v28\ns_mul_i32 s65, s{sNB}, 160\nv_add_u32 v117, s65, v28")
    A(f"v_lshrrev_b32 v28, 5, v1\nv_mul_u32_u24 v28, {PL}, v28\nv_and_b32 v29, 31, v1\nv_lshlrev_b32 v29, 4, v29\ns_and_b32 s65, s{S_W}, 1\ns_lshl_b32 s65, s65, 7\nv_xor_b32 v29, s65, v29\nv_add_u32 v119, v28, v29")
    A("v_bfe_u32 v30, v1, 2, 2\nv_and_b32 v31, 3, v1")
    sm, dn = uid("HS"), uid("HD")
    A(f"s_cmp_ge_u32 s{S_W}, 4\ns_cbranch_scc1 {sm}")
    for big in (True, False):
        if big:
            A(f"v_lshrrev_b32 v27, 5, v1\nv_and_b32 v26, 31, v1\ns_lshr_b32 s65, s{S_W}, 1\ns_and_b32 s66, s{S_W}, 1")
            A(f"s_lshl_b32 s67, s65, 5\ns_lshl_b32 s68, s66, 5")
            A(f"s_lshl_b32 s69, s65, 2\nv_bfe_u32 v28, v1, 4, 1\nv_lshlrev_b32 v28, 1, v28\nv_lshrrev_b32 v29, 1, v31\nv_add3_u32 v28, v28, v29, s69")
        else:
            A(f"{sm}:\ns_sub_u32 s65, s{S_W}, 4\ns_lshl_b32 s67, s65, 4\ns_mov_b32 s68, 64")
            A(f"s_lshl_b32 s69, s65, 1\nv_lshrrev_b32 v28, 1, v31\nv_add_u32 v28, s69, v28")
        A(f"v_mul_u32_u24 v28, 1088, v28\nv_lshl_add_u32 v29, v27, 3, v30\nv_lshl_add_u32 v28, v29, 4, v28\nv_and_b32 v29, 1, v31\nv_lshl_add_u32 v112, v29, 3, v28")
        A(f"v_add_u32 v28, s68, v26\nv_lshlrev_b32 v28, 7, v28\nv_add_u32 v28, 8704, v28\nv_bfe_u32 v29, v26, 1, 3\nv_xor_b32 v29, v29, v27\nv_lshl_add_u32 v113, v29, 4, v28")
        A(f"s_lshl_b32 s69, s{sTC}, 6\ns_add_u32 s69, s69, s67\nv_lshl_add_u32 v28, v27, 2, s69\ns_mul_i32 s69, s{sNB}, 80\ns_add_u32 s69, s69, s68\nv_add_u32 v29, s69, v26")
        A("v_mul_u32_u24 v114, 1280, v28\nv_lshl_add_u32 v114, v29, 1, v114\nv_mul_u32_u24 v115, 5120, v28\nv_lshl_add_u32 v115, v29, 2, v115\nv_lshlrev_b32 v126, 1, v29")
        A("v_lshlrev_b32 v28, 1, v30\nv_lshl_add_u32 v28, v27, 3, v28\nv_mul_u32_u24 v28, 160, v28\nv_lshl_add_u32 v28, v31, 3, v28")
        if big:
            A("v_bfe_u32 v29, v1, 4, 1\nv_lshl_add_u32 v28, v29, 5, v28\ns_lshl_b32 s69, s66, 6\nv_add_u32 v116, s69, v28")
            A("v_add_u32 v28, s67, v26\nv_lshlrev_b32 v28, 3, v28\nv_lshlrev_b32 v29, 7, v27\nv_xor_b32 v28, v28, v29\nv_lshl_add_u32 v28, v27, 10, v28\ns_mul_i32 s69, s65, 40960\nv_add_u32 v118, s69, v28")
            A(f"v_lshlrev_b32 v122, 4, v1\nv_mov_b32 v127, 0\nv_mov_b32 v26, 0\nv_mov_b32 v27, 0\nv_mov_b32 v28, 0\ns_branch {dn}")
        else:
            A("v_add_u32 v116, 128, v28")
            A("v_add_u32 v28, s67, v26\nv_lshlrev_b32 v28, 3, v28\nv_and_b32 v29, 1, v27\nv_lshlrev_b32 v29, 7, v29\nv_xor_b32 v28, v28, v29\nv_lshl_add_u32 v118, v27, 10, v28")
            A(f"v_lshrrev_b32 v28, 3, v1\ns_mul_i32 s69, s{sNB}, 80\ns_lshl_b32 s66, s65, 3\ns_add_u32 s69, s69, s66\nv_add_u32 v28, s69, v28\nv_mul_u32_u24 v28, 1280, v28")
            A(f"v_and_b32 v29, 7, v1\nv_xor_b32 v29, v29, v27\ns_and_b32 s69, s65, 1\ns_lshl_b32 s69, s69, 2\nv_xor_b32 v29, s69, v29\nv_lshl_add_u32 v122, v29, 4, v28")
            A("v_xor_b32 v127, 64, v113\nv_add_u32 v26, 40960, v122\nv_add_u32 v27, 81920, v122\nv_add_u32 v28, 40960, v118")
    A(f"{dn}:")


def role_b():
    A("L_ROLE_B:\ns_cmp_ge_u32 s2, 512\ns_cbranch_scc1 L_END")
    if OPT.get("nob"):
        A("s_endpgm")
    stamp(0)
    A(f"s_load_dwordx16 s[8:23], s[0:1], 0\ns_load_dwordx8 s[24:31], s[0:1], 64\ns_load_dwordx2 s[{P_OUT}:{P_OUT+1}], s[0:1], 96\ns_load_dwordx2 s[{WS}:{WS+1}], s[0:1], 112")
    A(f"v_lshrrev_b32 v2, 6, v0\nv_and_b32 v1, 63, v0\nv_readfirstlane_b32 s{S_W}, v2")
    bhi()
    if OPT["cpre"]:
        cp = uid("CP")
        A(f"s_cmp_lg_u32 s{S_W}, 7\ns_cbranch_scc1 {cp}\ns_getpc_b64 s[64:65]\nL_PC:\ns_sub_u32 s64, s64, L_PC-{NAME}_kernel\ns_subb_u32 s65, s65, 0")
        A("s_bfe_u32 s66, s2, 0x50003\ns_lshl_b32 s66, s66, 11\nv_and_b32 v2, 15, v1\nv_lshlrev_b32 v2, 7, v2\nv_add_u32 v2, s66, v2")
        A(f"v_min_u32 v2, L_END-{NAME}_kernel, v2\nv_mov_b32 v3, s65\nv_add_co_u32 v2, vcc, s64, v2\ns_nop 1\nv_addc_co_u32 v3, vcc, 0, v3, vcc\nglobal_load_dword v4, v[2:3], off\n{cp}:")
    A(f"s_and_b32 s{sTC}, s2, 3\ns_lshl_b32 s{sTC}, s{sTC}, 3\ns_bfe_u32 s64, s2, 0x30003\ns_add_u32 s{sTC}, s{sTC}, s64")
    A(f"s_and_b32 s{sNB}, s2, 4\ns_bfe_u32 s64, s2, 0x20006\ns_add_u32 s{sNB}, s{sNB}, s64")
    A(f"s_mul_i32 s{sROT}, s{sNB}, 3\ns_add_u32 s{sROT}, s{sROT}, s{sTC}")
    A(f"s_mul_i32 s64, s{sROT}, 205\ns_lshr_b32 s64, s64, 11\ns_mul_i32 s64, s64, 10\ns_sub_u32 s{sROT}, s{sROT}, s64")
    if not OPT["brot"]:
        A(f"s_mov_b32 s{sROT}, 0")
    A(f"s_mov_b32 s{WS+2}, {WS_USED}\ns_mov_b32 s{WS+3}, 0x20000\ns_waitcnt lgkmcnt(0)\ns_load_dword s{S_E}, {WSP}, {EPOCH}")
    MU, CF, MU16, PW, LAM, LAM8 = 2, 4, 6, 8, 10, 12
    A(f"s_min_u32 s{sCT}, s{S_W}, 4\ns_lshl_b32 s{sCT}, s{sCT}, 4\ns_mul_i32 s64, s{sNB}, 80\ns_add_u32 s64, s64, s{sCT}")
    A(f"v_and_b32 v16, 15, v1\nv_add_u32 v16, s64, v16\nv_lshlrev_b32 v21, 1, v16")
    srd(R0, P_LRE, 1280); srd(R1, P_LIM, 1280); srd(R2, P_LDT, 1280)
    A(f"buffer_load_ushort v22, v21, {S(R0)}, 0 offen\nbuffer_load_ushort v23, v21, {S(R1)}, 0 offen\nbuffer_load_ushort v24, v21, {S(R2)}, 0 offen")
    A("s_waitcnt vmcnt(0) lgkmcnt(0)")
    epoch_fix()
    LOG2E = f2u(math.log2(math.e))
    A("v_lshlrev_b32 v22, 16, v22\nv_lshlrev_b32 v23, 16, v23\nv_lshlrev_b32 v24, 16, v24")
    A(f"v_mul_f32 v24, {LOG2E}, v24\nv_exp_f32 v24, v24\ns_nop 0\nv_cvt_pk_bf16_f32 v24, v24, v24\nv_lshlrev_b32 v24, 16, v24")
    A(f"v_mul_f32 v25, v24, v22\nv_mul_f32 v26, v24, v23\nv_mul_f32 v25, {LOG2E}, v25\nv_exp_f32 v25, v25")
    A(f"v_mul_f32 v26, 0.15915494, v26\nv_fract_f32 v26, v26\nv_cos_f32 v27, v26\nv_sin_f32 v28, v26\ns_nop 0")
    A(f"v_mul_f32 v{MU}, v25, v27\nv_mul_f32 v28, v25, v28\nv_sub_f32 v{MU+1}, 0, v28")
    A(f"v_add_f32 v27, -1.0, v{MU}")
    A("v_mul_f32 v25, v22, v22\nv_fmac_f32 v25, v23, v23\nv_rcp_f32 v25, v25")
    A("v_mul_f32 v26, v27, v22\nv_fmac_f32 v26, v28, v23\nv_mul_f32 v29, v28, v22\nv_fma_f32 v29, -v27, v23, v29")
    A(f"v_add_f32 v25, v25, v25\nv_mul_f32 v{CF}, v26, v25\nv_mul_f32 v29, v29, v25\nv_sub_f32 v{CF+1}, 0, v29")
    cmul(MU16, MU, MU, 22)
    for _ in range(3):
        cmul(MU16, MU16, MU16, 22)
    cmul(24, MU16, MU16, 22)
    cmul(26, 24, MU16, 22)
    cmul(LAM, 24, 24, 22)
    cmul(LAM8, LAM, LAM, 22)
    cmul(LAM8, LAM8, LAM8, 22)
    cmul(LAM8, LAM8, LAM8, 22)
    A("v_lshrrev_b32 v28, 4, v1")
    A(f"v_cmp_eq_u32 s[96:97], 1, v28\nv_cmp_eq_u32 s[98:99], 2, v28\nv_cmp_eq_u32 s[100:101], 3, v28")
    A(f"v_mov_b32 v{PW}, 1.0\nv_mov_b32 v{PW+1}, 0")
    for src, m in ((MU16, 96), (24, 98), (26, 100)):
        for c in range(2):
            A(f"v_cndmask_b32 v{PW+c}, v{PW+c}, v{src+c}, s[{m}:{m+1}]")
    vS0, vRA, vRB = 14, 18, 22
    srd(R0, P_BX, 2621440); srd(R1, P_BRE, 819200); srd(R2, P_BIM, 819200)
    hoist()
    A(f"s_lshl_b32 s{sK}, s{sROT}, 7")
    A("v_lshrrev_b32 v30, 4, v1\nv_and_b32 v31, 7, v1\nv_xor_b32 v31, v31, v30\nv_lshlrev_b32 v31, 4, v31")
    A(f"v_and_b32 v30, 31, v1\nv_lshlrev_b32 v30, 7, v30\nv_lshrrev_b32 v17, 5, v1\nv_bfe_u32 v29, v1, 1, 3\nv_xor_b32 v29, v17, v29\nv_lshl_add_u32 v{vRA}, v29, 4, v30")

    def scan_addr():
        A(f"s_mul_i32 s66, s{sCT}, 576\ns_add_u32 s66, s66, 20480\ns_lshl_b32 s67, s{sCT}, 5\ns_add_u32 s67, s67, 66560")
        A(f"v_and_b32 v0, 15, v1\nv_lshl_add_u32 v29, v17, 5, v0\nv_mul_u32_u24 v29, 144, v29\nv_bfe_u32 v30, v1, 4, 1\nv_lshl_add_u32 v29, v30, 2, v29\nv_add_u32 v29, s66, v29\nv_add_u32 v30, 2304, v29")
        A(f"v_mul_u32_u24 v31, 144, v1\nv_add_u32 v31, s66, v31\nv_lshl_add_u32 v17, v0, 3, s67\nv_lshl_add_u32 v0, v1, 3, s67")

    def touch2():
        if not OPT["ctouch"]:
            return
        t1, t2 = uid("U1"), uid("U2")
        A(f"s_and_b32 s66, s{sTC}, 7\ns_mul_i32 s39, s66, 10\ns_mul_i32 s68, s{sNB}, 80\ns_add_u32 s39, s39, s68\ns_mul_i32 s39, s39, 1280")
        A(f"s_cmp_eq_u32 s{S_W}, 7\ns_cbranch_scc1 {t1}")
        A(f"s_cmp_eq_u32 s{S_W}, 4\ns_cselect_b32 s{R1}, s{P_CRE}, s{P_CIM}\ns_cselect_b32 s{R1+1}, s{P_CRE+1}, s{P_CIM+1}")
        A(f"v_lshlrev_b32 v66, 7, v1\nv_min_u32 v67, 35, v1\nv_lshlrev_b32 v67, 7, v67\nv_add_u32 v67, 8192, v67")
        A(f"buffer_load_dword v64, v66, {S(R1)}, s39 offen\nbuffer_load_dword v65, v67, {S(R1)}, s39 offen\ns_branch {t2}\n{t1}:")
        srd(R1, P_WO, 819200)
        A(f"s_mul_i32 s66, s66, {80*1280}\ns_mul_i32 s67, s{sNB}, 160\ns_add_u32 s66, s66, s67")
        A(f"v_lshrrev_b32 v66, 1, v1\nv_mul_u32_u24 v66, 1280, v66\nv_and_b32 v67, 1, v1\nv_mul_u32_u24 v67, 156, v67\nv_add_u32 v66, v66, v67")
        A(f"buffer_load_dword v64, v66, {S(R1)}, s66 offen\ns_add_u32 s66, s66, {32*1280}\nbuffer_load_dword v65, v66, {S(R1)}, s66 offen")
        A(f"s_add_u32 s66, s66, {16*1280}\nbuffer_load_dword v67, v66, {S(R1)}, s66 offen\n{t2}:")

    def advK():
        A(f"s_add_u32 s{sK}, s{sK}, 128\ns_cmp_eq_u32 s{sK}, 1280\ns_cselect_b32 s{sK}, 0, s{sK}")

    ACC, BF, AF = 32, 64, 80
    SH = 12288
    A(f"s_cmp_ge_u32 s{S_W}, 4\ns_cbranch_scc1 L_G1_AUX")
    A(f"v_lshrrev_b32 v30, 3, v1\nv_add_u32 v30, s64, v30\nv_mul_u32_u24 v30, 1280, v30\nv_add_u32 v{vS0}, v30, v31")
    A(f"v_xor_b32 v{vS0+1}, 64, v{vS0}\nv_add_u32 v{vS0+1}, 10240, v{vS0+1}")
    A(f"s_lshl_b32 s38, s{S_W}, 13\ns_add_u32 s38, s38, {3*SH}")
    for u in range(1, 4):
        A(f"v_xor_b32 v{vRA+u}, {32*u}, v{vRA}")
    for u in range(4):
        A(f"v_add_u32 v{vRB+u}, s38, v{vRA+u}")
    scan_addr()
    A(f"s_cmp_lg_u32 s{S_W}, 0\ns_cbranch_scc1 L_NOHINT\ns_sub_u32 s66, s2, 256\ns_lshl_b32 s66, s66, 7\ns_add_u32 s66, s66, {F0}")
    spoll([(8, 1, 0)], 66)
    A("L_NOHINT:\ns_barrier")
    stamp(1)
    blo()

    def dmaB(Sx):
        for q in range(4):
            A(f"s_add_u32 m0, s38, {(Sx % 2) * 4096 + q * 1024}\ns_nop 0")
            dma(vS0 + (q & 1), R1 if q < 2 else R2, sK)
        advK()

    def g1_mm(Sx, u, tts=(0, 1)):
        for tt in tts:
            c = "0" if (Sx == 0 and u == 0) else vr(ACC + 16 * tt, 16)
            A(f"{MF32} {vr(ACC+16*tt,16)}, {vr(AF+8*u+4*tt,4)}, {vr(BF+4*u,4)}, {c}")

    dmaB(0); dmaB(1)
    for Sx in range(10):
        fst(1, Sx)
        A(f"s_waitcnt vmcnt({4 if Sx < 9 else 0})")
        for u in range(3):
            A(f"ds_read_b128 {vr(BF+4*u,4)}, v{vRB+u} offset:{(Sx % 2) * 4096}")
        A("s_barrier")
        if Sx:
            g1_mm(Sx - 1, 3, (0,))
        for u in range(3):
            for tt in range(2):
                A(f"ds_read_b128 {vr(AF+8*u+4*tt,4)}, v{vRA+u} offset:{(Sx % 3) * SH + 4096*tt}")
        if Sx:
            g1_mm(Sx - 1, 3, (1,))
        A(f"ds_read_b128 {vr(BF+12,4)}, v{vRB+3} offset:{(Sx % 2) * 4096}")
        for tt in range(2):
            A(f"ds_read_b128 {vr(AF+24+4*tt,4)}, v{vRA+3} offset:{(Sx % 3) * SH + 4096*tt}")
        A("s_waitcnt lgkmcnt(7)")
        g1_mm(Sx, 0)
        A("s_waitcnt lgkmcnt(5)")
        g1_mm(Sx, 1)
        A("s_waitcnt lgkmcnt(3)")
        g1_mm(Sx, 2)
        A("s_waitcnt lgkmcnt(0)")
        if Sx + 2 < 10:
            dmaB(Sx + 2)
    g1_mm(9, 3)
    A("s_barrier\ns_nop 10\ns_branch L_SCAN")

    A("L_G1_AUX:")
    A(f"s_cmp_eq_u32 s{S_W}, 4\ns_cbranch_scc1 L_G1_LD\ns_cmp_eq_u32 s{S_W}, 7\ns_cbranch_scc1 L_G1_LD")
    A(f"v_lshrrev_b32 v30, 3, v1\nv_add_u32 v30, s64, v30\nv_mul_u32_u24 v30, 1280, v30\nv_add_u32 v{vS0}, v30, v31")
    A(f"v_xor_b32 v{vS0+1}, 64, v{vS0}\nv_add_u32 v{vS0+1}, 10240, v{vS0+1}")
    A(f"s_cmp_eq_u32 s{S_W}, 5\ns_cselect_b32 s{R3}, s{R1}, s{R2}\ns_cselect_b32 s{R3+1}, s{R1+1}, s{R2+1}\ns_mov_b32 s{R3+2}, 819200\ns_mov_b32 s{R3+3}, 0x20000")
    A(f"s_sub_u32 s38, s{S_W}, 5\ns_lshl_b32 s66, s38, 12\ns_lshl_b32 s38, s38, 11")
    for u in range(1, 4):
        A(f"v_xor_b32 v{vRA+u}, {32*u}, v{vRA}")
    for u in range(4):
        A(f"v_add_u32 v{vRB+u}, s66, v{vRA+u}")
    scan_addr()
    A("s_barrier")
    blo()

    def dmaB4(Sx):
        for q in range(2):
            A(f"s_add_u32 m0, s38, {(Sx % 3) * SH + 8192 + q * 1024}\ns_nop 0")
            dma(vS0 + q, R3, sK)
        advK()

    dmaB4(0); dmaB4(1)
    for Sx in range(10):
        A(f"s_waitcnt vmcnt({2 if Sx < 9 else 0})\ns_barrier")
        for u in range(4):
            A(f"ds_read_b128 {vr(BF+4*u,4)}, v{vRA+u} offset:{(Sx % 3) * SH + 8192}")
            A(f"ds_read_b128 {vr(AF+4*u,4)}, v{vRB+u} offset:{(Sx % 3) * SH}")
        for u in range(4):
            A(f"s_waitcnt lgkmcnt({6-2*u})")
            c = "0" if (Sx == 0 and u == 0) else vr(ACC, 16)
            A(f"{MF32} {vr(ACC,16)}, {vr(AF+4*u,4)}, {vr(BF+4*u,4)}, {c}")
        if Sx + 2 < 10:
            dmaB4(Sx + 2)
    if OPT["lscan"]:
        A(f"s_cmp_eq_u32 s{S_W}, 5\ns_cbranch_scc1 L_G1_RED\ns_barrier\ns_nop 8")
        for j in range(0, 16, 4):
            for p in range(2):
                A(f"ds_write2_b32 v{29+p}, v{ACC+j+p}, v{ACC+j+p+2} offset0:{16 + j} offset1:{18 + j}")
        A("s_waitcnt lgkmcnt(0)\ns_barrier")
        bhi()
        touch2()
        A("s_branch L_G1_AUX2")
    else:
        bhi()
        A(f"v_lshlrev_b32 v30, 4, v1\ns_cmp_eq_u32 s{S_W}, 5\ns_cbranch_scc1 L_G1_RED\ns_nop 8")
        for g in range(4):
            A(f"ds_write_b128 v30, {vr(ACC+4*g,4)} offset:{SH + 1024*g}")
        A("s_waitcnt lgkmcnt(0)\ns_branch L_G1_AUXEND")

    A("L_G1_LD:")
    A(f"s_cmp_eq_u32 s{S_W}, 7\ns_cselect_b32 s38, 1, 0")
    A(f"v_bfe_u32 v29, v1, 3, 1\nv_lshl_add_u32 v30, v17, 1, v29\nv_lshlrev_b32 v30, 4, v30\nv_bfe_u32 v29, v1, 4, 1\nv_add_u32 v30, v30, v29")
    A(f"s_lshl_b32 s66, s{sTC}, 6\ns_lshl_b32 s67, s38, 3\ns_add_u32 s66, s66, s67\nv_add_u32 v30, s66, v30\nv_mul_u32_u24 v30, 1280, v30\nv_add_u32 v{vS0}, v30, v31")
    A(f"v_xor_b32 v{vS0+1}, 64, v{vS0}\nv_add_u32 v{vS0+1}, 2560, v{vS0+1}\nv_add_u32 v22, 5120, v{vS0}\nv_add_u32 v23, 5120, v{vS0+1}")
    A(f"v_and_b32 v24, 31, v1\nv_min_u32 v24, s{sTC}, v24\nv_lshlrev_b32 v24, 3, v24\ns_lshl_b32 s68, s{sNB}, 8\ns_add_u32 s68, s68, {F2}\nv_add_u32 v24, s68, v24")
    A("s_lshl_b32 s38, s38, 12\ns_waitcnt vmcnt(0)\ns_barrier")

    def dmaX(Sx):
        for q in range(4):
            A(f"s_add_u32 m0, s38, {(Sx % 3) * SH + q * 1024}\ns_nop 0")
            dma([vS0, vS0 + 1, 22, 23][q], R0, sK)
        advK()

    dmaX(0); dmaX(1)
    for Sx in range(10):
        A(f"s_waitcnt vmcnt({4 if Sx < 9 else 0})\ns_barrier")
        if Sx + 2 < 10:
            dmaX(Sx + 2)
    A("L_G1_AUXEND:")
    touch2()
    A("s_barrier")
    if OPT["lscan"]:
        A("s_barrier\nL_G1_AUX2:")
    A("s_barrier")
    A(f"s_cmp_lg_u32 s{S_W}, 7\ns_cbranch_scc1 L_NOF2")
    poll([24], t=120)
    A("L_NOF2:\ns_barrier\ns_branch L_B_H")
    A("L_G1_RED:\ns_barrier")
    if OPT["lscan"]:
        A("s_nop 8")
        for j in range(0, 16, 4):
            for p in range(2):
                A(f"ds_write2_b32 v{29+p}, v{ACC+j+p}, v{ACC+j+p+2} offset0:{j} offset1:{2 + j}")
        A("s_branch L_SCAN2")
    else:
        for g in range(4):
            A(f"ds_read_b128 {vr(ACC+16+4*g,4)}, v30 offset:{SH + 1024*g}")
        A("s_waitcnt lgkmcnt(0)\ns_nop 1")
    A("L_SCAN:")
    stamp(2)
    if OPT["lscan"]:
        for tt in range(2):
            for j in range(0, 16, 4):
                for p in range(2):
                    A(f"ds_write2_b32 v{29+p}, v{ACC+16*tt+j+p}, v{ACC+16*tt+j+p+2} offset0:{16*tt + j} offset1:{16*tt + 2 + j}")
        A("L_SCAN2:\ns_waitcnt lgkmcnt(0)\ns_barrier")
        for i in range(8):
            A(f"ds_read_b128 {vr(ACC+4*i,4)}, v31 offset:{16*i}")
        bhi()
    else:
        bhi()
        for i in range(16):
            A(f"v_permlane16_swap_b32 v{ACC+2*i}, v{ACC+2*i+1}")
    for i in range(16):
        u = ACC + 2 * i
        t = 64 + 2 * (i & 1)
        if OPT["lscan"] and i % 2 == 0:
            A(f"s_waitcnt lgkmcnt({7 - i // 2})")
        A(f"v_pk_mul_f32 {vr(t,2)}, {vr(u,2)}, {vr(CF,2)} op_sel:[0,0] op_sel_hi:[0,1]")
        A(f"v_pk_fma_f32 {vr(u,2)}, {vr(u,2)}, {vr(CF,2)}, {vr(t,2)} op_sel:[1,1,0] op_sel_hi:[1,0,1] neg_hi:[0,1,0]")
    G, T = 68, 70
    cfma(G, ACC, MU, ACC + 2, T)
    for i in range(2, 16):
        cfma(G, G, MU, ACC + 2 * i, T)
    E4 = 72
    A(f"s_mul_i32 s64, s{sNB}, 20480\ns_add_u32 s64, s64, {EB}\ns_add_u32 s{R3}, s{WS}, s64\ns_addc_u32 s{R3+1}, s{WS+1}, 0\ns_mov_b32 s{R3+2}, 20480\ns_mov_b32 s{R3+3}, 0x20000")
    gather4(G, E4)
    PRE = 80
    cfma(82, E4, MU16, E4 + 2, T)
    cfma(84, 82, MU16, E4 + 4, T)
    cfma(86, 84, MU16, E4 + 6, T)
    A(f"s_sub_u32 s64, 31, s{sTC}\ns_mul_i32 s64, s64, 640\ns_mov_b64 exec, 0xffff")
    A(f"buffer_store_dwordx2 v[86:87], v123, {S(R3)}, s64 offen sc1\ns_mov_b64 exec, -1")
    A(f"v_mov_b32 v{PRE}, 0\nv_mov_b32 v{PRE+1}, 0")
    for src, m in ((E4, 96), (82, 98), (84, 100)):
        for c in range(2):
            A(f"v_cndmask_b32 v{PRE+c}, v{PRE+c}, v{src+c}, s[{m}:{m+1}]")
    A(f"s_lshl_b32 s68, s{sNB}, 8\ns_lshl_b32 s69, s{sTC}, 3\ns_add_u32 s68, s68, s69\ns_add_u32 s68, s68, {F2}")
    A("s_waitcnt vmcnt(0)\ns_barrier")
    flag_store(68)
    stamp(3)
    A("s_movk_i32 s64, 4480\ns_barrier")
    stamp(4)
    EL = 96
    for u in range(8):
        d = 7 - u
        A(f"buffer_load_dwordx2 {vr(EL+2*u,2)}, v124, {S(R3)}, {'s64' if d == 7 else '0'} offen offset:{0 if d == 7 else 640*d} sc1")
    A("s_waitcnt vmcnt(6)")
    cfma(G, EL, LAM, EL + 2, T)
    for u in range(2, 8):
        A(f"s_waitcnt vmcnt({7-u})")
        cfma(G, G, LAM, EL + 2 * u, T)
    gather4(G, E4)
    cfma(G, E4 + 6, LAM8, E4 + 4, T)
    cfma(G, G, LAM8, E4 + 2, T)
    cfma(G, G, LAM8, E4, T)
    cfma(G, G, PW, PRE, T)
    PK = 72
    A(f"s_mul_i32 s64, s{sTC}, 163840\ns_add_u32 s64, s64, {HB}")
    for tt in range(2):
        for i in range(8 * tt, 8 * tt + 8):
            cfma(ACC + 2 * i, G if i == 0 else ACC + 2 * i - 2, MU, ACC + 2 * i, T)
        for c in range(2):
            d = PK + 8 * tt + 4 * c
            for m in range(4):
                a = ACC + 16 * tt + 4 * m + c
                A(f"v_cvt_pk_bf16_f32 v{d+m}, v{a}, v{a+2}")
            A(f"s_add_u32 s65, s64, {tt*20480 + c*10240}")
            A(f"buffer_store_dwordx4 {vr(d,4)}, v125, {S(WS)}, s65 offen sc1")
    A("s_waitcnt vmcnt(0)")
    A("L_B_H:")
    A(f"s_lshl_b32 s68, s{sTC}, 7\ns_lshl_b32 s69, s{sNB}, 3\ns_add_u32 s68, s68, s69\ns_add_u32 s68, s68, {F3}")
    bhi()
    A("s_barrier")
    flag_store(68)
    stamp(5)
    A(f"s_cmp_ge_u32 s{S_W}, 4\ns_cbranch_scc1 L_B_SMALL")
    tail(True)
    A("L_B_SMALL:")
    tail(False)


def tail(big):
    nacc = 16 if big else 4
    ACC = 16 if big else 12
    WF = 48
    MF = MF32 if big else MF16
    rows = [8 * (i >> 2) + (i & 3) for i in range(nacc)]
    srd(R3, P_DSK, 1280)
    A(f"buffer_load_ushort v0, v126, {S(R3)}, 0 offen")
    for i in range(nacc):
        A(f"s_mov_b32 s64, {rows[i]*1280}\nbuffer_load_ushort v{32+i}, v114, {S(R0)}, s64 offen")
    srd(R1, P_WO, 819200)
    A(f"s_lshl_b32 s46, s{S_W}, 10")

    def wo_dma(r, vWs):
        sk = uid("WD")
        if not big:
            A(f"s_cmp_ge_u32 s{S_W}, 5\ns_cbranch_scc1 {sk}")
        for m in range(10):
            A(f"s_add_u32 m0, s46, {5120*m}\ns_mov_b32 s64, {(320*r + 32*m) * 1280}")
            dma(vWs, R1, 64)
        A(f"{sk}:")

    wo_dma(0, 117)
    if big:
        vA, vB, vS, vOut, vO, vOs, vW, vWs = 2, 3, 4, 5, 6, 7, 8, 9
        mv = ((2, 112), (3, 113), (4, 122), (5, 115), (6, 118), (8, 116), (9, 117))
    else:
        vA, vB, vS, vOut, vO, vOs, vW, vWs = 2, 3, 9, 5, 6, 10, 16, 17
        mv = ((2, 112), (3, 113), (4, 127), (5, 115), (6, 118), (7, 28), (9, 122), (10, 119), (8, 26), (11, 27), (16, 116), (17, 117))
        A(f"s_sub_u32 s95, s{S_W}, 4")
    for d, sreg in mv:
        A(f"v_mov_b32 v{d}, v{sreg}")
    A(f"s_waitcnt vmcnt({10 if big else 0})")
    for i in range(nacc):
        A(f"v_dot2_f32_bf16 v{ACC+i}, v{32+i}, v0, 0")
    blo()
    for r in range(2):
        if r:
            wo_dma(1, vWs)
        A("s_waitcnt vmcnt(0)\ns_barrier")
        if big:
            sk2 = uid("WR")
            A(f"s_lshr_b32 s64, s{S_W}, 1\ns_cmp_lg_u32 s64, {r}\ns_cbranch_scc1 {sk2}")
            for u in range(20):
                for j in range(2):
                    A(f"ds_read_b64_tr_b16 {vr(WF+4*u+2*j,2)}, v{vW} offset:{2560*u + 160*j}")
            A(f"{sk2}:")
        else:
            for U in range(10):
                for j in range(2):
                    A(f"ds_read_b64_tr_b16 {vr(WF+40*r+4*U+2*j,2)}, v{vW} offset:{5120*U + 160*j}")
        A("s_waitcnt lgkmcnt(0)\ns_barrier")
    SL = 18944
    srd(R1, P_CRE, 819200); srd(R2, P_CIM, 819200)
    bhi()
    if big:
        A(f"s_mul_i32 s44, s{sTC}, 163840\ns_mul_i32 s64, s{S_W}, 40960\ns_add_u32 s44, s44, s64\ns_add_u32 s44, s44, {HB}")
        A(f"s_mul_i32 s46, s{S_W}, 2176\ns_lshl_b32 s{sK}, s{sROT}, 10")
        A(f"s_lshl_b32 s45, s{sTC}, 7\ns_add_u32 s45, s45, {F3}")
        A(f"s_and_b32 s47, s{sNB}, 3\ns_mul_i32 s47, s47, 40960\ns_mul_i32 s66, s{S_W}, 30720\ns_sub_u32 s47, s47, s66\ns_add_u32 s47, s47, s44")
        A("v_and_b32 v8, 7, v1\nv_lshl_add_u32 v8, v8, 3, s45")
        poll([8], t=10)
        stamp(6)
        if OPT["htouch"]:
            A(f"v_lshlrev_b32 v8, 7, v1\nv_min_u32 v9, 15, v1\nv_lshlrev_b32 v9, 7, v9\nv_add_u32 v9, 8192, v9")
            A(f"buffer_load_dword v10, v8, {S(WS)}, s47 offen sc1\nbuffer_load_dword v11, v9, {S(WS)}, s47 offen sc1")
        A(f"v_xor_b32 v0, 32, v{vB}\nv_xor_b32 v1, 64, v{vB}\nv_xor_b32 v7, 96, v{vB}")
    else:
        A(f"s_lshl_b32 s46, s95, 10\ns_lshl_b32 s{sK}, s{sROT}, 7")
    vSs = [vS, 8, 11]

    def g2_dma(Sx):
        sb = (Sx % 4) * SL
        if big:
            for i in range(2):
                A(f"s_add_u32 m0, s46, {sb + 1088*i}\ns_add_u32 s64, s44, s{sK}")
                if i or Sx >= 10:
                    A(f"s_add_u32 s64, s64, {20480*i + (10240 if Sx >= 10 else 0)}")
                dma(vS, WS, 64, "sc1")
            A(f"s_add_u32 s{sK}, s{sK}, 1024\ns_cmp_eq_u32 s{sK}, 10240\ns_cselect_b32 s{sK}, 0, s{sK}")
        else:
            for m in range(3):
                if m == 2:
                    sk = uid("SD")
                    A(f"s_cmp_ge_u32 s95, 2\ns_cbranch_scc1 {sk}")
                A(f"s_add_u32 m0, s46, {sb + 8704 + 4096*m}\ns_nop 0")
                dma(vSs[m], R1 if Sx < 10 else R2, sK)
            A(f"{sk}:")
            A(f"s_add_u32 s{sK}, s{sK}, 128\ns_cmp_eq_u32 s{sK}, 1280\ns_cselect_b32 s{sK}, 0, s{sK}")

    for Sx in range(4):
        g2_dma(Sx)
    if big:
        sk = uid("G2W")
        A(f"s_cmp_lg_u32 s{S_W}, 0\ns_cbranch_scc1 {sk}\ns_sub_u32 s66, s2, 256\ns_lshl_b32 s66, s66, 7\ns_add_u32 s66, s66, {F0B}")
        spoll([(8, 1, 0)], 66)
        A(f"{sk}:")
    blo()
    if big:
        SET = [32, 40, 8]

        def rd(n):
            Sx, u = n >> 2, n & 3
            f, sb = SET[n % 3], (Sx % 4) * SL
            for j in range(2):
                A(f"ds_read_b64_tr_b16 {vr(f+2*j,2)}, v{vA} offset:{sb + 256*u + 64*j}")
            A(f"ds_read_b128 {vr(f+4,4)}, v{[vB, 0, 1, 7][u]} offset:{sb}")

        def mm(n):
            if n >= 0:
                f = SET[n % 3]
                A(f"{MF} {vr(ACC,16)}, {vr(f,4)}, {vr(f+4,4)}, {vr(ACC,16)}")

        for Sx in range(20):
            infl = 3 if Sx == 0 else min(Sx + 3, 20) - Sx - 1
            n = 4 * Sx
            A(f"s_waitcnt vmcnt({2*infl})\ns_barrier")
            if Sx == 0:
                stamp(11)
            rd(n); rd(n + 1)
            mm(n - 1)
            rd(n + 2)
            A("s_waitcnt lgkmcnt(6)")
            mm(n)
            rd(n + 3)
            if 0 < Sx < 17:
                g2_dma(Sx + 3)
            A("s_waitcnt lgkmcnt(6)")
            mm(n + 1)
            A("s_waitcnt lgkmcnt(3)")
            mm(n + 2)
            A("s_waitcnt lgkmcnt(0)")
        mm(79)
    else:
        FR = [16, 32]

        def mm(Sx, u):
            if Sx >= 0:
                f = FR[Sx & 1]
                A(f"{MF} {vr(ACC,4)}, {vr(f+8*u,4)}, {vr(f+8*u+4,4)}, {vr(ACC,4)}")

        for Sx in range(20):
            infl = 3 if Sx == 0 else min(Sx + 3, 20) - Sx - 1
            f, sb = FR[Sx & 1], (Sx % 4) * SL
            A(f"s_waitcnt vmcnt({2*infl})\ns_barrier")
            if 0 < Sx < 17:
                g2_dma(Sx + 3)
            mm(Sx - 1, 0)
            for u in range(2):
                for j in range(2):
                    A(f"ds_read_b64_tr_b16 {vr(f+8*u+2*j,2)}, v{vA} offset:{sb + 512*u + 64*j}")
                A(f"ds_read_b128 {vr(f+8*u+4,4)}, v{vB + u} offset:{sb}")
            mm(Sx - 1, 1)
            A("s_waitcnt lgkmcnt(0)")
        mm(19, 0); mm(19, 1)
    stamp(7)
    bhi()
    srd(R2, P_OUT, 10485760)
    A(f"s_mul_i32 s44, s{S_W}, {2*PL}\ns_lshl_b32 s64, s{sTC}, 9\ns_add_u32 s44, s44, s64\ns_add_u32 s44, s44, {OP}\ns_lshl_b32 s46, s{S_W}, 10")
    if big:
        A(f"s_lshl_b32 s45, s{sTC}, 3\ns_add_u32 s45, s45, s{sNB}\ns_lshl_b32 s45, s45, 8\ns_lshl_b32 s64, s{S_W}, 6\ns_add_u32 s45, s45, s64\ns_add_u32 s45, s45, {PV4}")
        A(f"v_lshrrev_b32 v0, 9, v4\nv_mul_u32_u24 v0, {PL}, v0\nv_and_b32 v7, 0x1f0, v4\ns_and_b32 s64, s{S_W}, 1\ns_lshl_b32 s64, s64, 7\nv_xor_b32 v7, s64, v7\nv_add_u32 v7, v0, v7")
    for i in range(nacc):
        A(f"s_mov_b32 s64, {rows[i]*5120}\nbuffer_store_dword v{ACC+i}, v{vOut}, {S(R2)}, s64 offen offset:2560 {AUX[OPT['sty']]}")
    PIT = 336
    if big:
        spoll([(8, 8, 0)], 45)
    A("s_barrier")
    stamp(8); fst(5, 0)
    for i in range(5):
        for st in (i, 5 + i):
            A(f"s_add_u32 m0, s46, {8192*st}\ns_add_u32 s64, s44, {16*PL*st}")
            dma(vOs, WS, 64, "sc1")
    A(f"v_mbcnt_lo_u32_b32 v0, -1, 0\nv_mbcnt_hi_u32_b32 v0, -1, v0")
    if big:
        A(f"s_lshr_b32 s64, s{S_W}, 1\ns_mul_i32 s65, s64, {40960 + 32*PIT}\ns_and_b32 s66, s{S_W}, 1\ns_lshl_b32 s66, s66, 7\ns_add_u32 s65, s65, s66")
        A(f"v_and_b32 v2, 31, v0\nv_mul_u32_u24 v2, {PIT}, v2\nv_lshrrev_b32 v3, 5, v0\nv_lshl_add_u32 v2, v3, 4, v2\nv_add_u32 v2, s65, v2")
        A(f"s_mul_i32 s67, s64, {-64*PIT & 0xffffffff}\ns_add_u32 s67, s67, {32*PIT}\nv_add_u32 v7, s67, v2")
        A(f"v_xor_b32 v1, 256, v{vO}")
    else:
        A(f"s_mul_i32 s65, s95, {16*PIT}\ns_add_u32 s65, s65, 256\nv_and_b32 v2, 15, v0\nv_mul_u32_u24 v2, {PIT}, v2\nv_lshrrev_b32 v3, 4, v0\nv_lshl_add_u32 v2, v3, 4, v2\nv_add_u32 v2, s65, v2")
        for i in range(4):
            A(f"v_mov_b32 v{8+i}, 0")
    A(f"s_lshl_b32 s64, s{S_W}, 6\nv_add_u32 v0, s64, v0\nv_mul_u32_u24 v3, 3277, v0\nv_lshrrev_b32 v3, 16, v3\nv_mul_u32_u24 v5, 20, v3\nv_sub_u32 v0, v0, v5\nv_lshlrev_b32 v0, 4, v0")
    A(f"s_mul_i32 s64, s{sTC}, {64*5120}\ns_mul_i32 s65, s{sNB}, 320\ns_add_u32 s47, s64, s65\nv_mul_u32_u24 v5, 5120, v3\nv_add_u32 v5, v5, v0\nv_mul_u32_u24 v3, {PIT}, v3\nv_add_u32 v3, v3, v0")
    steps = {0: 8, 4: 4, 12: 0}
    if big:
        ne = uid("NE")
        A(f"s_cmp_lg_u32 s{sTC}, 31\ns_cbranch_scc1 {ne}\ns_or_b32 s64, s{sNB}, s{S_W}\ns_cmp_lg_u32 s64, 0\ns_cbranch_scc1 {ne}")
        A(f"s_waitcnt vmcnt(0)\nv_mov_b32 v8, s{S_E}\ns_mov_b64 exec, 1\nbuffer_store_dword v8, off, {S(WS)}, 0 offset:{EPOCH} sc1\ns_mov_b64 exec, -1\ns_waitcnt vmcnt(0)\n{ne}:")
        free = [8, 12]
        loc = {}
        order = []

        def issue(n, t):
            f = free.pop(0)
            loc[(n, t)] = f
            i, u = n >> 2, n & 3
            for j in range(2):
                A(f"ds_read_b64 {vr(f+2*j,2)}, v{vO if t == 0 else 1} offset:{8192*i + 2048*u + 512*j}")
            order.append((n, t))

        todo = [(n, t) for n in range(16) for t in range(2)] + [(n, 1) for n in range(16, 20)] + [(n, 0) for n in range(16, 20)]
        nxt = 0
        done = {}
        lim = 0
        for k, (n, t) in enumerate(todo):
            if n in steps and t == 0:
                if n == 0:
                    fst(5, 1)
                A(f"s_waitcnt vmcnt({steps[n]})\ns_barrier")
                fst(5, 2 + list(steps).index(n))
                lim = {0: 8, 4: 24, 12: 40}[n]
            while nxt < lim and free and nxt - k < 6:
                issue(*todo[nxt]); nxt += 1
            pend = len(order) - 1 - order.index((n, t))
            if (n, t) == (17, 0):
                assert nxt == len(todo)
                A("s_nop 7\ns_waitcnt lgkmcnt(0)")
            elif t == 0 and n > 17:
                for g in (2 * (n - 18), 2 * (n - 18) + 1):
                    A(f"ds_write_b128 v7, {vr(ACC+16+4*g,4)} offset:{32*g}")
            else:
                A(f"s_waitcnt lgkmcnt({2*pend})")
            c = "0" if n == 0 else vr(ACC + 16 * t, 16)
            A(f"{MF} {vr(ACC+16*t,16)}, {vr(WF+4*n,4)}, {vr(loc[(n,t)],4)}, {c}")
            free.append(loc[(n, t)])
            done[n] = done.get(n, 0) + 1
            if done[n] == 2:
                free.append(WF + 4 * n)
        fst(5, 5)
        A("s_nop 11")
        for g in range(4):
            A(f"ds_write_b128 v2, {vr(ACC+4*g,4)} offset:{32*g}")
    else:
        first = True
        for si, (i0, i1) in enumerate(((0, 1), (1, 3), (3, 5))):
            A(f"s_waitcnt vmcnt({[8, 4, 0][si]})\ns_barrier")
            for i in range(i0, i1):
                f = 16 + 16 * (i & 1)
                for h in range(2):
                    for U in range(2):
                        for j in range(2):
                            A(f"ds_read_b64 {vr(f+8*h+4*U+2*j,2)}, v{vO+h} offset:{8192*i + 4096*U + 512*j}")
            for i in range(i0, i1):
                f = 16 + 16 * (i & 1)
                for h in range(2):
                    for U in range(2):
                        A(f"s_waitcnt lgkmcnt({8*(i1-1-i) + 6 - 4*h - 2*U})")
                        c = "0" if first else vr(ACC, 4)
                        first = False
                        A(f"{MF} {vr(ACC,4)}, {vr(WF+40*h+8*i+4*U,4)}, {vr(f+8*h+4*U,4)}, {c}")
        A(f"ds_write_b128 v2, v[8:11] offset:40960\ns_nop 6\nds_write_b128 v2, {vr(ACC,4)}")
    A("s_waitcnt lgkmcnt(0)\ns_barrier")
    fst(5, 6)
    if not big:
        A(f"s_cmp_ge_u32 s{S_W}, 5\ns_cbranch_scc1 L_B_DONE")
    for m in range(4):
        A(f"ds_read_b128 {vr(48+8*m,4)}, v3 offset:{16*PIT*m}\nds_read_b128 {vr(52+8*m,4)}, v3 offset:{40960 + 16*PIT*m}")
    for m in range(4):
        A(f"s_waitcnt lgkmcnt({6-2*m})")
        for c in range(2):
            A(f"v_pk_add_f32 {vr(48+8*m+2*c,2)}, {vr(48+8*m+2*c,2)}, {vr(52+8*m+2*c,2)}")
        A(f"buffer_store_dwordx4 {vr(48+8*m,4)}, v5, {S(R2)}, s47 offen {AUX[OPT['sto']]}")
        if m < 3:
            A(f"s_add_u32 s47, s47, {16*5120}")
    if not big:
        A("L_B_DONE:")
    fst(5, 7)
    stamp(9)
    if OPT["stamps"]:
        A("s_waitcnt vmcnt(0)")
        stamp(10); fst(5, 8)
    dump_stamps(12)
    A("s_endpgm")


def build():
    hdr = open("cdna_kernels/" + NAME + ".s.ref").read().split("\n")
    out = [l for l in hdr if l.startswith(";") and "@launch" not in l]
    out.append("; @launch grid=(512,1,1) block=(512,1,1) lds=81920")
    out.append('.amdgcn_target "amdgcn-amd-amdhsa--gfx950"\n.text')
    out.append(f".globl {NAME}_kernel\n.p2align 8\n.type {NAME}_kernel,@function\n{NAME}_kernel:")
    qkv()
    attention()
    qkv_idle()
    role_b()
    A("L_END:\ns_endpgm")
    for l in L:
        out.append(l if l.endswith(":") or l.startswith(".") else "    " + l)
    out.append(f""".section .rodata,"a"
.p2align 6
.amdhsa_kernel {NAME}_kernel
  .amdhsa_next_free_vgpr 128
  .amdhsa_next_free_sgpr 102
  .amdhsa_accum_offset 128
  .amdhsa_group_segment_fixed_size 0
  .amdhsa_kernarg_size 120
  .amdhsa_user_sgpr_count 2
  .amdhsa_user_sgpr_kernarg_segment_ptr 1
  .amdhsa_system_sgpr_workgroup_id_x 1
.end_amdhsa_kernel""")
    return "\n".join(out) + "\n"


if __name__ == "__main__":
    txt = build()
    open(sys.argv[1], "w").write(txt)
    sys.path.insert(0, "gen")
    import hazard
    e = hazard.check(txt)
    print("\n".join(e) if e else "hazard check: clean")
```

```python
import sys, struct, math

NAME = "concat_heads__softmax_full_mha__ssm_conv_s5__prompt"

OPT = dict(stamps=0, spin=400000, force_fb=0, g2s=6, g2q=6, tog=2, stg=1, g1p=0, g2p=0, htouch=0, ctouch=1, sty=2, sto=2,
           cpre=1, lscan=0, brot=0, t1=0, mlo=1, gk=0, hs=16, mlv=0, wearly=1, fill0=10, nfill=10, post=1, q16=1, opord=1)
for a in sys.argv[2:]:
    k, v = a.split("=")
    OPT[k] = int(v)

PL = 16384
EPOCH = 0
F1 = 0x1000
F2 = 0x2000
F3 = 0x3000
F0 = 0x8000
F0B = 0x10000
F0C = 0x18000
STAMP = 0x20000
EB = 0x48000
PV1 = 0xA0000
PV4 = 0xB0000
PV2 = 0xC0000
PV3 = 0xD0000
QKVP = 0x100000
OP = 0xA00000
HB = 0xD00000
WS_USED = 0x1300000
OOB = 0x80000000
AUX = ['', 'nt', 'sc1', 'sc1 nt', 'sc0 sc1']

L = []


def A(s):
    for ln in s.strip("\n").split("\n"):
        L.append(ln.strip())


def f2u(x):
    return struct.unpack("<I", struct.pack("<f", x))[0]


def vr(a, n):
    return f"v[{a}:{a+n-1}]" if n > 1 else f"v{a}"


P_AX, P_WQKV, P_WO, P_BX, P_LRE, P_LIM, P_BRE, P_BIM, P_CRE, P_CIM, P_LDT, P_DSK, P_OUT, P_DBG = range(8, 36, 2)
S_E = 6
S_W = 40
R0, R1, R2, WS, R3 = 44, 48, 52, 56, 60
WSP = f"s[{WS}:{WS+1}]"
EP = f"s[{S_E}:{S_E+1}]"
ST0 = 70
_uid = [0]


def uid(p):
    _uid[0] += 1
    return f"{p}_{_uid[0]}"


def srd(r, p, n):
    A(f"s_mov_b32 s{r}, s{p}\ns_mov_b32 s{r+1}, s{p+1}\ns_mov_b32 s{r+2}, {n}\ns_mov_b32 s{r+3}, 0x20000")


def S(r):
    return f"s[{r}:{r+3}]"


def stamp(k):
    if OPT["stamps"] and not OPT.get("fm"):
        A(f"s_memrealtime s[{ST0+2*k}:{ST0+2*k+1}]")


def cstamp(k):
    if OPT["stamps"] and not OPT.get("fm"):
        A(f"s_memtime s[{ST0+2*k}:{ST0+2*k+1}]")


def fst(mode, k):
    if OPT.get("fm") == mode:
        A(f"s_memtime s[{ST0+2*k}:{ST0+2*k+1}]")


def dump_stamps(n):
    if not OPT["stamps"]:
        return
    sk = uid("SK")
    A(f"s_waitcnt lgkmcnt(0)\ns_cmp_lg_u32 s{S_W}, {OPT.get('fw', 0)}\ns_cbranch_scc1 {sk}")
    A(f"s_lshl_b32 s64, s2, 7\ns_add_u32 s64, s64, {STAMP}\ns_mov_b64 exec, 1")
    for k in range(n):
        A(f"v_mov_b32 v120, s{ST0+2*k}\nv_mov_b32 v121, s{ST0+2*k+1}")
        A(f"buffer_store_dwordx2 v[120:121], off, {S(WS)}, s64 offset:{8*k}")
        A("s_waitcnt vmcnt(0)")
    A(f"s_mov_b64 exec, -1\n{sk}:")


def flag_store(soff, t=120, wave=0):
    sk = uid("FS")
    A(f"s_cmp_lg_u32 s{S_W}, {wave}\ns_cbranch_scc1 {sk}")
    A(f"v_mov_b32 v{t}, s{S_E}\nv_mov_b32 v{t+1}, s{S_E+1}\ns_mov_b64 exec, 1")
    A(f"buffer_store_dwordx2 v[{t}:{t+1}], off, {S(WS)}, s{soff} sc1")
    A(f"s_mov_b64 exec, -1\n{sk}:")


def poll(vaddrs, t=120):
    lp, dn = uid("PL"), uid("PD")
    A(f"s_mov_b32 s64, {OPT['spin']}\n{lp}:")
    for i, va in enumerate(vaddrs):
        A(f"buffer_load_dwordx2 v[{t+2*i}:{t+2*i+1}], v{va}, {S(WS)}, 0 offen sc1")
    A("s_waitcnt vmcnt(0)")
    for i, va in enumerate(vaddrs):
        if i == 0:
            A(f"v_cmp_ne_u64 vcc, {EP}, v[{t}:{t+1}]")
        else:
            A(f"v_cmp_ne_u64 s[66:67], {EP}, v[{t+2*i}:{t+2*i+1}]\ns_or_b64 vcc, vcc, s[66:67]")
    A(f"s_cbranch_vccz {dn}\ns_sub_u32 s64, s64, 1\ns_cmp_lg_u32 s64, 0\ns_cbranch_scc1 {lp}\n{dn}:")


def spoll(blocks, soff, need=None, cnt=64, msk=65):
    lp, dn = uid("SP"), uid("SD")
    A(f"s_mov_b32 s{cnt}, {OPT['spin']}\n{lp}:")
    tot = 0
    for dst, n, off in blocks:
        A(f"s_load_dwordx{2*n} s[{dst}:{dst+2*n-1}], {WSP}, s{soff} offset:{off} glc")
        tot += n
    A(f"s_mov_b32 s{msk}, 0\ns_waitcnt lgkmcnt(0)")
    for dst, n, off in blocks:
        for i in range(n):
            A(f"s_cmp_eq_u64 s[{dst+2*i}:{dst+2*i+1}], {EP}\ns_addc_u32 s{msk}, s{msk}, s{msk}")
    if need is None:
        A(f"s_cmp_eq_u32 s{msk}, {(1 << tot) - 1}")
    else:
        A(f"s_andn2_b32 s{msk}, s{need}, s{msk}\ns_cmp_eq_u32 s{msk}, 0")
    A(f"s_cbranch_scc1 {dn}")
    if tot <= 8:
        A("s_sleep 2")
    A(f"s_sub_u32 s{cnt}, s{cnt}, 1\ns_cmp_lg_u32 s{cnt}, 0\ns_cbranch_scc1 {lp}\n{dn}:")


def bhi():
    A("s_setprio 3")


def blo():
    A("s_setprio 0")


def dma(vaddr, rsrc, soff, aux=""):
    A(f"buffer_load_dwordx4 v{vaddr}, {S(rsrc)}, s{soff} offen {aux} lds".replace("  ", " "))


def epoch_fix():
    A(f"s_mul_i32 s{S_E}, s{S_E}, 0x9E3779B1\ns_add_u32 s{S_E}, s{S_E}, 0x7F4A7C15\ns_xor_b32 s{S_E+1}, s{S_E}, 0x5bd1e995")


MF32 = "v_mfma_f32_32x32x16_bf16"
MF8 = "v_mfma_f32_32x32x8_bf16"
MF16 = "v_mfma_f32_16x16x32_bf16"

PS = 2080
SLOT = 11 * PS
RED = 2 * SLOT
BADW = 81912
sST0, sST1, sF1, sSC, sH, sQB, sG, sLd, sQ, sPV1, sNEED, sH1, sH2, sPass, sChk, sO0, sO1, sPV4 = \
    8, 9, 10, 12, 14, 15, 16, 19, 22, 25, 26, 27, 28, 29, 30, 31, 32, 33
vD, vTok, vK, vK1, vV, vF6, vF7, vPush, vQa, vOnes = 123, 124, 125, 126, 127, 121, 122, 120, 112, 116


def att_setup(sRB, sCB):
    G = []
    g = G.append
    g(f"s_and_b32 s34, s2, 7\ns_bfe_u32 s{sQB}, s2, 0x30003\ns_bfe_u32 s35, s2, 0x20006\ns_lshl_b32 s{sH}, s34, 2\ns_add_u32 s{sH}, s{sH}, s35")
    g(f"s_mul_i32 s36, s{sH}, 5\ns_add_u32 s37, s36, 4\ns_lshr_b32 s38, s36, 5\ns_lshr_b32 s37, s37, 5\ns_sub_u32 s37, s37, s38")
    g(f"s_lshl_b32 s{sPV1}, s{sH}, 3\ns_add_u32 s{sPV1}, s{sPV1}, s{sQB}\ns_lshl_b32 s{sPV1}, s{sPV1}, 8\ns_add_u32 s{sPV1}, s{sPV1}, {PV1}")
    g(f"s_mov_b32 s{sNEED}, 0xf0f0c\ns_cmp_eq_u32 s37, 0\ns_cselect_b32 s{sNEED}, s{sNEED}, 0xfffff\ns_mov_b32 s{sPass}, 0\ns_min_u32 s{sChk}, s{S_W}, 1")
    g(f"v_bfe_u32 v11, v1, 4, 1\nv_mul_u32_u24 v11, s37, v11\nv_add_u32 v11, s38, v11\nv_lshrrev_b32 v14, 5, v1\nv_mul_u32_u24 v12, 15, v14\nv_max_u32 v12, v11, v12")
    g(f"v_mul_u32_u24 v13, 5, v14\nv_add3_u32 v11, v11, v13, 5\nv_and_b32 v13, 15, v1\nv_lshlrev_b32 v15, 3, v13\nv_add_u32 v15, {F1}, v15")
    g(f"v_lshl_add_u32 v{vF6}, v11, 7, v15\nv_lshl_add_u32 v{vF7}, v12, 7, v15\nv_lshlrev_b32 v{vD}, 4, v1")
    g(f"s_lshl_b32 s{sH1}, s2, 7\ns_add_u32 s{sH2}, s{sH1}, {F0B}\ns_add_u32 s{sH1}, s{sH1}, {F0}")
    for m in range(3):
        g(f"s_add_u32 s34, s{S_W}, {8*m}\ns_lshr_b32 s35, s34, 1\ns_and_b32 s34, s34, 1\ns_lshl_b32 s34, s34, 10\ns_mul_i32 s{sLd+m}, s35, {PS}\ns_add_u32 s{sLd+m}, s{sLd+m}, s34")
        g(f"s_cmp_ge_u32 s35, 5\ns_cselect_b32 s39, 155, 0\ns_add_u32 s35, s35, s39\ns_add_u32 s35, s35, s36\ns_mul_i32 s35, s35, {PL}\ns_add_u32 s35, s35, s34\ns_add_u32 s{sG+m}, s35, {QKVP + 160*PL}")
    g(f"s_lshr_b32 s34, s{S_W}, 1\ns_min_u32 s34, s34, 2\ns_mul_i32 s34, s34, {SLOT}\ns_and_b32 s35, s{S_W}, 1\ns_lshl_b32 s35, s35, 10\ns_add_u32 s34, s34, s35\ns_add_u32 s34, s34, {10*PS}\nv_add_u32 v{vOnes}, s34, v{vD}")
    g(f"s_and_b32 s34, s{S_W}, 3\ns_lshl_b32 s34, s34, 6\ns_lshr_b32 s35, s{S_W}, 2\ns_lshl_b32 s39, s35, 5\ns_add_u32 s34, s34, s39\ns_lshl_b32 s35, s35, 7")
    g(f"v_lshl_add_u32 v15, v13, 1, s34\nv_lshlrev_b32 v{vTok}, 3, v15\nv_bfe_u32 v12, v1, 4, 1\nv_lshl_add_u32 v15, v12, 3, v{vTok}\nv_xor_b32 v16, 256, v15")
    g(f"v_mul_u32_u24 v17, {2*PL}, v14\nv_add_u32 v{vQa}, v17, v15\nv_add_u32 v{vQa+2}, v17, v16\nv_lshlrev_b32 v17, 31, v14\nv_or_b32 v{vQa+1}, v17, v15\nv_or_b32 v{vQa+3}, v17, v16")
    g(f"v_and_b32 v15, 31, v1\nv_add_u32 v15, s35, v15\nv_lshlrev_b32 v15, 3, v15\nv_mul_u32_u24 v16, {2*PS}, v14\nv_add_u32 v{vK}, v16, v15")
    g(f"v_mul_u32_u24 v16, {6*PS}, v14\nv_add_u32 v16, {4*PS}, v16\nv_add_u32 v{vK1}, v16, v15\nv_and_b32 v16, 3, v1\nv_lshl_add_u32 v16, v12, 2, v16\nv_min_u32 v16, 5, v16")
    g(f"v_add_u32 v16, 5, v16\nv_mul_u32_u24 v16, {PS}, v16\nv_bfe_u32 v17, v1, 2, 2\nv_lshl_add_u32 v17, v14, 2, v17\nv_add_u32 v17, s35, v17\nv_lshl_add_u32 v{vV}, v17, 3, v16")
    g(f"s_mul_i32 s34, s36, {PL}\ns_lshl_b32 s35, s{sQB}, 11\ns_add_u32 s34, s34, s35\ns_add_u32 s{sQ}, s34, {QKVP}\ns_add_u32 s{sQ+1}, s{sQ}, {PL}\ns_add_u32 s{sQ+2}, s{sQ}, {4*PL}")
    g(f"s_add_u32 s{sO0}, s34, {OP}\ns_add_u32 s{sO1}, s{sO0}, {4*PL}\ns_lshl_b32 s{sPV4}, s{sQB}, 13\ns_lshl_b32 s35, s{sH}, 3\ns_add_u32 s{sPV4}, s{sPV4}, s35\ns_add_u32 s{sPV4}, s{sPV4}, {PV4}")
    if sRB is None:
        g(f"v_mov_b32 v{vPush}, {OOB}\ns_sub_u32 s{sF1}, s2, 240\ns_lshl_b32 s{sF1}, s{sF1}, 3\ns_add_u32 s{sF1}, s{sF1}, {F1 + 15*128}")
        return G
    c = 20 ** -0.5 * math.log2(math.e)
    g(f"s_cmp_lt_u32 s{sCB}, 5\ns_cselect_b32 s{sSC}, {f2u(c)}, 1.0\ns_mov_b32 s{sSC+1}, s{sSC}\ns_lshl_b32 s{sF1}, s{sCB}, 7\ns_lshl_b32 s34, s{sRB}, 3\ns_add_u32 s{sF1}, s{sF1}, s34\ns_add_u32 s{sF1}, s{sF1}, {F1}")
    g(f"s_mul_i32 s{sST0}, s{sCB}, {32*PL}\ns_lshl_b32 s34, s{sRB}, 10\ns_add_u32 s{sST0}, s{sST0}, s34\ns_add_u32 s{sST0}, s{sST0}, {QKVP}\ns_add_u32 s{sST1}, s{sST0}, {4*PL}")
    g(f"s_cmp_ge_u32 s{sCB}, 10\ns_cselect_b32 s38, 10, 5\ns_cselect_b32 s35, 8, 0\ns_sub_u32 s34, s{sCB}, s38\ns_add_u32 s35, s35, s{sRB}\ns_cmp_lt_u32 s{sRB}, 4\ns_cselect_b32 s37, 1, 0")
    g(f"s_and_b32 s38, s{sRB}, 1\ns_add_u32 s38, s38, 16\ns_cmp_lt_u32 s{sCB}, 5\ns_cselect_b32 s34, s{sCB}, s34\ns_cselect_b32 s35, s38, s35\ns_cselect_b32 s36, 2, 4\ns_cselect_b32 s37, 2, s37")
    g(f"s_mul_i32 s38, s34, {6554*32}\ns_lshr_b32 s38, s38, 15\nv_lshrrev_b32 v11, 3, v1\nv_add_u32 v11, s38, v11\nv_mul_u32_u24 v12, 5, v11\nv_lshrrev_b32 v13, 5, v12\ns_lshr_b32 s39, s{sRB}, 1")
    g(f"v_cmp_ge_u32 s[68:69], s34, v13\nv_cmp_ne_u32 vcc, s34, v13\nv_and_b32 v13, 7, v1\nv_lshl_add_u32 v11, v11, 3, v13\nv_cndmask_b32 v12, 0, 1, vcc\nv_mul_u32_u24 v12, s36, v12\nv_add_u32 v12, s35, v12")
    g(f"v_cmp_eq_u32 vcc, s39, v13\ns_cmp_eq_u32 s37, 2\ns_cselect_b64 vcc, vcc, -1\ns_and_b64 s[68:69], s[68:69], vcc\ns_cmp_eq_u32 s37, 0\ns_cselect_b64 s[68:69], 0, s[68:69]")
    g(f"v_lshlrev_b32 v11, 8, v11\nv_lshl_add_u32 v11, v12, 3, v11\nv_add_u32 v11, {PV1}, v11\nv_mov_b32 v{vPush}, {OOB}\nv_cndmask_b32 v{vPush}, v{vPush}, v11, s[68:69]")
    return G


def qkv():
    sRB, sCB, sKX, sKW, sMX, sMW, sT = 41, 42, 43, 64, 65, 66, 67
    vX0, vX1, vWs, vWr, vXr = 2, 3, 4, 5, 6
    ACC = 32
    FR = [64, 88]
    A("s_cmp_ge_u32 s2, 256\ns_cbranch_scc1 L_ROLE_B")
    stamp(0); fst(7, 0)
    A(f"s_load_dwordx2 s[{R0}:{R0+1}], s[0:1], 0\ns_load_dwordx2 s[{R1}:{R1+1}], s[0:1], 8\ns_load_dwordx2 s[{WS}:{WS+1}], s[0:1], 112")
    A(f"v_lshrrev_b32 v2, 6, v0\nv_and_b32 v1, 63, v0\nv_readfirstlane_b32 s{S_W}, v2")
    A(f"s_lshr_b32 s{sCB}, s2, 4\ns_and_b32 s{sCB}, s{sCB}, 14\ns_bfe_u32 s{sT}, s2, 0x10002\ns_or_b32 s{sCB}, s{sCB}, s{sT}")
    A(f"s_lshr_b32 s{sRB}, s2, 1\ns_and_b32 s{sRB}, s{sRB}, 12\ns_and_b32 s{sT}, s2, 3\ns_or_b32 s{sRB}, s{sRB}, s{sT}")
    A(f"s_cmp_eq_u32 s{sCB}, 15\ns_cselect_b32 s{sT}, 8, 0\ns_add_u32 s{sRB}, s{sRB}, s{sT}\ns_min_u32 s{sCB}, s{sCB}, 14")
    A(f"s_and_b32 s{sKX}, s2, 7\ns_mul_i32 s{sKW}, s{sKX}, {2*122880}\ns_lshl_b32 s{sKX}, s{sKX}, 7")
    A(f"s_lshl_b32 s{sT}, s{sRB}, 7\ns_lshr_b32 s68, s{S_W}, 1\ns_lshl_b32 s68, s68, 5\ns_add_u32 s{sT}, s{sT}, s68\ns_and_b32 s68, s{S_W}, 1\ns_add_u32 s{sT}, s{sT}, s68")
    A(f"v_lshrrev_b32 v10, 3, v1\nv_lshl_add_u32 v10, v10, 1, s{sT}\nv_mul_u32_u24 v10, 1280, v10")
    A(f"v_lshrrev_b32 v11, 4, v1\nv_and_b32 v12, 7, v1\nv_xor_b32 v12, v12, v11\nv_lshl_add_u32 v{vX0}, v12, 4, v10")
    A(f"s_lshl_b32 s{sMX}, s{S_W}, 11\ns_mov_b32 s{R0+2}, 2621440\ns_mov_b32 s{R0+3}, 0x20000\ns_mov_b32 m0, s{sMX}")
    A("s_cmp_ge_u32 s2, 240\ns_cbranch_scc1 L_QKV_IDLE")
    fst(7, 1)
    A("s_waitcnt lgkmcnt(0)")
    issued = []

    def dmaX(Sx, between=None):
        for i in range(2):
            if Sx or i:
                A(f"s_add_u32 m0, s{sMX}, {(Sx % 3) * 16384 + i * 1024}\ns_nop 0")
            dma(vX0 + i, R0, sKX)
            issued.append(("X", Sx))
            if between and i == 0:
                between()
        A(f"s_add_u32 s{sKX}, s{sKX}, 128\ns_cmp_eq_u32 s{sKX}, 1280\ns_cselect_b32 s{sKX}, 0, s{sKX}")

    def dmaW(s):
        A(f"s_add_u32 m0, s{sMW}, {(s % 4) * 8192}\ns_nop 0")
        dma(vWs, R1, sKW)
        issued.append(("W", s))
        A(f"s_add_u32 s{sKW}, s{sKW}, 122880\ns_cmp_eq_u32 s{sKW}, 2457600\ns_cselect_b32 s{sKW}, 0, s{sKW}")

    dmaX(0, lambda: A(f"v_xor_b32 v{vX1}, 64, v{vX0}\nv_add_u32 v{vX1}, 20480, v{vX1}"))
    A(f"s_lshl_b32 s68, s{S_W}, 2\nv_add_u32 v10, s68, v11\nv_mul_u32_u24 v10, 3840, v10")
    if OPT["q16"]:
        A(f"s_and_b32 s68, s{S_W}, 2\ns_lshl_b32 s68, s68, 2\nv_and_b32 v12, 15, v1\nv_lshl_add_u32 v13, v11, 1, s68\nv_xor_b32 v12, v12, v13\nv_lshl_add_u32 v10, v12, 4, v10")
    else:
        A(f"v_and_b32 v12, 15, v1\nv_lshlrev_b32 v13, 2, v11\nv_xor_b32 v12, v12, v13\nv_lshl_add_u32 v10, v12, 4, v10")
    A(f"s_lshl_b32 s68, s{sCB}, 8\nv_add_u32 v{vWs}, s68, v10\ns_lshl_b32 s{sMW}, s{S_W}, 10\ns_add_u32 s{sMW}, s{sMW}, 49152")
    A(f"s_mov_b32 s{R1+2}, 2457600\ns_mov_b32 s{R1+3}, 0x20000")
    dmaW(0)
    fst(7, 2)
    A(f"s_load_dword s{S_E}, {WSP}, {EPOCH}\ns_mov_b32 s{WS+2}, {WS_USED}\ns_mov_b32 s{WS+3}, 0x20000\ns_barrier")
    fst(7, 3)
    dmaW(1); dmaX(1); dmaW(2); dmaW(3); dmaX(2)
    fst(7, 4)
    if OPT["q16"]:
        A(f"v_lshrrev_b32 v10, 4, v1\nv_bfe_u32 v11, v1, 2, 2\nv_lshl_add_u32 v12, v10, 3, v11\nv_lshlrev_b32 v12, 8, v12")
        A(f"s_and_b32 s68, s{S_W}, 3\ns_lshl_b32 s68, s68, 2\nv_bfe_u32 v13, v1, 1, 1\nv_add_u32 v13, s68, v13")
        A(f"v_and_b32 v14, 1, v10\nv_lshl_add_u32 v11, v14, 2, v11\nv_lshlrev_b32 v11, 1, v11\nv_xor_b32 v13, v13, v11\nv_lshl_add_u32 v12, v13, 4, v12")
        A(f"v_and_b32 v14, 1, v1\nv_lshl_add_u32 v12, v14, 3, v12\nv_add_u32 v5, 49152, v12\nv_xor_b32 v6, 32, v5")
        A(f"s_lshr_b32 s68, s{S_W}, 2\ns_lshl_b32 s68, s68, 6\nv_and_b32 v11, 15, v1\nv_add_u32 v12, s68, v11\nv_lshlrev_b32 v12, 7, v12")
        A(f"v_lshrrev_b32 v13, 1, v11\nv_xor_b32 v13, v13, v10\nv_lshl_add_u32 v7, v13, 4, v12\nv_xor_b32 v8, 64, v7")
        fst(7, 5)
        G = [f"s_and_b32 s34, s{S_W}, 3\ns_lshl_b32 s34, s34, 3\nv_add_u32 v10, s34, v10\nv_mul_u32_u24 v10, {PL}, v10",
             f"v_and_b32 v11, 15, v1\nv_lshl_add_u32 v10, v11, 4, v10\ns_lshr_b32 s34, s{S_W}, 2\ns_lshl_b32 s34, s34, 9\nv_add_u32 v10, s34, v10"]
    else:
        A(f"v_lshrrev_b32 v10, 5, v1\nv_bfe_u32 v11, v1, 2, 2\nv_lshl_add_u32 v12, v10, 3, v11\nv_lshlrev_b32 v12, 8, v12")
        A(f"s_and_b32 s68, s{S_W}, 3\ns_lshl_b32 s68, s68, 2")
        A(f"v_bfe_u32 v13, v1, 4, 1\nv_lshlrev_b32 v13, 1, v13\nv_bfe_u32 v14, v1, 1, 1\nv_add3_u32 v13, v13, v14, s68")
        A(f"v_lshlrev_b32 v11, 2, v11\nv_xor_b32 v13, v13, v11\nv_lshl_add_u32 v12, v13, 4, v12")
        A(f"v_and_b32 v14, 1, v1\nv_lshl_add_u32 v12, v14, 3, v12\nv_add_u32 v{vWr}, 49152, v12")
        A(f"s_lshr_b32 s68, s{S_W}, 2\ns_lshl_b32 s68, s68, 6\nv_and_b32 v11, 31, v1\nv_add_u32 v12, s68, v11\nv_lshlrev_b32 v12, 7, v12")
        A(f"v_bfe_u32 v13, v1, 1, 3\nv_xor_b32 v13, v13, v10\nv_lshl_add_u32 v{vXr}, v13, 4, v12")
        for k in range(1, 4):
            A(f"v_xor_b32 v{vXr+k}, {32*k}, v{vXr}")
        fst(7, 5)
        G = [f"s_and_b32 s34, s{S_W}, 3\ns_lshl_b32 s34, s34, 3\nv_bfe_u32 v11, v1, 4, 1\nv_lshl_add_u32 v10, v11, 1, v10\nv_add_u32 v10, s34, v10\nv_mul_u32_u24 v10, {PL}, v10",
             f"v_and_b32 v11, 15, v1\nv_lshl_add_u32 v10, v11, 4, v10\ns_lshr_b32 s34, s{S_W}, 2\ns_lshl_b32 s34, s34, 9\nv_add_u32 v10, s34, v10"]
    GA = att_setup(sRB, sCB)
    post = []
    if OPT["post"]:
        post, GA = GA[:-8], GA[-8:]
    G += GA
    nf = OPT["nfill"]
    per = [G[len(G) * i // nf:len(G) * (i + 1) // nf] for i in range(nf)]

    def reads(s):
        f = FR[s & 1]
        ws, xs, b = (s % 4) * 8192, ((s >> 1) % 3) * 16384, s & 1
        if OPT["q16"]:
            for mi in range(2):
                for j in range(2):
                    A(f"ds_read_b64_tr_b16 {vr(f+4*mi+2*j, 2)}, v{5+mi} offset:{ws + 1024*j}")
                for ni in (2 * mi, 2 * mi + 1):
                    A(f"ds_read_b128 {vr(f+8+4*ni, 4)}, v{7+b} offset:{xs + 2048*ni}")
            return
        for u in range(2):
            for j in range(2):
                A(f"ds_read_b64_tr_b16 {vr(f+4*u+2*j, 2)}, v{vWr} offset:{ws + (16*u+4*j)*256}")
            for nt in range(2):
                A(f"ds_read_b128 {vr(f+8+8*u+4*nt, 4)}, v{vXr+2*b+u} offset:{xs + 4096*nt}")

    def mfma1(s, i):
        if s < 0:
            return
        f = FR[s & 1]
        if OPT["q16"]:
            for mi in range(2):
                a = ACC + 16 * mi + 4 * i
                A(f"{MF16} {vr(a,4)}, {vr(f+4*mi,4)}, {vr(f+8+4*i,4)}, {'0' if s == 0 else vr(a,4)}")
            return
        u, nt = i >> 1, i & 1
        c = "0" if (s == 0 and u == 0) else vr(ACC + 16 * nt, 16)
        A(f"{MF32} {vr(ACC+16*nt,16)}, {vr(f+4*u,4)}, {vr(f+8+8*u+4*nt,4)}, {c}")

    for s in range(20):
        last = max(i for i, t in enumerate(issued) if t in (("X", s >> 1), ("W", s)))
        A(f"s_waitcnt vmcnt({len(issued) - 1 - last})\ns_barrier")
        if s == 0:
            stamp(1); cstamp(10)
        if s < 4:
            fst(7, 6 + s)
        fill = per[s - OPT["fill0"]] if 0 <= s - OPT["fill0"] < nf else []
        mfma1(s - 1, 0)
        reads(s)
        mfma1(s - 1, 1)
        if s >= 1 and s + 3 < 20:
            dmaW(s + 3)
        if s & 1 == 0:
            pass
        else:
            for x in fill[:1]:
                A(x)
        mfma1(s - 1, 2)
        if s >= 2 and s % 2 == 0 and s // 2 + 2 < 10:
            dmaX(s // 2 + 2)
        if s == 1:
            epoch_fix()
        if OPT["gk"] and s == OPT["hs"]:
            A(f"s_lshl_b32 s3, s2, 7\ns_lshl_b32 s67, s{S_W}, 3\ns_add_u32 s3, s3, s67\ns_add_u32 s3, s3, {F0C}")
            A(f"v_mov_b32 v118, s{S_E}\nv_mov_b32 v119, s{S_E+1}\ns_mov_b64 exec, 1\nbuffer_store_dwordx2 v[118:119], off, {S(WS)}, s3 sc1\ns_mov_b64 exec, -1")
            issued.append(("H", 0))
        for x in (fill[1:] if s & 1 else fill):
            A(x)
        mfma1(s - 1, 3)
        A("s_waitcnt lgkmcnt(0)")
    for i in range(4):
        mfma1(19, i)
    stamp(2); cstamp(11); fst(8, 0)
    if OPT["q16"]:
        A("s_nop 2")
        for p in range(2):
            for mi in range(2):
                d = 64 + 8 * p + 4 * mi
                for k in range(2):
                    a = ACC + 16 * mi + 4 * (2 * p + k)
                    A(f"v_pk_mul_f32 {vr(a,2)}, {vr(a,2)}, s[{sSC}:{sSC+1}]\nv_pk_mul_f32 {vr(a+2,2)}, {vr(a+2,2)}, s[{sSC}:{sSC+1}]")
                    A(f"v_cvt_pk_bf16_f32 v{d+2*k}, v{a}, v{a+1}\nv_cvt_pk_bf16_f32 v{d+2*k+1}, v{a+2}, v{a+3}")
                A(f"buffer_store_dwordx4 {vr(d,4)}, v10, {S(WS)}, s{sST0 + mi} offen offset:{256*p} sc1")
    else:
        A("s_nop 10")
    for nt in range(0 if OPT["q16"] else 2):
        for g in range(4):
            a = ACC + 16 * nt + 4 * g
            A(f"v_pk_mul_f32 {vr(a,2)}, {vr(a,2)}, s[{sSC}:{sSC+1}]\nv_pk_mul_f32 {vr(a+2,2)}, {vr(a+2,2)}, s[{sSC}:{sSC+1}]")
            d = 64 + 8 * nt + 2 * g
            A(f"v_cvt_pk_bf16_f32 v{d}, v{a}, v{a+1}\nv_cvt_pk_bf16_f32 v{d+1}, v{a+2}, v{a+3}")
            if g & 1:
                d -= 2
                A(f"s_nop 0\nv_permlane16_swap_b32 v{d}, v{d+2}\nv_permlane16_swap_b32 v{d+1}, v{d+3}")
                A(f"buffer_store_dwordx4 {vr(d,4)}, v10, {S(WS)}, s{sST0 + (g >> 1)} offen offset:{256*nt} sc1")
    fst(8, 1)
    for x in post:
        A(x)


def qkv_idle():
    A(f"L_QKV_IDLE:\ns_waitcnt lgkmcnt(0)\ns_load_dword s{S_E}, {WSP}, {EPOCH}\ns_mov_b32 s{WS+2}, {WS_USED}\ns_mov_b32 s{WS+3}, 0x20000")
    for x in att_setup(None, None):
        A(x)
    A("s_waitcnt lgkmcnt(0)")
    epoch_fix()
    if OPT["gk"]:
        A(f"s_lshl_b32 s34, s2, 7\ns_add_u32 s34, s34, {F0C}")
        flag_store(34, t=118)
    A("s_branch L_PUB")


def attention():
    Q = [8, 14]; O = [20, 36]; SS = [52, 68]; Kf = [84, 90]; Vf = [96, 104]; P = 112
    A("L_PUB:")
    for i in range(4):
        A(f"v_mov_b32 v{4+i}, 0x3f803f80")
    A(f"v_mov_b32 v2, s{S_E}\nv_mov_b32 v3, s{S_E+1}\nv_mov_b32 v8, {BADW}\nv_mov_b32 v9, 0")
    A("s_waitcnt vmcnt(0)")
    fst(8, 2)
    A("s_barrier")
    fst(8, 3)
    A(f"s_cmp_lg_u32 s{S_W}, 0\ns_cbranch_scc1 L_NOPUSH")
    A(f"buffer_store_dwordx2 v[2:3], v{vPush}, {S(WS)}, 0 offen sc1\ns_mov_b64 exec, 1\nbuffer_store_dwordx2 v[2:3], off, {S(WS)}, s{sF1} sc1\ns_mov_b64 exec, -1\nL_NOPUSH:")
    stamp(3)
    A(f"ds_write_b128 v{vOnes}, v[4:7]\nds_write_b32 v8, v9")
    A(f"s_waitcnt lgkmcnt(0)\ns_cmp_lg_u32 s{S_W}, 1\ns_cbranch_scc1 L_NOPOLL")
    spoll([(68, 8, 0), (84, 8, 64), (44, 4, 128)], sPV1, need=sNEED)
    A("L_NOPOLL:\ns_barrier")
    stamp(4); fst(8, 4)

    def dma_static(st, m, blk=None):
        if m == 2:
            sk2 = uid("D3")
            A(f"s_cbranch_vccz {sk2}")
        A(f"s_add_u32 m0, s{sLd+m}, {(st % 3) * SLOT}\ns_add_u32 s68, s{sG+m}, {2048 * st if blk is None else blk}")
        dma(vD, WS, 68, "sc1")
        if m == 2:
            A(f"{sk2}:")

    for x in range(2):
        A(f"buffer_load_dwordx2 {vr(Q[x],2)}, v{vQa+2*x}, {S(WS)}, s{sQ} offen sc1")
        A(f"buffer_load_dwordx2 {vr(Q[x]+2,2)}, v{vQa+2*x}, {S(WS)}, s{sQ+1} offen sc1")
        A(f"buffer_load_dwordx2 {vr(Q[x]+4,2)}, v{vQa+1+2*x}, {S(WS)}, s{sQ+2} offen sc1")
    A("L_ATT_MAIN:")
    A(f"s_cmp_lt_u32 s{S_W}, 4\ns_cselect_b64 vcc, -1, 0")
    for m in range(3):
        dma_static(0, m)
    flag_store(sH1, t=2, wave=7)
    A("s_waitcnt vmcnt(0)\ns_barrier")
    stamp(5); cstamp(8); fst(8, 5)

    def kreads(kl, off):
        A(f"ds_read_b64 {vr(kl,2)}, v{vK} offset:{off}\nds_read_b64 {vr(kl+2,2)}, v{vK} offset:{off+PS}\nds_read_b64 {vr(kl+4,2)}, v{vK1} offset:{off}")

    def vreads(vl, off):
        for j in range(4):
            A(f"ds_read_b64_tr_b16 {vr(vl+2*j,2)}, v{vV} offset:{off+64*j}")

    kreads(Kf[0], 0)
    vreads(Vf[0], 0)
    for m in range(2):
        dma_static(1, m)
    A("s_waitcnt lgkmcnt(4)")
    A(f"{MF32} {vr(SS[0],16)}, {vr(Kf[0],4)}, {vr(Q[0],4)}, 0\n{MF8} {vr(SS[0],16)}, {vr(Kf[0]+4,2)}, {vr(Q[0]+4,2)}, {vr(SS[0],16)}")
    dma_static(1, 2)
    A("s_nop 9")

    def tail_addr():
        A(f"s_lshl_b32 s64, s{S_W}, 12\ns_add_u32 s64, s64, {RED}\ns_xor_b32 s65, s{S_W}, 4\ns_lshl_b32 s65, s65, 12\ns_add_u32 s65, s65, {RED}")
        A(f"v_add_u32 v2, s64, v{vD}\nv_add_u32 v3, s65, v{vD}\ns_movk_i32 s69, 0x100\nv_cmp_gt_u32 s[66:67], s69, v{vD}")
        A(f"v_lshrrev_b32 v4, 9, v{vD}\nv_bfe_u32 v5, v{vD}, 8, 1\nv_lshl_add_u32 v5, v5, 1, v4\nv_mul_u32_u24 v5, {PL}, v5\nv_add_u32 v5, v5, v{vTok}")
        A(f"v_mov_b32 v4, {OOB}\nv_cndmask_b32 v4, v4, v{vTok}, s[66:67]")

    def unit(st, x, kt):
        s = SS[x]; sn = SS[1 - x]
        nk = kt if x == 0 else kt + 1
        kf = Kf[nk & 1]; qn = Q[1 - x]
        pk = kt - 1 if x == 0 else kt
        vprev = Vf[pk & 1]; v = Vf[kt & 1]
        last = st == 7 and kt == 3
        e = lambda i: A(f"v_exp_f32 v{s+i}, v{s+i}")
        c = lambda i: A(f"v_cvt_pk_bf16_f32 v{P+i}, v{s+2*i}, v{s+2*i+1}")
        nxt_off = ((st + 1) % 3) * SLOT if kt == 3 else (st % 3) * SLOT + 256 * (kt + 1)
        if x == 1 and not last:
            A("s_waitcnt lgkmcnt(0)")
        if not (last and x == 1):
            A(f"{MF32} {vr(sn,16)}, {vr(kf,4)}, {vr(qn,4)}, 0")
        e(0); e(1); e(2); e(3)
        if not (last and x == 1):
            A(f"{MF8} {vr(sn,16)}, {vr(kf+4,2)}, {vr(qn+4,2)}, {vr(sn,16)}")
        c(0); c(1); e(4); e(5); e(6); e(7)
        if (st, x, kt) != (0, 0, 0):
            A(f"{MF32} {vr(O[1-x],16)}, {vr(vprev+4,4)}, {vr(P+4,4)}, {vr(O[1-x],16)}")
        if not last:
            if x == 0:
                if kt == 3:
                    A("s_waitcnt vmcnt(0)")
                    if st == 0:
                        fc = uid("FC")
                        A(f"s_cmp_lg_u32 s{sChk}, 0\ns_cbranch_scc1 {fc}")
                        A(f"v_cmp_ne_u64 s[64:65], {EP}, v[2:3]\nv_cmp_ne_u64 s[66:67], {EP}, v[4:5]\ns_or_b64 s[64:65], s[64:65], s[66:67]\ns_cbranch_scc0 {fc}")
                        poll([vF6, vF7], t=2)
                        A(f"s_mov_b64 vcc, -1\n{fc}:")
                    A("s_barrier")
                kreads(Kf[(kt + 1) & 1], nxt_off)
            else:
                vreads(Vf[(kt + 1) & 1], nxt_off)
        site = {(1, 3): (0, st + 2), (0, 0): (1, st + 1), (1, 0): (2, st + 1)}.get((x, kt))
        if site and 2 <= site[1] < 8:
            dma_static(site[1], site[0])
        if st == OPT["g2s"] - 1 and 2 * kt + x == OPT["g2q"]:
            flag_store(sH2, t=6, wave=7)
        if (st, x, kt) == (1, 1, 1):
            tail_addr()
        if (st, x, kt) == (0, 0, 2):
            nf = uid("NF")
            A(f"s_cmp_lg_u32 s{sChk}, 0\ns_cbranch_scc1 {nf}")
            A(f"buffer_load_dwordx2 v[2:3], v{vF6}, {S(WS)}, 0 offen sc1\nbuffer_load_dwordx2 v[4:5], v{vF7}, {S(WS)}, 0 offen sc1\n{nf}:")
        if OPT["tog"] == 1:
            A(f"s_setprio {1 - x}")
        if OPT["tog"] >= 2:
            gu = 8 * st + 2 * kt + x
            top = 3 if OPT["tog"] == 2 else 2
            if gu < 6:
                lv = {0: top, 1: top - 1, 3: top - 2, 5: top - 3}.get(gu) if top == 3 else {0: 2, 2: 1, 4: 0}.get(gu)
            elif gu >= 54:
                lv = {54: 3, 57: 2, 60: 1, 62: 0}.get(gu) if top == 3 else {54: 2, 58: 1, 61: 0}.get(gu)
            else:
                ph = (gu - 6) % 8
                lv = {0: 3, 2: 2, 4: 1, 6: 0}.get(ph) if top == 3 else {0: 2, 3: 1, 6: 0}.get(ph)
            if lv is not None:
                A(f"s_setprio {lv}")
        c(2); c(3); e(8); e(9); e(10); e(11)
        if x == 0:
            A(f"s_waitcnt lgkmcnt({0 if last else 3})")
        A(f"{MF32} {vr(O[x],16)}, {vr(v,4)}, {vr(P,4)}, {'0' if (st, kt) == (0, 0) else vr(O[x],16)}")
        c(4); c(5); e(12); e(13); e(14); e(15); c(6); c(7)

    for st in range(8):
        for kt in range(4):
            unit(st, 0, kt)
            unit(st, 1, kt)
    A(f"s_setprio 3\ns_nop 0\n{MF32} {vr(O[1],16)}, {vr(Vf[1]+4,4)}, {vr(P+4,4)}, {vr(O[1],16)}")
    stamp(6); cstamp(9); fst(6, 0)
    assert RED + 8 * 4096 <= BADW
    o = O[0]
    lo, hi = f2u(2.0 ** -60), f2u(2.0 ** 60)
    if OPT["force_fb"]:
        hi = f2u(2.0 ** -59)
    A(f"v_mov_b32 v70, 0\nv_mov_b32 v71, 0\nv_mov_b32 v80, {lo}\nv_mov_b32 v81, {hi}\nv_mov_b32 v83, {BADW}")
    A(f"v_lshlrev_b32 v82, 4, v{vD}\nv_mov_b32 v84, s{S_E}\nv_mov_b32 v85, s{S_E+1}\ns_nop 3")
    for g in range(4):
        A(f"ds_write_b128 v2, {vr(O[1]+4*g,4)} offset:{1024*g}")
    fst(6, 1)
    A("s_waitcnt lgkmcnt(0)\ns_barrier")
    fst(6, 2)
    for g in (3, 0, 1, 2):
        A(f"ds_read_b128 {vr(52+4*g,4)}, v3 offset:{1024*g}")
    A(f"s_waitcnt lgkmcnt(3)\nv_add_f32 v{o+12}, v{o+12}, v{52+12}\nv_rcp_f32 v68, v{o+12}")
    for g in range(3):
        a = o + 4 * g
        A(f"s_waitcnt lgkmcnt({2-g})\nv_pk_add_f32 {vr(a,2)}, {vr(a,2)}, {vr(52+4*g,2)}\nv_pk_add_f32 {vr(a+2,2)}, {vr(a+2,2)}, {vr(54+4*g,2)}")
        A(f"v_pk_mul_f32 {vr(a,2)}, {vr(a,2)}, v[68:69] op_sel_hi:[1,0]\nv_pk_mul_f32 {vr(a+2,2)}, {vr(a+2,2)}, v[68:69] op_sel_hi:[1,0]")
        A(f"v_cvt_pk_bf16_f32 v{72+2*g}, v{a}, v{a+1}\nv_cvt_pk_bf16_f32 v{73+2*g}, v{a+2}, v{a+3}")
        if g == 1:
            A(f"s_nop 0\nv_permlane16_swap_b32 v72, v74\nv_permlane16_swap_b32 v73, v75")
            A(f"buffer_store_dwordx4 v[72:75], v5, {S(WS)}, s{sO0} offen sc1")
        if g == 2:
            A(f"v_mov_b32 v78, v76\nv_mov_b32 v79, v77\ns_nop 0\nv_permlane16_swap_b32 v76, v78\nv_permlane16_swap_b32 v77, v79")
            A(f"buffer_store_dwordx4 v[76:79], v4, {S(WS)}, s{sO1} offen sc1")
    for i in range(0, 12, 2):
        A(f"v_pk_fma_f32 v[70:71], {vr(o+i,2)}, 0, v[70:71] op_sel_hi:[1,0,1]")
    A(f"v_cmp_u_f32 vcc, v70, v71\nv_cmp_ngt_f32 s[66:67], v{o+12}, v80\ns_or_b64 vcc, vcc, s[66:67]\nv_cmp_nlt_f32 s[66:67], v{o+12}, v81\ns_or_b64 vcc, vcc, s[66:67]")
    A(f"s_cbranch_vccz L_NOBAD\nv_mov_b32 v81, 1\nds_write_b32 v83, v81\nL_NOBAD:")
    fst(6, 3)
    A("s_waitcnt lgkmcnt(0)\ns_barrier\nds_read_b32 v81, v83\ns_waitcnt vmcnt(0) lgkmcnt(0)\nv_readfirstlane_b32 s64, v81")
    fst(6, 4)
    A("s_barrier")
    fst(6, 5)
    A(f"s_cmp_gt_u32 s64, s{sPass}\ns_cbranch_scc1 L_ATT_FB")
    A(f"s_cmp_lg_u32 s{S_W}, 0\ns_cbranch_scc1 L_A_DONE\ns_mov_b32 exec_hi, 0\nbuffer_store_dwordx2 v[84:85], v82, {S(WS)}, s{sPV4} offen sc1\ns_mov_b64 exec, -1")
    stamp(7)
    A("L_A_DONE:")
    dump_stamps(12)
    A("s_endpgm")

    A("L_ATT_FB:")
    A(f"s_mov_b32 s{sPass}, 1\ns_mov_b32 s{sChk}, 1\ns_mov_b32 s34, 0\ns_cmp_lt_u32 s{S_W}, 4\ns_cselect_b64 vcc, -1, 0")
    A("v_mov_b32 v20, 0xff800000\nv_mov_b32 v21, 0xff800000")
    A("L_FB_LOOP:\ns_barrier")
    for m in range(3):
        dma_static(0, m, "s34")
    A("s_waitcnt vmcnt(0)\ns_barrier")
    for kt in range(4):
        kreads(Kf[0], 256 * kt)
        A("s_waitcnt lgkmcnt(0)")
        for x in range(2):
            A(f"{MF32} {vr(SS[x],16)}, {vr(Kf[0],4)}, {vr(Q[x],4)}, 0\n{MF8} {vr(SS[x],16)}, {vr(Kf[0]+4,2)}, {vr(Q[x]+4,2)}, {vr(SS[x],16)}")
        A("s_nop 15")
        for x in range(2):
            for i in range(0, 16, 2):
                A(f"v_max3_f32 v{20+x}, v{SS[x]+i}, v{SS[x]+i+1}, v{20+x}")
    A("s_add_u32 s34, s34, 2048\ns_cmp_lt_u32 s34, 16384\ns_cbranch_scc1 L_FB_LOOP")
    for x in range(2):
        A(f"v_mov_b32 v22, v{20+x}\ns_nop 1\nv_permlane32_swap_b32 v{20+x}, v22\nv_max_f32 v{20+x}, v{20+x}, v22")
    A(f"s_barrier\nds_write_b64 v2, v[20:21]\ns_waitcnt lgkmcnt(0)\ns_barrier\nds_read_b64 v[22:23], v3\ns_waitcnt lgkmcnt(0)")
    A("v_max_f32 v20, v20, v23\nv_max_f32 v21, v21, v22\nv_cmp_le_u32 vcc, 32, v1")
    for x in range(2):
        A(f"v_sub_f32 v24, 0, v{20+x}\nv_and_b32 v25, 0xffff0000, v24\nv_sub_f32 v24, v24, v25\nv_and_b32 v26, 0xffff0000, v24\nv_sub_f32 v24, v24, v26")
        A(f"v_lshrrev_b32 v25, 16, v25\nv_or_b32 v25, v25, v26\nv_lshrrev_b32 v24, 16, v24")
        A(f"v_cndmask_b32 v{Q[x]+4}, v{Q[x]+4}, v25, vcc\nv_cndmask_b32 v{Q[x]+5}, v{Q[x]+5}, v24, vcc")
    A(f"s_lshr_b32 s64, s{S_W}, 1\ns_min_u32 s64, s64, 2\ns_mul_i32 s64, s64, {SLOT}\ns_and_b32 s65, s{S_W}, 1\ns_lshl_b32 s65, s65, 10\ns_add_u32 s64, s64, s65\ns_add_u32 s64, s64, {10*PS}")
    A(f"v_add_u32 v24, s64, v{vD}")
    for i in range(4):
        A(f"v_mov_b32 v{28+i}, 0x3f803f80")
    A("s_barrier\nds_write_b128 v24, v[28:31]\ns_waitcnt lgkmcnt(0)\ns_branch L_ATT_MAIN")


def cmul(d, a, b, t):
    A(f"v_pk_mul_f32 {vr(t,2)}, {vr(a,2)}, {vr(b,2)} op_sel:[0,0] op_sel_hi:[1,0]")
    A(f"v_pk_fma_f32 {vr(d,2)}, {vr(a,2)}, {vr(b,2)}, {vr(t,2)} op_sel:[1,1,0] op_sel_hi:[0,1,1] neg_lo:[0,1,0]")


def cfma(d, a, b, c, t):
    A(f"v_pk_fma_f32 {vr(t,2)}, {vr(a,2)}, {vr(b,2)}, {vr(c,2)} op_sel:[0,0,0] op_sel_hi:[1,0,1]")
    A(f"v_pk_fma_f32 {vr(d,2)}, {vr(a,2)}, {vr(b,2)}, {vr(t,2)} op_sel:[1,1,0] op_sel_hi:[0,1,1] neg_lo:[0,1,0]")


def gather4(src, dst):
    if OPT["lscan"]:
        A(f"ds_write_b64 v0, {vr(src,2)}")
        for q in range(4):
            A(f"ds_read_b64 {vr(dst+2*q,2)}, v17 offset:{128*q}")
        A("s_waitcnt lgkmcnt(0)")
        return
    for c in range(2):
        A(f"v_mov_b32 v{dst+c}, v{src+c}\nv_mov_b32 v{dst+2+c}, v{src+c}")
    A("s_nop 0")
    for c in range(2):
        A(f"v_permlane16_swap_b32 v{dst+c}, v{dst+2+c}")
    for c in range(4):
        A(f"v_mov_b32 v{dst+4+c}, v{dst+c}")
    for c in range(4):
        A(f"v_permlane32_swap_b32 v{dst+c}, v{dst+4+c}")


sTC, sNB, sK, sROT, sCT = 41, 42, 43, 37, 36


def hoist():
    A(f"v_and_b32 v26, 15, v1\nv_add_u32 v123, s{sCT}, v26\nv_lshlrev_b32 v123, 3, v123")
    A(f"v_lshrrev_b32 v27, 4, v1\nv_mul_u32_u24 v28, {8*640}, v27\ns_sub_u32 s65, 32, s{sTC}\ns_mul_i32 s65, s65, 640\nv_add3_u32 v124, v123, v28, s65")
    A(f"v_mul_u32_u24 v28, 40960, v27\nv_lshl_add_u32 v125, v16, 4, v28")
    A(f"s_lshl_b32 s65, s{S_W}, 6\nv_add_u32 v28, s65, v1\nv_mul_u32_u24 v29, 6554, v28\nv_lshrrev_b32 v29, 16, v29\nv_mul_u32_u24 v30, 10, v29\nv_sub_u32 v30, v28, v30")
    A(f"v_and_b32 v28, 0x78, v29\nv_and_b32 v31, 1, v29\nv_lshl_add_u32 v28, v31, 2, v28\nv_bfe_u32 v31, v29, 1, 2\nv_add_u32 v28, v28, v31")
    A(f"v_mul_u32_u24 v28, 1280, v28\nv_lshl_add_u32 v28, v30, 4, v28\ns_mul_i32 s65, s{sNB}, 160\nv_add_u32 v117, s65, v28")
    A(f"v_lshrrev_b32 v28, 5, v1\nv_mul_u32_u24 v28, {PL}, v28\nv_and_b32 v29, 31, v1\nv_lshlrev_b32 v29, 4, v29\ns_and_b32 s65, s{S_W}, 1\ns_lshl_b32 s65, s65, 7\nv_xor_b32 v29, s65, v29\nv_add_u32 v119, v28, v29")
    A("v_bfe_u32 v30, v1, 2, 2\nv_and_b32 v31, 3, v1")
    sm, dn = uid("HS"), uid("HD")
    A(f"s_cmp_ge_u32 s{S_W}, 4\ns_cbranch_scc1 {sm}")
    for big in (True, False):
        if big:
            A(f"v_lshrrev_b32 v27, 5, v1\nv_and_b32 v26, 31, v1\ns_lshr_b32 s65, s{S_W}, 1\ns_and_b32 s66, s{S_W}, 1")
            A(f"s_lshl_b32 s67, s65, 5\ns_lshl_b32 s68, s66, 5")
            A(f"s_lshl_b32 s69, s65, 2\nv_bfe_u32 v28, v1, 4, 1\nv_lshlrev_b32 v28, 1, v28\nv_lshrrev_b32 v29, 1, v31\nv_add3_u32 v28, v28, v29, s69")
        else:
            A(f"{sm}:\ns_sub_u32 s65, s{S_W}, 4\ns_lshl_b32 s67, s65, 4\ns_mov_b32 s68, 64")
            A(f"s_lshl_b32 s69, s65, 1\nv_lshrrev_b32 v28, 1, v31\nv_add_u32 v28, s69, v28")
        A(f"v_mul_u32_u24 v28, 1088, v28\nv_lshl_add_u32 v29, v27, 3, v30\nv_lshl_add_u32 v28, v29, 4, v28\nv_and_b32 v29, 1, v31\nv_lshl_add_u32 v112, v29, 3, v28")
        A(f"v_add_u32 v28, s68, v26\nv_lshlrev_b32 v28, 7, v28\nv_add_u32 v28, 8704, v28\nv_bfe_u32 v29, v26, 1, 3\nv_xor_b32 v29, v29, v27\nv_lshl_add_u32 v113, v29, 4, v28")
        A(f"s_lshl_b32 s69, s{sTC}, 6\ns_add_u32 s69, s69, s67\nv_lshl_add_u32 v28, v27, 2, s69\ns_mul_i32 s69, s{sNB}, 80\ns_add_u32 s69, s69, s68\nv_add_u32 v29, s69, v26")
        A("v_mul_u32_u24 v114, 1280, v28\nv_lshl_add_u32 v114, v29, 1, v114\nv_mul_u32_u24 v115, 5120, v28\nv_lshl_add_u32 v115, v29, 2, v115\nv_lshlrev_b32 v126, 1, v29")
        A("v_lshlrev_b32 v28, 1, v30\nv_lshl_add_u32 v28, v27, 3, v28\nv_mul_u32_u24 v28, 160, v28\nv_lshl_add_u32 v28, v31, 3, v28")
        if big:
            A("v_bfe_u32 v29, v1, 4, 1\nv_lshl_add_u32 v28, v29, 5, v28\ns_lshl_b32 s69, s66, 6\nv_add_u32 v116, s69, v28")
            A("v_add_u32 v28, s67, v26\nv_lshlrev_b32 v28, 3, v28\nv_lshlrev_b32 v29, 7, v27\nv_xor_b32 v28, v28, v29\nv_lshl_add_u32 v28, v27, 10, v28\ns_mul_i32 s69, s65, 40960\nv_add_u32 v118, s69, v28")
            A(f"v_lshlrev_b32 v122, 4, v1\nv_mov_b32 v127, 0\nv_mov_b32 v26, 0\nv_mov_b32 v27, 0\nv_mov_b32 v28, 0\ns_branch {dn}")
        else:
            A("v_add_u32 v116, 128, v28")
            A("v_add_u32 v28, s67, v26\nv_lshlrev_b32 v28, 3, v28\nv_and_b32 v29, 1, v27\nv_lshlrev_b32 v29, 7, v29\nv_xor_b32 v28, v28, v29\nv_lshl_add_u32 v118, v27, 10, v28")
            A(f"v_lshrrev_b32 v28, 3, v1\ns_mul_i32 s69, s{sNB}, 80\ns_lshl_b32 s66, s65, 3\ns_add_u32 s69, s69, s66\nv_add_u32 v28, s69, v28\nv_mul_u32_u24 v28, 1280, v28")
            A(f"v_and_b32 v29, 7, v1\nv_xor_b32 v29, v29, v27\ns_and_b32 s69, s65, 1\ns_lshl_b32 s69, s69, 2\nv_xor_b32 v29, s69, v29\nv_lshl_add_u32 v122, v29, 4, v28")
            A("v_xor_b32 v127, 64, v113\nv_add_u32 v26, 40960, v122\nv_add_u32 v27, 81920, v122\nv_add_u32 v28, 40960, v118")
    A(f"{dn}:")


def wo_src(d, sj, t):
    A(f"v_add_u32 v{t}, s{sj}, v1\nv_mul_u32_u24 v{t+1}, 6554, v{t}\nv_lshrrev_b32 v{t+1}, 16, v{t+1}\nv_mul_u32_u24 v{t+2}, 10, v{t+1}\nv_sub_u32 v{t+2}, v{t}, v{t+2}")
    A(f"v_and_b32 v{t}, 0x78, v{t+1}\nv_and_b32 v{t+3}, 1, v{t+1}\nv_lshl_add_u32 v{t}, v{t+3}, 2, v{t}\nv_bfe_u32 v{t+3}, v{t+1}, 1, 2\nv_add_u32 v{t}, v{t}, v{t+3}")
    A(f"v_mul_u32_u24 v{t}, 1280, v{t}\nv_lshl_add_u32 v{t}, v{t+2}, 4, v{t}\ns_mul_i32 s69, s{sNB}, 160\nv_add_u32 v{d}, s69, v{t}")


def role_b():
    A("L_ROLE_B:\ns_cmp_ge_u32 s2, 512\ns_cbranch_scc1 L_END")
    if OPT.get("nob"):
        A("s_endpgm")
    stamp(0)
    A(f"s_load_dwordx16 s[8:23], s[0:1], 0\ns_load_dwordx8 s[24:31], s[0:1], 64\ns_load_dwordx2 s[{P_OUT}:{P_OUT+1}], s[0:1], 96\ns_load_dwordx2 s[{WS}:{WS+1}], s[0:1], 112")
    A(f"v_lshrrev_b32 v2, 6, v0\nv_and_b32 v1, 63, v0\nv_readfirstlane_b32 s{S_W}, v2")
    bhi()
    if OPT["cpre"]:
        cp = uid("CP")
        A(f"s_cmp_lg_u32 s{S_W}, 7\ns_cbranch_scc1 {cp}\ns_getpc_b64 s[64:65]\nL_PC:\ns_sub_u32 s64, s64, L_PC-{NAME}_kernel\ns_subb_u32 s65, s65, 0")
        A("s_bfe_u32 s66, s2, 0x50003\ns_lshl_b32 s66, s66, 11\nv_and_b32 v2, 15, v1\nv_lshlrev_b32 v2, 7, v2\nv_add_u32 v2, s66, v2")
        A(f"v_min_u32 v2, L_END-{NAME}_kernel, v2\nv_mov_b32 v3, s65\nv_add_co_u32 v2, vcc, s64, v2\ns_nop 1\nv_addc_co_u32 v3, vcc, 0, v3, vcc\nglobal_load_dword v4, v[2:3], off\n{cp}:")
    A(f"s_and_b32 s{sTC}, s2, 3\ns_lshl_b32 s{sTC}, s{sTC}, 3\ns_bfe_u32 s64, s2, 0x30003\ns_add_u32 s{sTC}, s{sTC}, s64")
    A(f"s_and_b32 s{sNB}, s2, 4\ns_bfe_u32 s64, s2, 0x20006\ns_add_u32 s{sNB}, s{sNB}, s64")
    A(f"s_mul_i32 s{sROT}, s{sNB}, 3\ns_add_u32 s{sROT}, s{sROT}, s{sTC}")
    A(f"s_mul_i32 s64, s{sROT}, 205\ns_lshr_b32 s64, s64, 11\ns_mul_i32 s64, s64, 10\ns_sub_u32 s{sROT}, s{sROT}, s64")
    if not OPT["brot"]:
        A(f"s_mov_b32 s{sROT}, 0")
    A(f"s_mov_b32 s{WS+2}, {WS_USED}\ns_mov_b32 s{WS+3}, 0x20000\ns_waitcnt lgkmcnt(0)\ns_load_dword s{S_E}, {WSP}, {EPOCH}")
    MU, CF, MU16, PW, LAM, LAM8 = 2, 4, 6, 8, 10, 12
    A(f"s_min_u32 s{sCT}, s{S_W}, 4\ns_lshl_b32 s{sCT}, s{sCT}, 4\ns_mul_i32 s64, s{sNB}, 80\ns_add_u32 s64, s64, s{sCT}")
    A(f"v_and_b32 v16, 15, v1\nv_add_u32 v16, s64, v16\nv_lshlrev_b32 v21, 1, v16")
    srd(R0, P_LRE, 1280); srd(R1, P_LIM, 1280); srd(R2, P_LDT, 1280)
    A(f"buffer_load_ushort v22, v21, {S(R0)}, 0 offen\nbuffer_load_ushort v23, v21, {S(R1)}, 0 offen\nbuffer_load_ushort v24, v21, {S(R2)}, 0 offen")
    A("s_waitcnt vmcnt(0) lgkmcnt(0)")
    epoch_fix()
    LOG2E = f2u(math.log2(math.e))
    A("v_lshlrev_b32 v22, 16, v22\nv_lshlrev_b32 v23, 16, v23\nv_lshlrev_b32 v24, 16, v24")
    A(f"v_mul_f32 v24, {LOG2E}, v24\nv_exp_f32 v24, v24\ns_nop 0\nv_cvt_pk_bf16_f32 v24, v24, v24\nv_lshlrev_b32 v24, 16, v24")
    A(f"v_mul_f32 v25, v24, v22\nv_mul_f32 v26, v24, v23\nv_mul_f32 v25, {LOG2E}, v25\nv_exp_f32 v25, v25")
    A(f"v_mul_f32 v26, 0.15915494, v26\nv_fract_f32 v26, v26\nv_cos_f32 v27, v26\nv_sin_f32 v28, v26\ns_nop 0")
    A(f"v_mul_f32 v{MU}, v25, v27\nv_mul_f32 v28, v25, v28\nv_sub_f32 v{MU+1}, 0, v28")
    A(f"v_add_f32 v27, -1.0, v{MU}")
    A("v_mul_f32 v25, v22, v22\nv_fmac_f32 v25, v23, v23\nv_rcp_f32 v25, v25")
    A("v_mul_f32 v26, v27, v22\nv_fmac_f32 v26, v28, v23\nv_mul_f32 v29, v28, v22\nv_fma_f32 v29, -v27, v23, v29")
    A(f"v_add_f32 v25, v25, v25\nv_mul_f32 v{CF}, v26, v25\nv_mul_f32 v29, v29, v25\nv_sub_f32 v{CF+1}, 0, v29")
    cmul(MU16, MU, MU, 22)
    for _ in range(3):
        cmul(MU16, MU16, MU16, 22)
    cmul(24, MU16, MU16, 22)
    cmul(26, 24, MU16, 22)
    cmul(LAM, 24, 24, 22)
    cmul(LAM8, LAM, LAM, 22)
    cmul(LAM8, LAM8, LAM8, 22)
    cmul(LAM8, LAM8, LAM8, 22)
    A("v_lshrrev_b32 v28, 4, v1")
    A(f"v_cmp_eq_u32 s[96:97], 1, v28\nv_cmp_eq_u32 s[98:99], 2, v28\nv_cmp_eq_u32 s[100:101], 3, v28")
    A(f"v_mov_b32 v{PW}, 1.0\nv_mov_b32 v{PW+1}, 0")
    for src, m in ((MU16, 96), (24, 98), (26, 100)):
        for c in range(2):
            A(f"v_cndmask_b32 v{PW+c}, v{PW+c}, v{src+c}, s[{m}:{m+1}]")
    vS0, vRA, vRB = 14, 18, 22
    srd(R0, P_BX, 2621440); srd(R1, P_BRE, 819200); srd(R2, P_BIM, 819200)
    hoist()
    A(f"s_lshl_b32 s{sK}, s{sROT}, 7")
    A("v_lshrrev_b32 v30, 4, v1\nv_and_b32 v31, 7, v1\nv_xor_b32 v31, v31, v30\nv_lshlrev_b32 v31, 4, v31")
    A(f"v_and_b32 v30, 31, v1\nv_lshlrev_b32 v30, 7, v30\nv_lshrrev_b32 v17, 5, v1\nv_bfe_u32 v29, v1, 1, 3\nv_xor_b32 v29, v17, v29\nv_lshl_add_u32 v{vRA}, v29, 4, v30")

    def scan_addr():
        A(f"s_mul_i32 s66, s{sCT}, 576\ns_add_u32 s66, s66, 20480\ns_lshl_b32 s67, s{sCT}, 5\ns_add_u32 s67, s67, 66560")
        A(f"v_and_b32 v0, 15, v1\nv_lshl_add_u32 v29, v17, 5, v0\nv_mul_u32_u24 v29, 144, v29\nv_bfe_u32 v30, v1, 4, 1\nv_lshl_add_u32 v29, v30, 2, v29\nv_add_u32 v29, s66, v29\nv_add_u32 v30, 2304, v29")
        A(f"v_mul_u32_u24 v31, 144, v1\nv_add_u32 v31, s66, v31\nv_lshl_add_u32 v17, v0, 3, s67\nv_lshl_add_u32 v0, v1, 3, s67")

    def early_addr():
        if not OPT["wearly"]:
            return
        A(f"s_cmp_eq_u32 s{S_W}, 6\ns_cselect_b32 s34, 1, 4\ns_cselect_b32 s35, 2, 0\ns_cmp_eq_u32 s{S_W}, 7\ns_cselect_b32 s34, 3, s34")
        for k in range(2):
            A(f"s_lshl_b32 s68, s{34+k}, 6")
            wo_src(48 + k, 68, 50)
            A(f"s_lshl_b32 s{34+k}, s{34+k}, 10")

    def touch2():
        t1, t2 = uid("U1"), uid("U2")
        if OPT["wearly"]:
            srd(R1, P_WO, 819200)
            for k in range(2):
                if k:
                    A(f"s_cmp_eq_u32 s{S_W}, 7\ns_cbranch_scc1 {t1}")
                for m in range(16):
                    A(f"s_add_u32 m0, s{34+k}, {5120*m}\ns_mov_b32 s64, {32*m*1280}")
                    dma(48 + k, R1, 64)
        else:
            A(f"s_cmp_eq_u32 s{S_W}, 7\ns_cbranch_scc1 {t1}")
        A(f"s_and_b32 s66, s{sTC}, 7\ns_mul_i32 s39, s66, 10\ns_mul_i32 s68, s{sNB}, 80\ns_add_u32 s39, s39, s68\ns_mul_i32 s39, s39, 1280")
        A(f"s_cmp_eq_u32 s{S_W}, 4\ns_cselect_b32 s{R1}, s{P_CRE}, s{P_CIM}\ns_cselect_b32 s{R1+1}, s{P_CRE+1}, s{P_CIM+1}")
        A(f"v_lshlrev_b32 v66, 7, v1\nv_min_u32 v67, 35, v1\nv_lshlrev_b32 v67, 7, v67\nv_add_u32 v67, 8192, v67")
        A(f"buffer_load_dword v64, v66, {S(R1)}, s39 offen\nbuffer_load_dword v65, v67, {S(R1)}, s39 offen\ns_branch {t2}\n{t1}:")
        srd(R1, P_WO, 819200)
        A(f"s_and_b32 s66, s{sTC}, 7\ns_mul_i32 s66, s66, {16*1280}\ns_mul_i32 s67, s{sNB}, 160\ns_add_u32 s66, s66, s67\ns_add_u32 s66, s66, {512*1280}")
        A(f"v_bfe_u32 v66, v1, 1, 4\nv_mul_u32_u24 v66, 1280, v66\nv_and_b32 v67, 1, v1\nv_mul_u32_u24 v67, 156, v67\nv_add_u32 v66, v66, v67")
        A(f"buffer_load_dword v64, v66, {S(R1)}, s66 offen\n{t2}:")

    GK = OPT["gk"]

    def more(Sx):
        return Sx + 2 < 10 and not (GK and Sx < GK <= Sx + 2)

    def inflight(Sx):
        return 0 if Sx == 9 or (GK and Sx == GK - 1) else 1

    def gate(Sx, issue, poller):
        if GK and Sx == GK:
            if poller:
                A(f"s_cmp_lg_u32 s{S_W}, 4\ns_cbranch_scc1 L_NOGATE\ns_sub_u32 s66, s2, 256\ns_lshl_b32 s66, s66, 7\ns_add_u32 s66, s66, {F0}")
                spoll([(8, 1, 0)], 66)
                A("L_NOGATE:")
            A("s_barrier")
            issue(GK); issue(GK + 1)

    def advK():
        A(f"s_add_u32 s{sK}, s{sK}, 128\ns_cmp_eq_u32 s{sK}, 1280\ns_cselect_b32 s{sK}, 0, s{sK}")

    ACC, BF, AF = 32, 64, 80
    SH = 12288
    A(f"s_cmp_ge_u32 s{S_W}, 4\ns_cbranch_scc1 L_G1_AUX")
    A(f"v_lshrrev_b32 v30, 3, v1\nv_add_u32 v30, s64, v30\nv_mul_u32_u24 v30, 1280, v30\nv_add_u32 v{vS0}, v30, v31")
    A(f"v_xor_b32 v{vS0+1}, 64, v{vS0}\nv_add_u32 v{vS0+1}, 10240, v{vS0+1}")
    A(f"s_lshl_b32 s38, s{S_W}, 13\ns_add_u32 s38, s38, {3*SH}")
    for u in range(1, 4):
        A(f"v_xor_b32 v{vRA+u}, {32*u}, v{vRA}")
    for u in range(4):
        A(f"v_add_u32 v{vRB+u}, s38, v{vRA+u}")
    scan_addr()
    A(f"s_cmp_lg_u32 s{S_W}, 0\ns_cbranch_scc1 L_NOHINT\ns_sub_u32 s66, s2, 256\ns_lshl_b32 s66, s66, 7\ns_add_u32 s66, s66, {F0C if OPT['gk'] else F0}")
    spoll([(8, 1, 0)], 66)
    A("L_NOHINT:\ns_barrier")
    stamp(1)
    A(f"s_setprio {3 if OPT['mlo'] else OPT['g1p']}\n;MLO_ON")

    def dmaB(Sx):
        for q in range(4):
            A(f"s_add_u32 m0, s38, {(Sx % 2) * 4096 + q * 1024}\ns_nop 0")
            dma(vS0 + (q & 1), R1 if q < 2 else R2, sK)
        advK()

    def g1_mm(Sx, u, tts=(0, 1)):
        for tt in tts:
            c = "0" if (Sx == 0 and u == 0) else vr(ACC + 16 * tt, 16)
            A(f"{MF32} {vr(ACC+16*tt,16)}, {vr(AF+8*u+4*tt,4)}, {vr(BF+4*u,4)}, {c}")

    dmaB(0); dmaB(1)
    for Sx in range(10):
        fst(1, Sx)
        gate(Sx, dmaB, False)
        A(f"s_waitcnt vmcnt({4 * inflight(Sx)})")
        for u in range(3):
            A(f"ds_read_b128 {vr(BF+4*u,4)}, v{vRB+u} offset:{(Sx % 2) * 4096}")
        A("s_barrier")
        if Sx:
            g1_mm(Sx - 1, 3, (0,))
        for u in range(3):
            for tt in range(2):
                A(f"ds_read_b128 {vr(AF+8*u+4*tt,4)}, v{vRA+u} offset:{(Sx % 3) * SH + 4096*tt}")
        if Sx:
            g1_mm(Sx - 1, 3, (1,))
        A(f"ds_read_b128 {vr(BF+12,4)}, v{vRB+3} offset:{(Sx % 2) * 4096}")
        for tt in range(2):
            A(f"ds_read_b128 {vr(AF+24+4*tt,4)}, v{vRA+3} offset:{(Sx % 3) * SH + 4096*tt}")
        A("s_waitcnt lgkmcnt(7)")
        g1_mm(Sx, 0)
        A("s_waitcnt lgkmcnt(5)")
        g1_mm(Sx, 1)
        A("s_waitcnt lgkmcnt(3)")
        g1_mm(Sx, 2)
        A("s_waitcnt lgkmcnt(0)")
        if more(Sx):
            dmaB(Sx + 2)
    g1_mm(9, 3)
    A(";MLO_OFF\ns_barrier\ns_nop 10\ns_branch L_SCAN")

    A("L_G1_AUX:")
    A(f"s_cmp_eq_u32 s{S_W}, 4\ns_cbranch_scc1 L_G1_LD\ns_cmp_eq_u32 s{S_W}, 7\ns_cbranch_scc1 L_G1_LD")
    A(f"v_lshrrev_b32 v30, 3, v1\nv_add_u32 v30, s64, v30\nv_mul_u32_u24 v30, 1280, v30\nv_add_u32 v{vS0}, v30, v31")
    A(f"v_xor_b32 v{vS0+1}, 64, v{vS0}\nv_add_u32 v{vS0+1}, 10240, v{vS0+1}")
    A(f"s_cmp_eq_u32 s{S_W}, 5\ns_cselect_b32 s{R3}, s{R1}, s{R2}\ns_cselect_b32 s{R3+1}, s{R1+1}, s{R2+1}\ns_mov_b32 s{R3+2}, 819200\ns_mov_b32 s{R3+3}, 0x20000")
    A(f"s_sub_u32 s38, s{S_W}, 5\ns_lshl_b32 s66, s38, 12\ns_lshl_b32 s38, s38, 11")
    for u in range(1, 4):
        A(f"v_xor_b32 v{vRA+u}, {32*u}, v{vRA}")
    for u in range(4):
        A(f"v_add_u32 v{vRB+u}, s66, v{vRA+u}")
    scan_addr()
    early_addr()
    A("s_barrier")
    A(f"s_setprio {3 if OPT['mlo'] else OPT['g1p']}\n;MLO_ON")

    def dmaB4(Sx):
        for q in range(2):
            A(f"s_add_u32 m0, s38, {(Sx % 3) * SH + 8192 + q * 1024}\ns_nop 0")
            dma(vS0 + q, R3, sK)
        advK()

    dmaB4(0); dmaB4(1)
    for Sx in range(10):
        gate(Sx, dmaB4, False)
        A(f"s_waitcnt vmcnt({2 * inflight(Sx)})\ns_barrier")
        for u in range(4):
            A(f"ds_read_b128 {vr(BF+4*u,4)}, v{vRA+u} offset:{(Sx % 3) * SH + 8192}")
            A(f"ds_read_b128 {vr(AF+4*u,4)}, v{vRB+u} offset:{(Sx % 3) * SH}")
        for u in range(4):
            A(f"s_waitcnt lgkmcnt({6-2*u})")
            c = "0" if (Sx == 0 and u == 0) else vr(ACC, 16)
            A(f"{MF32} {vr(ACC,16)}, {vr(AF+4*u,4)}, {vr(BF+4*u,4)}, {c}")
        if more(Sx):
            dmaB4(Sx + 2)
    A(";MLO_OFF")
    if OPT["lscan"]:
        A(f"s_cmp_eq_u32 s{S_W}, 5\ns_cbranch_scc1 L_G1_RED\ns_barrier\ns_nop 8")
        for j in range(0, 16, 4):
            for p in range(2):
                A(f"ds_write2_b32 v{29+p}, v{ACC+j+p}, v{ACC+j+p+2} offset0:{16 + j} offset1:{18 + j}")
        A("s_waitcnt lgkmcnt(0)\ns_barrier")
        bhi()
        touch2()
        A("s_branch L_G1_AUX2")
    else:
        bhi()
        A(f"v_lshlrev_b32 v30, 4, v1\nv_add_u32 v30, 69632, v30\ns_cmp_eq_u32 s{S_W}, 5\ns_cbranch_scc1 L_G1_RED\ns_nop 7")
        for g in range(4):
            A(f"ds_write_b128 v30, {vr(ACC+4*g,4)} offset:{1024*g}")
        A("s_waitcnt lgkmcnt(0)\ns_branch L_G1_AUXEND")

    A("L_G1_LD:")
    A(f"s_cmp_eq_u32 s{S_W}, 7\ns_cselect_b32 s38, 1, 0")
    A(f"v_bfe_u32 v29, v1, 3, 1\nv_lshl_add_u32 v30, v17, 1, v29\nv_lshlrev_b32 v30, 4, v30\nv_bfe_u32 v29, v1, 4, 1\nv_add_u32 v30, v30, v29")
    A(f"s_lshl_b32 s66, s{sTC}, 6\ns_lshl_b32 s67, s38, 3\ns_add_u32 s66, s66, s67\nv_add_u32 v30, s66, v30\nv_mul_u32_u24 v30, 1280, v30\nv_add_u32 v{vS0}, v30, v31")
    A(f"v_xor_b32 v{vS0+1}, 64, v{vS0}\nv_add_u32 v{vS0+1}, 2560, v{vS0+1}\nv_add_u32 v22, 5120, v{vS0}\nv_add_u32 v23, 5120, v{vS0+1}")
    early_addr()
    if OPT["t1"]:
        t7, td = uid("T7"), uid("TD")
        A(f"v_lshrrev_b32 v52, 1, v1\nv_mul_u32_u24 v52, 1280, v52\nv_and_b32 v53, 1, v1\nv_lshl_add_u32 v52, v53, 7, v52\ns_cmp_eq_u32 s{S_W}, 7\ns_cbranch_scc1 {t7}")
        A(f"s_and_b32 s66, s{sNB}, 3\ns_lshl_b32 s66, s66, 4\ns_lshl_b32 s67, s{sTC}, 6\ns_add_u32 s66, s66, s67\ns_mul_i32 s66, s66, 1280\ns_mov_b32 exec_hi, 0")
        A(f"buffer_load_dword v54, v52, {S(R0)}, s66 offen\ns_branch {td}\n{t7}:")
        A(f"s_and_b32 s66, s{sTC}, 7\ns_mul_i32 s66, s66, 10\ns_mul_i32 s67, s{sNB}, 80\ns_add_u32 s66, s66, s67\ns_mul_i32 s66, s66, 1280\ns_mov_b64 exec, 0xfffff")
        A(f"buffer_load_dword v54, v52, {S(R1)}, s66 offen\nbuffer_load_dword v55, v52, {S(R2)}, s66 offen\n{td}:\ns_mov_b64 exec, -1")
    A("s_lshl_b32 s38, s38, 12\ns_waitcnt vmcnt(0)\ns_barrier")

    def dmaX(Sx):
        for q in range(4):
            A(f"s_add_u32 m0, s38, {(Sx % 3) * SH + q * 1024}\ns_nop 0")
            dma([vS0, vS0 + 1, 22, 23][q], R0, sK)
        advK()

    dmaX(0); dmaX(1)
    for Sx in range(10):
        gate(Sx, dmaX, True)
        A(f"s_waitcnt vmcnt({4 * inflight(Sx)})\ns_barrier")
        if more(Sx):
            dmaX(Sx + 2)
    A("L_G1_AUXEND:")
    A("s_barrier\ns_barrier")
    A(f"s_cmp_lg_u32 s{S_W}, 6\ns_cbranch_scc1 L_F2POLL")
    touch2()
    A("s_barrier\ns_waitcnt vmcnt(0)\ns_branch L_B_H\nL_F2POLL:")
    A(f"s_cmp_eq_u32 s{S_W}, 7\ns_cselect_b32 s66, 16, 0\ns_sub_i32 s67, s{sTC}, s66\ns_max_i32 s67, s67, 0\ns_min_i32 s67, s67, 16\ns_lshr_b32 s67, 0xffff0000, s67\ns_and_b32 s67, s67, 0xffff")
    A(f"s_lshl_b32 s66, s66, 3\ns_lshl_b32 s65, s{sNB}, 5\ns_add_u32 s65, s65, s{sTC}\ns_lshl_b32 s65, s65, 8\ns_add_u32 s66, s66, s65\ns_add_u32 s66, s66, {PV2}")
    spoll([(68, 8, 0), (84, 8, 64)], 66, need=67)
    A("s_barrier")
    touch2()
    A("s_waitcnt vmcnt(0)\ns_branch L_B_H")
    A("L_G1_RED:\ns_barrier")
    if OPT["lscan"]:
        A("s_nop 8")
        for j in range(0, 16, 4):
            for p in range(2):
                A(f"ds_write2_b32 v{29+p}, v{ACC+j+p}, v{ACC+j+p+2} offset0:{j} offset1:{2 + j}")
        A("s_branch L_SCAN2")
    else:
        for g in range(4):
            A(f"ds_read_b128 {vr(ACC+16+4*g,4)}, v30 offset:{1024*g}")
        A("s_waitcnt lgkmcnt(0)\ns_nop 1")
    A("L_SCAN:")
    stamp(2)
    if OPT["lscan"]:
        for tt in range(2):
            for j in range(0, 16, 4):
                for p in range(2):
                    A(f"ds_write2_b32 v{29+p}, v{ACC+16*tt+j+p}, v{ACC+16*tt+j+p+2} offset0:{16*tt + j} offset1:{16*tt + 2 + j}")
        A("L_SCAN2:\ns_waitcnt lgkmcnt(0)\ns_barrier")
        for i in range(8):
            A(f"ds_read_b128 {vr(ACC+4*i,4)}, v31 offset:{16*i}")
        bhi()
    else:
        bhi()
        for i in range(16):
            A(f"v_permlane16_swap_b32 v{ACC+2*i}, v{ACC+2*i+1}")
    for i in range(16):
        u = ACC + 2 * i
        t = 64 + 2 * (i & 1)
        if OPT["lscan"] and i % 2 == 0:
            A(f"s_waitcnt lgkmcnt({7 - i // 2})")
        A(f"v_pk_mul_f32 {vr(t,2)}, {vr(u,2)}, {vr(CF,2)} op_sel:[0,0] op_sel_hi:[0,1]")
        A(f"v_pk_fma_f32 {vr(u,2)}, {vr(u,2)}, {vr(CF,2)}, {vr(t,2)} op_sel:[1,1,0] op_sel_hi:[1,0,1] neg_hi:[0,1,0]")
    G, T = 68, 70
    cfma(G, ACC, MU, ACC + 2, T)
    for i in range(2, 16):
        cfma(G, G, MU, ACC + 2 * i, T)
    E4 = 72
    A(f"s_mul_i32 s64, s{sNB}, 20480\ns_add_u32 s64, s64, {EB}\ns_add_u32 s{R3}, s{WS}, s64\ns_addc_u32 s{R3+1}, s{WS+1}, 0\ns_mov_b32 s{R3+2}, 20480\ns_mov_b32 s{R3+3}, 0x20000")
    gather4(G, E4)
    PRE = 80
    cfma(82, E4, MU16, E4 + 2, T)
    cfma(84, 82, MU16, E4 + 4, T)
    cfma(86, 84, MU16, E4 + 6, T)
    A(f"s_sub_u32 s64, 31, s{sTC}\ns_mul_i32 s64, s64, 640\ns_mov_b64 exec, 0xffff")
    A(f"buffer_store_dwordx2 v[86:87], v123, {S(R3)}, s64 offen sc1\ns_mov_b64 exec, -1")
    A(f"v_mov_b32 v{PRE}, 0\nv_mov_b32 v{PRE+1}, 0")
    for src, m in ((E4, 96), (82, 98), (84, 100)):
        for c in range(2):
            A(f"v_cndmask_b32 v{PRE+c}, v{PRE+c}, v{src+c}, s[{m}:{m+1}]")
    A(f"s_lshl_b32 s68, s{sNB}, 13\ns_lshl_b32 s69, s{sTC}, 3\ns_add_u32 s68, s68, s69\ns_add_u32 s68, s68, {PV2}")
    A(f"v_lshlrev_b32 v88, 8, v1\nv_mov_b32 v90, s{S_E}\nv_mov_b32 v91, s{S_E+1}\ns_lshl_b32 s69, -2, s{sTC}")
    A("s_waitcnt vmcnt(0)\ns_barrier")
    A(f"s_cmp_lg_u32 s{S_W}, 0\ns_cbranch_scc1 L_NOP2\ns_cmp_eq_u32 s69, 0\ns_cbranch_scc1 L_NOP2\ns_mov_b32 exec_lo, s69\ns_mov_b32 exec_hi, 0")
    A(f"buffer_store_dwordx2 v[90:91], v88, {S(WS)}, s68 offen sc1\ns_mov_b64 exec, -1\nL_NOP2:")
    stamp(3)
    A(f"s_cmp_ge_u32 s{S_W}, 4\ns_cbranch_scc1 L_NOSKIP")
    srd(R1, P_DSK, 1280)
    A(f"buffer_load_ushort v14, v126, {S(R1)}, 0 offen")
    for i in range(16):
        A(f"s_mov_b32 s64, {(8 * (i >> 2) + (i & 3))*1280}\nbuffer_load_ushort v{16+i}, v114, {S(R0)}, s64 offen")
    A("L_NOSKIP:\ns_movk_i32 s64, 4480\ns_barrier")
    stamp(4)
    EL = 96
    for u in range(8):
        d = 7 - u
        A(f"buffer_load_dwordx2 {vr(EL+2*u,2)}, v124, {S(R3)}, {'s64' if d == 7 else '0'} offen offset:{0 if d == 7 else 640*d} sc1")
    A("s_waitcnt vmcnt(6)")
    cfma(G, EL, LAM, EL + 2, T)
    for u in range(2, 8):
        A(f"s_waitcnt vmcnt({7-u})")
        cfma(G, G, LAM, EL + 2 * u, T)
    gather4(G, E4)
    cfma(G, E4 + 6, LAM8, E4 + 4, T)
    cfma(G, G, LAM8, E4 + 2, T)
    cfma(G, G, LAM8, E4, T)
    cfma(G, G, PW, PRE, T)
    PK = 72
    A(f"s_mul_i32 s64, s{sTC}, 163840\ns_add_u32 s64, s64, {HB}")
    for tt in range(2):
        for i in range(8 * tt, 8 * tt + 8):
            cfma(ACC + 2 * i, G if i == 0 else ACC + 2 * i - 2, MU, ACC + 2 * i, T)
        for c in range(2):
            d = PK + 8 * tt + 4 * c
            for m in range(4):
                a = ACC + 16 * tt + 4 * m + c
                A(f"v_cvt_pk_bf16_f32 v{d+m}, v{a}, v{a+2}")
            A(f"s_add_u32 s65, s64, {tt*20480 + c*10240}")
            A(f"buffer_store_dwordx4 {vr(d,4)}, v125, {S(WS)}, s65 offen sc1")
    A("s_waitcnt vmcnt(0)")
    A("L_B_H:")
    bhi()
    A("s_barrier")
    A(f"s_cmp_lg_u32 s{S_W}, 0\ns_cbranch_scc1 L_NOP3\ns_lshl_b32 s68, s{sTC}, 10\ns_lshl_b32 s69, s{sNB}, 3\ns_add_u32 s68, s68, s69\ns_add_u32 s68, s68, {PV3}")
    A(f"v_lshlrev_b32 v88, 7, v1\ns_mov_b64 exec, 0xff\nbuffer_store_dwordx2 v[90:91], v88, {S(WS)}, s68 offen sc1\ns_mov_b64 exec, -1\nL_NOP3:")
    stamp(5)
    A(f"s_cmp_ge_u32 s{S_W}, 4\ns_cbranch_scc1 L_B_SMALL")
    tail(True)
    A("L_B_SMALL:")
    tail(False)


def tail(big):
    nacc = 16 if big else 4
    ACC = 16 if big else 12
    WF = 48
    MF = MF32 if big else MF16
    rows = [8 * (i >> 2) + (i & 3) for i in range(nacc)]
    fst(9, 0)
    if big:
        vA, vB, vS, vOut, vO, vOs, vW, vWs = 2, 3, 4, 5, 6, 7, 8, 9
        mv = ((8, 116), (2, 112), (3, 113), (4, 122), (5, 115), (6, 118), (9, 117))
        A(f"s_lshr_b32 s64, s{S_W}, 1\ns_mul_i32 s64, s64, 51200\nv_add_u32 v10, s64, v116")
    else:
        vA, vB, vS, vOut, vO, vOs, vW, vWs = 2, 3, 9, 5, 6, 10, 16, 17
        mv = ((16, 116), (2, 112), (3, 113), (4, 127), (5, 115), (6, 118), (7, 28), (9, 122), (10, 119), (8, 26), (11, 27), (17, 117))
        srd(R3, P_DSK, 1280)
        A(f"buffer_load_ushort v0, v126, {S(R3)}, 0 offen")
        for i in range(nacc):
            A(f"s_mov_b32 s64, {rows[i]*1280}\nbuffer_load_ushort v{32+i}, v114, {S(R0)}, s64 offen")
        A(f"s_sub_u32 s95, s{S_W}, 4\nv_add_u32 v18, 40960, v116")
    for d, sreg in mv:
        A(f"v_mov_b32 v{d}, v{sreg}")
    fst(9, 1)
    if big:
        for u in range(20):
            if u == 12:
                A(f"s_cmp_ge_u32 s{S_W}, 2\ns_cbranch_scc1 L_WR0")
            for j in range(2):
                A(f"ds_read_b64_tr_b16 {vr(WF+4*u+2*j,2)}, v10 offset:{2560*u + 160*j}")
        A("L_WR0:")
        for i in range(nacc):
            A(f"v_dot2_f32_bf16 v{ACC+i}, v{ACC+i}, v14, 0")
        A(f"s_lshl_b32 s45, s{sTC}, 3\ns_add_u32 s45, s45, s{sNB}\ns_lshl_b32 s45, s45, 7\ns_add_u32 s45, s45, {PV3}")
    else:
        for U in range(16):
            for j in range(2):
                A(f"ds_read_b64_tr_b16 {vr(WF+4*U+2*j,2)}, v{vW if U < 8 else 18} offset:{5120*(U & 7) + 160*j}")
    srd(R1, P_WO, 819200)
    A(f"s_lshl_b32 s46, s{S_W}, 10\ns_waitcnt lgkmcnt(0)\ns_barrier")
    fst(9, 2)
    if big:
        A(f"s_load_dwordx16 s[8:23], {WSP}, s45 glc")
    sk = uid("WD")
    if not big:
        A(f"s_cmp_ge_u32 s{S_W}, 5\ns_cbranch_scc1 {sk}")
    for m in range(4):
        A(f"s_add_u32 m0, s46, {5120*m}\ns_mov_b32 s64, {(512 + 32*m) * 1280}")
        dma(vWs, R1, 64)
    A(f"{sk}:")
    fst(9, 3)
    if not big:
        A("s_waitcnt vmcnt(0)")
        for i in range(nacc):
            A(f"v_dot2_f32_bf16 v{ACC+i}, v{32+i}, v0, 0")

    def wo_reads1():
        if big:
            A(f"s_cmp_lt_u32 s{S_W}, 2\ns_cbranch_scc1 L_WR1")
            for u in range(8):
                for j in range(2):
                    A(f"ds_read_b64_tr_b16 {vr(WF+4*(12+u)+2*j,2)}, v{vW} offset:{2560*u + 160*j}")
            A("L_WR1:")
        else:
            for U in range(4):
                for j in range(2):
                    A(f"ds_read_b64_tr_b16 {vr(WF+4*(16+U)+2*j,2)}, v{vW} offset:{5120*U + 160*j}")
        A("s_waitcnt lgkmcnt(0)\ns_barrier")

    SL = 18944
    vSs = [vS, 8, 11]

    def slot(Sx):
        return ((Sx + 3) % 4) * SL

    def g2_dma(Sx):
        sb = slot(Sx)
        if big:
            for i in range(2):
                A(f"s_add_u32 m0, s39, {sb + 1088*i}\ns_add_u32 s64, s44, s{sK}")
                if i or Sx >= 10:
                    A(f"s_add_u32 s64, s64, {20480*i + (10240 if Sx >= 10 else 0)}")
                dma(vS, WS, 64, "sc1")
            A(f"s_add_u32 s{sK}, s{sK}, 1024\ns_cmp_eq_u32 s{sK}, 10240\ns_cselect_b32 s{sK}, 0, s{sK}")
        else:
            for m in range(3):
                if m == 2:
                    sk = uid("SD")
                    A(f"s_cmp_ge_u32 s95, 2\ns_cbranch_scc1 {sk}")
                A(f"s_add_u32 m0, s39, {sb + 8704 + 4096*m}\ns_nop 0")
                dma(vSs[m], R1 if Sx < 10 else R2, sK)
            A(f"{sk}:")
            A(f"s_add_u32 s{sK}, s{sK}, 128\ns_cmp_eq_u32 s{sK}, 1280\ns_cselect_b32 s{sK}, 0, s{sK}")

    srd(R1, P_CRE, 819200); srd(R2, P_CIM, 819200)
    if big:
        A(f"s_mul_i32 s44, s{sTC}, 163840\ns_mul_i32 s64, s{S_W}, 40960\ns_add_u32 s44, s44, s64\ns_add_u32 s44, s44, {HB}")
        A(f"v_xor_b32 v0, 32, v{vB}\nv_xor_b32 v1, 64, v{vB}\nv_xor_b32 v7, 96, v{vB}")
        A(f"s_mul_i32 s39, s{S_W}, 2176\ns_lshl_b32 s{sK}, s{sROT}, 10")
        fst(9, 4)
        A("s_waitcnt lgkmcnt(0)\ns_mov_b32 s65, 0")
        for i in range(8):
            A(f"s_cmp_eq_u64 s[{8+2*i}:{9+2*i}], {EP}\ns_addc_u32 s65, s65, s65")
        A("s_cmp_eq_u32 s65, 255\ns_cbranch_scc1 L_F3OK")
        spoll([(8, 8, 0)], 45)
        A("L_F3OK:")
        stamp(6); fst(9, 5)
        g2_dma(0)
        A(f"s_waitcnt vmcnt(2)")
        fst(9, 6)
        A("s_barrier")
        fst(9, 7)
    else:
        A(f"s_lshl_b32 s39, s95, 10\ns_lshl_b32 s{sK}, s{sROT}, 7")
        g2_dma(0)
        A("s_barrier")
    if big:
        A(f"s_sub_u32 s66, s2, 256\ns_lshl_b32 s66, s66, 7\ns_add_u32 s66, s66, {F0B}\ns_load_dwordx2 s[8:9], {WSP}, s66 glc")
    wo_reads1()
    fst(9, 8)
    A("s_waitcnt vmcnt(0)")
    for Sx in range(1, 4):
        g2_dma(Sx)
    if big:
        sk = uid("G2W")
        A(f"s_cmp_eq_u64 s[8:9], {EP}\ns_cbranch_scc1 {sk}\ns_cmp_lg_u32 s{S_W}, 0\ns_cbranch_scc1 {sk}")
        fst(9, 9)
        spoll([(8, 1, 0)], 66)
        A(f"{sk}:")
        fst(9, 10)
    A(f"s_setprio {3 if OPT['mlo'] else OPT['g2p']}\n;MLO_ON")
    if big:
        SET = [32, 40, 8]

        def rd(n):
            Sx, u = n >> 2, n & 3
            f, sb = SET[n % 3], slot(Sx)
            for j in range(2):
                A(f"ds_read_b64_tr_b16 {vr(f+2*j,2)}, v{vA} offset:{sb + 256*u + 64*j}")
            A(f"ds_read_b128 {vr(f+4,4)}, v{[vB, 0, 1, 7][u]} offset:{sb}")

        def mm(n):
            if n >= 0:
                f = SET[n % 3]
                A(f"{MF} {vr(ACC,16)}, {vr(f,4)}, {vr(f+4,4)}, {vr(ACC,16)}")

        for Sx in range(20):
            infl = 3 if Sx == 0 else min(Sx + 3, 20) - Sx - 1
            n = 4 * Sx
            A(f"s_waitcnt vmcnt({2*infl})\ns_barrier" if Sx else "s_barrier")
            if Sx == 0:
                stamp(11); fst(9, 11)
            rd(n); rd(n + 1)
            mm(n - 1)
            rd(n + 2)
            A("s_waitcnt lgkmcnt(6)")
            mm(n)
            rd(n + 3)
            if 0 < Sx < 17:
                g2_dma(Sx + 3)
            A("s_waitcnt lgkmcnt(6)")
            mm(n + 1)
            A("s_waitcnt lgkmcnt(3)")
            mm(n + 2)
            A("s_waitcnt lgkmcnt(0)")
        mm(79)
    else:
        FR = [16, 32]

        def mm(Sx, u):
            if Sx >= 0:
                f = FR[Sx & 1]
                A(f"{MF} {vr(ACC,4)}, {vr(f+8*u,4)}, {vr(f+8*u+4,4)}, {vr(ACC,4)}")

        for Sx in range(20):
            infl = 3 if Sx == 0 else min(Sx + 3, 20) - Sx - 1
            f, sb = FR[Sx & 1], slot(Sx)
            A(f"s_waitcnt vmcnt({2*infl})\ns_barrier" if Sx else "s_barrier")
            if 0 < Sx < 17:
                g2_dma(Sx + 3)
            mm(Sx - 1, 0)
            for u in range(2):
                for j in range(2):
                    A(f"ds_read_b64_tr_b16 {vr(f+8*u+2*j,2)}, v{vA} offset:{sb + 512*u + 64*j}")
                A(f"ds_read_b128 {vr(f+8*u+4,4)}, v{vB + u} offset:{sb}")
            mm(Sx - 1, 1)
            A("s_waitcnt lgkmcnt(0)")
        mm(19, 0); mm(19, 1)
    A(";MLO_OFF")
    stamp(7)
    bhi()
    srd(R2, P_OUT, 10485760)
    A(f"s_mul_i32 s44, s{S_W}, {2*PL}\ns_lshl_b32 s64, s{sTC}, 9\ns_add_u32 s44, s44, s64\ns_add_u32 s44, s44, {OP}\ns_lshl_b32 s46, s{S_W}, 10")
    if big:
        A(f"s_lshl_b32 s45, s{sTC}, 3\ns_add_u32 s45, s45, s{sNB}\ns_lshl_b32 s45, s45, 8\ns_lshl_b32 s64, s{S_W}, 6\ns_add_u32 s45, s45, s64\ns_add_u32 s45, s45, {PV4}")
        A(f"v_lshrrev_b32 v0, 9, v4\nv_mul_u32_u24 v0, {PL}, v0\nv_and_b32 v7, 0x1f0, v4\ns_and_b32 s64, s{S_W}, 1\ns_lshl_b32 s64, s64, 7\nv_xor_b32 v7, s64, v7\nv_add_u32 v7, v0, v7")
    for i in range(nacc):
        A(f"s_mov_b32 s64, {rows[i]*5120}\nbuffer_store_dword v{ACC+i}, v{vOut}, {S(R2)}, s64 offen offset:2560 {AUX[OPT['sty']]}")
    PIT = 336
    if big:
        spoll([(8, 8, 0)], 45)
    A("s_barrier")
    stamp(8); fst(5, 0)
    def odma(i):
        for st in (i, 5 + i):
            A(f"s_add_u32 m0, s46, {8192*st}\ns_add_u32 s64, s44, {16*PL*st}")
            dma(vOs, WS, 64, "sc1")

    odma(0)
    if OPT["opord"]:
        A("s_barrier")
    for i in range(1, 5):
        odma(i)
    A(f"v_mbcnt_lo_u32_b32 v0, -1, 0\nv_mbcnt_hi_u32_b32 v0, -1, v0")
    if big:
        A(f"s_lshr_b32 s64, s{S_W}, 1\ns_mul_i32 s65, s64, {40960 + 32*PIT}\ns_and_b32 s66, s{S_W}, 1\ns_lshl_b32 s66, s66, 7\ns_add_u32 s65, s65, s66")
        A(f"v_and_b32 v2, 31, v0\nv_mul_u32_u24 v2, {PIT}, v2\nv_lshrrev_b32 v3, 5, v0\nv_lshl_add_u32 v2, v3, 4, v2\nv_add_u32 v2, s65, v2")
        A(f"s_mul_i32 s67, s64, {-64*PIT & 0xffffffff}\ns_add_u32 s67, s67, {32*PIT}\nv_add_u32 v7, s67, v2")
        A(f"v_xor_b32 v1, 256, v{vO}")
    else:
        A(f"s_mul_i32 s65, s95, {16*PIT}\ns_add_u32 s65, s65, 256\nv_and_b32 v2, 15, v0\nv_mul_u32_u24 v2, {PIT}, v2\nv_lshrrev_b32 v3, 4, v0\nv_lshl_add_u32 v2, v3, 4, v2\nv_add_u32 v2, s65, v2")
        for i in range(4):
            A(f"v_mov_b32 v{8+i}, 0")
    A(f"s_lshl_b32 s64, s{S_W}, 6\nv_add_u32 v0, s64, v0\nv_mul_u32_u24 v3, 3277, v0\nv_lshrrev_b32 v3, 16, v3\nv_mul_u32_u24 v5, 20, v3\nv_sub_u32 v0, v0, v5\nv_lshlrev_b32 v0, 4, v0")
    A(f"s_mul_i32 s64, s{sTC}, {64*5120}\ns_mul_i32 s65, s{sNB}, 320\ns_add_u32 s47, s64, s65\nv_mul_u32_u24 v5, 5120, v3\nv_add_u32 v5, v5, v0\nv_mul_u32_u24 v3, {PIT}, v3\nv_add_u32 v3, v3, v0")
    steps = {0: 8, 4: 4, 12: 0}
    if big:
        ne = uid("NE")
        A(f"s_cmp_lg_u32 s{sTC}, 31\ns_cbranch_scc1 {ne}\ns_or_b32 s64, s{sNB}, s{S_W}\ns_cmp_lg_u32 s64, 0\ns_cbranch_scc1 {ne}")
        A(f"s_waitcnt vmcnt(0)\nv_mov_b32 v8, s{S_E}\ns_mov_b64 exec, 1\nbuffer_store_dword v8, off, {S(WS)}, 0 offset:{EPOCH} sc1\ns_mov_b64 exec, -1\ns_waitcnt vmcnt(0)\n{ne}:")
        free = [8, 12]
        loc = {}
        order = []

        def issue(n, t):
            f = free.pop(0)
            loc[(n, t)] = f
            i, u = n >> 2, n & 3
            for j in range(2):
                A(f"ds_read_b64 {vr(f+2*j,2)}, v{vO if t == 0 else 1} offset:{8192*i + 2048*u + 512*j}")
            order.append((n, t))

        todo = [(n, t) for n in range(16) for t in range(2)] + [(n, 1) for n in range(16, 20)] + [(n, 0) for n in range(16, 20)]
        nxt = 0
        done = {}
        lim = 0
        for k, (n, t) in enumerate(todo):
            if n in steps and t == 0:
                if n == 0:
                    fst(5, 1)
                A(f"s_waitcnt vmcnt({steps[n]})\ns_barrier")
                fst(5, 2 + list(steps).index(n))
                lim = {0: 8, 4: 24, 12: 40}[n]
            while nxt < lim and free and nxt - k < 6:
                issue(*todo[nxt]); nxt += 1
            pend = len(order) - 1 - order.index((n, t))
            if (n, t) == (17, 0):
                assert nxt == len(todo)
                A("s_nop 7\ns_waitcnt lgkmcnt(0)")
            elif t == 0 and n > 17:
                for g in (2 * (n - 18), 2 * (n - 18) + 1):
                    A(f"ds_write_b128 v7, {vr(ACC+16+4*g,4)} offset:{32*g}")
            else:
                A(f"s_waitcnt lgkmcnt({2*pend})")
            c = "0" if n == 0 else vr(ACC + 16 * t, 16)
            A(f"{MF} {vr(ACC+16*t,16)}, {vr(WF+4*n,4)}, {vr(loc[(n,t)],4)}, {c}")
            free.append(loc[(n, t)])
            done[n] = done.get(n, 0) + 1
            if done[n] == 2:
                free.append(WF + 4 * n)
        fst(5, 5)
        A("s_nop 11")
        for g in range(4):
            A(f"ds_write_b128 v2, {vr(ACC+4*g,4)} offset:{32*g}")
    else:
        first = True
        for si, (i0, i1) in enumerate(((0, 1), (1, 3), (3, 5))):
            A(f"s_waitcnt vmcnt({[8, 4, 0][si]})\ns_barrier")
            for i in range(i0, i1):
                f = 16 + 16 * (i & 1)
                for h in range(2):
                    for U in range(2):
                        for j in range(2):
                            A(f"ds_read_b64 {vr(f+8*h+4*U+2*j,2)}, v{vO+h} offset:{8192*i + 4096*U + 512*j}")
            for i in range(i0, i1):
                f = 16 + 16 * (i & 1)
                for h in range(2):
                    for U in range(2):
                        A(f"s_waitcnt lgkmcnt({8*(i1-1-i) + 6 - 4*h - 2*U})")
                        c = "0" if first else vr(ACC, 4)
                        first = False
                        A(f"{MF} {vr(ACC,4)}, {vr(WF+40*h+8*i+4*U,4)}, {vr(f+8*h+4*U,4)}, {c}")
        A(f"ds_write_b128 v2, v[8:11] offset:40960\ns_nop 6\nds_write_b128 v2, {vr(ACC,4)}")
    A("s_waitcnt lgkmcnt(0)\ns_barrier")
    fst(5, 6)
    if not big:
        A(f"s_cmp_ge_u32 s{S_W}, 5\ns_cbranch_scc1 L_B_DONE")
    for m in range(4):
        A(f"ds_read_b128 {vr(48+8*m,4)}, v3 offset:{16*PIT*m}\nds_read_b128 {vr(52+8*m,4)}, v3 offset:{40960 + 16*PIT*m}")
    for m in range(4):
        A(f"s_waitcnt lgkmcnt({6-2*m})")
        for c in range(2):
            A(f"v_pk_add_f32 {vr(48+8*m+2*c,2)}, {vr(48+8*m+2*c,2)}, {vr(52+8*m+2*c,2)}")
        A(f"buffer_store_dwordx4 {vr(48+8*m,4)}, v5, {S(R2)}, s47 offen {AUX[OPT['sto']]}")
        if m < 3:
            A(f"s_add_u32 s47, s47, {16*5120}")
    if not big:
        A("L_B_DONE:")
    fst(5, 7)
    stamp(9)
    if OPT["stamps"]:
        A("s_waitcnt vmcnt(0)")
        stamp(10); fst(5, 8)
    dump_stamps(12)
    A("s_endpgm")


def wrap_mfma():
    out, on, i = [], False, 0
    for k, l in enumerate(L):
        if l == ";MLO_ON":
            on = True
            continue
        if l == ";MLO_OFF":
            on = False
            continue
        if on and OPT["mlo"] and l.startswith("v_mfma"):
            if not L[k - 1].startswith("v_mfma"):
                out.append(f"s_setprio {OPT['mlv']}")
            out.append(l)
            if not L[k + 1].startswith("v_mfma"):
                out.append("s_setprio 3")
        else:
            out.append(l)
    L[:] = out


def build():
    hdr = open("cdna_kernels/" + NAME + ".s.ref").read().split("\n")
    out = [l for l in hdr if l.startswith(";") and "@launch" not in l]
    out.append("; @launch grid=(512,1,1) block=(512,1,1) lds=81920")
    out.append('.amdgcn_target "amdgcn-amd-amdhsa--gfx950"\n.text')
    out.append(f".globl {NAME}_kernel\n.p2align 8\n.type {NAME}_kernel,@function\n{NAME}_kernel:")
    qkv()
    attention()
    qkv_idle()
    role_b()
    A("L_END:\ns_endpgm")
    wrap_mfma()
    for l in L:
        out.append(l if l.endswith(":") or l.startswith(".") else "    " + l)
    out.append(f""".section .rodata,"a"
.p2align 6
.amdhsa_kernel {NAME}_kernel
  .amdhsa_next_free_vgpr 128
  .amdhsa_next_free_sgpr 102
  .amdhsa_accum_offset 128
  .amdhsa_group_segment_fixed_size 0
  .amdhsa_kernarg_size 120
  .amdhsa_user_sgpr_count 2
  .amdhsa_user_sgpr_kernarg_segment_ptr 1
  .amdhsa_system_sgpr_workgroup_id_x 1
.end_amdhsa_kernel""")
    return "\n".join(out) + "\n"


if __name__ == "__main__":
    txt = build()
    open(sys.argv[1], "w").write(txt)
    sys.path.insert(0, "gen")
    import hazard
    e = hazard.check(txt)
    print("\n".join(e) if e else "hazard check: clean")
```

```python
import sys, struct, math

NAME = "concat_heads__softmax_full_mha__ssm_conv_s5__prompt"

OPT = dict(stamps=0, spin=400000, force_fb=0, g2s=6, g2q=6, tog=2, stg=1, g1p=0, g2p=0, htouch=0, ctouch=1, sty=2, sto=2,
           cpre=1, lscan=0, brot=0, t1=0, mlo=1, gk=0, hs=16, qst=1, sp1=1, otouch=0, qord=1, lastw=1, mlv=0, wearly=1, fill0=16, nfill=4, post=1, q16=1, opord=1)
for a in sys.argv[2:]:
    k, v = a.split("=")
    OPT[k] = int(v)

PL = 16384
EPOCH = 0
F1 = 0x1000
F2 = 0x2000
F3 = 0x3000
F0 = 0x8000
F0B = 0x10000
F0C = 0x18000
STAMP = 0x20000
EB = 0x48000
PV1 = 0xA0000
PV4 = 0xB0000
PV2 = 0xC0000
PV3 = 0xD0000
QKVP = 0x100000
OP = 0xA00000
HB = 0xD00000
WS_USED = 0x1300000
OOB = 0x80000000
AUX = ['', 'nt', 'sc1', 'sc1 nt', 'sc0 sc1']

L = []


def A(s):
    for ln in s.strip("\n").split("\n"):
        L.append(ln.strip())


def f2u(x):
    return struct.unpack("<I", struct.pack("<f", x))[0]


def vr(a, n):
    return f"v[{a}:{a+n-1}]" if n > 1 else f"v{a}"


P_AX, P_WQKV, P_WO, P_BX, P_LRE, P_LIM, P_BRE, P_BIM, P_CRE, P_CIM, P_LDT, P_DSK, P_OUT, P_DBG = range(8, 36, 2)
S_E = 6
S_W = 40
R0, R1, R2, WS, R3 = 44, 48, 52, 56, 60
WSP = f"s[{WS}:{WS+1}]"
EP = f"s[{S_E}:{S_E+1}]"
ST0 = 70
_uid = [0]


def uid(p):
    _uid[0] += 1
    return f"{p}_{_uid[0]}"


def srd(r, p, n):
    A(f"s_mov_b32 s{r}, s{p}\ns_mov_b32 s{r+1}, s{p+1}\ns_mov_b32 s{r+2}, {n}\ns_mov_b32 s{r+3}, 0x20000")


def S(r):
    return f"s[{r}:{r+3}]"


def stamp(k):
    if OPT["stamps"] and not OPT.get("fm"):
        A(f"s_memrealtime s[{ST0+2*k}:{ST0+2*k+1}]")


def cstamp(k):
    if OPT["stamps"] and not OPT.get("fm"):
        A(f"s_memtime s[{ST0+2*k}:{ST0+2*k+1}]")


def fst(mode, k):
    if OPT.get("fm") == mode:
        A(f"s_memtime s[{ST0+2*k}:{ST0+2*k+1}]")


def rst(mode, k):
    if OPT.get("fm") == mode:
        A(f"s_memrealtime s[{ST0+2*k}:{ST0+2*k+1}]")


def dump_stamps(n):
    if not OPT["stamps"]:
        return
    sk = uid("SK")
    A(f"s_waitcnt lgkmcnt(0)\ns_cmp_lg_u32 s{S_W}, {OPT.get('fw', 0)}\ns_cbranch_scc1 {sk}")
    A(f"s_lshl_b32 s64, s2, 7\ns_add_u32 s64, s64, {STAMP}\ns_mov_b64 exec, 1")
    for k in range(n):
        A(f"v_mov_b32 v120, s{ST0+2*k}\nv_mov_b32 v121, s{ST0+2*k+1}")
        A(f"buffer_store_dwordx2 v[120:121], off, {S(WS)}, s64 offset:{8*k}")
        A("s_waitcnt vmcnt(0)")
    A(f"s_mov_b64 exec, -1\n{sk}:")


def flag_store(soff, t=120, wave=0):
    sk = uid("FS")
    A(f"s_cmp_lg_u32 s{S_W}, {wave}\ns_cbranch_scc1 {sk}")
    A(f"v_mov_b32 v{t}, s{S_E}\nv_mov_b32 v{t+1}, s{S_E+1}\ns_mov_b64 exec, 1")
    A(f"buffer_store_dwordx2 v[{t}:{t+1}], off, {S(WS)}, s{soff} sc1")
    A(f"s_mov_b64 exec, -1\n{sk}:")


def poll(vaddrs, t=120):
    lp, dn = uid("PL"), uid("PD")
    A(f"s_mov_b32 s64, {OPT['spin']}\n{lp}:")
    for i, va in enumerate(vaddrs):
        A(f"buffer_load_dwordx2 v[{t+2*i}:{t+2*i+1}], v{va}, {S(WS)}, 0 offen sc1")
    A("s_waitcnt vmcnt(0)")
    for i, va in enumerate(vaddrs):
        if i == 0:
            A(f"v_cmp_ne_u64 vcc, {EP}, v[{t}:{t+1}]")
        else:
            A(f"v_cmp_ne_u64 s[66:67], {EP}, v[{t+2*i}:{t+2*i+1}]\ns_or_b64 vcc, vcc, s[66:67]")
    A(f"s_cbranch_vccz {dn}\ns_sub_u32 s64, s64, 1\ns_cmp_lg_u32 s64, 0\ns_cbranch_scc1 {lp}\n{dn}:")


def spoll(blocks, soff, need=None, cnt=64, msk=65):
    lp, dn = uid("SP"), uid("SD")
    A(f"s_mov_b32 s{cnt}, {OPT['spin']}\n{lp}:")
    tot = 0
    for dst, n, off in blocks:
        A(f"s_load_dwordx{2*n} s[{dst}:{dst+2*n-1}], {WSP}, s{soff} offset:{off} glc")
        tot += n
    A(f"s_mov_b32 s{msk}, 0\ns_waitcnt lgkmcnt(0)")
    for dst, n, off in blocks:
        for i in range(n):
            A(f"s_cmp_eq_u64 s[{dst+2*i}:{dst+2*i+1}], {EP}\ns_addc_u32 s{msk}, s{msk}, s{msk}")
    if need is None:
        A(f"s_cmp_eq_u32 s{msk}, {(1 << tot) - 1}")
    else:
        A(f"s_andn2_b32 s{msk}, s{need}, s{msk}\ns_cmp_eq_u32 s{msk}, 0")
    A(f"s_cbranch_scc1 {dn}")
    if tot <= 8:
        A("s_sleep 2")
    A(f"s_sub_u32 s{cnt}, s{cnt}, 1\ns_cmp_lg_u32 s{cnt}, 0\ns_cbranch_scc1 {lp}\n{dn}:")


def bhi():
    A("s_setprio 3")


def blo():
    A("s_setprio 0")


def dma(vaddr, rsrc, soff, aux=""):
    A(f"buffer_load_dwordx4 v{vaddr}, {S(rsrc)}, s{soff} offen {aux} lds".replace("  ", " "))


def epoch_fix():
    A(f"s_mul_i32 s{S_E}, s{S_E}, 0x9E3779B1\ns_add_u32 s{S_E}, s{S_E}, 0x7F4A7C15\ns_xor_b32 s{S_E+1}, s{S_E}, 0x5bd1e995")


MF32 = "v_mfma_f32_32x32x16_bf16"
MF8 = "v_mfma_f32_32x32x8_bf16"
MF16 = "v_mfma_f32_16x16x32_bf16"

PS = 2080
SLOT = 11 * PS
RED = 2 * SLOT
BADW = 81912
sST0, sST1, sF1, sSC, sH, sQB, sG, sLd, sQ, sPV1, sNEED, sH1, sH2, sPass, sChk, sO0, sO1, sPV4 = \
    8, 9, 10, 12, 14, 15, 16, 19, 22, 25, 26, 27, 28, 29, 30, 31, 32, 33
vD, vTok, vK, vK1, vV, vF6, vF7, vPush, vQa, vOnes = 123, 124, 125, 126, 127, 121, 122, 120, 112, 116


def att_setup(sRB, sCB):
    G = []
    g = G.append
    g(f"s_and_b32 s34, s2, 7\ns_bfe_u32 s{sQB}, s2, 0x30003\ns_bfe_u32 s35, s2, 0x20006\ns_lshl_b32 s{sH}, s34, 2\ns_add_u32 s{sH}, s{sH}, s35")
    g(f"s_mul_i32 s36, s{sH}, 5\ns_add_u32 s37, s36, 4\ns_lshr_b32 s38, s36, 5\ns_lshr_b32 s37, s37, 5\ns_sub_u32 s37, s37, s38")
    g(f"s_lshl_b32 s{sPV1}, s{sH}, 3\ns_add_u32 s{sPV1}, s{sPV1}, s{sQB}\ns_lshl_b32 s{sPV1}, s{sPV1}, 8\ns_add_u32 s{sPV1}, s{sPV1}, {PV1}")
    g(f"s_mov_b32 s{sNEED}, 0xf0f0c\ns_cmp_eq_u32 s37, 0\ns_cselect_b32 s{sNEED}, s{sNEED}, 0xfffff\ns_mov_b32 s{sPass}, 0\ns_min_u32 s{sChk}, s{S_W}, 1")
    g(f"v_bfe_u32 v11, v1, 4, 1\nv_mul_u32_u24 v11, s37, v11\nv_add_u32 v11, s38, v11\nv_lshrrev_b32 v14, 5, v1\nv_mul_u32_u24 v12, 15, v14\nv_max_u32 v12, v11, v12")
    g(f"v_mul_u32_u24 v13, 5, v14\nv_add3_u32 v11, v11, v13, 5\nv_and_b32 v13, 15, v1\nv_lshlrev_b32 v15, 3, v13\nv_add_u32 v15, {F1}, v15")
    g(f"v_lshl_add_u32 v{vF6}, v11, 7, v15\nv_lshl_add_u32 v{vF7}, v12, 7, v15\nv_lshlrev_b32 v{vD}, 4, v1")
    g(f"s_lshl_b32 s{sH1}, s2, 7\ns_add_u32 s{sH2}, s{sH1}, {F0B}\ns_add_u32 s{sH1}, s{sH1}, {F0}")
    for m in range(3):
        g(f"s_add_u32 s34, s{S_W}, {8*m}\ns_lshr_b32 s35, s34, 1\ns_and_b32 s34, s34, 1\ns_lshl_b32 s34, s34, 10\ns_mul_i32 s{sLd+m}, s35, {PS}\ns_add_u32 s{sLd+m}, s{sLd+m}, s34")
        g(f"s_cmp_ge_u32 s35, 5\ns_cselect_b32 s39, 155, 0\ns_add_u32 s35, s35, s39\ns_add_u32 s35, s35, s36\ns_mul_i32 s35, s35, {PL}\ns_add_u32 s35, s35, s34\ns_add_u32 s{sG+m}, s35, {QKVP + 160*PL}")
    g(f"s_lshr_b32 s34, s{S_W}, 1\ns_min_u32 s34, s34, 2\ns_mul_i32 s34, s34, {SLOT}\ns_and_b32 s35, s{S_W}, 1\ns_lshl_b32 s35, s35, 10\ns_add_u32 s34, s34, s35\ns_add_u32 s34, s34, {10*PS}\nv_add_u32 v{vOnes}, s34, v{vD}")
    g(f"s_and_b32 s34, s{S_W}, 3\ns_lshl_b32 s34, s34, 6\ns_lshr_b32 s35, s{S_W}, 2\ns_lshl_b32 s39, s35, 5\ns_add_u32 s34, s34, s39\ns_lshl_b32 s35, s35, 7")
    g(f"v_lshl_add_u32 v15, v13, 1, s34\nv_lshlrev_b32 v{vTok}, 3, v15\nv_bfe_u32 v12, v1, 4, 1\nv_lshl_add_u32 v15, v12, 3, v{vTok}\nv_xor_b32 v16, 256, v15")
    g(f"v_mul_u32_u24 v17, {2*PL}, v14\nv_add_u32 v{vQa}, v17, v15\nv_add_u32 v{vQa+2}, v17, v16\nv_lshlrev_b32 v17, 31, v14\nv_or_b32 v{vQa+1}, v17, v15\nv_or_b32 v{vQa+3}, v17, v16")
    g(f"v_and_b32 v15, 31, v1\nv_add_u32 v15, s35, v15\nv_lshlrev_b32 v15, 3, v15\nv_mul_u32_u24 v16, {2*PS}, v14\nv_add_u32 v{vK}, v16, v15")
    g(f"v_mul_u32_u24 v16, {6*PS}, v14\nv_add_u32 v16, {4*PS}, v16\nv_add_u32 v{vK1}, v16, v15\nv_and_b32 v16, 3, v1\nv_lshl_add_u32 v16, v12, 2, v16\nv_min_u32 v16, 5, v16")
    g(f"v_add_u32 v16, 5, v16\nv_mul_u32_u24 v16, {PS}, v16\nv_bfe_u32 v17, v1, 2, 2\nv_lshl_add_u32 v17, v14, 2, v17\nv_add_u32 v17, s35, v17\nv_lshl_add_u32 v{vV}, v17, 3, v16")
    g(f"s_mul_i32 s34, s36, {PL}\ns_lshl_b32 s35, s{sQB}, 11\ns_add_u32 s34, s34, s35\ns_add_u32 s{sQ}, s34, {QKVP}\ns_add_u32 s{sQ+1}, s{sQ}, {PL}\ns_add_u32 s{sQ+2}, s{sQ}, {4*PL}")
    g(f"s_add_u32 s{sO0}, s34, {OP}\ns_add_u32 s{sO1}, s{sO0}, {4*PL}\ns_lshl_b32 s{sPV4}, s{sQB}, 13\ns_lshl_b32 s35, s{sH}, 3\ns_add_u32 s{sPV4}, s{sPV4}, s35\ns_add_u32 s{sPV4}, s{sPV4}, {PV4}")
    if sRB is None:
        g(f"v_mov_b32 v{vPush}, {OOB}\ns_sub_u32 s{sF1}, s2, 240\ns_lshl_b32 s{sF1}, s{sF1}, 3\ns_add_u32 s{sF1}, s{sF1}, {F1 + 15*128}")
        return G
    c = 20 ** -0.5 * math.log2(math.e)
    g(f"s_cmp_lt_u32 s{sCB}, 5\ns_cselect_b32 s{sSC}, {f2u(c)}, 1.0\ns_mov_b32 s{sSC+1}, s{sSC}\ns_lshl_b32 s{sF1}, s{sCB}, 7\ns_lshl_b32 s34, s{sRB}, 3\ns_add_u32 s{sF1}, s{sF1}, s34\ns_add_u32 s{sF1}, s{sF1}, {F1}")
    g(f"s_mul_i32 s{sST0}, s{sCB}, {32*PL}\ns_lshl_b32 s34, s{sRB}, 10\ns_add_u32 s{sST0}, s{sST0}, s34\ns_add_u32 s{sST0}, s{sST0}, {QKVP}\ns_add_u32 s{sST1}, s{sST0}, {4*PL}")
    g(f"s_cmp_ge_u32 s{sCB}, 10\ns_cselect_b32 s38, 10, 5\ns_cselect_b32 s35, 8, 0\ns_sub_u32 s34, s{sCB}, s38\ns_add_u32 s35, s35, s{sRB}\ns_cmp_lt_u32 s{sRB}, 4\ns_cselect_b32 s37, 1, 0")
    g(f"s_and_b32 s38, s{sRB}, 1\ns_add_u32 s38, s38, 16\ns_cmp_lt_u32 s{sCB}, 5\ns_cselect_b32 s34, s{sCB}, s34\ns_cselect_b32 s35, s38, s35\ns_cselect_b32 s36, 2, 4\ns_cselect_b32 s37, 2, s37")
    g(f"s_mul_i32 s38, s34, {6554*32}\ns_lshr_b32 s38, s38, 15\nv_lshrrev_b32 v11, 3, v1\nv_add_u32 v11, s38, v11\nv_mul_u32_u24 v12, 5, v11\nv_lshrrev_b32 v13, 5, v12\ns_lshr_b32 s39, s{sRB}, 1")
    g(f"v_cmp_ge_u32 s[68:69], s34, v13\nv_cmp_ne_u32 vcc, s34, v13\nv_and_b32 v13, 7, v1\nv_lshl_add_u32 v11, v11, 3, v13\nv_cndmask_b32 v12, 0, 1, vcc\nv_mul_u32_u24 v12, s36, v12\nv_add_u32 v12, s35, v12")
    g(f"v_cmp_eq_u32 vcc, s39, v13\ns_cmp_eq_u32 s37, 2\ns_cselect_b64 vcc, vcc, -1\ns_and_b64 s[68:69], s[68:69], vcc\ns_cmp_eq_u32 s37, 0\ns_cselect_b64 s[68:69], 0, s[68:69]")
    g(f"v_lshlrev_b32 v11, 8, v11\nv_lshl_add_u32 v11, v12, 3, v11\nv_add_u32 v11, {PV1}, v11\nv_mov_b32 v{vPush}, {OOB}\nv_cndmask_b32 v{vPush}, v{vPush}, v11, s[68:69]")
    return G


def qkv():
    sRB, sCB, sKX, sKW, sMX, sMW, sT = 41, 42, 43, 64, 65, 66, 67
    vX0, vX1, vWs, vWr, vXr = 2, 3, 4, 5, 6
    ACC = 32
    FR = [64, 88]
    A("s_cmp_ge_u32 s2, 256\ns_cbranch_scc1 L_ROLE_B")
    stamp(0); fst(7, 0)
    A(f"s_load_dwordx2 s[{R0}:{R0+1}], s[0:1], 0\ns_load_dwordx2 s[{R1}:{R1+1}], s[0:1], 8\ns_load_dwordx2 s[{WS}:{WS+1}], s[0:1], 112")
    A(f"v_lshrrev_b32 v2, 6, v0\nv_and_b32 v1, 63, v0\nv_readfirstlane_b32 s{S_W}, v2")
    A(f"s_lshr_b32 s{sCB}, s2, 4\ns_and_b32 s{sCB}, s{sCB}, 14\ns_bfe_u32 s{sT}, s2, 0x10002\ns_or_b32 s{sCB}, s{sCB}, s{sT}")
    A(f"s_lshr_b32 s{sRB}, s2, 1\ns_and_b32 s{sRB}, s{sRB}, 12\ns_and_b32 s{sT}, s2, 3\ns_or_b32 s{sRB}, s{sRB}, s{sT}")
    A(f"s_cmp_eq_u32 s{sCB}, 15\ns_cselect_b32 s{sT}, 8, 0\ns_add_u32 s{sRB}, s{sRB}, s{sT}\ns_min_u32 s{sCB}, s{sCB}, 14")
    if OPT["qst"]:
        A(f"s_mov_b32 s{sKX}, 0")
    else:
        A(f"s_and_b32 s{sKX}, s2, 7\ns_mul_i32 s{sKW}, s{sKX}, {2*122880}\ns_lshl_b32 s{sKX}, s{sKX}, 7")
    A(f"s_lshl_b32 s{sT}, s{sRB}, 7\ns_lshr_b32 s68, s{S_W}, 1\ns_lshl_b32 s68, s68, 5\ns_add_u32 s{sT}, s{sT}, s68\ns_and_b32 s68, s{S_W}, 1\ns_add_u32 s{sT}, s{sT}, s68")
    A(f"v_lshrrev_b32 v10, 3, v1\nv_lshl_add_u32 v10, v10, 1, s{sT}\nv_mul_u32_u24 v10, 1280, v10")
    A(f"v_lshrrev_b32 v11, 4, v1\nv_and_b32 v12, 7, v1\nv_xor_b32 v12, v12, v11\nv_lshl_add_u32 v{vX0}, v12, 4, v10")
    A(f"s_lshl_b32 s{sMX}, s{S_W}, 11\ns_mov_b32 s{R0+2}, 2621440\ns_mov_b32 s{R0+3}, 0x20000\ns_mov_b32 m0, s{sMX}")
    A("s_cmp_ge_u32 s2, 240\ns_cbranch_scc1 L_QKV_IDLE")
    fst(7, 1)
    A("s_waitcnt lgkmcnt(0)")
    issued = []

    def dmaX(Sx, between=None):
        if OPT["qst"]:
            for i in range(2):
                if Sx or i:
                    A(f"s_add_u32 m0, s{sMX}, {(Sx % 3) * 16384 + i * 1024}")
                    A(f"s_movk_i32 s{sKX}, {128 * Sx}" if i == 0 else "s_nop 0")
                dma(vX0 + i, R0, sKX)
                issued.append(("X", Sx))
                if between and i == 0:
                    between()
            return
        for i in range(2):
            if Sx or i:
                A(f"s_add_u32 m0, s{sMX}, {(Sx % 3) * 16384 + i * 1024}\ns_nop 0")
            dma(vX0 + i, R0, sKX)
            issued.append(("X", Sx))
            if between and i == 0:
                between()
        A(f"s_add_u32 s{sKX}, s{sKX}, 128\ns_cmp_eq_u32 s{sKX}, 1280\ns_cselect_b32 s{sKX}, 0, s{sKX}")

    def dmaW(s):
        if OPT["qst"]:
            A(f"s_add_u32 m0, s{sMW}, {(s % 4) * 8192}\ns_mov_b32 s{sKW}, {122880 * s}")
            dma(vWs, R1, sKW)
            issued.append(("W", s))
            return
        A(f"s_add_u32 m0, s{sMW}, {(s % 4) * 8192}\ns_nop 0")
        dma(vWs, R1, sKW)
        issued.append(("W", s))
        A(f"s_add_u32 s{sKW}, s{sKW}, 122880\ns_cmp_eq_u32 s{sKW}, 2457600\ns_cselect_b32 s{sKW}, 0, s{sKW}")

    dmaX(0, lambda: A(f"v_xor_b32 v{vX1}, 64, v{vX0}\nv_add_u32 v{vX1}, 20480, v{vX1}"))
    A(f"s_lshl_b32 s68, s{S_W}, 2\nv_add_u32 v10, s68, v11\nv_mul_u32_u24 v10, 3840, v10")
    if OPT["q16"]:
        A(f"s_and_b32 s68, s{S_W}, 2\ns_lshl_b32 s68, s68, 2\nv_and_b32 v12, 15, v1\nv_lshl_add_u32 v13, v11, 1, s68\nv_xor_b32 v12, v12, v13\nv_lshl_add_u32 v10, v12, 4, v10")
    else:
        A(f"v_and_b32 v12, 15, v1\nv_lshlrev_b32 v13, 2, v11\nv_xor_b32 v12, v12, v13\nv_lshl_add_u32 v10, v12, 4, v10")
    A(f"s_lshl_b32 s68, s{sCB}, 8\nv_add_u32 v{vWs}, s68, v10\ns_lshl_b32 s{sMW}, s{S_W}, 10\ns_add_u32 s{sMW}, s{sMW}, 49152")
    A(f"s_mov_b32 s{R1+2}, 2457600\ns_mov_b32 s{R1+3}, 0x20000")
    dmaW(0)
    fst(7, 2)
    A(f"s_load_dword s{S_E}, {WSP}, {EPOCH}\ns_mov_b32 s{WS+2}, {WS_USED}\ns_mov_b32 s{WS+3}, 0x20000\ns_barrier")
    fst(7, 3)
    dmaW(1); dmaX(1); dmaW(2); dmaW(3); dmaX(2)
    fst(7, 4)
    if OPT["q16"]:
        A(f"v_lshrrev_b32 v10, 4, v1\nv_bfe_u32 v11, v1, 2, 2\nv_lshl_add_u32 v12, v10, 3, v11\nv_lshlrev_b32 v12, 8, v12")
        A(f"s_and_b32 s68, s{S_W}, 3\ns_lshl_b32 s68, s68, 2\nv_bfe_u32 v13, v1, 1, 1\nv_add_u32 v13, s68, v13")
        A(f"v_and_b32 v14, 1, v10\nv_lshl_add_u32 v11, v14, 2, v11\nv_lshlrev_b32 v11, 1, v11\nv_xor_b32 v13, v13, v11\nv_lshl_add_u32 v12, v13, 4, v12")
        A(f"v_and_b32 v14, 1, v1\nv_lshl_add_u32 v12, v14, 3, v12\nv_add_u32 v5, 49152, v12\nv_xor_b32 v6, 32, v5")
        A(f"s_lshr_b32 s68, s{S_W}, 2\ns_lshl_b32 s68, s68, 6\nv_and_b32 v11, 15, v1\nv_add_u32 v12, s68, v11\nv_lshlrev_b32 v12, 7, v12")
        A(f"v_lshrrev_b32 v13, 1, v11\nv_xor_b32 v13, v13, v10\nv_lshl_add_u32 v7, v13, 4, v12\nv_xor_b32 v8, 64, v7")
        fst(7, 5)
        G = [f"s_and_b32 s34, s{S_W}, 3\ns_lshl_b32 s34, s34, 3\nv_add_u32 v10, s34, v10\nv_mul_u32_u24 v10, {PL}, v10",
             f"v_and_b32 v11, 15, v1\nv_lshl_add_u32 v10, v11, 4, v10\ns_lshr_b32 s34, s{S_W}, 2\ns_lshl_b32 s34, s34, 9\nv_add_u32 v10, s34, v10"]
    else:
        A(f"v_lshrrev_b32 v10, 5, v1\nv_bfe_u32 v11, v1, 2, 2\nv_lshl_add_u32 v12, v10, 3, v11\nv_lshlrev_b32 v12, 8, v12")
        A(f"s_and_b32 s68, s{S_W}, 3\ns_lshl_b32 s68, s68, 2")
        A(f"v_bfe_u32 v13, v1, 4, 1\nv_lshlrev_b32 v13, 1, v13\nv_bfe_u32 v14, v1, 1, 1\nv_add3_u32 v13, v13, v14, s68")
        A(f"v_lshlrev_b32 v11, 2, v11\nv_xor_b32 v13, v13, v11\nv_lshl_add_u32 v12, v13, 4, v12")
        A(f"v_and_b32 v14, 1, v1\nv_lshl_add_u32 v12, v14, 3, v12\nv_add_u32 v{vWr}, 49152, v12")
        A(f"s_lshr_b32 s68, s{S_W}, 2\ns_lshl_b32 s68, s68, 6\nv_and_b32 v11, 31, v1\nv_add_u32 v12, s68, v11\nv_lshlrev_b32 v12, 7, v12")
        A(f"v_bfe_u32 v13, v1, 1, 3\nv_xor_b32 v13, v13, v10\nv_lshl_add_u32 v{vXr}, v13, 4, v12")
        for k in range(1, 4):
            A(f"v_xor_b32 v{vXr+k}, {32*k}, v{vXr}")
        fst(7, 5)
        G = [f"s_and_b32 s34, s{S_W}, 3\ns_lshl_b32 s34, s34, 3\nv_bfe_u32 v11, v1, 4, 1\nv_lshl_add_u32 v10, v11, 1, v10\nv_add_u32 v10, s34, v10\nv_mul_u32_u24 v10, {PL}, v10",
             f"v_and_b32 v11, 15, v1\nv_lshl_add_u32 v10, v11, 4, v10\ns_lshr_b32 s34, s{S_W}, 2\ns_lshl_b32 s34, s34, 9\nv_add_u32 v10, s34, v10"]
    GA = att_setup(sRB, sCB)
    post = []
    if OPT["post"]:
        post, GA = GA[:-8], GA[-8:]
    G += GA
    nf = OPT["nfill"]
    per = [G[len(G) * i // nf:len(G) * (i + 1) // nf] for i in range(nf)]

    def reads(s):
        f = FR[s & 1]
        ws, xs, b = (s % 4) * 8192, ((s >> 1) % 3) * 16384, s & 1
        if OPT["q16"]:
            for mi in range(2):
                for j in range(2):
                    A(f"ds_read_b64_tr_b16 {vr(f+4*mi+2*j, 2)}, v{5+mi} offset:{ws + 1024*j}")
                for ni in (2 * mi, 2 * mi + 1):
                    A(f"ds_read_b128 {vr(f+8+4*ni, 4)}, v{7+b} offset:{xs + 2048*ni}")
            return
        for u in range(2):
            for j in range(2):
                A(f"ds_read_b64_tr_b16 {vr(f+4*u+2*j, 2)}, v{vWr} offset:{ws + (16*u+4*j)*256}")
            for nt in range(2):
                A(f"ds_read_b128 {vr(f+8+8*u+4*nt, 4)}, v{vXr+2*b+u} offset:{xs + 4096*nt}")

    def mfma1(s, i):
        if s < 0:
            return
        f = FR[s & 1]
        if OPT["q16"]:
            for mi in range(2):
                a = ACC + 16 * mi + 4 * i
                A(f"{MF16} {vr(a,4)}, {vr(f+4*mi,4)}, {vr(f+8+4*i,4)}, {'0' if s == 0 else vr(a,4)}")
            return
        u, nt = i >> 1, i & 1
        c = "0" if (s == 0 and u == 0) else vr(ACC + 16 * nt, 16)
        A(f"{MF32} {vr(ACC+16*nt,16)}, {vr(f+4*u,4)}, {vr(f+8+8*u+4*nt,4)}, {c}")

    for s in range(20):
        last = max(i for i, t in enumerate(issued) if t in (("X", s >> 1), ("W", s)))
        A(f"s_waitcnt vmcnt({len(issued) - 1 - last})\ns_barrier")
        if s == 0:
            stamp(1); cstamp(10)
        if s < 4:
            fst(7, 6 + s)
        fill = per[s - OPT["fill0"]] if 0 <= s - OPT["fill0"] < nf else []
        mfma1(s - 1, 0)
        reads(s)
        mfma1(s - 1, 1)
        if s >= 1 and s + 3 < 20:
            dmaW(s + 3)
        if s & 1 == 0:
            pass
        else:
            for x in fill[:1]:
                A(x)
        mfma1(s - 1, 2)
        if s >= 2 and s % 2 == 0 and s // 2 + 2 < 10:
            dmaX(s // 2 + 2)
        if s == 1:
            epoch_fix()
        if OPT["gk"] and s == OPT["hs"]:
            A(f"s_lshl_b32 s3, s2, 7\ns_lshl_b32 s67, s{S_W}, 3\ns_add_u32 s3, s3, s67\ns_add_u32 s3, s3, {F0C}")
            A(f"v_mov_b32 v118, s{S_E}\nv_mov_b32 v119, s{S_E+1}\ns_mov_b64 exec, 1\nbuffer_store_dwordx2 v[118:119], off, {S(WS)}, s3 sc1\ns_mov_b64 exec, -1")
            issued.append(("H", 0))
        for x in (fill[1:] if s & 1 else fill):
            A(x)
        mfma1(s - 1, 3)
        A("s_waitcnt lgkmcnt(0)")
    for i in range(4):
        mfma1(19, i)
    stamp(2); cstamp(11); fst(8, 0)
    if OPT["q16"]:
        A("s_nop 2")
        for p in range(2):
            for mi in range(2):
                d = 64 + 8 * p + 4 * mi
                for k in range(2):
                    a = ACC + 16 * mi + 4 * (2 * p + k)
                    A(f"v_pk_mul_f32 {vr(a,2)}, {vr(a,2)}, s[{sSC}:{sSC+1}]\nv_pk_mul_f32 {vr(a+2,2)}, {vr(a+2,2)}, s[{sSC}:{sSC+1}]")
                    A(f"v_cvt_pk_bf16_f32 v{d+2*k}, v{a}, v{a+1}\nv_cvt_pk_bf16_f32 v{d+2*k+1}, v{a+2}, v{a+3}")
                A(f"buffer_store_dwordx4 {vr(d,4)}, v10, {S(WS)}, s{sST0 + mi} offen offset:{256*p} sc1")
    else:
        A("s_nop 10")
    for nt in range(0 if OPT["q16"] else 2):
        for g in range(4):
            a = ACC + 16 * nt + 4 * g
            A(f"v_pk_mul_f32 {vr(a,2)}, {vr(a,2)}, s[{sSC}:{sSC+1}]\nv_pk_mul_f32 {vr(a+2,2)}, {vr(a+2,2)}, s[{sSC}:{sSC+1}]")
            d = 64 + 8 * nt + 2 * g
            A(f"v_cvt_pk_bf16_f32 v{d}, v{a}, v{a+1}\nv_cvt_pk_bf16_f32 v{d+1}, v{a+2}, v{a+3}")
            if g & 1:
                d -= 2
                A(f"s_nop 0\nv_permlane16_swap_b32 v{d}, v{d+2}\nv_permlane16_swap_b32 v{d+1}, v{d+3}")
                A(f"buffer_store_dwordx4 {vr(d,4)}, v10, {S(WS)}, s{sST0 + (g >> 1)} offen offset:{256*nt} sc1")
    fst(8, 1)
    for x in post:
        A(x)


def qkv_idle():
    A(f"L_QKV_IDLE:\ns_waitcnt lgkmcnt(0)\ns_load_dword s{S_E}, {WSP}, {EPOCH}\ns_mov_b32 s{WS+2}, {WS_USED}\ns_mov_b32 s{WS+3}, 0x20000")
    for x in att_setup(None, None):
        A(x)
    A("s_waitcnt lgkmcnt(0)")
    epoch_fix()
    if OPT["gk"]:
        A(f"s_lshl_b32 s34, s2, 7\ns_add_u32 s34, s34, {F0C}")
        flag_store(34, t=118)
    A("s_branch L_PUB")


def attention():
    Q = [8, 14]; O = [20, 36]; SS = [52, 68]; Kf = [84, 90]; Vf = [96, 104]; P = 112
    A("L_PUB:")
    for i in range(4):
        A(f"v_mov_b32 v{4+i}, {(0x3f80 if i % 2 == 0 else 0) if OPT['sp1'] else 0x3f803f80}")
    A(f"v_mov_b32 v2, s{S_E}\nv_mov_b32 v3, s{S_E+1}\nv_mov_b32 v8, {BADW}\nv_mov_b32 v9, 0")
    A("s_waitcnt vmcnt(0)")
    fst(8, 2)
    A("s_barrier")
    fst(8, 3)
    A(f"s_cmp_lg_u32 s{S_W}, 0\ns_cbranch_scc1 L_NOPUSH")
    A(f"buffer_store_dwordx2 v[2:3], v{vPush}, {S(WS)}, 0 offen sc1\ns_mov_b64 exec, 1\nbuffer_store_dwordx2 v[2:3], off, {S(WS)}, s{sF1} sc1\ns_mov_b64 exec, -1\nL_NOPUSH:")
    stamp(3)
    A(f"ds_write_b128 v{vOnes}, v[4:7]\nds_write_b32 v8, v9\nds_write_b32 v8, v9 offset:4")
    A(f"s_waitcnt lgkmcnt(0)\ns_cmp_lg_u32 s{S_W}, 1\ns_cbranch_scc1 L_NOPOLL")
    spoll([(68, 8, 0), (84, 8, 64), (44, 4, 128)], sPV1, need=sNEED)
    A("L_NOPOLL:\ns_barrier")
    stamp(4); fst(8, 4)

    def dma_static(st, m, blk=None):
        if m == 2:
            sk2 = uid("D3")
            A(f"s_cbranch_vccz {sk2}")
        A(f"s_add_u32 m0, s{sLd+m}, {(st % 3) * SLOT}\ns_add_u32 s68, s{sG+m}, {2048 * st if blk is None else blk}")
        dma(vD, WS, 68, "sc1")
        if m == 2:
            A(f"{sk2}:")

    def qload(x):
        A(f"buffer_load_dwordx2 {vr(Q[x],2)}, v{vQa+2*x}, {S(WS)}, s{sQ} offen sc1")
        A(f"buffer_load_dwordx2 {vr(Q[x]+2,2)}, v{vQa+2*x}, {S(WS)}, s{sQ+1} offen sc1")
        A(f"buffer_load_dwordx2 {vr(Q[x]+4,2)}, v{vQa+1+2*x}, {S(WS)}, s{sQ+2} offen sc1")

    if OPT["qord"]:
        A(f"s_cmp_lt_u32 s{S_W}, 4\ns_cselect_b64 vcc, -1, 0")
        for m in range(3):
            dma_static(0, m)
        qload(0); qload(1)
        flag_store(sH1, t=2, wave=7)
        A("s_branch L_ATT_GO\nL_ATT_MAIN:")
        A(f"s_cmp_lt_u32 s{S_W}, 4\ns_cselect_b64 vcc, -1, 0")
        for m in range(3):
            dma_static(0, m)
        A("L_ATT_GO:\ns_waitcnt vmcnt(0)\ns_barrier")
    else:
        qload(0); qload(1)
        A("L_ATT_MAIN:")
        A(f"s_cmp_lt_u32 s{S_W}, 4\ns_cselect_b64 vcc, -1, 0")
        for m in range(3):
            dma_static(0, m)
        flag_store(sH1, t=2, wave=7)
        A("s_waitcnt vmcnt(0)\ns_barrier")
    stamp(5); cstamp(8); fst(8, 5)

    def kreads(kl, off):
        A(f"ds_read_b64 {vr(kl,2)}, v{vK} offset:{off}\nds_read_b64 {vr(kl+2,2)}, v{vK} offset:{off+PS}\nds_read_b64 {vr(kl+4,2)}, v{vK1} offset:{off}")

    def vreads(vl, off):
        for j in range(4):
            A(f"ds_read_b64_tr_b16 {vr(vl+2*j,2)}, v{vV} offset:{off+64*j}")

    kreads(Kf[0], 0)
    vreads(Vf[0], 0)
    for m in range(2):
        dma_static(1, m)
    A("s_waitcnt lgkmcnt(4)")
    A(f"{MF32} {vr(SS[0],16)}, {vr(Kf[0],4)}, {vr(Q[0],4)}, 0\n{MF8} {vr(SS[0],16)}, {vr(Kf[0]+4,2)}, {vr(Q[0]+4,2)}, {vr(SS[0],16)}")
    dma_static(1, 2)
    A("s_nop 9")

    def tail_addr():
        A(f"s_lshl_b32 s64, s{S_W}, 12\ns_add_u32 s64, s64, {RED}\ns_xor_b32 s65, s{S_W}, 4\ns_lshl_b32 s65, s65, 12\ns_add_u32 s65, s65, {RED}")
        A(f"v_add_u32 v2, s64, v{vD}\nv_add_u32 v3, s65, v{vD}\ns_movk_i32 s69, 0x100\nv_cmp_gt_u32 s[66:67], s69, v{vD}")
        A(f"v_lshrrev_b32 v4, 9, v{vD}\nv_bfe_u32 v5, v{vD}, 8, 1\nv_lshl_add_u32 v5, v5, 1, v4\nv_mul_u32_u24 v5, {PL}, v5\nv_add_u32 v5, v5, v{vTok}")
        A(f"v_mov_b32 v4, {OOB}\nv_cndmask_b32 v4, v4, v{vTok}, s[66:67]")

    def unit(st, x, kt):
        s = SS[x]; sn = SS[1 - x]
        nk = kt if x == 0 else kt + 1
        kf = Kf[nk & 1]; qn = Q[1 - x]
        pk = kt - 1 if x == 0 else kt
        vprev = Vf[pk & 1]; v = Vf[kt & 1]
        last = st == 7 and kt == 3
        e = lambda i: A(f"v_exp_f32 v{s+i}, v{s+i}")
        c = lambda i: A(f"v_cvt_pk_bf16_f32 v{P+i}, v{s+2*i}, v{s+2*i+1}")
        nxt_off = ((st + 1) % 3) * SLOT if kt == 3 else (st % 3) * SLOT + 256 * (kt + 1)
        if x == 1 and not last:
            A("s_waitcnt lgkmcnt(0)")
        if not (last and x == 1):
            A(f"{MF32} {vr(sn,16)}, {vr(kf,4)}, {vr(qn,4)}, 0")
        e(0); e(1); e(2); e(3)
        if not (last and x == 1):
            A(f"{MF8} {vr(sn,16)}, {vr(kf+4,2)}, {vr(qn+4,2)}, {vr(sn,16)}")
        c(0); c(1); e(4); e(5); e(6); e(7)
        if (st, x, kt) != (0, 0, 0):
            A(f"{MF32} {vr(O[1-x],16)}, {vr(vprev+4,4)}, {vr(P+4,4)}, {vr(O[1-x],16)}")
        if not last:
            if x == 0:
                if kt == 3:
                    A("s_waitcnt vmcnt(0)")
                    if st == 0:
                        fc = uid("FC")
                        A(f"s_cmp_lg_u32 s{sChk}, 0\ns_cbranch_scc1 {fc}")
                        A(f"v_cmp_ne_u64 s[64:65], {EP}, v[2:3]\nv_cmp_ne_u64 s[66:67], {EP}, v[4:5]\ns_or_b64 s[64:65], s[64:65], s[66:67]\ns_cbranch_scc0 {fc}")
                        poll([vF6, vF7], t=2)
                        A(f"s_mov_b64 vcc, -1\n{fc}:")
                    A("s_barrier")
                kreads(Kf[(kt + 1) & 1], nxt_off)
            else:
                vreads(Vf[(kt + 1) & 1], nxt_off)
        site = {(1, 3): (0, st + 2), (0, 0): (1, st + 1), (1, 0): (2, st + 1)}.get((x, kt))
        if site and 2 <= site[1] < 8:
            dma_static(site[1], site[0])
        if st == OPT["g2s"] - 1 and 2 * kt + x == OPT["g2q"]:
            flag_store(sH2, t=6, wave=7)
        if (st, x, kt) == (1, 1, 1):
            tail_addr()
        if (st, x, kt) == (0, 0, 2):
            nf = uid("NF")
            A(f"s_cmp_lg_u32 s{sChk}, 0\ns_cbranch_scc1 {nf}")
            A(f"buffer_load_dwordx2 v[2:3], v{vF6}, {S(WS)}, 0 offen sc1\nbuffer_load_dwordx2 v[4:5], v{vF7}, {S(WS)}, 0 offen sc1\n{nf}:")
        if OPT["tog"] == 1:
            A(f"s_setprio {1 - x}")
        if OPT["tog"] >= 2:
            gu = 8 * st + 2 * kt + x
            top = 3 if OPT["tog"] == 2 else 2
            if gu < 6:
                lv = {0: top, 1: top - 1, 3: top - 2, 5: top - 3}.get(gu) if top == 3 else {0: 2, 2: 1, 4: 0}.get(gu)
            elif gu >= 54:
                lv = {54: 3, 57: 2, 60: 1, 62: 0}.get(gu) if top == 3 else {54: 2, 58: 1, 61: 0}.get(gu)
            else:
                ph = (gu - 6) % 8
                lv = {0: 3, 2: 2, 4: 1, 6: 0}.get(ph) if top == 3 else {0: 2, 3: 1, 6: 0}.get(ph)
            if lv is not None:
                A(f"s_setprio {lv}")
        c(2); c(3); e(8); e(9); e(10); e(11)
        if x == 0:
            A(f"s_waitcnt lgkmcnt({0 if last else 3})")
        A(f"{MF32} {vr(O[x],16)}, {vr(v,4)}, {vr(P,4)}, {'0' if (st, kt) == (0, 0) else vr(O[x],16)}")
        c(4); c(5); e(12); e(13); e(14); e(15); c(6); c(7)

    for st in range(8):
        fst(10, st); rst(11, st)
        for kt in range(4):
            unit(st, 0, kt)
            unit(st, 1, kt)
    A(f"s_setprio 3\ns_nop 0\n{MF32} {vr(O[1],16)}, {vr(Vf[1]+4,4)}, {vr(P+4,4)}, {vr(O[1],16)}")
    stamp(6); cstamp(9); fst(6, 0); fst(10, 8); rst(11, 8)
    assert RED + 8 * 4096 <= BADW
    o = O[0]
    lo, hi = f2u(2.0 ** -60), f2u(2.0 ** 60)
    if OPT["force_fb"]:
        hi = f2u(2.0 ** -59)
    A(f"v_mov_b32 v70, 0\nv_mov_b32 v71, 0\nv_mov_b32 v80, {lo}\nv_mov_b32 v81, {hi}\nv_mov_b32 v83, {BADW}")
    A(f"v_lshlrev_b32 v82, 4, v{vD}\nv_mov_b32 v84, s{S_E}\nv_mov_b32 v85, s{S_E+1}\ns_nop 3")
    for g in range(4):
        A(f"ds_write_b128 v2, {vr(O[1]+4*g,4)} offset:{1024*g}")
    fst(6, 1)
    A("s_waitcnt lgkmcnt(0)\ns_barrier")
    fst(6, 2)
    for g in (3, 0, 1, 2):
        A(f"ds_read_b128 {vr(52+4*g,4)}, v3 offset:{1024*g}")
    A(f"s_waitcnt lgkmcnt(3)\nv_add_f32 v{o+12}, v{o+12}, v{52+12}\nv_rcp_f32 v68, v{o+12}")
    for g in range(3):
        a = o + 4 * g
        A(f"s_waitcnt lgkmcnt({2-g})\nv_pk_add_f32 {vr(a,2)}, {vr(a,2)}, {vr(52+4*g,2)}\nv_pk_add_f32 {vr(a+2,2)}, {vr(a+2,2)}, {vr(54+4*g,2)}")
        A(f"v_pk_mul_f32 {vr(a,2)}, {vr(a,2)}, v[68:69] op_sel_hi:[1,0]\nv_pk_mul_f32 {vr(a+2,2)}, {vr(a+2,2)}, v[68:69] op_sel_hi:[1,0]")
        A(f"v_cvt_pk_bf16_f32 v{72+2*g}, v{a}, v{a+1}\nv_cvt_pk_bf16_f32 v{73+2*g}, v{a+2}, v{a+3}")
        if g == 1:
            A(f"s_nop 0\nv_permlane16_swap_b32 v72, v74\nv_permlane16_swap_b32 v73, v75")
            A(f"buffer_store_dwordx4 v[72:75], v5, {S(WS)}, s{sO0} offen sc1")
        if g == 2:
            A(f"v_mov_b32 v78, v76\nv_mov_b32 v79, v77\ns_nop 0\nv_permlane16_swap_b32 v76, v78\nv_permlane16_swap_b32 v77, v79")
            A(f"buffer_store_dwordx4 v[76:79], v4, {S(WS)}, s{sO1} offen sc1")
    for i in range(0, 12, 2):
        A(f"v_pk_fma_f32 v[70:71], {vr(o+i,2)}, 0, v[70:71] op_sel_hi:[1,0,1]")
    A(f"v_cmp_u_f32 vcc, v70, v71\nv_cmp_ngt_f32 s[66:67], v{o+12}, v80\ns_or_b64 vcc, vcc, s[66:67]\nv_cmp_nlt_f32 s[66:67], v{o+12}, v81\ns_or_b64 vcc, vcc, s[66:67]")
    A(f"s_cbranch_vccz L_NOBAD\nv_mov_b32 v81, 1\nds_write_b32 v83, v81\nL_NOBAD:")
    fst(6, 3)
    if OPT["lastw"]:
        A("s_waitcnt lgkmcnt(0)\ns_barrier\nds_read_b32 v81, v83\nv_mov_b32 v86, 1\ns_waitcnt lgkmcnt(0)\nv_readfirstlane_b32 s64, v81")
        A(f"s_cmp_gt_u32 s64, s{sPass}\ns_cbranch_scc1 L_ATT_FB0")
        A("s_mov_b64 exec, 1\ns_waitcnt vmcnt(0)")
        fst(6, 4)
        A("ds_add_rtn_u32 v86, v83, v86 offset:4\ns_waitcnt lgkmcnt(0)\nv_readfirstlane_b32 s64, v86\ns_mov_b64 exec, -1")
        fst(6, 5)
        A(f"s_cmp_lg_u32 s64, 7\ns_cbranch_scc1 L_A_DONE\ns_mov_b32 exec_hi, 0\nbuffer_store_dwordx2 v[84:85], v82, {S(WS)}, s{sPV4} offen sc1\ns_mov_b64 exec, -1")
    else:
        A("s_waitcnt lgkmcnt(0)\ns_barrier\nds_read_b32 v81, v83\ns_waitcnt vmcnt(0) lgkmcnt(0)\nv_readfirstlane_b32 s64, v81")
        fst(6, 4)
        A("s_barrier")
        fst(6, 5)
        A(f"s_cmp_gt_u32 s64, s{sPass}\ns_cbranch_scc1 L_ATT_FB")
        A(f"s_cmp_lg_u32 s{S_W}, 0\ns_cbranch_scc1 L_A_DONE\ns_mov_b32 exec_hi, 0\nbuffer_store_dwordx2 v[84:85], v82, {S(WS)}, s{sPV4} offen sc1\ns_mov_b64 exec, -1")
    A("L_A_DONE:")
    stamp(7)
    dump_stamps(12)
    A("s_endpgm")

    A("L_ATT_FB0:\ns_waitcnt vmcnt(0)\nL_ATT_FB:")
    A(f"s_mov_b32 s{sPass}, 1\ns_mov_b32 s{sChk}, 1\ns_mov_b32 s34, 0\ns_cmp_lt_u32 s{S_W}, 4\ns_cselect_b64 vcc, -1, 0")
    A("v_mov_b32 v20, 0xff800000\nv_mov_b32 v21, 0xff800000")
    A("L_FB_LOOP:\ns_barrier")
    for m in range(3):
        dma_static(0, m, "s34")
    A("s_waitcnt vmcnt(0)\ns_barrier")
    for kt in range(4):
        kreads(Kf[0], 256 * kt)
        A("s_waitcnt lgkmcnt(0)")
        for x in range(2):
            A(f"{MF32} {vr(SS[x],16)}, {vr(Kf[0],4)}, {vr(Q[x],4)}, 0\n{MF8} {vr(SS[x],16)}, {vr(Kf[0]+4,2)}, {vr(Q[x]+4,2)}, {vr(SS[x],16)}")
        A("s_nop 15")
        for x in range(2):
            for i in range(0, 16, 2):
                A(f"v_max3_f32 v{20+x}, v{SS[x]+i}, v{SS[x]+i+1}, v{20+x}")
    A("s_add_u32 s34, s34, 2048\ns_cmp_lt_u32 s34, 16384\ns_cbranch_scc1 L_FB_LOOP")
    for x in range(2):
        A(f"v_mov_b32 v22, v{20+x}\ns_nop 1\nv_permlane32_swap_b32 v{20+x}, v22\nv_max_f32 v{20+x}, v{20+x}, v22")
    A(f"s_barrier\nds_write_b64 v2, v[20:21]\ns_waitcnt lgkmcnt(0)\ns_barrier\nds_read_b64 v[22:23], v3\ns_waitcnt lgkmcnt(0)")
    A("v_max_f32 v20, v20, v23\nv_max_f32 v21, v21, v22\nv_cmp_le_u32 vcc, 32, v1")
    for x in range(2):
        A(f"v_sub_f32 v24, 0, v{20+x}\nv_and_b32 v25, 0xffff0000, v24\nv_sub_f32 v24, v24, v25\nv_and_b32 v26, 0xffff0000, v24\nv_sub_f32 v24, v24, v26")
        A(f"v_lshrrev_b32 v25, 16, v25\nv_or_b32 v25, v25, v26\nv_lshrrev_b32 v24, 16, v24")
        A(f"v_cndmask_b32 v{Q[x]+4}, v{Q[x]+4}, v25, vcc\nv_cndmask_b32 v{Q[x]+5}, v{Q[x]+5}, v24, vcc")
    A(f"s_lshr_b32 s64, s{S_W}, 1\ns_min_u32 s64, s64, 2\ns_mul_i32 s64, s64, {SLOT}\ns_and_b32 s65, s{S_W}, 1\ns_lshl_b32 s65, s65, 10\ns_add_u32 s64, s64, s65\ns_add_u32 s64, s64, {10*PS}")
    A(f"v_add_u32 v24, s64, v{vD}")
    for i in range(4):
        A(f"v_mov_b32 v{28+i}, 0x3f803f80")
    A("s_barrier\nds_write_b128 v24, v[28:31]\ns_waitcnt lgkmcnt(0)\ns_branch L_ATT_MAIN")


def cmul(d, a, b, t):
    A(f"v_pk_mul_f32 {vr(t,2)}, {vr(a,2)}, {vr(b,2)} op_sel:[0,0] op_sel_hi:[1,0]")
    A(f"v_pk_fma_f32 {vr(d,2)}, {vr(a,2)}, {vr(b,2)}, {vr(t,2)} op_sel:[1,1,0] op_sel_hi:[0,1,1] neg_lo:[0,1,0]")


def cfma(d, a, b, c, t):
    A(f"v_pk_fma_f32 {vr(t,2)}, {vr(a,2)}, {vr(b,2)}, {vr(c,2)} op_sel:[0,0,0] op_sel_hi:[1,0,1]")
    A(f"v_pk_fma_f32 {vr(d,2)}, {vr(a,2)}, {vr(b,2)}, {vr(t,2)} op_sel:[1,1,0] op_sel_hi:[0,1,1] neg_lo:[0,1,0]")


def gather4(src, dst):
    if OPT["lscan"]:
        A(f"ds_write_b64 v0, {vr(src,2)}")
        for q in range(4):
            A(f"ds_read_b64 {vr(dst+2*q,2)}, v17 offset:{128*q}")
        A("s_waitcnt lgkmcnt(0)")
        return
    for c in range(2):
        A(f"v_mov_b32 v{dst+c}, v{src+c}\nv_mov_b32 v{dst+2+c}, v{src+c}")
    A("s_nop 0")
    for c in range(2):
        A(f"v_permlane16_swap_b32 v{dst+c}, v{dst+2+c}")
    for c in range(4):
        A(f"v_mov_b32 v{dst+4+c}, v{dst+c}")
    for c in range(4):
        A(f"v_permlane32_swap_b32 v{dst+c}, v{dst+4+c}")


sTC, sNB, sK, sROT, sCT = 41, 42, 43, 37, 36


def hoist():
    A(f"v_and_b32 v26, 15, v1\nv_add_u32 v123, s{sCT}, v26\nv_lshlrev_b32 v123, 3, v123")
    A(f"v_lshrrev_b32 v27, 4, v1\nv_mul_u32_u24 v28, {8*640}, v27\ns_sub_u32 s65, 32, s{sTC}\ns_mul_i32 s65, s65, 640\nv_add3_u32 v124, v123, v28, s65")
    A(f"v_mul_u32_u24 v28, 40960, v27\nv_lshl_add_u32 v125, v16, 4, v28")
    A(f"s_lshl_b32 s65, s{S_W}, 6\nv_add_u32 v28, s65, v1\nv_mul_u32_u24 v29, 6554, v28\nv_lshrrev_b32 v29, 16, v29\nv_mul_u32_u24 v30, 10, v29\nv_sub_u32 v30, v28, v30")
    A(f"v_and_b32 v28, 0x78, v29\nv_and_b32 v31, 1, v29\nv_lshl_add_u32 v28, v31, 2, v28\nv_bfe_u32 v31, v29, 1, 2\nv_add_u32 v28, v28, v31")
    A(f"v_mul_u32_u24 v28, 1280, v28\nv_lshl_add_u32 v28, v30, 4, v28\ns_mul_i32 s65, s{sNB}, 160\nv_add_u32 v117, s65, v28")
    A(f"v_lshrrev_b32 v28, 5, v1\nv_mul_u32_u24 v28, {PL}, v28\nv_and_b32 v29, 31, v1\nv_lshlrev_b32 v29, 4, v29\ns_and_b32 s65, s{S_W}, 1\ns_lshl_b32 s65, s65, 7\nv_xor_b32 v29, s65, v29\nv_add_u32 v119, v28, v29")
    A("v_bfe_u32 v30, v1, 2, 2\nv_and_b32 v31, 3, v1")
    sm, dn = uid("HS"), uid("HD")
    A(f"s_cmp_ge_u32 s{S_W}, 4\ns_cbranch_scc1 {sm}")
    for big in (True, False):
        if big:
            A(f"v_lshrrev_b32 v27, 5, v1\nv_and_b32 v26, 31, v1\ns_lshr_b32 s65, s{S_W}, 1\ns_and_b32 s66, s{S_W}, 1")
            A(f"s_lshl_b32 s67, s65, 5\ns_lshl_b32 s68, s66, 5")
            A(f"s_lshl_b32 s69, s65, 2\nv_bfe_u32 v28, v1, 4, 1\nv_lshlrev_b32 v28, 1, v28\nv_lshrrev_b32 v29, 1, v31\nv_add3_u32 v28, v28, v29, s69")
        else:
            A(f"{sm}:\ns_sub_u32 s65, s{S_W}, 4\ns_lshl_b32 s67, s65, 4\ns_mov_b32 s68, 64")
            A(f"s_lshl_b32 s69, s65, 1\nv_lshrrev_b32 v28, 1, v31\nv_add_u32 v28, s69, v28")
        A(f"v_mul_u32_u24 v28, 1088, v28\nv_lshl_add_u32 v29, v27, 3, v30\nv_lshl_add_u32 v28, v29, 4, v28\nv_and_b32 v29, 1, v31\nv_lshl_add_u32 v112, v29, 3, v28")
        A(f"v_add_u32 v28, s68, v26\nv_lshlrev_b32 v28, 7, v28\nv_add_u32 v28, 8704, v28\nv_bfe_u32 v29, v26, 1, 3\nv_xor_b32 v29, v29, v27\nv_lshl_add_u32 v113, v29, 4, v28")
        A(f"s_lshl_b32 s69, s{sTC}, 6\ns_add_u32 s69, s69, s67\nv_lshl_add_u32 v28, v27, 2, s69\ns_mul_i32 s69, s{sNB}, 80\ns_add_u32 s69, s69, s68\nv_add_u32 v29, s69, v26")
        A("v_mul_u32_u24 v114, 1280, v28\nv_lshl_add_u32 v114, v29, 1, v114\nv_mul_u32_u24 v115, 5120, v28\nv_lshl_add_u32 v115, v29, 2, v115\nv_lshlrev_b32 v126, 1, v29")
        A("v_lshlrev_b32 v28, 1, v30\nv_lshl_add_u32 v28, v27, 3, v28\nv_mul_u32_u24 v28, 160, v28\nv_lshl_add_u32 v28, v31, 3, v28")
        if big:
            A("v_bfe_u32 v29, v1, 4, 1\nv_lshl_add_u32 v28, v29, 5, v28\ns_lshl_b32 s69, s66, 6\nv_add_u32 v116, s69, v28")
            A("v_add_u32 v28, s67, v26\nv_lshlrev_b32 v28, 3, v28\nv_lshlrev_b32 v29, 7, v27\nv_xor_b32 v28, v28, v29\nv_lshl_add_u32 v28, v27, 10, v28\ns_mul_i32 s69, s65, 40960\nv_add_u32 v118, s69, v28")
            A(f"v_lshlrev_b32 v122, 4, v1\nv_mov_b32 v127, 0\nv_mov_b32 v26, 0\nv_mov_b32 v27, 0\nv_mov_b32 v28, 0\ns_branch {dn}")
        else:
            A("v_add_u32 v116, 128, v28")
            A("v_add_u32 v28, s67, v26\nv_lshlrev_b32 v28, 3, v28\nv_and_b32 v29, 1, v27\nv_lshlrev_b32 v29, 7, v29\nv_xor_b32 v28, v28, v29\nv_lshl_add_u32 v118, v27, 10, v28")
            A(f"v_lshrrev_b32 v28, 3, v1\ns_mul_i32 s69, s{sNB}, 80\ns_lshl_b32 s66, s65, 3\ns_add_u32 s69, s69, s66\nv_add_u32 v28, s69, v28\nv_mul_u32_u24 v28, 1280, v28")
            A(f"v_and_b32 v29, 7, v1\nv_xor_b32 v29, v29, v27\ns_and_b32 s69, s65, 1\ns_lshl_b32 s69, s69, 2\nv_xor_b32 v29, s69, v29\nv_lshl_add_u32 v122, v29, 4, v28")
            A("v_xor_b32 v127, 64, v113\nv_add_u32 v26, 40960, v122\nv_add_u32 v27, 81920, v122\nv_add_u32 v28, 40960, v118")
    A(f"{dn}:")


def wo_src(d, sj, t):
    A(f"v_add_u32 v{t}, s{sj}, v1\nv_mul_u32_u24 v{t+1}, 6554, v{t}\nv_lshrrev_b32 v{t+1}, 16, v{t+1}\nv_mul_u32_u24 v{t+2}, 10, v{t+1}\nv_sub_u32 v{t+2}, v{t}, v{t+2}")
    A(f"v_and_b32 v{t}, 0x78, v{t+1}\nv_and_b32 v{t+3}, 1, v{t+1}\nv_lshl_add_u32 v{t}, v{t+3}, 2, v{t}\nv_bfe_u32 v{t+3}, v{t+1}, 1, 2\nv_add_u32 v{t}, v{t}, v{t+3}")
    A(f"v_mul_u32_u24 v{t}, 1280, v{t}\nv_lshl_add_u32 v{t}, v{t+2}, 4, v{t}\ns_mul_i32 s69, s{sNB}, 160\nv_add_u32 v{d}, s69, v{t}")


def role_b():
    A("L_ROLE_B:\ns_cmp_ge_u32 s2, 512\ns_cbranch_scc1 L_END")
    if OPT.get("nob"):
        A("s_endpgm")
    stamp(0)
    A(f"s_load_dwordx16 s[8:23], s[0:1], 0\ns_load_dwordx8 s[24:31], s[0:1], 64\ns_load_dwordx2 s[{P_OUT}:{P_OUT+1}], s[0:1], 96\ns_load_dwordx2 s[{WS}:{WS+1}], s[0:1], 112")
    A(f"v_lshrrev_b32 v2, 6, v0\nv_and_b32 v1, 63, v0\nv_readfirstlane_b32 s{S_W}, v2")
    bhi()
    if OPT["cpre"]:
        cp = uid("CP")
        A(f"s_cmp_lg_u32 s{S_W}, 7\ns_cbranch_scc1 {cp}\ns_getpc_b64 s[64:65]\nL_PC:\ns_sub_u32 s64, s64, L_PC-{NAME}_kernel\ns_subb_u32 s65, s65, 0")
        A("s_bfe_u32 s66, s2, 0x50003\ns_lshl_b32 s66, s66, 11\nv_and_b32 v2, 15, v1\nv_lshlrev_b32 v2, 7, v2\nv_add_u32 v2, s66, v2")
        A(f"v_min_u32 v2, L_END-{NAME}_kernel, v2\nv_mov_b32 v3, s65\nv_add_co_u32 v2, vcc, s64, v2\ns_nop 1\nv_addc_co_u32 v3, vcc, 0, v3, vcc\nglobal_load_dword v4, v[2:3], off\n{cp}:")
    A(f"s_and_b32 s{sTC}, s2, 3\ns_lshl_b32 s{sTC}, s{sTC}, 3\ns_bfe_u32 s64, s2, 0x30003\ns_add_u32 s{sTC}, s{sTC}, s64")
    A(f"s_and_b32 s{sNB}, s2, 4\ns_bfe_u32 s64, s2, 0x20006\ns_add_u32 s{sNB}, s{sNB}, s64")
    A(f"s_mul_i32 s{sROT}, s{sNB}, 3\ns_add_u32 s{sROT}, s{sROT}, s{sTC}")
    A(f"s_mul_i32 s64, s{sROT}, 205\ns_lshr_b32 s64, s64, 11\ns_mul_i32 s64, s64, 10\ns_sub_u32 s{sROT}, s{sROT}, s64")
    if not OPT["brot"]:
        A(f"s_mov_b32 s{sROT}, 0")
    A(f"s_mov_b32 s{WS+2}, {WS_USED}\ns_mov_b32 s{WS+3}, 0x20000\ns_waitcnt lgkmcnt(0)\ns_load_dword s{S_E}, {WSP}, {EPOCH}")
    MU, CF, MU16, PW, LAM, LAM8 = 2, 4, 6, 8, 10, 12
    A(f"s_min_u32 s{sCT}, s{S_W}, 4\ns_lshl_b32 s{sCT}, s{sCT}, 4\ns_mul_i32 s64, s{sNB}, 80\ns_add_u32 s64, s64, s{sCT}")
    A(f"v_and_b32 v16, 15, v1\nv_add_u32 v16, s64, v16\nv_lshlrev_b32 v21, 1, v16")
    srd(R0, P_LRE, 1280); srd(R1, P_LIM, 1280); srd(R2, P_LDT, 1280)
    A(f"buffer_load_ushort v22, v21, {S(R0)}, 0 offen\nbuffer_load_ushort v23, v21, {S(R1)}, 0 offen\nbuffer_load_ushort v24, v21, {S(R2)}, 0 offen")
    A("s_waitcnt vmcnt(0) lgkmcnt(0)")
    epoch_fix()
    LOG2E = f2u(math.log2(math.e))
    A("v_lshlrev_b32 v22, 16, v22\nv_lshlrev_b32 v23, 16, v23\nv_lshlrev_b32 v24, 16, v24")
    A(f"v_mul_f32 v24, {LOG2E}, v24\nv_exp_f32 v24, v24\ns_nop 0\nv_cvt_pk_bf16_f32 v24, v24, v24\nv_lshlrev_b32 v24, 16, v24")
    A(f"v_mul_f32 v25, v24, v22\nv_mul_f32 v26, v24, v23\nv_mul_f32 v25, {LOG2E}, v25\nv_exp_f32 v25, v25")
    A(f"v_mul_f32 v26, 0.15915494, v26\nv_fract_f32 v26, v26\nv_cos_f32 v27, v26\nv_sin_f32 v28, v26\ns_nop 0")
    A(f"v_mul_f32 v{MU}, v25, v27\nv_mul_f32 v28, v25, v28\nv_sub_f32 v{MU+1}, 0, v28")
    A(f"v_add_f32 v27, -1.0, v{MU}")
    A("v_mul_f32 v25, v22, v22\nv_fmac_f32 v25, v23, v23\nv_rcp_f32 v25, v25")
    A("v_mul_f32 v26, v27, v22\nv_fmac_f32 v26, v28, v23\nv_mul_f32 v29, v28, v22\nv_fma_f32 v29, -v27, v23, v29")
    A(f"v_add_f32 v25, v25, v25\nv_mul_f32 v{CF}, v26, v25\nv_mul_f32 v29, v29, v25\nv_sub_f32 v{CF+1}, 0, v29")
    cmul(MU16, MU, MU, 22)
    for _ in range(3):
        cmul(MU16, MU16, MU16, 22)
    cmul(24, MU16, MU16, 22)
    cmul(26, 24, MU16, 22)
    cmul(LAM, 24, 24, 22)
    cmul(LAM8, LAM, LAM, 22)
    cmul(LAM8, LAM8, LAM8, 22)
    cmul(LAM8, LAM8, LAM8, 22)
    A("v_lshrrev_b32 v28, 4, v1")
    A(f"v_cmp_eq_u32 s[96:97], 1, v28\nv_cmp_eq_u32 s[98:99], 2, v28\nv_cmp_eq_u32 s[100:101], 3, v28")
    A(f"v_mov_b32 v{PW}, 1.0\nv_mov_b32 v{PW+1}, 0")
    for src, m in ((MU16, 96), (24, 98), (26, 100)):
        for c in range(2):
            A(f"v_cndmask_b32 v{PW+c}, v{PW+c}, v{src+c}, s[{m}:{m+1}]")
    vS0, vRA, vRB = 14, 18, 22
    srd(R0, P_BX, 2621440); srd(R1, P_BRE, 819200); srd(R2, P_BIM, 819200)
    hoist()
    A(f"s_lshl_b32 s{sK}, s{sROT}, 7")
    A("v_lshrrev_b32 v30, 4, v1\nv_and_b32 v31, 7, v1\nv_xor_b32 v31, v31, v30\nv_lshlrev_b32 v31, 4, v31")
    A(f"v_and_b32 v30, 31, v1\nv_lshlrev_b32 v30, 7, v30\nv_lshrrev_b32 v17, 5, v1\nv_bfe_u32 v29, v1, 1, 3\nv_xor_b32 v29, v17, v29\nv_lshl_add_u32 v{vRA}, v29, 4, v30")

    def scan_addr():
        A(f"s_mul_i32 s66, s{sCT}, 576\ns_add_u32 s66, s66, 20480\ns_lshl_b32 s67, s{sCT}, 5\ns_add_u32 s67, s67, 66560")
        A(f"v_and_b32 v0, 15, v1\nv_lshl_add_u32 v29, v17, 5, v0\nv_mul_u32_u24 v29, 144, v29\nv_bfe_u32 v30, v1, 4, 1\nv_lshl_add_u32 v29, v30, 2, v29\nv_add_u32 v29, s66, v29\nv_add_u32 v30, 2304, v29")
        A(f"v_mul_u32_u24 v31, 144, v1\nv_add_u32 v31, s66, v31\nv_lshl_add_u32 v17, v0, 3, s67\nv_lshl_add_u32 v0, v1, 3, s67")

    def early_addr():
        if not OPT["wearly"]:
            return
        A(f"s_cmp_eq_u32 s{S_W}, 6\ns_cselect_b32 s34, 1, 4\ns_cselect_b32 s35, 2, 0\ns_cmp_eq_u32 s{S_W}, 7\ns_cselect_b32 s34, 3, s34")
        for k in range(2):
            A(f"s_lshl_b32 s68, s{34+k}, 6")
            wo_src(48 + k, 68, 50)
            A(f"s_lshl_b32 s{34+k}, s{34+k}, 10")

    def touch2():
        t1, t2 = uid("U1"), uid("U2")
        if OPT["wearly"]:
            srd(R1, P_WO, 819200)
            for k in range(2):
                if k:
                    A(f"s_cmp_eq_u32 s{S_W}, 7\ns_cbranch_scc1 {t1}")
                for m in range(16):
                    A(f"s_add_u32 m0, s{34+k}, {5120*m}\ns_mov_b32 s64, {32*m*1280}")
                    dma(48 + k, R1, 64)
        else:
            A(f"s_cmp_eq_u32 s{S_W}, 7\ns_cbranch_scc1 {t1}")
        A(f"s_and_b32 s66, s{sTC}, 7\ns_mul_i32 s39, s66, 10\ns_mul_i32 s68, s{sNB}, 80\ns_add_u32 s39, s39, s68\ns_mul_i32 s39, s39, 1280")
        A(f"s_cmp_eq_u32 s{S_W}, 5\ns_cselect_b32 s{R1}, s{P_CRE}, s{P_CIM}\ns_cselect_b32 s{R1+1}, s{P_CRE+1}, s{P_CIM+1}")
        A(f"v_lshlrev_b32 v66, 7, v1\nv_min_u32 v67, 35, v1\nv_lshlrev_b32 v67, 7, v67\nv_add_u32 v67, 8192, v67")
        A(f"buffer_load_dword v64, v66, {S(R1)}, s39 offen\nbuffer_load_dword v65, v67, {S(R1)}, s39 offen\ns_branch {t2}\n{t1}:")
        srd(R1, P_WO, 819200)
        A(f"s_and_b32 s66, s{sTC}, 7\ns_mul_i32 s66, s66, {16*1280}\ns_mul_i32 s67, s{sNB}, 160\ns_add_u32 s66, s66, s67\ns_add_u32 s66, s66, {512*1280}")
        A(f"v_bfe_u32 v66, v1, 1, 4\nv_mul_u32_u24 v66, 1280, v66\nv_and_b32 v67, 1, v1\nv_mul_u32_u24 v67, 156, v67\nv_add_u32 v66, v66, v67")
        A(f"buffer_load_dword v64, v66, {S(R1)}, s66 offen\n{t2}:")

    GK = OPT["gk"]

    def more(Sx):
        return Sx + 2 < 10 and not (GK and Sx < GK <= Sx + 2)

    def inflight(Sx):
        return 0 if Sx == 9 or (GK and Sx == GK - 1) else 1

    def gate(Sx, issue, poller):
        if GK and Sx == GK:
            if poller:
                A(f"s_cmp_lg_u32 s{S_W}, 4\ns_cbranch_scc1 L_NOGATE\ns_sub_u32 s66, s2, 256\ns_lshl_b32 s66, s66, 7\ns_add_u32 s66, s66, {F0}")
                spoll([(8, 1, 0)], 66)
                A("L_NOGATE:")
            A("s_barrier")
            issue(GK); issue(GK + 1)

    def advK():
        A(f"s_add_u32 s{sK}, s{sK}, 128\ns_cmp_eq_u32 s{sK}, 1280\ns_cselect_b32 s{sK}, 0, s{sK}")

    ACC, BF, AF = 32, 64, 80
    SH = 12288
    A(f"s_cmp_ge_u32 s{S_W}, 4\ns_cbranch_scc1 L_G1_AUX")
    A(f"v_lshrrev_b32 v30, 3, v1\nv_add_u32 v30, s64, v30\nv_mul_u32_u24 v30, 1280, v30\nv_add_u32 v{vS0}, v30, v31")
    A(f"v_xor_b32 v{vS0+1}, 64, v{vS0}\nv_add_u32 v{vS0+1}, 10240, v{vS0+1}")
    A(f"s_lshl_b32 s38, s{S_W}, 13\ns_add_u32 s38, s38, {3*SH}")
    for u in range(1, 4):
        A(f"v_xor_b32 v{vRA+u}, {32*u}, v{vRA}")
    for u in range(4):
        A(f"v_add_u32 v{vRB+u}, s38, v{vRA+u}")
    scan_addr()
    A(f"s_cmp_lg_u32 s{S_W}, 0\ns_cbranch_scc1 L_NOHINT\ns_sub_u32 s66, s2, 256\ns_lshl_b32 s66, s66, 7\ns_add_u32 s66, s66, {F0C if OPT['gk'] else F0}")
    spoll([(8, 1, 0)], 66)
    A("L_NOHINT:\ns_barrier")
    stamp(1)
    A(f"s_setprio {3 if OPT['mlo'] else OPT['g1p']}\n;MLO_ON")

    def dmaB(Sx):
        for q in range(4):
            A(f"s_add_u32 m0, s38, {(Sx % 2) * 4096 + q * 1024}\ns_nop 0")
            dma(vS0 + (q & 1), R1 if q < 2 else R2, sK)
        advK()

    def g1_mm(Sx, u, tts=(0, 1)):
        for tt in tts:
            c = "0" if (Sx == 0 and u == 0) else vr(ACC + 16 * tt, 16)
            A(f"{MF32} {vr(ACC+16*tt,16)}, {vr(AF+8*u+4*tt,4)}, {vr(BF+4*u,4)}, {c}")

    dmaB(0); dmaB(1)
    for Sx in range(10):
        fst(1, Sx)
        gate(Sx, dmaB, False)
        A(f"s_waitcnt vmcnt({4 * inflight(Sx)})")
        for u in range(3):
            A(f"ds_read_b128 {vr(BF+4*u,4)}, v{vRB+u} offset:{(Sx % 2) * 4096}")
        A("s_barrier")
        if Sx:
            g1_mm(Sx - 1, 3, (0,))
        for u in range(3):
            for tt in range(2):
                A(f"ds_read_b128 {vr(AF+8*u+4*tt,4)}, v{vRA+u} offset:{(Sx % 3) * SH + 4096*tt}")
        if Sx:
            g1_mm(Sx - 1, 3, (1,))
        A(f"ds_read_b128 {vr(BF+12,4)}, v{vRB+3} offset:{(Sx % 2) * 4096}")
        for tt in range(2):
            A(f"ds_read_b128 {vr(AF+24+4*tt,4)}, v{vRA+3} offset:{(Sx % 3) * SH + 4096*tt}")
        A("s_waitcnt lgkmcnt(7)")
        g1_mm(Sx, 0)
        A("s_waitcnt lgkmcnt(5)")
        g1_mm(Sx, 1)
        A("s_waitcnt lgkmcnt(3)")
        g1_mm(Sx, 2)
        A("s_waitcnt lgkmcnt(0)")
        if more(Sx):
            dmaB(Sx + 2)
    g1_mm(9, 3)
    A(";MLO_OFF\ns_barrier\ns_nop 10\ns_branch L_SCAN")

    A("L_G1_AUX:")
    A(f"s_cmp_eq_u32 s{S_W}, 4\ns_cbranch_scc1 L_G1_LD\ns_cmp_eq_u32 s{S_W}, 7\ns_cbranch_scc1 L_G1_LD")
    A(f"v_lshrrev_b32 v30, 3, v1\nv_add_u32 v30, s64, v30\nv_mul_u32_u24 v30, 1280, v30\nv_add_u32 v{vS0}, v30, v31")
    A(f"v_xor_b32 v{vS0+1}, 64, v{vS0}\nv_add_u32 v{vS0+1}, 10240, v{vS0+1}")
    A(f"s_cmp_eq_u32 s{S_W}, 5\ns_cselect_b32 s{R3}, s{R1}, s{R2}\ns_cselect_b32 s{R3+1}, s{R1+1}, s{R2+1}\ns_mov_b32 s{R3+2}, 819200\ns_mov_b32 s{R3+3}, 0x20000")
    A(f"s_sub_u32 s38, s{S_W}, 5\ns_lshl_b32 s66, s38, 12\ns_lshl_b32 s38, s38, 11")
    for u in range(1, 4):
        A(f"v_xor_b32 v{vRA+u}, {32*u}, v{vRA}")
    for u in range(4):
        A(f"v_add_u32 v{vRB+u}, s66, v{vRA+u}")
    scan_addr()
    early_addr()
    A("s_barrier")
    A(f"s_setprio {3 if OPT['mlo'] else OPT['g1p']}\n;MLO_ON")

    def dmaB4(Sx):
        for q in range(2):
            A(f"s_add_u32 m0, s38, {(Sx % 3) * SH + 8192 + q * 1024}\ns_nop 0")
            dma(vS0 + q, R3, sK)
        advK()

    dmaB4(0); dmaB4(1)
    for Sx in range(10):
        gate(Sx, dmaB4, False)
        A(f"s_waitcnt vmcnt({2 * inflight(Sx)})\ns_barrier")
        for u in range(4):
            A(f"ds_read_b128 {vr(BF+4*u,4)}, v{vRA+u} offset:{(Sx % 3) * SH + 8192}")
            A(f"ds_read_b128 {vr(AF+4*u,4)}, v{vRB+u} offset:{(Sx % 3) * SH}")
        for u in range(4):
            A(f"s_waitcnt lgkmcnt({6-2*u})")
            c = "0" if (Sx == 0 and u == 0) else vr(ACC, 16)
            A(f"{MF32} {vr(ACC,16)}, {vr(AF+4*u,4)}, {vr(BF+4*u,4)}, {c}")
        if more(Sx):
            dmaB4(Sx + 2)
    A(";MLO_OFF")
    if OPT["lscan"]:
        A(f"s_cmp_eq_u32 s{S_W}, 5\ns_cbranch_scc1 L_G1_RED\ns_barrier\ns_nop 8")
        for j in range(0, 16, 4):
            for p in range(2):
                A(f"ds_write2_b32 v{29+p}, v{ACC+j+p}, v{ACC+j+p+2} offset0:{16 + j} offset1:{18 + j}")
        A("s_waitcnt lgkmcnt(0)\ns_barrier")
        bhi()
        touch2()
        A("s_branch L_G1_AUX2")
    else:
        bhi()
        A(f"s_lshl_b32 s66, s{S_W}, 12\ns_add_u32 s66, s66, {69632 - 5*4096}\nv_lshlrev_b32 v30, 4, v1\nv_add_u32 v30, s66, v30\ns_nop 7")
        for g in range(4):
            A(f"ds_write_b128 v30, {vr(ACC+4*g,4)} offset:{1024*g}")
        A("s_waitcnt lgkmcnt(0)\ns_branch L_G1_AUXEND")

    A("L_G1_LD:")
    A(f"s_cmp_eq_u32 s{S_W}, 7\ns_cselect_b32 s38, 1, 0")
    A(f"v_bfe_u32 v29, v1, 3, 1\nv_lshl_add_u32 v30, v17, 1, v29\nv_lshlrev_b32 v30, 4, v30\nv_bfe_u32 v29, v1, 4, 1\nv_add_u32 v30, v30, v29")
    A(f"s_lshl_b32 s66, s{sTC}, 6\ns_lshl_b32 s67, s38, 3\ns_add_u32 s66, s66, s67\nv_add_u32 v30, s66, v30\nv_mul_u32_u24 v30, 1280, v30\nv_add_u32 v{vS0}, v30, v31")
    A(f"v_xor_b32 v{vS0+1}, 64, v{vS0}\nv_add_u32 v{vS0+1}, 2560, v{vS0+1}\nv_add_u32 v22, 5120, v{vS0}\nv_add_u32 v23, 5120, v{vS0+1}")
    early_addr()
    if OPT["t1"]:
        t7, td = uid("T7"), uid("TD")
        A(f"v_lshrrev_b32 v52, 1, v1\nv_mul_u32_u24 v52, 1280, v52\nv_and_b32 v53, 1, v1\nv_lshl_add_u32 v52, v53, 7, v52\ns_cmp_eq_u32 s{S_W}, 7\ns_cbranch_scc1 {t7}")
        A(f"s_and_b32 s66, s{sNB}, 3\ns_lshl_b32 s66, s66, 4\ns_lshl_b32 s67, s{sTC}, 6\ns_add_u32 s66, s66, s67\ns_mul_i32 s66, s66, 1280\ns_mov_b32 exec_hi, 0")
        A(f"buffer_load_dword v54, v52, {S(R0)}, s66 offen\ns_branch {td}\n{t7}:")
        A(f"s_and_b32 s66, s{sTC}, 7\ns_mul_i32 s66, s66, 10\ns_mul_i32 s67, s{sNB}, 80\ns_add_u32 s66, s66, s67\ns_mul_i32 s66, s66, 1280\ns_mov_b64 exec, 0xfffff")
        A(f"buffer_load_dword v54, v52, {S(R1)}, s66 offen\nbuffer_load_dword v55, v52, {S(R2)}, s66 offen\n{td}:\ns_mov_b64 exec, -1")
    A("s_lshl_b32 s38, s38, 12\ns_waitcnt vmcnt(0)\ns_barrier")

    def dmaX(Sx):
        for q in range(4):
            A(f"s_add_u32 m0, s38, {(Sx % 3) * SH + q * 1024}\ns_nop 0")
            dma([vS0, vS0 + 1, 22, 23][q], R0, sK)
        advK()

    dmaX(0); dmaX(1)
    for Sx in range(10):
        gate(Sx, dmaX, True)
        A(f"s_waitcnt vmcnt({4 * inflight(Sx)})\ns_barrier")
        if more(Sx):
            dmaX(Sx + 2)
    A(f"v_lshlrev_b32 v30, 4, v1\nv_add_u32 v30, 69632, v30\ns_cmp_eq_u32 s{S_W}, 4\ns_cbranch_scc1 L_G1_RED")
    A("L_G1_AUXEND:")
    A("s_barrier\ns_barrier")
    A(f"s_cmp_lg_u32 s{S_W}, 6\ns_cbranch_scc1 L_F2POLL")
    touch2()
    A("s_barrier\ns_waitcnt vmcnt(0)\ns_branch L_B_H\nL_F2POLL:")
    A(f"s_cmp_eq_u32 s{S_W}, 7\ns_cselect_b32 s66, 16, 0\ns_sub_i32 s67, s{sTC}, s66\ns_max_i32 s67, s67, 0\ns_min_i32 s67, s67, 16\ns_lshr_b32 s67, 0xffff0000, s67\ns_and_b32 s67, s67, 0xffff")
    A(f"s_lshl_b32 s66, s66, 3\ns_lshl_b32 s65, s{sNB}, 5\ns_add_u32 s65, s65, s{sTC}\ns_lshl_b32 s65, s65, 8\ns_add_u32 s66, s66, s65\ns_add_u32 s66, s66, {PV2}")
    spoll([(68, 8, 0), (84, 8, 64)], 66, need=67)
    A("s_barrier")
    touch2()
    A("s_waitcnt vmcnt(0)\ns_branch L_B_H")
    A("L_G1_RED:\ns_barrier")
    if OPT["lscan"]:
        A("s_nop 8")
        for j in range(0, 16, 4):
            for p in range(2):
                A(f"ds_write2_b32 v{29+p}, v{ACC+j+p}, v{ACC+j+p+2} offset0:{j} offset1:{2 + j}")
        A("s_branch L_SCAN2")
    else:
        for g in range(8):
            A(f"ds_read_b128 {vr(ACC+4*g,4)}, v30 offset:{1024*g}")
        A("s_waitcnt lgkmcnt(0)")
    A("L_SCAN:")
    stamp(2)
    if OPT["lscan"]:
        for tt in range(2):
            for j in range(0, 16, 4):
                for p in range(2):
                    A(f"ds_write2_b32 v{29+p}, v{ACC+16*tt+j+p}, v{ACC+16*tt+j+p+2} offset0:{16*tt + j} offset1:{16*tt + 2 + j}")
        A("L_SCAN2:\ns_waitcnt lgkmcnt(0)\ns_barrier")
        for i in range(8):
            A(f"ds_read_b128 {vr(ACC+4*i,4)}, v31 offset:{16*i}")
        bhi()
    else:
        bhi()
        for i in range(16):
            A(f"v_permlane16_swap_b32 v{ACC+2*i}, v{ACC+2*i+1}")
    for i in range(16):
        u = ACC + 2 * i
        t = 64 + 2 * (i & 1)
        if OPT["lscan"] and i % 2 == 0:
            A(f"s_waitcnt lgkmcnt({7 - i // 2})")
        A(f"v_pk_mul_f32 {vr(t,2)}, {vr(u,2)}, {vr(CF,2)} op_sel:[0,0] op_sel_hi:[0,1]")
        A(f"v_pk_fma_f32 {vr(u,2)}, {vr(u,2)}, {vr(CF,2)}, {vr(t,2)} op_sel:[1,1,0] op_sel_hi:[1,0,1] neg_hi:[0,1,0]")
    G, T = 68, 70
    cfma(G, ACC, MU, ACC + 2, T)
    for i in range(2, 16):
        cfma(G, G, MU, ACC + 2 * i, T)
    E4 = 72
    A(f"s_mul_i32 s64, s{sNB}, 20480\ns_add_u32 s64, s64, {EB}\ns_add_u32 s{R3}, s{WS}, s64\ns_addc_u32 s{R3+1}, s{WS+1}, 0\ns_mov_b32 s{R3+2}, 20480\ns_mov_b32 s{R3+3}, 0x20000")
    gather4(G, E4)
    PRE = 80
    cfma(82, E4, MU16, E4 + 2, T)
    cfma(84, 82, MU16, E4 + 4, T)
    cfma(86, 84, MU16, E4 + 6, T)
    A(f"s_sub_u32 s64, 31, s{sTC}\ns_mul_i32 s64, s64, 640\ns_mov_b64 exec, 0xffff")
    A(f"buffer_store_dwordx2 v[86:87], v123, {S(R3)}, s64 offen sc1\ns_mov_b64 exec, -1")
    A(f"v_mov_b32 v{PRE}, 0\nv_mov_b32 v{PRE+1}, 0")
    for src, m in ((E4, 96), (82, 98), (84, 100)):
        for c in range(2):
            A(f"v_cndmask_b32 v{PRE+c}, v{PRE+c}, v{src+c}, s[{m}:{m+1}]")
    A(f"s_lshl_b32 s68, s{sNB}, 13\ns_lshl_b32 s69, s{sTC}, 3\ns_add_u32 s68, s68, s69\ns_add_u32 s68, s68, {PV2}")
    A(f"v_lshlrev_b32 v88, 8, v1\nv_mov_b32 v90, s{S_E}\nv_mov_b32 v91, s{S_E+1}\ns_lshl_b32 s69, -2, s{sTC}")
    A("s_waitcnt vmcnt(0)\ns_barrier")
    A(f"s_cmp_lg_u32 s{S_W}, 0\ns_cbranch_scc1 L_NOP2\ns_cmp_eq_u32 s69, 0\ns_cbranch_scc1 L_NOP2\ns_mov_b32 exec_lo, s69\ns_mov_b32 exec_hi, 0")
    A(f"buffer_store_dwordx2 v[90:91], v88, {S(WS)}, s68 offen sc1\ns_mov_b64 exec, -1\nL_NOP2:")
    stamp(3)
    A(f"s_cmp_ge_u32 s{S_W}, 4\ns_cbranch_scc1 L_NOSKIP")
    srd(R1, P_DSK, 1280)
    A(f"buffer_load_ushort v14, v126, {S(R1)}, 0 offen")
    for i in range(16):
        A(f"s_mov_b32 s64, {(8 * (i >> 2) + (i & 3))*1280}\nbuffer_load_ushort v{16+i}, v114, {S(R0)}, s64 offen")
    A("L_NOSKIP:\ns_movk_i32 s64, 4480\ns_barrier")
    stamp(4)
    EL = 96
    for u in range(8):
        d = 7 - u
        A(f"buffer_load_dwordx2 {vr(EL+2*u,2)}, v124, {S(R3)}, {'s64' if d == 7 else '0'} offen offset:{0 if d == 7 else 640*d} sc1")
    A("s_waitcnt vmcnt(6)")
    cfma(G, EL, LAM, EL + 2, T)
    for u in range(2, 8):
        A(f"s_waitcnt vmcnt({7-u})")
        cfma(G, G, LAM, EL + 2 * u, T)
    gather4(G, E4)
    cfma(G, E4 + 6, LAM8, E4 + 4, T)
    cfma(G, G, LAM8, E4 + 2, T)
    cfma(G, G, LAM8, E4, T)
    cfma(G, G, PW, PRE, T)
    PK = 72
    A(f"s_mul_i32 s64, s{sTC}, 163840\ns_add_u32 s64, s64, {HB}")
    for tt in range(2):
        for i in range(8 * tt, 8 * tt + 8):
            cfma(ACC + 2 * i, G if i == 0 else ACC + 2 * i - 2, MU, ACC + 2 * i, T)
        for c in range(2):
            d = PK + 8 * tt + 4 * c
            for m in range(4):
                a = ACC + 16 * tt + 4 * m + c
                A(f"v_cvt_pk_bf16_f32 v{d+m}, v{a}, v{a+2}")
            A(f"s_add_u32 s65, s64, {tt*20480 + c*10240}")
            A(f"buffer_store_dwordx4 {vr(d,4)}, v125, {S(WS)}, s65 offen sc1")
    A("s_waitcnt vmcnt(0)")
    A("L_B_H:")
    bhi()
    A("s_barrier")
    A(f"s_cmp_lg_u32 s{S_W}, 0\ns_cbranch_scc1 L_NOP3\ns_lshl_b32 s68, s{sTC}, 10\ns_lshl_b32 s69, s{sNB}, 3\ns_add_u32 s68, s68, s69\ns_add_u32 s68, s68, {PV3}")
    A(f"v_lshlrev_b32 v88, 7, v1\ns_mov_b64 exec, 0xff\nbuffer_store_dwordx2 v[90:91], v88, {S(WS)}, s68 offen sc1\ns_mov_b64 exec, -1\nL_NOP3:")
    stamp(5)
    A(f"s_cmp_ge_u32 s{S_W}, 4\ns_cbranch_scc1 L_B_SMALL")
    tail(True)
    A("L_B_SMALL:")
    tail(False)


def tail(big):
    nacc = 16 if big else 4
    ACC = 16 if big else 12
    WF = 48
    MF = MF32 if big else MF16
    rows = [8 * (i >> 2) + (i & 3) for i in range(nacc)]
    fst(9, 0)
    if big:
        vA, vB, vS, vOut, vO, vOs, vW, vWs = 2, 3, 4, 5, 6, 7, 8, 9
        mv = ((8, 116), (2, 112), (3, 113), (4, 122), (5, 115), (6, 118), (9, 117))
        A(f"s_lshr_b32 s64, s{S_W}, 1\ns_mul_i32 s64, s64, 51200\nv_add_u32 v10, s64, v116")
    else:
        vA, vB, vS, vOut, vO, vOs, vW, vWs = 2, 3, 9, 5, 6, 10, 16, 17
        mv = ((16, 116), (2, 112), (3, 113), (4, 127), (5, 115), (6, 118), (7, 28), (9, 122), (10, 119), (8, 26), (11, 27), (17, 117))
        srd(R3, P_DSK, 1280)
        A(f"buffer_load_ushort v0, v126, {S(R3)}, 0 offen")
        for i in range(nacc):
            A(f"s_mov_b32 s64, {rows[i]*1280}\nbuffer_load_ushort v{32+i}, v114, {S(R0)}, s64 offen")
        A(f"s_sub_u32 s95, s{S_W}, 4\nv_add_u32 v18, 40960, v116")
    for d, sreg in mv:
        A(f"v_mov_b32 v{d}, v{sreg}")
    fst(9, 1)
    if big:
        for u in range(20):
            if u == 12:
                A(f"s_cmp_ge_u32 s{S_W}, 2\ns_cbranch_scc1 L_WR0")
            for j in range(2):
                A(f"ds_read_b64_tr_b16 {vr(WF+4*u+2*j,2)}, v10 offset:{2560*u + 160*j}")
        A("L_WR0:")
        for i in range(nacc):
            A(f"v_dot2_f32_bf16 v{ACC+i}, v{ACC+i}, v14, 0")
        A(f"s_lshl_b32 s45, s{sTC}, 3\ns_add_u32 s45, s45, s{sNB}\ns_lshl_b32 s45, s45, 7\ns_add_u32 s45, s45, {PV3}")
    else:
        for U in range(16):
            for j in range(2):
                A(f"ds_read_b64_tr_b16 {vr(WF+4*U+2*j,2)}, v{vW if U < 8 else 18} offset:{5120*(U & 7) + 160*j}")
    srd(R1, P_WO, 819200)
    A(f"s_lshl_b32 s46, s{S_W}, 10\ns_waitcnt lgkmcnt(0)\ns_barrier")
    fst(9, 2)
    if big:
        A(f"s_load_dwordx16 s[8:23], {WSP}, s45 glc")
    sk = uid("WD")
    if not big:
        A(f"s_cmp_ge_u32 s{S_W}, 5\ns_cbranch_scc1 {sk}")
    for m in range(4):
        A(f"s_add_u32 m0, s46, {5120*m}\ns_mov_b32 s64, {(512 + 32*m) * 1280}")
        dma(vWs, R1, 64)
    A(f"{sk}:")
    fst(9, 3)
    if not big:
        A("s_waitcnt vmcnt(0)")
        for i in range(nacc):
            A(f"v_dot2_f32_bf16 v{ACC+i}, v{32+i}, v0, 0")

    def wo_reads1():
        if big:
            A(f"s_cmp_lt_u32 s{S_W}, 2\ns_cbranch_scc1 L_WR1")
            for u in range(8):
                for j in range(2):
                    A(f"ds_read_b64_tr_b16 {vr(WF+4*(12+u)+2*j,2)}, v{vW} offset:{2560*u + 160*j}")
            A("L_WR1:")
        else:
            for U in range(4):
                for j in range(2):
                    A(f"ds_read_b64_tr_b16 {vr(WF+4*(16+U)+2*j,2)}, v{vW} offset:{5120*U + 160*j}")
        A("s_waitcnt lgkmcnt(0)\ns_barrier")

    SL = 18944
    vSs = [vS, 8, 11]

    def slot(Sx):
        return ((Sx + 3) % 4) * SL

    def g2_dma(Sx):
        sb = slot(Sx)
        if big:
            for i in range(2):
                A(f"s_add_u32 m0, s39, {sb + 1088*i}\ns_add_u32 s64, s44, s{sK}")
                if i or Sx >= 10:
                    A(f"s_add_u32 s64, s64, {20480*i + (10240 if Sx >= 10 else 0)}")
                dma(vS, WS, 64, "sc1")
            A(f"s_add_u32 s{sK}, s{sK}, 1024\ns_cmp_eq_u32 s{sK}, 10240\ns_cselect_b32 s{sK}, 0, s{sK}")
        else:
            for m in range(3):
                if m == 2:
                    sk = uid("SD")
                    A(f"s_cmp_ge_u32 s95, 2\ns_cbranch_scc1 {sk}")
                A(f"s_add_u32 m0, s39, {sb + 8704 + 4096*m}\ns_nop 0")
                dma(vSs[m], R1 if Sx < 10 else R2, sK)
            A(f"{sk}:")
            A(f"s_add_u32 s{sK}, s{sK}, 128\ns_cmp_eq_u32 s{sK}, 1280\ns_cselect_b32 s{sK}, 0, s{sK}")

    srd(R1, P_CRE, 819200); srd(R2, P_CIM, 819200)
    if big:
        A(f"s_mul_i32 s44, s{sTC}, 163840\ns_mul_i32 s64, s{S_W}, 40960\ns_add_u32 s44, s44, s64\ns_add_u32 s44, s44, {HB}")
        A(f"v_xor_b32 v0, 32, v{vB}\nv_xor_b32 v1, 64, v{vB}\nv_xor_b32 v7, 96, v{vB}")
        A(f"s_mul_i32 s39, s{S_W}, 2176\ns_lshl_b32 s{sK}, s{sROT}, 10")
        fst(9, 4)
        A("s_waitcnt lgkmcnt(0)\ns_mov_b32 s65, 0")
        for i in range(8):
            A(f"s_cmp_eq_u64 s[{8+2*i}:{9+2*i}], {EP}\ns_addc_u32 s65, s65, s65")
        A("s_cmp_eq_u32 s65, 255\ns_cbranch_scc1 L_F3OK")
        spoll([(8, 8, 0)], 45)
        A("L_F3OK:")
        stamp(6); fst(9, 5)
        g2_dma(0)
        A(f"s_waitcnt vmcnt(2)")
        fst(9, 6)
        A("s_barrier")
        fst(9, 7)
    else:
        A(f"s_lshl_b32 s39, s95, 10\ns_lshl_b32 s{sK}, s{sROT}, 7")
        g2_dma(0)
        A("s_barrier")
    if big:
        A(f"s_sub_u32 s66, s2, 256\ns_lshl_b32 s66, s66, 7\ns_add_u32 s66, s66, {F0B}\ns_load_dwordx2 s[8:9], {WSP}, s66 glc")
    wo_reads1()
    fst(9, 8)
    A("s_waitcnt vmcnt(0)")
    for Sx in range(1, 4):
        g2_dma(Sx)
    if big:
        sk = uid("G2W")
        A(f"s_cmp_eq_u64 s[8:9], {EP}\ns_cbranch_scc1 {sk}\ns_cmp_lg_u32 s{S_W}, 0\ns_cbranch_scc1 {sk}")
        fst(9, 9)
        spoll([(8, 1, 0)], 66)
        A(f"{sk}:")
        fst(9, 10)
    A(f"s_setprio {3 if OPT['mlo'] else OPT['g2p']}\n;MLO_ON2")
    if big:
        SET = [32, 40, 8]

        def rd(n):
            Sx, u = n >> 2, n & 3
            f, sb = SET[n % 3], slot(Sx)
            for j in range(2):
                A(f"ds_read_b64_tr_b16 {vr(f+2*j,2)}, v{vA} offset:{sb + 256*u + 64*j}")
            A(f"ds_read_b128 {vr(f+4,4)}, v{[vB, 0, 1, 7][u]} offset:{sb}")

        def mm(n):
            if n >= 0:
                f = SET[n % 3]
                A(f"{MF} {vr(ACC,16)}, {vr(f,4)}, {vr(f+4,4)}, {vr(ACC,16)}")

        for Sx in range(20):
            infl = 3 if Sx == 0 else min(Sx + 3, 20) - Sx - 1
            n = 4 * Sx
            A(f"s_waitcnt vmcnt({2*infl})\ns_barrier" if Sx else "s_barrier")
            if Sx == 0:
                stamp(11); fst(9, 11)
            rd(n); rd(n + 1)
            mm(n - 1)
            rd(n + 2)
            A("s_waitcnt lgkmcnt(6)")
            mm(n)
            rd(n + 3)
            if 0 < Sx < 17:
                g2_dma(Sx + 3)
            A("s_waitcnt lgkmcnt(6)")
            mm(n + 1)
            A("s_waitcnt lgkmcnt(3)")
            mm(n + 2)
            A("s_waitcnt lgkmcnt(0)")
        mm(79)
    else:
        FR = [16, 32]

        def mm(Sx, u):
            if Sx >= 0:
                f = FR[Sx & 1]
                A(f"{MF} {vr(ACC,4)}, {vr(f+8*u,4)}, {vr(f+8*u+4,4)}, {vr(ACC,4)}")

        for Sx in range(20):
            infl = 3 if Sx == 0 else min(Sx + 3, 20) - Sx - 1
            f, sb = FR[Sx & 1], slot(Sx)
            A(f"s_waitcnt vmcnt({2*infl})\ns_barrier" if Sx else "s_barrier")
            if 0 < Sx < 17:
                g2_dma(Sx + 3)
            mm(Sx - 1, 0)
            for u in range(2):
                for j in range(2):
                    A(f"ds_read_b64_tr_b16 {vr(f+8*u+2*j,2)}, v{vA} offset:{sb + 512*u + 64*j}")
                A(f"ds_read_b128 {vr(f+8*u+4,4)}, v{vB + u} offset:{sb}")
            mm(Sx - 1, 1)
            A("s_waitcnt lgkmcnt(0)")
        mm(19, 0); mm(19, 1)
    A(";MLO_OFF")
    stamp(7)
    bhi()
    srd(R2, P_OUT, 10485760)
    A(f"s_mul_i32 s44, s{S_W}, {2*PL}\ns_lshl_b32 s64, s{sTC}, 9\ns_add_u32 s44, s44, s64\ns_add_u32 s44, s44, {OP}\ns_lshl_b32 s46, s{S_W}, 10")
    if big:
        A(f"s_lshl_b32 s45, s{sTC}, 3\ns_add_u32 s45, s45, s{sNB}\ns_lshl_b32 s45, s45, 8\ns_lshl_b32 s64, s{S_W}, 6\ns_add_u32 s45, s45, s64\ns_add_u32 s45, s45, {PV4}")
        A(f"v_lshrrev_b32 v0, 9, v4\nv_mul_u32_u24 v0, {PL}, v0\nv_and_b32 v7, 0x1f0, v4\ns_and_b32 s64, s{S_W}, 1\ns_lshl_b32 s64, s64, 7\nv_xor_b32 v7, s64, v7\nv_add_u32 v7, v0, v7")
    for i in range(nacc):
        A(f"s_mov_b32 s64, {rows[i]*5120}\nbuffer_store_dword v{ACC+i}, v{vOut}, {S(R2)}, s64 offen offset:2560 {AUX[OPT['sty']]}")
    PIT = 336
    if big:
        if OPT["otouch"]:
            A(f"v_lshrrev_b32 v0, 6, v4\nv_min_u32 v0, 9, v0\nv_mul_u32_u24 v0, {PL}, v0\nv_and_b32 v1, 0x30, v4\nv_lshl_add_u32 v0, v1, 3, v0")
            A(f"s_and_b32 s64, s{sNB}, 3\ns_mul_i32 s64, s64, {10*PL}\ns_mul_i32 s65, s{S_W}, {38*PL}\ns_add_u32 s47, s64, s65\ns_add_u32 s47, s47, s44")
        spoll([(8, 8, 0)], 45)
        if OPT["otouch"]:
            A(f"buffer_load_dword v8, v0, {S(WS)}, s47 offen sc1")
    A("s_barrier")
    stamp(8); fst(5, 0)
    def odma(i):
        for st in (i, 5 + i):
            A(f"s_add_u32 m0, s46, {8192*st}\ns_add_u32 s64, s44, {16*PL*st}")
            dma(vOs, WS, 64, "sc1")

    odma(0)
    if OPT["opord"]:
        A("s_barrier")
    for i in range(1, 5):
        odma(i)
    A(f"v_mbcnt_lo_u32_b32 v0, -1, 0\nv_mbcnt_hi_u32_b32 v0, -1, v0")
    if big:
        A(f"s_lshr_b32 s64, s{S_W}, 1\ns_mul_i32 s65, s64, {40960 + 32*PIT}\ns_and_b32 s66, s{S_W}, 1\ns_lshl_b32 s66, s66, 7\ns_add_u32 s65, s65, s66")
        A(f"v_and_b32 v2, 31, v0\nv_mul_u32_u24 v2, {PIT}, v2\nv_lshrrev_b32 v3, 5, v0\nv_lshl_add_u32 v2, v3, 4, v2\nv_add_u32 v2, s65, v2")
        A(f"s_mul_i32 s67, s64, {-64*PIT & 0xffffffff}\ns_add_u32 s67, s67, {32*PIT}\nv_add_u32 v7, s67, v2")
        A(f"v_xor_b32 v1, 256, v{vO}")
    else:
        A(f"s_mul_i32 s65, s95, {16*PIT}\ns_add_u32 s65, s65, 256\nv_and_b32 v2, 15, v0\nv_mul_u32_u24 v2, {PIT}, v2\nv_lshrrev_b32 v3, 4, v0\nv_lshl_add_u32 v2, v3, 4, v2\nv_add_u32 v2, s65, v2")
        for i in range(4):
            A(f"v_mov_b32 v{8+i}, 0")
    A(f"s_lshl_b32 s64, s{S_W}, 6\nv_add_u32 v0, s64, v0\nv_mul_u32_u24 v3, 3277, v0\nv_lshrrev_b32 v3, 16, v3\nv_mul_u32_u24 v5, 20, v3\nv_sub_u32 v0, v0, v5\nv_lshlrev_b32 v0, 4, v0")
    A(f"s_mul_i32 s64, s{sTC}, {64*5120}\ns_mul_i32 s65, s{sNB}, 320\ns_add_u32 s47, s64, s65\nv_mul_u32_u24 v5, 5120, v3\nv_add_u32 v5, v5, v0\nv_mul_u32_u24 v3, {PIT}, v3\nv_add_u32 v3, v3, v0")
    steps = {0: 8, 4: 4, 12: 0}
    if big:
        ne = uid("NE")
        A(f"s_cmp_lg_u32 s{sTC}, 31\ns_cbranch_scc1 {ne}\ns_or_b32 s64, s{sNB}, s{S_W}\ns_cmp_lg_u32 s64, 0\ns_cbranch_scc1 {ne}")
        A(f"s_waitcnt vmcnt(0)\nv_mov_b32 v8, s{S_E}\ns_mov_b64 exec, 1\nbuffer_store_dword v8, off, {S(WS)}, 0 offset:{EPOCH} sc1\ns_mov_b64 exec, -1\ns_waitcnt vmcnt(0)\n{ne}:")
        free = [8, 12]
        loc = {}
        order = []

        def issue(n, t):
            f = free.pop(0)
            loc[(n, t)] = f
            i, u = n >> 2, n & 3
            for j in range(2):
                A(f"ds_read_b64 {vr(f+2*j,2)}, v{vO if t == 0 else 1} offset:{8192*i + 2048*u + 512*j}")
            order.append((n, t))

        todo = [(n, t) for n in range(16) for t in range(2)] + [(n, 1) for n in range(16, 20)] + [(n, 0) for n in range(16, 20)]
        nxt = 0
        done = {}
        lim = 0
        for k, (n, t) in enumerate(todo):
            if n in steps and t == 0:
                if n == 0:
                    fst(5, 1)
                A(f"s_waitcnt vmcnt({steps[n]})\ns_barrier")
                fst(5, 2 + list(steps).index(n))
                lim = {0: 8, 4: 24, 12: 40}[n]
            while nxt < lim and free and nxt - k < 6:
                issue(*todo[nxt]); nxt += 1
            pend = len(order) - 1 - order.index((n, t))
            if (n, t) == (17, 0):
                assert nxt == len(todo)
                A("s_nop 7\ns_waitcnt lgkmcnt(0)")
            elif t == 0 and n > 17:
                for g in (2 * (n - 18), 2 * (n - 18) + 1):
                    A(f"ds_write_b128 v7, {vr(ACC+16+4*g,4)} offset:{32*g}")
            else:
                A(f"s_waitcnt lgkmcnt({2*pend})")
            c = "0" if n == 0 else vr(ACC + 16 * t, 16)
            A(f"{MF} {vr(ACC+16*t,16)}, {vr(WF+4*n,4)}, {vr(loc[(n,t)],4)}, {c}")
            free.append(loc[(n, t)])
            done[n] = done.get(n, 0) + 1
            if done[n] == 2:
                free.append(WF + 4 * n)
        fst(5, 5)
        A("s_nop 11")
        for g in range(4):
            A(f"ds_write_b128 v2, {vr(ACC+4*g,4)} offset:{32*g}")
    else:
        first = True
        for si, (i0, i1) in enumerate(((0, 1), (1, 3), (3, 5))):
            A(f"s_waitcnt vmcnt({[8, 4, 0][si]})\ns_barrier")
            for i in range(i0, i1):
                f = 16 + 16 * (i & 1)
                for h in range(2):
                    for U in range(2):
                        for j in range(2):
                            A(f"ds_read_b64 {vr(f+8*h+4*U+2*j,2)}, v{vO+h} offset:{8192*i + 4096*U + 512*j}")
            for i in range(i0, i1):
                f = 16 + 16 * (i & 1)
                for h in range(2):
                    for U in range(2):
                        A(f"s_waitcnt lgkmcnt({8*(i1-1-i) + 6 - 4*h - 2*U})")
                        c = "0" if first else vr(ACC, 4)
                        first = False
                        A(f"{MF} {vr(ACC,4)}, {vr(WF+40*h+8*i+4*U,4)}, {vr(f+8*h+4*U,4)}, {c}")
        A(f"ds_write_b128 v2, v[8:11] offset:40960\ns_nop 6\nds_write_b128 v2, {vr(ACC,4)}")
    A("s_waitcnt lgkmcnt(0)\ns_barrier")
    fst(5, 6)
    if not big:
        A(f"s_cmp_ge_u32 s{S_W}, 5\ns_cbranch_scc1 L_B_DONE")
    for m in range(4):
        A(f"ds_read_b128 {vr(48+8*m,4)}, v3 offset:{16*PIT*m}\nds_read_b128 {vr(52+8*m,4)}, v3 offset:{40960 + 16*PIT*m}")
    for m in range(4):
        A(f"s_waitcnt lgkmcnt({6-2*m})")
        for c in range(2):
            A(f"v_pk_add_f32 {vr(48+8*m+2*c,2)}, {vr(48+8*m+2*c,2)}, {vr(52+8*m+2*c,2)}")
        A(f"buffer_store_dwordx4 {vr(48+8*m,4)}, v5, {S(R2)}, s47 offen {AUX[OPT['sto']]}")
        if m < 3:
            A(f"s_add_u32 s47, s47, {16*5120}")
    if not big:
        A("L_B_DONE:")
    fst(5, 7)
    stamp(9)
    if OPT["stamps"]:
        A("s_waitcnt vmcnt(0)")
        stamp(10); fst(5, 8)
    dump_stamps(12)
    A("s_endpgm")


def wrap_mfma():
    out, on, i = [], False, 0
    for k, l in enumerate(L):
        if l.startswith(";MLO_ON"):
            on = 2 if l.endswith("2") else 1
            continue
        if l == ";MLO_OFF":
            on = False
            continue
        if on and OPT["mlo"] and l.startswith("v_mfma"):
            if not L[k - 1].startswith("v_mfma"):
                out.append(f"s_setprio {OPT['mlv']}")
            out.append(l)
            if not L[k + 1].startswith("v_mfma"):
                out.append("s_setprio 3")
                if on == 1 and OPT.get("pace"):
                    out.append(f"s_sleep {OPT['pace']}")
            elif on == 1 and OPT.get("pace1"):
                out.append(f"s_sleep {OPT['pace1']}")
        else:
            out.append(l)
    L[:] = out


DOC = """\
;    softmax: p = exp2(s) is accumulated unshifted together with its row sum l (ones rows of the P.V product). The shift 0 is only
"""


def build():
    hdr = open("cdna_kernels/" + NAME + ".s.ref").read().split("\n")
    out = [l for l in hdr if l.startswith(";") and "@launch" not in l]
    out.append("; @launch grid=(512,1,1) block=(512,1,1) lds=81920")
    out.append('.amdgcn_target "amdgcn-amd-amdhsa--gfx950"')
    out.append(DOC)
    out.append(".text")
    out.append(f".globl {NAME}_kernel\n.p2align 8\n.type {NAME}_kernel,@function\n{NAME}_kernel:")
    qkv()
    attention()
    qkv_idle()
    role_b()
    A("L_END:\ns_endpgm")
    wrap_mfma()
    for l in L:
        out.append(l if l.endswith(":") or l.startswith(".") else "    " + l)
    out.append(f""".section .rodata,"a"
.p2align 6
.amdhsa_kernel {NAME}_kernel
  .amdhsa_next_free_vgpr 128
  .amdhsa_next_free_sgpr 102
  .amdhsa_accum_offset 128
  .amdhsa_group_segment_fixed_size 0
  .amdhsa_kernarg_size 120
  .amdhsa_user_sgpr_count 2
  .amdhsa_user_sgpr_kernarg_segment_ptr 1
  .amdhsa_system_sgpr_workgroup_id_x 1
.end_amdhsa_kernel""")
    return "\n".join(out) + "\n"


if __name__ == "__main__":
    txt = build()
    open(sys.argv[1], "w").write(txt)
    sys.path.insert(0, "gen")
    import hazard
    e = hazard.check(txt)
    print("\n".join(e) if e else "hazard check: clean")
```

```python
import sys, struct, math

NAME = "concat_heads__softmax_full_mha__ssm_conv_s5__prompt"

OPT = dict(stamps=0, spin=400000, force_fb=0, g2s=6, g2q=6, tog=2, stg=1, g1p=0, g2p=0, htouch=0, ctouch=1, sty=2, sto=2,
           cpre=1, lscan=0, brot=0, t1=0, mlo=1, gk=0, hs=16, qst=1, sp1=1, otouch=0, qord=1, lastw=1, mlv=0, wearly=1, fill0=16, nfill=4, post=1, q16=1, opord=1)
for a in sys.argv[2:]:
    k, v = a.split("=")
    OPT[k] = int(v)

PL = 16384
EPOCH = 0
F1 = 0x1000
F2 = 0x2000
F3 = 0x3000
F0 = 0x8000
F0B = 0x10000
F0C = 0x18000
STAMP = 0x20000
EB = 0x48000
PV1 = 0xA0000
PV4 = 0xB0000
PV2 = 0xC0000
PV3 = 0xD0000
QKVP = 0x100000
OP = 0xA00000
HB = 0xD00000
WS_USED = 0x1300000
OOB = 0x80000000
AUX = ['', 'nt', 'sc1', 'sc1 nt', 'sc0 sc1']

L = []


def A(s):
    for ln in s.strip("\n").split("\n"):
        L.append(ln.strip())


def f2u(x):
    return struct.unpack("<I", struct.pack("<f", x))[0]


def vr(a, n):
    return f"v[{a}:{a+n-1}]" if n > 1 else f"v{a}"


P_AX, P_WQKV, P_WO, P_BX, P_LRE, P_LIM, P_BRE, P_BIM, P_CRE, P_CIM, P_LDT, P_DSK, P_OUT, P_DBG = range(8, 36, 2)
S_E = 6
S_W = 40
R0, R1, R2, WS, R3 = 44, 48, 52, 56, 60
WSP = f"s[{WS}:{WS+1}]"
EP = f"s[{S_E}:{S_E+1}]"
ST0 = 70
_uid = [0]


def uid(p):
    _uid[0] += 1
    return f"{p}_{_uid[0]}"


def srd(r, p, n):
    A(f"s_mov_b32 s{r}, s{p}\ns_mov_b32 s{r+1}, s{p+1}\ns_mov_b32 s{r+2}, {n}\ns_mov_b32 s{r+3}, 0x20000")


def S(r):
    return f"s[{r}:{r+3}]"


def stamp(k):
    if OPT["stamps"] and not OPT.get("fm"):
        A(f"s_memrealtime s[{ST0+2*k}:{ST0+2*k+1}]")


def cstamp(k):
    if OPT["stamps"] and not OPT.get("fm"):
        A(f"s_memtime s[{ST0+2*k}:{ST0+2*k+1}]")


def fst(mode, k):
    if OPT.get("fm") == mode:
        A(f"s_memtime s[{ST0+2*k}:{ST0+2*k+1}]")


def rst(mode, k):
    if OPT.get("fm") == mode:
        A(f"s_memrealtime s[{ST0+2*k}:{ST0+2*k+1}]")


def dump_stamps(n, role="B"):
    if not OPT["stamps"]:
        return
    if OPT.get("amp"):
        if (role == "A") == (OPT["sel"] < 256):
            sk, lp = uid("AK"), uid("AL")
            A(f"s_waitcnt lgkmcnt(0)\ns_cmp_lg_u32 s2, {OPT['sel']}\ns_cbranch_scc1 {sk}\ns_cmp_lg_u32 s{S_W}, 0\ns_cbranch_scc1 {sk}")
            A(f"s_sub_u32 s64, s{ST0+2*OPT['k1']}, s{ST0+2*OPT['k0']}\ns_mul_i32 s64, s64, {OPT['amp']}\ns_min_u32 s64, s64, 100000\ns_add_u32 s64, s64, s{ST0}")
            A(f"{lp}:\ns_memrealtime s[66:67]\ns_waitcnt lgkmcnt(0)\ns_sub_u32 s66, s66, s64\ns_cmp_lt_i32 s66, 0\ns_cbranch_scc1 {lp}\n{sk}:")
        return
    sk = uid("SK")
    A(f"s_waitcnt lgkmcnt(0)\ns_cmp_lg_u32 s{S_W}, {OPT.get('fw', 0)}\ns_cbranch_scc1 {sk}")
    A(f"s_lshl_b32 s64, s2, 7\ns_add_u32 s64, s64, {STAMP}\ns_mov_b64 exec, 1")
    for k in range(n):
        A(f"v_mov_b32 v120, s{ST0+2*k}\nv_mov_b32 v121, s{ST0+2*k+1}")
        A(f"buffer_store_dwordx2 v[120:121], off, {S(WS)}, s64 offset:{8*k}")
        A("s_waitcnt vmcnt(0)")
    A(f"s_mov_b64 exec, -1\n{sk}:")


def flag_store(soff, t=120, wave=0):
    sk = uid("FS")
    A(f"s_cmp_lg_u32 s{S_W}, {wave}\ns_cbranch_scc1 {sk}")
    A(f"v_mov_b32 v{t}, s{S_E}\nv_mov_b32 v{t+1}, s{S_E+1}\ns_mov_b64 exec, 1")
    A(f"buffer_store_dwordx2 v[{t}:{t+1}], off, {S(WS)}, s{soff} sc1")
    A(f"s_mov_b64 exec, -1\n{sk}:")


def poll(vaddrs, t=120):
    lp, dn = uid("PL"), uid("PD")
    A(f"s_mov_b32 s64, {OPT['spin']}\n{lp}:")
    for i, va in enumerate(vaddrs):
        A(f"buffer_load_dwordx2 v[{t+2*i}:{t+2*i+1}], v{va}, {S(WS)}, 0 offen sc1")
    A("s_waitcnt vmcnt(0)")
    for i, va in enumerate(vaddrs):
        if i == 0:
            A(f"v_cmp_ne_u64 vcc, {EP}, v[{t}:{t+1}]")
        else:
            A(f"v_cmp_ne_u64 s[66:67], {EP}, v[{t+2*i}:{t+2*i+1}]\ns_or_b64 vcc, vcc, s[66:67]")
    A(f"s_cbranch_vccz {dn}\ns_sub_u32 s64, s64, 1\ns_cmp_lg_u32 s64, 0\ns_cbranch_scc1 {lp}\n{dn}:")


def spoll(blocks, soff, need=None, cnt=64, msk=65):
    lp, dn = uid("SP"), uid("SD")
    A(f"s_mov_b32 s{cnt}, {OPT['spin']}\n{lp}:")
    tot = 0
    for dst, n, off in blocks:
        A(f"s_load_dwordx{2*n} s[{dst}:{dst+2*n-1}], {WSP}, s{soff} offset:{off} glc")
        tot += n
    A(f"s_mov_b32 s{msk}, 0\ns_waitcnt lgkmcnt(0)")
    for dst, n, off in blocks:
        for i in range(n):
            A(f"s_cmp_eq_u64 s[{dst+2*i}:{dst+2*i+1}], {EP}\ns_addc_u32 s{msk}, s{msk}, s{msk}")
    if need is None:
        A(f"s_cmp_eq_u32 s{msk}, {(1 << tot) - 1}")
    else:
        A(f"s_andn2_b32 s{msk}, s{need}, s{msk}\ns_cmp_eq_u32 s{msk}, 0")
    A(f"s_cbranch_scc1 {dn}")
    if tot <= 8:
        A("s_sleep 2")
    A(f"s_sub_u32 s{cnt}, s{cnt}, 1\ns_cmp_lg_u32 s{cnt}, 0\ns_cbranch_scc1 {lp}\n{dn}:")


def bhi():
    A("s_setprio 3")


def blo():
    A("s_setprio 0")


def dma(vaddr, rsrc, soff, aux=""):
    A(f"buffer_load_dwordx4 v{vaddr}, {S(rsrc)}, s{soff} offen {aux} lds".replace("  ", " "))


def epoch_fix():
    A(f"s_mul_i32 s{S_E}, s{S_E}, 0x9E3779B1\ns_add_u32 s{S_E}, s{S_E}, 0x7F4A7C15\ns_xor_b32 s{S_E+1}, s{S_E}, 0x5bd1e995")


MF32 = "v_mfma_f32_32x32x16_bf16"
MF8 = "v_mfma_f32_32x32x8_bf16"
MF16 = "v_mfma_f32_16x16x32_bf16"

PS = 2080
SLOT = 11 * PS
RED = 2 * SLOT
BADW = 81912
sST0, sST1, sF1, sSC, sH, sQB, sG, sLd, sQ, sPV1, sNEED, sH1, sH2, sPass, sChk, sO0, sO1, sPV4 = \
    8, 9, 10, 12, 14, 15, 16, 19, 22, 25, 26, 27, 28, 29, 30, 31, 32, 33
vD, vTok, vK, vK1, vV, vF6, vF7, vPush, vQa, vOnes = 123, 124, 125, 126, 127, 121, 122, 120, 112, 116


def att_setup(sRB, sCB):
    G = []
    g = G.append
    g(f"s_and_b32 s34, s2, 7\ns_bfe_u32 s{sQB}, s2, 0x30003\ns_bfe_u32 s35, s2, 0x20006\ns_lshl_b32 s{sH}, s34, 2\ns_add_u32 s{sH}, s{sH}, s35")
    g(f"s_mul_i32 s36, s{sH}, 5\ns_add_u32 s37, s36, 4\ns_lshr_b32 s38, s36, 5\ns_lshr_b32 s37, s37, 5\ns_sub_u32 s37, s37, s38")
    g(f"s_lshl_b32 s{sPV1}, s{sH}, 3\ns_add_u32 s{sPV1}, s{sPV1}, s{sQB}\ns_lshl_b32 s{sPV1}, s{sPV1}, 8\ns_add_u32 s{sPV1}, s{sPV1}, {PV1}")
    g(f"s_mov_b32 s{sNEED}, 0xf0f0c\ns_cmp_eq_u32 s37, 0\ns_cselect_b32 s{sNEED}, s{sNEED}, 0xfffff\ns_mov_b32 s{sPass}, 0\ns_min_u32 s{sChk}, s{S_W}, 1")
    g(f"v_bfe_u32 v11, v1, 4, 1\nv_mul_u32_u24 v11, s37, v11\nv_add_u32 v11, s38, v11\nv_lshrrev_b32 v14, 5, v1\nv_mul_u32_u24 v12, 15, v14\nv_max_u32 v12, v11, v12")
    g(f"v_mul_u32_u24 v13, 5, v14\nv_add3_u32 v11, v11, v13, 5\nv_and_b32 v13, 15, v1\nv_lshlrev_b32 v15, 3, v13\nv_add_u32 v15, {F1}, v15")
    g(f"v_lshl_add_u32 v{vF6}, v11, 7, v15\nv_lshl_add_u32 v{vF7}, v12, 7, v15\nv_lshlrev_b32 v{vD}, 4, v1")
    g(f"s_lshl_b32 s{sH1}, s2, 7\ns_add_u32 s{sH2}, s{sH1}, {F0B}\ns_add_u32 s{sH1}, s{sH1}, {F0}")
    for m in range(3):
        g(f"s_add_u32 s34, s{S_W}, {8*m}\ns_lshr_b32 s35, s34, 1\ns_and_b32 s34, s34, 1\ns_lshl_b32 s34, s34, 10\ns_mul_i32 s{sLd+m}, s35, {PS}\ns_add_u32 s{sLd+m}, s{sLd+m}, s34")
        g(f"s_cmp_ge_u32 s35, 5\ns_cselect_b32 s39, 155, 0\ns_add_u32 s35, s35, s39\ns_add_u32 s35, s35, s36\ns_mul_i32 s35, s35, {PL}\ns_add_u32 s35, s35, s34\ns_add_u32 s{sG+m}, s35, {QKVP + 160*PL}")
    g(f"s_lshr_b32 s34, s{S_W}, 1\ns_min_u32 s34, s34, 2\ns_mul_i32 s34, s34, {SLOT}\ns_and_b32 s35, s{S_W}, 1\ns_lshl_b32 s35, s35, 10\ns_add_u32 s34, s34, s35\ns_add_u32 s34, s34, {10*PS}\nv_add_u32 v{vOnes}, s34, v{vD}")
    g(f"s_and_b32 s34, s{S_W}, 3\ns_lshl_b32 s34, s34, 6\ns_lshr_b32 s35, s{S_W}, 2\ns_lshl_b32 s39, s35, 5\ns_add_u32 s34, s34, s39\ns_lshl_b32 s35, s35, 7")
    g(f"v_lshl_add_u32 v15, v13, 1, s34\nv_lshlrev_b32 v{vTok}, 3, v15\nv_bfe_u32 v12, v1, 4, 1\nv_lshl_add_u32 v15, v12, 3, v{vTok}\nv_xor_b32 v16, 256, v15")
    g(f"v_mul_u32_u24 v17, {2*PL}, v14\nv_add_u32 v{vQa}, v17, v15\nv_add_u32 v{vQa+2}, v17, v16\nv_lshlrev_b32 v17, 31, v14\nv_or_b32 v{vQa+1}, v17, v15\nv_or_b32 v{vQa+3}, v17, v16")
    g(f"v_and_b32 v15, 31, v1\nv_add_u32 v15, s35, v15\nv_lshlrev_b32 v15, 3, v15\nv_mul_u32_u24 v16, {2*PS}, v14\nv_add_u32 v{vK}, v16, v15")
    g(f"v_mul_u32_u24 v16, {6*PS}, v14\nv_add_u32 v16, {4*PS}, v16\nv_add_u32 v{vK1}, v16, v15\nv_and_b32 v16, 3, v1\nv_lshl_add_u32 v16, v12, 2, v16\nv_min_u32 v16, 5, v16")
    g(f"v_add_u32 v16, 5, v16\nv_mul_u32_u24 v16, {PS}, v16\nv_bfe_u32 v17, v1, 2, 2\nv_lshl_add_u32 v17, v14, 2, v17\nv_add_u32 v17, s35, v17\nv_lshl_add_u32 v{vV}, v17, 3, v16")
    g(f"s_mul_i32 s34, s36, {PL}\ns_lshl_b32 s35, s{sQB}, 11\ns_add_u32 s34, s34, s35\ns_add_u32 s{sQ}, s34, {QKVP}\ns_add_u32 s{sQ+1}, s{sQ}, {PL}\ns_add_u32 s{sQ+2}, s{sQ}, {4*PL}")
    g(f"s_add_u32 s{sO0}, s34, {OP}\ns_add_u32 s{sO1}, s{sO0}, {4*PL}\ns_lshl_b32 s{sPV4}, s{sQB}, 13\ns_lshl_b32 s35, s{sH}, 3\ns_add_u32 s{sPV4}, s{sPV4}, s35\ns_add_u32 s{sPV4}, s{sPV4}, {PV4}")
    if sRB is None:
        g(f"v_mov_b32 v{vPush}, {OOB}\ns_sub_u32 s{sF1}, s2, 240\ns_lshl_b32 s{sF1}, s{sF1}, 3\ns_add_u32 s{sF1}, s{sF1}, {F1 + 15*128}")
        return G
    c = 20 ** -0.5 * math.log2(math.e)
    g(f"s_cmp_lt_u32 s{sCB}, 5\ns_cselect_b32 s{sSC}, {f2u(c)}, 1.0\ns_mov_b32 s{sSC+1}, s{sSC}\ns_lshl_b32 s{sF1}, s{sCB}, 7\ns_lshl_b32 s34, s{sRB}, 3\ns_add_u32 s{sF1}, s{sF1}, s34\ns_add_u32 s{sF1}, s{sF1}, {F1}")
    g(f"s_mul_i32 s{sST0}, s{sCB}, {32*PL}\ns_lshl_b32 s34, s{sRB}, 10\ns_add_u32 s{sST0}, s{sST0}, s34\ns_add_u32 s{sST0}, s{sST0}, {QKVP}\ns_add_u32 s{sST1}, s{sST0}, {4*PL}")
    g(f"s_cmp_ge_u32 s{sCB}, 10\ns_cselect_b32 s38, 10, 5\ns_cselect_b32 s35, 8, 0\ns_sub_u32 s34, s{sCB}, s38\ns_add_u32 s35, s35, s{sRB}\ns_cmp_lt_u32 s{sRB}, 4\ns_cselect_b32 s37, 1, 0")
    g(f"s_and_b32 s38, s{sRB}, 1\ns_add_u32 s38, s38, 16\ns_cmp_lt_u32 s{sCB}, 5\ns_cselect_b32 s34, s{sCB}, s34\ns_cselect_b32 s35, s38, s35\ns_cselect_b32 s36, 2, 4\ns_cselect_b32 s37, 2, s37")
    g(f"s_mul_i32 s38, s34, {6554*32}\ns_lshr_b32 s38, s38, 15\nv_lshrrev_b32 v11, 3, v1\nv_add_u32 v11, s38, v11\nv_mul_u32_u24 v12, 5, v11\nv_lshrrev_b32 v13, 5, v12\ns_lshr_b32 s39, s{sRB}, 1")
    g(f"v_cmp_ge_u32 s[68:69], s34, v13\nv_cmp_ne_u32 vcc, s34, v13\nv_and_b32 v13, 7, v1\nv_lshl_add_u32 v11, v11, 3, v13\nv_cndmask_b32 v12, 0, 1, vcc\nv_mul_u32_u24 v12, s36, v12\nv_add_u32 v12, s35, v12")
    g(f"v_cmp_eq_u32 vcc, s39, v13\ns_cmp_eq_u32 s37, 2\ns_cselect_b64 vcc, vcc, -1\ns_and_b64 s[68:69], s[68:69], vcc\ns_cmp_eq_u32 s37, 0\ns_cselect_b64 s[68:69], 0, s[68:69]")
    g(f"v_lshlrev_b32 v11, 8, v11\nv_lshl_add_u32 v11, v12, 3, v11\nv_add_u32 v11, {PV1}, v11\nv_mov_b32 v{vPush}, {OOB}\nv_cndmask_b32 v{vPush}, v{vPush}, v11, s[68:69]")
    return G


def qkv():
    sRB, sCB, sKX, sKW, sMX, sMW, sT = 41, 42, 43, 64, 65, 66, 67
    vX0, vX1, vWs, vWr, vXr = 2, 3, 4, 5, 6
    ACC = 32
    FR = [64, 88]
    A("s_cmp_ge_u32 s2, 256\ns_cbranch_scc1 L_ROLE_B")
    stamp(0); fst(7, 0)
    A(f"s_load_dwordx2 s[{R0}:{R0+1}], s[0:1], 0\ns_load_dwordx2 s[{R1}:{R1+1}], s[0:1], 8\ns_load_dwordx2 s[{WS}:{WS+1}], s[0:1], 112")
    A(f"v_lshrrev_b32 v2, 6, v0\nv_and_b32 v1, 63, v0\nv_readfirstlane_b32 s{S_W}, v2")
    A(f"s_lshr_b32 s{sCB}, s2, 4\ns_and_b32 s{sCB}, s{sCB}, 14\ns_bfe_u32 s{sT}, s2, 0x10002\ns_or_b32 s{sCB}, s{sCB}, s{sT}")
    A(f"s_lshr_b32 s{sRB}, s2, 1\ns_and_b32 s{sRB}, s{sRB}, 12\ns_and_b32 s{sT}, s2, 3\ns_or_b32 s{sRB}, s{sRB}, s{sT}")
    A(f"s_cmp_eq_u32 s{sCB}, 15\ns_cselect_b32 s{sT}, 8, 0\ns_add_u32 s{sRB}, s{sRB}, s{sT}\ns_min_u32 s{sCB}, s{sCB}, 14")
    if OPT["qst"]:
        A(f"s_mov_b32 s{sKX}, 0")
    else:
        A(f"s_and_b32 s{sKX}, s2, 7\ns_mul_i32 s{sKW}, s{sKX}, {2*122880}\ns_lshl_b32 s{sKX}, s{sKX}, 7")
    A(f"s_lshl_b32 s{sT}, s{sRB}, 7\ns_lshr_b32 s68, s{S_W}, 1\ns_lshl_b32 s68, s68, 5\ns_add_u32 s{sT}, s{sT}, s68\ns_and_b32 s68, s{S_W}, 1\ns_add_u32 s{sT}, s{sT}, s68")
    A(f"v_lshrrev_b32 v10, 3, v1\nv_lshl_add_u32 v10, v10, 1, s{sT}\nv_mul_u32_u24 v10, 1280, v10")
    A(f"v_lshrrev_b32 v11, 4, v1\nv_and_b32 v12, 7, v1\nv_xor_b32 v12, v12, v11\nv_lshl_add_u32 v{vX0}, v12, 4, v10")
    A(f"s_lshl_b32 s{sMX}, s{S_W}, 11\ns_mov_b32 s{R0+2}, 2621440\ns_mov_b32 s{R0+3}, 0x20000\ns_mov_b32 m0, s{sMX}")
    A("s_cmp_ge_u32 s2, 240\ns_cbranch_scc1 L_QKV_IDLE")
    fst(7, 1)
    A("s_waitcnt lgkmcnt(0)")
    issued = []

    def dmaX(Sx, between=None):
        if OPT["qst"]:
            for i in range(2):
                if Sx or i:
                    A(f"s_add_u32 m0, s{sMX}, {(Sx % 3) * 16384 + i * 1024}")
                    A(f"s_movk_i32 s{sKX}, {128 * Sx}" if i == 0 else "s_nop 0")
                dma(vX0 + i, R0, sKX)
                issued.append(("X", Sx))
                if between and i == 0:
                    between()
            return
        for i in range(2):
            if Sx or i:
                A(f"s_add_u32 m0, s{sMX}, {(Sx % 3) * 16384 + i * 1024}\ns_nop 0")
            dma(vX0 + i, R0, sKX)
            issued.append(("X", Sx))
            if between and i == 0:
                between()
        A(f"s_add_u32 s{sKX}, s{sKX}, 128\ns_cmp_eq_u32 s{sKX}, 1280\ns_cselect_b32 s{sKX}, 0, s{sKX}")

    def dmaW(s):
        if OPT["qst"]:
            A(f"s_add_u32 m0, s{sMW}, {(s % 4) * 8192}\ns_mov_b32 s{sKW}, {122880 * s}")
            dma(vWs, R1, sKW)
            issued.append(("W", s))
            return
        A(f"s_add_u32 m0, s{sMW}, {(s % 4) * 8192}\ns_nop 0")
        dma(vWs, R1, sKW)
        issued.append(("W", s))
        A(f"s_add_u32 s{sKW}, s{sKW}, 122880\ns_cmp_eq_u32 s{sKW}, 2457600\ns_cselect_b32 s{sKW}, 0, s{sKW}")

    dmaX(0, lambda: A(f"v_xor_b32 v{vX1}, 64, v{vX0}\nv_add_u32 v{vX1}, 20480, v{vX1}"))
    A(f"s_lshl_b32 s68, s{S_W}, 2\nv_add_u32 v10, s68, v11\nv_mul_u32_u24 v10, 3840, v10")
    if OPT["q16"]:
        A(f"s_and_b32 s68, s{S_W}, 2\ns_lshl_b32 s68, s68, 2\nv_and_b32 v12, 15, v1\nv_lshl_add_u32 v13, v11, 1, s68\nv_xor_b32 v12, v12, v13\nv_lshl_add_u32 v10, v12, 4, v10")
    else:
        A(f"v_and_b32 v12, 15, v1\nv_lshlrev_b32 v13, 2, v11\nv_xor_b32 v12, v12, v13\nv_lshl_add_u32 v10, v12, 4, v10")
    A(f"s_lshl_b32 s68, s{sCB}, 8\nv_add_u32 v{vWs}, s68, v10\ns_lshl_b32 s{sMW}, s{S_W}, 10\ns_add_u32 s{sMW}, s{sMW}, 49152")
    A(f"s_mov_b32 s{R1+2}, 2457600\ns_mov_b32 s{R1+3}, 0x20000")
    dmaW(0)
    fst(7, 2)
    A(f"s_load_dword s{S_E}, {WSP}, {EPOCH}\ns_mov_b32 s{WS+2}, {WS_USED}\ns_mov_b32 s{WS+3}, 0x20000\ns_barrier")
    fst(7, 3)
    dmaW(1); dmaX(1); dmaW(2); dmaW(3); dmaX(2)
    fst(7, 4)
    if OPT["q16"]:
        A(f"v_lshrrev_b32 v10, 4, v1\nv_bfe_u32 v11, v1, 2, 2\nv_lshl_add_u32 v12, v10, 3, v11\nv_lshlrev_b32 v12, 8, v12")
        A(f"s_and_b32 s68, s{S_W}, 3\ns_lshl_b32 s68, s68, 2\nv_bfe_u32 v13, v1, 1, 1\nv_add_u32 v13, s68, v13")
        A(f"v_and_b32 v14, 1, v10\nv_lshl_add_u32 v11, v14, 2, v11\nv_lshlrev_b32 v11, 1, v11\nv_xor_b32 v13, v13, v11\nv_lshl_add_u32 v12, v13, 4, v12")
        A(f"v_and_b32 v14, 1, v1\nv_lshl_add_u32 v12, v14, 3, v12\nv_add_u32 v5, 49152, v12\nv_xor_b32 v6, 32, v5")
        A(f"s_lshr_b32 s68, s{S_W}, 2\ns_lshl_b32 s68, s68, 6\nv_and_b32 v11, 15, v1\nv_add_u32 v12, s68, v11\nv_lshlrev_b32 v12, 7, v12")
        A(f"v_lshrrev_b32 v13, 1, v11\nv_xor_b32 v13, v13, v10\nv_lshl_add_u32 v7, v13, 4, v12\nv_xor_b32 v8, 64, v7")
        fst(7, 5)
        G = [f"s_and_b32 s34, s{S_W}, 3\ns_lshl_b32 s34, s34, 3\nv_add_u32 v10, s34, v10\nv_mul_u32_u24 v10, {PL}, v10",
             f"v_and_b32 v11, 15, v1\nv_lshl_add_u32 v10, v11, 4, v10\ns_lshr_b32 s34, s{S_W}, 2\ns_lshl_b32 s34, s34, 9\nv_add_u32 v10, s34, v10"]
    else:
        A(f"v_lshrrev_b32 v10, 5, v1\nv_bfe_u32 v11, v1, 2, 2\nv_lshl_add_u32 v12, v10, 3, v11\nv_lshlrev_b32 v12, 8, v12")
        A(f"s_and_b32 s68, s{S_W}, 3\ns_lshl_b32 s68, s68, 2")
        A(f"v_bfe_u32 v13, v1, 4, 1\nv_lshlrev_b32 v13, 1, v13\nv_bfe_u32 v14, v1, 1, 1\nv_add3_u32 v13, v13, v14, s68")
        A(f"v_lshlrev_b32 v11, 2, v11\nv_xor_b32 v13, v13, v11\nv_lshl_add_u32 v12, v13, 4, v12")
        A(f"v_and_b32 v14, 1, v1\nv_lshl_add_u32 v12, v14, 3, v12\nv_add_u32 v{vWr}, 49152, v12")
        A(f"s_lshr_b32 s68, s{S_W}, 2\ns_lshl_b32 s68, s68, 6\nv_and_b32 v11, 31, v1\nv_add_u32 v12, s68, v11\nv_lshlrev_b32 v12, 7, v12")
        A(f"v_bfe_u32 v13, v1, 1, 3\nv_xor_b32 v13, v13, v10\nv_lshl_add_u32 v{vXr}, v13, 4, v12")
        for k in range(1, 4):
            A(f"v_xor_b32 v{vXr+k}, {32*k}, v{vXr}")
        fst(7, 5)
        G = [f"s_and_b32 s34, s{S_W}, 3\ns_lshl_b32 s34, s34, 3\nv_bfe_u32 v11, v1, 4, 1\nv_lshl_add_u32 v10, v11, 1, v10\nv_add_u32 v10, s34, v10\nv_mul_u32_u24 v10, {PL}, v10",
             f"v_and_b32 v11, 15, v1\nv_lshl_add_u32 v10, v11, 4, v10\ns_lshr_b32 s34, s{S_W}, 2\ns_lshl_b32 s34, s34, 9\nv_add_u32 v10, s34, v10"]
    GA = att_setup(sRB, sCB)
    post = []
    if OPT["post"]:
        post, GA = GA[:-8], GA[-8:]
    G += GA
    nf = OPT["nfill"]
    per = [G[len(G) * i // nf:len(G) * (i + 1) // nf] for i in range(nf)]

    def reads(s):
        f = FR[s & 1]
        ws, xs, b = (s % 4) * 8192, ((s >> 1) % 3) * 16384, s & 1
        if OPT["q16"]:
            for mi in range(2):
                for j in range(2):
                    A(f"ds_read_b64_tr_b16 {vr(f+4*mi+2*j, 2)}, v{5+mi} offset:{ws + 1024*j}")
                for ni in (2 * mi, 2 * mi + 1):
                    A(f"ds_read_b128 {vr(f+8+4*ni, 4)}, v{7+b} offset:{xs + 2048*ni}")
            return
        for u in range(2):
            for j in range(2):
                A(f"ds_read_b64_tr_b16 {vr(f+4*u+2*j, 2)}, v{vWr} offset:{ws + (16*u+4*j)*256}")
            for nt in range(2):
                A(f"ds_read_b128 {vr(f+8+8*u+4*nt, 4)}, v{vXr+2*b+u} offset:{xs + 4096*nt}")

    def mfma1(s, i):
        if s < 0:
            return
        f = FR[s & 1]
        if OPT["q16"]:
            for mi in range(2):
                a = ACC + 16 * mi + 4 * i
                A(f"{MF16} {vr(a,4)}, {vr(f+4*mi,4)}, {vr(f+8+4*i,4)}, {'0' if s == 0 else vr(a,4)}")
            return
        u, nt = i >> 1, i & 1
        c = "0" if (s == 0 and u == 0) else vr(ACC + 16 * nt, 16)
        A(f"{MF32} {vr(ACC+16*nt,16)}, {vr(f+4*u,4)}, {vr(f+8+8*u+4*nt,4)}, {c}")

    for s in range(20):
        last = max(i for i, t in enumerate(issued) if t in (("X", s >> 1), ("W", s)))
        A(f"s_waitcnt vmcnt({len(issued) - 1 - last})\ns_barrier")
        if s == 0:
            stamp(1); cstamp(10)
        if s < 4:
            fst(7, 6 + s)
        fill = per[s - OPT["fill0"]] if 0 <= s - OPT["fill0"] < nf else []
        mfma1(s - 1, 0)
        reads(s)
        mfma1(s - 1, 1)
        if s >= 1 and s + 3 < 20:
            dmaW(s + 3)
        if s & 1 == 0:
            pass
        else:
            for x in fill[:1]:
                A(x)
        mfma1(s - 1, 2)
        if s >= 2 and s % 2 == 0 and s // 2 + 2 < 10:
            dmaX(s // 2 + 2)
        if s == 1:
            epoch_fix()
        if OPT["gk"] and s == OPT["hs"]:
            A(f"s_lshl_b32 s3, s2, 7\ns_lshl_b32 s67, s{S_W}, 3\ns_add_u32 s3, s3, s67\ns_add_u32 s3, s3, {F0C}")
            A(f"v_mov_b32 v118, s{S_E}\nv_mov_b32 v119, s{S_E+1}\ns_mov_b64 exec, 1\nbuffer_store_dwordx2 v[118:119], off, {S(WS)}, s3 sc1\ns_mov_b64 exec, -1")
            issued.append(("H", 0))
        for x in (fill[1:] if s & 1 else fill):
            A(x)
        mfma1(s - 1, 3)
        A("s_waitcnt lgkmcnt(0)")
    for i in range(4):
        mfma1(19, i)
    stamp(2); cstamp(11); fst(8, 0)
    if OPT["q16"]:
        A("s_nop 2")
        for p in range(2):
            for mi in range(2):
                d = 64 + 8 * p + 4 * mi
                for k in range(2):
                    a = ACC + 16 * mi + 4 * (2 * p + k)
                    A(f"v_pk_mul_f32 {vr(a,2)}, {vr(a,2)}, s[{sSC}:{sSC+1}]\nv_pk_mul_f32 {vr(a+2,2)}, {vr(a+2,2)}, s[{sSC}:{sSC+1}]")
                    A(f"v_cvt_pk_bf16_f32 v{d+2*k}, v{a}, v{a+1}\nv_cvt_pk_bf16_f32 v{d+2*k+1}, v{a+2}, v{a+3}")
                A(f"buffer_store_dwordx4 {vr(d,4)}, v10, {S(WS)}, s{sST0 + mi} offen offset:{256*p} sc1")
    else:
        A("s_nop 10")
    for nt in range(0 if OPT["q16"] else 2):
        for g in range(4):
            a = ACC + 16 * nt + 4 * g
            A(f"v_pk_mul_f32 {vr(a,2)}, {vr(a,2)}, s[{sSC}:{sSC+1}]\nv_pk_mul_f32 {vr(a+2,2)}, {vr(a+2,2)}, s[{sSC}:{sSC+1}]")
            d = 64 + 8 * nt + 2 * g
            A(f"v_cvt_pk_bf16_f32 v{d}, v{a}, v{a+1}\nv_cvt_pk_bf16_f32 v{d+1}, v{a+2}, v{a+3}")
            if g & 1:
                d -= 2
                A(f"s_nop 0\nv_permlane16_swap_b32 v{d}, v{d+2}\nv_permlane16_swap_b32 v{d+1}, v{d+3}")
                A(f"buffer_store_dwordx4 {vr(d,4)}, v10, {S(WS)}, s{sST0 + (g >> 1)} offen offset:{256*nt} sc1")
    fst(8, 1)
    for x in post:
        A(x)


def qkv_idle():
    A(f"L_QKV_IDLE:\ns_waitcnt lgkmcnt(0)\ns_load_dword s{S_E}, {WSP}, {EPOCH}\ns_mov_b32 s{WS+2}, {WS_USED}\ns_mov_b32 s{WS+3}, 0x20000")
    for x in att_setup(None, None):
        A(x)
    A("s_waitcnt lgkmcnt(0)")
    epoch_fix()
    if OPT["gk"]:
        A(f"s_lshl_b32 s34, s2, 7\ns_add_u32 s34, s34, {F0C}")
        flag_store(34, t=118)
    A("s_branch L_PUB")


def attention():
    Q = [8, 14]; O = [20, 36]; SS = [52, 68]; Kf = [84, 90]; Vf = [96, 104]; P = 112
    A("L_PUB:")
    for i in range(4):
        A(f"v_mov_b32 v{4+i}, {(0x3f80 if i % 2 == 0 else 0) if OPT['sp1'] else 0x3f803f80}")
    A(f"v_mov_b32 v2, s{S_E}\nv_mov_b32 v3, s{S_E+1}\nv_mov_b32 v8, {BADW}\nv_mov_b32 v9, 0")
    A("s_waitcnt vmcnt(0)")
    fst(8, 2)
    A("s_barrier")
    fst(8, 3)
    A(f"s_cmp_lg_u32 s{S_W}, 0\ns_cbranch_scc1 L_NOPUSH")
    A(f"buffer_store_dwordx2 v[2:3], v{vPush}, {S(WS)}, 0 offen sc1\ns_mov_b64 exec, 1\nbuffer_store_dwordx2 v[2:3], off, {S(WS)}, s{sF1} sc1\ns_mov_b64 exec, -1\nL_NOPUSH:")
    stamp(3)
    A(f"ds_write_b128 v{vOnes}, v[4:7]\nds_write_b32 v8, v9\nds_write_b32 v8, v9 offset:4")
    A(f"s_waitcnt lgkmcnt(0)\ns_cmp_lg_u32 s{S_W}, 1\ns_cbranch_scc1 L_NOPOLL")
    spoll([(68, 8, 0), (84, 8, 64), (44, 4, 128)], sPV1, need=sNEED)
    A("L_NOPOLL:\ns_barrier")
    stamp(4); fst(8, 4)

    def dma_static(st, m, blk=None):
        if m == 2:
            sk2 = uid("D3")
            A(f"s_cbranch_vccz {sk2}")
        A(f"s_add_u32 m0, s{sLd+m}, {(st % 3) * SLOT}\ns_add_u32 s68, s{sG+m}, {2048 * st if blk is None else blk}")
        dma(vD, WS, 68, "sc1")
        if m == 2:
            A(f"{sk2}:")

    def qload(x):
        A(f"buffer_load_dwordx2 {vr(Q[x],2)}, v{vQa+2*x}, {S(WS)}, s{sQ} offen sc1")
        A(f"buffer_load_dwordx2 {vr(Q[x]+2,2)}, v{vQa+2*x}, {S(WS)}, s{sQ+1} offen sc1")
        A(f"buffer_load_dwordx2 {vr(Q[x]+4,2)}, v{vQa+1+2*x}, {S(WS)}, s{sQ+2} offen sc1")

    if OPT["qord"]:
        A(f"s_cmp_lt_u32 s{S_W}, 4\ns_cselect_b64 vcc, -1, 0")
        for m in range(3):
            dma_static(0, m)
        qload(0); qload(1)
        flag_store(sH1, t=2, wave=7)
        A("s_branch L_ATT_GO\nL_ATT_MAIN:")
        A(f"s_cmp_lt_u32 s{S_W}, 4\ns_cselect_b64 vcc, -1, 0")
        for m in range(3):
            dma_static(0, m)
        A("L_ATT_GO:\ns_waitcnt vmcnt(0)\ns_barrier")
    else:
        qload(0); qload(1)
        A("L_ATT_MAIN:")
        A(f"s_cmp_lt_u32 s{S_W}, 4\ns_cselect_b64 vcc, -1, 0")
        for m in range(3):
            dma_static(0, m)
        flag_store(sH1, t=2, wave=7)
        A("s_waitcnt vmcnt(0)\ns_barrier")
    stamp(5); cstamp(8); fst(8, 5)

    def kreads(kl, off):
        A(f"ds_read_b64 {vr(kl,2)}, v{vK} offset:{off}\nds_read_b64 {vr(kl+2,2)}, v{vK} offset:{off+PS}\nds_read_b64 {vr(kl+4,2)}, v{vK1} offset:{off}")

    def vreads(vl, off):
        for j in range(4):
            A(f"ds_read_b64_tr_b16 {vr(vl+2*j,2)}, v{vV} offset:{off+64*j}")

    kreads(Kf[0], 0)
    vreads(Vf[0], 0)
    for m in range(2):
        dma_static(1, m)
    A("s_waitcnt lgkmcnt(4)")
    A(f"{MF32} {vr(SS[0],16)}, {vr(Kf[0],4)}, {vr(Q[0],4)}, 0\n{MF8} {vr(SS[0],16)}, {vr(Kf[0]+4,2)}, {vr(Q[0]+4,2)}, {vr(SS[0],16)}")
    dma_static(1, 2)
    A("s_nop 9")

    def tail_addr():
        A(f"s_lshl_b32 s64, s{S_W}, 12\ns_add_u32 s64, s64, {RED}\ns_xor_b32 s65, s{S_W}, 4\ns_lshl_b32 s65, s65, 12\ns_add_u32 s65, s65, {RED}")
        A(f"v_add_u32 v2, s64, v{vD}\nv_add_u32 v3, s65, v{vD}\ns_movk_i32 s69, 0x100\nv_cmp_gt_u32 s[66:67], s69, v{vD}")
        A(f"v_lshrrev_b32 v4, 9, v{vD}\nv_bfe_u32 v5, v{vD}, 8, 1\nv_lshl_add_u32 v5, v5, 1, v4\nv_mul_u32_u24 v5, {PL}, v5\nv_add_u32 v5, v5, v{vTok}")
        A(f"v_mov_b32 v4, {OOB}\nv_cndmask_b32 v4, v4, v{vTok}, s[66:67]")

    def unit(st, x, kt):
        s = SS[x]; sn = SS[1 - x]
        nk = kt if x == 0 else kt + 1
        kf = Kf[nk & 1]; qn = Q[1 - x]
        pk = kt - 1 if x == 0 else kt
        vprev = Vf[pk & 1]; v = Vf[kt & 1]
        last = st == 7 and kt == 3
        e = lambda i: A(f"v_exp_f32 v{s+i}, v{s+i}")
        c = lambda i: A(f"v_cvt_pk_bf16_f32 v{P+i}, v{s+2*i}, v{s+2*i+1}")
        nxt_off = ((st + 1) % 3) * SLOT if kt == 3 else (st % 3) * SLOT + 256 * (kt + 1)
        if x == 1 and not last:
            A("s_waitcnt lgkmcnt(0)")
        if not (last and x == 1):
            A(f"{MF32} {vr(sn,16)}, {vr(kf,4)}, {vr(qn,4)}, 0")
        e(0); e(1); e(2); e(3)
        if not (last and x == 1):
            A(f"{MF8} {vr(sn,16)}, {vr(kf+4,2)}, {vr(qn+4,2)}, {vr(sn,16)}")
        c(0); c(1); e(4); e(5); e(6); e(7)
        if (st, x, kt) != (0, 0, 0):
            A(f"{MF32} {vr(O[1-x],16)}, {vr(vprev+4,4)}, {vr(P+4,4)}, {vr(O[1-x],16)}")
        if not last:
            if x == 0:
                if kt == 3:
                    A("s_waitcnt vmcnt(0)")
                    if st == 0:
                        fc = uid("FC")
                        A(f"s_cmp_lg_u32 s{sChk}, 0\ns_cbranch_scc1 {fc}")
                        A(f"v_cmp_ne_u64 s[64:65], {EP}, v[2:3]\nv_cmp_ne_u64 s[66:67], {EP}, v[4:5]\ns_or_b64 s[64:65], s[64:65], s[66:67]\ns_cbranch_scc0 {fc}")
                        poll([vF6, vF7], t=2)
                        A(f"s_mov_b64 vcc, -1\n{fc}:")
                    A("s_barrier")
                kreads(Kf[(kt + 1) & 1], nxt_off)
            else:
                vreads(Vf[(kt + 1) & 1], nxt_off)
        site = {(1, 3): (0, st + 2), (0, 0): (1, st + 1), (1, 0): (2, st + 1)}.get((x, kt))
        if site and 2 <= site[1] < 8:
            dma_static(site[1], site[0])
        if st == OPT["g2s"] - 1 and 2 * kt + x == OPT["g2q"]:
            flag_store(sH2, t=6, wave=7)
        if (st, x, kt) == (1, 1, 1):
            tail_addr()
        if (st, x, kt) == (0, 0, 2):
            nf = uid("NF")
            A(f"s_cmp_lg_u32 s{sChk}, 0\ns_cbranch_scc1 {nf}")
            A(f"buffer_load_dwordx2 v[2:3], v{vF6}, {S(WS)}, 0 offen sc1\nbuffer_load_dwordx2 v[4:5], v{vF7}, {S(WS)}, 0 offen sc1\n{nf}:")
        if OPT["tog"] == 1:
            A(f"s_setprio {1 - x}")
        if OPT["tog"] >= 2:
            gu = 8 * st + 2 * kt + x
            top = 3 if OPT["tog"] == 2 else 2
            if gu < 6:
                lv = {0: top, 1: top - 1, 3: top - 2, 5: top - 3}.get(gu) if top == 3 else {0: 2, 2: 1, 4: 0}.get(gu)
            elif gu >= 54:
                lv = {54: 3, 57: 2, 60: 1, 62: 0}.get(gu) if top == 3 else {54: 2, 58: 1, 61: 0}.get(gu)
            else:
                ph = (gu - 6) % 8
                lv = {0: 3, 2: 2, 4: 1, 6: 0}.get(ph) if top == 3 else {0: 2, 3: 1, 6: 0}.get(ph)
            if lv is not None:
                A(f"s_setprio {lv}")
        c(2); c(3); e(8); e(9); e(10); e(11)
        if x == 0:
            A(f"s_waitcnt lgkmcnt({0 if last else 3})")
        A(f"{MF32} {vr(O[x],16)}, {vr(v,4)}, {vr(P,4)}, {'0' if (st, kt) == (0, 0) else vr(O[x],16)}")
        c(4); c(5); e(12); e(13); e(14); e(15); c(6); c(7)

    for st in range(8):
        fst(10, st); rst(11, st)
        for kt in range(4):
            unit(st, 0, kt)
            unit(st, 1, kt)
    A(f"s_setprio 3\ns_nop 0\n{MF32} {vr(O[1],16)}, {vr(Vf[1]+4,4)}, {vr(P+4,4)}, {vr(O[1],16)}")
    stamp(6); cstamp(9); fst(6, 0); fst(10, 8); rst(11, 8)
    assert RED + 8 * 4096 <= BADW
    o = O[0]
    lo, hi = f2u(2.0 ** -60), f2u(2.0 ** 60)
    if OPT["force_fb"]:
        hi = f2u(2.0 ** -59)
    A(f"v_mov_b32 v70, 0\nv_mov_b32 v71, 0\nv_mov_b32 v80, {lo}\nv_mov_b32 v81, {hi}\nv_mov_b32 v83, {BADW}")
    A(f"v_lshlrev_b32 v82, 4, v{vD}\nv_mov_b32 v84, s{S_E}\nv_mov_b32 v85, s{S_E+1}\ns_nop 3")
    for g in range(4):
        A(f"ds_write_b128 v2, {vr(O[1]+4*g,4)} offset:{1024*g}")
    fst(6, 1)
    A("s_waitcnt lgkmcnt(0)\ns_barrier")
    fst(6, 2)
    for g in (3, 0, 1, 2):
        A(f"ds_read_b128 {vr(52+4*g,4)}, v3 offset:{1024*g}")
    A(f"s_waitcnt lgkmcnt(3)\nv_add_f32 v{o+12}, v{o+12}, v{52+12}\nv_rcp_f32 v68, v{o+12}")
    for g in range(3):
        a = o + 4 * g
        A(f"s_waitcnt lgkmcnt({2-g})\nv_pk_add_f32 {vr(a,2)}, {vr(a,2)}, {vr(52+4*g,2)}\nv_pk_add_f32 {vr(a+2,2)}, {vr(a+2,2)}, {vr(54+4*g,2)}")
        A(f"v_pk_mul_f32 {vr(a,2)}, {vr(a,2)}, v[68:69] op_sel_hi:[1,0]\nv_pk_mul_f32 {vr(a+2,2)}, {vr(a+2,2)}, v[68:69] op_sel_hi:[1,0]")
        A(f"v_cvt_pk_bf16_f32 v{72+2*g}, v{a}, v{a+1}\nv_cvt_pk_bf16_f32 v{73+2*g}, v{a+2}, v{a+3}")
        if g == 1:
            A(f"s_nop 0\nv_permlane16_swap_b32 v72, v74\nv_permlane16_swap_b32 v73, v75")
            A(f"buffer_store_dwordx4 v[72:75], v5, {S(WS)}, s{sO0} offen sc1")
        if g == 2:
            A(f"v_mov_b32 v78, v76\nv_mov_b32 v79, v77\ns_nop 0\nv_permlane16_swap_b32 v76, v78\nv_permlane16_swap_b32 v77, v79")
            A(f"buffer_store_dwordx4 v[76:79], v4, {S(WS)}, s{sO1} offen sc1")
    for i in range(0, 12, 2):
        A(f"v_pk_fma_f32 v[70:71], {vr(o+i,2)}, 0, v[70:71] op_sel_hi:[1,0,1]")
    A(f"v_cmp_u_f32 vcc, v70, v71\nv_cmp_ngt_f32 s[66:67], v{o+12}, v80\ns_or_b64 vcc, vcc, s[66:67]\nv_cmp_nlt_f32 s[66:67], v{o+12}, v81\ns_or_b64 vcc, vcc, s[66:67]")
    A(f"s_cbranch_vccz L_NOBAD\nv_mov_b32 v81, 1\nds_write_b32 v83, v81\nL_NOBAD:")
    fst(6, 3)
    if OPT["lastw"]:
        A("s_waitcnt lgkmcnt(0)\ns_barrier\nds_read_b32 v81, v83\nv_mov_b32 v86, 1\ns_waitcnt lgkmcnt(0)\nv_readfirstlane_b32 s64, v81")
        A(f"s_cmp_gt_u32 s64, s{sPass}\ns_cbranch_scc1 L_ATT_FB0")
        A("s_mov_b64 exec, 1\ns_waitcnt vmcnt(0)")
        fst(6, 4)
        A("ds_add_rtn_u32 v86, v83, v86 offset:4\ns_waitcnt lgkmcnt(0)\nv_readfirstlane_b32 s64, v86\ns_mov_b64 exec, -1")
        fst(6, 5)
        A(f"s_cmp_lg_u32 s64, 7\ns_cbranch_scc1 L_A_DONE\ns_mov_b32 exec_hi, 0\nbuffer_store_dwordx2 v[84:85], v82, {S(WS)}, s{sPV4} offen sc1\ns_mov_b64 exec, -1")
    else:
        A("s_waitcnt lgkmcnt(0)\ns_barrier\nds_read_b32 v81, v83\ns_waitcnt vmcnt(0) lgkmcnt(0)\nv_readfirstlane_b32 s64, v81")
        fst(6, 4)
        A("s_barrier")
        fst(6, 5)
        A(f"s_cmp_gt_u32 s64, s{sPass}\ns_cbranch_scc1 L_ATT_FB")
        A(f"s_cmp_lg_u32 s{S_W}, 0\ns_cbranch_scc1 L_A_DONE\ns_mov_b32 exec_hi, 0\nbuffer_store_dwordx2 v[84:85], v82, {S(WS)}, s{sPV4} offen sc1\ns_mov_b64 exec, -1")
    A("L_A_DONE:")
    stamp(7)
    dump_stamps(12, "A")
    A("s_endpgm")

    A("L_ATT_FB0:\ns_waitcnt vmcnt(0)\nL_ATT_FB:")
    A(f"s_mov_b32 s{sPass}, 1\ns_mov_b32 s{sChk}, 1\ns_mov_b32 s34, 0\ns_cmp_lt_u32 s{S_W}, 4\ns_cselect_b64 vcc, -1, 0")
    A("v_mov_b32 v20, 0xff800000\nv_mov_b32 v21, 0xff800000")
    A("L_FB_LOOP:\ns_barrier")
    for m in range(3):
        dma_static(0, m, "s34")
    A("s_waitcnt vmcnt(0)\ns_barrier")
    for kt in range(4):
        kreads(Kf[0], 256 * kt)
        A("s_waitcnt lgkmcnt(0)")
        for x in range(2):
            A(f"{MF32} {vr(SS[x],16)}, {vr(Kf[0],4)}, {vr(Q[x],4)}, 0\n{MF8} {vr(SS[x],16)}, {vr(Kf[0]+4,2)}, {vr(Q[x]+4,2)}, {vr(SS[x],16)}")
        A("s_nop 15")
        for x in range(2):
            for i in range(0, 16, 2):
                A(f"v_max3_f32 v{20+x}, v{SS[x]+i}, v{SS[x]+i+1}, v{20+x}")
    A("s_add_u32 s34, s34, 2048\ns_cmp_lt_u32 s34, 16384\ns_cbranch_scc1 L_FB_LOOP")
    for x in range(2):
        A(f"v_mov_b32 v22, v{20+x}\ns_nop 1\nv_permlane32_swap_b32 v{20+x}, v22\nv_max_f32 v{20+x}, v{20+x}, v22")
    A(f"s_barrier\nds_write_b64 v2, v[20:21]\ns_waitcnt lgkmcnt(0)\ns_barrier\nds_read_b64 v[22:23], v3\ns_waitcnt lgkmcnt(0)")
    A("v_max_f32 v20, v20, v23\nv_max_f32 v21, v21, v22\nv_cmp_le_u32 vcc, 32, v1")
    for x in range(2):
        A(f"v_sub_f32 v24, 0, v{20+x}\nv_and_b32 v25, 0xffff0000, v24\nv_sub_f32 v24, v24, v25\nv_and_b32 v26, 0xffff0000, v24\nv_sub_f32 v24, v24, v26")
        A(f"v_lshrrev_b32 v25, 16, v25\nv_or_b32 v25, v25, v26\nv_lshrrev_b32 v24, 16, v24")
        A(f"v_cndmask_b32 v{Q[x]+4}, v{Q[x]+4}, v25, vcc\nv_cndmask_b32 v{Q[x]+5}, v{Q[x]+5}, v24, vcc")
    A(f"s_lshr_b32 s64, s{S_W}, 1\ns_min_u32 s64, s64, 2\ns_mul_i32 s64, s64, {SLOT}\ns_and_b32 s65, s{S_W}, 1\ns_lshl_b32 s65, s65, 10\ns_add_u32 s64, s64, s65\ns_add_u32 s64, s64, {10*PS}")
    A(f"v_add_u32 v24, s64, v{vD}")
    for i in range(4):
        A(f"v_mov_b32 v{28+i}, 0x3f803f80")
    A("s_barrier\nds_write_b128 v24, v[28:31]\ns_waitcnt lgkmcnt(0)\ns_branch L_ATT_MAIN")


def cmul(d, a, b, t):
    A(f"v_pk_mul_f32 {vr(t,2)}, {vr(a,2)}, {vr(b,2)} op_sel:[0,0] op_sel_hi:[1,0]")
    A(f"v_pk_fma_f32 {vr(d,2)}, {vr(a,2)}, {vr(b,2)}, {vr(t,2)} op_sel:[1,1,0] op_sel_hi:[0,1,1] neg_lo:[0,1,0]")


def cfma(d, a, b, c, t):
    A(f"v_pk_fma_f32 {vr(t,2)}, {vr(a,2)}, {vr(b,2)}, {vr(c,2)} op_sel:[0,0,0] op_sel_hi:[1,0,1]")
    A(f"v_pk_fma_f32 {vr(d,2)}, {vr(a,2)}, {vr(b,2)}, {vr(t,2)} op_sel:[1,1,0] op_sel_hi:[0,1,1] neg_lo:[0,1,0]")


def gather4(src, dst):
    if OPT["lscan"]:
        A(f"ds_write_b64 v0, {vr(src,2)}")
        for q in range(4):
            A(f"ds_read_b64 {vr(dst+2*q,2)}, v17 offset:{128*q}")
        A("s_waitcnt lgkmcnt(0)")
        return
    for c in range(2):
        A(f"v_mov_b32 v{dst+c}, v{src+c}\nv_mov_b32 v{dst+2+c}, v{src+c}")
    A("s_nop 0")
    for c in range(2):
        A(f"v_permlane16_swap_b32 v{dst+c}, v{dst+2+c}")
    for c in range(4):
        A(f"v_mov_b32 v{dst+4+c}, v{dst+c}")
    for c in range(4):
        A(f"v_permlane32_swap_b32 v{dst+c}, v{dst+4+c}")


sTC, sNB, sK, sROT, sCT = 41, 42, 43, 37, 36


def hoist():
    A(f"v_and_b32 v26, 15, v1\nv_add_u32 v123, s{sCT}, v26\nv_lshlrev_b32 v123, 3, v123")
    A(f"v_lshrrev_b32 v27, 4, v1\nv_mul_u32_u24 v28, {8*640}, v27\ns_sub_u32 s65, 32, s{sTC}\ns_mul_i32 s65, s65, 640\nv_add3_u32 v124, v123, v28, s65")
    A(f"v_mul_u32_u24 v28, 40960, v27\nv_lshl_add_u32 v125, v16, 4, v28")
    A(f"s_lshl_b32 s65, s{S_W}, 6\nv_add_u32 v28, s65, v1\nv_mul_u32_u24 v29, 6554, v28\nv_lshrrev_b32 v29, 16, v29\nv_mul_u32_u24 v30, 10, v29\nv_sub_u32 v30, v28, v30")
    A(f"v_and_b32 v28, 0x78, v29\nv_and_b32 v31, 1, v29\nv_lshl_add_u32 v28, v31, 2, v28\nv_bfe_u32 v31, v29, 1, 2\nv_add_u32 v28, v28, v31")
    A(f"v_mul_u32_u24 v28, 1280, v28\nv_lshl_add_u32 v28, v30, 4, v28\ns_mul_i32 s65, s{sNB}, 160\nv_add_u32 v117, s65, v28")
    A(f"v_lshrrev_b32 v28, 5, v1\nv_mul_u32_u24 v28, {PL}, v28\nv_and_b32 v29, 31, v1\nv_lshlrev_b32 v29, 4, v29\ns_and_b32 s65, s{S_W}, 1\ns_lshl_b32 s65, s65, 7\nv_xor_b32 v29, s65, v29\nv_add_u32 v119, v28, v29")
    A("v_bfe_u32 v30, v1, 2, 2\nv_and_b32 v31, 3, v1")
    sm, dn = uid("HS"), uid("HD")
    A(f"s_cmp_ge_u32 s{S_W}, 4\ns_cbranch_scc1 {sm}")
    for big in (True, False):
        if big:
            A(f"v_lshrrev_b32 v27, 5, v1\nv_and_b32 v26, 31, v1\ns_lshr_b32 s65, s{S_W}, 1\ns_and_b32 s66, s{S_W}, 1")
            A(f"s_lshl_b32 s67, s65, 5\ns_lshl_b32 s68, s66, 5")
            A(f"s_lshl_b32 s69, s65, 2\nv_bfe_u32 v28, v1, 4, 1\nv_lshlrev_b32 v28, 1, v28\nv_lshrrev_b32 v29, 1, v31\nv_add3_u32 v28, v28, v29, s69")
        else:
            A(f"{sm}:\ns_sub_u32 s65, s{S_W}, 4\ns_lshl_b32 s67, s65, 4\ns_mov_b32 s68, 64")
            A(f"s_lshl_b32 s69, s65, 1\nv_lshrrev_b32 v28, 1, v31\nv_add_u32 v28, s69, v28")
        A(f"v_mul_u32_u24 v28, 1088, v28\nv_lshl_add_u32 v29, v27, 3, v30\nv_lshl_add_u32 v28, v29, 4, v28\nv_and_b32 v29, 1, v31\nv_lshl_add_u32 v112, v29, 3, v28")
        A(f"v_add_u32 v28, s68, v26\nv_lshlrev_b32 v28, 7, v28\nv_add_u32 v28, 8704, v28\nv_bfe_u32 v29, v26, 1, 3\nv_xor_b32 v29, v29, v27\nv_lshl_add_u32 v113, v29, 4, v28")
        A(f"s_lshl_b32 s69, s{sTC}, 6\ns_add_u32 s69, s69, s67\nv_lshl_add_u32 v28, v27, 2, s69\ns_mul_i32 s69, s{sNB}, 80\ns_add_u32 s69, s69, s68\nv_add_u32 v29, s69, v26")
        A("v_mul_u32_u24 v114, 1280, v28\nv_lshl_add_u32 v114, v29, 1, v114\nv_mul_u32_u24 v115, 5120, v28\nv_lshl_add_u32 v115, v29, 2, v115\nv_lshlrev_b32 v126, 1, v29")
        A("v_lshlrev_b32 v28, 1, v30\nv_lshl_add_u32 v28, v27, 3, v28\nv_mul_u32_u24 v28, 160, v28\nv_lshl_add_u32 v28, v31, 3, v28")
        if big:
            A("v_bfe_u32 v29, v1, 4, 1\nv_lshl_add_u32 v28, v29, 5, v28\ns_lshl_b32 s69, s66, 6\nv_add_u32 v116, s69, v28")
            A("v_add_u32 v28, s67, v26\nv_lshlrev_b32 v28, 3, v28\nv_lshlrev_b32 v29, 7, v27\nv_xor_b32 v28, v28, v29\nv_lshl_add_u32 v28, v27, 10, v28\ns_mul_i32 s69, s65, 40960\nv_add_u32 v118, s69, v28")
            A(f"v_lshlrev_b32 v122, 4, v1\nv_mov_b32 v127, 0\nv_mov_b32 v26, 0\nv_mov_b32 v27, 0\nv_mov_b32 v28, 0\ns_branch {dn}")
        else:
            A("v_add_u32 v116, 128, v28")
            A("v_add_u32 v28, s67, v26\nv_lshlrev_b32 v28, 3, v28\nv_and_b32 v29, 1, v27\nv_lshlrev_b32 v29, 7, v29\nv_xor_b32 v28, v28, v29\nv_lshl_add_u32 v118, v27, 10, v28")
            A(f"v_lshrrev_b32 v28, 3, v1\ns_mul_i32 s69, s{sNB}, 80\ns_lshl_b32 s66, s65, 3\ns_add_u32 s69, s69, s66\nv_add_u32 v28, s69, v28\nv_mul_u32_u24 v28, 1280, v28")
            A(f"v_and_b32 v29, 7, v1\nv_xor_b32 v29, v29, v27\ns_and_b32 s69, s65, 1\ns_lshl_b32 s69, s69, 2\nv_xor_b32 v29, s69, v29\nv_lshl_add_u32 v122, v29, 4, v28")
            A("v_xor_b32 v127, 64, v113\nv_add_u32 v26, 40960, v122\nv_add_u32 v27, 81920, v122\nv_add_u32 v28, 40960, v118")
    A(f"{dn}:")


def wo_src(d, sj, t):
    A(f"v_add_u32 v{t}, s{sj}, v1\nv_mul_u32_u24 v{t+1}, 6554, v{t}\nv_lshrrev_b32 v{t+1}, 16, v{t+1}\nv_mul_u32_u24 v{t+2}, 10, v{t+1}\nv_sub_u32 v{t+2}, v{t}, v{t+2}")
    A(f"v_and_b32 v{t}, 0x78, v{t+1}\nv_and_b32 v{t+3}, 1, v{t+1}\nv_lshl_add_u32 v{t}, v{t+3}, 2, v{t}\nv_bfe_u32 v{t+3}, v{t+1}, 1, 2\nv_add_u32 v{t}, v{t}, v{t+3}")
    A(f"v_mul_u32_u24 v{t}, 1280, v{t}\nv_lshl_add_u32 v{t}, v{t+2}, 4, v{t}\ns_mul_i32 s69, s{sNB}, 160\nv_add_u32 v{d}, s69, v{t}")


def role_b():
    A("L_ROLE_B:\ns_cmp_ge_u32 s2, 512\ns_cbranch_scc1 L_END")
    if OPT.get("nob"):
        A("s_endpgm")
    stamp(0)
    A(f"s_load_dwordx16 s[8:23], s[0:1], 0\ns_load_dwordx8 s[24:31], s[0:1], 64\ns_load_dwordx2 s[{P_OUT}:{P_OUT+1}], s[0:1], 96\ns_load_dwordx2 s[{WS}:{WS+1}], s[0:1], 112")
    A(f"v_lshrrev_b32 v2, 6, v0\nv_and_b32 v1, 63, v0\nv_readfirstlane_b32 s{S_W}, v2")
    bhi()
    if OPT["cpre"]:
        cp = uid("CP")
        A(f"s_cmp_lg_u32 s{S_W}, 7\ns_cbranch_scc1 {cp}\ns_getpc_b64 s[64:65]\nL_PC:\ns_sub_u32 s64, s64, L_PC-{NAME}_kernel\ns_subb_u32 s65, s65, 0")
        A("s_bfe_u32 s66, s2, 0x50003\ns_lshl_b32 s66, s66, 11\nv_and_b32 v2, 15, v1\nv_lshlrev_b32 v2, 7, v2\nv_add_u32 v2, s66, v2")
        A(f"v_min_u32 v2, L_END-{NAME}_kernel, v2\nv_mov_b32 v3, s65\nv_add_co_u32 v2, vcc, s64, v2\ns_nop 1\nv_addc_co_u32 v3, vcc, 0, v3, vcc\nglobal_load_dword v4, v[2:3], off\n{cp}:")
    A(f"s_and_b32 s{sTC}, s2, 3\ns_lshl_b32 s{sTC}, s{sTC}, 3\ns_bfe_u32 s64, s2, 0x30003\ns_add_u32 s{sTC}, s{sTC}, s64")
    A(f"s_and_b32 s{sNB}, s2, 4\ns_bfe_u32 s64, s2, 0x20006\ns_add_u32 s{sNB}, s{sNB}, s64")
    A(f"s_mul_i32 s{sROT}, s{sNB}, 3\ns_add_u32 s{sROT}, s{sROT}, s{sTC}")
    A(f"s_mul_i32 s64, s{sROT}, 205\ns_lshr_b32 s64, s64, 11\ns_mul_i32 s64, s64, 10\ns_sub_u32 s{sROT}, s{sROT}, s64")
    if not OPT["brot"]:
        A(f"s_mov_b32 s{sROT}, 0")
    A(f"s_mov_b32 s{WS+2}, {WS_USED}\ns_mov_b32 s{WS+3}, 0x20000\ns_waitcnt lgkmcnt(0)\ns_load_dword s{S_E}, {WSP}, {EPOCH}")
    MU, CF, MU16, PW, LAM, LAM8 = 2, 4, 6, 8, 10, 12
    A(f"s_min_u32 s{sCT}, s{S_W}, 4\ns_lshl_b32 s{sCT}, s{sCT}, 4\ns_mul_i32 s64, s{sNB}, 80\ns_add_u32 s64, s64, s{sCT}")
    A(f"v_and_b32 v16, 15, v1\nv_add_u32 v16, s64, v16\nv_lshlrev_b32 v21, 1, v16")
    srd(R0, P_LRE, 1280); srd(R1, P_LIM, 1280); srd(R2, P_LDT, 1280)
    A(f"buffer_load_ushort v22, v21, {S(R0)}, 0 offen\nbuffer_load_ushort v23, v21, {S(R1)}, 0 offen\nbuffer_load_ushort v24, v21, {S(R2)}, 0 offen")
    A("s_waitcnt vmcnt(0) lgkmcnt(0)")
    epoch_fix()
    LOG2E = f2u(math.log2(math.e))
    A("v_lshlrev_b32 v22, 16, v22\nv_lshlrev_b32 v23, 16, v23\nv_lshlrev_b32 v24, 16, v24")
    A(f"v_mul_f32 v24, {LOG2E}, v24\nv_exp_f32 v24, v24\ns_nop 0\nv_cvt_pk_bf16_f32 v24, v24, v24\nv_lshlrev_b32 v24, 16, v24")
    A(f"v_mul_f32 v25, v24, v22\nv_mul_f32 v26, v24, v23\nv_mul_f32 v25, {LOG2E}, v25\nv_exp_f32 v25, v25")
    A(f"v_mul_f32 v26, 0.15915494, v26\nv_fract_f32 v26, v26\nv_cos_f32 v27, v26\nv_sin_f32 v28, v26\ns_nop 0")
    A(f"v_mul_f32 v{MU}, v25, v27\nv_mul_f32 v28, v25, v28\nv_sub_f32 v{MU+1}, 0, v28")
    A(f"v_add_f32 v27, -1.0, v{MU}")
    A("v_mul_f32 v25, v22, v22\nv_fmac_f32 v25, v23, v23\nv_rcp_f32 v25, v25")
    A("v_mul_f32 v26, v27, v22\nv_fmac_f32 v26, v28, v23\nv_mul_f32 v29, v28, v22\nv_fma_f32 v29, -v27, v23, v29")
    A(f"v_add_f32 v25, v25, v25\nv_mul_f32 v{CF}, v26, v25\nv_mul_f32 v29, v29, v25\nv_sub_f32 v{CF+1}, 0, v29")
    cmul(MU16, MU, MU, 22)
    for _ in range(3):
        cmul(MU16, MU16, MU16, 22)
    cmul(24, MU16, MU16, 22)
    cmul(26, 24, MU16, 22)
    cmul(LAM, 24, 24, 22)
    cmul(LAM8, LAM, LAM, 22)
    cmul(LAM8, LAM8, LAM8, 22)
    cmul(LAM8, LAM8, LAM8, 22)
    A("v_lshrrev_b32 v28, 4, v1")
    A(f"v_cmp_eq_u32 s[96:97], 1, v28\nv_cmp_eq_u32 s[98:99], 2, v28\nv_cmp_eq_u32 s[100:101], 3, v28")
    A(f"v_mov_b32 v{PW}, 1.0\nv_mov_b32 v{PW+1}, 0")
    for src, m in ((MU16, 96), (24, 98), (26, 100)):
        for c in range(2):
            A(f"v_cndmask_b32 v{PW+c}, v{PW+c}, v{src+c}, s[{m}:{m+1}]")
    vS0, vRA, vRB = 14, 18, 22
    srd(R0, P_BX, 2621440); srd(R1, P_BRE, 819200); srd(R2, P_BIM, 819200)
    hoist()
    A(f"s_lshl_b32 s{sK}, s{sROT}, 7")
    A("v_lshrrev_b32 v30, 4, v1\nv_and_b32 v31, 7, v1\nv_xor_b32 v31, v31, v30\nv_lshlrev_b32 v31, 4, v31")
    A(f"v_and_b32 v30, 31, v1\nv_lshlrev_b32 v30, 7, v30\nv_lshrrev_b32 v17, 5, v1\nv_bfe_u32 v29, v1, 1, 3\nv_xor_b32 v29, v17, v29\nv_lshl_add_u32 v{vRA}, v29, 4, v30")

    def scan_addr():
        A(f"s_mul_i32 s66, s{sCT}, 576\ns_add_u32 s66, s66, 20480\ns_lshl_b32 s67, s{sCT}, 5\ns_add_u32 s67, s67, 66560")
        A(f"v_and_b32 v0, 15, v1\nv_lshl_add_u32 v29, v17, 5, v0\nv_mul_u32_u24 v29, 144, v29\nv_bfe_u32 v30, v1, 4, 1\nv_lshl_add_u32 v29, v30, 2, v29\nv_add_u32 v29, s66, v29\nv_add_u32 v30, 2304, v29")
        A(f"v_mul_u32_u24 v31, 144, v1\nv_add_u32 v31, s66, v31\nv_lshl_add_u32 v17, v0, 3, s67\nv_lshl_add_u32 v0, v1, 3, s67")

    def early_addr():
        if not OPT["wearly"]:
            return
        A(f"s_cmp_eq_u32 s{S_W}, 6\ns_cselect_b32 s34, 1, 4\ns_cselect_b32 s35, 2, 0\ns_cmp_eq_u32 s{S_W}, 7\ns_cselect_b32 s34, 3, s34")
        for k in range(2):
            A(f"s_lshl_b32 s68, s{34+k}, 6")
            wo_src(48 + k, 68, 50)
            A(f"s_lshl_b32 s{34+k}, s{34+k}, 10")

    def touch2():
        t1, t2 = uid("U1"), uid("U2")
        if OPT["wearly"]:
            srd(R1, P_WO, 819200)
            for k in range(2):
                if k:
                    A(f"s_cmp_eq_u32 s{S_W}, 7\ns_cbranch_scc1 {t1}")
                for m in range(16):
                    A(f"s_add_u32 m0, s{34+k}, {5120*m}\ns_mov_b32 s64, {32*m*1280}")
                    dma(48 + k, R1, 64)
        else:
            A(f"s_cmp_eq_u32 s{S_W}, 7\ns_cbranch_scc1 {t1}")
        A(f"s_and_b32 s66, s{sTC}, 7\ns_mul_i32 s39, s66, 10\ns_mul_i32 s68, s{sNB}, 80\ns_add_u32 s39, s39, s68\ns_mul_i32 s39, s39, 1280")
        A(f"s_cmp_eq_u32 s{S_W}, 5\ns_cselect_b32 s{R1}, s{P_CRE}, s{P_CIM}\ns_cselect_b32 s{R1+1}, s{P_CRE+1}, s{P_CIM+1}")
        A(f"v_lshlrev_b32 v66, 7, v1\nv_min_u32 v67, 35, v1\nv_lshlrev_b32 v67, 7, v67\nv_add_u32 v67, 8192, v67")
        A(f"buffer_load_dword v64, v66, {S(R1)}, s39 offen\nbuffer_load_dword v65, v67, {S(R1)}, s39 offen\ns_branch {t2}\n{t1}:")
        srd(R1, P_WO, 819200)
        A(f"s_and_b32 s66, s{sTC}, 7\ns_mul_i32 s66, s66, {16*1280}\ns_mul_i32 s67, s{sNB}, 160\ns_add_u32 s66, s66, s67\ns_add_u32 s66, s66, {512*1280}")
        A(f"v_bfe_u32 v66, v1, 1, 4\nv_mul_u32_u24 v66, 1280, v66\nv_and_b32 v67, 1, v1\nv_mul_u32_u24 v67, 156, v67\nv_add_u32 v66, v66, v67")
        A(f"buffer_load_dword v64, v66, {S(R1)}, s66 offen\n{t2}:")

    GK = OPT["gk"]

    def more(Sx):
        return Sx + 2 < 10 and not (GK and Sx < GK <= Sx + 2)

    def inflight(Sx):
        return 0 if Sx == 9 or (GK and Sx == GK - 1) else 1

    def gate(Sx, issue, poller):
        if GK and Sx == GK:
            if poller:
                A(f"s_cmp_lg_u32 s{S_W}, 4\ns_cbranch_scc1 L_NOGATE\ns_sub_u32 s66, s2, 256\ns_lshl_b32 s66, s66, 7\ns_add_u32 s66, s66, {F0}")
                spoll([(8, 1, 0)], 66)
                A("L_NOGATE:")
            A("s_barrier")
            issue(GK); issue(GK + 1)

    def advK():
        A(f"s_add_u32 s{sK}, s{sK}, 128\ns_cmp_eq_u32 s{sK}, 1280\ns_cselect_b32 s{sK}, 0, s{sK}")

    ACC, BF, AF = 32, 64, 80
    SH = 12288
    A(f"s_cmp_ge_u32 s{S_W}, 4\ns_cbranch_scc1 L_G1_AUX")
    A(f"v_lshrrev_b32 v30, 3, v1\nv_add_u32 v30, s64, v30\nv_mul_u32_u24 v30, 1280, v30\nv_add_u32 v{vS0}, v30, v31")
    A(f"v_xor_b32 v{vS0+1}, 64, v{vS0}\nv_add_u32 v{vS0+1}, 10240, v{vS0+1}")
    A(f"s_lshl_b32 s38, s{S_W}, 13\ns_add_u32 s38, s38, {3*SH}")
    for u in range(1, 4):
        A(f"v_xor_b32 v{vRA+u}, {32*u}, v{vRA}")
    for u in range(4):
        A(f"v_add_u32 v{vRB+u}, s38, v{vRA+u}")
    scan_addr()
    A(f"s_cmp_lg_u32 s{S_W}, 0\ns_cbranch_scc1 L_NOHINT\ns_sub_u32 s66, s2, 256\ns_lshl_b32 s66, s66, 7\ns_add_u32 s66, s66, {F0C if OPT['gk'] else F0}")
    spoll([(8, 1, 0)], 66)
    A("L_NOHINT:\ns_barrier")
    stamp(1)
    A(f"s_setprio {3 if OPT['mlo'] else OPT['g1p']}\n;MLO_ON")

    def dmaB(Sx):
        for q in range(4):
            A(f"s_add_u32 m0, s38, {(Sx % 2) * 4096 + q * 1024}\ns_nop 0")
            dma(vS0 + (q & 1), R1 if q < 2 else R2, sK)
        advK()

    def g1_mm(Sx, u, tts=(0, 1)):
        for tt in tts:
            c = "0" if (Sx == 0 and u == 0) else vr(ACC + 16 * tt, 16)
            A(f"{MF32} {vr(ACC+16*tt,16)}, {vr(AF+8*u+4*tt,4)}, {vr(BF+4*u,4)}, {c}")

    dmaB(0); dmaB(1)
    for Sx in range(10):
        fst(1, Sx)
        gate(Sx, dmaB, False)
        A(f"s_waitcnt vmcnt({4 * inflight(Sx)})")
        for u in range(3):
            A(f"ds_read_b128 {vr(BF+4*u,4)}, v{vRB+u} offset:{(Sx % 2) * 4096}")
        A("s_barrier")
        if Sx:
            g1_mm(Sx - 1, 3, (0,))
        for u in range(3):
            for tt in range(2):
                A(f"ds_read_b128 {vr(AF+8*u+4*tt,4)}, v{vRA+u} offset:{(Sx % 3) * SH + 4096*tt}")
        if Sx:
            g1_mm(Sx - 1, 3, (1,))
        A(f"ds_read_b128 {vr(BF+12,4)}, v{vRB+3} offset:{(Sx % 2) * 4096}")
        for tt in range(2):
            A(f"ds_read_b128 {vr(AF+24+4*tt,4)}, v{vRA+3} offset:{(Sx % 3) * SH + 4096*tt}")
        A("s_waitcnt lgkmcnt(7)")
        g1_mm(Sx, 0)
        A("s_waitcnt lgkmcnt(5)")
        g1_mm(Sx, 1)
        A("s_waitcnt lgkmcnt(3)")
        g1_mm(Sx, 2)
        A("s_waitcnt lgkmcnt(0)")
        if more(Sx):
            dmaB(Sx + 2)
    g1_mm(9, 3)
    A(";MLO_OFF\ns_barrier\ns_nop 10\ns_branch L_SCAN")

    A("L_G1_AUX:")
    A(f"s_cmp_eq_u32 s{S_W}, 4\ns_cbranch_scc1 L_G1_LD\ns_cmp_eq_u32 s{S_W}, 7\ns_cbranch_scc1 L_G1_LD")
    A(f"v_lshrrev_b32 v30, 3, v1\nv_add_u32 v30, s64, v30\nv_mul_u32_u24 v30, 1280, v30\nv_add_u32 v{vS0}, v30, v31")
    A(f"v_xor_b32 v{vS0+1}, 64, v{vS0}\nv_add_u32 v{vS0+1}, 10240, v{vS0+1}")
    A(f"s_cmp_eq_u32 s{S_W}, 5\ns_cselect_b32 s{R3}, s{R1}, s{R2}\ns_cselect_b32 s{R3+1}, s{R1+1}, s{R2+1}\ns_mov_b32 s{R3+2}, 819200\ns_mov_b32 s{R3+3}, 0x20000")
    A(f"s_sub_u32 s38, s{S_W}, 5\ns_lshl_b32 s66, s38, 12\ns_lshl_b32 s38, s38, 11")
    for u in range(1, 4):
        A(f"v_xor_b32 v{vRA+u}, {32*u}, v{vRA}")
    for u in range(4):
        A(f"v_add_u32 v{vRB+u}, s66, v{vRA+u}")
    scan_addr()
    early_addr()
    A("s_barrier")
    A(f"s_setprio {3 if OPT['mlo'] else OPT['g1p']}\n;MLO_ON")

    def dmaB4(Sx):
        for q in range(2):
            A(f"s_add_u32 m0, s38, {(Sx % 3) * SH + 8192 + q * 1024}\ns_nop 0")
            dma(vS0 + q, R3, sK)
        advK()

    dmaB4(0); dmaB4(1)
    for Sx in range(10):
        gate(Sx, dmaB4, False)
        A(f"s_waitcnt vmcnt({2 * inflight(Sx)})\ns_barrier")
        for u in range(4):
            A(f"ds_read_b128 {vr(BF+4*u,4)}, v{vRA+u} offset:{(Sx % 3) * SH + 8192}")
            A(f"ds_read_b128 {vr(AF+4*u,4)}, v{vRB+u} offset:{(Sx % 3) * SH}")
        for u in range(4):
            A(f"s_waitcnt lgkmcnt({6-2*u})")
            c = "0" if (Sx == 0 and u == 0) else vr(ACC, 16)
            A(f"{MF32} {vr(ACC,16)}, {vr(AF+4*u,4)}, {vr(BF+4*u,4)}, {c}")
        if more(Sx):
            dmaB4(Sx + 2)
    A(";MLO_OFF")
    if OPT["lscan"]:
        A(f"s_cmp_eq_u32 s{S_W}, 5\ns_cbranch_scc1 L_G1_RED\ns_barrier\ns_nop 8")
        for j in range(0, 16, 4):
            for p in range(2):
                A(f"ds_write2_b32 v{29+p}, v{ACC+j+p}, v{ACC+j+p+2} offset0:{16 + j} offset1:{18 + j}")
        A("s_waitcnt lgkmcnt(0)\ns_barrier")
        bhi()
        touch2()
        A("s_branch L_G1_AUX2")
    else:
        bhi()
        A(f"s_lshl_b32 s66, s{S_W}, 12\ns_add_u32 s66, s66, {69632 - 5*4096}\nv_lshlrev_b32 v30, 4, v1\nv_add_u32 v30, s66, v30\ns_nop 7")
        for g in range(4):
            A(f"ds_write_b128 v30, {vr(ACC+4*g,4)} offset:{1024*g}")
        A("s_waitcnt lgkmcnt(0)\ns_branch L_G1_AUXEND")

    A("L_G1_LD:")
    A(f"s_cmp_eq_u32 s{S_W}, 7\ns_cselect_b32 s38, 1, 0")
    A(f"v_bfe_u32 v29, v1, 3, 1\nv_lshl_add_u32 v30, v17, 1, v29\nv_lshlrev_b32 v30, 4, v30\nv_bfe_u32 v29, v1, 4, 1\nv_add_u32 v30, v30, v29")
    A(f"s_lshl_b32 s66, s{sTC}, 6\ns_lshl_b32 s67, s38, 3\ns_add_u32 s66, s66, s67\nv_add_u32 v30, s66, v30\nv_mul_u32_u24 v30, 1280, v30\nv_add_u32 v{vS0}, v30, v31")
    A(f"v_xor_b32 v{vS0+1}, 64, v{vS0}\nv_add_u32 v{vS0+1}, 2560, v{vS0+1}\nv_add_u32 v22, 5120, v{vS0}\nv_add_u32 v23, 5120, v{vS0+1}")
    early_addr()
    if OPT["t1"]:
        t7, td = uid("T7"), uid("TD")
        A(f"v_lshrrev_b32 v52, 1, v1\nv_mul_u32_u24 v52, 1280, v52\nv_and_b32 v53, 1, v1\nv_lshl_add_u32 v52, v53, 7, v52\ns_cmp_eq_u32 s{S_W}, 7\ns_cbranch_scc1 {t7}")
        A(f"s_and_b32 s66, s{sNB}, 3\ns_lshl_b32 s66, s66, 4\ns_lshl_b32 s67, s{sTC}, 6\ns_add_u32 s66, s66, s67\ns_mul_i32 s66, s66, 1280\ns_mov_b32 exec_hi, 0")
        A(f"buffer_load_dword v54, v52, {S(R0)}, s66 offen\ns_branch {td}\n{t7}:")
        A(f"s_and_b32 s66, s{sTC}, 7\ns_mul_i32 s66, s66, 10\ns_mul_i32 s67, s{sNB}, 80\ns_add_u32 s66, s66, s67\ns_mul_i32 s66, s66, 1280\ns_mov_b64 exec, 0xfffff")
        A(f"buffer_load_dword v54, v52, {S(R1)}, s66 offen\nbuffer_load_dword v55, v52, {S(R2)}, s66 offen\n{td}:\ns_mov_b64 exec, -1")
    A("s_lshl_b32 s38, s38, 12\ns_waitcnt vmcnt(0)\ns_barrier")

    def dmaX(Sx):
        for q in range(4):
            A(f"s_add_u32 m0, s38, {(Sx % 3) * SH + q * 1024}\ns_nop 0")
            dma([vS0, vS0 + 1, 22, 23][q], R0, sK)
        advK()

    dmaX(0); dmaX(1)
    for Sx in range(10):
        gate(Sx, dmaX, True)
        A(f"s_waitcnt vmcnt({4 * inflight(Sx)})\ns_barrier")
        if more(Sx):
            dmaX(Sx + 2)
    A(f"v_lshlrev_b32 v30, 4, v1\nv_add_u32 v30, 69632, v30\ns_cmp_eq_u32 s{S_W}, 4\ns_cbranch_scc1 L_G1_RED")
    A("L_G1_AUXEND:")
    A("s_barrier\ns_barrier")
    A(f"s_cmp_lg_u32 s{S_W}, 6\ns_cbranch_scc1 L_F2POLL")
    touch2()
    A("s_barrier\ns_waitcnt vmcnt(0)\ns_branch L_B_H\nL_F2POLL:")
    A(f"s_cmp_eq_u32 s{S_W}, 7\ns_cselect_b32 s66, 16, 0\ns_sub_i32 s67, s{sTC}, s66\ns_max_i32 s67, s67, 0\ns_min_i32 s67, s67, 16\ns_lshr_b32 s67, 0xffff0000, s67\ns_and_b32 s67, s67, 0xffff")
    A(f"s_lshl_b32 s66, s66, 3\ns_lshl_b32 s65, s{sNB}, 5\ns_add_u32 s65, s65, s{sTC}\ns_lshl_b32 s65, s65, 8\ns_add_u32 s66, s66, s65\ns_add_u32 s66, s66, {PV2}")
    spoll([(68, 8, 0), (84, 8, 64)], 66, need=67)
    A("s_barrier")
    touch2()
    A("s_waitcnt vmcnt(0)\ns_branch L_B_H")
    A("L_G1_RED:\ns_barrier")
    if OPT["lscan"]:
        A("s_nop 8")
        for j in range(0, 16, 4):
            for p in range(2):
                A(f"ds_write2_b32 v{29+p}, v{ACC+j+p}, v{ACC+j+p+2} offset0:{j} offset1:{2 + j}")
        A("s_branch L_SCAN2")
    else:
        for g in range(8):
            A(f"ds_read_b128 {vr(ACC+4*g,4)}, v30 offset:{1024*g}")
        A("s_waitcnt lgkmcnt(0)")
    A("L_SCAN:")
    stamp(2)
    if OPT["lscan"]:
        for tt in range(2):
            for j in range(0, 16, 4):
                for p in range(2):
                    A(f"ds_write2_b32 v{29+p}, v{ACC+16*tt+j+p}, v{ACC+16*tt+j+p+2} offset0:{16*tt + j} offset1:{16*tt + 2 + j}")
        A("L_SCAN2:\ns_waitcnt lgkmcnt(0)\ns_barrier")
        for i in range(8):
            A(f"ds_read_b128 {vr(ACC+4*i,4)}, v31 offset:{16*i}")
        bhi()
    else:
        bhi()
        for i in range(16):
            A(f"v_permlane16_swap_b32 v{ACC+2*i}, v{ACC+2*i+1}")
    for i in range(16):
        u = ACC + 2 * i
        t = 64 + 2 * (i & 1)
        if OPT["lscan"] and i % 2 == 0:
            A(f"s_waitcnt lgkmcnt({7 - i // 2})")
        A(f"v_pk_mul_f32 {vr(t,2)}, {vr(u,2)}, {vr(CF,2)} op_sel:[0,0] op_sel_hi:[0,1]")
        A(f"v_pk_fma_f32 {vr(u,2)}, {vr(u,2)}, {vr(CF,2)}, {vr(t,2)} op_sel:[1,1,0] op_sel_hi:[1,0,1] neg_hi:[0,1,0]")
    G, T = 68, 70
    cfma(G, ACC, MU, ACC + 2, T)
    for i in range(2, 16):
        cfma(G, G, MU, ACC + 2 * i, T)
    E4 = 72
    A(f"s_mul_i32 s64, s{sNB}, 20480\ns_add_u32 s64, s64, {EB}\ns_add_u32 s{R3}, s{WS}, s64\ns_addc_u32 s{R3+1}, s{WS+1}, 0\ns_mov_b32 s{R3+2}, 20480\ns_mov_b32 s{R3+3}, 0x20000")
    gather4(G, E4)
    PRE = 80
    cfma(82, E4, MU16, E4 + 2, T)
    cfma(84, 82, MU16, E4 + 4, T)
    cfma(86, 84, MU16, E4 + 6, T)
    A(f"s_sub_u32 s64, 31, s{sTC}\ns_mul_i32 s64, s64, 640\ns_mov_b64 exec, 0xffff")
    A(f"buffer_store_dwordx2 v[86:87], v123, {S(R3)}, s64 offen sc1\ns_mov_b64 exec, -1")
    A(f"v_mov_b32 v{PRE}, 0\nv_mov_b32 v{PRE+1}, 0")
    for src, m in ((E4, 96), (82, 98), (84, 100)):
        for c in range(2):
            A(f"v_cndmask_b32 v{PRE+c}, v{PRE+c}, v{src+c}, s[{m}:{m+1}]")
    A(f"s_lshl_b32 s68, s{sNB}, 13\ns_lshl_b32 s69, s{sTC}, 3\ns_add_u32 s68, s68, s69\ns_add_u32 s68, s68, {PV2}")
    A(f"v_lshlrev_b32 v88, 8, v1\nv_mov_b32 v90, s{S_E}\nv_mov_b32 v91, s{S_E+1}\ns_lshl_b32 s69, -2, s{sTC}")
    A("s_waitcnt vmcnt(0)\ns_barrier")
    A(f"s_cmp_lg_u32 s{S_W}, 0\ns_cbranch_scc1 L_NOP2\ns_cmp_eq_u32 s69, 0\ns_cbranch_scc1 L_NOP2\ns_mov_b32 exec_lo, s69\ns_mov_b32 exec_hi, 0")
    A(f"buffer_store_dwordx2 v[90:91], v88, {S(WS)}, s68 offen sc1\ns_mov_b64 exec, -1\nL_NOP2:")
    stamp(3)
    A(f"s_cmp_ge_u32 s{S_W}, 4\ns_cbranch_scc1 L_NOSKIP")
    srd(R1, P_DSK, 1280)
    A(f"buffer_load_ushort v14, v126, {S(R1)}, 0 offen")
    for i in range(16):
        A(f"s_mov_b32 s64, {(8 * (i >> 2) + (i & 3))*1280}\nbuffer_load_ushort v{16+i}, v114, {S(R0)}, s64 offen")
    A("L_NOSKIP:\ns_movk_i32 s64, 4480\ns_barrier")
    stamp(4)
    EL = 96
    for u in range(8):
        d = 7 - u
        A(f"buffer_load_dwordx2 {vr(EL+2*u,2)}, v124, {S(R3)}, {'s64' if d == 7 else '0'} offen offset:{0 if d == 7 else 640*d} sc1")
    A("s_waitcnt vmcnt(6)")
    cfma(G, EL, LAM, EL + 2, T)
    for u in range(2, 8):
        A(f"s_waitcnt vmcnt({7-u})")
        cfma(G, G, LAM, EL + 2 * u, T)
    gather4(G, E4)
    cfma(G, E4 + 6, LAM8, E4 + 4, T)
    cfma(G, G, LAM8, E4 + 2, T)
    cfma(G, G, LAM8, E4, T)
    cfma(G, G, PW, PRE, T)
    PK = 72
    A(f"s_mul_i32 s64, s{sTC}, 163840\ns_add_u32 s64, s64, {HB}")
    for tt in range(2):
        for i in range(8 * tt, 8 * tt + 8):
            cfma(ACC + 2 * i, G if i == 0 else ACC + 2 * i - 2, MU, ACC + 2 * i, T)
        for c in range(2):
            d = PK + 8 * tt + 4 * c
            for m in range(4):
                a = ACC + 16 * tt + 4 * m + c
                A(f"v_cvt_pk_bf16_f32 v{d+m}, v{a}, v{a+2}")
            A(f"s_add_u32 s65, s64, {tt*20480 + c*10240}")
            A(f"buffer_store_dwordx4 {vr(d,4)}, v125, {S(WS)}, s65 offen sc1")
    A("s_waitcnt vmcnt(0)")
    A("L_B_H:")
    bhi()
    A("s_barrier")
    A(f"s_cmp_lg_u32 s{S_W}, 0\ns_cbranch_scc1 L_NOP3\ns_lshl_b32 s68, s{sTC}, 10\ns_lshl_b32 s69, s{sNB}, 3\ns_add_u32 s68, s68, s69\ns_add_u32 s68, s68, {PV3}")
    A(f"v_lshlrev_b32 v88, 7, v1\ns_mov_b64 exec, 0xff\nbuffer_store_dwordx2 v[90:91], v88, {S(WS)}, s68 offen sc1\ns_mov_b64 exec, -1\nL_NOP3:")
    stamp(5)
    A(f"s_cmp_ge_u32 s{S_W}, 4\ns_cbranch_scc1 L_B_SMALL")
    tail(True)
    A("L_B_SMALL:")
    tail(False)


def tail(big):
    nacc = 16 if big else 4
    ACC = 16 if big else 12
    WF = 48
    MF = MF32 if big else MF16
    rows = [8 * (i >> 2) + (i & 3) for i in range(nacc)]
    fst(9, 0)
    if big:
        vA, vB, vS, vOut, vO, vOs, vW, vWs = 2, 3, 4, 5, 6, 7, 8, 9
        mv = ((8, 116), (2, 112), (3, 113), (4, 122), (5, 115), (6, 118), (9, 117))
        A(f"s_lshr_b32 s64, s{S_W}, 1\ns_mul_i32 s64, s64, 51200\nv_add_u32 v10, s64, v116")
    else:
        vA, vB, vS, vOut, vO, vOs, vW, vWs = 2, 3, 9, 5, 6, 10, 16, 17
        mv = ((16, 116), (2, 112), (3, 113), (4, 127), (5, 115), (6, 118), (7, 28), (9, 122), (10, 119), (8, 26), (11, 27), (17, 117))
        srd(R3, P_DSK, 1280)
        A(f"buffer_load_ushort v0, v126, {S(R3)}, 0 offen")
        for i in range(nacc):
            A(f"s_mov_b32 s64, {rows[i]*1280}\nbuffer_load_ushort v{32+i}, v114, {S(R0)}, s64 offen")
        A(f"s_sub_u32 s95, s{S_W}, 4\nv_add_u32 v18, 40960, v116")
    for d, sreg in mv:
        A(f"v_mov_b32 v{d}, v{sreg}")
    fst(9, 1)
    if big:
        for u in range(20):
            if u == 12:
                A(f"s_cmp_ge_u32 s{S_W}, 2\ns_cbranch_scc1 L_WR0")
            for j in range(2):
                A(f"ds_read_b64_tr_b16 {vr(WF+4*u+2*j,2)}, v10 offset:{2560*u + 160*j}")
        A("L_WR0:")
        for i in range(nacc):
            A(f"v_dot2_f32_bf16 v{ACC+i}, v{ACC+i}, v14, 0")
        A(f"s_lshl_b32 s45, s{sTC}, 3\ns_add_u32 s45, s45, s{sNB}\ns_lshl_b32 s45, s45, 7\ns_add_u32 s45, s45, {PV3}")
    else:
        for U in range(16):
            for j in range(2):
                A(f"ds_read_b64_tr_b16 {vr(WF+4*U+2*j,2)}, v{vW if U < 8 else 18} offset:{5120*(U & 7) + 160*j}")
    srd(R1, P_WO, 819200)
    A(f"s_lshl_b32 s46, s{S_W}, 10\ns_waitcnt lgkmcnt(0)\ns_barrier")
    fst(9, 2)
    if big:
        A(f"s_load_dwordx16 s[8:23], {WSP}, s45 glc")
    sk = uid("WD")
    if not big:
        A(f"s_cmp_ge_u32 s{S_W}, 5\ns_cbranch_scc1 {sk}")
    for m in range(4):
        A(f"s_add_u32 m0, s46, {5120*m}\ns_mov_b32 s64, {(512 + 32*m) * 1280}")
        dma(vWs, R1, 64)
    A(f"{sk}:")
    fst(9, 3)
    if not big:
        A("s_waitcnt vmcnt(0)")
        for i in range(nacc):
            A(f"v_dot2_f32_bf16 v{ACC+i}, v{32+i}, v0, 0")

    def wo_reads1():
        if big:
            A(f"s_cmp_lt_u32 s{S_W}, 2\ns_cbranch_scc1 L_WR1")
            for u in range(8):
                for j in range(2):
                    A(f"ds_read_b64_tr_b16 {vr(WF+4*(12+u)+2*j,2)}, v{vW} offset:{2560*u + 160*j}")
            A("L_WR1:")
        else:
            for U in range(4):
                for j in range(2):
                    A(f"ds_read_b64_tr_b16 {vr(WF+4*(16+U)+2*j,2)}, v{vW} offset:{5120*U + 160*j}")
        A("s_waitcnt lgkmcnt(0)\ns_barrier")

    SL = 18944
    vSs = [vS, 8, 11]

    def slot(Sx):
        return ((Sx + 3) % 4) * SL

    def g2_dma(Sx):
        sb = slot(Sx)
        if big:
            for i in range(2):
                A(f"s_add_u32 m0, s39, {sb + 1088*i}\ns_add_u32 s64, s44, s{sK}")
                if i or Sx >= 10:
                    A(f"s_add_u32 s64, s64, {20480*i + (10240 if Sx >= 10 else 0)}")
                dma(vS, WS, 64, "sc1")
            A(f"s_add_u32 s{sK}, s{sK}, 1024\ns_cmp_eq_u32 s{sK}, 10240\ns_cselect_b32 s{sK}, 0, s{sK}")
        else:
            for m in range(3):
                if m == 2:
                    sk = uid("SD")
                    A(f"s_cmp_ge_u32 s95, 2\ns_cbranch_scc1 {sk}")
                A(f"s_add_u32 m0, s39, {sb + 8704 + 4096*m}\ns_nop 0")
                dma(vSs[m], R1 if Sx < 10 else R2, sK)
            A(f"{sk}:")
            A(f"s_add_u32 s{sK}, s{sK}, 128\ns_cmp_eq_u32 s{sK}, 1280\ns_cselect_b32 s{sK}, 0, s{sK}")

    srd(R1, P_CRE, 819200); srd(R2, P_CIM, 819200)
    if big:
        A(f"s_mul_i32 s44, s{sTC}, 163840\ns_mul_i32 s64, s{S_W}, 40960\ns_add_u32 s44, s44, s64\ns_add_u32 s44, s44, {HB}")
        A(f"v_xor_b32 v0, 32, v{vB}\nv_xor_b32 v1, 64, v{vB}\nv_xor_b32 v7, 96, v{vB}")
        A(f"s_mul_i32 s39, s{S_W}, 2176\ns_lshl_b32 s{sK}, s{sROT}, 10")
        fst(9, 4)
        A("s_waitcnt lgkmcnt(0)\ns_mov_b32 s65, 0")
        for i in range(8):
            A(f"s_cmp_eq_u64 s[{8+2*i}:{9+2*i}], {EP}\ns_addc_u32 s65, s65, s65")
        A("s_cmp_eq_u32 s65, 255\ns_cbranch_scc1 L_F3OK")
        spoll([(8, 8, 0)], 45)
        A("L_F3OK:")
        stamp(6); fst(9, 5)
        g2_dma(0)
        A(f"s_waitcnt vmcnt(2)")
        fst(9, 6)
        A("s_barrier")
        fst(9, 7)
    else:
        A(f"s_lshl_b32 s39, s95, 10\ns_lshl_b32 s{sK}, s{sROT}, 7")
        g2_dma(0)
        A("s_barrier")
    if big:
        A(f"s_sub_u32 s66, s2, 256\ns_lshl_b32 s66, s66, 7\ns_add_u32 s66, s66, {F0B}\ns_load_dwordx2 s[8:9], {WSP}, s66 glc")
    wo_reads1()
    fst(9, 8)
    A("s_waitcnt vmcnt(0)")
    for Sx in range(1, 4):
        g2_dma(Sx)
    if big:
        sk = uid("G2W")
        A(f"s_cmp_eq_u64 s[8:9], {EP}\ns_cbranch_scc1 {sk}\ns_cmp_lg_u32 s{S_W}, 0\ns_cbranch_scc1 {sk}")
        fst(9, 9)
        spoll([(8, 1, 0)], 66)
        A(f"{sk}:")
        fst(9, 10)
    A(f"s_setprio {3 if OPT['mlo'] else OPT['g2p']}\n;MLO_ON2")
    if big:
        SET = [32, 40, 8]

        def rd(n):
            Sx, u = n >> 2, n & 3
            f, sb = SET[n % 3], slot(Sx)
            for j in range(2):
                A(f"ds_read_b64_tr_b16 {vr(f+2*j,2)}, v{vA} offset:{sb + 256*u + 64*j}")
            A(f"ds_read_b128 {vr(f+4,4)}, v{[vB, 0, 1, 7][u]} offset:{sb}")

        def mm(n):
            if n >= 0:
                f = SET[n % 3]
                A(f"{MF} {vr(ACC,16)}, {vr(f,4)}, {vr(f+4,4)}, {vr(ACC,16)}")

        for Sx in range(20):
            infl = 3 if Sx == 0 else min(Sx + 3, 20) - Sx - 1
            n = 4 * Sx
            A(f"s_waitcnt vmcnt({2*infl})\ns_barrier" if Sx else "s_barrier")
            if Sx == 0:
                stamp(11); fst(9, 11)
            rd(n); rd(n + 1)
            mm(n - 1)
            rd(n + 2)
            A("s_waitcnt lgkmcnt(6)")
            mm(n)
            rd(n + 3)
            if 0 < Sx < 17:
                g2_dma(Sx + 3)
            A("s_waitcnt lgkmcnt(6)")
            mm(n + 1)
            A("s_waitcnt lgkmcnt(3)")
            mm(n + 2)
            A("s_waitcnt lgkmcnt(0)")
        mm(79)
    else:
        FR = [16, 32]

        def mm(Sx, u):
            if Sx >= 0:
                f = FR[Sx & 1]
                A(f"{MF} {vr(ACC,4)}, {vr(f+8*u,4)}, {vr(f+8*u+4,4)}, {vr(ACC,4)}")

        for Sx in range(20):
            infl = 3 if Sx == 0 else min(Sx + 3, 20) - Sx - 1
            f, sb = FR[Sx & 1], slot(Sx)
            A(f"s_waitcnt vmcnt({2*infl})\ns_barrier" if Sx else "s_barrier")
            if 0 < Sx < 17:
                g2_dma(Sx + 3)
            mm(Sx - 1, 0)
            for u in range(2):
                for j in range(2):
                    A(f"ds_read_b64_tr_b16 {vr(f+8*u+2*j,2)}, v{vA} offset:{sb + 512*u + 64*j}")
                A(f"ds_read_b128 {vr(f+8*u+4,4)}, v{vB + u} offset:{sb}")
            mm(Sx - 1, 1)
            A("s_waitcnt lgkmcnt(0)")
        mm(19, 0); mm(19, 1)
    A(";MLO_OFF")
    stamp(7)
    bhi()
    srd(R2, P_OUT, 10485760)
    A(f"s_mul_i32 s44, s{S_W}, {2*PL}\ns_lshl_b32 s64, s{sTC}, 9\ns_add_u32 s44, s44, s64\ns_add_u32 s44, s44, {OP}\ns_lshl_b32 s46, s{S_W}, 10")
    if big:
        A(f"s_lshl_b32 s45, s{sTC}, 3\ns_add_u32 s45, s45, s{sNB}\ns_lshl_b32 s45, s45, 8\ns_lshl_b32 s64, s{S_W}, 6\ns_add_u32 s45, s45, s64\ns_add_u32 s45, s45, {PV4}")
        A(f"v_lshrrev_b32 v0, 9, v4\nv_mul_u32_u24 v0, {PL}, v0\nv_and_b32 v7, 0x1f0, v4\ns_and_b32 s64, s{S_W}, 1\ns_lshl_b32 s64, s64, 7\nv_xor_b32 v7, s64, v7\nv_add_u32 v7, v0, v7")
    for i in range(nacc):
        A(f"s_mov_b32 s64, {rows[i]*5120}\nbuffer_store_dword v{ACC+i}, v{vOut}, {S(R2)}, s64 offen offset:2560 {AUX[OPT['sty']]}")
    PIT = 336
    if big:
        if OPT["otouch"]:
            A(f"v_lshrrev_b32 v0, 6, v4\nv_min_u32 v0, 9, v0\nv_mul_u32_u24 v0, {PL}, v0\nv_and_b32 v1, 0x30, v4\nv_lshl_add_u32 v0, v1, 3, v0")
            A(f"s_and_b32 s64, s{sNB}, 3\ns_mul_i32 s64, s64, {10*PL}\ns_mul_i32 s65, s{S_W}, {38*PL}\ns_add_u32 s47, s64, s65\ns_add_u32 s47, s47, s44")
        spoll([(8, 8, 0)], 45)
        if OPT["otouch"]:
            A(f"buffer_load_dword v8, v0, {S(WS)}, s47 offen sc1")
    A("s_barrier")
    stamp(8); fst(5, 0)
    def odma(i):
        for st in (i, 5 + i):
            A(f"s_add_u32 m0, s46, {8192*st}\ns_add_u32 s64, s44, {16*PL*st}")
            dma(vOs, WS, 64, "sc1")

    odma(0)
    if OPT["opord"]:
        A("s_barrier")
    for i in range(1, 5):
        odma(i)
    A(f"v_mbcnt_lo_u32_b32 v0, -1, 0\nv_mbcnt_hi_u32_b32 v0, -1, v0")
    if big:
        A(f"s_lshr_b32 s64, s{S_W}, 1\ns_mul_i32 s65, s64, {40960 + 32*PIT}\ns_and_b32 s66, s{S_W}, 1\ns_lshl_b32 s66, s66, 7\ns_add_u32 s65, s65, s66")
        A(f"v_and_b32 v2, 31, v0\nv_mul_u32_u24 v2, {PIT}, v2\nv_lshrrev_b32 v3, 5, v0\nv_lshl_add_u32 v2, v3, 4, v2\nv_add_u32 v2, s65, v2")
        A(f"s_mul_i32 s67, s64, {-64*PIT & 0xffffffff}\ns_add_u32 s67, s67, {32*PIT}\nv_add_u32 v7, s67, v2")
        A(f"v_xor_b32 v1, 256, v{vO}")
    else:
        A(f"s_mul_i32 s65, s95, {16*PIT}\ns_add_u32 s65, s65, 256\nv_and_b32 v2, 15, v0\nv_mul_u32_u24 v2, {PIT}, v2\nv_lshrrev_b32 v3, 4, v0\nv_lshl_add_u32 v2, v3, 4, v2\nv_add_u32 v2, s65, v2")
        for i in range(4):
            A(f"v_mov_b32 v{8+i}, 0")
    A(f"s_lshl_b32 s64, s{S_W}, 6\nv_add_u32 v0, s64, v0\nv_mul_u32_u24 v3, 3277, v0\nv_lshrrev_b32 v3, 16, v3\nv_mul_u32_u24 v5, 20, v3\nv_sub_u32 v0, v0, v5\nv_lshlrev_b32 v0, 4, v0")
    A(f"s_mul_i32 s64, s{sTC}, {64*5120}\ns_mul_i32 s65, s{sNB}, 320\ns_add_u32 s47, s64, s65\nv_mul_u32_u24 v5, 5120, v3\nv_add_u32 v5, v5, v0\nv_mul_u32_u24 v3, {PIT}, v3\nv_add_u32 v3, v3, v0")
    steps = {0: 8, 4: 4, 12: 0}
    if big:
        ne = uid("NE")
        A(f"s_cmp_lg_u32 s{sTC}, 31\ns_cbranch_scc1 {ne}\ns_or_b32 s64, s{sNB}, s{S_W}\ns_cmp_lg_u32 s64, 0\ns_cbranch_scc1 {ne}")
        A(f"s_waitcnt vmcnt(0)\nv_mov_b32 v8, s{S_E}\ns_mov_b64 exec, 1\nbuffer_store_dword v8, off, {S(WS)}, 0 offset:{EPOCH} sc1\ns_mov_b64 exec, -1\ns_waitcnt vmcnt(0)\n{ne}:")
        free = [8, 12]
        loc = {}
        order = []

        def issue(n, t):
            f = free.pop(0)
            loc[(n, t)] = f
            i, u = n >> 2, n & 3
            for j in range(2):
                A(f"ds_read_b64 {vr(f+2*j,2)}, v{vO if t == 0 else 1} offset:{8192*i + 2048*u + 512*j}")
            order.append((n, t))

        todo = [(n, t) for n in range(16) for t in range(2)] + [(n, 1) for n in range(16, 20)] + [(n, 0) for n in range(16, 20)]
        nxt = 0
        done = {}
        lim = 0
        for k, (n, t) in enumerate(todo):
            if n in steps and t == 0:
                if n == 0:
                    fst(5, 1)
                A(f"s_waitcnt vmcnt({steps[n]})\ns_barrier")
                fst(5, 2 + list(steps).index(n))
                lim = {0: 8, 4: 24, 12: 40}[n]
            while nxt < lim and free and nxt - k < 6:
                issue(*todo[nxt]); nxt += 1
            pend = len(order) - 1 - order.index((n, t))
            if (n, t) == (17, 0):
                assert nxt == len(todo)
                A("s_nop 7\ns_waitcnt lgkmcnt(0)")
            elif t == 0 and n > 17:
                for g in (2 * (n - 18), 2 * (n - 18) + 1):
                    A(f"ds_write_b128 v7, {vr(ACC+16+4*g,4)} offset:{32*g}")
            else:
                A(f"s_waitcnt lgkmcnt({2*pend})")
            c = "0" if n == 0 else vr(ACC + 16 * t, 16)
            A(f"{MF} {vr(ACC+16*t,16)}, {vr(WF+4*n,4)}, {vr(loc[(n,t)],4)}, {c}")
            free.append(loc[(n, t)])
            done[n] = done.get(n, 0) + 1
            if done[n] == 2:
                free.append(WF + 4 * n)
        fst(5, 5)
        A("s_nop 11")
        for g in range(4):
            A(f"ds_write_b128 v2, {vr(ACC+4*g,4)} offset:{32*g}")
    else:
        first = True
        for si, (i0, i1) in enumerate(((0, 1), (1, 3), (3, 5))):
            A(f"s_waitcnt vmcnt({[8, 4, 0][si]})\ns_barrier")
            for i in range(i0, i1):
                f = 16 + 16 * (i & 1)
                for h in range(2):
                    for U in range(2):
                        for j in range(2):
                            A(f"ds_read_b64 {vr(f+8*h+4*U+2*j,2)}, v{vO+h} offset:{8192*i + 4096*U + 512*j}")
            for i in range(i0, i1):
                f = 16 + 16 * (i & 1)
                for h in range(2):
                    for U in range(2):
                        A(f"s_waitcnt lgkmcnt({8*(i1-1-i) + 6 - 4*h - 2*U})")
                        c = "0" if first else vr(ACC, 4)
                        first = False
                        A(f"{MF} {vr(ACC,4)}, {vr(WF+40*h+8*i+4*U,4)}, {vr(f+8*h+4*U,4)}, {c}")
        A(f"ds_write_b128 v2, v[8:11] offset:40960\ns_nop 6\nds_write_b128 v2, {vr(ACC,4)}")
    A("s_waitcnt lgkmcnt(0)\ns_barrier")
    fst(5, 6)
    if not big:
        A(f"s_cmp_ge_u32 s{S_W}, 5\ns_cbranch_scc1 L_B_DONE")
    for m in range(4):
        A(f"ds_read_b128 {vr(48+8*m,4)}, v3 offset:{16*PIT*m}\nds_read_b128 {vr(52+8*m,4)}, v3 offset:{40960 + 16*PIT*m}")
    for m in range(4):
        A(f"s_waitcnt lgkmcnt({6-2*m})")
        for c in range(2):
            A(f"v_pk_add_f32 {vr(48+8*m+2*c,2)}, {vr(48+8*m+2*c,2)}, {vr(52+8*m+2*c,2)}")
        A(f"buffer_store_dwordx4 {vr(48+8*m,4)}, v5, {S(R2)}, s47 offen {AUX[OPT['sto']]}")
        if m < 3:
            A(f"s_add_u32 s47, s47, {16*5120}")
    if not big:
        A("L_B_DONE:")
    fst(5, 7)
    stamp(9)
    if OPT["stamps"]:
        A("s_waitcnt vmcnt(0)")
        stamp(10); fst(5, 8)
    dump_stamps(12)
    A("s_endpgm")


def wrap_mfma():
    out, on, i = [], False, 0
    for k, l in enumerate(L):
        if l.startswith(";MLO_ON"):
            on = 2 if l.endswith("2") else 1
            continue
        if l == ";MLO_OFF":
            on = False
            continue
        if on and OPT["mlo"] and l.startswith("v_mfma"):
            if not L[k - 1].startswith("v_mfma"):
                out.append(f"s_setprio {OPT['mlv']}")
            out.append(l)
            if not L[k + 1].startswith("v_mfma"):
                out.append("s_setprio 3")
                if on == 1 and OPT.get("pace"):
                    out.append(f"s_sleep {OPT['pace']}")
            elif on == 1 and OPT.get("pace1"):
                out.append(f"s_sleep {OPT['pace1']}")
        else:
            out.append(l)
    L[:] = out


DOC = """\
;    softmax: p = exp2(s) is accumulated unshifted together with its row sum l (ones rows of the P.V product). The shift 0 is only
"""


def build():
    hdr = open("cdna_kernels/" + NAME + ".s.ref").read().split("\n")
    out = [l for l in hdr if l.startswith(";") and "@launch" not in l]
    out.append("; @launch grid=(512,1,1) block=(512,1,1) lds=81920")
    out.append('.amdgcn_target "amdgcn-amd-amdhsa--gfx950"')
    out.append(DOC)
    out.append(".text")
    out.append(f".globl {NAME}_kernel\n.p2align 8\n.type {NAME}_kernel,@function\n{NAME}_kernel:")
    qkv()
    attention()
    qkv_idle()
    role_b()
    A("L_END:\ns_endpgm")
    wrap_mfma()
    for l in L:
        out.append(l if l.endswith(":") or l.startswith(".") else "    " + l)
    out.append(f""".section .rodata,"a"
.p2align 6
.amdhsa_kernel {NAME}_kernel
  .amdhsa_next_free_vgpr 128
  .amdhsa_next_free_sgpr 102
  .amdhsa_accum_offset 128
  .amdhsa_group_segment_fixed_size 0
  .amdhsa_kernarg_size 120
  .amdhsa_user_sgpr_count 2
  .amdhsa_user_sgpr_kernarg_segment_ptr 1
  .amdhsa_system_sgpr_workgroup_id_x 1
.end_amdhsa_kernel""")
    return "\n".join(out) + "\n"


if __name__ == "__main__":
    txt = build()
    open(sys.argv[1], "w").write(txt)
    sys.path.insert(0, "gen")
    import hazard
    e = hazard.check(txt)
    print("\n".join(e) if e else "hazard check: clean")
```

```python
import sys, struct, math

NAME = "concat_heads__softmax_full_mha__ssm_conv_s5__prompt"

OPT = dict(stamps=0, spin=400000, force_fb=0, g2s=6, g2q=6, tog=2, stg=1, g1p=0, g2p=0, htouch=0, ctouch=1, sty=2, sto=2,
           cpre=1, lscan=0, brot=0, t1=0, mlo=1, gk=0, hs=16, qst=1, sp1=1, otouch=0, qord=1, lastw=1, mlv=0, wearly=1, fill0=16, nfill=4, post=1, q16=1, opord=1)
for a in sys.argv[2:]:
    k, v = a.split("=")
    OPT[k] = int(v)

PL = 16384
EPOCH = 0
F1 = 0x1000
F2 = 0x2000
F3 = 0x3000
F0 = 0x8000
F0B = 0x10000
F0C = 0x18000
STAMP = 0x20000
EB = 0x48000
PV1 = 0xA0000
PV4 = 0xB0000
PV2 = 0xC0000
PV3 = 0xD0000
QKVP = 0x100000
OP = 0xA00000
HB = 0xD00000
WS_USED = 0x1300000
OOB = 0x80000000
AUX = ['', 'nt', 'sc1', 'sc1 nt', 'sc0 sc1']

L = []


def A(s):
    for ln in s.strip("\n").split("\n"):
        L.append(ln.strip())


def f2u(x):
    return struct.unpack("<I", struct.pack("<f", x))[0]


def vr(a, n):
    return f"v[{a}:{a+n-1}]" if n > 1 else f"v{a}"


P_AX, P_WQKV, P_WO, P_BX, P_LRE, P_LIM, P_BRE, P_BIM, P_CRE, P_CIM, P_LDT, P_DSK, P_OUT, P_DBG = range(8, 36, 2)
S_E = 6
S_W = 40
R0, R1, R2, WS, R3 = 44, 48, 52, 56, 60
WSP = f"s[{WS}:{WS+1}]"
EP = f"s[{S_E}:{S_E+1}]"
ST0 = 70
_uid = [0]


def uid(p):
    _uid[0] += 1
    return f"{p}_{_uid[0]}"


def srd(r, p, n):
    A(f"s_mov_b32 s{r}, s{p}\ns_mov_b32 s{r+1}, s{p+1}\ns_mov_b32 s{r+2}, {n}\ns_mov_b32 s{r+3}, 0x20000")


def S(r):
    return f"s[{r}:{r+3}]"


def stamp(k):
    if OPT["stamps"] and not OPT.get("fm"):
        A(f"s_memrealtime s[{ST0+2*k}:{ST0+2*k+1}]")


def cstamp(k):
    if OPT["stamps"] and not OPT.get("fm"):
        A(f"s_memtime s[{ST0+2*k}:{ST0+2*k+1}]")


def fst(mode, k):
    if OPT.get("fm") == mode:
        A(f"s_memtime s[{ST0+2*k}:{ST0+2*k+1}]")


def rst(mode, k):
    if OPT.get("fm") == mode:
        A(f"s_memrealtime s[{ST0+2*k}:{ST0+2*k+1}]")


def dump_stamps(n, role="B"):
    if not OPT["stamps"]:
        return
    if OPT.get("amp"):
        if (role == "A") == (OPT["sel"] < 256):
            sk, lp = uid("AK"), uid("AL")
            A(f"s_waitcnt lgkmcnt(0)\ns_cmp_lg_u32 s2, {OPT['sel']}\ns_cbranch_scc1 {sk}\ns_cmp_lg_u32 s{S_W}, 0\ns_cbranch_scc1 {sk}")
            A(f"s_sub_u32 s64, s{ST0+2*OPT['k1']}, s{ST0+2*OPT['k0']}\ns_mul_i32 s64, s64, {OPT['amp']}\ns_min_u32 s64, s64, 100000\ns_add_u32 s64, s64, s{ST0}")
            A(f"{lp}:\ns_memrealtime s[66:67]\ns_waitcnt lgkmcnt(0)\ns_sub_u32 s66, s66, s64\ns_cmp_lt_i32 s66, 0\ns_cbranch_scc1 {lp}\n{sk}:")
        return
    sk = uid("SK")
    A(f"s_waitcnt lgkmcnt(0)\ns_cmp_lg_u32 s{S_W}, {OPT.get('fw', 0)}\ns_cbranch_scc1 {sk}")
    A(f"s_lshl_b32 s64, s2, 7\ns_add_u32 s64, s64, {STAMP}\ns_mov_b64 exec, 1")
    for k in range(n):
        A(f"v_mov_b32 v120, s{ST0+2*k}\nv_mov_b32 v121, s{ST0+2*k+1}")
        A(f"buffer_store_dwordx2 v[120:121], off, {S(WS)}, s64 offset:{8*k}")
        A("s_waitcnt vmcnt(0)")
    A(f"s_mov_b64 exec, -1\n{sk}:")


def flag_store(soff, t=120, wave=0):
    sk = uid("FS")
    A(f"s_cmp_lg_u32 s{S_W}, {wave}\ns_cbranch_scc1 {sk}")
    A(f"v_mov_b32 v{t}, s{S_E}\nv_mov_b32 v{t+1}, s{S_E+1}\ns_mov_b64 exec, 1")
    A(f"buffer_store_dwordx2 v[{t}:{t+1}], off, {S(WS)}, s{soff} sc1")
    A(f"s_mov_b64 exec, -1\n{sk}:")


def poll(vaddrs, t=120):
    lp, dn = uid("PL"), uid("PD")
    A(f"s_mov_b32 s64, {OPT['spin']}\n{lp}:")
    for i, va in enumerate(vaddrs):
        A(f"buffer_load_dwordx2 v[{t+2*i}:{t+2*i+1}], v{va}, {S(WS)}, 0 offen sc1")
    A("s_waitcnt vmcnt(0)")
    for i, va in enumerate(vaddrs):
        if i == 0:
            A(f"v_cmp_ne_u64 vcc, {EP}, v[{t}:{t+1}]")
        else:
            A(f"v_cmp_ne_u64 s[66:67], {EP}, v[{t+2*i}:{t+2*i+1}]\ns_or_b64 vcc, vcc, s[66:67]")
    A(f"s_cbranch_vccz {dn}\ns_sub_u32 s64, s64, 1\ns_cmp_lg_u32 s64, 0\ns_cbranch_scc1 {lp}\n{dn}:")


def spoll(blocks, soff, need=None, cnt=64, msk=65):
    lp, dn = uid("SP"), uid("SD")
    A(f"s_mov_b32 s{cnt}, {OPT['spin']}\n{lp}:")
    tot = 0
    for dst, n, off in blocks:
        A(f"s_load_dwordx{2*n} s[{dst}:{dst+2*n-1}], {WSP}, s{soff} offset:{off} glc")
        tot += n
    A(f"s_mov_b32 s{msk}, 0\ns_waitcnt lgkmcnt(0)")
    for dst, n, off in blocks:
        for i in range(n):
            A(f"s_cmp_eq_u64 s[{dst+2*i}:{dst+2*i+1}], {EP}\ns_addc_u32 s{msk}, s{msk}, s{msk}")
    if need is None:
        A(f"s_cmp_eq_u32 s{msk}, {(1 << tot) - 1}")
    else:
        A(f"s_andn2_b32 s{msk}, s{need}, s{msk}\ns_cmp_eq_u32 s{msk}, 0")
    A(f"s_cbranch_scc1 {dn}")
    if tot <= 8:
        A("s_sleep 2")
    A(f"s_sub_u32 s{cnt}, s{cnt}, 1\ns_cmp_lg_u32 s{cnt}, 0\ns_cbranch_scc1 {lp}\n{dn}:")


def bhi():
    A("s_setprio 3")


def blo():
    A("s_setprio 0")


def dma(vaddr, rsrc, soff, aux=""):
    A(f"buffer_load_dwordx4 v{vaddr}, {S(rsrc)}, s{soff} offen {aux} lds".replace("  ", " "))


def epoch_fix():
    A(f"s_mul_i32 s{S_E}, s{S_E}, 0x9E3779B1\ns_add_u32 s{S_E}, s{S_E}, 0x7F4A7C15\ns_xor_b32 s{S_E+1}, s{S_E}, 0x5bd1e995")


MF32 = "v_mfma_f32_32x32x16_bf16"
MF8 = "v_mfma_f32_32x32x8_bf16"
MF16 = "v_mfma_f32_16x16x32_bf16"

PS = 2080
SLOT = 11 * PS
RED = 2 * SLOT
BADW = 81912
sST0, sST1, sF1, sSC, sH, sQB, sG, sLd, sQ, sPV1, sNEED, sH1, sH2, sPass, sChk, sO0, sO1, sPV4 = \
    8, 9, 10, 12, 14, 15, 16, 19, 22, 25, 26, 27, 28, 29, 30, 31, 32, 33
vD, vTok, vK, vK1, vV, vF6, vF7, vPush, vQa, vOnes = 123, 124, 125, 126, 127, 121, 122, 120, 112, 116


def att_setup(sRB, sCB):
    G = []
    g = G.append
    g(f"s_and_b32 s34, s2, 7\ns_bfe_u32 s{sQB}, s2, 0x30003\ns_bfe_u32 s35, s2, 0x20006\ns_lshl_b32 s{sH}, s34, 2\ns_add_u32 s{sH}, s{sH}, s35")
    g(f"s_mul_i32 s36, s{sH}, 5\ns_add_u32 s37, s36, 4\ns_lshr_b32 s38, s36, 5\ns_lshr_b32 s37, s37, 5\ns_sub_u32 s37, s37, s38")
    g(f"s_lshl_b32 s{sPV1}, s{sH}, 3\ns_add_u32 s{sPV1}, s{sPV1}, s{sQB}\ns_lshl_b32 s{sPV1}, s{sPV1}, 8\ns_add_u32 s{sPV1}, s{sPV1}, {PV1}")
    g(f"s_mov_b32 s{sNEED}, 0xf0f0c\ns_cmp_eq_u32 s37, 0\ns_cselect_b32 s{sNEED}, s{sNEED}, 0xfffff\ns_mov_b32 s{sPass}, 0\ns_min_u32 s{sChk}, s{S_W}, 1")
    g(f"v_bfe_u32 v11, v1, 4, 1\nv_mul_u32_u24 v11, s37, v11\nv_add_u32 v11, s38, v11\nv_lshrrev_b32 v14, 5, v1\nv_mul_u32_u24 v12, 15, v14\nv_max_u32 v12, v11, v12")
    g(f"v_mul_u32_u24 v13, 5, v14\nv_add3_u32 v11, v11, v13, 5\nv_and_b32 v13, 15, v1\nv_lshlrev_b32 v15, 3, v13\nv_add_u32 v15, {F1}, v15")
    g(f"v_lshl_add_u32 v{vF6}, v11, 7, v15\nv_lshl_add_u32 v{vF7}, v12, 7, v15\nv_lshlrev_b32 v{vD}, 4, v1")
    g(f"s_lshl_b32 s{sH1}, s2, 7\ns_add_u32 s{sH2}, s{sH1}, {F0B}\ns_add_u32 s{sH1}, s{sH1}, {F0}")
    for m in range(3):
        g(f"s_add_u32 s34, s{S_W}, {8*m}\ns_lshr_b32 s35, s34, 1\ns_and_b32 s34, s34, 1\ns_lshl_b32 s34, s34, 10\ns_mul_i32 s{sLd+m}, s35, {PS}\ns_add_u32 s{sLd+m}, s{sLd+m}, s34")
        g(f"s_cmp_ge_u32 s35, 5\ns_cselect_b32 s39, 155, 0\ns_add_u32 s35, s35, s39\ns_add_u32 s35, s35, s36\ns_mul_i32 s35, s35, {PL}\ns_add_u32 s35, s35, s34\ns_add_u32 s{sG+m}, s35, {QKVP + 160*PL}")
    g(f"s_lshr_b32 s34, s{S_W}, 1\ns_min_u32 s34, s34, 2\ns_mul_i32 s34, s34, {SLOT}\ns_and_b32 s35, s{S_W}, 1\ns_lshl_b32 s35, s35, 10\ns_add_u32 s34, s34, s35\ns_add_u32 s34, s34, {10*PS}\nv_add_u32 v{vOnes}, s34, v{vD}")
    g(f"s_and_b32 s34, s{S_W}, 3\ns_lshl_b32 s34, s34, 6\ns_lshr_b32 s35, s{S_W}, 2\ns_lshl_b32 s39, s35, 5\ns_add_u32 s34, s34, s39\ns_lshl_b32 s35, s35, 7")
    g(f"v_lshl_add_u32 v15, v13, 1, s34\nv_lshlrev_b32 v{vTok}, 3, v15\nv_bfe_u32 v12, v1, 4, 1\nv_lshl_add_u32 v15, v12, 3, v{vTok}\nv_xor_b32 v16, 256, v15")
    g(f"v_mul_u32_u24 v17, {2*PL}, v14\nv_add_u32 v{vQa}, v17, v15\nv_add_u32 v{vQa+2}, v17, v16\nv_lshlrev_b32 v17, 31, v14\nv_or_b32 v{vQa+1}, v17, v15\nv_or_b32 v{vQa+3}, v17, v16")
    g(f"v_and_b32 v15, 31, v1\nv_add_u32 v15, s35, v15\nv_lshlrev_b32 v15, 3, v15\nv_mul_u32_u24 v16, {2*PS}, v14\nv_add_u32 v{vK}, v16, v15")
    g(f"v_mul_u32_u24 v16, {6*PS}, v14\nv_add_u32 v16, {4*PS}, v16\nv_add_u32 v{vK1}, v16, v15\nv_and_b32 v16, 3, v1\nv_lshl_add_u32 v16, v12, 2, v16\nv_min_u32 v16, 5, v16")
    g(f"v_add_u32 v16, 5, v16\nv_mul_u32_u24 v16, {PS}, v16\nv_bfe_u32 v17, v1, 2, 2\nv_lshl_add_u32 v17, v14, 2, v17\nv_add_u32 v17, s35, v17\nv_lshl_add_u32 v{vV}, v17, 3, v16")
    g(f"s_mul_i32 s34, s36, {PL}\ns_lshl_b32 s35, s{sQB}, 11\ns_add_u32 s34, s34, s35\ns_add_u32 s{sQ}, s34, {QKVP}\ns_add_u32 s{sQ+1}, s{sQ}, {PL}\ns_add_u32 s{sQ+2}, s{sQ}, {4*PL}")
    g(f"s_add_u32 s{sO0}, s34, {OP}\ns_add_u32 s{sO1}, s{sO0}, {4*PL}\ns_lshl_b32 s{sPV4}, s{sQB}, 13\ns_lshl_b32 s35, s{sH}, 3\ns_add_u32 s{sPV4}, s{sPV4}, s35\ns_add_u32 s{sPV4}, s{sPV4}, {PV4}")
    if sRB is None:
        g(f"v_mov_b32 v{vPush}, {OOB}\ns_sub_u32 s{sF1}, s2, 240\ns_lshl_b32 s{sF1}, s{sF1}, 3\ns_add_u32 s{sF1}, s{sF1}, {F1 + 15*128}")
        return G
    c = 20 ** -0.5 * math.log2(math.e)
    g(f"s_cmp_lt_u32 s{sCB}, 5\ns_cselect_b32 s{sSC}, {f2u(c)}, 1.0\ns_mov_b32 s{sSC+1}, s{sSC}\ns_lshl_b32 s{sF1}, s{sCB}, 7\ns_lshl_b32 s34, s{sRB}, 3\ns_add_u32 s{sF1}, s{sF1}, s34\ns_add_u32 s{sF1}, s{sF1}, {F1}")
    g(f"s_mul_i32 s{sST0}, s{sCB}, {32*PL}\ns_lshl_b32 s34, s{sRB}, 10\ns_add_u32 s{sST0}, s{sST0}, s34\ns_add_u32 s{sST0}, s{sST0}, {QKVP}\ns_add_u32 s{sST1}, s{sST0}, {4*PL}")
    g(f"s_cmp_ge_u32 s{sCB}, 10\ns_cselect_b32 s38, 10, 5\ns_cselect_b32 s35, 8, 0\ns_sub_u32 s34, s{sCB}, s38\ns_add_u32 s35, s35, s{sRB}\ns_cmp_lt_u32 s{sRB}, 4\ns_cselect_b32 s37, 1, 0")
    g(f"s_and_b32 s38, s{sRB}, 1\ns_add_u32 s38, s38, 16\ns_cmp_lt_u32 s{sCB}, 5\ns_cselect_b32 s34, s{sCB}, s34\ns_cselect_b32 s35, s38, s35\ns_cselect_b32 s36, 2, 4\ns_cselect_b32 s37, 2, s37")
    g(f"s_mul_i32 s38, s34, {6554*32}\ns_lshr_b32 s38, s38, 15\nv_lshrrev_b32 v11, 3, v1\nv_add_u32 v11, s38, v11\nv_mul_u32_u24 v12, 5, v11\nv_lshrrev_b32 v13, 5, v12\ns_lshr_b32 s39, s{sRB}, 1")
    g(f"v_cmp_ge_u32 s[68:69], s34, v13\nv_cmp_ne_u32 vcc, s34, v13\nv_and_b32 v13, 7, v1\nv_lshl_add_u32 v11, v11, 3, v13\nv_cndmask_b32 v12, 0, 1, vcc\nv_mul_u32_u24 v12, s36, v12\nv_add_u32 v12, s35, v12")
    g(f"v_cmp_eq_u32 vcc, s39, v13\ns_cmp_eq_u32 s37, 2\ns_cselect_b64 vcc, vcc, -1\ns_and_b64 s[68:69], s[68:69], vcc\ns_cmp_eq_u32 s37, 0\ns_cselect_b64 s[68:69], 0, s[68:69]")
    g(f"v_lshlrev_b32 v11, 8, v11\nv_lshl_add_u32 v11, v12, 3, v11\nv_add_u32 v11, {PV1}, v11\nv_mov_b32 v{vPush}, {OOB}\nv_cndmask_b32 v{vPush}, v{vPush}, v11, s[68:69]")
    return G


def qkv():
    sRB, sCB, sKX, sKW, sMX, sMW, sT = 41, 42, 43, 64, 65, 66, 67
    vX0, vX1, vWs, vWr, vXr = 2, 3, 4, 5, 6
    ACC = 32
    FR = [64, 88]
    A("s_cmp_ge_u32 s2, 256\ns_cbranch_scc1 L_ROLE_B")
    stamp(0); fst(7, 0)
    A(f"s_load_dwordx2 s[{R0}:{R0+1}], s[0:1], 0\ns_load_dwordx2 s[{R1}:{R1+1}], s[0:1], 8\ns_load_dwordx2 s[{WS}:{WS+1}], s[0:1], 112")
    A(f"v_lshrrev_b32 v2, 6, v0\nv_and_b32 v1, 63, v0\nv_readfirstlane_b32 s{S_W}, v2")
    A(f"s_lshr_b32 s{sCB}, s2, 4\ns_and_b32 s{sCB}, s{sCB}, 14\ns_bfe_u32 s{sT}, s2, 0x10002\ns_or_b32 s{sCB}, s{sCB}, s{sT}")
    A(f"s_lshr_b32 s{sRB}, s2, 1\ns_and_b32 s{sRB}, s{sRB}, 12\ns_and_b32 s{sT}, s2, 3\ns_or_b32 s{sRB}, s{sRB}, s{sT}")
    A(f"s_cmp_eq_u32 s{sCB}, 15\ns_cselect_b32 s{sT}, 8, 0\ns_add_u32 s{sRB}, s{sRB}, s{sT}\ns_min_u32 s{sCB}, s{sCB}, 14")
    if OPT["qst"]:
        A(f"s_mov_b32 s{sKX}, 0")
    else:
        if OPT.get("qrot", 2) == 2:
            A(f"s_and_b32 s{sKX}, s2, 7")
        elif OPT["qrot"] == 1:
            A(f"s_mul_i32 s{sKX}, s{sRB}, 3\ns_add_u32 s{sKX}, s{sKX}, s{sCB}\ns_mul_i32 s{sT}, s{sKX}, 205\ns_lshr_b32 s{sT}, s{sT}, 11\ns_mul_i32 s{sT}, s{sT}, 10\ns_sub_u32 s{sKX}, s{sKX}, s{sT}")
        else:
            A(f"s_bfe_u32 s{sKX}, s2, 0x10003\ns_mul_i32 s{sKX}, s{sKX}, 5")
        A(f"s_mul_i32 s{sKW}, s{sKX}, {2*122880}\ns_lshl_b32 s{sKX}, s{sKX}, 7")
    A(f"s_lshl_b32 s{sT}, s{sRB}, 7\ns_lshr_b32 s68, s{S_W}, 1\ns_lshl_b32 s68, s68, 5\ns_add_u32 s{sT}, s{sT}, s68\ns_and_b32 s68, s{S_W}, 1\ns_add_u32 s{sT}, s{sT}, s68")
    A(f"v_lshrrev_b32 v10, 3, v1\nv_lshl_add_u32 v10, v10, 1, s{sT}\nv_mul_u32_u24 v10, 1280, v10")
    A(f"v_lshrrev_b32 v11, 4, v1\nv_and_b32 v12, 7, v1\nv_xor_b32 v12, v12, v11\nv_lshl_add_u32 v{vX0}, v12, 4, v10")
    A(f"s_lshl_b32 s{sMX}, s{S_W}, 11\ns_mov_b32 s{R0+2}, 2621440\ns_mov_b32 s{R0+3}, 0x20000\ns_mov_b32 m0, s{sMX}")
    A("s_cmp_ge_u32 s2, 240\ns_cbranch_scc1 L_QKV_IDLE")
    fst(7, 1)
    A("s_waitcnt lgkmcnt(0)")
    issued = []

    def dmaX(Sx, between=None):
        if OPT["qst"]:
            for i in range(2):
                if Sx or i:
                    A(f"s_add_u32 m0, s{sMX}, {(Sx % 3) * 16384 + i * 1024}")
                    A(f"s_movk_i32 s{sKX}, {128 * Sx}" if i == 0 else "s_nop 0")
                dma(vX0 + i, R0, sKX, 'nt' if OPT.get('ntx') else '')
                issued.append(("X", Sx))
                if between and i == 0:
                    between()
            return
        for i in range(2):
            if Sx or i:
                A(f"s_add_u32 m0, s{sMX}, {(Sx % 3) * 16384 + i * 1024}\ns_nop 0")
            dma(vX0 + i, R0, sKX, 'nt' if OPT.get('ntx') else '')
            issued.append(("X", Sx))
            if between and i == 0:
                between()
        A(f"s_add_u32 s{sKX}, s{sKX}, 128\ns_cmp_eq_u32 s{sKX}, 1280\ns_cselect_b32 s{sKX}, 0, s{sKX}")

    def dmaW(s):
        if OPT["qst"]:
            A(f"s_add_u32 m0, s{sMW}, {(s % 4) * 8192}\ns_mov_b32 s{sKW}, {122880 * s}")
            dma(vWs, R1, sKW, 'nt' if OPT.get('ntw') else '')
            issued.append(("W", s))
            return
        A(f"s_add_u32 m0, s{sMW}, {(s % 4) * 8192}\ns_nop 0")
        dma(vWs, R1, sKW, 'nt' if OPT.get('ntw') else '')
        issued.append(("W", s))
        A(f"s_add_u32 s{sKW}, s{sKW}, 122880\ns_cmp_eq_u32 s{sKW}, 2457600\ns_cselect_b32 s{sKW}, 0, s{sKW}")

    dmaX(0, lambda: A(f"v_xor_b32 v{vX1}, 64, v{vX0}\nv_add_u32 v{vX1}, 20480, v{vX1}"))
    A(f"s_lshl_b32 s68, s{S_W}, 2\nv_add_u32 v10, s68, v11\nv_mul_u32_u24 v10, 3840, v10")
    if OPT["q16"]:
        A(f"s_and_b32 s68, s{S_W}, 2\ns_lshl_b32 s68, s68, 2\nv_and_b32 v12, 15, v1\nv_lshl_add_u32 v13, v11, 1, s68\nv_xor_b32 v12, v12, v13\nv_lshl_add_u32 v10, v12, 4, v10")
    else:
        A(f"v_and_b32 v12, 15, v1\nv_lshlrev_b32 v13, 2, v11\nv_xor_b32 v12, v12, v13\nv_lshl_add_u32 v10, v12, 4, v10")
    A(f"s_lshl_b32 s68, s{sCB}, 8\nv_add_u32 v{vWs}, s68, v10\ns_lshl_b32 s{sMW}, s{S_W}, 10\ns_add_u32 s{sMW}, s{sMW}, 49152")
    A(f"s_mov_b32 s{R1+2}, 2457600\ns_mov_b32 s{R1+3}, 0x20000")
    dmaW(0)
    fst(7, 2)
    A(f"s_load_dword s{S_E}, {WSP}, {EPOCH}\ns_mov_b32 s{WS+2}, {WS_USED}\ns_mov_b32 s{WS+3}, 0x20000\ns_barrier")
    fst(7, 3)
    dmaW(1); dmaX(1); dmaW(2); dmaW(3); dmaX(2)
    fst(7, 4)
    if OPT["q16"]:
        A(f"v_lshrrev_b32 v10, 4, v1\nv_bfe_u32 v11, v1, 2, 2\nv_lshl_add_u32 v12, v10, 3, v11\nv_lshlrev_b32 v12, 8, v12")
        A(f"s_and_b32 s68, s{S_W}, 3\ns_lshl_b32 s68, s68, 2\nv_bfe_u32 v13, v1, 1, 1\nv_add_u32 v13, s68, v13")
        A(f"v_and_b32 v14, 1, v10\nv_lshl_add_u32 v11, v14, 2, v11\nv_lshlrev_b32 v11, 1, v11\nv_xor_b32 v13, v13, v11\nv_lshl_add_u32 v12, v13, 4, v12")
        A(f"v_and_b32 v14, 1, v1\nv_lshl_add_u32 v12, v14, 3, v12\nv_add_u32 v5, 49152, v12\nv_xor_b32 v6, 32, v5")
        A(f"s_lshr_b32 s68, s{S_W}, 2\ns_lshl_b32 s68, s68, 6\nv_and_b32 v11, 15, v1\nv_add_u32 v12, s68, v11\nv_lshlrev_b32 v12, 7, v12")
        A(f"v_lshrrev_b32 v13, 1, v11\nv_xor_b32 v13, v13, v10\nv_lshl_add_u32 v7, v13, 4, v12\nv_xor_b32 v8, 64, v7")
        fst(7, 5)
        G = [f"s_and_b32 s34, s{S_W}, 3\ns_lshl_b32 s34, s34, 3\nv_add_u32 v10, s34, v10\nv_mul_u32_u24 v10, {PL}, v10",
             f"v_and_b32 v11, 15, v1\nv_lshl_add_u32 v10, v11, 4, v10\ns_lshr_b32 s34, s{S_W}, 2\ns_lshl_b32 s34, s34, 9\nv_add_u32 v10, s34, v10"]
    else:
        A(f"v_lshrrev_b32 v10, 5, v1\nv_bfe_u32 v11, v1, 2, 2\nv_lshl_add_u32 v12, v10, 3, v11\nv_lshlrev_b32 v12, 8, v12")
        A(f"s_and_b32 s68, s{S_W}, 3\ns_lshl_b32 s68, s68, 2")
        A(f"v_bfe_u32 v13, v1, 4, 1\nv_lshlrev_b32 v13, 1, v13\nv_bfe_u32 v14, v1, 1, 1\nv_add3_u32 v13, v13, v14, s68")
        A(f"v_lshlrev_b32 v11, 2, v11\nv_xor_b32 v13, v13, v11\nv_lshl_add_u32 v12, v13, 4, v12")
        A(f"v_and_b32 v14, 1, v1\nv_lshl_add_u32 v12, v14, 3, v12\nv_add_u32 v{vWr}, 49152, v12")
        A(f"s_lshr_b32 s68, s{S_W}, 2\ns_lshl_b32 s68, s68, 6\nv_and_b32 v11, 31, v1\nv_add_u32 v12, s68, v11\nv_lshlrev_b32 v12, 7, v12")
        A(f"v_bfe_u32 v13, v1, 1, 3\nv_xor_b32 v13, v13, v10\nv_lshl_add_u32 v{vXr}, v13, 4, v12")
        for k in range(1, 4):
            A(f"v_xor_b32 v{vXr+k}, {32*k}, v{vXr}")
        fst(7, 5)
        G = [f"s_and_b32 s34, s{S_W}, 3\ns_lshl_b32 s34, s34, 3\nv_bfe_u32 v11, v1, 4, 1\nv_lshl_add_u32 v10, v11, 1, v10\nv_add_u32 v10, s34, v10\nv_mul_u32_u24 v10, {PL}, v10",
             f"v_and_b32 v11, 15, v1\nv_lshl_add_u32 v10, v11, 4, v10\ns_lshr_b32 s34, s{S_W}, 2\ns_lshl_b32 s34, s34, 9\nv_add_u32 v10, s34, v10"]
    GA = att_setup(sRB, sCB)
    post = []
    if OPT["post"]:
        post, GA = GA[:-8], GA[-8:]
    G += GA
    nf = OPT["nfill"]
    per = [G[len(G) * i // nf:len(G) * (i + 1) // nf] for i in range(nf)]

    def reads(s):
        f = FR[s & 1]
        ws, xs, b = (s % 4) * 8192, ((s >> 1) % 3) * 16384, s & 1
        if OPT["q16"]:
            for mi in range(2):
                for j in range(2):
                    A(f"ds_read_b64_tr_b16 {vr(f+4*mi+2*j, 2)}, v{5+mi} offset:{ws + 1024*j}")
                for ni in (2 * mi, 2 * mi + 1):
                    A(f"ds_read_b128 {vr(f+8+4*ni, 4)}, v{7+b} offset:{xs + 2048*ni}")
            return
        for u in range(2):
            for j in range(2):
                A(f"ds_read_b64_tr_b16 {vr(f+4*u+2*j, 2)}, v{vWr} offset:{ws + (16*u+4*j)*256}")
            for nt in range(2):
                A(f"ds_read_b128 {vr(f+8+8*u+4*nt, 4)}, v{vXr+2*b+u} offset:{xs + 4096*nt}")

    def mfma1(s, i):
        if s < 0:
            return
        f = FR[s & 1]
        if OPT["q16"]:
            for mi in range(2):
                a = ACC + 16 * mi + 4 * i
                A(f"{MF16} {vr(a,4)}, {vr(f+4*mi,4)}, {vr(f+8+4*i,4)}, {'0' if s == 0 else vr(a,4)}")
            return
        u, nt = i >> 1, i & 1
        c = "0" if (s == 0 and u == 0) else vr(ACC + 16 * nt, 16)
        A(f"{MF32} {vr(ACC+16*nt,16)}, {vr(f+4*u,4)}, {vr(f+8+8*u+4*nt,4)}, {c}")

    for s in range(20):
        last = max(i for i, t in enumerate(issued) if t in (("X", s >> 1), ("W", s)))
        A(f"s_waitcnt vmcnt({len(issued) - 1 - last})\ns_barrier")
        if s == 0:
            stamp(1); cstamp(10)
        if s < 4:
            fst(7, 6 + s)
        fill = per[s - OPT["fill0"]] if 0 <= s - OPT["fill0"] < nf else []
        mfma1(s - 1, 0)
        reads(s)
        mfma1(s - 1, 1)
        if s >= 1 and s + 3 < 20:
            dmaW(s + 3)
        if s & 1 == 0:
            pass
        else:
            for x in fill[:1]:
                A(x)
        mfma1(s - 1, 2)
        if s >= 2 and s % 2 == 0 and s // 2 + 2 < 10:
            dmaX(s // 2 + 2)
        if s == 1:
            epoch_fix()
        if OPT["gk"] and s == OPT["hs"]:
            A(f"s_lshl_b32 s3, s2, 7\ns_lshl_b32 s67, s{S_W}, 3\ns_add_u32 s3, s3, s67\ns_add_u32 s3, s3, {F0C}")
            A(f"v_mov_b32 v118, s{S_E}\nv_mov_b32 v119, s{S_E+1}\ns_mov_b64 exec, 1\nbuffer_store_dwordx2 v[118:119], off, {S(WS)}, s3 sc1\ns_mov_b64 exec, -1")
            issued.append(("H", 0))
        for x in (fill[1:] if s & 1 else fill):
            A(x)
        mfma1(s - 1, 3)
        A("s_waitcnt lgkmcnt(0)")
    for i in range(4):
        mfma1(19, i)
    stamp(2); cstamp(11); fst(8, 0)
    if OPT["q16"]:
        A("s_nop 2")
        for p in range(2):
            for mi in range(2):
                d = 64 + 8 * p + 4 * mi
                for k in range(2):
                    a = ACC + 16 * mi + 4 * (2 * p + k)
                    A(f"v_pk_mul_f32 {vr(a,2)}, {vr(a,2)}, s[{sSC}:{sSC+1}]\nv_pk_mul_f32 {vr(a+2,2)}, {vr(a+2,2)}, s[{sSC}:{sSC+1}]")
                    A(f"v_cvt_pk_bf16_f32 v{d+2*k}, v{a}, v{a+1}\nv_cvt_pk_bf16_f32 v{d+2*k+1}, v{a+2}, v{a+3}")
                A(f"buffer_store_dwordx4 {vr(d,4)}, v10, {S(WS)}, s{sST0 + mi} offen offset:{256*p} sc1")
    else:
        A("s_nop 10")
    for nt in range(0 if OPT["q16"] else 2):
        for g in range(4):
            a = ACC + 16 * nt + 4 * g
            A(f"v_pk_mul_f32 {vr(a,2)}, {vr(a,2)}, s[{sSC}:{sSC+1}]\nv_pk_mul_f32 {vr(a+2,2)}, {vr(a+2,2)}, s[{sSC}:{sSC+1}]")
            d = 64 + 8 * nt + 2 * g
            A(f"v_cvt_pk_bf16_f32 v{d}, v{a}, v{a+1}\nv_cvt_pk_bf16_f32 v{d+1}, v{a+2}, v{a+3}")
            if g & 1:
                d -= 2
                A(f"s_nop 0\nv_permlane16_swap_b32 v{d}, v{d+2}\nv_permlane16_swap_b32 v{d+1}, v{d+3}")
                A(f"buffer_store_dwordx4 {vr(d,4)}, v10, {S(WS)}, s{sST0 + (g >> 1)} offen offset:{256*nt} sc1")
    fst(8, 1)
    for x in post:
        A(x)


def qkv_idle():
    A(f"L_QKV_IDLE:\ns_waitcnt lgkmcnt(0)\ns_load_dword s{S_E}, {WSP}, {EPOCH}\ns_mov_b32 s{WS+2}, {WS_USED}\ns_mov_b32 s{WS+3}, 0x20000")
    for x in att_setup(None, None):
        A(x)
    A("s_waitcnt lgkmcnt(0)")
    epoch_fix()
    if OPT["gk"]:
        A(f"s_lshl_b32 s34, s2, 7\ns_add_u32 s34, s34, {F0C}")
        flag_store(34, t=118)
    A("s_branch L_PUB")


def attention():
    Q = [8, 14]; O = [20, 36]; SS = [52, 68]; Kf = [84, 90]; Vf = [96, 104]; P = 112
    A("L_PUB:")
    for i in range(4):
        A(f"v_mov_b32 v{4+i}, {(0x3f80 if i % 2 == 0 else 0) if OPT['sp1'] else 0x3f803f80}")
    A(f"v_mov_b32 v2, s{S_E}\nv_mov_b32 v3, s{S_E+1}\nv_mov_b32 v8, {BADW}\nv_mov_b32 v9, 0")
    A("s_waitcnt vmcnt(0)")
    fst(8, 2)
    A("s_barrier")
    fst(8, 3)
    A(f"s_cmp_lg_u32 s{S_W}, 0\ns_cbranch_scc1 L_NOPUSH")
    A(f"buffer_store_dwordx2 v[2:3], v{vPush}, {S(WS)}, 0 offen sc1\ns_mov_b64 exec, 1\nbuffer_store_dwordx2 v[2:3], off, {S(WS)}, s{sF1} sc1\ns_mov_b64 exec, -1\nL_NOPUSH:")
    stamp(3)
    A(f"ds_write_b128 v{vOnes}, v[4:7]\nds_write_b32 v8, v9\nds_write_b32 v8, v9 offset:4")
    A(f"s_waitcnt lgkmcnt(0)\ns_cmp_lg_u32 s{S_W}, 1\ns_cbranch_scc1 L_NOPOLL")
    spoll([(68, 8, 0), (84, 8, 64), (44, 4, 128)], sPV1, need=sNEED)
    A("L_NOPOLL:\ns_barrier")
    stamp(4); fst(8, 4)

    def dma_static(st, m, blk=None):
        if m == 2:
            sk2 = uid("D3")
            A(f"s_cbranch_vccz {sk2}")
        A(f"s_add_u32 m0, s{sLd+m}, {(st % 3) * SLOT}\ns_add_u32 s68, s{sG+m}, {2048 * st if blk is None else blk}")
        dma(vD, WS, 68, "sc1")
        if m == 2:
            A(f"{sk2}:")

    def qload(x):
        A(f"buffer_load_dwordx2 {vr(Q[x],2)}, v{vQa+2*x}, {S(WS)}, s{sQ} offen sc1")
        A(f"buffer_load_dwordx2 {vr(Q[x]+2,2)}, v{vQa+2*x}, {S(WS)}, s{sQ+1} offen sc1")
        A(f"buffer_load_dwordx2 {vr(Q[x]+4,2)}, v{vQa+1+2*x}, {S(WS)}, s{sQ+2} offen sc1")

    if OPT["qord"]:
        A(f"s_cmp_lt_u32 s{S_W}, 4\ns_cselect_b64 vcc, -1, 0")
        for m in range(3):
            dma_static(0, m)
        qload(0); qload(1)
        flag_store(sH1, t=2, wave=7)
        A("s_branch L_ATT_GO\nL_ATT_MAIN:")
        A(f"s_cmp_lt_u32 s{S_W}, 4\ns_cselect_b64 vcc, -1, 0")
        for m in range(3):
            dma_static(0, m)
        A("L_ATT_GO:\ns_waitcnt vmcnt(0)\ns_barrier")
    else:
        qload(0); qload(1)
        A("L_ATT_MAIN:")
        A(f"s_cmp_lt_u32 s{S_W}, 4\ns_cselect_b64 vcc, -1, 0")
        for m in range(3):
            dma_static(0, m)
        flag_store(sH1, t=2, wave=7)
        A("s_waitcnt vmcnt(0)\ns_barrier")
    stamp(5); cstamp(8); fst(8, 5)

    def kreads(kl, off):
        A(f"ds_read_b64 {vr(kl,2)}, v{vK} offset:{off}\nds_read_b64 {vr(kl+2,2)}, v{vK} offset:{off+PS}\nds_read_b64 {vr(kl+4,2)}, v{vK1} offset:{off}")

    def vreads(vl, off):
        for j in range(4):
            A(f"ds_read_b64_tr_b16 {vr(vl+2*j,2)}, v{vV} offset:{off+64*j}")

    kreads(Kf[0], 0)
    vreads(Vf[0], 0)
    for m in range(2):
        dma_static(1, m)
    A("s_waitcnt lgkmcnt(4)")
    A(f"{MF32} {vr(SS[0],16)}, {vr(Kf[0],4)}, {vr(Q[0],4)}, 0\n{MF8} {vr(SS[0],16)}, {vr(Kf[0]+4,2)}, {vr(Q[0]+4,2)}, {vr(SS[0],16)}")
    dma_static(1, 2)
    A("s_nop 9")

    def tail_addr():
        A(f"s_lshl_b32 s64, s{S_W}, 12\ns_add_u32 s64, s64, {RED}\ns_xor_b32 s65, s{S_W}, 4\ns_lshl_b32 s65, s65, 12\ns_add_u32 s65, s65, {RED}")
        A(f"v_add_u32 v2, s64, v{vD}\nv_add_u32 v3, s65, v{vD}\ns_movk_i32 s69, 0x100\nv_cmp_gt_u32 s[66:67], s69, v{vD}")
        A(f"v_lshrrev_b32 v4, 9, v{vD}\nv_bfe_u32 v5, v{vD}, 8, 1\nv_lshl_add_u32 v5, v5, 1, v4\nv_mul_u32_u24 v5, {PL}, v5\nv_add_u32 v5, v5, v{vTok}")
        A(f"v_mov_b32 v4, {OOB}\nv_cndmask_b32 v4, v4, v{vTok}, s[66:67]")

    def unit(st, x, kt):
        s = SS[x]; sn = SS[1 - x]
        nk = kt if x == 0 else kt + 1
        kf = Kf[nk & 1]; qn = Q[1 - x]
        pk = kt - 1 if x == 0 else kt
        vprev = Vf[pk & 1]; v = Vf[kt & 1]
        last = st == 7 and kt == 3
        e = lambda i: A(f"v_exp_f32 v{s+i}, v{s+i}")
        c = lambda i: A(f"v_cvt_pk_bf16_f32 v{P+i}, v{s+2*i}, v{s+2*i+1}")
        nxt_off = ((st + 1) % 3) * SLOT if kt == 3 else (st % 3) * SLOT + 256 * (kt + 1)
        if x == 1 and not last:
            A("s_waitcnt lgkmcnt(0)")
        if not (last and x == 1):
            A(f"{MF32} {vr(sn,16)}, {vr(kf,4)}, {vr(qn,4)}, 0")
        e(0); e(1); e(2); e(3)
        if not (last and x == 1):
            A(f"{MF8} {vr(sn,16)}, {vr(kf+4,2)}, {vr(qn+4,2)}, {vr(sn,16)}")
        c(0); c(1); e(4); e(5); e(6); e(7)
        if (st, x, kt) != (0, 0, 0):
            A(f"{MF32} {vr(O[1-x],16)}, {vr(vprev+4,4)}, {vr(P+4,4)}, {vr(O[1-x],16)}")
        if not last:
            if x == 0:
                if kt == 3:
                    A("s_waitcnt vmcnt(0)")
                    if st == 0:
                        fc = uid("FC")
                        A(f"s_cmp_lg_u32 s{sChk}, 0\ns_cbranch_scc1 {fc}")
                        A(f"v_cmp_ne_u64 s[64:65], {EP}, v[2:3]\nv_cmp_ne_u64 s[66:67], {EP}, v[4:5]\ns_or_b64 s[64:65], s[64:65], s[66:67]\ns_cbranch_scc0 {fc}")
                        poll([vF6, vF7], t=2)
                        A(f"s_mov_b64 vcc, -1\n{fc}:")
                    A("s_barrier")
                kreads(Kf[(kt + 1) & 1], nxt_off)
            else:
                vreads(Vf[(kt + 1) & 1], nxt_off)
        site = {(1, 3): (0, st + 2), (0, 0): (1, st + 1), (1, 0): (2, st + 1)}.get((x, kt))
        if site and 2 <= site[1] < 8:
            dma_static(site[1], site[0])
        if st == OPT["g2s"] - 1 and 2 * kt + x == OPT["g2q"]:
            flag_store(sH2, t=6, wave=7)
        if (st, x, kt) == (1, 1, 1):
            tail_addr()
        if (st, x, kt) == (0, 0, 2):
            nf = uid("NF")
            A(f"s_cmp_lg_u32 s{sChk}, 0\ns_cbranch_scc1 {nf}")
            A(f"buffer_load_dwordx2 v[2:3], v{vF6}, {S(WS)}, 0 offen sc1\nbuffer_load_dwordx2 v[4:5], v{vF7}, {S(WS)}, 0 offen sc1\n{nf}:")
        if OPT["tog"] == 1:
            A(f"s_setprio {1 - x}")
        if OPT["tog"] >= 2:
            gu = 8 * st + 2 * kt + x
            top = 3 if OPT["tog"] == 2 else 2
            if gu < 6:
                lv = {0: top, 1: top - 1, 3: top - 2, 5: top - 3}.get(gu) if top == 3 else {0: 2, 2: 1, 4: 0}.get(gu)
            elif gu >= 54:
                lv = {54: 3, 57: 2, 60: 1, 62: 0}.get(gu) if top == 3 else {54: 2, 58: 1, 61: 0}.get(gu)
            else:
                ph = (gu - 6) % 8
                lv = {0: 3, 2: 2, 4: 1, 6: 0}.get(ph) if top == 3 else {0: 2, 3: 1, 6: 0}.get(ph)
            if lv is not None:
                A(f"s_setprio {lv}")
        c(2); c(3); e(8); e(9); e(10); e(11)
        if x == 0:
            A(f"s_waitcnt lgkmcnt({0 if last else 3})")
        A(f"{MF32} {vr(O[x],16)}, {vr(v,4)}, {vr(P,4)}, {'0' if (st, kt) == (0, 0) else vr(O[x],16)}")
        c(4); c(5); e(12); e(13); e(14); e(15); c(6); c(7)

    for st in range(8):
        fst(10, st); rst(11, st)
        for kt in range(4):
            unit(st, 0, kt)
            unit(st, 1, kt)
    A(f"s_setprio 3\ns_nop 0\n{MF32} {vr(O[1],16)}, {vr(Vf[1]+4,4)}, {vr(P+4,4)}, {vr(O[1],16)}")
    stamp(6); cstamp(9); fst(6, 0); fst(10, 8); rst(11, 8)
    assert RED + 8 * 4096 <= BADW
    o = O[0]
    lo, hi = f2u(2.0 ** -60), f2u(2.0 ** 60)
    if OPT["force_fb"]:
        hi = f2u(2.0 ** -59)
    A(f"v_mov_b32 v70, 0\nv_mov_b32 v71, 0\nv_mov_b32 v80, {lo}\nv_mov_b32 v81, {hi}\nv_mov_b32 v83, {BADW}")
    A(f"v_lshlrev_b32 v82, 4, v{vD}\nv_mov_b32 v84, s{S_E}\nv_mov_b32 v85, s{S_E+1}\ns_nop 3")
    for g in range(4):
        A(f"ds_write_b128 v2, {vr(O[1]+4*g,4)} offset:{1024*g}")
    fst(6, 1)
    A("s_waitcnt lgkmcnt(0)\ns_barrier")
    fst(6, 2)
    for g in (3, 0, 1, 2):
        A(f"ds_read_b128 {vr(52+4*g,4)}, v3 offset:{1024*g}")
    A(f"s_waitcnt lgkmcnt(3)\nv_add_f32 v{o+12}, v{o+12}, v{52+12}\nv_rcp_f32 v68, v{o+12}")
    for g in range(3):
        a = o + 4 * g
        A(f"s_waitcnt lgkmcnt({2-g})\nv_pk_add_f32 {vr(a,2)}, {vr(a,2)}, {vr(52+4*g,2)}\nv_pk_add_f32 {vr(a+2,2)}, {vr(a+2,2)}, {vr(54+4*g,2)}")
        A(f"v_pk_mul_f32 {vr(a,2)}, {vr(a,2)}, v[68:69] op_sel_hi:[1,0]\nv_pk_mul_f32 {vr(a+2,2)}, {vr(a+2,2)}, v[68:69] op_sel_hi:[1,0]")
        A(f"v_cvt_pk_bf16_f32 v{72+2*g}, v{a}, v{a+1}\nv_cvt_pk_bf16_f32 v{73+2*g}, v{a+2}, v{a+3}")
        if g == 1:
            A(f"s_nop 0\nv_permlane16_swap_b32 v72, v74\nv_permlane16_swap_b32 v73, v75")
            A(f"buffer_store_dwordx4 v[72:75], v5, {S(WS)}, s{sO0} offen sc1")
        if g == 2:
            A(f"v_mov_b32 v78, v76\nv_mov_b32 v79, v77\ns_nop 0\nv_permlane16_swap_b32 v76, v78\nv_permlane16_swap_b32 v77, v79")
            A(f"buffer_store_dwordx4 v[76:79], v4, {S(WS)}, s{sO1} offen sc1")
    for i in range(0, 12, 2):
        A(f"v_pk_fma_f32 v[70:71], {vr(o+i,2)}, 0, v[70:71] op_sel_hi:[1,0,1]")
    A(f"v_cmp_u_f32 vcc, v70, v71\nv_cmp_ngt_f32 s[66:67], v{o+12}, v80\ns_or_b64 vcc, vcc, s[66:67]\nv_cmp_nlt_f32 s[66:67], v{o+12}, v81\ns_or_b64 vcc, vcc, s[66:67]")
    A(f"s_cbranch_vccz L_NOBAD\nv_mov_b32 v81, 1\nds_write_b32 v83, v81\nL_NOBAD:")
    fst(6, 3)
    if OPT["lastw"]:
        A("s_waitcnt lgkmcnt(0)\ns_barrier\nds_read_b32 v81, v83\nv_mov_b32 v86, 1\ns_waitcnt lgkmcnt(0)\nv_readfirstlane_b32 s64, v81")
        A(f"s_cmp_gt_u32 s64, s{sPass}\ns_cbranch_scc1 L_ATT_FB0")
        A("s_mov_b64 exec, 1\ns_waitcnt vmcnt(0)")
        fst(6, 4)
        A("ds_add_rtn_u32 v86, v83, v86 offset:4\ns_waitcnt lgkmcnt(0)\nv_readfirstlane_b32 s64, v86\ns_mov_b64 exec, -1")
        fst(6, 5)
        A(f"s_cmp_lg_u32 s64, 7\ns_cbranch_scc1 L_A_DONE\ns_mov_b32 exec_hi, 0\nbuffer_store_dwordx2 v[84:85], v82, {S(WS)}, s{sPV4} offen sc1\ns_mov_b64 exec, -1")
    else:
        A("s_waitcnt lgkmcnt(0)\ns_barrier\nds_read_b32 v81, v83\ns_waitcnt vmcnt(0) lgkmcnt(0)\nv_readfirstlane_b32 s64, v81")
        fst(6, 4)
        A("s_barrier")
        fst(6, 5)
        A(f"s_cmp_gt_u32 s64, s{sPass}\ns_cbranch_scc1 L_ATT_FB")
        A(f"s_cmp_lg_u32 s{S_W}, 0\ns_cbranch_scc1 L_A_DONE\ns_mov_b32 exec_hi, 0\nbuffer_store_dwordx2 v[84:85], v82, {S(WS)}, s{sPV4} offen sc1\ns_mov_b64 exec, -1")
    A("L_A_DONE:")
    stamp(7)
    dump_stamps(12, "A")
    A("s_endpgm")

    A("L_ATT_FB0:\ns_waitcnt vmcnt(0)\nL_ATT_FB:")
    A(f"s_mov_b32 s{sPass}, 1\ns_mov_b32 s{sChk}, 1\ns_mov_b32 s34, 0\ns_cmp_lt_u32 s{S_W}, 4\ns_cselect_b64 vcc, -1, 0")
    A("v_mov_b32 v20, 0xff800000\nv_mov_b32 v21, 0xff800000")
    A("L_FB_LOOP:\ns_barrier")
    for m in range(3):
        dma_static(0, m, "s34")
    A("s_waitcnt vmcnt(0)\ns_barrier")
    for kt in range(4):
        kreads(Kf[0], 256 * kt)
        A("s_waitcnt lgkmcnt(0)")
        for x in range(2):
            A(f"{MF32} {vr(SS[x],16)}, {vr(Kf[0],4)}, {vr(Q[x],4)}, 0\n{MF8} {vr(SS[x],16)}, {vr(Kf[0]+4,2)}, {vr(Q[x]+4,2)}, {vr(SS[x],16)}")
        A("s_nop 15")
        for x in range(2):
            for i in range(0, 16, 2):
                A(f"v_max3_f32 v{20+x}, v{SS[x]+i}, v{SS[x]+i+1}, v{20+x}")
    A("s_add_u32 s34, s34, 2048\ns_cmp_lt_u32 s34, 16384\ns_cbranch_scc1 L_FB_LOOP")
    for x in range(2):
        A(f"v_mov_b32 v22, v{20+x}\ns_nop 1\nv_permlane32_swap_b32 v{20+x}, v22\nv_max_f32 v{20+x}, v{20+x}, v22")
    A(f"s_barrier\nds_write_b64 v2, v[20:21]\ns_waitcnt lgkmcnt(0)\ns_barrier\nds_read_b64 v[22:23], v3\ns_waitcnt lgkmcnt(0)")
    A("v_max_f32 v20, v20, v23\nv_max_f32 v21, v21, v22\nv_cmp_le_u32 vcc, 32, v1")
    for x in range(2):
        A(f"v_sub_f32 v24, 0, v{20+x}\nv_and_b32 v25, 0xffff0000, v24\nv_sub_f32 v24, v24, v25\nv_and_b32 v26, 0xffff0000, v24\nv_sub_f32 v24, v24, v26")
        A(f"v_lshrrev_b32 v25, 16, v25\nv_or_b32 v25, v25, v26\nv_lshrrev_b32 v24, 16, v24")
        A(f"v_cndmask_b32 v{Q[x]+4}, v{Q[x]+4}, v25, vcc\nv_cndmask_b32 v{Q[x]+5}, v{Q[x]+5}, v24, vcc")
    A(f"s_lshr_b32 s64, s{S_W}, 1\ns_min_u32 s64, s64, 2\ns_mul_i32 s64, s64, {SLOT}\ns_and_b32 s65, s{S_W}, 1\ns_lshl_b32 s65, s65, 10\ns_add_u32 s64, s64, s65\ns_add_u32 s64, s64, {10*PS}")
    A(f"v_add_u32 v24, s64, v{vD}")
    for i in range(4):
        A(f"v_mov_b32 v{28+i}, 0x3f803f80")
    A("s_barrier\nds_write_b128 v24, v[28:31]\ns_waitcnt lgkmcnt(0)\ns_branch L_ATT_MAIN")


def cmul(d, a, b, t):
    A(f"v_pk_mul_f32 {vr(t,2)}, {vr(a,2)}, {vr(b,2)} op_sel:[0,0] op_sel_hi:[1,0]")
    A(f"v_pk_fma_f32 {vr(d,2)}, {vr(a,2)}, {vr(b,2)}, {vr(t,2)} op_sel:[1,1,0] op_sel_hi:[0,1,1] neg_lo:[0,1,0]")


def cfma(d, a, b, c, t):
    A(f"v_pk_fma_f32 {vr(t,2)}, {vr(a,2)}, {vr(b,2)}, {vr(c,2)} op_sel:[0,0,0] op_sel_hi:[1,0,1]")
    A(f"v_pk_fma_f32 {vr(d,2)}, {vr(a,2)}, {vr(b,2)}, {vr(t,2)} op_sel:[1,1,0] op_sel_hi:[0,1,1] neg_lo:[0,1,0]")


def gather4(src, dst):
    if OPT["lscan"]:
        A(f"ds_write_b64 v0, {vr(src,2)}")
        for q in range(4):
            A(f"ds_read_b64 {vr(dst+2*q,2)}, v17 offset:{128*q}")
        A("s_waitcnt lgkmcnt(0)")
        return
    for c in range(2):
        A(f"v_mov_b32 v{dst+c}, v{src+c}\nv_mov_b32 v{dst+2+c}, v{src+c}")
    A("s_nop 0")
    for c in range(2):
        A(f"v_permlane16_swap_b32 v{dst+c}, v{dst+2+c}")
    for c in range(4):
        A(f"v_mov_b32 v{dst+4+c}, v{dst+c}")
    for c in range(4):
        A(f"v_permlane32_swap_b32 v{dst+c}, v{dst+4+c}")


sTC, sNB, sK, sROT, sCT = 41, 42, 43, 37, 36


def hoist():
    A(f"v_and_b32 v26, 15, v1\nv_add_u32 v123, s{sCT}, v26\nv_lshlrev_b32 v123, 3, v123")
    A(f"v_lshrrev_b32 v27, 4, v1\nv_mul_u32_u24 v28, {8*640}, v27\ns_sub_u32 s65, 32, s{sTC}\ns_mul_i32 s65, s65, 640\nv_add3_u32 v124, v123, v28, s65")
    A(f"v_mul_u32_u24 v28, 40960, v27\nv_lshl_add_u32 v125, v16, 4, v28")
    A(f"s_lshl_b32 s65, s{S_W}, 6\nv_add_u32 v28, s65, v1\nv_mul_u32_u24 v29, 6554, v28\nv_lshrrev_b32 v29, 16, v29\nv_mul_u32_u24 v30, 10, v29\nv_sub_u32 v30, v28, v30")
    A(f"v_and_b32 v28, 0x78, v29\nv_and_b32 v31, 1, v29\nv_lshl_add_u32 v28, v31, 2, v28\nv_bfe_u32 v31, v29, 1, 2\nv_add_u32 v28, v28, v31")
    A(f"v_mul_u32_u24 v28, 1280, v28\nv_lshl_add_u32 v28, v30, 4, v28\ns_mul_i32 s65, s{sNB}, 160\nv_add_u32 v117, s65, v28")
    A(f"v_lshrrev_b32 v28, 5, v1\nv_mul_u32_u24 v28, {PL}, v28\nv_and_b32 v29, 31, v1\nv_lshlrev_b32 v29, 4, v29\ns_and_b32 s65, s{S_W}, 1\ns_lshl_b32 s65, s65, 7\nv_xor_b32 v29, s65, v29\nv_add_u32 v119, v28, v29")
    A("v_bfe_u32 v30, v1, 2, 2\nv_and_b32 v31, 3, v1")
    sm, dn = uid("HS"), uid("HD")
    A(f"s_cmp_ge_u32 s{S_W}, 4\ns_cbranch_scc1 {sm}")
    for big in (True, False):
        if big:
            A(f"v_lshrrev_b32 v27, 5, v1\nv_and_b32 v26, 31, v1\ns_lshr_b32 s65, s{S_W}, 1\ns_and_b32 s66, s{S_W}, 1")
            A(f"s_lshl_b32 s67, s65, 5\ns_lshl_b32 s68, s66, 5")
            A(f"s_lshl_b32 s69, s65, 2\nv_bfe_u32 v28, v1, 4, 1\nv_lshlrev_b32 v28, 1, v28\nv_lshrrev_b32 v29, 1, v31\nv_add3_u32 v28, v28, v29, s69")
        else:
            A(f"{sm}:\ns_sub_u32 s65, s{S_W}, 4\ns_lshl_b32 s67, s65, 4\ns_mov_b32 s68, 64")
            A(f"s_lshl_b32 s69, s65, 1\nv_lshrrev_b32 v28, 1, v31\nv_add_u32 v28, s69, v28")
        A(f"v_mul_u32_u24 v28, 1088, v28\nv_lshl_add_u32 v29, v27, 3, v30\nv_lshl_add_u32 v28, v29, 4, v28\nv_and_b32 v29, 1, v31\nv_lshl_add_u32 v112, v29, 3, v28")
        A(f"v_add_u32 v28, s68, v26\nv_lshlrev_b32 v28, 7, v28\nv_add_u32 v28, 8704, v28\nv_bfe_u32 v29, v26, 1, 3\nv_xor_b32 v29, v29, v27\nv_lshl_add_u32 v113, v29, 4, v28")
        A(f"s_lshl_b32 s69, s{sTC}, 6\ns_add_u32 s69, s69, s67\nv_lshl_add_u32 v28, v27, 2, s69\ns_mul_i32 s69, s{sNB}, 80\ns_add_u32 s69, s69, s68\nv_add_u32 v29, s69, v26")
        A("v_mul_u32_u24 v114, 1280, v28\nv_lshl_add_u32 v114, v29, 1, v114\nv_mul_u32_u24 v115, 5120, v28\nv_lshl_add_u32 v115, v29, 2, v115\nv_lshlrev_b32 v126, 1, v29")
        A("v_lshlrev_b32 v28, 1, v30\nv_lshl_add_u32 v28, v27, 3, v28\nv_mul_u32_u24 v28, 160, v28\nv_lshl_add_u32 v28, v31, 3, v28")
        if big:
            A("v_bfe_u32 v29, v1, 4, 1\nv_lshl_add_u32 v28, v29, 5, v28\ns_lshl_b32 s69, s66, 6\nv_add_u32 v116, s69, v28")
            A("v_add_u32 v28, s67, v26\nv_lshlrev_b32 v28, 3, v28\nv_lshlrev_b32 v29, 7, v27\nv_xor_b32 v28, v28, v29\nv_lshl_add_u32 v28, v27, 10, v28\ns_mul_i32 s69, s65, 40960\nv_add_u32 v118, s69, v28")
            A(f"v_lshlrev_b32 v122, 4, v1\nv_mov_b32 v127, 0\nv_mov_b32 v26, 0\nv_mov_b32 v27, 0\nv_mov_b32 v28, 0\ns_branch {dn}")
        else:
            A("v_add_u32 v116, 128, v28")
            A("v_add_u32 v28, s67, v26\nv_lshlrev_b32 v28, 3, v28\nv_and_b32 v29, 1, v27\nv_lshlrev_b32 v29, 7, v29\nv_xor_b32 v28, v28, v29\nv_lshl_add_u32 v118, v27, 10, v28")
            A(f"v_lshrrev_b32 v28, 3, v1\ns_mul_i32 s69, s{sNB}, 80\ns_lshl_b32 s66, s65, 3\ns_add_u32 s69, s69, s66\nv_add_u32 v28, s69, v28\nv_mul_u32_u24 v28, 1280, v28")
            A(f"v_and_b32 v29, 7, v1\nv_xor_b32 v29, v29, v27\ns_and_b32 s69, s65, 1\ns_lshl_b32 s69, s69, 2\nv_xor_b32 v29, s69, v29\nv_lshl_add_u32 v122, v29, 4, v28")
            A("v_xor_b32 v127, 64, v113\nv_add_u32 v26, 40960, v122\nv_add_u32 v27, 81920, v122\nv_add_u32 v28, 40960, v118")
    A(f"{dn}:")


def wo_src(d, sj, t):
    A(f"v_add_u32 v{t}, s{sj}, v1\nv_mul_u32_u24 v{t+1}, 6554, v{t}\nv_lshrrev_b32 v{t+1}, 16, v{t+1}\nv_mul_u32_u24 v{t+2}, 10, v{t+1}\nv_sub_u32 v{t+2}, v{t}, v{t+2}")
    A(f"v_and_b32 v{t}, 0x78, v{t+1}\nv_and_b32 v{t+3}, 1, v{t+1}\nv_lshl_add_u32 v{t}, v{t+3}, 2, v{t}\nv_bfe_u32 v{t+3}, v{t+1}, 1, 2\nv_add_u32 v{t}, v{t}, v{t+3}")
    A(f"v_mul_u32_u24 v{t}, 1280, v{t}\nv_lshl_add_u32 v{t}, v{t+2}, 4, v{t}\ns_mul_i32 s69, s{sNB}, 160\nv_add_u32 v{d}, s69, v{t}")


def role_b():
    A("L_ROLE_B:\ns_cmp_ge_u32 s2, 512\ns_cbranch_scc1 L_END")
    if OPT.get("nob"):
        A("s_endpgm")
    stamp(0)
    A(f"s_load_dwordx16 s[8:23], s[0:1], 0\ns_load_dwordx8 s[24:31], s[0:1], 64\ns_load_dwordx2 s[{P_OUT}:{P_OUT+1}], s[0:1], 96\ns_load_dwordx2 s[{WS}:{WS+1}], s[0:1], 112")
    A(f"v_lshrrev_b32 v2, 6, v0\nv_and_b32 v1, 63, v0\nv_readfirstlane_b32 s{S_W}, v2")
    bhi()
    if OPT["cpre"]:
        cp = uid("CP")
        A(f"s_cmp_lg_u32 s{S_W}, 7\ns_cbranch_scc1 {cp}\ns_getpc_b64 s[64:65]\nL_PC:\ns_sub_u32 s64, s64, L_PC-{NAME}_kernel\ns_subb_u32 s65, s65, 0")
        A("s_bfe_u32 s66, s2, 0x50003\ns_lshl_b32 s66, s66, 11\nv_and_b32 v2, 15, v1\nv_lshlrev_b32 v2, 7, v2\nv_add_u32 v2, s66, v2")
        A(f"v_min_u32 v2, L_END-{NAME}_kernel, v2\nv_mov_b32 v3, s65\nv_add_co_u32 v2, vcc, s64, v2\ns_nop 1\nv_addc_co_u32 v3, vcc, 0, v3, vcc\nglobal_load_dword v4, v[2:3], off\n{cp}:")
    A(f"s_and_b32 s{sTC}, s2, 3\ns_lshl_b32 s{sTC}, s{sTC}, 3\ns_bfe_u32 s64, s2, 0x30003\ns_add_u32 s{sTC}, s{sTC}, s64")
    A(f"s_and_b32 s{sNB}, s2, 4\ns_bfe_u32 s64, s2, 0x20006\ns_add_u32 s{sNB}, s{sNB}, s64")
    A(f"s_mul_i32 s{sROT}, s{sNB}, 3\ns_add_u32 s{sROT}, s{sROT}, s{sTC}")
    A(f"s_mul_i32 s64, s{sROT}, 205\ns_lshr_b32 s64, s64, 11\ns_mul_i32 s64, s64, 10\ns_sub_u32 s{sROT}, s{sROT}, s64")
    if not OPT["brot"]:
        A(f"s_mov_b32 s{sROT}, 0")
    A(f"s_mov_b32 s{WS+2}, {WS_USED}\ns_mov_b32 s{WS+3}, 0x20000\ns_waitcnt lgkmcnt(0)\ns_load_dword s{S_E}, {WSP}, {EPOCH}")
    MU, CF, MU16, PW, LAM, LAM8 = 2, 4, 6, 8, 10, 12
    A(f"s_min_u32 s{sCT}, s{S_W}, 4\ns_lshl_b32 s{sCT}, s{sCT}, 4\ns_mul_i32 s64, s{sNB}, 80\ns_add_u32 s64, s64, s{sCT}")
    A(f"v_and_b32 v16, 15, v1\nv_add_u32 v16, s64, v16\nv_lshlrev_b32 v21, 1, v16")
    srd(R0, P_LRE, 1280); srd(R1, P_LIM, 1280); srd(R2, P_LDT, 1280)
    A(f"buffer_load_ushort v22, v21, {S(R0)}, 0 offen\nbuffer_load_ushort v23, v21, {S(R1)}, 0 offen\nbuffer_load_ushort v24, v21, {S(R2)}, 0 offen")
    A("s_waitcnt vmcnt(0) lgkmcnt(0)")
    epoch_fix()
    LOG2E = f2u(math.log2(math.e))
    A("v_lshlrev_b32 v22, 16, v22\nv_lshlrev_b32 v23, 16, v23\nv_lshlrev_b32 v24, 16, v24")
    A(f"v_mul_f32 v24, {LOG2E}, v24\nv_exp_f32 v24, v24\ns_nop 0\nv_cvt_pk_bf16_f32 v24, v24, v24\nv_lshlrev_b32 v24, 16, v24")
    A(f"v_mul_f32 v25, v24, v22\nv_mul_f32 v26, v24, v23\nv_mul_f32 v25, {LOG2E}, v25\nv_exp_f32 v25, v25")
    A(f"v_mul_f32 v26, 0.15915494, v26\nv_fract_f32 v26, v26\nv_cos_f32 v27, v26\nv_sin_f32 v28, v26\ns_nop 0")
    A(f"v_mul_f32 v{MU}, v25, v27\nv_mul_f32 v28, v25, v28\nv_sub_f32 v{MU+1}, 0, v28")
    A(f"v_add_f32 v27, -1.0, v{MU}")
    A("v_mul_f32 v25, v22, v22\nv_fmac_f32 v25, v23, v23\nv_rcp_f32 v25, v25")
    A("v_mul_f32 v26, v27, v22\nv_fmac_f32 v26, v28, v23\nv_mul_f32 v29, v28, v22\nv_fma_f32 v29, -v27, v23, v29")
    A(f"v_add_f32 v25, v25, v25\nv_mul_f32 v{CF}, v26, v25\nv_mul_f32 v29, v29, v25\nv_sub_f32 v{CF+1}, 0, v29")
    cmul(MU16, MU, MU, 22)
    for _ in range(3):
        cmul(MU16, MU16, MU16, 22)
    cmul(24, MU16, MU16, 22)
    cmul(26, 24, MU16, 22)
    cmul(LAM, 24, 24, 22)
    cmul(LAM8, LAM, LAM, 22)
    cmul(LAM8, LAM8, LAM8, 22)
    cmul(LAM8, LAM8, LAM8, 22)
    A("v_lshrrev_b32 v28, 4, v1")
    A(f"v_cmp_eq_u32 s[96:97], 1, v28\nv_cmp_eq_u32 s[98:99], 2, v28\nv_cmp_eq_u32 s[100:101], 3, v28")
    A(f"v_mov_b32 v{PW}, 1.0\nv_mov_b32 v{PW+1}, 0")
    for src, m in ((MU16, 96), (24, 98), (26, 100)):
        for c in range(2):
            A(f"v_cndmask_b32 v{PW+c}, v{PW+c}, v{src+c}, s[{m}:{m+1}]")
    vS0, vRA, vRB = 14, 18, 22
    srd(R0, P_BX, 2621440); srd(R1, P_BRE, 819200); srd(R2, P_BIM, 819200)
    hoist()
    A(f"s_lshl_b32 s{sK}, s{sROT}, 7")
    A("v_lshrrev_b32 v30, 4, v1\nv_and_b32 v31, 7, v1\nv_xor_b32 v31, v31, v30\nv_lshlrev_b32 v31, 4, v31")
    A(f"v_and_b32 v30, 31, v1\nv_lshlrev_b32 v30, 7, v30\nv_lshrrev_b32 v17, 5, v1\nv_bfe_u32 v29, v1, 1, 3\nv_xor_b32 v29, v17, v29\nv_lshl_add_u32 v{vRA}, v29, 4, v30")

    def scan_addr():
        A(f"s_mul_i32 s66, s{sCT}, 576\ns_add_u32 s66, s66, 20480\ns_lshl_b32 s67, s{sCT}, 5\ns_add_u32 s67, s67, 66560")
        A(f"v_and_b32 v0, 15, v1\nv_lshl_add_u32 v29, v17, 5, v0\nv_mul_u32_u24 v29, 144, v29\nv_bfe_u32 v30, v1, 4, 1\nv_lshl_add_u32 v29, v30, 2, v29\nv_add_u32 v29, s66, v29\nv_add_u32 v30, 2304, v29")
        A(f"v_mul_u32_u24 v31, 144, v1\nv_add_u32 v31, s66, v31\nv_lshl_add_u32 v17, v0, 3, s67\nv_lshl_add_u32 v0, v1, 3, s67")

    def early_addr():
        if not OPT["wearly"]:
            return
        A(f"s_cmp_eq_u32 s{S_W}, 6\ns_cselect_b32 s34, 1, 4\ns_cselect_b32 s35, 2, 0\ns_cmp_eq_u32 s{S_W}, 7\ns_cselect_b32 s34, 3, s34")
        for k in range(2):
            A(f"s_lshl_b32 s68, s{34+k}, 6")
            wo_src(48 + k, 68, 50)
            A(f"s_lshl_b32 s{34+k}, s{34+k}, 10")

    def touch2():
        t1, t2 = uid("U1"), uid("U2")
        if OPT["wearly"]:
            srd(R1, P_WO, 819200)
            for k in range(2):
                if k:
                    A(f"s_cmp_eq_u32 s{S_W}, 7\ns_cbranch_scc1 {t1}")
                for m in range(16):
                    A(f"s_add_u32 m0, s{34+k}, {5120*m}\ns_mov_b32 s64, {32*m*1280}")
                    dma(48 + k, R1, 64)
        else:
            A(f"s_cmp_eq_u32 s{S_W}, 7\ns_cbranch_scc1 {t1}")
        A(f"s_and_b32 s66, s{sTC}, 7\ns_mul_i32 s39, s66, 10\ns_mul_i32 s68, s{sNB}, 80\ns_add_u32 s39, s39, s68\ns_mul_i32 s39, s39, 1280")
        A(f"s_cmp_eq_u32 s{S_W}, 5\ns_cselect_b32 s{R1}, s{P_CRE}, s{P_CIM}\ns_cselect_b32 s{R1+1}, s{P_CRE+1}, s{P_CIM+1}")
        A(f"v_lshlrev_b32 v66, 7, v1\nv_min_u32 v67, 35, v1\nv_lshlrev_b32 v67, 7, v67\nv_add_u32 v67, 8192, v67")
        A(f"buffer_load_dword v64, v66, {S(R1)}, s39 offen\nbuffer_load_dword v65, v67, {S(R1)}, s39 offen\ns_branch {t2}\n{t1}:")
        srd(R1, P_WO, 819200)
        A(f"s_and_b32 s66, s{sTC}, 7\ns_mul_i32 s66, s66, {16*1280}\ns_mul_i32 s67, s{sNB}, 160\ns_add_u32 s66, s66, s67\ns_add_u32 s66, s66, {512*1280}")
        A(f"v_bfe_u32 v66, v1, 1, 4\nv_mul_u32_u24 v66, 1280, v66\nv_and_b32 v67, 1, v1\nv_mul_u32_u24 v67, 156, v67\nv_add_u32 v66, v66, v67")
        A(f"buffer_load_dword v64, v66, {S(R1)}, s66 offen\n{t2}:")

    GK = OPT["gk"]

    def more(Sx):
        return Sx + 2 < 10 and not (GK and Sx < GK <= Sx + 2)

    def inflight(Sx):
        return 0 if Sx == 9 or (GK and Sx == GK - 1) else 1

    def gate(Sx, issue, poller):
        if GK and Sx == GK:
            if poller:
                A(f"s_cmp_lg_u32 s{S_W}, 4\ns_cbranch_scc1 L_NOGATE\ns_sub_u32 s66, s2, 256\ns_lshl_b32 s66, s66, 7\ns_add_u32 s66, s66, {F0}")
                spoll([(8, 1, 0)], 66)
                A("L_NOGATE:")
            A("s_barrier")
            issue(GK); issue(GK + 1)

    def advK():
        A(f"s_add_u32 s{sK}, s{sK}, 128\ns_cmp_eq_u32 s{sK}, 1280\ns_cselect_b32 s{sK}, 0, s{sK}")

    ACC, BF, AF = 32, 64, 80
    SH = 12288
    A(f"s_cmp_ge_u32 s{S_W}, 4\ns_cbranch_scc1 L_G1_AUX")
    A(f"v_lshrrev_b32 v30, 3, v1\nv_add_u32 v30, s64, v30\nv_mul_u32_u24 v30, 1280, v30\nv_add_u32 v{vS0}, v30, v31")
    A(f"v_xor_b32 v{vS0+1}, 64, v{vS0}\nv_add_u32 v{vS0+1}, 10240, v{vS0+1}")
    A(f"s_lshl_b32 s38, s{S_W}, 13\ns_add_u32 s38, s38, {3*SH}")
    for u in range(1, 4):
        A(f"v_xor_b32 v{vRA+u}, {32*u}, v{vRA}")
    for u in range(4):
        A(f"v_add_u32 v{vRB+u}, s38, v{vRA+u}")
    scan_addr()
    A(f"s_cmp_lg_u32 s{S_W}, 0\ns_cbranch_scc1 L_NOHINT\ns_sub_u32 s66, s2, 256\ns_lshl_b32 s66, s66, 7\ns_add_u32 s66, s66, {F0C if OPT['gk'] else F0}")
    spoll([(8, 1, 0)], 66)
    A("L_NOHINT:\ns_barrier")
    stamp(1)
    A(f"s_setprio {3 if OPT['mlo'] else OPT['g1p']}\n;MLO_ON")

    def dmaB(Sx):
        for q in range(4):
            A(f"s_add_u32 m0, s38, {(Sx % 2) * 4096 + q * 1024}\ns_nop 0")
            dma(vS0 + (q & 1), R1 if q < 2 else R2, sK)
        advK()

    def g1_mm(Sx, u, tts=(0, 1)):
        for tt in tts:
            c = "0" if (Sx == 0 and u == 0) else vr(ACC + 16 * tt, 16)
            A(f"{MF32} {vr(ACC+16*tt,16)}, {vr(AF+8*u+4*tt,4)}, {vr(BF+4*u,4)}, {c}")

    dmaB(0); dmaB(1)
    for Sx in range(10):
        fst(1, Sx)
        gate(Sx, dmaB, False)
        A(f"s_waitcnt vmcnt({4 * inflight(Sx)})")
        for u in range(3):
            A(f"ds_read_b128 {vr(BF+4*u,4)}, v{vRB+u} offset:{(Sx % 2) * 4096}")
        A("s_barrier")
        if Sx:
            g1_mm(Sx - 1, 3, (0,))
        for u in range(3):
            for tt in range(2):
                A(f"ds_read_b128 {vr(AF+8*u+4*tt,4)}, v{vRA+u} offset:{(Sx % 3) * SH + 4096*tt}")
        if Sx:
            g1_mm(Sx - 1, 3, (1,))
        A(f"ds_read_b128 {vr(BF+12,4)}, v{vRB+3} offset:{(Sx % 2) * 4096}")
        for tt in range(2):
            A(f"ds_read_b128 {vr(AF+24+4*tt,4)}, v{vRA+3} offset:{(Sx % 3) * SH + 4096*tt}")
        A("s_waitcnt lgkmcnt(7)")
        g1_mm(Sx, 0)
        A("s_waitcnt lgkmcnt(5)")
        g1_mm(Sx, 1)
        A("s_waitcnt lgkmcnt(3)")
        g1_mm(Sx, 2)
        A("s_waitcnt lgkmcnt(0)")
        if more(Sx):
            dmaB(Sx + 2)
    g1_mm(9, 3)
    A(";MLO_OFF\ns_barrier\ns_nop 10\ns_branch L_SCAN")

    A("L_G1_AUX:")
    A(f"s_cmp_eq_u32 s{S_W}, 4\ns_cbranch_scc1 L_G1_LD\ns_cmp_eq_u32 s{S_W}, 7\ns_cbranch_scc1 L_G1_LD")
    A(f"v_lshrrev_b32 v30, 3, v1\nv_add_u32 v30, s64, v30\nv_mul_u32_u24 v30, 1280, v30\nv_add_u32 v{vS0}, v30, v31")
    A(f"v_xor_b32 v{vS0+1}, 64, v{vS0}\nv_add_u32 v{vS0+1}, 10240, v{vS0+1}")
    A(f"s_cmp_eq_u32 s{S_W}, 5\ns_cselect_b32 s{R3}, s{R1}, s{R2}\ns_cselect_b32 s{R3+1}, s{R1+1}, s{R2+1}\ns_mov_b32 s{R3+2}, 819200\ns_mov_b32 s{R3+3}, 0x20000")
    A(f"s_sub_u32 s38, s{S_W}, 5\ns_lshl_b32 s66, s38, 12\ns_lshl_b32 s38, s38, 11")
    for u in range(1, 4):
        A(f"v_xor_b32 v{vRA+u}, {32*u}, v{vRA}")
    for u in range(4):
        A(f"v_add_u32 v{vRB+u}, s66, v{vRA+u}")
    scan_addr()
    early_addr()
    A("s_barrier")
    A(f"s_setprio {3 if OPT['mlo'] else OPT['g1p']}\n;MLO_ON")

    def dmaB4(Sx):
        for q in range(2):
            A(f"s_add_u32 m0, s38, {(Sx % 3) * SH + 8192 + q * 1024}\ns_nop 0")
            dma(vS0 + q, R3, sK)
        advK()

    dmaB4(0); dmaB4(1)
    for Sx in range(10):
        gate(Sx, dmaB4, False)
        A(f"s_waitcnt vmcnt({2 * inflight(Sx)})\ns_barrier")
        for u in range(4):
            A(f"ds_read_b128 {vr(BF+4*u,4)}, v{vRA+u} offset:{(Sx % 3) * SH + 8192}")
            A(f"ds_read_b128 {vr(AF+4*u,4)}, v{vRB+u} offset:{(Sx % 3) * SH}")
        for u in range(4):
            A(f"s_waitcnt lgkmcnt({6-2*u})")
            c = "0" if (Sx == 0 and u == 0) else vr(ACC, 16)
            A(f"{MF32} {vr(ACC,16)}, {vr(AF+4*u,4)}, {vr(BF+4*u,4)}, {c}")
        if more(Sx):
            dmaB4(Sx + 2)
    A(";MLO_OFF")
    if OPT["lscan"]:
        A(f"s_cmp_eq_u32 s{S_W}, 5\ns_cbranch_scc1 L_G1_RED\ns_barrier\ns_nop 8")
        for j in range(0, 16, 4):
            for p in range(2):
                A(f"ds_write2_b32 v{29+p}, v{ACC+j+p}, v{ACC+j+p+2} offset0:{16 + j} offset1:{18 + j}")
        A("s_waitcnt lgkmcnt(0)\ns_barrier")
        bhi()
        touch2()
        A("s_branch L_G1_AUX2")
    else:
        bhi()
        A(f"s_lshl_b32 s66, s{S_W}, 12\ns_add_u32 s66, s66, {69632 - 5*4096}\nv_lshlrev_b32 v30, 4, v1\nv_add_u32 v30, s66, v30\ns_nop 7")
        for g in range(4):
            A(f"ds_write_b128 v30, {vr(ACC+4*g,4)} offset:{1024*g}")
        A("s_waitcnt lgkmcnt(0)\ns_branch L_G1_AUXEND")

    A("L_G1_LD:")
    A(f"s_cmp_eq_u32 s{S_W}, 7\ns_cselect_b32 s38, 1, 0")
    A(f"v_bfe_u32 v29, v1, 3, 1\nv_lshl_add_u32 v30, v17, 1, v29\nv_lshlrev_b32 v30, 4, v30\nv_bfe_u32 v29, v1, 4, 1\nv_add_u32 v30, v30, v29")
    A(f"s_lshl_b32 s66, s{sTC}, 6\ns_lshl_b32 s67, s38, 3\ns_add_u32 s66, s66, s67\nv_add_u32 v30, s66, v30\nv_mul_u32_u24 v30, 1280, v30\nv_add_u32 v{vS0}, v30, v31")
    A(f"v_xor_b32 v{vS0+1}, 64, v{vS0}\nv_add_u32 v{vS0+1}, 2560, v{vS0+1}\nv_add_u32 v22, 5120, v{vS0}\nv_add_u32 v23, 5120, v{vS0+1}")
    early_addr()
    if OPT["t1"]:
        t7, td = uid("T7"), uid("TD")
        A(f"v_lshrrev_b32 v52, 1, v1\nv_mul_u32_u24 v52, 1280, v52\nv_and_b32 v53, 1, v1\nv_lshl_add_u32 v52, v53, 7, v52\ns_cmp_eq_u32 s{S_W}, 7\ns_cbranch_scc1 {t7}")
        A(f"s_and_b32 s66, s{sNB}, 3\ns_lshl_b32 s66, s66, 4\ns_lshl_b32 s67, s{sTC}, 6\ns_add_u32 s66, s66, s67\ns_mul_i32 s66, s66, 1280\ns_mov_b32 exec_hi, 0")
        A(f"buffer_load_dword v54, v52, {S(R0)}, s66 offen\ns_branch {td}\n{t7}:")
        A(f"s_and_b32 s66, s{sTC}, 7\ns_mul_i32 s66, s66, 10\ns_mul_i32 s67, s{sNB}, 80\ns_add_u32 s66, s66, s67\ns_mul_i32 s66, s66, 1280\ns_mov_b64 exec, 0xfffff")
        A(f"buffer_load_dword v54, v52, {S(R1)}, s66 offen\nbuffer_load_dword v55, v52, {S(R2)}, s66 offen\n{td}:\ns_mov_b64 exec, -1")
    A("s_lshl_b32 s38, s38, 12\ns_waitcnt vmcnt(0)\ns_barrier")

    def dmaX(Sx):
        for q in range(4):
            A(f"s_add_u32 m0, s38, {(Sx % 3) * SH + q * 1024}\ns_nop 0")
            dma([vS0, vS0 + 1, 22, 23][q], R0, sK)
        advK()

    dmaX(0); dmaX(1)
    for Sx in range(10):
        gate(Sx, dmaX, True)
        A(f"s_waitcnt vmcnt({4 * inflight(Sx)})\ns_barrier")
        if more(Sx):
            dmaX(Sx + 2)
    A(f"v_lshlrev_b32 v30, 4, v1\nv_add_u32 v30, 69632, v30\ns_cmp_eq_u32 s{S_W}, 4\ns_cbranch_scc1 L_G1_RED")
    A("L_G1_AUXEND:")
    A("s_barrier\ns_barrier")
    A(f"s_cmp_lg_u32 s{S_W}, 6\ns_cbranch_scc1 L_F2POLL")
    touch2()
    A("s_barrier\ns_waitcnt vmcnt(0)\ns_branch L_B_H\nL_F2POLL:")
    A(f"s_cmp_eq_u32 s{S_W}, 7\ns_cselect_b32 s66, 16, 0\ns_sub_i32 s67, s{sTC}, s66\ns_max_i32 s67, s67, 0\ns_min_i32 s67, s67, 16\ns_lshr_b32 s67, 0xffff0000, s67\ns_and_b32 s67, s67, 0xffff")
    A(f"s_lshl_b32 s66, s66, 3\ns_lshl_b32 s65, s{sNB}, 5\ns_add_u32 s65, s65, s{sTC}\ns_lshl_b32 s65, s65, 8\ns_add_u32 s66, s66, s65\ns_add_u32 s66, s66, {PV2}")
    spoll([(68, 8, 0), (84, 8, 64)], 66, need=67)
    A("s_barrier")
    touch2()
    A("s_waitcnt vmcnt(0)\ns_branch L_B_H")
    A("L_G1_RED:\ns_barrier")
    if OPT["lscan"]:
        A("s_nop 8")
        for j in range(0, 16, 4):
            for p in range(2):
                A(f"ds_write2_b32 v{29+p}, v{ACC+j+p}, v{ACC+j+p+2} offset0:{j} offset1:{2 + j}")
        A("s_branch L_SCAN2")
    else:
        for g in range(8):
            A(f"ds_read_b128 {vr(ACC+4*g,4)}, v30 offset:{1024*g}")
        A("s_waitcnt lgkmcnt(0)")
    A("L_SCAN:")
    stamp(2)
    if OPT["lscan"]:
        for tt in range(2):
            for j in range(0, 16, 4):
                for p in range(2):
                    A(f"ds_write2_b32 v{29+p}, v{ACC+16*tt+j+p}, v{ACC+16*tt+j+p+2} offset0:{16*tt + j} offset1:{16*tt + 2 + j}")
        A("L_SCAN2:\ns_waitcnt lgkmcnt(0)\ns_barrier")
        for i in range(8):
            A(f"ds_read_b128 {vr(ACC+4*i,4)}, v31 offset:{16*i}")
        bhi()
    else:
        bhi()
        for i in range(16):
            A(f"v_permlane16_swap_b32 v{ACC+2*i}, v{ACC+2*i+1}")
    for i in range(16):
        u = ACC + 2 * i
        t = 64 + 2 * (i & 1)
        if OPT["lscan"] and i % 2 == 0:
            A(f"s_waitcnt lgkmcnt({7 - i // 2})")
        A(f"v_pk_mul_f32 {vr(t,2)}, {vr(u,2)}, {vr(CF,2)} op_sel:[0,0] op_sel_hi:[0,1]")
        A(f"v_pk_fma_f32 {vr(u,2)}, {vr(u,2)}, {vr(CF,2)}, {vr(t,2)} op_sel:[1,1,0] op_sel_hi:[1,0,1] neg_hi:[0,1,0]")
    G, T = 68, 70
    cfma(G, ACC, MU, ACC + 2, T)
    for i in range(2, 16):
        cfma(G, G, MU, ACC + 2 * i, T)
    E4 = 72
    A(f"s_mul_i32 s64, s{sNB}, 20480\ns_add_u32 s64, s64, {EB}\ns_add_u32 s{R3}, s{WS}, s64\ns_addc_u32 s{R3+1}, s{WS+1}, 0\ns_mov_b32 s{R3+2}, 20480\ns_mov_b32 s{R3+3}, 0x20000")
    gather4(G, E4)
    PRE = 80
    cfma(82, E4, MU16, E4 + 2, T)
    cfma(84, 82, MU16, E4 + 4, T)
    cfma(86, 84, MU16, E4 + 6, T)
    A(f"s_sub_u32 s64, 31, s{sTC}\ns_mul_i32 s64, s64, 640\ns_mov_b64 exec, 0xffff")
    A(f"buffer_store_dwordx2 v[86:87], v123, {S(R3)}, s64 offen sc1\ns_mov_b64 exec, -1")
    A(f"v_mov_b32 v{PRE}, 0\nv_mov_b32 v{PRE+1}, 0")
    for src, m in ((E4, 96), (82, 98), (84, 100)):
        for c in range(2):
            A(f"v_cndmask_b32 v{PRE+c}, v{PRE+c}, v{src+c}, s[{m}:{m+1}]")
    A(f"s_lshl_b32 s68, s{sNB}, 13\ns_lshl_b32 s69, s{sTC}, 3\ns_add_u32 s68, s68, s69\ns_add_u32 s68, s68, {PV2}")
    A(f"v_lshlrev_b32 v88, 8, v1\nv_mov_b32 v90, s{S_E}\nv_mov_b32 v91, s{S_E+1}\ns_lshl_b32 s69, -2, s{sTC}")
    A("s_waitcnt vmcnt(0)\ns_barrier")
    A(f"s_cmp_lg_u32 s{S_W}, 0\ns_cbranch_scc1 L_NOP2\ns_cmp_eq_u32 s69, 0\ns_cbranch_scc1 L_NOP2\ns_mov_b32 exec_lo, s69\ns_mov_b32 exec_hi, 0")
    A(f"buffer_store_dwordx2 v[90:91], v88, {S(WS)}, s68 offen sc1\ns_mov_b64 exec, -1\nL_NOP2:")
    stamp(3)
    A(f"s_cmp_ge_u32 s{S_W}, 4\ns_cbranch_scc1 L_NOSKIP")
    srd(R1, P_DSK, 1280)
    A(f"buffer_load_ushort v14, v126, {S(R1)}, 0 offen")
    for i in range(16):
        A(f"s_mov_b32 s64, {(8 * (i >> 2) + (i & 3))*1280}\nbuffer_load_ushort v{16+i}, v114, {S(R0)}, s64 offen")
    A("L_NOSKIP:\ns_movk_i32 s64, 4480\ns_barrier")
    stamp(4)
    EL = 96
    for u in range(8):
        d = 7 - u
        A(f"buffer_load_dwordx2 {vr(EL+2*u,2)}, v124, {S(R3)}, {'s64' if d == 7 else '0'} offen offset:{0 if d == 7 else 640*d} sc1")
    A("s_waitcnt vmcnt(6)")
    cfma(G, EL, LAM, EL + 2, T)
    for u in range(2, 8):
        A(f"s_waitcnt vmcnt({7-u})")
        cfma(G, G, LAM, EL + 2 * u, T)
    gather4(G, E4)
    cfma(G, E4 + 6, LAM8, E4 + 4, T)
    cfma(G, G, LAM8, E4 + 2, T)
    cfma(G, G, LAM8, E4, T)
    cfma(G, G, PW, PRE, T)
    PK = 72
    A(f"s_mul_i32 s64, s{sTC}, 163840\ns_add_u32 s64, s64, {HB}")
    for tt in range(2):
        for i in range(8 * tt, 8 * tt + 8):
            cfma(ACC + 2 * i, G if i == 0 else ACC + 2 * i - 2, MU, ACC + 2 * i, T)
        for c in range(2):
            d = PK + 8 * tt + 4 * c
            for m in range(4):
                a = ACC + 16 * tt + 4 * m + c
                A(f"v_cvt_pk_bf16_f32 v{d+m}, v{a}, v{a+2}")
            A(f"s_add_u32 s65, s64, {tt*20480 + c*10240}")
            A(f"buffer_store_dwordx4 {vr(d,4)}, v125, {S(WS)}, s65 offen sc1")
    A("s_waitcnt vmcnt(0)")
    A("L_B_H:")
    bhi()
    A("s_barrier")
    A(f"s_cmp_lg_u32 s{S_W}, 0\ns_cbranch_scc1 L_NOP3\ns_lshl_b32 s68, s{sTC}, 10\ns_lshl_b32 s69, s{sNB}, 3\ns_add_u32 s68, s68, s69\ns_add_u32 s68, s68, {PV3}")
    A(f"v_lshlrev_b32 v88, 7, v1\ns_mov_b64 exec, 0xff\nbuffer_store_dwordx2 v[90:91], v88, {S(WS)}, s68 offen sc1\ns_mov_b64 exec, -1\nL_NOP3:")
    stamp(5)
    A(f"s_cmp_ge_u32 s{S_W}, 4\ns_cbranch_scc1 L_B_SMALL")
    tail(True)
    A("L_B_SMALL:")
    tail(False)


def tail(big):
    nacc = 16 if big else 4
    ACC = 16 if big else 12
    WF = 48
    MF = MF32 if big else MF16
    rows = [8 * (i >> 2) + (i & 3) for i in range(nacc)]
    fst(9, 0)
    if big:
        vA, vB, vS, vOut, vO, vOs, vW, vWs = 2, 3, 4, 5, 6, 7, 8, 9
        mv = ((8, 116), (2, 112), (3, 113), (4, 122), (5, 115), (6, 118), (9, 117))
        A(f"s_lshr_b32 s64, s{S_W}, 1\ns_mul_i32 s64, s64, 51200\nv_add_u32 v10, s64, v116")
    else:
        vA, vB, vS, vOut, vO, vOs, vW, vWs = 2, 3, 9, 5, 6, 10, 16, 17
        mv = ((16, 116), (2, 112), (3, 113), (4, 127), (5, 115), (6, 118), (7, 28), (9, 122), (10, 119), (8, 26), (11, 27), (17, 117))
        srd(R3, P_DSK, 1280)
        A(f"buffer_load_ushort v0, v126, {S(R3)}, 0 offen")
        for i in range(nacc):
            A(f"s_mov_b32 s64, {rows[i]*1280}\nbuffer_load_ushort v{32+i}, v114, {S(R0)}, s64 offen")
        A(f"s_sub_u32 s95, s{S_W}, 4\nv_add_u32 v18, 40960, v116")
    for d, sreg in mv:
        A(f"v_mov_b32 v{d}, v{sreg}")
    fst(9, 1)
    if big:
        for u in range(20):
            if u == 12:
                A(f"s_cmp_ge_u32 s{S_W}, 2\ns_cbranch_scc1 L_WR0")
            for j in range(2):
                A(f"ds_read_b64_tr_b16 {vr(WF+4*u+2*j,2)}, v10 offset:{2560*u + 160*j}")
        A("L_WR0:")
        for i in range(nacc):
            A(f"v_dot2_f32_bf16 v{ACC+i}, v{ACC+i}, v14, 0")
        A(f"s_lshl_b32 s45, s{sTC}, 3\ns_add_u32 s45, s45, s{sNB}\ns_lshl_b32 s45, s45, 7\ns_add_u32 s45, s45, {PV3}")
    else:
        for U in range(16):
            for j in range(2):
                A(f"ds_read_b64_tr_b16 {vr(WF+4*U+2*j,2)}, v{vW if U < 8 else 18} offset:{5120*(U & 7) + 160*j}")
    srd(R1, P_WO, 819200)
    A(f"s_lshl_b32 s46, s{S_W}, 10\ns_waitcnt lgkmcnt(0)\ns_barrier")
    fst(9, 2)
    if big:
        A(f"s_load_dwordx16 s[8:23], {WSP}, s45 glc")
    sk = uid("WD")
    if not big:
        A(f"s_cmp_ge_u32 s{S_W}, 5\ns_cbranch_scc1 {sk}")
    for m in range(4):
        A(f"s_add_u32 m0, s46, {5120*m}\ns_mov_b32 s64, {(512 + 32*m) * 1280}")
        dma(vWs, R1, 64)
    A(f"{sk}:")
    fst(9, 3)
    if not big:
        A("s_waitcnt vmcnt(0)")
        for i in range(nacc):
            A(f"v_dot2_f32_bf16 v{ACC+i}, v{32+i}, v0, 0")

    def wo_reads1():
        if big:
            A(f"s_cmp_lt_u32 s{S_W}, 2\ns_cbranch_scc1 L_WR1")
            for u in range(8):
                for j in range(2):
                    A(f"ds_read_b64_tr_b16 {vr(WF+4*(12+u)+2*j,2)}, v{vW} offset:{2560*u + 160*j}")
            A("L_WR1:")
        else:
            for U in range(4):
                for j in range(2):
                    A(f"ds_read_b64_tr_b16 {vr(WF+4*(16+U)+2*j,2)}, v{vW} offset:{5120*U + 160*j}")
        A("s_waitcnt lgkmcnt(0)\ns_barrier")

    SL = 18944
    vSs = [vS, 8, 11]

    def slot(Sx):
        return ((Sx + 3) % 4) * SL

    def g2_dma(Sx):
        sb = slot(Sx)
        if big:
            for i in range(2):
                A(f"s_add_u32 m0, s39, {sb + 1088*i}\ns_add_u32 s64, s44, s{sK}")
                if i or Sx >= 10:
                    A(f"s_add_u32 s64, s64, {20480*i + (10240 if Sx >= 10 else 0)}")
                dma(vS, WS, 64, "sc1")
            A(f"s_add_u32 s{sK}, s{sK}, 1024\ns_cmp_eq_u32 s{sK}, 10240\ns_cselect_b32 s{sK}, 0, s{sK}")
        else:
            for m in range(3):
                if m == 2:
                    sk = uid("SD")
                    A(f"s_cmp_ge_u32 s95, 2\ns_cbranch_scc1 {sk}")
                A(f"s_add_u32 m0, s39, {sb + 8704 + 4096*m}\ns_nop 0")
                dma(vSs[m], R1 if Sx < 10 else R2, sK)
            A(f"{sk}:")
            A(f"s_add_u32 s{sK}, s{sK}, 128\ns_cmp_eq_u32 s{sK}, 1280\ns_cselect_b32 s{sK}, 0, s{sK}")

    srd(R1, P_CRE, 819200); srd(R2, P_CIM, 819200)
    if big:
        A(f"s_mul_i32 s44, s{sTC}, 163840\ns_mul_i32 s64, s{S_W}, 40960\ns_add_u32 s44, s44, s64\ns_add_u32 s44, s44, {HB}")
        A(f"v_xor_b32 v0, 32, v{vB}\nv_xor_b32 v1, 64, v{vB}\nv_xor_b32 v7, 96, v{vB}")
        A(f"s_mul_i32 s39, s{S_W}, 2176\ns_lshl_b32 s{sK}, s{sROT}, 10")
        fst(9, 4)
        A("s_waitcnt lgkmcnt(0)\ns_mov_b32 s65, 0")
        for i in range(8):
            A(f"s_cmp_eq_u64 s[{8+2*i}:{9+2*i}], {EP}\ns_addc_u32 s65, s65, s65")
        A("s_cmp_eq_u32 s65, 255\ns_cbranch_scc1 L_F3OK")
        spoll([(8, 8, 0)], 45)
        A("L_F3OK:")
        stamp(6); fst(9, 5)
        g2_dma(0)
        A(f"s_waitcnt vmcnt(2)")
        fst(9, 6)
        A("s_barrier")
        fst(9, 7)
    else:
        A(f"s_lshl_b32 s39, s95, 10\ns_lshl_b32 s{sK}, s{sROT}, 7")
        g2_dma(0)
        A("s_barrier")
    if big:
        A(f"s_sub_u32 s66, s2, 256\ns_lshl_b32 s66, s66, 7\ns_add_u32 s66, s66, {F0B}\ns_load_dwordx2 s[8:9], {WSP}, s66 glc")
    wo_reads1()
    fst(9, 8)
    A("s_waitcnt vmcnt(0)")
    for Sx in range(1, 4):
        g2_dma(Sx)
    if big:
        sk = uid("G2W")
        A(f"s_cmp_eq_u64 s[8:9], {EP}\ns_cbranch_scc1 {sk}\ns_cmp_lg_u32 s{S_W}, 0\ns_cbranch_scc1 {sk}")
        fst(9, 9)
        spoll([(8, 1, 0)], 66)
        A(f"{sk}:")
        fst(9, 10)
    A(f"s_setprio {3 if OPT['mlo'] else OPT['g2p']}\n;MLO_ON2")
    if big:
        SET = [32, 40, 8]

        def rd(n):
            Sx, u = n >> 2, n & 3
            f, sb = SET[n % 3], slot(Sx)
            for j in range(2):
                A(f"ds_read_b64_tr_b16 {vr(f+2*j,2)}, v{vA} offset:{sb + 256*u + 64*j}")
            A(f"ds_read_b128 {vr(f+4,4)}, v{[vB, 0, 1, 7][u]} offset:{sb}")

        def mm(n):
            if n >= 0:
                f = SET[n % 3]
                A(f"{MF} {vr(ACC,16)}, {vr(f,4)}, {vr(f+4,4)}, {vr(ACC,16)}")

        for Sx in range(20):
            infl = 3 if Sx == 0 else min(Sx + 3, 20) - Sx - 1
            n = 4 * Sx
            A(f"s_waitcnt vmcnt({2*infl})\ns_barrier" if Sx else "s_barrier")
            if Sx == 0:
                stamp(11); fst(9, 11)
            rd(n); rd(n + 1)
            mm(n - 1)
            rd(n + 2)
            A("s_waitcnt lgkmcnt(6)")
            mm(n)
            rd(n + 3)
            if 0 < Sx < 17:
                g2_dma(Sx + 3)
            A("s_waitcnt lgkmcnt(6)")
            mm(n + 1)
            A("s_waitcnt lgkmcnt(3)")
            mm(n + 2)
            A("s_waitcnt lgkmcnt(0)")
        mm(79)
    else:
        FR = [16, 32]

        def mm(Sx, u):
            if Sx >= 0:
                f = FR[Sx & 1]
                A(f"{MF} {vr(ACC,4)}, {vr(f+8*u,4)}, {vr(f+8*u+4,4)}, {vr(ACC,4)}")

        for Sx in range(20):
            infl = 3 if Sx == 0 else min(Sx + 3, 20) - Sx - 1
            f, sb = FR[Sx & 1], slot(Sx)
            A(f"s_waitcnt vmcnt({2*infl})\ns_barrier" if Sx else "s_barrier")
            if 0 < Sx < 17:
                g2_dma(Sx + 3)
            mm(Sx - 1, 0)
            for u in range(2):
                for j in range(2):
                    A(f"ds_read_b64_tr_b16 {vr(f+8*u+2*j,2)}, v{vA} offset:{sb + 512*u + 64*j}")
                A(f"ds_read_b128 {vr(f+8*u+4,4)}, v{vB + u} offset:{sb}")
            mm(Sx - 1, 1)
            A("s_waitcnt lgkmcnt(0)")
        mm(19, 0); mm(19, 1)
    A(";MLO_OFF")
    stamp(7)
    bhi()
    srd(R2, P_OUT, 10485760)
    A(f"s_mul_i32 s44, s{S_W}, {2*PL}\ns_lshl_b32 s64, s{sTC}, 9\ns_add_u32 s44, s44, s64\ns_add_u32 s44, s44, {OP}\ns_lshl_b32 s46, s{S_W}, 10")
    if big:
        A(f"s_lshl_b32 s45, s{sTC}, 3\ns_add_u32 s45, s45, s{sNB}\ns_lshl_b32 s45, s45, 8\ns_lshl_b32 s64, s{S_W}, 6\ns_add_u32 s45, s45, s64\ns_add_u32 s45, s45, {PV4}")
        A(f"v_lshrrev_b32 v0, 9, v4\nv_mul_u32_u24 v0, {PL}, v0\nv_and_b32 v7, 0x1f0, v4\ns_and_b32 s64, s{S_W}, 1\ns_lshl_b32 s64, s64, 7\nv_xor_b32 v7, s64, v7\nv_add_u32 v7, v0, v7")
    for i in range(nacc):
        A(f"s_mov_b32 s64, {rows[i]*5120}\nbuffer_store_dword v{ACC+i}, v{vOut}, {S(R2)}, s64 offen offset:2560 {AUX[OPT['sty']]}")
    PIT = 336
    if big:
        if OPT["otouch"]:
            A(f"v_lshrrev_b32 v0, 6, v4\nv_min_u32 v0, 9, v0\nv_mul_u32_u24 v0, {PL}, v0\nv_and_b32 v1, 0x30, v4\nv_lshl_add_u32 v0, v1, 3, v0")
            A(f"s_and_b32 s64, s{sNB}, 3\ns_mul_i32 s64, s64, {10*PL}\ns_mul_i32 s65, s{S_W}, {38*PL}\ns_add_u32 s47, s64, s65\ns_add_u32 s47, s47, s44")
        spoll([(8, 8, 0)], 45)
        if OPT["otouch"]:
            A(f"buffer_load_dword v8, v0, {S(WS)}, s47 offen sc1")
    A("s_barrier")
    stamp(8); fst(5, 0)
    def odma(i):
        for st in (i, 5 + i):
            A(f"s_add_u32 m0, s46, {8192*st}\ns_add_u32 s64, s44, {16*PL*st}")
            dma(vOs, WS, 64, "sc1")

    odma(0)
    if OPT["opord"]:
        A("s_barrier")
    for i in range(1, 5):
        odma(i)
    A(f"v_mbcnt_lo_u32_b32 v0, -1, 0\nv_mbcnt_hi_u32_b32 v0, -1, v0")
    if big:
        A(f"s_lshr_b32 s64, s{S_W}, 1\ns_mul_i32 s65, s64, {40960 + 32*PIT}\ns_and_b32 s66, s{S_W}, 1\ns_lshl_b32 s66, s66, 7\ns_add_u32 s65, s65, s66")
        A(f"v_and_b32 v2, 31, v0\nv_mul_u32_u24 v2, {PIT}, v2\nv_lshrrev_b32 v3, 5, v0\nv_lshl_add_u32 v2, v3, 4, v2\nv_add_u32 v2, s65, v2")
        A(f"s_mul_i32 s67, s64, {-64*PIT & 0xffffffff}\ns_add_u32 s67, s67, {32*PIT}\nv_add_u32 v7, s67, v2")
        A(f"v_xor_b32 v1, 256, v{vO}")
    else:
        A(f"s_mul_i32 s65, s95, {16*PIT}\ns_add_u32 s65, s65, 256\nv_and_b32 v2, 15, v0\nv_mul_u32_u24 v2, {PIT}, v2\nv_lshrrev_b32 v3, 4, v0\nv_lshl_add_u32 v2, v3, 4, v2\nv_add_u32 v2, s65, v2")
        for i in range(4):
            A(f"v_mov_b32 v{8+i}, 0")
    A(f"s_lshl_b32 s64, s{S_W}, 6\nv_add_u32 v0, s64, v0\nv_mul_u32_u24 v3, 3277, v0\nv_lshrrev_b32 v3, 16, v3\nv_mul_u32_u24 v5, 20, v3\nv_sub_u32 v0, v0, v5\nv_lshlrev_b32 v0, 4, v0")
    A(f"s_mul_i32 s64, s{sTC}, {64*5120}\ns_mul_i32 s65, s{sNB}, 320\ns_add_u32 s47, s64, s65\nv_mul_u32_u24 v5, 5120, v3\nv_add_u32 v5, v5, v0\nv_mul_u32_u24 v3, {PIT}, v3\nv_add_u32 v3, v3, v0")
    steps = {0: 8, 4: 4, 12: 0}
    if big:
        ne = uid("NE")
        A(f"s_cmp_lg_u32 s{sTC}, 31\ns_cbranch_scc1 {ne}\ns_or_b32 s64, s{sNB}, s{S_W}\ns_cmp_lg_u32 s64, 0\ns_cbranch_scc1 {ne}")
        A(f"s_waitcnt vmcnt(0)\nv_mov_b32 v8, s{S_E}\ns_mov_b64 exec, 1\nbuffer_store_dword v8, off, {S(WS)}, 0 offset:{EPOCH} sc1\ns_mov_b64 exec, -1\ns_waitcnt vmcnt(0)\n{ne}:")
        free = [8, 12]
        loc = {}
        order = []

        def issue(n, t):
            f = free.pop(0)
            loc[(n, t)] = f
            i, u = n >> 2, n & 3
            for j in range(2):
                A(f"ds_read_b64 {vr(f+2*j,2)}, v{vO if t == 0 else 1} offset:{8192*i + 2048*u + 512*j}")
            order.append((n, t))

        todo = [(n, t) for n in range(16) for t in range(2)] + [(n, 1) for n in range(16, 20)] + [(n, 0) for n in range(16, 20)]
        nxt = 0
        done = {}
        lim = 0
        for k, (n, t) in enumerate(todo):
            if n in steps and t == 0:
                if n == 0:
                    fst(5, 1)
                A(f"s_waitcnt vmcnt({steps[n]})\ns_barrier")
                fst(5, 2 + list(steps).index(n))
                lim = {0: 8, 4: 24, 12: 40}[n]
            while nxt < lim and free and nxt - k < 6:
                issue(*todo[nxt]); nxt += 1
            pend = len(order) - 1 - order.index((n, t))
            if (n, t) == (17, 0):
                assert nxt == len(todo)
                A("s_nop 7\ns_waitcnt lgkmcnt(0)")
            elif t == 0 and n > 17:
                for g in (2 * (n - 18), 2 * (n - 18) + 1):
                    A(f"ds_write_b128 v7, {vr(ACC+16+4*g,4)} offset:{32*g}")
            else:
                A(f"s_waitcnt lgkmcnt({2*pend})")
            c = "0" if n == 0 else vr(ACC + 16 * t, 16)
            A(f"{MF} {vr(ACC+16*t,16)}, {vr(WF+4*n,4)}, {vr(loc[(n,t)],4)}, {c}")
            free.append(loc[(n, t)])
            done[n] = done.get(n, 0) + 1
            if done[n] == 2:
                free.append(WF + 4 * n)
        fst(5, 5)
        A("s_nop 11")
        for g in range(4):
            A(f"ds_write_b128 v2, {vr(ACC+4*g,4)} offset:{32*g}")
    else:
        first = True
        for si, (i0, i1) in enumerate(((0, 1), (1, 3), (3, 5))):
            A(f"s_waitcnt vmcnt({[8, 4, 0][si]})\ns_barrier")
            for i in range(i0, i1):
                f = 16 + 16 * (i & 1)
                for h in range(2):
                    for U in range(2):
                        for j in range(2):
                            A(f"ds_read_b64 {vr(f+8*h+4*U+2*j,2)}, v{vO+h} offset:{8192*i + 4096*U + 512*j}")
            for i in range(i0, i1):
                f = 16 + 16 * (i & 1)
                for h in range(2):
                    for U in range(2):
                        A(f"s_waitcnt lgkmcnt({8*(i1-1-i) + 6 - 4*h - 2*U})")
                        c = "0" if first else vr(ACC, 4)
                        first = False
                        A(f"{MF} {vr(ACC,4)}, {vr(WF+40*h+8*i+4*U,4)}, {vr(f+8*h+4*U,4)}, {c}")
        A(f"ds_write_b128 v2, v[8:11] offset:40960\ns_nop 6\nds_write_b128 v2, {vr(ACC,4)}")
    A("s_waitcnt lgkmcnt(0)\ns_barrier")
    fst(5, 6)
    if not big:
        A(f"s_cmp_ge_u32 s{S_W}, 5\ns_cbranch_scc1 L_B_DONE")
    for m in range(4):
        A(f"ds_read_b128 {vr(48+8*m,4)}, v3 offset:{16*PIT*m}\nds_read_b128 {vr(52+8*m,4)}, v3 offset:{40960 + 16*PIT*m}")
    for m in range(4):
        A(f"s_waitcnt lgkmcnt({6-2*m})")
        for c in range(2):
            A(f"v_pk_add_f32 {vr(48+8*m+2*c,2)}, {vr(48+8*m+2*c,2)}, {vr(52+8*m+2*c,2)}")
        A(f"buffer_store_dwordx4 {vr(48+8*m,4)}, v5, {S(R2)}, s47 offen {AUX[OPT['sto']]}")
        if m < 3:
            A(f"s_add_u32 s47, s47, {16*5120}")
    if not big:
        A("L_B_DONE:")
    fst(5, 7)
    stamp(9)
    if OPT["stamps"]:
        A("s_waitcnt vmcnt(0)")
        stamp(10); fst(5, 8)
    dump_stamps(12)
    A("s_endpgm")


def wrap_mfma():
    out, on, i = [], False, 0
    for k, l in enumerate(L):
        if l.startswith(";MLO_ON"):
            on = 2 if l.endswith("2") else 1
            continue
        if l == ";MLO_OFF":
            on = False
            continue
        if on and OPT["mlo"] and l.startswith("v_mfma"):
            if not L[k - 1].startswith("v_mfma"):
                out.append(f"s_setprio {OPT['mlv']}")
            out.append(l)
            if not L[k + 1].startswith("v_mfma"):
                out.append("s_setprio 3")
                if on == 1 and OPT.get("pace"):
                    out.append(f"s_sleep {OPT['pace']}")
            elif on == 1 and OPT.get("pace1"):
                out.append(f"s_sleep {OPT['pace1']}")
        else:
            out.append(l)
    L[:] = out


DOC = """\
;    softmax: p = exp2(s) is accumulated unshifted together with its row sum l (ones rows of the P.V product). The shift 0 is only
"""


def build():
    hdr = open("cdna_kernels/" + NAME + ".s.ref").read().split("\n")
    out = [l for l in hdr if l.startswith(";") and "@launch" not in l]
    out.append("; @launch grid=(512,1,1) block=(512,1,1) lds=81920")
    out.append('.amdgcn_target "amdgcn-amd-amdhsa--gfx950"')
    out.append(DOC)
    out.append(".text")
    out.append(f".globl {NAME}_kernel\n.p2align 8\n.type {NAME}_kernel,@function\n{NAME}_kernel:")
    qkv()
    attention()
    qkv_idle()
    role_b()
    A("L_END:\ns_endpgm")
    wrap_mfma()
    for l in L:
        out.append(l if l.endswith(":") or l.startswith(".") else "    " + l)
    out.append(f""".section .rodata,"a"
.p2align 6
.amdhsa_kernel {NAME}_kernel
  .amdhsa_next_free_vgpr 128
  .amdhsa_next_free_sgpr 102
  .amdhsa_accum_offset 128
  .amdhsa_group_segment_fixed_size 0
  .amdhsa_kernarg_size 120
  .amdhsa_user_sgpr_count 2
  .amdhsa_user_sgpr_kernarg_segment_ptr 1
  .amdhsa_system_sgpr_workgroup_id_x 1
.end_amdhsa_kernel""")
    return "\n".join(out) + "\n"


if __name__ == "__main__":
    txt = build()
    open(sys.argv[1], "w").write(txt)
    sys.path.insert(0, "gen")
    import hazard
    e = hazard.check(txt)
    print("\n".join(e) if e else "hazard check: clean")
```

```python
import sys, struct, math

NAME = "concat_heads__softmax_full_mha__ssm_conv_s5__prompt"

OPT = dict(stamps=0, spin=400000, force_fb=0, g2s=6, g2q=6, tog=2, stg=1, g1p=0, g2p=0, htouch=0, ctouch=1, sty=2, sto=2,
           cpre=1, lscan=0, brot=0, t1=0, prea=0, mlo=1, gk=0, hs=16, qst=0, qrot=1, pre=3, c1=-1, sp1=1, otouch=0, qord=1, lastw=1, mlv=0, wearly=1, fill0=16, nfill=4, post=1, q16=0, opord=1)
for a in sys.argv[2:]:
    k, v = a.split("=")
    OPT[k] = int(v)

PL = 16384
EPOCH = 0
F1 = 0x1000
F2 = 0x2000
F3 = 0x3000
F0 = 0x8000
F0B = 0x10000
F0C = 0x18000
STAMP = 0x20000
EB = 0x48000
PV1 = 0xA0000
PV4 = 0xB0000
PV2 = 0xC0000
PV3 = 0xD0000
QKVP = 0x100000
OP = 0xA00000
HB = 0xD00000
WS_USED = 0x1300000
OOB = 0x80000000
AUX = ['', 'nt', 'sc1', 'sc1 nt', 'sc0 sc1']

L = []


def A(s):
    for ln in s.strip("\n").split("\n"):
        L.append(ln.strip())


def f2u(x):
    return struct.unpack("<I", struct.pack("<f", x))[0]


def vr(a, n):
    return f"v[{a}:{a+n-1}]" if n > 1 else f"v{a}"


P_AX, P_WQKV, P_WO, P_BX, P_LRE, P_LIM, P_BRE, P_BIM, P_CRE, P_CIM, P_LDT, P_DSK, P_OUT, P_DBG = range(8, 36, 2)
S_E = 6
S_W = 40
R0, R1, R2, WS, R3 = 44, 48, 52, 56, 60
WSP = f"s[{WS}:{WS+1}]"
EP = f"s[{S_E}:{S_E+1}]"
ST0 = 70
_uid = [0]


def uid(p):
    _uid[0] += 1
    return f"{p}_{_uid[0]}"


def srd(r, p, n):
    A(f"s_mov_b32 s{r}, s{p}\ns_mov_b32 s{r+1}, s{p+1}\ns_mov_b32 s{r+2}, {n}\ns_mov_b32 s{r+3}, 0x20000")


def S(r):
    return f"s[{r}:{r+3}]"


def stamp(k):
    if OPT["stamps"] and not OPT.get("fm"):
        A(f"s_memrealtime s[{ST0+2*k}:{ST0+2*k+1}]")


def cstamp(k):
    if OPT["stamps"] and not OPT.get("fm"):
        A(f"s_memtime s[{ST0+2*k}:{ST0+2*k+1}]")


def fst(mode, k):
    if OPT.get("fm") == mode:
        A(f"s_memtime s[{ST0+2*k}:{ST0+2*k+1}]")


def rst(mode, k):
    if OPT.get("fm") == mode:
        A(f"s_memrealtime s[{ST0+2*k}:{ST0+2*k+1}]")


def dump_stamps(n, role="B"):
    if not OPT["stamps"]:
        return
    if OPT.get("amp"):
        if (role == "A") == (OPT["sel"] < 256):
            sk, lp = uid("AK"), uid("AL")
            A(f"s_waitcnt lgkmcnt(0)\ns_cmp_lg_u32 s2, {OPT['sel']}\ns_cbranch_scc1 {sk}\ns_cmp_lg_u32 s{S_W}, 0\ns_cbranch_scc1 {sk}")
            A(f"s_sub_u32 s64, s{ST0+2*OPT['k1']}, s{ST0+2*OPT['k0']}\ns_mul_i32 s64, s64, {OPT['amp']}\ns_min_u32 s64, s64, 100000\ns_add_u32 s64, s64, s{ST0}")
            A(f"{lp}:\ns_memrealtime s[66:67]\ns_waitcnt lgkmcnt(0)\ns_sub_u32 s66, s66, s64\ns_cmp_lt_i32 s66, 0\ns_cbranch_scc1 {lp}\n{sk}:")
        return
    sk = uid("SK")
    A(f"s_waitcnt lgkmcnt(0)\ns_cmp_lg_u32 s{S_W}, {OPT.get('fw', 0)}\ns_cbranch_scc1 {sk}")
    A(f"s_lshl_b32 s64, s2, 7\ns_add_u32 s64, s64, {STAMP}\ns_mov_b64 exec, 1")
    for k in range(n):
        A(f"v_mov_b32 v120, s{ST0+2*k}\nv_mov_b32 v121, s{ST0+2*k+1}")
        A(f"buffer_store_dwordx2 v[120:121], off, {S(WS)}, s64 offset:{8*k}")
        A("s_waitcnt vmcnt(0)")
    A(f"s_mov_b64 exec, -1\n{sk}:")


def flag_store(soff, t=120, wave=0):
    sk = uid("FS")
    A(f"s_cmp_lg_u32 s{S_W}, {wave}\ns_cbranch_scc1 {sk}")
    A(f"v_mov_b32 v{t}, s{S_E}\nv_mov_b32 v{t+1}, s{S_E+1}\ns_mov_b64 exec, 1")
    A(f"buffer_store_dwordx2 v[{t}:{t+1}], off, {S(WS)}, s{soff} sc1")
    A(f"s_mov_b64 exec, -1\n{sk}:")


def poll(vaddrs, t=120):
    lp, dn = uid("PL"), uid("PD")
    A(f"s_mov_b32 s64, {OPT['spin']}\n{lp}:")
    for i, va in enumerate(vaddrs):
        A(f"buffer_load_dwordx2 v[{t+2*i}:{t+2*i+1}], v{va}, {S(WS)}, 0 offen sc1")
    A("s_waitcnt vmcnt(0)")
    for i, va in enumerate(vaddrs):
        if i == 0:
            A(f"v_cmp_ne_u64 vcc, {EP}, v[{t}:{t+1}]")
        else:
            A(f"v_cmp_ne_u64 s[66:67], {EP}, v[{t+2*i}:{t+2*i+1}]\ns_or_b64 vcc, vcc, s[66:67]")
    A(f"s_cbranch_vccz {dn}\ns_sub_u32 s64, s64, 1\ns_cmp_lg_u32 s64, 0\ns_cbranch_scc1 {lp}\n{dn}:")


def spoll(blocks, soff, need=None, cnt=64, msk=65):
    lp, dn = uid("SP"), uid("SD")
    A(f"s_mov_b32 s{cnt}, {OPT['spin']}\n{lp}:")
    tot = 0
    for dst, n, off in blocks:
        A(f"s_load_dwordx{2*n} s[{dst}:{dst+2*n-1}], {WSP}, s{soff} offset:{off} glc")
        tot += n
    A(f"s_mov_b32 s{msk}, 0\ns_waitcnt lgkmcnt(0)")
    for dst, n, off in blocks:
        for i in range(n):
            A(f"s_cmp_eq_u64 s[{dst+2*i}:{dst+2*i+1}], {EP}\ns_addc_u32 s{msk}, s{msk}, s{msk}")
    if need is None:
        A(f"s_cmp_eq_u32 s{msk}, {(1 << tot) - 1}")
    else:
        A(f"s_andn2_b32 s{msk}, s{need}, s{msk}\ns_cmp_eq_u32 s{msk}, 0")
    A(f"s_cbranch_scc1 {dn}")
    if tot <= 8:
        A("s_sleep 2")
    A(f"s_sub_u32 s{cnt}, s{cnt}, 1\ns_cmp_lg_u32 s{cnt}, 0\ns_cbranch_scc1 {lp}\n{dn}:")


def bhi():
    A("s_setprio 3")


def blo():
    A("s_setprio 0")


def dma(vaddr, rsrc, soff, aux=""):
    A(f"buffer_load_dwordx4 v{vaddr}, {S(rsrc)}, s{soff} offen {aux} lds".replace("  ", " "))


def epoch_fix():
    A(f"s_mul_i32 s{S_E}, s{S_E}, 0x9E3779B1\ns_add_u32 s{S_E}, s{S_E}, 0x7F4A7C15\ns_xor_b32 s{S_E+1}, s{S_E}, 0x5bd1e995")


MF32 = "v_mfma_f32_32x32x16_bf16"
MF8 = "v_mfma_f32_32x32x8_bf16"
MF16 = "v_mfma_f32_16x16x32_bf16"

PS = 2080
SLOT = 11 * PS
RED = 2 * SLOT
BADW = 81912
sST0, sST1, sF1, sSC, sH, sQB, sG, sLd, sQ, sPV1, sNEED, sH1, sH2, sPass, sChk, sO0, sO1, sPV4 = \
    8, 9, 10, 12, 14, 15, 16, 19, 22, 25, 26, 27, 28, 29, 30, 31, 32, 33
vD, vTok, vK, vK1, vV, vF6, vF7, vPush, vQa, vOnes = 123, 124, 125, 126, 127, 121, 122, 120, 112, 116


def att_setup(sRB, sCB):
    G = []
    g = G.append
    g(f"s_and_b32 s34, s2, 7\ns_bfe_u32 s{sQB}, s2, 0x30003\ns_bfe_u32 s35, s2, 0x20006\ns_lshl_b32 s{sH}, s34, 2\ns_add_u32 s{sH}, s{sH}, s35")
    g(f"s_mul_i32 s36, s{sH}, 5\ns_add_u32 s37, s36, 4\ns_lshr_b32 s38, s36, 5\ns_lshr_b32 s37, s37, 5\ns_sub_u32 s37, s37, s38")
    g(f"s_lshl_b32 s{sPV1}, s{sH}, 3\ns_add_u32 s{sPV1}, s{sPV1}, s{sQB}\ns_lshl_b32 s{sPV1}, s{sPV1}, 8\ns_add_u32 s{sPV1}, s{sPV1}, {PV1}")
    g(f"s_mov_b32 s{sNEED}, 0xf0f0c\ns_cmp_eq_u32 s37, 0\ns_cselect_b32 s{sNEED}, s{sNEED}, 0xfffff\ns_mov_b32 s{sPass}, 0\ns_min_u32 s{sChk}, s{S_W}, 1")
    g(f"v_bfe_u32 v11, v1, 4, 1\nv_mul_u32_u24 v11, s37, v11\nv_add_u32 v11, s38, v11\nv_lshrrev_b32 v14, 5, v1\nv_mul_u32_u24 v12, 15, v14\nv_max_u32 v12, v11, v12")
    g(f"v_mul_u32_u24 v13, 5, v14\nv_add3_u32 v11, v11, v13, 5\nv_and_b32 v13, 15, v1\nv_lshlrev_b32 v15, 3, v13\nv_add_u32 v15, {F1}, v15")
    g(f"v_lshl_add_u32 v{vF6}, v11, 7, v15\nv_lshl_add_u32 v{vF7}, v12, 7, v15\nv_lshlrev_b32 v{vD}, 4, v1")
    g(f"s_lshl_b32 s{sH1}, s2, 7\ns_add_u32 s{sH2}, s{sH1}, {F0B}\ns_add_u32 s{sH1}, s{sH1}, {F0}")
    for m in range(3):
        g(f"s_add_u32 s34, s{S_W}, {8*m}\ns_lshr_b32 s35, s34, 1\ns_and_b32 s34, s34, 1\ns_lshl_b32 s34, s34, 10\ns_mul_i32 s{sLd+m}, s35, {PS}\ns_add_u32 s{sLd+m}, s{sLd+m}, s34")
        g(f"s_cmp_ge_u32 s35, 5\ns_cselect_b32 s39, 155, 0\ns_add_u32 s35, s35, s39\ns_add_u32 s35, s35, s36\ns_mul_i32 s35, s35, {PL}\ns_add_u32 s35, s35, s34\ns_add_u32 s{sG+m}, s35, {QKVP + 160*PL}")
    g(f"s_lshr_b32 s34, s{S_W}, 1\ns_min_u32 s34, s34, 2\ns_mul_i32 s34, s34, {SLOT}\ns_and_b32 s35, s{S_W}, 1\ns_lshl_b32 s35, s35, 10\ns_add_u32 s34, s34, s35\ns_add_u32 s34, s34, {10*PS}\nv_add_u32 v{vOnes}, s34, v{vD}")
    g(f"s_and_b32 s34, s{S_W}, 3\ns_lshl_b32 s34, s34, 6\ns_lshr_b32 s35, s{S_W}, 2\ns_lshl_b32 s39, s35, 5\ns_add_u32 s34, s34, s39\ns_lshl_b32 s35, s35, 7")
    g(f"v_lshl_add_u32 v15, v13, 1, s34\nv_lshlrev_b32 v{vTok}, 3, v15\nv_bfe_u32 v12, v1, 4, 1\nv_lshl_add_u32 v15, v12, 3, v{vTok}\nv_xor_b32 v16, 256, v15")
    g(f"v_mul_u32_u24 v17, {2*PL}, v14\nv_add_u32 v{vQa}, v17, v15\nv_add_u32 v{vQa+2}, v17, v16\nv_lshlrev_b32 v17, 31, v14\nv_or_b32 v{vQa+1}, v17, v15\nv_or_b32 v{vQa+3}, v17, v16")
    g(f"v_and_b32 v15, 31, v1\nv_add_u32 v15, s35, v15\nv_lshlrev_b32 v15, 3, v15\nv_mul_u32_u24 v16, {2*PS}, v14\nv_add_u32 v{vK}, v16, v15")
    g(f"v_mul_u32_u24 v16, {6*PS}, v14\nv_add_u32 v16, {4*PS}, v16\nv_add_u32 v{vK1}, v16, v15\nv_and_b32 v16, 3, v1\nv_lshl_add_u32 v16, v12, 2, v16\nv_min_u32 v16, 5, v16")
    g(f"v_add_u32 v16, 5, v16\nv_mul_u32_u24 v16, {PS}, v16\nv_bfe_u32 v17, v1, 2, 2\nv_lshl_add_u32 v17, v14, 2, v17\nv_add_u32 v17, s35, v17\nv_lshl_add_u32 v{vV}, v17, 3, v16")
    g(f"s_mul_i32 s34, s36, {PL}\ns_lshl_b32 s35, s{sQB}, 11\ns_add_u32 s34, s34, s35\ns_add_u32 s{sQ}, s34, {QKVP}\ns_add_u32 s{sQ+1}, s{sQ}, {PL}\ns_add_u32 s{sQ+2}, s{sQ}, {4*PL}")
    g(f"s_add_u32 s{sO0}, s34, {OP}\ns_add_u32 s{sO1}, s{sO0}, {4*PL}\ns_lshl_b32 s{sPV4}, s{sQB}, 13\ns_lshl_b32 s35, s{sH}, 3\ns_add_u32 s{sPV4}, s{sPV4}, s35\ns_add_u32 s{sPV4}, s{sPV4}, {PV4}")
    if sRB is None:
        g(f"v_mov_b32 v{vPush}, {OOB}\ns_sub_u32 s{sF1}, s2, 240\ns_lshl_b32 s{sF1}, s{sF1}, 3\ns_add_u32 s{sF1}, s{sF1}, {F1 + 15*128}")
        return G
    c = 20 ** -0.5 * math.log2(math.e)
    g(f"s_cmp_lt_u32 s{sCB}, 5\ns_cselect_b32 s{sSC}, {f2u(c)}, 1.0\ns_mov_b32 s{sSC+1}, s{sSC}\ns_lshl_b32 s{sF1}, s{sCB}, 7\ns_lshl_b32 s34, s{sRB}, 3\ns_add_u32 s{sF1}, s{sF1}, s34\ns_add_u32 s{sF1}, s{sF1}, {F1}")
    g(f"s_mul_i32 s{sST0}, s{sCB}, {32*PL}\ns_lshl_b32 s34, s{sRB}, 10\ns_add_u32 s{sST0}, s{sST0}, s34\ns_add_u32 s{sST0}, s{sST0}, {QKVP}\ns_add_u32 s{sST1}, s{sST0}, {4*PL}")
    g(f"s_cmp_ge_u32 s{sCB}, 10\ns_cselect_b32 s38, 10, 5\ns_cselect_b32 s35, 8, 0\ns_sub_u32 s34, s{sCB}, s38\ns_add_u32 s35, s35, s{sRB}\ns_cmp_lt_u32 s{sRB}, 4\ns_cselect_b32 s37, 1, 0")
    g(f"s_and_b32 s38, s{sRB}, 1\ns_add_u32 s38, s38, 16\ns_cmp_lt_u32 s{sCB}, 5\ns_cselect_b32 s34, s{sCB}, s34\ns_cselect_b32 s35, s38, s35\ns_cselect_b32 s36, 2, 4\ns_cselect_b32 s37, 2, s37")
    g(f"s_mul_i32 s38, s34, {6554*32}\ns_lshr_b32 s38, s38, 15\nv_lshrrev_b32 v11, 3, v1\nv_add_u32 v11, s38, v11\nv_mul_u32_u24 v12, 5, v11\nv_lshrrev_b32 v13, 5, v12\ns_lshr_b32 s39, s{sRB}, 1")
    g(f"v_cmp_ge_u32 s[68:69], s34, v13\nv_cmp_ne_u32 vcc, s34, v13\nv_and_b32 v13, 7, v1\nv_lshl_add_u32 v11, v11, 3, v13\nv_cndmask_b32 v12, 0, 1, vcc\nv_mul_u32_u24 v12, s36, v12\nv_add_u32 v12, s35, v12")
    g(f"v_cmp_eq_u32 vcc, s39, v13\ns_cmp_eq_u32 s37, 2\ns_cselect_b64 vcc, vcc, -1\ns_and_b64 s[68:69], s[68:69], vcc\ns_cmp_eq_u32 s37, 0\ns_cselect_b64 s[68:69], 0, s[68:69]")
    g(f"v_lshlrev_b32 v11, 8, v11\nv_lshl_add_u32 v11, v12, 3, v11\nv_add_u32 v11, {PV1}, v11\nv_mov_b32 v{vPush}, {OOB}\nv_cndmask_b32 v{vPush}, v{vPush}, v11, s[68:69]")
    return G


def qkv():
    sRB, sCB, sKX, sKW, sMX, sMW, sT = 41, 42, 43, 64, 65, 66, 67
    vX0, vX1, vWs, vWr, vXr = 2, 3, 4, 5, 6
    ACC = 32
    FR = [64, 88]
    A("s_cmp_ge_u32 s2, 256\ns_cbranch_scc1 L_ROLE_B")
    stamp(0); fst(7, 0)
    A(f"s_load_dwordx2 s[{R0}:{R0+1}], s[0:1], 0\ns_load_dwordx2 s[{R1}:{R1+1}], s[0:1], 8\ns_load_dwordx2 s[{WS}:{WS+1}], s[0:1], 112")
    A(f"v_lshrrev_b32 v2, 6, v0\nv_and_b32 v1, 63, v0\nv_readfirstlane_b32 s{S_W}, v2")
    A(f"s_lshr_b32 s{sCB}, s2, 4\ns_and_b32 s{sCB}, s{sCB}, 14\ns_bfe_u32 s{sT}, s2, 0x10002\ns_or_b32 s{sCB}, s{sCB}, s{sT}")
    A(f"s_lshr_b32 s{sRB}, s2, 1\ns_and_b32 s{sRB}, s{sRB}, 12\ns_and_b32 s{sT}, s2, 3\ns_or_b32 s{sRB}, s{sRB}, s{sT}")
    A(f"s_cmp_eq_u32 s{sCB}, 15\ns_cselect_b32 s{sT}, 8, 0\ns_add_u32 s{sRB}, s{sRB}, s{sT}\ns_min_u32 s{sCB}, s{sCB}, 14")
    if OPT["qst"]:
        A(f"s_mov_b32 s{sKX}, 0")
    else:
        if OPT["qrot"] == 2:
            A(f"s_and_b32 s{sKX}, s2, 7")
        elif OPT["qrot"] == 1:
            A(f"s_mul_i32 s{sKX}, s{sRB}, 3\ns_add_u32 s{sKX}, s{sKX}, s{sCB}\ns_mul_i32 s{sT}, s{sKX}, 205\ns_lshr_b32 s{sT}, s{sT}, 11\ns_mul_i32 s{sT}, s{sT}, 10\ns_sub_u32 s{sKX}, s{sKX}, s{sT}")
        else:
            A(f"s_bfe_u32 s{sKX}, s2, 0x10003\ns_mul_i32 s{sKX}, s{sKX}, 5")
        A(f"s_mul_i32 s{sKW}, s{sKX}, {2*122880}\ns_lshl_b32 s{sKX}, s{sKX}, 7")
    A(f"s_lshl_b32 s{sT}, s{sRB}, 7\ns_lshr_b32 s68, s{S_W}, 1\ns_lshl_b32 s68, s68, 5\ns_add_u32 s{sT}, s{sT}, s68\ns_and_b32 s68, s{S_W}, 1\ns_add_u32 s{sT}, s{sT}, s68")
    A(f"v_lshrrev_b32 v10, 3, v1\nv_lshl_add_u32 v10, v10, 1, s{sT}\nv_mul_u32_u24 v10, 1280, v10")
    A(f"v_lshrrev_b32 v11, 4, v1\nv_and_b32 v12, 7, v1\nv_xor_b32 v12, v12, v11\nv_lshl_add_u32 v{vX0}, v12, 4, v10")
    A(f"s_lshl_b32 s{sMX}, s{S_W}, 11\ns_mov_b32 s{R0+2}, 2621440\ns_mov_b32 s{R0+3}, 0x20000\ns_mov_b32 m0, s{sMX}")
    A("s_cmp_ge_u32 s2, 240\ns_cbranch_scc1 L_QKV_IDLE")
    fst(7, 1)
    A("s_waitcnt lgkmcnt(0)")
    issued = []

    def dmaX(Sx, between=None):
        if OPT["qst"]:
            for i in range(2):
                if Sx or i:
                    A(f"s_add_u32 m0, s{sMX}, {(Sx % 3) * 16384 + i * 1024}")
                    A(f"s_movk_i32 s{sKX}, {128 * Sx}" if i == 0 else "s_nop 0")
                dma(vX0 + i, R0, sKX, 'nt' if OPT.get('ntx') else '')
                issued.append(("X", Sx))
                if between and i == 0:
                    between()
            return
        for i in range(2):
            if Sx or i:
                A(f"s_add_u32 m0, s{sMX}, {(Sx % 3) * 16384 + i * 1024}\ns_nop 0")
            dma(vX0 + i, R0, sKX, 'nt' if OPT.get('ntx') else '')
            issued.append(("X", Sx))
            if between and i == 0:
                between()
        A(f"s_add_u32 s{sKX}, s{sKX}, 128\ns_cmp_eq_u32 s{sKX}, 1280\ns_cselect_b32 s{sKX}, 0, s{sKX}")

    def dmaW(s):
        if OPT["qst"]:
            A(f"s_add_u32 m0, s{sMW}, {(s % 4) * 8192}\ns_mov_b32 s{sKW}, {122880 * s}")
            dma(vWs, R1, sKW, 'nt' if OPT.get('ntw') else '')
            issued.append(("W", s))
            return
        A(f"s_add_u32 m0, s{sMW}, {(s % 4) * 8192}\ns_nop 0")
        dma(vWs, R1, sKW, 'nt' if OPT.get('ntw') else '')
        issued.append(("W", s))
        A(f"s_add_u32 s{sKW}, s{sKW}, 122880\ns_cmp_eq_u32 s{sKW}, 2457600\ns_cselect_b32 s{sKW}, 0, s{sKW}")

    dmaX(0, lambda: A(f"v_xor_b32 v{vX1}, 64, v{vX0}\nv_add_u32 v{vX1}, 20480, v{vX1}"))
    A(f"s_lshl_b32 s68, s{S_W}, 2\nv_add_u32 v10, s68, v11\nv_mul_u32_u24 v10, 3840, v10")
    if OPT["q16"]:
        A(f"s_and_b32 s68, s{S_W}, 2\ns_lshl_b32 s68, s68, 2\nv_and_b32 v12, 15, v1\nv_lshl_add_u32 v13, v11, 1, s68\nv_xor_b32 v12, v12, v13\nv_lshl_add_u32 v10, v12, 4, v10")
    else:
        A(f"v_and_b32 v12, 15, v1\nv_lshlrev_b32 v13, 2, v11\nv_xor_b32 v12, v12, v13\nv_lshl_add_u32 v10, v12, 4, v10")
    A(f"s_lshl_b32 s68, s{sCB}, 8\nv_add_u32 v{vWs}, s68, v10\ns_lshl_b32 s{sMW}, s{S_W}, 10\ns_add_u32 s{sMW}, s{sMW}, 49152")
    A(f"s_mov_b32 s{R1+2}, 2457600\ns_mov_b32 s{R1+3}, 0x20000")
    dmaW(0)
    fst(7, 2)
    A(f"s_load_dword s{S_E}, {WSP}, {EPOCH}\ns_mov_b32 s{WS+2}, {WS_USED}\ns_mov_b32 s{WS+3}, 0x20000\ns_barrier")
    fst(7, 3)
    dmaW(1); dmaX(1); dmaW(2); dmaW(3); dmaX(2)
    fst(7, 4)
    if OPT["q16"]:
        A(f"v_lshrrev_b32 v10, 4, v1\nv_bfe_u32 v11, v1, 2, 2\nv_lshl_add_u32 v12, v10, 3, v11\nv_lshlrev_b32 v12, 8, v12")
        A(f"s_and_b32 s68, s{S_W}, 3\ns_lshl_b32 s68, s68, 2\nv_bfe_u32 v13, v1, 1, 1\nv_add_u32 v13, s68, v13")
        A(f"v_and_b32 v14, 1, v10\nv_lshl_add_u32 v11, v14, 2, v11\nv_lshlrev_b32 v11, 1, v11\nv_xor_b32 v13, v13, v11\nv_lshl_add_u32 v12, v13, 4, v12")
        A(f"v_and_b32 v14, 1, v1\nv_lshl_add_u32 v12, v14, 3, v12\nv_add_u32 v5, 49152, v12\nv_xor_b32 v6, 32, v5")
        A(f"s_lshr_b32 s68, s{S_W}, 2\ns_lshl_b32 s68, s68, 6\nv_and_b32 v11, 15, v1\nv_add_u32 v12, s68, v11\nv_lshlrev_b32 v12, 7, v12")
        A(f"v_lshrrev_b32 v13, 1, v11\nv_xor_b32 v13, v13, v10\nv_lshl_add_u32 v7, v13, 4, v12\nv_xor_b32 v8, 64, v7")
        fst(7, 5)
        G = [f"s_and_b32 s34, s{S_W}, 3\ns_lshl_b32 s34, s34, 3\nv_add_u32 v10, s34, v10\nv_mul_u32_u24 v10, {PL}, v10",
             f"v_and_b32 v11, 15, v1\nv_lshl_add_u32 v10, v11, 4, v10\ns_lshr_b32 s34, s{S_W}, 2\ns_lshl_b32 s34, s34, 9\nv_add_u32 v10, s34, v10"]
    else:
        A(f"v_lshrrev_b32 v10, 5, v1\nv_bfe_u32 v11, v1, 2, 2\nv_lshl_add_u32 v12, v10, 3, v11\nv_lshlrev_b32 v12, 8, v12")
        A(f"s_and_b32 s68, s{S_W}, 3\ns_lshl_b32 s68, s68, 2")
        A(f"v_bfe_u32 v13, v1, 4, 1\nv_lshlrev_b32 v13, 1, v13\nv_bfe_u32 v14, v1, 1, 1\nv_add3_u32 v13, v13, v14, s68")
        A(f"v_lshlrev_b32 v11, 2, v11\nv_xor_b32 v13, v13, v11\nv_lshl_add_u32 v12, v13, 4, v12")
        A(f"v_and_b32 v14, 1, v1\nv_lshl_add_u32 v12, v14, 3, v12\nv_add_u32 v{vWr}, 49152, v12")
        A(f"s_lshr_b32 s68, s{S_W}, 2\ns_lshl_b32 s68, s68, 6\nv_and_b32 v11, 31, v1\nv_add_u32 v12, s68, v11\nv_lshlrev_b32 v12, 7, v12")
        A(f"v_bfe_u32 v13, v1, 1, 3\nv_xor_b32 v13, v13, v10\nv_lshl_add_u32 v{vXr}, v13, 4, v12")
        for k in range(1, 4):
            A(f"v_xor_b32 v{vXr+k}, {32*k}, v{vXr}")
        fst(7, 5)
        G = [f"s_and_b32 s34, s{S_W}, 3\ns_lshl_b32 s34, s34, 3\nv_bfe_u32 v11, v1, 4, 1\nv_lshl_add_u32 v10, v11, 1, v10\nv_add_u32 v10, s34, v10\nv_mul_u32_u24 v10, {PL}, v10",
             f"v_and_b32 v11, 15, v1\nv_lshl_add_u32 v10, v11, 4, v10\ns_lshr_b32 s34, s{S_W}, 2\ns_lshl_b32 s34, s34, 9\nv_add_u32 v10, s34, v10"]
    GA = att_setup(sRB, sCB)
    post = []
    if OPT["post"]:
        post, GA = GA[:-8], GA[-8:]
    G += GA
    nf = OPT["nfill"]
    per = [G[len(G) * i // nf:len(G) * (i + 1) // nf] for i in range(nf)]

    def reads(s):
        f = FR[s & 1]
        ws, xs, b = (s % 4) * 8192, ((s >> 1) % 3) * 16384, s & 1
        if OPT["q16"]:
            for mi in range(2):
                for j in range(2):
                    A(f"ds_read_b64_tr_b16 {vr(f+4*mi+2*j, 2)}, v{5+mi} offset:{ws + 1024*j}")
                for ni in (2 * mi, 2 * mi + 1):
                    A(f"ds_read_b128 {vr(f+8+4*ni, 4)}, v{7+b} offset:{xs + 2048*ni}")
            return
        for u in range(2):
            for j in range(2):
                A(f"ds_read_b64_tr_b16 {vr(f+4*u+2*j, 2)}, v{vWr} offset:{ws + (16*u+4*j)*256}")
            for nt in range(2):
                A(f"ds_read_b128 {vr(f+8+8*u+4*nt, 4)}, v{vXr+2*b+u} offset:{xs + 4096*nt}")

    def mfma1(s, i):
        if s < 0:
            return
        f = FR[s & 1]
        if OPT["q16"]:
            for mi in range(2):
                a = ACC + 16 * mi + 4 * i
                A(f"{MF16} {vr(a,4)}, {vr(f+4*mi,4)}, {vr(f+8+4*i,4)}, {'0' if s == 0 else vr(a,4)}")
            return
        u, nt = i >> 1, i & 1
        c = "0" if (s == 0 and u == 0) else vr(ACC + 16 * nt, 16)
        A(f"{MF32} {vr(ACC+16*nt,16)}, {vr(f+4*u,4)}, {vr(f+8+8*u+4*nt,4)}, {c}")

    for s in range(20):
        last = max(i for i, t in enumerate(issued) if t in (("X", s >> 1), ("W", s)))
        A(f"s_waitcnt vmcnt({len(issued) - 1 - last})\ns_barrier")
        if s == 0:
            stamp(1); cstamp(10)
        if s < 4:
            fst(7, 6 + s)
        fill = per[s - OPT["fill0"]] if 0 <= s - OPT["fill0"] < nf else []
        mfma1(s - 1, 0)
        reads(s)
        mfma1(s - 1, 1)
        if s >= 1 and s + 3 < 20:
            dmaW(s + 3)
        if s & 1 == 0:
            pass
        else:
            for x in fill[:1]:
                A(x)
        mfma1(s - 1, 2)
        if s >= 2 and s % 2 == 0 and s // 2 + 2 < 10:
            dmaX(s // 2 + 2)
        if s == 1:
            epoch_fix()
        if (OPT["gk"] or OPT["pre"] == 2) and s == OPT["hs"]:
            A(f"s_lshl_b32 s3, s2, 7\ns_lshl_b32 s67, s{S_W}, 3\ns_add_u32 s3, s3, s67\ns_add_u32 s3, s3, {F0C}")
            A(f"v_mov_b32 v118, s{S_E}\nv_mov_b32 v119, s{S_E+1}\ns_mov_b64 exec, 1\nbuffer_store_dwordx2 v[118:119], off, {S(WS)}, s3 sc1\ns_mov_b64 exec, -1")
            issued.append(("H", 0))
        for x in (fill[1:] if s & 1 else fill):
            A(x)
        mfma1(s - 1, 3)
        A("s_waitcnt lgkmcnt(0)")
    for i in range(4):
        mfma1(19, i)
    stamp(2); cstamp(11); fst(8, 0)
    if OPT["q16"]:
        A("s_nop 2")
        for p in range(2):
            for mi in range(2):
                d = 64 + 8 * p + 4 * mi
                for k in range(2):
                    a = ACC + 16 * mi + 4 * (2 * p + k)
                    A(f"v_pk_mul_f32 {vr(a,2)}, {vr(a,2)}, s[{sSC}:{sSC+1}]\nv_pk_mul_f32 {vr(a+2,2)}, {vr(a+2,2)}, s[{sSC}:{sSC+1}]")
                    A(f"v_cvt_pk_bf16_f32 v{d+2*k}, v{a}, v{a+1}\nv_cvt_pk_bf16_f32 v{d+2*k+1}, v{a+2}, v{a+3}")
                A(f"buffer_store_dwordx4 {vr(d,4)}, v10, {S(WS)}, s{sST0 + mi} offen offset:{256*p} sc1")
    else:
        A("s_nop 10")
    for nt in range(0 if OPT["q16"] else 2):
        for g in range(4):
            a = ACC + 16 * nt + 4 * g
            A(f"v_pk_mul_f32 {vr(a,2)}, {vr(a,2)}, s[{sSC}:{sSC+1}]\nv_pk_mul_f32 {vr(a+2,2)}, {vr(a+2,2)}, s[{sSC}:{sSC+1}]")
            d = 64 + 8 * nt + 2 * g
            A(f"v_cvt_pk_bf16_f32 v{d}, v{a}, v{a+1}\nv_cvt_pk_bf16_f32 v{d+1}, v{a+2}, v{a+3}")
            if g & 1:
                d -= 2
                A(f"s_nop 0\nv_permlane16_swap_b32 v{d}, v{d+2}\nv_permlane16_swap_b32 v{d+1}, v{d+3}")
                A(f"buffer_store_dwordx4 {vr(d,4)}, v10, {S(WS)}, s{sST0 + (g >> 1)} offen offset:{256*nt} sc1")
    fst(8, 1)
    for x in post:
        A(x)


def qkv_idle():
    A(f"L_QKV_IDLE:\ns_waitcnt lgkmcnt(0)\ns_load_dword s{S_E}, {WSP}, {EPOCH}\ns_mov_b32 s{WS+2}, {WS_USED}\ns_mov_b32 s{WS+3}, 0x20000")
    for x in att_setup(None, None):
        A(x)
    A("s_waitcnt lgkmcnt(0)")
    epoch_fix()
    if OPT["gk"] or OPT["pre"] == 2:
        A(f"s_lshl_b32 s34, s2, 7\ns_add_u32 s34, s34, {F0C}")
        flag_store(34, t=118)
    A("s_branch L_PUB")


def attention():
    Q = [8, 14]; O = [20, 36]; SS = [52, 68]; Kf = [84, 90]; Vf = [96, 104]; P = 112
    A("L_PUB:")
    for i in range(4):
        A(f"v_mov_b32 v{4+i}, {(0x3f80 if i % 2 == 0 else 0) if OPT['sp1'] else 0x3f803f80}")
    A(f"v_mov_b32 v2, s{S_E}\nv_mov_b32 v3, s{S_E+1}\nv_mov_b32 v8, {BADW}\nv_mov_b32 v9, 0")
    A("s_waitcnt vmcnt(0)")
    fst(8, 2)
    A("s_barrier")
    fst(8, 3)
    A(f"s_cmp_lg_u32 s{S_W}, 0\ns_cbranch_scc1 L_NOPUSH")
    A(f"buffer_store_dwordx2 v[2:3], v{vPush}, {S(WS)}, 0 offen sc1\ns_mov_b64 exec, 1\nbuffer_store_dwordx2 v[2:3], off, {S(WS)}, s{sF1} sc1\ns_mov_b64 exec, -1\nL_NOPUSH:")
    stamp(3)
    A(f"ds_write_b128 v{vOnes}, v[4:7]\nds_write_b32 v8, v9\nds_write_b32 v8, v9 offset:4")
    A(f"s_waitcnt lgkmcnt(0)\ns_cmp_lg_u32 s{S_W}, 1\ns_cbranch_scc1 L_NOPOLL")
    spoll([(68, 8, 0), (84, 8, 64), (44, 4, 128)], sPV1, need=sNEED)
    A("L_NOPOLL:\ns_barrier")
    stamp(4); fst(8, 4)

    def dma_static(st, m, blk=None):
        if m == 2:
            sk2 = uid("D3")
            A(f"s_cbranch_vccz {sk2}")
        A(f"s_add_u32 m0, s{sLd+m}, {(st % 3) * SLOT}\ns_add_u32 s68, s{sG+m}, {2048 * st if blk is None else blk}")
        dma(vD, WS, 68, "sc1")
        if m == 2:
            A(f"{sk2}:")

    def qload(x):
        A(f"buffer_load_dwordx2 {vr(Q[x],2)}, v{vQa+2*x}, {S(WS)}, s{sQ} offen sc1")
        A(f"buffer_load_dwordx2 {vr(Q[x]+2,2)}, v{vQa+2*x}, {S(WS)}, s{sQ+1} offen sc1")
        A(f"buffer_load_dwordx2 {vr(Q[x]+4,2)}, v{vQa+1+2*x}, {S(WS)}, s{sQ+2} offen sc1")

    if OPT["qord"]:
        A(f"s_cmp_lt_u32 s{S_W}, 4\ns_cselect_b64 vcc, -1, 0")
        for m in range(3):
            dma_static(0, m)
        qload(0); qload(1)
        flag_store(sH1, t=2, wave=7)
        A("s_branch L_ATT_GO\nL_ATT_MAIN:")
        A(f"s_cmp_lt_u32 s{S_W}, 4\ns_cselect_b64 vcc, -1, 0")
        for m in range(3):
            dma_static(0, m)
        A("L_ATT_GO:\ns_waitcnt vmcnt(0)\ns_barrier")
    else:
        qload(0); qload(1)
        A("L_ATT_MAIN:")
        A(f"s_cmp_lt_u32 s{S_W}, 4\ns_cselect_b64 vcc, -1, 0")
        for m in range(3):
            dma_static(0, m)
        flag_store(sH1, t=2, wave=7)
        A("s_waitcnt vmcnt(0)\ns_barrier")
    stamp(5); cstamp(8); fst(8, 5)

    def kreads(kl, off):
        A(f"ds_read_b64 {vr(kl,2)}, v{vK} offset:{off}\nds_read_b64 {vr(kl+2,2)}, v{vK} offset:{off+PS}\nds_read_b64 {vr(kl+4,2)}, v{vK1} offset:{off}")

    def vreads(vl, off):
        for j in range(4):
            A(f"ds_read_b64_tr_b16 {vr(vl+2*j,2)}, v{vV} offset:{off+64*j}")

    kreads(Kf[0], 0)
    vreads(Vf[0], 0)
    for m in range(2):
        dma_static(1, m)
    A("s_waitcnt lgkmcnt(4)")
    A(f"{MF32} {vr(SS[0],16)}, {vr(Kf[0],4)}, {vr(Q[0],4)}, 0\n{MF8} {vr(SS[0],16)}, {vr(Kf[0]+4,2)}, {vr(Q[0]+4,2)}, {vr(SS[0],16)}")
    dma_static(1, 2)
    A("s_nop 9")

    def tail_addr():
        A(f"s_lshl_b32 s64, s{S_W}, 12\ns_add_u32 s64, s64, {RED}\ns_xor_b32 s65, s{S_W}, 4\ns_lshl_b32 s65, s65, 12\ns_add_u32 s65, s65, {RED}")
        A(f"v_add_u32 v2, s64, v{vD}\nv_add_u32 v3, s65, v{vD}\ns_movk_i32 s69, 0x100\nv_cmp_gt_u32 s[66:67], s69, v{vD}")
        A(f"v_lshrrev_b32 v4, 9, v{vD}\nv_bfe_u32 v5, v{vD}, 8, 1\nv_lshl_add_u32 v5, v5, 1, v4\nv_mul_u32_u24 v5, {PL}, v5\nv_add_u32 v5, v5, v{vTok}")
        A(f"v_mov_b32 v4, {OOB}\nv_cndmask_b32 v4, v4, v{vTok}, s[66:67]")

    def unit(st, x, kt):
        s = SS[x]; sn = SS[1 - x]
        nk = kt if x == 0 else kt + 1
        kf = Kf[nk & 1]; qn = Q[1 - x]
        pk = kt - 1 if x == 0 else kt
        vprev = Vf[pk & 1]; v = Vf[kt & 1]
        last = st == 7 and kt == 3
        e = lambda i: A(f"v_exp_f32 v{s+i}, v{s+i}")
        c = lambda i: A(f"v_cvt_pk_bf16_f32 v{P+i}, v{s+2*i}, v{s+2*i+1}")
        nxt_off = ((st + 1) % 3) * SLOT if kt == 3 else (st % 3) * SLOT + 256 * (kt + 1)
        if x == 1 and not last:
            A("s_waitcnt lgkmcnt(0)")
        if not (last and x == 1):
            A(f"{MF32} {vr(sn,16)}, {vr(kf,4)}, {vr(qn,4)}, 0")
        e(0); e(1); e(2); e(3)
        if not (last and x == 1):
            A(f"{MF8} {vr(sn,16)}, {vr(kf+4,2)}, {vr(qn+4,2)}, {vr(sn,16)}")
        c(0); c(1); e(4); e(5); e(6); e(7)
        if (st, x, kt) != (0, 0, 0):
            A(f"{MF32} {vr(O[1-x],16)}, {vr(vprev+4,4)}, {vr(P+4,4)}, {vr(O[1-x],16)}")
        if not last:
            if x == 0:
                if kt == 3:
                    A("s_waitcnt vmcnt(0)")
                    if st == 0:
                        fc = uid("FC")
                        A(f"s_cmp_lg_u32 s{sChk}, 0\ns_cbranch_scc1 {fc}")
                        A(f"v_cmp_ne_u64 s[64:65], {EP}, v[2:3]\nv_cmp_ne_u64 s[66:67], {EP}, v[4:5]\ns_or_b64 s[64:65], s[64:65], s[66:67]\ns_cbranch_scc0 {fc}")
                        poll([vF6, vF7], t=2)
                        A(f"s_mov_b64 vcc, -1\n{fc}:")
                    A("s_barrier")
                kreads(Kf[(kt + 1) & 1], nxt_off)
            else:
                vreads(Vf[(kt + 1) & 1], nxt_off)
        site = {(1, 3): (0, st + 2), (0, 0): (1, st + 1), (1, 0): (2, st + 1)}.get((x, kt))
        if site and 2 <= site[1] < 8:
            dma_static(site[1], site[0])
        if st == OPT["g2s"] - 1 and 2 * kt + x == OPT["g2q"]:
            flag_store(sH2, t=6, wave=7)
        if (st, x, kt) == (1, 1, 1):
            tail_addr()
        if (st, x, kt) == (0, 0, 2):
            nf = uid("NF")
            A(f"s_cmp_lg_u32 s{sChk}, 0\ns_cbranch_scc1 {nf}")
            A(f"buffer_load_dwordx2 v[2:3], v{vF6}, {S(WS)}, 0 offen sc1\nbuffer_load_dwordx2 v[4:5], v{vF7}, {S(WS)}, 0 offen sc1\n{nf}:")
        if OPT["tog"] == 1:
            A(f"s_setprio {1 - x}")
        if OPT["tog"] >= 2:
            gu = 8 * st + 2 * kt + x
            top = 3 if OPT["tog"] == 2 else 2
            if gu < 6:
                lv = {0: top, 1: top - 1, 3: top - 2, 5: top - 3}.get(gu) if top == 3 else {0: 2, 2: 1, 4: 0}.get(gu)
            elif gu >= 54:
                lv = {54: 3, 57: 2, 60: 1, 62: 0}.get(gu) if top == 3 else {54: 2, 58: 1, 61: 0}.get(gu)
            else:
                ph = (gu - 6) % 8
                lv = {0: 3, 2: 2, 4: 1, 6: 0}.get(ph) if top == 3 else {0: 2, 3: 1, 6: 0}.get(ph)
            if lv is not None:
                A(f"s_setprio {lv}")
        c(2); c(3); e(8); e(9); e(10); e(11)
        if x == 0:
            A(f"s_waitcnt lgkmcnt({0 if last else 3})")
        A(f"{MF32} {vr(O[x],16)}, {vr(v,4)}, {vr(P,4)}, {'0' if (st, kt) == (0, 0) else vr(O[x],16)}")
        c(4); c(5); e(12); e(13); e(14); e(15); c(6); c(7)

    for st in range(8):
        fst(10, st); rst(11, st)
        for kt in range(4):
            unit(st, 0, kt)
            unit(st, 1, kt)
    A(f"s_setprio 3\ns_nop 0\n{MF32} {vr(O[1],16)}, {vr(Vf[1]+4,4)}, {vr(P+4,4)}, {vr(O[1],16)}")
    stamp(6); cstamp(9); fst(6, 0); fst(10, 8); rst(11, 8)
    assert RED + 8 * 4096 <= BADW
    o = O[0]
    lo, hi = f2u(2.0 ** -60), f2u(2.0 ** 60)
    if OPT["force_fb"]:
        hi = f2u(2.0 ** -59)
    A(f"v_mov_b32 v70, 0\nv_mov_b32 v71, 0\nv_mov_b32 v80, {lo}\nv_mov_b32 v81, {hi}\nv_mov_b32 v83, {BADW}")
    A(f"v_lshlrev_b32 v82, 4, v{vD}\nv_mov_b32 v84, s{S_E}\nv_mov_b32 v85, s{S_E+1}\ns_nop 3")
    for g in range(4):
        A(f"ds_write_b128 v2, {vr(O[1]+4*g,4)} offset:{1024*g}")
    fst(6, 1)
    A("s_waitcnt lgkmcnt(0)\ns_barrier")
    fst(6, 2)
    for g in (3, 0, 1, 2):
        A(f"ds_read_b128 {vr(52+4*g,4)}, v3 offset:{1024*g}")
    A(f"s_waitcnt lgkmcnt(3)\nv_add_f32 v{o+12}, v{o+12}, v{52+12}\nv_rcp_f32 v68, v{o+12}")
    for g in range(3):
        a = o + 4 * g
        A(f"s_waitcnt lgkmcnt({2-g})\nv_pk_add_f32 {vr(a,2)}, {vr(a,2)}, {vr(52+4*g,2)}\nv_pk_add_f32 {vr(a+2,2)}, {vr(a+2,2)}, {vr(54+4*g,2)}")
        A(f"v_pk_mul_f32 {vr(a,2)}, {vr(a,2)}, v[68:69] op_sel_hi:[1,0]\nv_pk_mul_f32 {vr(a+2,2)}, {vr(a+2,2)}, v[68:69] op_sel_hi:[1,0]")
        A(f"v_cvt_pk_bf16_f32 v{72+2*g}, v{a}, v{a+1}\nv_cvt_pk_bf16_f32 v{73+2*g}, v{a+2}, v{a+3}")
        if g == 1:
            A(f"s_nop 0\nv_permlane16_swap_b32 v72, v74\nv_permlane16_swap_b32 v73, v75")
            A(f"buffer_store_dwordx4 v[72:75], v5, {S(WS)}, s{sO0} offen sc1")
        if g == 2:
            A(f"v_mov_b32 v78, v76\nv_mov_b32 v79, v77\ns_nop 0\nv_permlane16_swap_b32 v76, v78\nv_permlane16_swap_b32 v77, v79")
            A(f"buffer_store_dwordx4 v[76:79], v4, {S(WS)}, s{sO1} offen sc1")
    for i in range(0, 12, 2):
        A(f"v_pk_fma_f32 v[70:71], {vr(o+i,2)}, 0, v[70:71] op_sel_hi:[1,0,1]")
    A(f"v_cmp_u_f32 vcc, v70, v71\nv_cmp_ngt_f32 s[66:67], v{o+12}, v80\ns_or_b64 vcc, vcc, s[66:67]\nv_cmp_nlt_f32 s[66:67], v{o+12}, v81\ns_or_b64 vcc, vcc, s[66:67]")
    A(f"s_cbranch_vccz L_NOBAD\nv_mov_b32 v81, 1\nds_write_b32 v83, v81\nL_NOBAD:")
    fst(6, 3)
    if OPT["lastw"]:
        A("s_waitcnt lgkmcnt(0)\ns_barrier\nds_read_b32 v81, v83\nv_mov_b32 v86, 1\ns_waitcnt lgkmcnt(0)\nv_readfirstlane_b32 s64, v81")
        A(f"s_cmp_gt_u32 s64, s{sPass}\ns_cbranch_scc1 L_ATT_FB0")
        A("s_mov_b64 exec, 1\ns_waitcnt vmcnt(0)")
        fst(6, 4)
        A("ds_add_rtn_u32 v86, v83, v86 offset:4\ns_waitcnt lgkmcnt(0)\nv_readfirstlane_b32 s64, v86\ns_mov_b64 exec, -1")
        fst(6, 5)
        A(f"s_cmp_lg_u32 s64, 7\ns_cbranch_scc1 L_A_DONE\ns_mov_b32 exec_hi, 0\nbuffer_store_dwordx2 v[84:85], v82, {S(WS)}, s{sPV4} offen sc1\ns_mov_b64 exec, -1")
    else:
        A("s_waitcnt lgkmcnt(0)\ns_barrier\nds_read_b32 v81, v83\ns_waitcnt vmcnt(0) lgkmcnt(0)\nv_readfirstlane_b32 s64, v81")
        fst(6, 4)
        A("s_barrier")
        fst(6, 5)
        A(f"s_cmp_gt_u32 s64, s{sPass}\ns_cbranch_scc1 L_ATT_FB")
        A(f"s_cmp_lg_u32 s{S_W}, 0\ns_cbranch_scc1 L_A_DONE\ns_mov_b32 exec_hi, 0\nbuffer_store_dwordx2 v[84:85], v82, {S(WS)}, s{sPV4} offen sc1\ns_mov_b64 exec, -1")
    A("L_A_DONE:")
    stamp(7)
    dump_stamps(12, "A")
    A("s_endpgm")

    A("L_ATT_FB0:\ns_waitcnt vmcnt(0)\nL_ATT_FB:")
    A(f"s_mov_b32 s{sPass}, 1\ns_mov_b32 s{sChk}, 1\ns_mov_b32 s34, 0\ns_cmp_lt_u32 s{S_W}, 4\ns_cselect_b64 vcc, -1, 0")
    A("v_mov_b32 v20, 0xff800000\nv_mov_b32 v21, 0xff800000")
    A("L_FB_LOOP:\ns_barrier")
    for m in range(3):
        dma_static(0, m, "s34")
    A("s_waitcnt vmcnt(0)\ns_barrier")
    for kt in range(4):
        kreads(Kf[0], 256 * kt)
        A("s_waitcnt lgkmcnt(0)")
        for x in range(2):
            A(f"{MF32} {vr(SS[x],16)}, {vr(Kf[0],4)}, {vr(Q[x],4)}, 0\n{MF8} {vr(SS[x],16)}, {vr(Kf[0]+4,2)}, {vr(Q[x]+4,2)}, {vr(SS[x],16)}")
        A("s_nop 15")
        for x in range(2):
            for i in range(0, 16, 2):
                A(f"v_max3_f32 v{20+x}, v{SS[x]+i}, v{SS[x]+i+1}, v{20+x}")
    A("s_add_u32 s34, s34, 2048\ns_cmp_lt_u32 s34, 16384\ns_cbranch_scc1 L_FB_LOOP")
    for x in range(2):
        A(f"v_mov_b32 v22, v{20+x}\ns_nop 1\nv_permlane32_swap_b32 v{20+x}, v22\nv_max_f32 v{20+x}, v{20+x}, v22")
    A(f"s_barrier\nds_write_b64 v2, v[20:21]\ns_waitcnt lgkmcnt(0)\ns_barrier\nds_read_b64 v[22:23], v3\ns_waitcnt lgkmcnt(0)")
    A("v_max_f32 v20, v20, v23\nv_max_f32 v21, v21, v22\nv_cmp_le_u32 vcc, 32, v1")
    for x in range(2):
        A(f"v_sub_f32 v24, 0, v{20+x}\nv_and_b32 v25, 0xffff0000, v24\nv_sub_f32 v24, v24, v25\nv_and_b32 v26, 0xffff0000, v24\nv_sub_f32 v24, v24, v26")
        A(f"v_lshrrev_b32 v25, 16, v25\nv_or_b32 v25, v25, v26\nv_lshrrev_b32 v24, 16, v24")
        A(f"v_cndmask_b32 v{Q[x]+4}, v{Q[x]+4}, v25, vcc\nv_cndmask_b32 v{Q[x]+5}, v{Q[x]+5}, v24, vcc")
    A(f"s_lshr_b32 s64, s{S_W}, 1\ns_min_u32 s64, s64, 2\ns_mul_i32 s64, s64, {SLOT}\ns_and_b32 s65, s{S_W}, 1\ns_lshl_b32 s65, s65, 10\ns_add_u32 s64, s64, s65\ns_add_u32 s64, s64, {10*PS}")
    A(f"v_add_u32 v24, s64, v{vD}")
    for i in range(4):
        A(f"v_mov_b32 v{28+i}, 0x3f803f80")
    A("s_barrier\nds_write_b128 v24, v[28:31]\ns_waitcnt lgkmcnt(0)\ns_branch L_ATT_MAIN")


def cmul(d, a, b, t):
    A(f"v_pk_mul_f32 {vr(t,2)}, {vr(a,2)}, {vr(b,2)} op_sel:[0,0] op_sel_hi:[1,0]")
    A(f"v_pk_fma_f32 {vr(d,2)}, {vr(a,2)}, {vr(b,2)}, {vr(t,2)} op_sel:[1,1,0] op_sel_hi:[0,1,1] neg_lo:[0,1,0]")


def cfma(d, a, b, c, t):
    A(f"v_pk_fma_f32 {vr(t,2)}, {vr(a,2)}, {vr(b,2)}, {vr(c,2)} op_sel:[0,0,0] op_sel_hi:[1,0,1]")
    A(f"v_pk_fma_f32 {vr(d,2)}, {vr(a,2)}, {vr(b,2)}, {vr(t,2)} op_sel:[1,1,0] op_sel_hi:[0,1,1] neg_lo:[0,1,0]")


def gather4(src, dst):
    if OPT["lscan"]:
        A(f"ds_write_b64 v0, {vr(src,2)}")
        for q in range(4):
            A(f"ds_read_b64 {vr(dst+2*q,2)}, v17 offset:{128*q}")
        A("s_waitcnt lgkmcnt(0)")
        return
    for c in range(2):
        A(f"v_mov_b32 v{dst+c}, v{src+c}\nv_mov_b32 v{dst+2+c}, v{src+c}")
    A("s_nop 0")
    for c in range(2):
        A(f"v_permlane16_swap_b32 v{dst+c}, v{dst+2+c}")
    for c in range(4):
        A(f"v_mov_b32 v{dst+4+c}, v{dst+c}")
    for c in range(4):
        A(f"v_permlane32_swap_b32 v{dst+c}, v{dst+4+c}")


sTC, sNB, sK, sROT, sCT = 41, 42, 43, 37, 36


def hoist():
    A(f"v_and_b32 v26, 15, v1\nv_add_u32 v123, s{sCT}, v26\nv_lshlrev_b32 v123, 3, v123")
    A(f"v_lshrrev_b32 v27, 4, v1\nv_mul_u32_u24 v28, {8*640}, v27\ns_sub_u32 s65, 32, s{sTC}\ns_mul_i32 s65, s65, 640\nv_add3_u32 v124, v123, v28, s65")
    A(f"v_mul_u32_u24 v28, 40960, v27\nv_lshl_add_u32 v125, v16, 4, v28")
    A(f"s_lshl_b32 s65, s{S_W}, 6\nv_add_u32 v28, s65, v1\nv_mul_u32_u24 v29, 6554, v28\nv_lshrrev_b32 v29, 16, v29\nv_mul_u32_u24 v30, 10, v29\nv_sub_u32 v30, v28, v30")
    A(f"v_and_b32 v28, 0x78, v29\nv_and_b32 v31, 1, v29\nv_lshl_add_u32 v28, v31, 2, v28\nv_bfe_u32 v31, v29, 1, 2\nv_add_u32 v28, v28, v31")
    A(f"v_mul_u32_u24 v28, 1280, v28\nv_lshl_add_u32 v28, v30, 4, v28\ns_mul_i32 s65, s{sNB}, 160\nv_add_u32 v117, s65, v28")
    A(f"v_lshrrev_b32 v28, 5, v1\nv_mul_u32_u24 v28, {PL}, v28\nv_and_b32 v29, 31, v1\nv_lshlrev_b32 v29, 4, v29\ns_and_b32 s65, s{S_W}, 1\ns_lshl_b32 s65, s65, 7\nv_xor_b32 v29, s65, v29\nv_add_u32 v119, v28, v29")
    A("v_bfe_u32 v30, v1, 2, 2\nv_and_b32 v31, 3, v1")
    sm, dn = uid("HS"), uid("HD")
    A(f"s_cmp_ge_u32 s{S_W}, 4\ns_cbranch_scc1 {sm}")
    for big in (True, False):
        if big:
            A(f"v_lshrrev_b32 v27, 5, v1\nv_and_b32 v26, 31, v1\ns_lshr_b32 s65, s{S_W}, 1\ns_and_b32 s66, s{S_W}, 1")
            A(f"s_lshl_b32 s67, s65, 5\ns_lshl_b32 s68, s66, 5")
            A(f"s_lshl_b32 s69, s65, 2\nv_bfe_u32 v28, v1, 4, 1\nv_lshlrev_b32 v28, 1, v28\nv_lshrrev_b32 v29, 1, v31\nv_add3_u32 v28, v28, v29, s69")
        else:
            A(f"{sm}:\ns_sub_u32 s65, s{S_W}, 4\ns_lshl_b32 s67, s65, 4\ns_mov_b32 s68, 64")
            A(f"s_lshl_b32 s69, s65, 1\nv_lshrrev_b32 v28, 1, v31\nv_add_u32 v28, s69, v28")
        A(f"v_mul_u32_u24 v28, 1088, v28\nv_lshl_add_u32 v29, v27, 3, v30\nv_lshl_add_u32 v28, v29, 4, v28\nv_and_b32 v29, 1, v31\nv_lshl_add_u32 v112, v29, 3, v28")
        A(f"v_add_u32 v28, s68, v26\nv_lshlrev_b32 v28, 7, v28\nv_add_u32 v28, 8704, v28\nv_bfe_u32 v29, v26, 1, 3\nv_xor_b32 v29, v29, v27\nv_lshl_add_u32 v113, v29, 4, v28")
        A(f"s_lshl_b32 s69, s{sTC}, 6\ns_add_u32 s69, s69, s67\nv_lshl_add_u32 v28, v27, 2, s69\ns_mul_i32 s69, s{sNB}, 80\ns_add_u32 s69, s69, s68\nv_add_u32 v29, s69, v26")
        A("v_mul_u32_u24 v114, 1280, v28\nv_lshl_add_u32 v114, v29, 1, v114\nv_mul_u32_u24 v115, 5120, v28\nv_lshl_add_u32 v115, v29, 2, v115\nv_lshlrev_b32 v126, 1, v29")
        A("v_lshlrev_b32 v28, 1, v30\nv_lshl_add_u32 v28, v27, 3, v28\nv_mul_u32_u24 v28, 160, v28\nv_lshl_add_u32 v28, v31, 3, v28")
        if big:
            A("v_bfe_u32 v29, v1, 4, 1\nv_lshl_add_u32 v28, v29, 5, v28\ns_lshl_b32 s69, s66, 6\nv_add_u32 v116, s69, v28")
            A("v_add_u32 v28, s67, v26\nv_lshlrev_b32 v28, 3, v28\nv_lshlrev_b32 v29, 7, v27\nv_xor_b32 v28, v28, v29\nv_lshl_add_u32 v28, v27, 10, v28\ns_mul_i32 s69, s65, 40960\nv_add_u32 v118, s69, v28")
            A(f"v_lshlrev_b32 v122, 4, v1\nv_mov_b32 v127, 0\nv_mov_b32 v26, 0\nv_mov_b32 v27, 0\nv_mov_b32 v28, 0\ns_branch {dn}")
        else:
            A("v_add_u32 v116, 128, v28")
            A("v_add_u32 v28, s67, v26\nv_lshlrev_b32 v28, 3, v28\nv_and_b32 v29, 1, v27\nv_lshlrev_b32 v29, 7, v29\nv_xor_b32 v28, v28, v29\nv_lshl_add_u32 v118, v27, 10, v28")
            A(f"v_lshrrev_b32 v28, 3, v1\ns_mul_i32 s69, s{sNB}, 80\ns_lshl_b32 s66, s65, 3\ns_add_u32 s69, s69, s66\nv_add_u32 v28, s69, v28\nv_mul_u32_u24 v28, 1280, v28")
            A(f"v_and_b32 v29, 7, v1\nv_xor_b32 v29, v29, v27\ns_and_b32 s69, s65, 1\ns_lshl_b32 s69, s69, 2\nv_xor_b32 v29, s69, v29\nv_lshl_add_u32 v122, v29, 4, v28")
            A("v_xor_b32 v127, 64, v113\nv_add_u32 v26, 40960, v122\nv_add_u32 v27, 81920, v122\nv_add_u32 v28, 40960, v118")
    A(f"{dn}:")


def wo_src(d, sj, t):
    A(f"v_add_u32 v{t}, s{sj}, v1\nv_mul_u32_u24 v{t+1}, 6554, v{t}\nv_lshrrev_b32 v{t+1}, 16, v{t+1}\nv_mul_u32_u24 v{t+2}, 10, v{t+1}\nv_sub_u32 v{t+2}, v{t}, v{t+2}")
    A(f"v_and_b32 v{t}, 0x78, v{t+1}\nv_and_b32 v{t+3}, 1, v{t+1}\nv_lshl_add_u32 v{t}, v{t+3}, 2, v{t}\nv_bfe_u32 v{t+3}, v{t+1}, 1, 2\nv_add_u32 v{t}, v{t}, v{t+3}")
    A(f"v_mul_u32_u24 v{t}, 1280, v{t}\nv_lshl_add_u32 v{t}, v{t+2}, 4, v{t}\ns_mul_i32 s69, s{sNB}, 160\nv_add_u32 v{d}, s69, v{t}")


def role_b():
    A("L_ROLE_B:\ns_cmp_ge_u32 s2, 512\ns_cbranch_scc1 L_END")
    if OPT.get("nob"):
        A("s_endpgm")
    stamp(0)
    A(f"s_load_dwordx16 s[8:23], s[0:1], 0\ns_load_dwordx8 s[24:31], s[0:1], 64\ns_load_dwordx2 s[{P_OUT}:{P_OUT+1}], s[0:1], 96\ns_load_dwordx2 s[{WS}:{WS+1}], s[0:1], 112")
    A(f"v_lshrrev_b32 v2, 6, v0\nv_and_b32 v1, 63, v0\nv_readfirstlane_b32 s{S_W}, v2")
    bhi()
    if OPT["prea"]:
        A(f"s_cmp_ge_u32 s{S_W}, 4\ns_cbranch_scc1 L_NOPREA\ns_and_b32 s64, s{S_W}, 2\ns_lshl_b32 s64, s64, 2\ns_load_dwordx2 s[{R3}:{R3+1}], s[0:1], s64")
        A(f"s_sub_u32 s66, s2, 256\ns_lshl_b32 s66, s66, 1\ns_and_b32 s67, s{S_W}, 1\ns_add_u32 s66, s66, s67\ns_cmp_lt_u32 s{S_W}, 2\ns_cselect_b32 s67, 40, 38\ns_mul_i32 s66, s66, s67\ns_lshl_b32 s66, s66, 7")
        A(f"s_mov_b32 s{R3+2}, 2457600\ns_cmp_lt_u32 s{S_W}, 2\ns_cselect_b32 s{R3+2}, 2621440, s{R3+2}\ns_mov_b32 s{R3+3}, 0x20000\nv_min_u32 v32, 39, v1\nv_lshlrev_b32 v32, 7, v32")
        if OPT["prea"] == 1:
            A(f"s_waitcnt lgkmcnt(0)\nbuffer_load_dword v33, v32, {S(R3)}, s66 offen")
        A(f"s_mov_b32 s3, s66\nL_NOPREA:")
    if OPT["cpre"]:
        cp = uid("CP")
        A(f"s_cmp_lg_u32 s{S_W}, 7\ns_cbranch_scc1 {cp}\ns_getpc_b64 s[64:65]\nL_PC:\ns_sub_u32 s64, s64, L_PC-{NAME}_kernel\ns_subb_u32 s65, s65, 0")
        A("s_bfe_u32 s66, s2, 0x50003\ns_lshl_b32 s66, s66, 11\nv_and_b32 v2, 15, v1\nv_lshlrev_b32 v2, 7, v2\nv_add_u32 v2, s66, v2")
        A(f"v_min_u32 v2, L_END-{NAME}_kernel, v2\nv_mov_b32 v3, s65\nv_add_co_u32 v2, vcc, s64, v2\ns_nop 1\nv_addc_co_u32 v3, vcc, 0, v3, vcc\nglobal_load_dword v4, v[2:3], off\n{cp}:")
    A(f"s_and_b32 s{sTC}, s2, 3\ns_lshl_b32 s{sTC}, s{sTC}, 3\ns_bfe_u32 s64, s2, 0x30003\ns_add_u32 s{sTC}, s{sTC}, s64")
    A(f"s_and_b32 s{sNB}, s2, 4\ns_bfe_u32 s64, s2, 0x20006\ns_add_u32 s{sNB}, s{sNB}, s64")
    A(f"s_mul_i32 s{sROT}, s{sNB}, 3\ns_add_u32 s{sROT}, s{sROT}, s{sTC}")
    A(f"s_mul_i32 s64, s{sROT}, 205\ns_lshr_b32 s64, s64, 11\ns_mul_i32 s64, s64, 10\ns_sub_u32 s{sROT}, s{sROT}, s64")
    if not OPT["brot"]:
        A(f"s_mov_b32 s{sROT}, 0")
    if OPT["pre"]:
        A(f"s_lshl_b32 s64, s{S_W}, 3\ns_add_u32 s64, s64, 48\ns_cmp_eq_u32 s{S_W}, 4\ns_cselect_b32 s64, 16, s64\ns_cmp_gt_u32 s{S_W}, 4\ns_cselect_b32 s64, 24, s64")
        A(f"s_load_dwordx2 s[{R3}:{R3+1}], s[0:1], s64\ns_cselect_b32 s{R3+2}, 2621440, 0\ns_cselect_b32 s65, 39, 24\ns_max_u32 s{R3+2}, s{R3+2}, 819200\ns_mov_b32 s{R3+3}, 0x20000")
        A(f"v_min_u32 v32, s65, v1\nv_lshlrev_b32 v32, 7, v32\ns_sub_u32 s66, s2, 256\ns_mul_i32 s38, s66, 3200\ns_mul_i32 s66, s66, 10240\ns_sub_u32 s67, s{S_W}, 5\ns_mul_i32 s67, s67, 5120\ns_add_u32 s66, s66, s67")
        A(f"s_cmp_gt_u32 s{S_W}, 4\ns_cselect_b32 s38, s66, s38\ns_cmp_eq_u32 s{S_W}, 7\ns_cselect_b32 s39, {OOB}, 0\nv_or_b32 v32, s39, v32")
    A(f"s_mov_b32 s{WS+2}, {WS_USED}\ns_mov_b32 s{WS+3}, 0x20000\ns_waitcnt lgkmcnt(0)\ns_load_dword s{S_E}, {WSP}, {EPOCH}")
    if OPT["pre"] == 1:
        A(f"buffer_load_dword v33, v32, {S(R3)}, s38 offen")
    MU, CF, MU16, PW, LAM, LAM8 = 2, 4, 6, 8, 10, 12
    A(f"s_min_u32 s{sCT}, s{S_W}, 4\ns_lshl_b32 s{sCT}, s{sCT}, 4\ns_mul_i32 s64, s{sNB}, 80\ns_add_u32 s64, s64, s{sCT}")
    A(f"v_and_b32 v16, 15, v1\nv_add_u32 v16, s64, v16\nv_lshlrev_b32 v21, 1, v16")
    srd(R0, P_LRE, 1280); srd(R1, P_LIM, 1280); srd(R2, P_LDT, 1280)
    A(f"buffer_load_ushort v22, v21, {S(R0)}, 0 offen\nbuffer_load_ushort v23, v21, {S(R1)}, 0 offen\nbuffer_load_ushort v24, v21, {S(R2)}, 0 offen")
    def prea_go(n):
        if OPT["prea"] == n:
            A(f"s_cmp_ge_u32 s{S_W}, 4\ns_cbranch_scc1 L_NOPREB\nbuffer_load_dword v33, v32, {S(R3)}, s3 offen\nL_NOPREB:")

    if OPT["prea"] == 4:
        A("s_waitcnt lgkmcnt(0)")
        prea_go(4)
    prea_go(2)
    A("s_waitcnt vmcnt(0) lgkmcnt(0)")
    prea_go(3)
    epoch_fix()
    LOG2E = f2u(math.log2(math.e))
    A("v_lshlrev_b32 v22, 16, v22\nv_lshlrev_b32 v23, 16, v23\nv_lshlrev_b32 v24, 16, v24")
    A(f"v_mul_f32 v24, {LOG2E}, v24\nv_exp_f32 v24, v24\ns_nop 0\nv_cvt_pk_bf16_f32 v24, v24, v24\nv_lshlrev_b32 v24, 16, v24")
    A(f"v_mul_f32 v25, v24, v22\nv_mul_f32 v26, v24, v23\nv_mul_f32 v25, {LOG2E}, v25\nv_exp_f32 v25, v25")
    A(f"v_mul_f32 v26, 0.15915494, v26\nv_fract_f32 v26, v26\nv_cos_f32 v27, v26\nv_sin_f32 v28, v26\ns_nop 0")
    A(f"v_mul_f32 v{MU}, v25, v27\nv_mul_f32 v28, v25, v28\nv_sub_f32 v{MU+1}, 0, v28")
    A(f"v_add_f32 v27, -1.0, v{MU}")
    A("v_mul_f32 v25, v22, v22\nv_fmac_f32 v25, v23, v23\nv_rcp_f32 v25, v25")
    A("v_mul_f32 v26, v27, v22\nv_fmac_f32 v26, v28, v23\nv_mul_f32 v29, v28, v22\nv_fma_f32 v29, -v27, v23, v29")
    A(f"v_add_f32 v25, v25, v25\nv_mul_f32 v{CF}, v26, v25\nv_mul_f32 v29, v29, v25\nv_sub_f32 v{CF+1}, 0, v29")
    cmul(MU16, MU, MU, 22)
    for _ in range(3):
        cmul(MU16, MU16, MU16, 22)
    cmul(24, MU16, MU16, 22)
    cmul(26, 24, MU16, 22)
    cmul(LAM, 24, 24, 22)
    cmul(LAM8, LAM, LAM, 22)
    cmul(LAM8, LAM8, LAM8, 22)
    cmul(LAM8, LAM8, LAM8, 22)
    A("v_lshrrev_b32 v28, 4, v1")
    A(f"v_cmp_eq_u32 s[96:97], 1, v28\nv_cmp_eq_u32 s[98:99], 2, v28\nv_cmp_eq_u32 s[100:101], 3, v28")
    A(f"v_mov_b32 v{PW}, 1.0\nv_mov_b32 v{PW+1}, 0")
    for src, m in ((MU16, 96), (24, 98), (26, 100)):
        for c in range(2):
            A(f"v_cndmask_b32 v{PW+c}, v{PW+c}, v{src+c}, s[{m}:{m+1}]")
    if OPT["pre"] == 3:
        A(f"buffer_load_dword v33, v32, {S(R3)}, s38 offen")
    if OPT["pre"] == 2:
        A(f"s_cmp_lg_u32 s{S_W}, 0\ns_cbranch_scc1 L_NOH0\ns_mov_b32 s39, s64\ns_sub_u32 s66, s2, 256\ns_lshl_b32 s66, s66, 7\ns_add_u32 s66, s66, {F0C}")
        spoll([(8, 1, 0)], 66)
        A(f"s_mov_b32 s64, s39\nL_NOH0:\ns_barrier\nbuffer_load_dword v33, v32, {S(R3)}, s38 offen")
    vS0, vRA, vRB = 14, 18, 22
    srd(R0, P_BX, 2621440); srd(R1, P_BRE, 819200); srd(R2, P_BIM, 819200)
    hoist()
    A(f"s_lshl_b32 s{sK}, s{sROT}, 7")
    A("v_lshrrev_b32 v30, 4, v1\nv_and_b32 v31, 7, v1\nv_xor_b32 v31, v31, v30\nv_lshlrev_b32 v31, 4, v31")
    A(f"v_and_b32 v30, 31, v1\nv_lshlrev_b32 v30, 7, v30\nv_lshrrev_b32 v17, 5, v1\nv_bfe_u32 v29, v1, 1, 3\nv_xor_b32 v29, v17, v29\nv_lshl_add_u32 v{vRA}, v29, 4, v30")

    def scan_addr():
        A(f"s_mul_i32 s66, s{sCT}, 576\ns_add_u32 s66, s66, 20480\ns_lshl_b32 s67, s{sCT}, 5\ns_add_u32 s67, s67, 66560")
        A(f"v_and_b32 v0, 15, v1\nv_lshl_add_u32 v29, v17, 5, v0\nv_mul_u32_u24 v29, 144, v29\nv_bfe_u32 v30, v1, 4, 1\nv_lshl_add_u32 v29, v30, 2, v29\nv_add_u32 v29, s66, v29\nv_add_u32 v30, 2304, v29")
        A(f"v_mul_u32_u24 v31, 144, v1\nv_add_u32 v31, s66, v31\nv_lshl_add_u32 v17, v0, 3, s67\nv_lshl_add_u32 v0, v1, 3, s67")

    def early_addr():
        if not OPT["wearly"]:
            return
        A(f"s_cmp_eq_u32 s{S_W}, 6\ns_cselect_b32 s34, 1, 4\ns_cselect_b32 s35, 2, 0\ns_cmp_eq_u32 s{S_W}, 7\ns_cselect_b32 s34, 3, s34")
        for k in range(2):
            A(f"s_lshl_b32 s68, s{34+k}, 6")
            wo_src(48 + k, 68, 50)
            A(f"s_lshl_b32 s{34+k}, s{34+k}, 10")

    def touch2():
        t1, t2 = uid("U1"), uid("U2")
        if OPT["wearly"]:
            srd(R1, P_WO, 819200)
            for k in range(2):
                if k:
                    A(f"s_cmp_eq_u32 s{S_W}, 7\ns_cbranch_scc1 {t1}")
                for m in range(16):
                    A(f"s_add_u32 m0, s{34+k}, {5120*m}\ns_mov_b32 s64, {32*m*1280}")
                    dma(48 + k, R1, 64)
        else:
            A(f"s_cmp_eq_u32 s{S_W}, 7\ns_cbranch_scc1 {t1}")
        if OPT["c1"] >= 0:
            A(f"{t1}:")
            return
        A(f"s_and_b32 s66, s{sTC}, 7\ns_mul_i32 s39, s66, 10\ns_mul_i32 s68, s{sNB}, 80\ns_add_u32 s39, s39, s68\ns_mul_i32 s39, s39, 1280")
        A(f"s_cmp_eq_u32 s{S_W}, 5\ns_cselect_b32 s{R1}, s{P_CRE}, s{P_CIM}\ns_cselect_b32 s{R1+1}, s{P_CRE+1}, s{P_CIM+1}")
        A(f"v_lshlrev_b32 v66, 7, v1\nv_min_u32 v67, 35, v1\nv_lshlrev_b32 v67, 7, v67\nv_add_u32 v67, 8192, v67")
        A(f"buffer_load_dword v64, v66, {S(R1)}, s39 offen\nbuffer_load_dword v65, v67, {S(R1)}, s39 offen\ns_branch {t2}\n{t1}:")
        srd(R1, P_WO, 819200)
        A(f"s_and_b32 s66, s{sTC}, 7\ns_mul_i32 s66, s66, {16*1280}\ns_mul_i32 s67, s{sNB}, 160\ns_add_u32 s66, s66, s67\ns_add_u32 s66, s66, {512*1280}")
        A(f"v_bfe_u32 v66, v1, 1, 4\nv_mul_u32_u24 v66, 1280, v66\nv_and_b32 v67, 1, v1\nv_mul_u32_u24 v67, 156, v67\nv_add_u32 v66, v66, v67")
        A(f"buffer_load_dword v64, v66, {S(R1)}, s66 offen\n{t2}:")

    GK = OPT["gk"]

    def more(Sx):
        return Sx + 2 < 10 and not (GK and Sx < GK <= Sx + 2)

    def inflight(Sx):
        return 0 if Sx == 9 or (GK and Sx == GK - 1) else 1

    def gate(Sx, issue, poller):
        if GK and Sx == GK:
            if poller:
                A(f"s_cmp_lg_u32 s{S_W}, 4\ns_cbranch_scc1 L_NOGATE\ns_sub_u32 s66, s2, 256\ns_lshl_b32 s66, s66, 7\ns_add_u32 s66, s66, {F0}")
                spoll([(8, 1, 0)], 66)
                A("L_NOGATE:")
            A("s_barrier")
            issue(GK); issue(GK + 1)

    def advK():
        A(f"s_add_u32 s{sK}, s{sK}, 128\ns_cmp_eq_u32 s{sK}, 1280\ns_cselect_b32 s{sK}, 0, s{sK}")

    ACC, BF, AF = 32, 64, 80
    SH = 12288
    A(f"s_cmp_ge_u32 s{S_W}, 4\ns_cbranch_scc1 L_G1_AUX")
    A(f"v_lshrrev_b32 v30, 3, v1\nv_add_u32 v30, s64, v30\nv_mul_u32_u24 v30, 1280, v30\nv_add_u32 v{vS0}, v30, v31")
    A(f"v_xor_b32 v{vS0+1}, 64, v{vS0}\nv_add_u32 v{vS0+1}, 10240, v{vS0+1}")
    A(f"s_lshl_b32 s38, s{S_W}, 13\ns_add_u32 s38, s38, {3*SH}")
    for u in range(1, 4):
        A(f"v_xor_b32 v{vRA+u}, {32*u}, v{vRA}")
    for u in range(4):
        A(f"v_add_u32 v{vRB+u}, s38, v{vRA+u}")
    scan_addr()
    A(f"s_cmp_lg_u32 s{S_W}, 0\ns_cbranch_scc1 L_NOHINT\ns_sub_u32 s66, s2, 256\ns_lshl_b32 s66, s66, 7\ns_add_u32 s66, s66, {F0C if OPT['gk'] else F0}")
    spoll([(8, 1, 0)], 66)
    A("L_NOHINT:\ns_waitcnt vmcnt(0)\ns_barrier")
    stamp(1)
    A(f"s_setprio {3 if OPT['mlo'] else OPT['g1p']}\n;MLO_ON")

    def dmaB(Sx):
        for q in range(4):
            A(f"s_add_u32 m0, s38, {(Sx % 2) * 4096 + q * 1024}\ns_nop 0")
            dma(vS0 + (q & 1), R1 if q < 2 else R2, sK)
        advK()

    def g1_mm(Sx, u, tts=(0, 1)):
        for tt in tts:
            c = "0" if (Sx == 0 and u == 0) else vr(ACC + 16 * tt, 16)
            A(f"{MF32} {vr(ACC+16*tt,16)}, {vr(AF+8*u+4*tt,4)}, {vr(BF+4*u,4)}, {c}")

    dmaB(0); dmaB(1)
    for Sx in range(10):
        fst(1, Sx)
        gate(Sx, dmaB, False)
        A(f"s_waitcnt vmcnt({4 * inflight(Sx)})")
        for u in range(3):
            A(f"ds_read_b128 {vr(BF+4*u,4)}, v{vRB+u} offset:{(Sx % 2) * 4096}")
        A("s_barrier")
        if Sx:
            g1_mm(Sx - 1, 3, (0,))
        for u in range(3):
            for tt in range(2):
                A(f"ds_read_b128 {vr(AF+8*u+4*tt,4)}, v{vRA+u} offset:{(Sx % 3) * SH + 4096*tt}")
        if Sx:
            g1_mm(Sx - 1, 3, (1,))
        A(f"ds_read_b128 {vr(BF+12,4)}, v{vRB+3} offset:{(Sx % 2) * 4096}")
        for tt in range(2):
            A(f"ds_read_b128 {vr(AF+24+4*tt,4)}, v{vRA+3} offset:{(Sx % 3) * SH + 4096*tt}")
        A("s_waitcnt lgkmcnt(7)")
        g1_mm(Sx, 0)
        A("s_waitcnt lgkmcnt(5)")
        g1_mm(Sx, 1)
        A("s_waitcnt lgkmcnt(3)")
        g1_mm(Sx, 2)
        A("s_waitcnt lgkmcnt(0)")
        if more(Sx):
            dmaB(Sx + 2)
    g1_mm(9, 3)
    A(";MLO_OFF\ns_barrier\ns_nop 10\ns_branch L_SCAN")

    A("L_G1_AUX:")
    A(f"s_cmp_eq_u32 s{S_W}, 4\ns_cbranch_scc1 L_G1_LD\ns_cmp_eq_u32 s{S_W}, 7\ns_cbranch_scc1 L_G1_LD")
    A(f"v_lshrrev_b32 v30, 3, v1\nv_add_u32 v30, s64, v30\nv_mul_u32_u24 v30, 1280, v30\nv_add_u32 v{vS0}, v30, v31")
    A(f"v_xor_b32 v{vS0+1}, 64, v{vS0}\nv_add_u32 v{vS0+1}, 10240, v{vS0+1}")
    A(f"s_cmp_eq_u32 s{S_W}, 5\ns_cselect_b32 s{R3}, s{R1}, s{R2}\ns_cselect_b32 s{R3+1}, s{R1+1}, s{R2+1}\ns_mov_b32 s{R3+2}, 819200\ns_mov_b32 s{R3+3}, 0x20000")
    A(f"s_sub_u32 s38, s{S_W}, 5\ns_lshl_b32 s66, s38, 12\ns_lshl_b32 s38, s38, 11")
    for u in range(1, 4):
        A(f"v_xor_b32 v{vRA+u}, {32*u}, v{vRA}")
    for u in range(4):
        A(f"v_add_u32 v{vRB+u}, s66, v{vRA+u}")
    scan_addr()
    early_addr()
    A("s_waitcnt vmcnt(0)\ns_barrier")
    A(f"s_setprio {3 if OPT['mlo'] else OPT['g1p']}\n;MLO_ON")

    def dmaB4(Sx):
        for q in range(2):
            A(f"s_add_u32 m0, s38, {(Sx % 3) * SH + 8192 + q * 1024}\ns_nop 0")
            dma(vS0 + q, R3, sK)
        advK()

    dmaB4(0); dmaB4(1)
    for Sx in range(10):
        gate(Sx, dmaB4, False)
        A(f"s_waitcnt vmcnt({2 * inflight(Sx)})\ns_barrier")
        for u in range(4):
            A(f"ds_read_b128 {vr(BF+4*u,4)}, v{vRA+u} offset:{(Sx % 3) * SH + 8192}")
            A(f"ds_read_b128 {vr(AF+4*u,4)}, v{vRB+u} offset:{(Sx % 3) * SH}")
        for u in range(4):
            A(f"s_waitcnt lgkmcnt({6-2*u})")
            c = "0" if (Sx == 0 and u == 0) else vr(ACC, 16)
            A(f"{MF32} {vr(ACC,16)}, {vr(AF+4*u,4)}, {vr(BF+4*u,4)}, {c}")
        if more(Sx):
            dmaB4(Sx + 2)
    A(";MLO_OFF")
    if OPT["lscan"]:
        A(f"s_cmp_eq_u32 s{S_W}, 5\ns_cbranch_scc1 L_G1_RED\ns_barrier\ns_nop 8")
        for j in range(0, 16, 4):
            for p in range(2):
                A(f"ds_write2_b32 v{29+p}, v{ACC+j+p}, v{ACC+j+p+2} offset0:{16 + j} offset1:{18 + j}")
        A("s_waitcnt lgkmcnt(0)\ns_barrier")
        bhi()
        touch2()
        A("s_branch L_G1_AUX2")
    else:
        bhi()
        A(f"s_lshl_b32 s66, s{S_W}, 12\ns_add_u32 s66, s66, {69632 - 5*4096}\nv_lshlrev_b32 v30, 4, v1\nv_add_u32 v30, s66, v30\ns_nop 7")
        for g in range(4):
            A(f"ds_write_b128 v30, {vr(ACC+4*g,4)} offset:{1024*g}")
        A("s_waitcnt lgkmcnt(0)\ns_branch L_G1_AUXEND")

    A("L_G1_LD:")
    A(f"s_cmp_eq_u32 s{S_W}, 7\ns_cselect_b32 s38, 1, 0")
    A(f"v_bfe_u32 v29, v1, 3, 1\nv_lshl_add_u32 v30, v17, 1, v29\nv_lshlrev_b32 v30, 4, v30\nv_bfe_u32 v29, v1, 4, 1\nv_add_u32 v30, v30, v29")
    A(f"s_lshl_b32 s66, s{sTC}, 6\ns_lshl_b32 s67, s38, 3\ns_add_u32 s66, s66, s67\nv_add_u32 v30, s66, v30\nv_mul_u32_u24 v30, 1280, v30\nv_add_u32 v{vS0}, v30, v31")
    A(f"v_xor_b32 v{vS0+1}, 64, v{vS0}\nv_add_u32 v{vS0+1}, 2560, v{vS0+1}\nv_add_u32 v22, 5120, v{vS0}\nv_add_u32 v23, 5120, v{vS0+1}")
    early_addr()
    if OPT["t1"]:
        t7, td = uid("T7"), uid("TD")
        A(f"v_lshrrev_b32 v52, 1, v1\nv_mul_u32_u24 v52, 1280, v52\nv_and_b32 v53, 1, v1\nv_lshl_add_u32 v52, v53, 7, v52\ns_cmp_eq_u32 s{S_W}, 7\ns_cbranch_scc1 {t7}")
        A(f"s_and_b32 s66, s{sNB}, 3\ns_lshl_b32 s66, s66, 4\ns_lshl_b32 s67, s{sTC}, 6\ns_add_u32 s66, s66, s67\ns_mul_i32 s66, s66, 1280\ns_mov_b32 exec_hi, 0")
        A(f"buffer_load_dword v54, v52, {S(R0)}, s66 offen\ns_branch {td}\n{t7}:")
        A(f"s_and_b32 s66, s{sTC}, 7\ns_mul_i32 s66, s66, 10\ns_mul_i32 s67, s{sNB}, 80\ns_add_u32 s66, s66, s67\ns_mul_i32 s66, s66, 1280\ns_mov_b64 exec, 0xfffff")
        A(f"buffer_load_dword v54, v52, {S(R1)}, s66 offen\nbuffer_load_dword v55, v52, {S(R2)}, s66 offen\n{td}:\ns_mov_b64 exec, -1")
    A("s_lshl_b32 s38, s38, 12\ns_waitcnt vmcnt(0)\ns_barrier")

    def dmaX(Sx):
        for q in range(4):
            A(f"s_add_u32 m0, s38, {(Sx % 3) * SH + q * 1024}\ns_nop 0")
            dma([vS0, vS0 + 1, 22, 23][q], R0, sK)
        advK()

    dmaX(0); dmaX(1)
    for Sx in range(10):
        gate(Sx, dmaX, True)
        C1 = OPT["c1"]
        A(f"s_waitcnt vmcnt({4 * inflight(Sx) + (4 if C1 >= 0 and Sx in (C1 + 1, C1 + 2) else 0)})\ns_barrier")
        if more(Sx):
            dmaX(Sx + 2)
        if Sx == C1:
            t1, t2 = uid("W1"), uid("W2")
            A(f"s_and_b32 s66, s{sTC}, 7\ns_cmp_eq_u32 s{S_W}, 7\ns_cbranch_scc1 {t1}")
            A(f"s_mul_i32 s66, s66, 10\ns_mul_i32 s68, s{sNB}, 80\ns_add_u32 s66, s66, s68\ns_mul_i32 s66, s66, 1280")
            A(f"v_lshlrev_b32 v66, 7, v1\nv_min_u32 v67, 35, v1\nv_lshlrev_b32 v67, 7, v67\nv_add_u32 v67, 8192, v67")
            for k, p in enumerate((P_CRE, P_CIM)):
                srd(R3, p, 819200)
                A(f"buffer_load_dword v{60+2*k}, v66, {S(R3)}, s66 offen\nbuffer_load_dword v{61+2*k}, v67, {S(R3)}, s66 offen")
            A(f"s_branch {t2}\n{t1}:")
            srd(R3, P_WO, 819200)
            A(f"s_mul_i32 s66, s66, {80*1280}\ns_mul_i32 s67, s{sNB}, 160\ns_add_u32 s66, s66, s67")
            A(f"v_lshrrev_b32 v66, 1, v1\nv_min_u32 v66, 19, v66\nv_mul_u32_u24 v66, 1280, v66\nv_and_b32 v67, 1, v1\nv_mul_u32_u24 v67, 156, v67\nv_add_u32 v66, v66, v67")
            for k in range(4):
                A(f"buffer_load_dword v{60+k}, v66, {S(R3)}, s66 offen")
                if k < 3:
                    A(f"s_add_u32 s66, s66, {20*1280}")
            A(f"{t2}:")
    A(f"v_lshlrev_b32 v30, 4, v1\nv_add_u32 v30, 69632, v30\ns_cmp_eq_u32 s{S_W}, 4\ns_cbranch_scc1 L_G1_RED")
    A("L_G1_AUXEND:")
    A("s_barrier\ns_barrier")
    A(f"s_cmp_lg_u32 s{S_W}, 6\ns_cbranch_scc1 L_F2POLL")
    touch2()
    A("s_barrier\ns_waitcnt vmcnt(0)\ns_branch L_B_H\nL_F2POLL:")
    A(f"s_cmp_eq_u32 s{S_W}, 7\ns_cselect_b32 s66, 16, 0\ns_sub_i32 s67, s{sTC}, s66\ns_max_i32 s67, s67, 0\ns_min_i32 s67, s67, 16\ns_lshr_b32 s67, 0xffff0000, s67\ns_and_b32 s67, s67, 0xffff")
    A(f"s_lshl_b32 s66, s66, 3\ns_lshl_b32 s65, s{sNB}, 5\ns_add_u32 s65, s65, s{sTC}\ns_lshl_b32 s65, s65, 8\ns_add_u32 s66, s66, s65\ns_add_u32 s66, s66, {PV2}")
    spoll([(68, 8, 0), (84, 8, 64)], 66, need=67)
    A("s_barrier")
    touch2()
    A("s_waitcnt vmcnt(0)\ns_branch L_B_H")
    A("L_G1_RED:\ns_barrier")
    if OPT["lscan"]:
        A("s_nop 8")
        for j in range(0, 16, 4):
            for p in range(2):
                A(f"ds_write2_b32 v{29+p}, v{ACC+j+p}, v{ACC+j+p+2} offset0:{j} offset1:{2 + j}")
        A("s_branch L_SCAN2")
    else:
        for g in range(8):
            A(f"ds_read_b128 {vr(ACC+4*g,4)}, v30 offset:{1024*g}")
        A("s_waitcnt lgkmcnt(0)")
    A("L_SCAN:")
    stamp(2)
    if OPT["lscan"]:
        for tt in range(2):
            for j in range(0, 16, 4):
                for p in range(2):
                    A(f"ds_write2_b32 v{29+p}, v{ACC+16*tt+j+p}, v{ACC+16*tt+j+p+2} offset0:{16*tt + j} offset1:{16*tt + 2 + j}")
        A("L_SCAN2:\ns_waitcnt lgkmcnt(0)\ns_barrier")
        for i in range(8):
            A(f"ds_read_b128 {vr(ACC+4*i,4)}, v31 offset:{16*i}")
        bhi()
    else:
        bhi()
        for i in range(16):
            A(f"v_permlane16_swap_b32 v{ACC+2*i}, v{ACC+2*i+1}")
    for i in range(16):
        u = ACC + 2 * i
        t = 64 + 2 * (i & 1)
        if OPT["lscan"] and i % 2 == 0:
            A(f"s_waitcnt lgkmcnt({7 - i // 2})")
        A(f"v_pk_mul_f32 {vr(t,2)}, {vr(u,2)}, {vr(CF,2)} op_sel:[0,0] op_sel_hi:[0,1]")
        A(f"v_pk_fma_f32 {vr(u,2)}, {vr(u,2)}, {vr(CF,2)}, {vr(t,2)} op_sel:[1,1,0] op_sel_hi:[1,0,1] neg_hi:[0,1,0]")
    G, T = 68, 70
    cfma(G, ACC, MU, ACC + 2, T)
    for i in range(2, 16):
        cfma(G, G, MU, ACC + 2 * i, T)
    E4 = 72
    A(f"s_mul_i32 s64, s{sNB}, 20480\ns_add_u32 s64, s64, {EB}\ns_add_u32 s{R3}, s{WS}, s64\ns_addc_u32 s{R3+1}, s{WS+1}, 0\ns_mov_b32 s{R3+2}, 20480\ns_mov_b32 s{R3+3}, 0x20000")
    gather4(G, E4)
    PRE = 80
    cfma(82, E4, MU16, E4 + 2, T)
    cfma(84, 82, MU16, E4 + 4, T)
    cfma(86, 84, MU16, E4 + 6, T)
    A(f"s_sub_u32 s64, 31, s{sTC}\ns_mul_i32 s64, s64, 640\ns_mov_b64 exec, 0xffff")
    A(f"buffer_store_dwordx2 v[86:87], v123, {S(R3)}, s64 offen sc1\ns_mov_b64 exec, -1")
    A(f"v_mov_b32 v{PRE}, 0\nv_mov_b32 v{PRE+1}, 0")
    for src, m in ((E4, 96), (82, 98), (84, 100)):
        for c in range(2):
            A(f"v_cndmask_b32 v{PRE+c}, v{PRE+c}, v{src+c}, s[{m}:{m+1}]")
    A(f"s_lshl_b32 s68, s{sNB}, 13\ns_lshl_b32 s69, s{sTC}, 3\ns_add_u32 s68, s68, s69\ns_add_u32 s68, s68, {PV2}")
    A(f"v_lshlrev_b32 v88, 8, v1\nv_mov_b32 v90, s{S_E}\nv_mov_b32 v91, s{S_E+1}\ns_lshl_b32 s69, -2, s{sTC}")
    A("s_waitcnt vmcnt(0)\ns_barrier")
    A(f"s_cmp_lg_u32 s{S_W}, 0\ns_cbranch_scc1 L_NOP2\ns_cmp_eq_u32 s69, 0\ns_cbranch_scc1 L_NOP2\ns_mov_b32 exec_lo, s69\ns_mov_b32 exec_hi, 0")
    A(f"buffer_store_dwordx2 v[90:91], v88, {S(WS)}, s68 offen sc1\ns_mov_b64 exec, -1\nL_NOP2:")
    stamp(3)
    A(f"s_cmp_ge_u32 s{S_W}, 4\ns_cbranch_scc1 L_NOSKIP")
    srd(R1, P_DSK, 1280)
    A(f"buffer_load_ushort v14, v126, {S(R1)}, 0 offen")
    for i in range(16):
        A(f"s_mov_b32 s64, {(8 * (i >> 2) + (i & 3))*1280}\nbuffer_load_ushort v{16+i}, v114, {S(R0)}, s64 offen")
    A("L_NOSKIP:\ns_movk_i32 s64, 4480\ns_barrier")
    stamp(4)
    EL = 96
    for u in range(8):
        d = 7 - u
        A(f"buffer_load_dwordx2 {vr(EL+2*u,2)}, v124, {S(R3)}, {'s64' if d == 7 else '0'} offen offset:{0 if d == 7 else 640*d} sc1")
    A("s_waitcnt vmcnt(6)")
    cfma(G, EL, LAM, EL + 2, T)
    for u in range(2, 8):
        A(f"s_waitcnt vmcnt({7-u})")
        cfma(G, G, LAM, EL + 2 * u, T)
    gather4(G, E4)
    cfma(G, E4 + 6, LAM8, E4 + 4, T)
    cfma(G, G, LAM8, E4 + 2, T)
    cfma(G, G, LAM8, E4, T)
    cfma(G, G, PW, PRE, T)
    PK = 72
    A(f"s_mul_i32 s64, s{sTC}, 163840\ns_add_u32 s64, s64, {HB}")
    for tt in range(2):
        for i in range(8 * tt, 8 * tt + 8):
            cfma(ACC + 2 * i, G if i == 0 else ACC + 2 * i - 2, MU, ACC + 2 * i, T)
        for c in range(2):
            d = PK + 8 * tt + 4 * c
            for m in range(4):
                a = ACC + 16 * tt + 4 * m + c
                A(f"v_cvt_pk_bf16_f32 v{d+m}, v{a}, v{a+2}")
            A(f"s_add_u32 s65, s64, {tt*20480 + c*10240}")
            A(f"buffer_store_dwordx4 {vr(d,4)}, v125, {S(WS)}, s65 offen sc1")
    A("s_waitcnt vmcnt(0)")
    A("L_B_H:")
    bhi()
    A("s_barrier")
    A(f"s_cmp_lg_u32 s{S_W}, 0\ns_cbranch_scc1 L_NOP3\ns_lshl_b32 s68, s{sTC}, 10\ns_lshl_b32 s69, s{sNB}, 3\ns_add_u32 s68, s68, s69\ns_add_u32 s68, s68, {PV3}")
    A(f"v_lshlrev_b32 v88, 7, v1\ns_mov_b64 exec, 0xff\nbuffer_store_dwordx2 v[90:91], v88, {S(WS)}, s68 offen sc1\ns_mov_b64 exec, -1\nL_NOP3:")
    stamp(5)
    A(f"s_cmp_ge_u32 s{S_W}, 4\ns_cbranch_scc1 L_B_SMALL")
    tail(True)
    A("L_B_SMALL:")
    tail(False)


def tail(big):
    nacc = 16 if big else 4
    ACC = 16 if big else 12
    WF = 48
    MF = MF32 if big else MF16
    rows = [8 * (i >> 2) + (i & 3) for i in range(nacc)]
    fst(9, 0)
    if big:
        vA, vB, vS, vOut, vO, vOs, vW, vWs = 2, 3, 4, 5, 6, 7, 8, 9
        mv = ((8, 116), (2, 112), (3, 113), (4, 122), (5, 115), (6, 118), (9, 117))
        A(f"s_lshr_b32 s64, s{S_W}, 1\ns_mul_i32 s64, s64, 51200\nv_add_u32 v10, s64, v116")
    else:
        vA, vB, vS, vOut, vO, vOs, vW, vWs = 2, 3, 9, 5, 6, 10, 16, 17
        mv = ((16, 116), (2, 112), (3, 113), (4, 127), (5, 115), (6, 118), (7, 28), (9, 122), (10, 119), (8, 26), (11, 27), (17, 117))
        srd(R3, P_DSK, 1280)
        A(f"buffer_load_ushort v0, v126, {S(R3)}, 0 offen")
        for i in range(nacc):
            A(f"s_mov_b32 s64, {rows[i]*1280}\nbuffer_load_ushort v{32+i}, v114, {S(R0)}, s64 offen")
        A(f"s_sub_u32 s95, s{S_W}, 4\nv_add_u32 v18, 40960, v116")
    for d, sreg in mv:
        A(f"v_mov_b32 v{d}, v{sreg}")
    fst(9, 1)
    if big:
        for u in range(20):
            if u == 12:
                A(f"s_cmp_ge_u32 s{S_W}, 2\ns_cbranch_scc1 L_WR0")
            for j in range(2):
                A(f"ds_read_b64_tr_b16 {vr(WF+4*u+2*j,2)}, v10 offset:{2560*u + 160*j}")
        A("L_WR0:")
        for i in range(nacc):
            A(f"v_dot2_f32_bf16 v{ACC+i}, v{ACC+i}, v14, 0")
        A(f"s_lshl_b32 s45, s{sTC}, 3\ns_add_u32 s45, s45, s{sNB}\ns_lshl_b32 s45, s45, 7\ns_add_u32 s45, s45, {PV3}")
    else:
        for U in range(16):
            for j in range(2):
                A(f"ds_read_b64_tr_b16 {vr(WF+4*U+2*j,2)}, v{vW if U < 8 else 18} offset:{5120*(U & 7) + 160*j}")
    srd(R1, P_WO, 819200)
    A(f"s_lshl_b32 s46, s{S_W}, 10\ns_waitcnt lgkmcnt(0)\ns_barrier")
    fst(9, 2)
    if big:
        A(f"s_load_dwordx16 s[8:23], {WSP}, s45 glc")
    sk = uid("WD")
    if not big:
        A(f"s_cmp_ge_u32 s{S_W}, 5\ns_cbranch_scc1 {sk}")
    for m in range(4):
        A(f"s_add_u32 m0, s46, {5120*m}\ns_mov_b32 s64, {(512 + 32*m) * 1280}")
        dma(vWs, R1, 64)
    A(f"{sk}:")
    fst(9, 3)
    if not big:
        A("s_waitcnt vmcnt(0)")
        for i in range(nacc):
            A(f"v_dot2_f32_bf16 v{ACC+i}, v{32+i}, v0, 0")

    def wo_reads1():
        if big:
            A(f"s_cmp_lt_u32 s{S_W}, 2\ns_cbranch_scc1 L_WR1")
            for u in range(8):
                for j in range(2):
                    A(f"ds_read_b64_tr_b16 {vr(WF+4*(12+u)+2*j,2)}, v{vW} offset:{2560*u + 160*j}")
            A("L_WR1:")
        else:
            for U in range(4):
                for j in range(2):
                    A(f"ds_read_b64_tr_b16 {vr(WF+4*(16+U)+2*j,2)}, v{vW} offset:{5120*U + 160*j}")
        A("s_waitcnt lgkmcnt(0)\ns_barrier")

    SL = 18944
    vSs = [vS, 8, 11]

    def slot(Sx):
        return ((Sx + 3) % 4) * SL

    def g2_dma(Sx):
        sb = slot(Sx)
        if big:
            for i in range(2):
                A(f"s_add_u32 m0, s39, {sb + 1088*i}\ns_add_u32 s64, s44, s{sK}")
                if i or Sx >= 10:
                    A(f"s_add_u32 s64, s64, {20480*i + (10240 if Sx >= 10 else 0)}")
                dma(vS, WS, 64, "sc1")
            A(f"s_add_u32 s{sK}, s{sK}, 1024\ns_cmp_eq_u32 s{sK}, 10240\ns_cselect_b32 s{sK}, 0, s{sK}")
        else:
            for m in range(3):
                if m == 2:
                    sk = uid("SD")
                    A(f"s_cmp_ge_u32 s95, 2\ns_cbranch_scc1 {sk}")
                A(f"s_add_u32 m0, s39, {sb + 8704 + 4096*m}\ns_nop 0")
                dma(vSs[m], R1 if Sx < 10 else R2, sK)
            A(f"{sk}:")
            A(f"s_add_u32 s{sK}, s{sK}, 128\ns_cmp_eq_u32 s{sK}, 1280\ns_cselect_b32 s{sK}, 0, s{sK}")

    srd(R1, P_CRE, 819200); srd(R2, P_CIM, 819200)
    if big:
        A(f"s_mul_i32 s44, s{sTC}, 163840\ns_mul_i32 s64, s{S_W}, 40960\ns_add_u32 s44, s44, s64\ns_add_u32 s44, s44, {HB}")
        A(f"v_xor_b32 v0, 32, v{vB}\nv_xor_b32 v1, 64, v{vB}\nv_xor_b32 v7, 96, v{vB}")
        A(f"s_mul_i32 s39, s{S_W}, 2176\ns_lshl_b32 s{sK}, s{sROT}, 10")
        fst(9, 4)
        A("s_waitcnt lgkmcnt(0)\ns_mov_b32 s65, 0")
        for i in range(8):
            A(f"s_cmp_eq_u64 s[{8+2*i}:{9+2*i}], {EP}\ns_addc_u32 s65, s65, s65")
        A("s_cmp_eq_u32 s65, 255\ns_cbranch_scc1 L_F3OK")
        spoll([(8, 8, 0)], 45)
        A("L_F3OK:")
        stamp(6); fst(9, 5)
        g2_dma(0)
        A(f"s_waitcnt vmcnt(2)")
        fst(9, 6)
        A("s_barrier")
        fst(9, 7)
    else:
        A(f"s_lshl_b32 s39, s95, 10\ns_lshl_b32 s{sK}, s{sROT}, 7")
        g2_dma(0)
        A("s_barrier")
    if big:
        A(f"s_sub_u32 s66, s2, 256\ns_lshl_b32 s66, s66, 7\ns_add_u32 s66, s66, {F0B}\ns_load_dwordx2 s[8:9], {WSP}, s66 glc")
    wo_reads1()
    fst(9, 8)
    A("s_waitcnt vmcnt(0)")
    for Sx in range(1, 4):
        g2_dma(Sx)
    if big:
        sk = uid("G2W")
        A(f"s_cmp_eq_u64 s[8:9], {EP}\ns_cbranch_scc1 {sk}\ns_cmp_lg_u32 s{S_W}, 0\ns_cbranch_scc1 {sk}")
        fst(9, 9)
        spoll([(8, 1, 0)], 66)
        A(f"{sk}:")
        fst(9, 10)
    A(f"s_setprio {3 if OPT['mlo'] else OPT['g2p']}\n;MLO_ON2")
    if big:
        SET = [32, 40, 8]

        def rd(n):
            Sx, u = n >> 2, n & 3
            f, sb = SET[n % 3], slot(Sx)
            for j in range(2):
                A(f"ds_read_b64_tr_b16 {vr(f+2*j,2)}, v{vA} offset:{sb + 256*u + 64*j}")
            A(f"ds_read_b128 {vr(f+4,4)}, v{[vB, 0, 1, 7][u]} offset:{sb}")

        def mm(n):
            if n >= 0:
                f = SET[n % 3]
                A(f"{MF} {vr(ACC,16)}, {vr(f,4)}, {vr(f+4,4)}, {vr(ACC,16)}")

        for Sx in range(20):
            infl = 3 if Sx == 0 else min(Sx + 3, 20) - Sx - 1
            n = 4 * Sx
            A(f"s_waitcnt vmcnt({2*infl})\ns_barrier" if Sx else "s_barrier")
            if Sx == 0:
                stamp(11); fst(9, 11)
            rd(n); rd(n + 1)
            mm(n - 1)
            rd(n + 2)
            A("s_waitcnt lgkmcnt(6)")
            mm(n)
            rd(n + 3)
            if 0 < Sx < 17:
                g2_dma(Sx + 3)
            A("s_waitcnt lgkmcnt(6)")
            mm(n + 1)
            A("s_waitcnt lgkmcnt(3)")
            mm(n + 2)
            A("s_waitcnt lgkmcnt(0)")
        mm(79)
    else:
        FR = [16, 32]

        def mm(Sx, u):
            if Sx >= 0:
                f = FR[Sx & 1]
                A(f"{MF} {vr(ACC,4)}, {vr(f+8*u,4)}, {vr(f+8*u+4,4)}, {vr(ACC,4)}")

        for Sx in range(20):
            infl = 3 if Sx == 0 else min(Sx + 3, 20) - Sx - 1
            f, sb = FR[Sx & 1], slot(Sx)
            A(f"s_waitcnt vmcnt({2*infl})\ns_barrier" if Sx else "s_barrier")
            if 0 < Sx < 17:
                g2_dma(Sx + 3)
            mm(Sx - 1, 0)
            for u in range(2):
                for j in range(2):
                    A(f"ds_read_b64_tr_b16 {vr(f+8*u+2*j,2)}, v{vA} offset:{sb + 512*u + 64*j}")
                A(f"ds_read_b128 {vr(f+8*u+4,4)}, v{vB + u} offset:{sb}")
            mm(Sx - 1, 1)
            A("s_waitcnt lgkmcnt(0)")
        mm(19, 0); mm(19, 1)
    A(";MLO_OFF")
    stamp(7)
    bhi()
    srd(R2, P_OUT, 10485760)
    A(f"s_mul_i32 s44, s{S_W}, {2*PL}\ns_lshl_b32 s64, s{sTC}, 9\ns_add_u32 s44, s44, s64\ns_add_u32 s44, s44, {OP}\ns_lshl_b32 s46, s{S_W}, 10")
    if big:
        A(f"s_lshl_b32 s45, s{sTC}, 3\ns_add_u32 s45, s45, s{sNB}\ns_lshl_b32 s45, s45, 8\ns_lshl_b32 s64, s{S_W}, 6\ns_add_u32 s45, s45, s64\ns_add_u32 s45, s45, {PV4}")
        A(f"v_lshrrev_b32 v0, 9, v4\nv_mul_u32_u24 v0, {PL}, v0\nv_and_b32 v7, 0x1f0, v4\ns_and_b32 s64, s{S_W}, 1\ns_lshl_b32 s64, s64, 7\nv_xor_b32 v7, s64, v7\nv_add_u32 v7, v0, v7")
    for i in range(nacc):
        A(f"s_mov_b32 s64, {rows[i]*5120}\nbuffer_store_dword v{ACC+i}, v{vOut}, {S(R2)}, s64 offen offset:2560 {AUX[OPT['sty']]}")
    PIT = 336
    if big:
        if OPT["otouch"]:
            A(f"v_lshrrev_b32 v0, 6, v4\nv_min_u32 v0, 9, v0\nv_mul_u32_u24 v0, {PL}, v0\nv_and_b32 v1, 0x30, v4\nv_lshl_add_u32 v0, v1, 3, v0")
            A(f"s_and_b32 s64, s{sNB}, 3\ns_mul_i32 s64, s64, {10*PL}\ns_mul_i32 s65, s{S_W}, {38*PL}\ns_add_u32 s47, s64, s65\ns_add_u32 s47, s47, s44")
        spoll([(8, 8, 0)], 45)
        if OPT["otouch"]:
            A(f"buffer_load_dword v8, v0, {S(WS)}, s47 offen sc1")
    A("s_barrier")
    stamp(8); fst(5, 0)
    def odma(i):
        for st in (i, 5 + i):
            A(f"s_add_u32 m0, s46, {8192*st}\ns_add_u32 s64, s44, {16*PL*st}")
            dma(vOs, WS, 64, "sc1")

    odma(0)
    if OPT["opord"]:
        A("s_barrier")
    for i in range(1, 5):
        odma(i)
    A(f"v_mbcnt_lo_u32_b32 v0, -1, 0\nv_mbcnt_hi_u32_b32 v0, -1, v0")
    if big:
        A(f"s_lshr_b32 s64, s{S_W}, 1\ns_mul_i32 s65, s64, {40960 + 32*PIT}\ns_and_b32 s66, s{S_W}, 1\ns_lshl_b32 s66, s66, 7\ns_add_u32 s65, s65, s66")
        A(f"v_and_b32 v2, 31, v0\nv_mul_u32_u24 v2, {PIT}, v2\nv_lshrrev_b32 v3, 5, v0\nv_lshl_add_u32 v2, v3, 4, v2\nv_add_u32 v2, s65, v2")
        A(f"s_mul_i32 s67, s64, {-64*PIT & 0xffffffff}\ns_add_u32 s67, s67, {32*PIT}\nv_add_u32 v7, s67, v2")
        A(f"v_xor_b32 v1, 256, v{vO}")
    else:
        A(f"s_mul_i32 s65, s95, {16*PIT}\ns_add_u32 s65, s65, 256\nv_and_b32 v2, 15, v0\nv_mul_u32_u24 v2, {PIT}, v2\nv_lshrrev_b32 v3, 4, v0\nv_lshl_add_u32 v2, v3, 4, v2\nv_add_u32 v2, s65, v2")
        for i in range(4):
            A(f"v_mov_b32 v{8+i}, 0")
    A(f"s_lshl_b32 s64, s{S_W}, 6\nv_add_u32 v0, s64, v0\nv_mul_u32_u24 v3, 3277, v0\nv_lshrrev_b32 v3, 16, v3\nv_mul_u32_u24 v5, 20, v3\nv_sub_u32 v0, v0, v5\nv_lshlrev_b32 v0, 4, v0")
    A(f"s_mul_i32 s64, s{sTC}, {64*5120}\ns_mul_i32 s65, s{sNB}, 320\ns_add_u32 s47, s64, s65\nv_mul_u32_u24 v5, 5120, v3\nv_add_u32 v5, v5, v0\nv_mul_u32_u24 v3, {PIT}, v3\nv_add_u32 v3, v3, v0")
    steps = {0: 8, 4: 4, 12: 0}
    if big:
        ne = uid("NE")
        A(f"s_cmp_lg_u32 s{sTC}, 31\ns_cbranch_scc1 {ne}\ns_or_b32 s64, s{sNB}, s{S_W}\ns_cmp_lg_u32 s64, 0\ns_cbranch_scc1 {ne}")
        A(f"s_waitcnt vmcnt(0)\nv_mov_b32 v8, s{S_E}\ns_mov_b64 exec, 1\nbuffer_store_dword v8, off, {S(WS)}, 0 offset:{EPOCH} sc1\ns_mov_b64 exec, -1\ns_waitcnt vmcnt(0)\n{ne}:")
        free = [8, 12]
        loc = {}
        order = []

        def issue(n, t):
            f = free.pop(0)
            loc[(n, t)] = f
            i, u = n >> 2, n & 3
            for j in range(2):
                A(f"ds_read_b64 {vr(f+2*j,2)}, v{vO if t == 0 else 1} offset:{8192*i + 2048*u + 512*j}")
            order.append((n, t))

        todo = [(n, t) for n in range(16) for t in range(2)] + [(n, 1) for n in range(16, 20)] + [(n, 0) for n in range(16, 20)]
        nxt = 0
        done = {}
        lim = 0
        for k, (n, t) in enumerate(todo):
            if n in steps and t == 0:
                if n == 0:
                    fst(5, 1)
                A(f"s_waitcnt vmcnt({steps[n]})\ns_barrier")
                fst(5, 2 + list(steps).index(n))
                lim = {0: 8, 4: 24, 12: 40}[n]
            while nxt < lim and free and nxt - k < 6:
                issue(*todo[nxt]); nxt += 1
            pend = len(order) - 1 - order.index((n, t))
            if (n, t) == (17, 0):
                assert nxt == len(todo)
                A("s_nop 7\ns_waitcnt lgkmcnt(0)")
            elif t == 0 and n > 17:
                for g in (2 * (n - 18), 2 * (n - 18) + 1):
                    A(f"ds_write_b128 v7, {vr(ACC+16+4*g,4)} offset:{32*g}")
            else:
                A(f"s_waitcnt lgkmcnt({2*pend})")
            c = "0" if n == 0 else vr(ACC + 16 * t, 16)
            A(f"{MF} {vr(ACC+16*t,16)}, {vr(WF+4*n,4)}, {vr(loc[(n,t)],4)}, {c}")
            free.append(loc[(n, t)])
            done[n] = done.get(n, 0) + 1
            if done[n] == 2:
                free.append(WF + 4 * n)
        fst(5, 5)
        A("s_nop 11")
        for g in range(4):
            A(f"ds_write_b128 v2, {vr(ACC+4*g,4)} offset:{32*g}")
    else:
        first = True
        for si, (i0, i1) in enumerate(((0, 1), (1, 3), (3, 5))):
            A(f"s_waitcnt vmcnt({[8, 4, 0][si]})\ns_barrier")
            for i in range(i0, i1):
                f = 16 + 16 * (i & 1)
                for h in range(2):
                    for U in range(2):
                        for j in range(2):
                            A(f"ds_read_b64 {vr(f+8*h+4*U+2*j,2)}, v{vO+h} offset:{8192*i + 4096*U + 512*j}")
            for i in range(i0, i1):
                f = 16 + 16 * (i & 1)
                for h in range(2):
                    for U in range(2):
                        A(f"s_waitcnt lgkmcnt({8*(i1-1-i) + 6 - 4*h - 2*U})")
                        c = "0" if first else vr(ACC, 4)
                        first = False
                        A(f"{MF} {vr(ACC,4)}, {vr(WF+40*h+8*i+4*U,4)}, {vr(f+8*h+4*U,4)}, {c}")
        A(f"ds_write_b128 v2, v[8:11] offset:40960\ns_nop 6\nds_write_b128 v2, {vr(ACC,4)}")
    A("s_waitcnt lgkmcnt(0)\ns_barrier")
    fst(5, 6)
    if not big:
        A(f"s_cmp_ge_u32 s{S_W}, 5\ns_cbranch_scc1 L_B_DONE")
    for m in range(4):
        A(f"ds_read_b128 {vr(48+8*m,4)}, v3 offset:{16*PIT*m}\nds_read_b128 {vr(52+8*m,4)}, v3 offset:{40960 + 16*PIT*m}")
    for m in range(4):
        A(f"s_waitcnt lgkmcnt({6-2*m})")
        for c in range(2):
            A(f"v_pk_add_f32 {vr(48+8*m+2*c,2)}, {vr(48+8*m+2*c,2)}, {vr(52+8*m+2*c,2)}")
        A(f"buffer_store_dwordx4 {vr(48+8*m,4)}, v5, {S(R2)}, s47 offen {AUX[OPT['sto']]}")
        if m < 3:
            A(f"s_add_u32 s47, s47, {16*5120}")
    if not big:
        A("L_B_DONE:")
    fst(5, 7)
    stamp(9)
    if OPT["stamps"]:
        A("s_waitcnt vmcnt(0)")
        stamp(10); fst(5, 8)
    dump_stamps(12)
    A("s_endpgm")


def wrap_mfma():
    out, on, i = [], False, 0
    for k, l in enumerate(L):
        if l.startswith(";MLO_ON"):
            on = 2 if l.endswith("2") else 1
            continue
        if l == ";MLO_OFF":
            on = False
            continue
        if on and OPT["mlo"] and l.startswith("v_mfma"):
            if not L[k - 1].startswith("v_mfma"):
                out.append(f"s_setprio {OPT['mlv']}")
            out.append(l)
            if not L[k + 1].startswith("v_mfma"):
                out.append("s_setprio 3")
                if on == 1 and OPT.get("pace"):
                    out.append(f"s_sleep {OPT['pace']}")
            elif on == 1 and OPT.get("pace1"):
                out.append(f"s_sleep {OPT['pace1']}")
        else:
            out.append(l)
    L[:] = out


DOC = """\
;    softmax: p = exp2(s) is accumulated unshifted together with its row sum l (ones rows of the P.V product). The shift 0 is only
;  previous launch left at ws+0, advanced once every workgroup has read it); consumers spin (bounded) on the flags.
"""


def build():
    hdr = open("cdna_kernels/" + NAME + ".s.ref").read().split("\n")
    out = [l for l in hdr if l.startswith(";") and "@launch" not in l]
    out.append("; @launch grid=(512,1,1) block=(512,1,1) lds=81920")
    out.append('.amdgcn_target "amdgcn-amd-amdhsa--gfx950"')
    out.append(DOC)
    out.append(".text")
    out.append(f".globl {NAME}_kernel\n.p2align 8\n.type {NAME}_kernel,@function\n{NAME}_kernel:")
    qkv()
    attention()
    qkv_idle()
    role_b()
    A("L_END:\ns_endpgm")
    wrap_mfma()
    for l in L:
        out.append(l if l.endswith(":") or l.startswith(".") else "    " + l)
    out.append(f""".section .rodata,"a"
.p2align 6
.amdhsa_kernel {NAME}_kernel
  .amdhsa_next_free_vgpr 128
  .amdhsa_next_free_sgpr 102
  .amdhsa_accum_offset 128
  .amdhsa_group_segment_fixed_size 0
  .amdhsa_kernarg_size 120
  .amdhsa_user_sgpr_count 2
  .amdhsa_user_sgpr_kernarg_segment_ptr 1
  .amdhsa_system_sgpr_workgroup_id_x 1
.end_amdhsa_kernel""")
    return "\n".join(out) + "\n"


if __name__ == "__main__":
    txt = build()
    open(sys.argv[1], "w").write(txt)
    sys.path.insert(0, "gen")
    import hazard
    e = hazard.check(txt)
    print("\n".join(e) if e else "hazard check: clean")
```

```python
import sys, struct, math

NAME = "concat_heads__softmax_full_mha__ssm_conv_s5__prompt"

OPT = dict(stamps=0, spin=400000, force_fb=0, g2s=6, g2q=6, tog=2, stg=1, g1p=0, g2p=0, htouch=0, ctouch=1, sty=2, sto=2,
           cpre=1, lscan=0, brot=0, t1=1, prea=0, mlo=1, gk=0, hs=16, qst=0, qrot=1, pre=0, c1=2, cu=1, g1t=0, sp1=1, otouch=0, qord=1, lastw=1, mlv=0, wearly=1, fill0=16, nfill=4, post=1, q16=1, opord=1)
for a in sys.argv[2:]:
    k, v = a.split("=")
    OPT[k] = int(v)

PL = 16384
EPOCH = 0
F1 = 0x1000
F2 = 0x2000
F3 = 0x3000
F0 = 0x8000
F0B = 0x10000
F0C = 0x18000
STAMP = 0x20000
EB = 0x48000
PV1 = 0xA0000
PV4 = 0xB0000
PV2 = 0xC0000
PV3 = 0xD0000
QKVP = 0x100000
OP = 0xA00000
HB = 0xD00000
WS_USED = 0x1300000
OOB = 0x80000000
AUX = ['', 'nt', 'sc1', 'sc1 nt', 'sc0 sc1']

L = []


def A(s):
    for ln in s.strip("\n").split("\n"):
        L.append(ln.strip())


def f2u(x):
    return struct.unpack("<I", struct.pack("<f", x))[0]


def vr(a, n):
    return f"v[{a}:{a+n-1}]" if n > 1 else f"v{a}"


P_AX, P_WQKV, P_WO, P_BX, P_LRE, P_LIM, P_BRE, P_BIM, P_CRE, P_CIM, P_LDT, P_DSK, P_OUT, P_DBG = range(8, 36, 2)
S_E = 6
S_W = 40
R0, R1, R2, WS, R3 = 44, 48, 52, 56, 60
WSP = f"s[{WS}:{WS+1}]"
EP = f"s[{S_E}:{S_E+1}]"
ST0 = 70
_uid = [0]


def uid(p):
    _uid[0] += 1
    return f"{p}_{_uid[0]}"


def srd(r, p, n):
    A(f"s_mov_b32 s{r}, s{p}\ns_mov_b32 s{r+1}, s{p+1}\ns_mov_b32 s{r+2}, {n}\ns_mov_b32 s{r+3}, 0x20000")


def S(r):
    return f"s[{r}:{r+3}]"


def stamp(k):
    if OPT["stamps"] and not OPT.get("fm"):
        A(f"s_memrealtime s[{ST0+2*k}:{ST0+2*k+1}]")


def cstamp(k):
    if OPT["stamps"] and not OPT.get("fm"):
        A(f"s_memtime s[{ST0+2*k}:{ST0+2*k+1}]")


def fst(mode, k):
    if OPT.get("fm") == mode:
        A(f"s_memtime s[{ST0+2*k}:{ST0+2*k+1}]")


def rst(mode, k):
    if OPT.get("fm") == mode:
        A(f"s_memrealtime s[{ST0+2*k}:{ST0+2*k+1}]")


def dump_stamps(n, role="B"):
    if not OPT["stamps"]:
        return
    if OPT.get("amp"):
        if (role == "A") == (OPT["sel"] < 256):
            sk, lp = uid("AK"), uid("AL")
            A(f"s_waitcnt lgkmcnt(0)\ns_cmp_lg_u32 s2, {OPT['sel']}\ns_cbranch_scc1 {sk}\ns_cmp_lg_u32 s{S_W}, 0\ns_cbranch_scc1 {sk}")
            A(f"s_sub_u32 s64, s{ST0+2*OPT['k1']}, s{ST0+2*OPT['k0']}\ns_mul_i32 s64, s64, {OPT['amp']}\ns_min_u32 s64, s64, 100000\ns_add_u32 s64, s64, s{ST0}")
            A(f"{lp}:\ns_memrealtime s[66:67]\ns_waitcnt lgkmcnt(0)\ns_sub_u32 s66, s66, s64\ns_cmp_lt_i32 s66, 0\ns_cbranch_scc1 {lp}\n{sk}:")
        return
    sk = uid("SK")
    A(f"s_waitcnt lgkmcnt(0)\ns_cmp_lg_u32 s{S_W}, {OPT.get('fw', 0)}\ns_cbranch_scc1 {sk}")
    A(f"s_lshl_b32 s64, s2, 7\ns_add_u32 s64, s64, {STAMP}\ns_mov_b64 exec, 1")
    for k in range(n):
        A(f"v_mov_b32 v120, s{ST0+2*k}\nv_mov_b32 v121, s{ST0+2*k+1}")
        A(f"buffer_store_dwordx2 v[120:121], off, {S(WS)}, s64 offset:{8*k}")
        A("s_waitcnt vmcnt(0)")
    A(f"s_mov_b64 exec, -1\n{sk}:")


def flag_store(soff, t=120, wave=0):
    sk = uid("FS")
    A(f"s_cmp_lg_u32 s{S_W}, {wave}\ns_cbranch_scc1 {sk}")
    A(f"v_mov_b32 v{t}, s{S_E}\nv_mov_b32 v{t+1}, s{S_E+1}\ns_mov_b64 exec, 1")
    A(f"buffer_store_dwordx2 v[{t}:{t+1}], off, {S(WS)}, s{soff} sc1")
    A(f"s_mov_b64 exec, -1\n{sk}:")


def poll(vaddrs, t=120):
    lp, dn = uid("PL"), uid("PD")
    A(f"s_mov_b32 s64, {OPT['spin']}\n{lp}:")
    for i, va in enumerate(vaddrs):
        A(f"buffer_load_dwordx2 v[{t+2*i}:{t+2*i+1}], v{va}, {S(WS)}, 0 offen sc1")
    A("s_waitcnt vmcnt(0)")
    for i, va in enumerate(vaddrs):
        if i == 0:
            A(f"v_cmp_ne_u64 vcc, {EP}, v[{t}:{t+1}]")
        else:
            A(f"v_cmp_ne_u64 s[66:67], {EP}, v[{t+2*i}:{t+2*i+1}]\ns_or_b64 vcc, vcc, s[66:67]")
    A(f"s_cbranch_vccz {dn}\ns_sub_u32 s64, s64, 1\ns_cmp_lg_u32 s64, 0\ns_cbranch_scc1 {lp}\n{dn}:")


def spoll(blocks, soff, need=None, cnt=64, msk=65):
    lp, dn = uid("SP"), uid("SD")
    A(f"s_mov_b32 s{cnt}, {OPT['spin']}\n{lp}:")
    tot = 0
    for dst, n, off in blocks:
        A(f"s_load_dwordx{2*n} s[{dst}:{dst+2*n-1}], {WSP}, s{soff} offset:{off} glc")
        tot += n
    A(f"s_mov_b32 s{msk}, 0\ns_waitcnt lgkmcnt(0)")
    for dst, n, off in blocks:
        for i in range(n):
            A(f"s_cmp_eq_u64 s[{dst+2*i}:{dst+2*i+1}], {EP}\ns_addc_u32 s{msk}, s{msk}, s{msk}")
    if need is None:
        A(f"s_cmp_eq_u32 s{msk}, {(1 << tot) - 1}")
    else:
        A(f"s_andn2_b32 s{msk}, s{need}, s{msk}\ns_cmp_eq_u32 s{msk}, 0")
    A(f"s_cbranch_scc1 {dn}")
    if tot <= 8:
        A("s_sleep 2")
    A(f"s_sub_u32 s{cnt}, s{cnt}, 1\ns_cmp_lg_u32 s{cnt}, 0\ns_cbranch_scc1 {lp}\n{dn}:")


def bhi():
    A("s_setprio 3")


def blo():
    A("s_setprio 0")


def dma(vaddr, rsrc, soff, aux=""):
    A(f"buffer_load_dwordx4 v{vaddr}, {S(rsrc)}, s{soff} offen {aux} lds".replace("  ", " "))


def epoch_fix():
    A(f"s_mul_i32 s{S_E}, s{S_E}, 0x9E3779B1\ns_add_u32 s{S_E}, s{S_E}, 0x7F4A7C15\ns_xor_b32 s{S_E+1}, s{S_E}, 0x5bd1e995")


MF32 = "v_mfma_f32_32x32x16_bf16"
MF8 = "v_mfma_f32_32x32x8_bf16"
MF16 = "v_mfma_f32_16x16x32_bf16"

PS = 2080
SLOT = 11 * PS
RED = 2 * SLOT
BADW = 81912
sST0, sST1, sF1, sSC, sH, sQB, sG, sLd, sQ, sPV1, sNEED, sH1, sH2, sPass, sChk, sO0, sO1, sPV4 = \
    8, 9, 10, 12, 14, 15, 16, 19, 22, 25, 26, 27, 28, 29, 30, 31, 32, 33
vD, vTok, vK, vK1, vV, vF6, vF7, vPush, vQa, vOnes = 123, 124, 125, 126, 127, 121, 122, 120, 112, 116


def att_setup(sRB, sCB):
    G = []
    g = G.append
    g(f"s_and_b32 s34, s2, 7\ns_bfe_u32 s{sQB}, s2, 0x30003\ns_bfe_u32 s35, s2, 0x20006\ns_lshl_b32 s{sH}, s34, 2\ns_add_u32 s{sH}, s{sH}, s35")
    g(f"s_mul_i32 s36, s{sH}, 5\ns_add_u32 s37, s36, 4\ns_lshr_b32 s38, s36, 5\ns_lshr_b32 s37, s37, 5\ns_sub_u32 s37, s37, s38")
    g(f"s_lshl_b32 s{sPV1}, s{sH}, 3\ns_add_u32 s{sPV1}, s{sPV1}, s{sQB}\ns_lshl_b32 s{sPV1}, s{sPV1}, 8\ns_add_u32 s{sPV1}, s{sPV1}, {PV1}")
    g(f"s_mov_b32 s{sNEED}, 0xf0f0c\ns_cmp_eq_u32 s37, 0\ns_cselect_b32 s{sNEED}, s{sNEED}, 0xfffff\ns_mov_b32 s{sPass}, 0\ns_min_u32 s{sChk}, s{S_W}, 1")
    g(f"v_bfe_u32 v11, v1, 4, 1\nv_mul_u32_u24 v11, s37, v11\nv_add_u32 v11, s38, v11\nv_lshrrev_b32 v14, 5, v1\nv_mul_u32_u24 v12, 15, v14\nv_max_u32 v12, v11, v12")
    g(f"v_mul_u32_u24 v13, 5, v14\nv_add3_u32 v11, v11, v13, 5\nv_and_b32 v13, 15, v1\nv_lshlrev_b32 v15, 3, v13\nv_add_u32 v15, {F1}, v15")
    g(f"v_lshl_add_u32 v{vF6}, v11, 7, v15\nv_lshl_add_u32 v{vF7}, v12, 7, v15\nv_lshlrev_b32 v{vD}, 4, v1")
    g(f"s_lshl_b32 s{sH1}, s2, 7\ns_add_u32 s{sH2}, s{sH1}, {F0B}\ns_add_u32 s{sH1}, s{sH1}, {F0}")
    for m in range(3):
        g(f"s_add_u32 s34, s{S_W}, {8*m}\ns_lshr_b32 s35, s34, 1\ns_and_b32 s34, s34, 1\ns_lshl_b32 s34, s34, 10\ns_mul_i32 s{sLd+m}, s35, {PS}\ns_add_u32 s{sLd+m}, s{sLd+m}, s34")
        g(f"s_cmp_ge_u32 s35, 5\ns_cselect_b32 s39, 155, 0\ns_add_u32 s35, s35, s39\ns_add_u32 s35, s35, s36\ns_mul_i32 s35, s35, {PL}\ns_add_u32 s35, s35, s34\ns_add_u32 s{sG+m}, s35, {QKVP + 160*PL}")
    g(f"s_lshr_b32 s34, s{S_W}, 1\ns_min_u32 s34, s34, 2\ns_mul_i32 s34, s34, {SLOT}\ns_and_b32 s35, s{S_W}, 1\ns_lshl_b32 s35, s35, 10\ns_add_u32 s34, s34, s35\ns_add_u32 s34, s34, {10*PS}\nv_add_u32 v{vOnes}, s34, v{vD}")
    g(f"s_and_b32 s34, s{S_W}, 3\ns_lshl_b32 s34, s34, 6\ns_lshr_b32 s35, s{S_W}, 2\ns_lshl_b32 s39, s35, 5\ns_add_u32 s34, s34, s39\ns_lshl_b32 s35, s35, 7")
    g(f"v_lshl_add_u32 v15, v13, 1, s34\nv_lshlrev_b32 v{vTok}, 3, v15\nv_bfe_u32 v12, v1, 4, 1\nv_lshl_add_u32 v15, v12, 3, v{vTok}\nv_xor_b32 v16, 256, v15")
    g(f"v_mul_u32_u24 v17, {2*PL}, v14\nv_add_u32 v{vQa}, v17, v15\nv_add_u32 v{vQa+2}, v17, v16\nv_lshlrev_b32 v17, 31, v14\nv_or_b32 v{vQa+1}, v17, v15\nv_or_b32 v{vQa+3}, v17, v16")
    g(f"v_and_b32 v15, 31, v1\nv_add_u32 v15, s35, v15\nv_lshlrev_b32 v15, 3, v15\nv_mul_u32_u24 v16, {2*PS}, v14\nv_add_u32 v{vK}, v16, v15")
    g(f"v_mul_u32_u24 v16, {6*PS}, v14\nv_add_u32 v16, {4*PS}, v16\nv_add_u32 v{vK1}, v16, v15\nv_and_b32 v16, 3, v1\nv_lshl_add_u32 v16, v12, 2, v16\nv_min_u32 v16, 5, v16")
    g(f"v_add_u32 v16, 5, v16\nv_mul_u32_u24 v16, {PS}, v16\nv_bfe_u32 v17, v1, 2, 2\nv_lshl_add_u32 v17, v14, 2, v17\nv_add_u32 v17, s35, v17\nv_lshl_add_u32 v{vV}, v17, 3, v16")
    g(f"s_mul_i32 s34, s36, {PL}\ns_lshl_b32 s35, s{sQB}, 11\ns_add_u32 s34, s34, s35\ns_add_u32 s{sQ}, s34, {QKVP}\ns_add_u32 s{sQ+1}, s{sQ}, {PL}\ns_add_u32 s{sQ+2}, s{sQ}, {4*PL}")
    g(f"s_add_u32 s{sO0}, s34, {OP}\ns_add_u32 s{sO1}, s{sO0}, {4*PL}\ns_lshl_b32 s{sPV4}, s{sQB}, 13\ns_lshl_b32 s35, s{sH}, 3\ns_add_u32 s{sPV4}, s{sPV4}, s35\ns_add_u32 s{sPV4}, s{sPV4}, {PV4}")
    if sRB is None:
        g(f"v_mov_b32 v{vPush}, {OOB}\ns_sub_u32 s{sF1}, s2, 240\ns_lshl_b32 s{sF1}, s{sF1}, 3\ns_add_u32 s{sF1}, s{sF1}, {F1 + 15*128}")
        return G
    c = 20 ** -0.5 * math.log2(math.e)
    g(f"s_cmp_lt_u32 s{sCB}, 5\ns_cselect_b32 s{sSC}, {f2u(c)}, 1.0\ns_mov_b32 s{sSC+1}, s{sSC}\ns_lshl_b32 s{sF1}, s{sCB}, 7\ns_lshl_b32 s34, s{sRB}, 3\ns_add_u32 s{sF1}, s{sF1}, s34\ns_add_u32 s{sF1}, s{sF1}, {F1}")
    g(f"s_mul_i32 s{sST0}, s{sCB}, {32*PL}\ns_lshl_b32 s34, s{sRB}, 10\ns_add_u32 s{sST0}, s{sST0}, s34\ns_add_u32 s{sST0}, s{sST0}, {QKVP}\ns_add_u32 s{sST1}, s{sST0}, {4*PL}")
    g(f"s_cmp_ge_u32 s{sCB}, 10\ns_cselect_b32 s38, 10, 5\ns_cselect_b32 s35, 8, 0\ns_sub_u32 s34, s{sCB}, s38\ns_add_u32 s35, s35, s{sRB}\ns_cmp_lt_u32 s{sRB}, 4\ns_cselect_b32 s37, 1, 0")
    g(f"s_and_b32 s38, s{sRB}, 1\ns_add_u32 s38, s38, 16\ns_cmp_lt_u32 s{sCB}, 5\ns_cselect_b32 s34, s{sCB}, s34\ns_cselect_b32 s35, s38, s35\ns_cselect_b32 s36, 2, 4\ns_cselect_b32 s37, 2, s37")
    g(f"s_mul_i32 s38, s34, {6554*32}\ns_lshr_b32 s38, s38, 15\nv_lshrrev_b32 v11, 3, v1\nv_add_u32 v11, s38, v11\nv_mul_u32_u24 v12, 5, v11\nv_lshrrev_b32 v13, 5, v12\ns_lshr_b32 s39, s{sRB}, 1")
    g(f"v_cmp_ge_u32 s[68:69], s34, v13\nv_cmp_ne_u32 vcc, s34, v13\nv_and_b32 v13, 7, v1\nv_lshl_add_u32 v11, v11, 3, v13\nv_cndmask_b32 v12, 0, 1, vcc\nv_mul_u32_u24 v12, s36, v12\nv_add_u32 v12, s35, v12")
    g(f"v_cmp_eq_u32 vcc, s39, v13\ns_cmp_eq_u32 s37, 2\ns_cselect_b64 vcc, vcc, -1\ns_and_b64 s[68:69], s[68:69], vcc\ns_cmp_eq_u32 s37, 0\ns_cselect_b64 s[68:69], 0, s[68:69]")
    g(f"v_lshlrev_b32 v11, 8, v11\nv_lshl_add_u32 v11, v12, 3, v11\nv_add_u32 v11, {PV1}, v11\nv_mov_b32 v{vPush}, {OOB}\nv_cndmask_b32 v{vPush}, v{vPush}, v11, s[68:69]")
    return G


def qkv():
    sRB, sCB, sKX, sKW, sMX, sMW, sT = 41, 42, 43, 64, 65, 66, 67
    vX0, vX1, vWs, vWr, vXr = 2, 3, 4, 5, 6
    ACC = 32
    FR = [64, 88]
    A("s_cmp_ge_u32 s2, 256\ns_cbranch_scc1 L_ROLE_B")
    stamp(0); fst(7, 0)
    A(f"s_load_dwordx2 s[{R0}:{R0+1}], s[0:1], 0\ns_load_dwordx2 s[{R1}:{R1+1}], s[0:1], 8\ns_load_dwordx2 s[{WS}:{WS+1}], s[0:1], 112")
    A(f"v_lshrrev_b32 v2, 6, v0\nv_and_b32 v1, 63, v0\nv_readfirstlane_b32 s{S_W}, v2")
    A(f"s_lshr_b32 s{sCB}, s2, 4\ns_and_b32 s{sCB}, s{sCB}, 14\ns_bfe_u32 s{sT}, s2, 0x10002\ns_or_b32 s{sCB}, s{sCB}, s{sT}")
    A(f"s_lshr_b32 s{sRB}, s2, 1\ns_and_b32 s{sRB}, s{sRB}, 12\ns_and_b32 s{sT}, s2, 3\ns_or_b32 s{sRB}, s{sRB}, s{sT}")
    A(f"s_cmp_eq_u32 s{sCB}, 15\ns_cselect_b32 s{sT}, 8, 0\ns_add_u32 s{sRB}, s{sRB}, s{sT}\ns_min_u32 s{sCB}, s{sCB}, 14")
    if OPT["qst"]:
        A(f"s_mov_b32 s{sKX}, 0")
    else:
        if OPT["qrot"] == 2:
            A(f"s_and_b32 s{sKX}, s2, 7")
        elif OPT["qrot"] == 1:
            A(f"s_mul_i32 s{sKX}, s{sRB}, 3\ns_add_u32 s{sKX}, s{sKX}, s{sCB}\ns_mul_i32 s{sT}, s{sKX}, 205\ns_lshr_b32 s{sT}, s{sT}, 11\ns_mul_i32 s{sT}, s{sT}, 10\ns_sub_u32 s{sKX}, s{sKX}, s{sT}")
        else:
            A(f"s_bfe_u32 s{sKX}, s2, 0x10003\ns_mul_i32 s{sKX}, s{sKX}, 5")
        A(f"s_mul_i32 s{sKW}, s{sKX}, {2*122880}\ns_lshl_b32 s{sKX}, s{sKX}, 7")
    A(f"s_lshl_b32 s{sT}, s{sRB}, 7\ns_lshr_b32 s68, s{S_W}, 1\ns_lshl_b32 s68, s68, 5\ns_add_u32 s{sT}, s{sT}, s68\ns_and_b32 s68, s{S_W}, 1\ns_add_u32 s{sT}, s{sT}, s68")
    A(f"v_lshrrev_b32 v10, 3, v1\nv_lshl_add_u32 v10, v10, 1, s{sT}\nv_mul_u32_u24 v10, 1280, v10")
    A(f"v_lshrrev_b32 v11, 4, v1\nv_and_b32 v12, 7, v1\nv_xor_b32 v12, v12, v11\nv_lshl_add_u32 v{vX0}, v12, 4, v10")
    A(f"s_lshl_b32 s{sMX}, s{S_W}, 11\ns_mov_b32 s{R0+2}, 2621440\ns_mov_b32 s{R0+3}, 0x20000\ns_mov_b32 m0, s{sMX}")
    A("s_cmp_ge_u32 s2, 240\ns_cbranch_scc1 L_QKV_IDLE")
    fst(7, 1)
    A("s_waitcnt lgkmcnt(0)")
    issued = []

    def dmaX(Sx, between=None):
        if OPT["qst"]:
            for i in range(2):
                if Sx or i:
                    A(f"s_add_u32 m0, s{sMX}, {(Sx % 3) * 16384 + i * 1024}")
                    A(f"s_movk_i32 s{sKX}, {128 * Sx}" if i == 0 else "s_nop 0")
                dma(vX0 + i, R0, sKX, 'nt' if OPT.get('ntx') else '')
                issued.append(("X", Sx))
                if between and i == 0:
                    between()
            return
        for i in range(2):
            if Sx or i:
                A(f"s_add_u32 m0, s{sMX}, {(Sx % 3) * 16384 + i * 1024}\ns_nop 0")
            dma(vX0 + i, R0, sKX, 'nt' if OPT.get('ntx') else '')
            issued.append(("X", Sx))
            if between and i == 0:
                between()
        A(f"s_add_u32 s{sKX}, s{sKX}, 128\ns_cmp_eq_u32 s{sKX}, 1280\ns_cselect_b32 s{sKX}, 0, s{sKX}")

    def dmaW(s):
        if OPT["qst"]:
            A(f"s_add_u32 m0, s{sMW}, {(s % 4) * 8192}\ns_mov_b32 s{sKW}, {122880 * s}")
            dma(vWs, R1, sKW, 'nt' if OPT.get('ntw') else '')
            issued.append(("W", s))
            return
        A(f"s_add_u32 m0, s{sMW}, {(s % 4) * 8192}\ns_nop 0")
        dma(vWs, R1, sKW, 'nt' if OPT.get('ntw') else '')
        issued.append(("W", s))
        A(f"s_add_u32 s{sKW}, s{sKW}, 122880\ns_cmp_eq_u32 s{sKW}, 2457600\ns_cselect_b32 s{sKW}, 0, s{sKW}")

    dmaX(0, lambda: A(f"v_xor_b32 v{vX1}, 64, v{vX0}\nv_add_u32 v{vX1}, 20480, v{vX1}"))
    A(f"s_lshl_b32 s68, s{S_W}, 2\nv_add_u32 v10, s68, v11\nv_mul_u32_u24 v10, 3840, v10")
    if OPT["q16"]:
        A(f"s_and_b32 s68, s{S_W}, 2\ns_lshl_b32 s68, s68, 2\nv_and_b32 v12, 15, v1\nv_lshl_add_u32 v13, v11, 1, s68\nv_xor_b32 v12, v12, v13\nv_lshl_add_u32 v10, v12, 4, v10")
    else:
        A(f"v_and_b32 v12, 15, v1\nv_lshlrev_b32 v13, 2, v11\nv_xor_b32 v12, v12, v13\nv_lshl_add_u32 v10, v12, 4, v10")
    A(f"s_lshl_b32 s68, s{sCB}, 8\nv_add_u32 v{vWs}, s68, v10\ns_lshl_b32 s{sMW}, s{S_W}, 10\ns_add_u32 s{sMW}, s{sMW}, 49152")
    A(f"s_mov_b32 s{R1+2}, 2457600\ns_mov_b32 s{R1+3}, 0x20000")
    dmaW(0)
    fst(7, 2)
    A(f"s_load_dword s{S_E}, {WSP}, {EPOCH}\ns_mov_b32 s{WS+2}, {WS_USED}\ns_mov_b32 s{WS+3}, 0x20000\ns_barrier")
    fst(7, 3)
    dmaW(1); dmaX(1); dmaW(2); dmaW(3); dmaX(2)
    fst(7, 4)
    if OPT["q16"]:
        A(f"v_lshrrev_b32 v10, 4, v1\nv_bfe_u32 v11, v1, 2, 2\nv_lshl_add_u32 v12, v10, 3, v11\nv_lshlrev_b32 v12, 8, v12")
        A(f"s_and_b32 s68, s{S_W}, 3\ns_lshl_b32 s68, s68, 2\nv_bfe_u32 v13, v1, 1, 1\nv_add_u32 v13, s68, v13")
        A(f"v_and_b32 v14, 1, v10\nv_lshl_add_u32 v11, v14, 2, v11\nv_lshlrev_b32 v11, 1, v11\nv_xor_b32 v13, v13, v11\nv_lshl_add_u32 v12, v13, 4, v12")
        A(f"v_and_b32 v14, 1, v1\nv_lshl_add_u32 v12, v14, 3, v12\nv_add_u32 v5, 49152, v12\nv_xor_b32 v6, 32, v5")
        A(f"s_lshr_b32 s68, s{S_W}, 2\ns_lshl_b32 s68, s68, 6\nv_and_b32 v11, 15, v1\nv_add_u32 v12, s68, v11\nv_lshlrev_b32 v12, 7, v12")
        A(f"v_lshrrev_b32 v13, 1, v11\nv_xor_b32 v13, v13, v10\nv_lshl_add_u32 v7, v13, 4, v12\nv_xor_b32 v8, 64, v7")
        fst(7, 5)
        G = [f"s_and_b32 s34, s{S_W}, 3\ns_lshl_b32 s34, s34, 3\nv_add_u32 v10, s34, v10\nv_mul_u32_u24 v10, {PL}, v10",
             f"v_and_b32 v11, 15, v1\nv_lshl_add_u32 v10, v11, 4, v10\ns_lshr_b32 s34, s{S_W}, 2\ns_lshl_b32 s34, s34, 9\nv_add_u32 v10, s34, v10"]
    else:
        A(f"v_lshrrev_b32 v10, 5, v1\nv_bfe_u32 v11, v1, 2, 2\nv_lshl_add_u32 v12, v10, 3, v11\nv_lshlrev_b32 v12, 8, v12")
        A(f"s_and_b32 s68, s{S_W}, 3\ns_lshl_b32 s68, s68, 2")
        A(f"v_bfe_u32 v13, v1, 4, 1\nv_lshlrev_b32 v13, 1, v13\nv_bfe_u32 v14, v1, 1, 1\nv_add3_u32 v13, v13, v14, s68")
        A(f"v_lshlrev_b32 v11, 2, v11\nv_xor_b32 v13, v13, v11\nv_lshl_add_u32 v12, v13, 4, v12")
        A(f"v_and_b32 v14, 1, v1\nv_lshl_add_u32 v12, v14, 3, v12\nv_add_u32 v{vWr}, 49152, v12")
        A(f"s_lshr_b32 s68, s{S_W}, 2\ns_lshl_b32 s68, s68, 6\nv_and_b32 v11, 31, v1\nv_add_u32 v12, s68, v11\nv_lshlrev_b32 v12, 7, v12")
        A(f"v_bfe_u32 v13, v1, 1, 3\nv_xor_b32 v13, v13, v10\nv_lshl_add_u32 v{vXr}, v13, 4, v12")
        for k in range(1, 4):
            A(f"v_xor_b32 v{vXr+k}, {32*k}, v{vXr}")
        fst(7, 5)
        G = [f"s_and_b32 s34, s{S_W}, 3\ns_lshl_b32 s34, s34, 3\nv_bfe_u32 v11, v1, 4, 1\nv_lshl_add_u32 v10, v11, 1, v10\nv_add_u32 v10, s34, v10\nv_mul_u32_u24 v10, {PL}, v10",
             f"v_and_b32 v11, 15, v1\nv_lshl_add_u32 v10, v11, 4, v10\ns_lshr_b32 s34, s{S_W}, 2\ns_lshl_b32 s34, s34, 9\nv_add_u32 v10, s34, v10"]
    GA = att_setup(sRB, sCB)
    post = []
    if OPT["post"]:
        post, GA = GA[:-8], GA[-8:]
    G += GA
    nf = OPT["nfill"]
    per = [G[len(G) * i // nf:len(G) * (i + 1) // nf] for i in range(nf)]

    def reads(s):
        f = FR[s & 1]
        ws, xs, b = (s % 4) * 8192, ((s >> 1) % 3) * 16384, s & 1
        if OPT["q16"]:
            for mi in range(2):
                for j in range(2):
                    A(f"ds_read_b64_tr_b16 {vr(f+4*mi+2*j, 2)}, v{5+mi} offset:{ws + 1024*j}")
                for ni in (2 * mi, 2 * mi + 1):
                    A(f"ds_read_b128 {vr(f+8+4*ni, 4)}, v{7+b} offset:{xs + 2048*ni}")
            return
        for u in range(2):
            for j in range(2):
                A(f"ds_read_b64_tr_b16 {vr(f+4*u+2*j, 2)}, v{vWr} offset:{ws + (16*u+4*j)*256}")
            for nt in range(2):
                A(f"ds_read_b128 {vr(f+8+8*u+4*nt, 4)}, v{vXr+2*b+u} offset:{xs + 4096*nt}")

    def mfma1(s, i):
        if s < 0:
            return
        f = FR[s & 1]
        if OPT["q16"]:
            for mi in range(2):
                a = ACC + 16 * mi + 4 * i
                A(f"{MF16} {vr(a,4)}, {vr(f+4*mi,4)}, {vr(f+8+4*i,4)}, {'0' if s == 0 else vr(a,4)}")
            return
        u, nt = i >> 1, i & 1
        c = "0" if (s == 0 and u == 0) else vr(ACC + 16 * nt, 16)
        A(f"{MF32} {vr(ACC+16*nt,16)}, {vr(f+4*u,4)}, {vr(f+8+8*u+4*nt,4)}, {c}")

    for s in range(20):
        last = max(i for i, t in enumerate(issued) if t in (("X", s >> 1), ("W", s)))
        A(f"s_waitcnt vmcnt({len(issued) - 1 - last})\ns_barrier")
        if s == 0:
            stamp(1); cstamp(10)
        if s < 4:
            fst(7, 6 + s)
        fill = per[s - OPT["fill0"]] if 0 <= s - OPT["fill0"] < nf else []
        mfma1(s - 1, 0)
        reads(s)
        mfma1(s - 1, 1)
        if s >= 1 and s + 3 < 20:
            dmaW(s + 3)
        if s & 1 == 0:
            pass
        else:
            for x in fill[:1]:
                A(x)
        mfma1(s - 1, 2)
        if s >= 2 and s % 2 == 0 and s // 2 + 2 < 10:
            dmaX(s // 2 + 2)
        if s == 1:
            epoch_fix()
        if (OPT["gk"] or OPT["pre"] == 2) and s == OPT["hs"]:
            A(f"s_lshl_b32 s3, s2, 7\ns_lshl_b32 s67, s{S_W}, 3\ns_add_u32 s3, s3, s67\ns_add_u32 s3, s3, {F0C}")
            A(f"v_mov_b32 v118, s{S_E}\nv_mov_b32 v119, s{S_E+1}\ns_mov_b64 exec, 1\nbuffer_store_dwordx2 v[118:119], off, {S(WS)}, s3 sc1\ns_mov_b64 exec, -1")
            issued.append(("H", 0))
        for x in (fill[1:] if s & 1 else fill):
            A(x)
        mfma1(s - 1, 3)
        A("s_waitcnt lgkmcnt(0)")
    for i in range(4):
        mfma1(19, i)
    stamp(2); cstamp(11); fst(8, 0)
    if OPT["q16"]:
        A("s_nop 2")
        for p in range(2):
            for mi in range(2):
                d = 64 + 8 * p + 4 * mi
                for k in range(2):
                    a = ACC + 16 * mi + 4 * (2 * p + k)
                    A(f"v_pk_mul_f32 {vr(a,2)}, {vr(a,2)}, s[{sSC}:{sSC+1}]\nv_pk_mul_f32 {vr(a+2,2)}, {vr(a+2,2)}, s[{sSC}:{sSC+1}]")
                    A(f"v_cvt_pk_bf16_f32 v{d+2*k}, v{a}, v{a+1}\nv_cvt_pk_bf16_f32 v{d+2*k+1}, v{a+2}, v{a+3}")
                A(f"buffer_store_dwordx4 {vr(d,4)}, v10, {S(WS)}, s{sST0 + mi} offen offset:{256*p} sc1")
    else:
        A("s_nop 10")
    for nt in range(0 if OPT["q16"] else 2):
        for g in range(4):
            a = ACC + 16 * nt + 4 * g
            A(f"v_pk_mul_f32 {vr(a,2)}, {vr(a,2)}, s[{sSC}:{sSC+1}]\nv_pk_mul_f32 {vr(a+2,2)}, {vr(a+2,2)}, s[{sSC}:{sSC+1}]")
            d = 64 + 8 * nt + 2 * g
            A(f"v_cvt_pk_bf16_f32 v{d}, v{a}, v{a+1}\nv_cvt_pk_bf16_f32 v{d+1}, v{a+2}, v{a+3}")
            if g & 1:
                d -= 2
                A(f"s_nop 0\nv_permlane16_swap_b32 v{d}, v{d+2}\nv_permlane16_swap_b32 v{d+1}, v{d+3}")
                A(f"buffer_store_dwordx4 {vr(d,4)}, v10, {S(WS)}, s{sST0 + (g >> 1)} offen offset:{256*nt} sc1")
    fst(8, 1)
    for x in post:
        A(x)


def qkv_idle():
    A(f"L_QKV_IDLE:\ns_waitcnt lgkmcnt(0)\ns_load_dword s{S_E}, {WSP}, {EPOCH}\ns_mov_b32 s{WS+2}, {WS_USED}\ns_mov_b32 s{WS+3}, 0x20000")
    for x in att_setup(None, None):
        A(x)
    A("s_waitcnt lgkmcnt(0)")
    epoch_fix()
    if OPT["gk"] or OPT["pre"] == 2:
        A(f"s_lshl_b32 s34, s2, 7\ns_add_u32 s34, s34, {F0C}")
        flag_store(34, t=118)
    A("s_branch L_PUB")


def attention():
    Q = [8, 14]; O = [20, 36]; SS = [52, 68]; Kf = [84, 90]; Vf = [96, 104]; P = 112
    A("L_PUB:")
    for i in range(4):
        A(f"v_mov_b32 v{4+i}, {(0x3f80 if i % 2 == 0 else 0) if OPT['sp1'] else 0x3f803f80}")
    A(f"v_mov_b32 v2, s{S_E}\nv_mov_b32 v3, s{S_E+1}\nv_mov_b32 v8, {BADW}\nv_mov_b32 v9, 0")
    A("s_waitcnt vmcnt(0)")
    fst(8, 2)
    A("s_barrier")
    fst(8, 3)
    A(f"s_cmp_lg_u32 s{S_W}, 0\ns_cbranch_scc1 L_NOPUSH")
    A(f"buffer_store_dwordx2 v[2:3], v{vPush}, {S(WS)}, 0 offen sc1\ns_mov_b64 exec, 1\nbuffer_store_dwordx2 v[2:3], off, {S(WS)}, s{sF1} sc1\ns_mov_b64 exec, -1\nL_NOPUSH:")
    stamp(3)
    A(f"ds_write_b128 v{vOnes}, v[4:7]\nds_write_b32 v8, v9\nds_write_b32 v8, v9 offset:4")
    A(f"s_waitcnt lgkmcnt(0)\ns_cmp_lg_u32 s{S_W}, 1\ns_cbranch_scc1 L_NOPOLL")
    spoll([(68, 8, 0), (84, 8, 64), (44, 4, 128)], sPV1, need=sNEED)
    A("L_NOPOLL:\ns_barrier")
    stamp(4); fst(8, 4)

    def dma_static(st, m, blk=None):
        if m == 2:
            sk2 = uid("D3")
            A(f"s_cbranch_vccz {sk2}")
        A(f"s_add_u32 m0, s{sLd+m}, {(st % 3) * SLOT}\ns_add_u32 s68, s{sG+m}, {2048 * st if blk is None else blk}")
        dma(vD, WS, 68, "sc1")
        if m == 2:
            A(f"{sk2}:")

    def qload(x):
        A(f"buffer_load_dwordx2 {vr(Q[x],2)}, v{vQa+2*x}, {S(WS)}, s{sQ} offen sc1")
        A(f"buffer_load_dwordx2 {vr(Q[x]+2,2)}, v{vQa+2*x}, {S(WS)}, s{sQ+1} offen sc1")
        A(f"buffer_load_dwordx2 {vr(Q[x]+4,2)}, v{vQa+1+2*x}, {S(WS)}, s{sQ+2} offen sc1")

    if OPT["qord"]:
        A(f"s_cmp_lt_u32 s{S_W}, 4\ns_cselect_b64 vcc, -1, 0")
        for m in range(3):
            dma_static(0, m)
        qload(0); qload(1)
        flag_store(sH1, t=2, wave=7)
        A("s_branch L_ATT_GO\nL_ATT_MAIN:")
        A(f"s_cmp_lt_u32 s{S_W}, 4\ns_cselect_b64 vcc, -1, 0")
        for m in range(3):
            dma_static(0, m)
        A("L_ATT_GO:\ns_waitcnt vmcnt(0)\ns_barrier")
    else:
        qload(0); qload(1)
        A("L_ATT_MAIN:")
        A(f"s_cmp_lt_u32 s{S_W}, 4\ns_cselect_b64 vcc, -1, 0")
        for m in range(3):
            dma_static(0, m)
        flag_store(sH1, t=2, wave=7)
        A("s_waitcnt vmcnt(0)\ns_barrier")
    stamp(5); cstamp(8); fst(8, 5)

    def kreads(kl, off):
        A(f"ds_read_b64 {vr(kl,2)}, v{vK} offset:{off}\nds_read_b64 {vr(kl+2,2)}, v{vK} offset:{off+PS}\nds_read_b64 {vr(kl+4,2)}, v{vK1} offset:{off}")

    def vreads(vl, off):
        for j in range(4):
            A(f"ds_read_b64_tr_b16 {vr(vl+2*j,2)}, v{vV} offset:{off+64*j}")

    kreads(Kf[0], 0)
    vreads(Vf[0], 0)
    for m in range(2):
        dma_static(1, m)
    A("s_waitcnt lgkmcnt(4)")
    A(f"{MF32} {vr(SS[0],16)}, {vr(Kf[0],4)}, {vr(Q[0],4)}, 0\n{MF8} {vr(SS[0],16)}, {vr(Kf[0]+4,2)}, {vr(Q[0]+4,2)}, {vr(SS[0],16)}")
    dma_static(1, 2)
    A("s_nop 9")

    def tail_addr():
        A(f"s_lshl_b32 s64, s{S_W}, 12\ns_add_u32 s64, s64, {RED}\ns_xor_b32 s65, s{S_W}, 4\ns_lshl_b32 s65, s65, 12\ns_add_u32 s65, s65, {RED}")
        A(f"v_add_u32 v2, s64, v{vD}\nv_add_u32 v3, s65, v{vD}\ns_movk_i32 s69, 0x100\nv_cmp_gt_u32 s[66:67], s69, v{vD}")
        A(f"v_lshrrev_b32 v4, 9, v{vD}\nv_bfe_u32 v5, v{vD}, 8, 1\nv_lshl_add_u32 v5, v5, 1, v4\nv_mul_u32_u24 v5, {PL}, v5\nv_add_u32 v5, v5, v{vTok}")
        A(f"v_mov_b32 v4, {OOB}\nv_cndmask_b32 v4, v4, v{vTok}, s[66:67]")

    def unit(st, x, kt):
        s = SS[x]; sn = SS[1 - x]
        nk = kt if x == 0 else kt + 1
        kf = Kf[nk & 1]; qn = Q[1 - x]
        pk = kt - 1 if x == 0 else kt
        vprev = Vf[pk & 1]; v = Vf[kt & 1]
        last = st == 7 and kt == 3
        e = lambda i: A(f"v_exp_f32 v{s+i}, v{s+i}")
        c = lambda i: A(f"v_cvt_pk_bf16_f32 v{P+i}, v{s+2*i}, v{s+2*i+1}")
        nxt_off = ((st + 1) % 3) * SLOT if kt == 3 else (st % 3) * SLOT + 256 * (kt + 1)
        if x == 1 and not last:
            A("s_waitcnt lgkmcnt(0)")
        if not (last and x == 1):
            A(f"{MF32} {vr(sn,16)}, {vr(kf,4)}, {vr(qn,4)}, 0")
        e(0); e(1); e(2); e(3)
        if not (last and x == 1):
            A(f"{MF8} {vr(sn,16)}, {vr(kf+4,2)}, {vr(qn+4,2)}, {vr(sn,16)}")
        c(0); c(1); e(4); e(5); e(6); e(7)
        if (st, x, kt) != (0, 0, 0):
            A(f"{MF32} {vr(O[1-x],16)}, {vr(vprev+4,4)}, {vr(P+4,4)}, {vr(O[1-x],16)}")
        if not last:
            if x == 0:
                if kt == 3:
                    A("s_waitcnt vmcnt(0)")
                    if st == 0:
                        fc = uid("FC")
                        A(f"s_cmp_lg_u32 s{sChk}, 0\ns_cbranch_scc1 {fc}")
                        A(f"v_cmp_ne_u64 s[64:65], {EP}, v[2:3]\nv_cmp_ne_u64 s[66:67], {EP}, v[4:5]\ns_or_b64 s[64:65], s[64:65], s[66:67]\ns_cbranch_scc0 {fc}")
                        poll([vF6, vF7], t=2)
                        A(f"s_mov_b64 vcc, -1\n{fc}:")
                    A("s_barrier")
                kreads(Kf[(kt + 1) & 1], nxt_off)
            else:
                vreads(Vf[(kt + 1) & 1], nxt_off)
        site = {(1, 3): (0, st + 2), (0, 0): (1, st + 1), (1, 0): (2, st + 1)}.get((x, kt))
        if site and 2 <= site[1] < 8:
            dma_static(site[1], site[0])
        if st == OPT["g2s"] - 1 and 2 * kt + x == OPT["g2q"]:
            flag_store(sH2, t=6, wave=7)
        if (st, x, kt) == (1, 1, 1):
            tail_addr()
        if (st, x, kt) == (0, 0, 2):
            nf = uid("NF")
            A(f"s_cmp_lg_u32 s{sChk}, 0\ns_cbranch_scc1 {nf}")
            A(f"buffer_load_dwordx2 v[2:3], v{vF6}, {S(WS)}, 0 offen sc1\nbuffer_load_dwordx2 v[4:5], v{vF7}, {S(WS)}, 0 offen sc1\n{nf}:")
        if OPT["tog"] == 1:
            A(f"s_setprio {1 - x}")
        if OPT["tog"] >= 2:
            gu = 8 * st + 2 * kt + x
            top = 3 if OPT["tog"] == 2 else 2
            if gu < 6:
                lv = {0: top, 1: top - 1, 3: top - 2, 5: top - 3}.get(gu) if top == 3 else {0: 2, 2: 1, 4: 0}.get(gu)
            elif gu >= 54:
                lv = {54: 3, 57: 2, 60: 1, 62: 0}.get(gu) if top == 3 else {54: 2, 58: 1, 61: 0}.get(gu)
            else:
                ph = (gu - 6) % 8
                lv = {0: 3, 2: 2, 4: 1, 6: 0}.get(ph) if top == 3 else {0: 2, 3: 1, 6: 0}.get(ph)
            if lv is not None:
                A(f"s_setprio {lv}")
        c(2); c(3); e(8); e(9); e(10); e(11)
        if x == 0:
            A(f"s_waitcnt lgkmcnt({0 if last else 3})")
        A(f"{MF32} {vr(O[x],16)}, {vr(v,4)}, {vr(P,4)}, {'0' if (st, kt) == (0, 0) else vr(O[x],16)}")
        c(4); c(5); e(12); e(13); e(14); e(15); c(6); c(7)

    for st in range(8):
        fst(10, st); rst(11, st)
        for kt in range(4):
            unit(st, 0, kt)
            unit(st, 1, kt)
    A(f"s_setprio 3\ns_nop 0\n{MF32} {vr(O[1],16)}, {vr(Vf[1]+4,4)}, {vr(P+4,4)}, {vr(O[1],16)}")
    stamp(6); cstamp(9); fst(6, 0); fst(10, 8); rst(11, 8)
    assert RED + 8 * 4096 <= BADW
    o = O[0]
    lo, hi = f2u(2.0 ** -60), f2u(2.0 ** 60)
    if OPT["force_fb"]:
        hi = f2u(2.0 ** -59)
    A(f"v_mov_b32 v70, 0\nv_mov_b32 v71, 0\nv_mov_b32 v80, {lo}\nv_mov_b32 v81, {hi}\nv_mov_b32 v83, {BADW}")
    A(f"v_lshlrev_b32 v82, 4, v{vD}\nv_mov_b32 v84, s{S_E}\nv_mov_b32 v85, s{S_E+1}\ns_nop 3")
    for g in range(4):
        A(f"ds_write_b128 v2, {vr(O[1]+4*g,4)} offset:{1024*g}")
    fst(6, 1)
    A("s_waitcnt lgkmcnt(0)\ns_barrier")
    fst(6, 2)
    for g in (3, 0, 1, 2):
        A(f"ds_read_b128 {vr(52+4*g,4)}, v3 offset:{1024*g}")
    A(f"s_waitcnt lgkmcnt(3)\nv_add_f32 v{o+12}, v{o+12}, v{52+12}\nv_rcp_f32 v68, v{o+12}")
    for g in range(3):
        a = o + 4 * g
        A(f"s_waitcnt lgkmcnt({2-g})\nv_pk_add_f32 {vr(a,2)}, {vr(a,2)}, {vr(52+4*g,2)}\nv_pk_add_f32 {vr(a+2,2)}, {vr(a+2,2)}, {vr(54+4*g,2)}")
        A(f"v_pk_mul_f32 {vr(a,2)}, {vr(a,2)}, v[68:69] op_sel_hi:[1,0]\nv_pk_mul_f32 {vr(a+2,2)}, {vr(a+2,2)}, v[68:69] op_sel_hi:[1,0]")
        A(f"v_cvt_pk_bf16_f32 v{72+2*g}, v{a}, v{a+1}\nv_cvt_pk_bf16_f32 v{73+2*g}, v{a+2}, v{a+3}")
        if g == 1:
            A(f"s_nop 0\nv_permlane16_swap_b32 v72, v74\nv_permlane16_swap_b32 v73, v75")
            A(f"buffer_store_dwordx4 v[72:75], v5, {S(WS)}, s{sO0} offen sc1")
        if g == 2:
            A(f"v_mov_b32 v78, v76\nv_mov_b32 v79, v77\ns_nop 0\nv_permlane16_swap_b32 v76, v78\nv_permlane16_swap_b32 v77, v79")
            A(f"buffer_store_dwordx4 v[76:79], v4, {S(WS)}, s{sO1} offen sc1")
    for i in range(0, 12, 2):
        A(f"v_pk_fma_f32 v[70:71], {vr(o+i,2)}, 0, v[70:71] op_sel_hi:[1,0,1]")
    A(f"v_cmp_u_f32 vcc, v70, v71\nv_cmp_ngt_f32 s[66:67], v{o+12}, v80\ns_or_b64 vcc, vcc, s[66:67]\nv_cmp_nlt_f32 s[66:67], v{o+12}, v81\ns_or_b64 vcc, vcc, s[66:67]")
    A(f"s_cbranch_vccz L_NOBAD\nv_mov_b32 v81, 1\nds_write_b32 v83, v81\nL_NOBAD:")
    fst(6, 3)
    if OPT["lastw"]:
        A("s_waitcnt lgkmcnt(0)\ns_barrier\nds_read_b32 v81, v83\nv_mov_b32 v86, 1\ns_waitcnt lgkmcnt(0)\nv_readfirstlane_b32 s64, v81")
        A(f"s_cmp_gt_u32 s64, s{sPass}\ns_cbranch_scc1 L_ATT_FB0")
        A("s_mov_b64 exec, 1\ns_waitcnt vmcnt(0)")
        fst(6, 4)
        A("ds_add_rtn_u32 v86, v83, v86 offset:4\ns_waitcnt lgkmcnt(0)\nv_readfirstlane_b32 s64, v86\ns_mov_b64 exec, -1")
        fst(6, 5)
        A(f"s_cmp_lg_u32 s64, 7\ns_cbranch_scc1 L_A_DONE\ns_mov_b32 exec_hi, 0\nbuffer_store_dwordx2 v[84:85], v82, {S(WS)}, s{sPV4} offen sc1\ns_mov_b64 exec, -1")
    else:
        A("s_waitcnt lgkmcnt(0)\ns_barrier\nds_read_b32 v81, v83\ns_waitcnt vmcnt(0) lgkmcnt(0)\nv_readfirstlane_b32 s64, v81")
        fst(6, 4)
        A("s_barrier")
        fst(6, 5)
        A(f"s_cmp_gt_u32 s64, s{sPass}\ns_cbranch_scc1 L_ATT_FB")
        A(f"s_cmp_lg_u32 s{S_W}, 0\ns_cbranch_scc1 L_A_DONE\ns_mov_b32 exec_hi, 0\nbuffer_store_dwordx2 v[84:85], v82, {S(WS)}, s{sPV4} offen sc1\ns_mov_b64 exec, -1")
    A("L_A_DONE:")
    stamp(7)
    dump_stamps(12, "A")
    A("s_endpgm")

    A("L_ATT_FB0:\ns_waitcnt vmcnt(0)\nL_ATT_FB:")
    A(f"s_mov_b32 s{sPass}, 1\ns_mov_b32 s{sChk}, 1\ns_mov_b32 s34, 0\ns_cmp_lt_u32 s{S_W}, 4\ns_cselect_b64 vcc, -1, 0")
    A("v_mov_b32 v20, 0xff800000\nv_mov_b32 v21, 0xff800000")
    A("L_FB_LOOP:\ns_barrier")
    for m in range(3):
        dma_static(0, m, "s34")
    A("s_waitcnt vmcnt(0)\ns_barrier")
    for kt in range(4):
        kreads(Kf[0], 256 * kt)
        A("s_waitcnt lgkmcnt(0)")
        for x in range(2):
            A(f"{MF32} {vr(SS[x],16)}, {vr(Kf[0],4)}, {vr(Q[x],4)}, 0\n{MF8} {vr(SS[x],16)}, {vr(Kf[0]+4,2)}, {vr(Q[x]+4,2)}, {vr(SS[x],16)}")
        A("s_nop 15")
        for x in range(2):
            for i in range(0, 16, 2):
                A(f"v_max3_f32 v{20+x}, v{SS[x]+i}, v{SS[x]+i+1}, v{20+x}")
    A("s_add_u32 s34, s34, 2048\ns_cmp_lt_u32 s34, 16384\ns_cbranch_scc1 L_FB_LOOP")
    for x in range(2):
        A(f"v_mov_b32 v22, v{20+x}\ns_nop 1\nv_permlane32_swap_b32 v{20+x}, v22\nv_max_f32 v{20+x}, v{20+x}, v22")
    A(f"s_barrier\nds_write_b64 v2, v[20:21]\ns_waitcnt lgkmcnt(0)\ns_barrier\nds_read_b64 v[22:23], v3\ns_waitcnt lgkmcnt(0)")
    A("v_max_f32 v20, v20, v23\nv_max_f32 v21, v21, v22\nv_cmp_le_u32 vcc, 32, v1")
    for x in range(2):
        A(f"v_sub_f32 v24, 0, v{20+x}\nv_and_b32 v25, 0xffff0000, v24\nv_sub_f32 v24, v24, v25\nv_and_b32 v26, 0xffff0000, v24\nv_sub_f32 v24, v24, v26")
        A(f"v_lshrrev_b32 v25, 16, v25\nv_or_b32 v25, v25, v26\nv_lshrrev_b32 v24, 16, v24")
        A(f"v_cndmask_b32 v{Q[x]+4}, v{Q[x]+4}, v25, vcc\nv_cndmask_b32 v{Q[x]+5}, v{Q[x]+5}, v24, vcc")
    A(f"s_lshr_b32 s64, s{S_W}, 1\ns_min_u32 s64, s64, 2\ns_mul_i32 s64, s64, {SLOT}\ns_and_b32 s65, s{S_W}, 1\ns_lshl_b32 s65, s65, 10\ns_add_u32 s64, s64, s65\ns_add_u32 s64, s64, {10*PS}")
    A(f"v_add_u32 v24, s64, v{vD}")
    for i in range(4):
        A(f"v_mov_b32 v{28+i}, 0x3f803f80")
    A("s_barrier\nds_write_b128 v24, v[28:31]\ns_waitcnt lgkmcnt(0)\ns_branch L_ATT_MAIN")


def cmul(d, a, b, t):
    A(f"v_pk_mul_f32 {vr(t,2)}, {vr(a,2)}, {vr(b,2)} op_sel:[0,0] op_sel_hi:[1,0]")
    A(f"v_pk_fma_f32 {vr(d,2)}, {vr(a,2)}, {vr(b,2)}, {vr(t,2)} op_sel:[1,1,0] op_sel_hi:[0,1,1] neg_lo:[0,1,0]")


def cfma(d, a, b, c, t):
    A(f"v_pk_fma_f32 {vr(t,2)}, {vr(a,2)}, {vr(b,2)}, {vr(c,2)} op_sel:[0,0,0] op_sel_hi:[1,0,1]")
    A(f"v_pk_fma_f32 {vr(d,2)}, {vr(a,2)}, {vr(b,2)}, {vr(t,2)} op_sel:[1,1,0] op_sel_hi:[0,1,1] neg_lo:[0,1,0]")


def gather4(src, dst):
    if OPT["lscan"]:
        A(f"ds_write_b64 v0, {vr(src,2)}")
        for q in range(4):
            A(f"ds_read_b64 {vr(dst+2*q,2)}, v17 offset:{128*q}")
        A("s_waitcnt lgkmcnt(0)")
        return
    for c in range(2):
        A(f"v_mov_b32 v{dst+c}, v{src+c}\nv_mov_b32 v{dst+2+c}, v{src+c}")
    A("s_nop 0")
    for c in range(2):
        A(f"v_permlane16_swap_b32 v{dst+c}, v{dst+2+c}")
    for c in range(4):
        A(f"v_mov_b32 v{dst+4+c}, v{dst+c}")
    for c in range(4):
        A(f"v_permlane32_swap_b32 v{dst+c}, v{dst+4+c}")


sTC, sNB, sK, sROT, sCT = 41, 42, 43, 37, 36


def hoist():
    A(f"v_and_b32 v26, 15, v1\nv_add_u32 v123, s{sCT}, v26\nv_lshlrev_b32 v123, 3, v123")
    A(f"v_lshrrev_b32 v27, 4, v1\nv_mul_u32_u24 v28, {8*640}, v27\ns_sub_u32 s65, 32, s{sTC}\ns_mul_i32 s65, s65, 640\nv_add3_u32 v124, v123, v28, s65")
    A(f"v_mul_u32_u24 v28, 40960, v27\nv_lshl_add_u32 v125, v16, 4, v28")
    A(f"s_lshl_b32 s65, s{S_W}, 6\nv_add_u32 v28, s65, v1\nv_mul_u32_u24 v29, 6554, v28\nv_lshrrev_b32 v29, 16, v29\nv_mul_u32_u24 v30, 10, v29\nv_sub_u32 v30, v28, v30")
    A(f"v_and_b32 v28, 0x78, v29\nv_and_b32 v31, 1, v29\nv_lshl_add_u32 v28, v31, 2, v28\nv_bfe_u32 v31, v29, 1, 2\nv_add_u32 v28, v28, v31")
    A(f"v_mul_u32_u24 v28, 1280, v28\nv_lshl_add_u32 v28, v30, 4, v28\ns_mul_i32 s65, s{sNB}, 160\nv_add_u32 v117, s65, v28")
    A(f"v_lshrrev_b32 v28, 5, v1\nv_mul_u32_u24 v28, {PL}, v28\nv_and_b32 v29, 31, v1\nv_lshlrev_b32 v29, 4, v29\ns_and_b32 s65, s{S_W}, 1\ns_lshl_b32 s65, s65, 7\nv_xor_b32 v29, s65, v29\nv_add_u32 v119, v28, v29")
    A("v_bfe_u32 v30, v1, 2, 2\nv_and_b32 v31, 3, v1")
    sm, dn = uid("HS"), uid("HD")
    A(f"s_cmp_ge_u32 s{S_W}, 4\ns_cbranch_scc1 {sm}")
    for big in (True, False):
        if big:
            A(f"v_lshrrev_b32 v27, 5, v1\nv_and_b32 v26, 31, v1\ns_lshr_b32 s65, s{S_W}, 1\ns_and_b32 s66, s{S_W}, 1")
            A(f"s_lshl_b32 s67, s65, 5\ns_lshl_b32 s68, s66, 5")
            A(f"s_lshl_b32 s69, s65, 2\nv_bfe_u32 v28, v1, 4, 1\nv_lshlrev_b32 v28, 1, v28\nv_lshrrev_b32 v29, 1, v31\nv_add3_u32 v28, v28, v29, s69")
        else:
            A(f"{sm}:\ns_sub_u32 s65, s{S_W}, 4\ns_lshl_b32 s67, s65, 4\ns_mov_b32 s68, 64")
            A(f"s_lshl_b32 s69, s65, 1\nv_lshrrev_b32 v28, 1, v31\nv_add_u32 v28, s69, v28")
        A(f"v_mul_u32_u24 v28, 1088, v28\nv_lshl_add_u32 v29, v27, 3, v30\nv_lshl_add_u32 v28, v29, 4, v28\nv_and_b32 v29, 1, v31\nv_lshl_add_u32 v112, v29, 3, v28")
        A(f"v_add_u32 v28, s68, v26\nv_lshlrev_b32 v28, 7, v28\nv_add_u32 v28, 8704, v28\nv_bfe_u32 v29, v26, 1, 3\nv_xor_b32 v29, v29, v27\nv_lshl_add_u32 v113, v29, 4, v28")
        A(f"s_lshl_b32 s69, s{sTC}, 6\ns_add_u32 s69, s69, s67\nv_lshl_add_u32 v28, v27, 2, s69\ns_mul_i32 s69, s{sNB}, 80\ns_add_u32 s69, s69, s68\nv_add_u32 v29, s69, v26")
        A("v_mul_u32_u24 v114, 1280, v28\nv_lshl_add_u32 v114, v29, 1, v114\nv_mul_u32_u24 v115, 5120, v28\nv_lshl_add_u32 v115, v29, 2, v115\nv_lshlrev_b32 v126, 1, v29")
        A("v_lshlrev_b32 v28, 1, v30\nv_lshl_add_u32 v28, v27, 3, v28\nv_mul_u32_u24 v28, 160, v28\nv_lshl_add_u32 v28, v31, 3, v28")
        if big:
            A("v_bfe_u32 v29, v1, 4, 1\nv_lshl_add_u32 v28, v29, 5, v28\ns_lshl_b32 s69, s66, 6\nv_add_u32 v116, s69, v28")
            A("v_add_u32 v28, s67, v26\nv_lshlrev_b32 v28, 3, v28\nv_lshlrev_b32 v29, 7, v27\nv_xor_b32 v28, v28, v29\nv_lshl_add_u32 v28, v27, 10, v28\ns_mul_i32 s69, s65, 40960\nv_add_u32 v118, s69, v28")
            A(f"v_lshlrev_b32 v122, 4, v1\nv_mov_b32 v127, 0\nv_mov_b32 v26, 0\nv_mov_b32 v27, 0\nv_mov_b32 v28, 0\ns_branch {dn}")
        else:
            A("v_add_u32 v116, 128, v28")
            A("v_add_u32 v28, s67, v26\nv_lshlrev_b32 v28, 3, v28\nv_and_b32 v29, 1, v27\nv_lshlrev_b32 v29, 7, v29\nv_xor_b32 v28, v28, v29\nv_lshl_add_u32 v118, v27, 10, v28")
            A(f"v_lshrrev_b32 v28, 3, v1\ns_mul_i32 s69, s{sNB}, 80\ns_lshl_b32 s66, s65, 3\ns_add_u32 s69, s69, s66\nv_add_u32 v28, s69, v28\nv_mul_u32_u24 v28, 1280, v28")
            A(f"v_and_b32 v29, 7, v1\nv_xor_b32 v29, v29, v27\ns_and_b32 s69, s65, 1\ns_lshl_b32 s69, s69, 2\nv_xor_b32 v29, s69, v29\nv_lshl_add_u32 v122, v29, 4, v28")
            A("v_xor_b32 v127, 64, v113\nv_add_u32 v26, 40960, v122\nv_add_u32 v27, 81920, v122\nv_add_u32 v28, 40960, v118")
    A(f"{dn}:")


def wo_src(d, sj, t):
    A(f"v_add_u32 v{t}, s{sj}, v1\nv_mul_u32_u24 v{t+1}, 6554, v{t}\nv_lshrrev_b32 v{t+1}, 16, v{t+1}\nv_mul_u32_u24 v{t+2}, 10, v{t+1}\nv_sub_u32 v{t+2}, v{t}, v{t+2}")
    A(f"v_and_b32 v{t}, 0x78, v{t+1}\nv_and_b32 v{t+3}, 1, v{t+1}\nv_lshl_add_u32 v{t}, v{t+3}, 2, v{t}\nv_bfe_u32 v{t+3}, v{t+1}, 1, 2\nv_add_u32 v{t}, v{t}, v{t+3}")
    A(f"v_mul_u32_u24 v{t}, 1280, v{t}\nv_lshl_add_u32 v{t}, v{t+2}, 4, v{t}\ns_mul_i32 s69, s{sNB}, 160\nv_add_u32 v{d}, s69, v{t}")


def role_b():
    A("L_ROLE_B:\ns_cmp_ge_u32 s2, 512\ns_cbranch_scc1 L_END")
    if OPT.get("nob"):
        A("s_endpgm")
    stamp(0)
    A(f"s_load_dwordx16 s[8:23], s[0:1], 0\ns_load_dwordx8 s[24:31], s[0:1], 64\ns_load_dwordx2 s[{P_OUT}:{P_OUT+1}], s[0:1], 96\ns_load_dwordx2 s[{WS}:{WS+1}], s[0:1], 112")
    A(f"v_lshrrev_b32 v2, 6, v0\nv_and_b32 v1, 63, v0\nv_readfirstlane_b32 s{S_W}, v2")
    bhi()
    if OPT["prea"]:
        A(f"s_cmp_ge_u32 s{S_W}, 4\ns_cbranch_scc1 L_NOPREA\ns_and_b32 s64, s{S_W}, 2\ns_lshl_b32 s64, s64, 2\ns_load_dwordx2 s[{R3}:{R3+1}], s[0:1], s64")
        A(f"s_sub_u32 s66, s2, 256\ns_lshl_b32 s66, s66, 1\ns_and_b32 s67, s{S_W}, 1\ns_add_u32 s66, s66, s67\ns_cmp_lt_u32 s{S_W}, 2\ns_cselect_b32 s67, 40, 38\ns_mul_i32 s66, s66, s67\ns_lshl_b32 s66, s66, 7")
        A(f"s_mov_b32 s{R3+2}, 2457600\ns_cmp_lt_u32 s{S_W}, 2\ns_cselect_b32 s{R3+2}, 2621440, s{R3+2}\ns_mov_b32 s{R3+3}, 0x20000\nv_min_u32 v32, 39, v1\nv_lshlrev_b32 v32, 7, v32")
        if OPT["prea"] == 1:
            A(f"s_waitcnt lgkmcnt(0)\nbuffer_load_dword v33, v32, {S(R3)}, s66 offen")
        A(f"s_mov_b32 s3, s66\nL_NOPREA:")
    if OPT["cpre"]:
        cp = uid("CP")
        A(f"s_cmp_lg_u32 s{S_W}, 7\ns_cbranch_scc1 {cp}\ns_getpc_b64 s[64:65]\nL_PC:\ns_sub_u32 s64, s64, L_PC-{NAME}_kernel\ns_subb_u32 s65, s65, 0")
        A("s_bfe_u32 s66, s2, 0x50003\ns_lshl_b32 s66, s66, 11\nv_and_b32 v2, 15, v1\nv_lshlrev_b32 v2, 7, v2\nv_add_u32 v2, s66, v2")
        A(f"v_min_u32 v2, L_END-{NAME}_kernel, v2\nv_mov_b32 v3, s65\nv_add_co_u32 v2, vcc, s64, v2\ns_nop 1\nv_addc_co_u32 v3, vcc, 0, v3, vcc\nglobal_load_dword v4, v[2:3], off\n{cp}:")
    A(f"s_and_b32 s{sTC}, s2, 3\ns_lshl_b32 s{sTC}, s{sTC}, 3\ns_bfe_u32 s64, s2, 0x30003\ns_add_u32 s{sTC}, s{sTC}, s64")
    A(f"s_and_b32 s{sNB}, s2, 4\ns_bfe_u32 s64, s2, 0x20006\ns_add_u32 s{sNB}, s{sNB}, s64")
    A(f"s_mul_i32 s{sROT}, s{sNB}, 3\ns_add_u32 s{sROT}, s{sROT}, s{sTC}")
    A(f"s_mul_i32 s64, s{sROT}, 205\ns_lshr_b32 s64, s64, 11\ns_mul_i32 s64, s64, 10\ns_sub_u32 s{sROT}, s{sROT}, s64")
    if not OPT["brot"]:
        A(f"s_mov_b32 s{sROT}, 0")
    if OPT["pre"]:
        A(f"s_lshl_b32 s64, s{S_W}, 3\ns_add_u32 s64, s64, 48\ns_cmp_eq_u32 s{S_W}, 4\ns_cselect_b32 s64, 16, s64\ns_cmp_gt_u32 s{S_W}, 4\ns_cselect_b32 s64, 24, s64")
        A(f"s_load_dwordx2 s[{R3}:{R3+1}], s[0:1], s64\ns_cselect_b32 s{R3+2}, 2621440, 0\ns_cselect_b32 s65, 39, 24\ns_max_u32 s{R3+2}, s{R3+2}, 819200\ns_mov_b32 s{R3+3}, 0x20000")
        A(f"v_min_u32 v32, s65, v1\nv_lshlrev_b32 v32, 7, v32\ns_sub_u32 s66, s2, 256\ns_mul_i32 s38, s66, 3200\ns_mul_i32 s66, s66, 10240\ns_sub_u32 s67, s{S_W}, 5\ns_mul_i32 s67, s67, 5120\ns_add_u32 s66, s66, s67")
        A(f"s_cmp_gt_u32 s{S_W}, 4\ns_cselect_b32 s38, s66, s38\ns_cmp_eq_u32 s{S_W}, 7\ns_cselect_b32 s39, {OOB}, 0\nv_or_b32 v32, s39, v32")
    A(f"s_mov_b32 s{WS+2}, {WS_USED}\ns_mov_b32 s{WS+3}, 0x20000\ns_waitcnt lgkmcnt(0)\ns_load_dword s{S_E}, {WSP}, {EPOCH}")
    if OPT["pre"] == 1:
        A(f"buffer_load_dword v33, v32, {S(R3)}, s38 offen")
    MU, CF, MU16, PW, LAM, LAM8 = 2, 4, 6, 8, 10, 12
    A(f"s_min_u32 s{sCT}, s{S_W}, 4\ns_lshl_b32 s{sCT}, s{sCT}, 4\ns_mul_i32 s64, s{sNB}, 80\ns_add_u32 s64, s64, s{sCT}")
    A(f"v_and_b32 v16, 15, v1\nv_add_u32 v16, s64, v16\nv_lshlrev_b32 v21, 1, v16")
    srd(R0, P_LRE, 1280); srd(R1, P_LIM, 1280); srd(R2, P_LDT, 1280)
    A(f"buffer_load_ushort v22, v21, {S(R0)}, 0 offen\nbuffer_load_ushort v23, v21, {S(R1)}, 0 offen\nbuffer_load_ushort v24, v21, {S(R2)}, 0 offen")
    def prea_go(n):
        if OPT["prea"] == n:
            A(f"s_cmp_ge_u32 s{S_W}, 4\ns_cbranch_scc1 L_NOPREB\nbuffer_load_dword v33, v32, {S(R3)}, s3 offen\nL_NOPREB:")

    if OPT["prea"] == 4:
        A("s_waitcnt lgkmcnt(0)")
        prea_go(4)
    prea_go(2)
    A("s_waitcnt vmcnt(0) lgkmcnt(0)")
    prea_go(3)
    epoch_fix()
    LOG2E = f2u(math.log2(math.e))
    A("v_lshlrev_b32 v22, 16, v22\nv_lshlrev_b32 v23, 16, v23\nv_lshlrev_b32 v24, 16, v24")
    A(f"v_mul_f32 v24, {LOG2E}, v24\nv_exp_f32 v24, v24\ns_nop 0\nv_cvt_pk_bf16_f32 v24, v24, v24\nv_lshlrev_b32 v24, 16, v24")
    A(f"v_mul_f32 v25, v24, v22\nv_mul_f32 v26, v24, v23\nv_mul_f32 v25, {LOG2E}, v25\nv_exp_f32 v25, v25")
    A(f"v_mul_f32 v26, 0.15915494, v26\nv_fract_f32 v26, v26\nv_cos_f32 v27, v26\nv_sin_f32 v28, v26\ns_nop 0")
    A(f"v_mul_f32 v{MU}, v25, v27\nv_mul_f32 v28, v25, v28\nv_sub_f32 v{MU+1}, 0, v28")
    A(f"v_add_f32 v27, -1.0, v{MU}")
    A("v_mul_f32 v25, v22, v22\nv_fmac_f32 v25, v23, v23\nv_rcp_f32 v25, v25")
    A("v_mul_f32 v26, v27, v22\nv_fmac_f32 v26, v28, v23\nv_mul_f32 v29, v28, v22\nv_fma_f32 v29, -v27, v23, v29")
    A(f"v_add_f32 v25, v25, v25\nv_mul_f32 v{CF}, v26, v25\nv_mul_f32 v29, v29, v25\nv_sub_f32 v{CF+1}, 0, v29")
    cmul(MU16, MU, MU, 22)
    for _ in range(3):
        cmul(MU16, MU16, MU16, 22)
    cmul(24, MU16, MU16, 22)
    cmul(26, 24, MU16, 22)
    cmul(LAM, 24, 24, 22)
    cmul(LAM8, LAM, LAM, 22)
    cmul(LAM8, LAM8, LAM8, 22)
    cmul(LAM8, LAM8, LAM8, 22)
    A("v_lshrrev_b32 v28, 4, v1")
    A(f"v_cmp_eq_u32 s[96:97], 1, v28\nv_cmp_eq_u32 s[98:99], 2, v28\nv_cmp_eq_u32 s[100:101], 3, v28")
    A(f"v_mov_b32 v{PW}, 1.0\nv_mov_b32 v{PW+1}, 0")
    for src, m in ((MU16, 96), (24, 98), (26, 100)):
        for c in range(2):
            A(f"v_cndmask_b32 v{PW+c}, v{PW+c}, v{src+c}, s[{m}:{m+1}]")
    if OPT["pre"] == 3:
        A(f"buffer_load_dword v33, v32, {S(R3)}, s38 offen")
    if OPT["pre"] == 2:
        A(f"s_cmp_lg_u32 s{S_W}, 0\ns_cbranch_scc1 L_NOH0\ns_mov_b32 s39, s64\ns_sub_u32 s66, s2, 256\ns_lshl_b32 s66, s66, 7\ns_add_u32 s66, s66, {F0C}")
        spoll([(8, 1, 0)], 66)
        A(f"s_mov_b32 s64, s39\nL_NOH0:\ns_barrier\nbuffer_load_dword v33, v32, {S(R3)}, s38 offen")
    vS0, vRA, vRB = 14, 18, 22
    srd(R0, P_BX, 2621440); srd(R1, P_BRE, 819200); srd(R2, P_BIM, 819200)
    hoist()
    A(f"s_lshl_b32 s{sK}, s{sROT}, 7")
    A("v_lshrrev_b32 v30, 4, v1\nv_and_b32 v31, 7, v1\nv_xor_b32 v31, v31, v30\nv_lshlrev_b32 v31, 4, v31")
    A(f"v_and_b32 v30, 31, v1\nv_lshlrev_b32 v30, 7, v30\nv_lshrrev_b32 v17, 5, v1\nv_bfe_u32 v29, v1, 1, 3\nv_xor_b32 v29, v17, v29\nv_lshl_add_u32 v{vRA}, v29, 4, v30")

    def scan_addr():
        A(f"s_mul_i32 s66, s{sCT}, 576\ns_add_u32 s66, s66, 20480\ns_lshl_b32 s67, s{sCT}, 5\ns_add_u32 s67, s67, 66560")
        A(f"v_and_b32 v0, 15, v1\nv_lshl_add_u32 v29, v17, 5, v0\nv_mul_u32_u24 v29, 144, v29\nv_bfe_u32 v30, v1, 4, 1\nv_lshl_add_u32 v29, v30, 2, v29\nv_add_u32 v29, s66, v29\nv_add_u32 v30, 2304, v29")
        A(f"v_mul_u32_u24 v31, 144, v1\nv_add_u32 v31, s66, v31\nv_lshl_add_u32 v17, v0, 3, s67\nv_lshl_add_u32 v0, v1, 3, s67")

    def early_addr():
        if not OPT["wearly"]:
            return
        A(f"s_cmp_eq_u32 s{S_W}, 6\ns_cselect_b32 s34, 1, 4\ns_cselect_b32 s35, 2, 0\ns_cmp_eq_u32 s{S_W}, 7\ns_cselect_b32 s34, 3, s34")
        for k in range(2):
            A(f"s_lshl_b32 s68, s{34+k}, 6")
            wo_src(48 + k, 68, 50)
            A(f"s_lshl_b32 s{34+k}, s{34+k}, 10")

    def touch2():
        t1, t2 = uid("U1"), uid("U2")
        if OPT["wearly"]:
            srd(R1, P_WO, 819200)
            for k in range(2):
                if k:
                    A(f"s_cmp_eq_u32 s{S_W}, 7\ns_cbranch_scc1 {t1}")
                for m in range(16):
                    A(f"s_add_u32 m0, s{34+k}, {5120*m}\ns_mov_b32 s64, {32*m*1280}")
                    dma(48 + k, R1, 64)
        else:
            A(f"s_cmp_eq_u32 s{S_W}, 7\ns_cbranch_scc1 {t1}")
        if OPT["c1"] >= 0 and not OPT["cu"]:
            A(f"{t1}:")
            return
        A(f"s_and_b32 s66, s{sTC}, 7\ns_mul_i32 s39, s66, 10\ns_mul_i32 s68, s{sNB}, 80\ns_add_u32 s39, s39, s68\ns_mul_i32 s39, s39, 1280")
        A(f"s_cmp_eq_u32 s{S_W}, 5\ns_cselect_b32 s{R1}, s{P_CRE}, s{P_CIM}\ns_cselect_b32 s{R1+1}, s{P_CRE+1}, s{P_CIM+1}")
        A(f"v_lshlrev_b32 v66, 7, v1\nv_min_u32 v67, 35, v1\nv_lshlrev_b32 v67, 7, v67\nv_add_u32 v67, 8192, v67")
        A(f"buffer_load_dword v64, v66, {S(R1)}, s39 offen\nbuffer_load_dword v65, v67, {S(R1)}, s39 offen\ns_branch {t2}\n{t1}:")
        srd(R1, P_WO, 819200)
        A(f"s_and_b32 s66, s{sTC}, 7\ns_mul_i32 s66, s66, {16*1280}\ns_mul_i32 s67, s{sNB}, 160\ns_add_u32 s66, s66, s67\ns_add_u32 s66, s66, {512*1280}")
        A(f"v_bfe_u32 v66, v1, 1, 4\nv_mul_u32_u24 v66, 1280, v66\nv_and_b32 v67, 1, v1\nv_mul_u32_u24 v67, 156, v67\nv_add_u32 v66, v66, v67")
        A(f"buffer_load_dword v64, v66, {S(R1)}, s66 offen\n{t2}:")

    GK = OPT["gk"]

    def more(Sx):
        return Sx + 2 < 10 and not (GK and Sx < GK <= Sx + 2)

    def inflight(Sx):
        return 0 if Sx == 9 or (GK and Sx == GK - 1) else 1

    def gate(Sx, issue, poller):
        if GK and Sx == GK:
            if poller:
                A(f"s_cmp_lg_u32 s{S_W}, 4\ns_cbranch_scc1 L_NOGATE\ns_sub_u32 s66, s2, 256\ns_lshl_b32 s66, s66, 7\ns_add_u32 s66, s66, {F0}")
                spoll([(8, 1, 0)], 66)
                A("L_NOGATE:")
            A("s_barrier")
            issue(GK); issue(GK + 1)

    def advK():
        A(f"s_add_u32 s{sK}, s{sK}, 128\ns_cmp_eq_u32 s{sK}, 1280\ns_cselect_b32 s{sK}, 0, s{sK}")

    ACC, BF, AF = 32, 64, 80
    SH = 12288
    A(f"s_cmp_ge_u32 s{S_W}, 4\ns_cbranch_scc1 L_G1_AUX")
    A(f"v_lshrrev_b32 v30, 3, v1\nv_add_u32 v30, s64, v30\nv_mul_u32_u24 v30, 1280, v30\nv_add_u32 v{vS0}, v30, v31")
    A(f"v_xor_b32 v{vS0+1}, 64, v{vS0}\nv_add_u32 v{vS0+1}, 10240, v{vS0+1}")
    A(f"s_lshl_b32 s38, s{S_W}, 13\ns_add_u32 s38, s38, {3*SH}")
    for u in range(1, 4):
        A(f"v_xor_b32 v{vRA+u}, {32*u}, v{vRA}")
    for u in range(4):
        A(f"v_add_u32 v{vRB+u}, s38, v{vRA+u}")
    scan_addr()
    A(f"s_cmp_lg_u32 s{S_W}, 0\ns_cbranch_scc1 L_NOHINT\ns_sub_u32 s66, s2, 256\ns_lshl_b32 s66, s66, 7\ns_add_u32 s66, s66, {F0C if OPT['gk'] else F0}")
    spoll([(8, 1, 0)], 66)
    A("L_NOHINT:\ns_waitcnt vmcnt(0)\ns_barrier")
    stamp(1)
    A(f"s_setprio {3 if OPT['mlo'] else OPT['g1p']}\n;MLO_ON")

    def dmaB(Sx):
        for q in range(4):
            A(f"s_add_u32 m0, s38, {(Sx % 2) * 4096 + q * 1024}\ns_nop 0")
            dma(vS0 + (q & 1), R1 if q < 2 else R2, sK)
        advK()

    def g1_mm(Sx, u, tts=(0, 1)):
        for tt in tts:
            c = "0" if (Sx == 0 and u == 0) else vr(ACC + 16 * tt, 16)
            A(f"{MF32} {vr(ACC+16*tt,16)}, {vr(AF+8*u+4*tt,4)}, {vr(BF+4*u,4)}, {c}")

    dmaB(0); dmaB(1)
    for Sx in range(10):
        fst(1, Sx)
        gate(Sx, dmaB, False)
        A(f"s_waitcnt vmcnt({4 * inflight(Sx)})")
        for u in range(3):
            A(f"ds_read_b128 {vr(BF+4*u,4)}, v{vRB+u} offset:{(Sx % 2) * 4096}")
        A("s_barrier")
        if Sx:
            g1_mm(Sx - 1, 3, (0,))
        for u in range(3):
            for tt in range(2):
                A(f"ds_read_b128 {vr(AF+8*u+4*tt,4)}, v{vRA+u} offset:{(Sx % 3) * SH + 4096*tt}")
        if Sx:
            g1_mm(Sx - 1, 3, (1,))
        A(f"ds_read_b128 {vr(BF+12,4)}, v{vRB+3} offset:{(Sx % 2) * 4096}")
        for tt in range(2):
            A(f"ds_read_b128 {vr(AF+24+4*tt,4)}, v{vRA+3} offset:{(Sx % 3) * SH + 4096*tt}")
        A("s_waitcnt lgkmcnt(7)")
        g1_mm(Sx, 0)
        A("s_waitcnt lgkmcnt(5)")
        g1_mm(Sx, 1)
        A("s_waitcnt lgkmcnt(3)")
        g1_mm(Sx, 2)
        A("s_waitcnt lgkmcnt(0)")
        if more(Sx):
            dmaB(Sx + 2)
    g1_mm(9, 3)
    A(";MLO_OFF\ns_barrier\ns_nop 10\ns_branch L_SCAN")

    A("L_G1_AUX:")
    A(f"s_cmp_eq_u32 s{S_W}, 4\ns_cbranch_scc1 L_G1_LD\ns_cmp_eq_u32 s{S_W}, 7\ns_cbranch_scc1 L_G1_LD")
    A(f"v_lshrrev_b32 v30, 3, v1\nv_add_u32 v30, s64, v30\nv_mul_u32_u24 v30, 1280, v30\nv_add_u32 v{vS0}, v30, v31")
    A(f"v_xor_b32 v{vS0+1}, 64, v{vS0}\nv_add_u32 v{vS0+1}, 10240, v{vS0+1}")
    A(f"s_cmp_eq_u32 s{S_W}, 5\ns_cselect_b32 s{R3}, s{R1}, s{R2}\ns_cselect_b32 s{R3+1}, s{R1+1}, s{R2+1}\ns_mov_b32 s{R3+2}, 819200\ns_mov_b32 s{R3+3}, 0x20000")
    A(f"s_sub_u32 s38, s{S_W}, 5\ns_lshl_b32 s66, s38, 12\ns_lshl_b32 s38, s38, 11")
    for u in range(1, 4):
        A(f"v_xor_b32 v{vRA+u}, {32*u}, v{vRA}")
    for u in range(4):
        A(f"v_add_u32 v{vRB+u}, s66, v{vRA+u}")
    scan_addr()
    early_addr()
    A("s_waitcnt vmcnt(0)\ns_barrier")
    A(f"s_setprio {3 if OPT['mlo'] else OPT['g1p']}\n;MLO_ON")

    def dmaB4(Sx):
        for q in range(2):
            A(f"s_add_u32 m0, s38, {(Sx % 3) * SH + 8192 + q * 1024}\ns_nop 0")
            dma(vS0 + q, R3, sK)
        advK()

    dmaB4(0); dmaB4(1)
    for Sx in range(10):
        gate(Sx, dmaB4, False)
        A(f"s_waitcnt vmcnt({2 * inflight(Sx)})\ns_barrier")
        for u in range(4):
            A(f"ds_read_b128 {vr(BF+4*u,4)}, v{vRA+u} offset:{(Sx % 3) * SH + 8192}")
            A(f"ds_read_b128 {vr(AF+4*u,4)}, v{vRB+u} offset:{(Sx % 3) * SH}")
        for u in range(4):
            A(f"s_waitcnt lgkmcnt({6-2*u})")
            c = "0" if (Sx == 0 and u == 0) else vr(ACC, 16)
            A(f"{MF32} {vr(ACC,16)}, {vr(AF+4*u,4)}, {vr(BF+4*u,4)}, {c}")
        if more(Sx):
            dmaB4(Sx + 2)
    A(";MLO_OFF")
    if OPT["lscan"]:
        A(f"s_cmp_eq_u32 s{S_W}, 5\ns_cbranch_scc1 L_G1_RED\ns_barrier\ns_nop 8")
        for j in range(0, 16, 4):
            for p in range(2):
                A(f"ds_write2_b32 v{29+p}, v{ACC+j+p}, v{ACC+j+p+2} offset0:{16 + j} offset1:{18 + j}")
        A("s_waitcnt lgkmcnt(0)\ns_barrier")
        bhi()
        touch2()
        A("s_branch L_G1_AUX2")
    else:
        bhi()
        A(f"s_lshl_b32 s66, s{S_W}, 12\ns_add_u32 s66, s66, {69632 - 5*4096}\nv_lshlrev_b32 v30, 4, v1\nv_add_u32 v30, s66, v30\ns_nop 7")
        for g in range(4):
            A(f"ds_write_b128 v30, {vr(ACC+4*g,4)} offset:{1024*g}")
        A("s_waitcnt lgkmcnt(0)\ns_branch L_G1_AUXEND")

    A("L_G1_LD:")
    A(f"s_cmp_eq_u32 s{S_W}, 7\ns_cselect_b32 s38, 1, 0")
    A(f"v_bfe_u32 v29, v1, 3, 1\nv_lshl_add_u32 v30, v17, 1, v29\nv_lshlrev_b32 v30, 4, v30\nv_bfe_u32 v29, v1, 4, 1\nv_add_u32 v30, v30, v29")
    A(f"s_lshl_b32 s66, s{sTC}, 6\ns_lshl_b32 s67, s38, 3\ns_add_u32 s66, s66, s67\nv_add_u32 v30, s66, v30\nv_mul_u32_u24 v30, 1280, v30\nv_add_u32 v{vS0}, v30, v31")
    A(f"v_xor_b32 v{vS0+1}, 64, v{vS0}\nv_add_u32 v{vS0+1}, 2560, v{vS0+1}\nv_add_u32 v22, 5120, v{vS0}\nv_add_u32 v23, 5120, v{vS0+1}")
    early_addr()
    if OPT["t1"]:
        t7, td = uid("T7"), uid("TD")
        A(f"v_lshrrev_b32 v52, 1, v1\nv_mul_u32_u24 v52, 1280, v52\nv_and_b32 v53, 1, v1\nv_lshl_add_u32 v52, v53, 7, v52\ns_cmp_eq_u32 s{S_W}, 7\ns_cbranch_scc1 {t7}")
        A(f"s_and_b32 s66, s{sNB}, 3\ns_lshl_b32 s66, s66, 4\ns_lshl_b32 s67, s{sTC}, 6\ns_add_u32 s66, s66, s67\ns_mul_i32 s66, s66, 1280\ns_mov_b32 exec_hi, 0")
        A(f"buffer_load_dword v54, v52, {S(R0)}, s66 offen\ns_branch {td}\n{t7}:")
        A(f"s_and_b32 s66, s{sTC}, 7\ns_mul_i32 s66, s66, 10\ns_mul_i32 s67, s{sNB}, 80\ns_add_u32 s66, s66, s67\ns_mul_i32 s66, s66, 1280\ns_mov_b64 exec, 0xfffff")
        A(f"buffer_load_dword v54, v52, {S(R1)}, s66 offen\nbuffer_load_dword v55, v52, {S(R2)}, s66 offen\n{td}:\ns_mov_b64 exec, -1")
    A("s_lshl_b32 s38, s38, 12\ns_waitcnt vmcnt(0)\ns_barrier")

    def dmaX(Sx):
        for q in range(4):
            A(f"s_add_u32 m0, s38, {(Sx % 3) * SH + q * 1024}\ns_nop 0")
            dma([vS0, vS0 + 1, 22, 23][q], R0, sK)
        advK()

    dmaX(0); dmaX(1)
    if OPT["g1t"]:
        t7, td = uid("G7"), uid("GD")
        A(f"s_sub_u32 s66, s2, 256\ns_cmp_eq_u32 s{S_W}, 7\ns_cbranch_scc1 {t7}")
        A(f"s_mul_i32 s66, s66, 10240\nv_min_u32 v66, 39, v1\nv_lshlrev_b32 v66, 7, v66\nbuffer_load_dword v62, v66, {S(R0)}, s66 offen\ns_add_u32 s66, s66, 5120\nbuffer_load_dword v63, v66, {S(R0)}, s66 offen\ns_branch {td}")
        A(f"{t7}:\ns_mul_i32 s66, s66, 3200\nv_min_u32 v66, 24, v1\nv_lshlrev_b32 v66, 7, v66\nbuffer_load_dword v62, v66, {S(R1)}, s66 offen\nbuffer_load_dword v63, v66, {S(R2)}, s66 offen\n{td}:")
    for Sx in range(10):
        gate(Sx, dmaX, True)
        C1 = OPT["c1"]
        A(f"s_waitcnt vmcnt({4 * inflight(Sx) + ((2 if OPT['cu'] else 4) if C1 >= 0 and Sx in (C1 + 1, C1 + 2) else 0) + (2 if OPT['g1t'] and Sx < 2 else 0)})\ns_barrier")
        if more(Sx):
            dmaX(Sx + 2)
        if Sx == C1 and OPT["cu"]:
            A(f"s_sub_u32 s66, s2, 256\ns_mul_i32 s66, s66, 3200\nv_min_u32 v66, 24, v1\nv_lshlrev_b32 v66, 7, v66\ns_cmp_eq_u32 s{S_W}, 7")
            A(f"s_cselect_b32 s{R3}, s{P_WO}, s{P_CRE}\ns_cselect_b32 s{R3+1}, s{P_WO+1}, s{P_CRE+1}\ns_mov_b32 s{R3+2}, 819200\ns_mov_b32 s{R3+3}, 0x20000")
            A(f"buffer_load_dword v60, v66, {S(R3)}, s66 offen\ns_cselect_b32 s{R3}, s{P_WO}, s{P_CIM}\ns_cselect_b32 s{R3+1}, s{P_WO+1}, s{P_CIM+1}\nbuffer_load_dword v61, v66, {S(R3)}, s66 offen")
        elif Sx == C1:
            t1, t2 = uid("W1"), uid("W2")
            A(f"s_and_b32 s66, s{sTC}, 7\ns_cmp_eq_u32 s{S_W}, 7\ns_cbranch_scc1 {t1}")
            A(f"s_mul_i32 s66, s66, 10\ns_mul_i32 s68, s{sNB}, 80\ns_add_u32 s66, s66, s68\ns_mul_i32 s66, s66, 1280")
            A(f"v_lshlrev_b32 v66, 7, v1\nv_min_u32 v67, 35, v1\nv_lshlrev_b32 v67, 7, v67\nv_add_u32 v67, 8192, v67")
            for k, p in enumerate((P_CRE, P_CIM)):
                srd(R3, p, 819200)
                A(f"buffer_load_dword v{60+2*k}, v66, {S(R3)}, s66 offen\nbuffer_load_dword v{61+2*k}, v67, {S(R3)}, s66 offen")
            A(f"s_branch {t2}\n{t1}:")
            srd(R3, P_WO, 819200)
            A(f"s_mul_i32 s66, s66, {80*1280}\ns_mul_i32 s67, s{sNB}, 160\ns_add_u32 s66, s66, s67")
            A(f"v_lshrrev_b32 v66, 1, v1\nv_min_u32 v66, 19, v66\nv_mul_u32_u24 v66, 1280, v66\nv_and_b32 v67, 1, v1\nv_mul_u32_u24 v67, 156, v67\nv_add_u32 v66, v66, v67")
            for k in range(4):
                A(f"buffer_load_dword v{60+k}, v66, {S(R3)}, s66 offen")
                if k < 3:
                    A(f"s_add_u32 s66, s66, {20*1280}")
            A(f"{t2}:")
    A(f"v_lshlrev_b32 v30, 4, v1\nv_add_u32 v30, 69632, v30\ns_cmp_eq_u32 s{S_W}, 4\ns_cbranch_scc1 L_G1_RED")
    A("L_G1_AUXEND:")
    A("s_barrier\ns_barrier")
    A(f"s_cmp_lg_u32 s{S_W}, 6\ns_cbranch_scc1 L_F2POLL")
    touch2()
    A("s_barrier\ns_waitcnt vmcnt(0)\ns_branch L_B_H\nL_F2POLL:")
    A(f"s_cmp_eq_u32 s{S_W}, 7\ns_cselect_b32 s66, 16, 0\ns_sub_i32 s67, s{sTC}, s66\ns_max_i32 s67, s67, 0\ns_min_i32 s67, s67, 16\ns_lshr_b32 s67, 0xffff0000, s67\ns_and_b32 s67, s67, 0xffff")
    A(f"s_lshl_b32 s66, s66, 3\ns_lshl_b32 s65, s{sNB}, 5\ns_add_u32 s65, s65, s{sTC}\ns_lshl_b32 s65, s65, 8\ns_add_u32 s66, s66, s65\ns_add_u32 s66, s66, {PV2}")
    spoll([(68, 8, 0), (84, 8, 64)], 66, need=67)
    A("s_barrier")
    touch2()
    A("s_waitcnt vmcnt(0)\ns_branch L_B_H")
    A("L_G1_RED:\ns_barrier")
    if OPT["lscan"]:
        A("s_nop 8")
        for j in range(0, 16, 4):
            for p in range(2):
                A(f"ds_write2_b32 v{29+p}, v{ACC+j+p}, v{ACC+j+p+2} offset0:{j} offset1:{2 + j}")
        A("s_branch L_SCAN2")
    else:
        for g in range(8):
            A(f"ds_read_b128 {vr(ACC+4*g,4)}, v30 offset:{1024*g}")
        A("s_waitcnt lgkmcnt(0)")
    A("L_SCAN:")
    stamp(2)
    if OPT["lscan"]:
        for tt in range(2):
            for j in range(0, 16, 4):
                for p in range(2):
                    A(f"ds_write2_b32 v{29+p}, v{ACC+16*tt+j+p}, v{ACC+16*tt+j+p+2} offset0:{16*tt + j} offset1:{16*tt + 2 + j}")
        A("L_SCAN2:\ns_waitcnt lgkmcnt(0)\ns_barrier")
        for i in range(8):
            A(f"ds_read_b128 {vr(ACC+4*i,4)}, v31 offset:{16*i}")
        bhi()
    else:
        bhi()
        for i in range(16):
            A(f"v_permlane16_swap_b32 v{ACC+2*i}, v{ACC+2*i+1}")
    for i in range(16):
        u = ACC + 2 * i
        t = 64 + 2 * (i & 1)
        if OPT["lscan"] and i % 2 == 0:
            A(f"s_waitcnt lgkmcnt({7 - i // 2})")
        A(f"v_pk_mul_f32 {vr(t,2)}, {vr(u,2)}, {vr(CF,2)} op_sel:[0,0] op_sel_hi:[0,1]")
        A(f"v_pk_fma_f32 {vr(u,2)}, {vr(u,2)}, {vr(CF,2)}, {vr(t,2)} op_sel:[1,1,0] op_sel_hi:[1,0,1] neg_hi:[0,1,0]")
    G, T = 68, 70
    cfma(G, ACC, MU, ACC + 2, T)
    for i in range(2, 16):
        cfma(G, G, MU, ACC + 2 * i, T)
    E4 = 72
    A(f"s_mul_i32 s64, s{sNB}, 20480\ns_add_u32 s64, s64, {EB}\ns_add_u32 s{R3}, s{WS}, s64\ns_addc_u32 s{R3+1}, s{WS+1}, 0\ns_mov_b32 s{R3+2}, 20480\ns_mov_b32 s{R3+3}, 0x20000")
    gather4(G, E4)
    PRE = 80
    cfma(82, E4, MU16, E4 + 2, T)
    cfma(84, 82, MU16, E4 + 4, T)
    cfma(86, 84, MU16, E4 + 6, T)
    A(f"s_sub_u32 s64, 31, s{sTC}\ns_mul_i32 s64, s64, 640\ns_mov_b64 exec, 0xffff")
    A(f"buffer_store_dwordx2 v[86:87], v123, {S(R3)}, s64 offen sc1\ns_mov_b64 exec, -1")
    A(f"v_mov_b32 v{PRE}, 0\nv_mov_b32 v{PRE+1}, 0")
    for src, m in ((E4, 96), (82, 98), (84, 100)):
        for c in range(2):
            A(f"v_cndmask_b32 v{PRE+c}, v{PRE+c}, v{src+c}, s[{m}:{m+1}]")
    A(f"s_lshl_b32 s68, s{sNB}, 13\ns_lshl_b32 s69, s{sTC}, 3\ns_add_u32 s68, s68, s69\ns_add_u32 s68, s68, {PV2}")
    A(f"v_lshlrev_b32 v88, 8, v1\nv_mov_b32 v90, s{S_E}\nv_mov_b32 v91, s{S_E+1}\ns_lshl_b32 s69, -2, s{sTC}")
    A("s_waitcnt vmcnt(0)\ns_barrier")
    A(f"s_cmp_lg_u32 s{S_W}, 0\ns_cbranch_scc1 L_NOP2\ns_cmp_eq_u32 s69, 0\ns_cbranch_scc1 L_NOP2\ns_mov_b32 exec_lo, s69\ns_mov_b32 exec_hi, 0")
    A(f"buffer_store_dwordx2 v[90:91], v88, {S(WS)}, s68 offen sc1\ns_mov_b64 exec, -1\nL_NOP2:")
    stamp(3)
    A(f"s_cmp_ge_u32 s{S_W}, 4\ns_cbranch_scc1 L_NOSKIP")
    srd(R1, P_DSK, 1280)
    A(f"buffer_load_ushort v14, v126, {S(R1)}, 0 offen")
    for i in range(16):
        A(f"s_mov_b32 s64, {(8 * (i >> 2) + (i & 3))*1280}\nbuffer_load_ushort v{16+i}, v114, {S(R0)}, s64 offen")
    A("L_NOSKIP:\ns_movk_i32 s64, 4480\ns_barrier")
    stamp(4)
    EL = 96
    for u in range(8):
        d = 7 - u
        A(f"buffer_load_dwordx2 {vr(EL+2*u,2)}, v124, {S(R3)}, {'s64' if d == 7 else '0'} offen offset:{0 if d == 7 else 640*d} sc1")
    A("s_waitcnt vmcnt(6)")
    cfma(G, EL, LAM, EL + 2, T)
    for u in range(2, 8):
        A(f"s_waitcnt vmcnt({7-u})")
        cfma(G, G, LAM, EL + 2 * u, T)
    gather4(G, E4)
    cfma(G, E4 + 6, LAM8, E4 + 4, T)
    cfma(G, G, LAM8, E4 + 2, T)
    cfma(G, G, LAM8, E4, T)
    cfma(G, G, PW, PRE, T)
    PK = 72
    A(f"s_mul_i32 s64, s{sTC}, 163840\ns_add_u32 s64, s64, {HB}")
    for tt in range(2):
        for i in range(8 * tt, 8 * tt + 8):
            cfma(ACC + 2 * i, G if i == 0 else ACC + 2 * i - 2, MU, ACC + 2 * i, T)
        for c in range(2):
            d = PK + 8 * tt + 4 * c
            for m in range(4):
                a = ACC + 16 * tt + 4 * m + c
                A(f"v_cvt_pk_bf16_f32 v{d+m}, v{a}, v{a+2}")
            A(f"s_add_u32 s65, s64, {tt*20480 + c*10240}")
            A(f"buffer_store_dwordx4 {vr(d,4)}, v125, {S(WS)}, s65 offen sc1")
    A("s_waitcnt vmcnt(0)")
    A("L_B_H:")
    bhi()
    A("s_barrier")
    A(f"s_cmp_lg_u32 s{S_W}, 0\ns_cbranch_scc1 L_NOP3\ns_lshl_b32 s68, s{sTC}, 10\ns_lshl_b32 s69, s{sNB}, 3\ns_add_u32 s68, s68, s69\ns_add_u32 s68, s68, {PV3}")
    A(f"v_lshlrev_b32 v88, 7, v1\ns_mov_b64 exec, 0xff\nbuffer_store_dwordx2 v[90:91], v88, {S(WS)}, s68 offen sc1\ns_mov_b64 exec, -1\nL_NOP3:")
    stamp(5)
    A(f"s_cmp_ge_u32 s{S_W}, 4\ns_cbranch_scc1 L_B_SMALL")
    tail(True)
    A("L_B_SMALL:")
    tail(False)


def tail(big):
    nacc = 16 if big else 4
    ACC = 16 if big else 12
    WF = 48
    MF = MF32 if big else MF16
    rows = [8 * (i >> 2) + (i & 3) for i in range(nacc)]
    fst(9, 0)
    if big:
        vA, vB, vS, vOut, vO, vOs, vW, vWs = 2, 3, 4, 5, 6, 7, 8, 9
        mv = ((8, 116), (2, 112), (3, 113), (4, 122), (5, 115), (6, 118), (9, 117))
        A(f"s_lshr_b32 s64, s{S_W}, 1\ns_mul_i32 s64, s64, 51200\nv_add_u32 v10, s64, v116")
    else:
        vA, vB, vS, vOut, vO, vOs, vW, vWs = 2, 3, 9, 5, 6, 10, 16, 17
        mv = ((16, 116), (2, 112), (3, 113), (4, 127), (5, 115), (6, 118), (7, 28), (9, 122), (10, 119), (8, 26), (11, 27), (17, 117))
        srd(R3, P_DSK, 1280)
        A(f"buffer_load_ushort v0, v126, {S(R3)}, 0 offen")
        for i in range(nacc):
            A(f"s_mov_b32 s64, {rows[i]*1280}\nbuffer_load_ushort v{32+i}, v114, {S(R0)}, s64 offen")
        A(f"s_sub_u32 s95, s{S_W}, 4\nv_add_u32 v18, 40960, v116")
    for d, sreg in mv:
        A(f"v_mov_b32 v{d}, v{sreg}")
    fst(9, 1)
    if big:
        for u in range(20):
            if u == 12:
                A(f"s_cmp_ge_u32 s{S_W}, 2\ns_cbranch_scc1 L_WR0")
            for j in range(2):
                A(f"ds_read_b64_tr_b16 {vr(WF+4*u+2*j,2)}, v10 offset:{2560*u + 160*j}")
        A("L_WR0:")
        for i in range(nacc):
            A(f"v_dot2_f32_bf16 v{ACC+i}, v{ACC+i}, v14, 0")
        A(f"s_lshl_b32 s45, s{sTC}, 3\ns_add_u32 s45, s45, s{sNB}\ns_lshl_b32 s45, s45, 7\ns_add_u32 s45, s45, {PV3}")
    else:
        for U in range(16):
            for j in range(2):
                A(f"ds_read_b64_tr_b16 {vr(WF+4*U+2*j,2)}, v{vW if U < 8 else 18} offset:{5120*(U & 7) + 160*j}")
    srd(R1, P_WO, 819200)
    A(f"s_lshl_b32 s46, s{S_W}, 10\ns_waitcnt lgkmcnt(0)\ns_barrier")
    fst(9, 2)
    if big:
        A(f"s_load_dwordx16 s[8:23], {WSP}, s45 glc")
    sk = uid("WD")
    if not big:
        A(f"s_cmp_ge_u32 s{S_W}, 5\ns_cbranch_scc1 {sk}")
    for m in range(4):
        A(f"s_add_u32 m0, s46, {5120*m}\ns_mov_b32 s64, {(512 + 32*m) * 1280}")
        dma(vWs, R1, 64)
    A(f"{sk}:")
    fst(9, 3)
    if not big:
        A("s_waitcnt vmcnt(0)")
        for i in range(nacc):
            A(f"v_dot2_f32_bf16 v{ACC+i}, v{32+i}, v0, 0")

    def wo_reads1():
        if big:
            A(f"s_cmp_lt_u32 s{S_W}, 2\ns_cbranch_scc1 L_WR1")
            for u in range(8):
                for j in range(2):
                    A(f"ds_read_b64_tr_b16 {vr(WF+4*(12+u)+2*j,2)}, v{vW} offset:{2560*u + 160*j}")
            A("L_WR1:")
        else:
            for U in range(4):
                for j in range(2):
                    A(f"ds_read_b64_tr_b16 {vr(WF+4*(16+U)+2*j,2)}, v{vW} offset:{5120*U + 160*j}")
        A("s_waitcnt lgkmcnt(0)\ns_barrier")

    SL = 18944
    vSs = [vS, 8, 11]

    def slot(Sx):
        return ((Sx + 3) % 4) * SL

    def g2_dma(Sx):
        sb = slot(Sx)
        if big:
            for i in range(2):
                A(f"s_add_u32 m0, s39, {sb + 1088*i}\ns_add_u32 s64, s44, s{sK}")
                if i or Sx >= 10:
                    A(f"s_add_u32 s64, s64, {20480*i + (10240 if Sx >= 10 else 0)}")
                dma(vS, WS, 64, "sc1")
            A(f"s_add_u32 s{sK}, s{sK}, 1024\ns_cmp_eq_u32 s{sK}, 10240\ns_cselect_b32 s{sK}, 0, s{sK}")
        else:
            for m in range(3):
                if m == 2:
                    sk = uid("SD")
                    A(f"s_cmp_ge_u32 s95, 2\ns_cbranch_scc1 {sk}")
                A(f"s_add_u32 m0, s39, {sb + 8704 + 4096*m}\ns_nop 0")
                dma(vSs[m], R1 if Sx < 10 else R2, sK)
            A(f"{sk}:")
            A(f"s_add_u32 s{sK}, s{sK}, 128\ns_cmp_eq_u32 s{sK}, 1280\ns_cselect_b32 s{sK}, 0, s{sK}")

    srd(R1, P_CRE, 819200); srd(R2, P_CIM, 819200)
    if big:
        A(f"s_mul_i32 s44, s{sTC}, 163840\ns_mul_i32 s64, s{S_W}, 40960\ns_add_u32 s44, s44, s64\ns_add_u32 s44, s44, {HB}")
        A(f"v_xor_b32 v0, 32, v{vB}\nv_xor_b32 v1, 64, v{vB}\nv_xor_b32 v7, 96, v{vB}")
        A(f"s_mul_i32 s39, s{S_W}, 2176\ns_lshl_b32 s{sK}, s{sROT}, 10")
        fst(9, 4)
        A("s_waitcnt lgkmcnt(0)\ns_mov_b32 s65, 0")
        for i in range(8):
            A(f"s_cmp_eq_u64 s[{8+2*i}:{9+2*i}], {EP}\ns_addc_u32 s65, s65, s65")
        A("s_cmp_eq_u32 s65, 255\ns_cbranch_scc1 L_F3OK")
        spoll([(8, 8, 0)], 45)
        A("L_F3OK:")
        stamp(6); fst(9, 5)
        g2_dma(0)
        A(f"s_waitcnt vmcnt(2)")
        fst(9, 6)
        A("s_barrier")
        fst(9, 7)
    else:
        A(f"s_lshl_b32 s39, s95, 10\ns_lshl_b32 s{sK}, s{sROT}, 7")
        g2_dma(0)
        A("s_barrier")
    if big:
        A(f"s_sub_u32 s66, s2, 256\ns_lshl_b32 s66, s66, 7\ns_add_u32 s66, s66, {F0B}\ns_load_dwordx2 s[8:9], {WSP}, s66 glc")
    wo_reads1()
    fst(9, 8)
    A("s_waitcnt vmcnt(0)")
    for Sx in range(1, 4):
        g2_dma(Sx)
    if big:
        sk = uid("G2W")
        A(f"s_cmp_eq_u64 s[8:9], {EP}\ns_cbranch_scc1 {sk}\ns_cmp_lg_u32 s{S_W}, 0\ns_cbranch_scc1 {sk}")
        fst(9, 9)
        spoll([(8, 1, 0)], 66)
        A(f"{sk}:")
        fst(9, 10)
    A(f"s_setprio {3 if OPT['mlo'] else OPT['g2p']}\n;MLO_ON2")
    if big:
        SET = [32, 40, 8]

        def rd(n):
            Sx, u = n >> 2, n & 3
            f, sb = SET[n % 3], slot(Sx)
            for j in range(2):
                A(f"ds_read_b64_tr_b16 {vr(f+2*j,2)}, v{vA} offset:{sb + 256*u + 64*j}")
            A(f"ds_read_b128 {vr(f+4,4)}, v{[vB, 0, 1, 7][u]} offset:{sb}")

        def mm(n):
            if n >= 0:
                f = SET[n % 3]
                A(f"{MF} {vr(ACC,16)}, {vr(f,4)}, {vr(f+4,4)}, {vr(ACC,16)}")

        for Sx in range(20):
            infl = 3 if Sx == 0 else min(Sx + 3, 20) - Sx - 1
            n = 4 * Sx
            A(f"s_waitcnt vmcnt({2*infl})\ns_barrier" if Sx else "s_barrier")
            if Sx == 0:
                stamp(11); fst(9, 11)
            rd(n); rd(n + 1)
            mm(n - 1)
            rd(n + 2)
            A("s_waitcnt lgkmcnt(6)")
            mm(n)
            rd(n + 3)
            if 0 < Sx < 17:
                g2_dma(Sx + 3)
            A("s_waitcnt lgkmcnt(6)")
            mm(n + 1)
            A("s_waitcnt lgkmcnt(3)")
            mm(n + 2)
            A("s_waitcnt lgkmcnt(0)")
        mm(79)
    else:
        FR = [16, 32]

        def mm(Sx, u):
            if Sx >= 0:
                f = FR[Sx & 1]
                A(f"{MF} {vr(ACC,4)}, {vr(f+8*u,4)}, {vr(f+8*u+4,4)}, {vr(ACC,4)}")

        for Sx in range(20):
            infl = 3 if Sx == 0 else min(Sx + 3, 20) - Sx - 1
            f, sb = FR[Sx & 1], slot(Sx)
            A(f"s_waitcnt vmcnt({2*infl})\ns_barrier" if Sx else "s_barrier")
            if 0 < Sx < 17:
                g2_dma(Sx + 3)
            mm(Sx - 1, 0)
            for u in range(2):
                for j in range(2):
                    A(f"ds_read_b64_tr_b16 {vr(f+8*u+2*j,2)}, v{vA} offset:{sb + 512*u + 64*j}")
                A(f"ds_read_b128 {vr(f+8*u+4,4)}, v{vB + u} offset:{sb}")
            mm(Sx - 1, 1)
            A("s_waitcnt lgkmcnt(0)")
        mm(19, 0); mm(19, 1)
    A(";MLO_OFF")
    stamp(7)
    bhi()
    srd(R2, P_OUT, 10485760)
    A(f"s_mul_i32 s44, s{S_W}, {2*PL}\ns_lshl_b32 s64, s{sTC}, 9\ns_add_u32 s44, s44, s64\ns_add_u32 s44, s44, {OP}\ns_lshl_b32 s46, s{S_W}, 10")
    if big:
        A(f"s_lshl_b32 s45, s{sTC}, 3\ns_add_u32 s45, s45, s{sNB}\ns_lshl_b32 s45, s45, 8\ns_lshl_b32 s64, s{S_W}, 6\ns_add_u32 s45, s45, s64\ns_add_u32 s45, s45, {PV4}")
        A(f"v_lshrrev_b32 v0, 9, v4\nv_mul_u32_u24 v0, {PL}, v0\nv_and_b32 v7, 0x1f0, v4\ns_and_b32 s64, s{S_W}, 1\ns_lshl_b32 s64, s64, 7\nv_xor_b32 v7, s64, v7\nv_add_u32 v7, v0, v7")
    for i in range(nacc):
        A(f"s_mov_b32 s64, {rows[i]*5120}\nbuffer_store_dword v{ACC+i}, v{vOut}, {S(R2)}, s64 offen offset:2560 {AUX[OPT['sty']]}")
    PIT = 336
    if big:
        if OPT["otouch"]:
            A(f"v_lshrrev_b32 v0, 6, v4\nv_min_u32 v0, 9, v0\nv_mul_u32_u24 v0, {PL}, v0\nv_and_b32 v1, 0x30, v4\nv_lshl_add_u32 v0, v1, 3, v0")
            A(f"s_and_b32 s64, s{sNB}, 3\ns_mul_i32 s64, s64, {10*PL}\ns_mul_i32 s65, s{S_W}, {38*PL}\ns_add_u32 s47, s64, s65\ns_add_u32 s47, s47, s44")
        spoll([(8, 8, 0)], 45)
        if OPT["otouch"]:
            A(f"buffer_load_dword v8, v0, {S(WS)}, s47 offen sc1")
    A("s_barrier")
    stamp(8); fst(5, 0)
    def odma(i):
        for st in (i, 5 + i):
            A(f"s_add_u32 m0, s46, {8192*st}\ns_add_u32 s64, s44, {16*PL*st}")
            dma(vOs, WS, 64, "sc1")

    odma(0)
    if OPT["opord"]:
        A("s_barrier")
    for i in range(1, 5):
        odma(i)
    A(f"v_mbcnt_lo_u32_b32 v0, -1, 0\nv_mbcnt_hi_u32_b32 v0, -1, v0")
    if big:
        A(f"s_lshr_b32 s64, s{S_W}, 1\ns_mul_i32 s65, s64, {40960 + 32*PIT}\ns_and_b32 s66, s{S_W}, 1\ns_lshl_b32 s66, s66, 7\ns_add_u32 s65, s65, s66")
        A(f"v_and_b32 v2, 31, v0\nv_mul_u32_u24 v2, {PIT}, v2\nv_lshrrev_b32 v3, 5, v0\nv_lshl_add_u32 v2, v3, 4, v2\nv_add_u32 v2, s65, v2")
        A(f"s_mul_i32 s67, s64, {-64*PIT & 0xffffffff}\ns_add_u32 s67, s67, {32*PIT}\nv_add_u32 v7, s67, v2")
        A(f"v_xor_b32 v1, 256, v{vO}")
    else:
        A(f"s_mul_i32 s65, s95, {16*PIT}\ns_add_u32 s65, s65, 256\nv_and_b32 v2, 15, v0\nv_mul_u32_u24 v2, {PIT}, v2\nv_lshrrev_b32 v3, 4, v0\nv_lshl_add_u32 v2, v3, 4, v2\nv_add_u32 v2, s65, v2")
        for i in range(4):
            A(f"v_mov_b32 v{8+i}, 0")
    A(f"s_lshl_b32 s64, s{S_W}, 6\nv_add_u32 v0, s64, v0\nv_mul_u32_u24 v3, 3277, v0\nv_lshrrev_b32 v3, 16, v3\nv_mul_u32_u24 v5, 20, v3\nv_sub_u32 v0, v0, v5\nv_lshlrev_b32 v0, 4, v0")
    A(f"s_mul_i32 s64, s{sTC}, {64*5120}\ns_mul_i32 s65, s{sNB}, 320\ns_add_u32 s47, s64, s65\nv_mul_u32_u24 v5, 5120, v3\nv_add_u32 v5, v5, v0\nv_mul_u32_u24 v3, {PIT}, v3\nv_add_u32 v3, v3, v0")
    steps = {0: 8, 4: 4, 12: 0}
    if big:
        ne = uid("NE")
        A(f"s_cmp_lg_u32 s{sTC}, 31\ns_cbranch_scc1 {ne}\ns_or_b32 s64, s{sNB}, s{S_W}\ns_cmp_lg_u32 s64, 0\ns_cbranch_scc1 {ne}")
        A(f"s_waitcnt vmcnt(0)\nv_mov_b32 v8, s{S_E}\ns_mov_b64 exec, 1\nbuffer_store_dword v8, off, {S(WS)}, 0 offset:{EPOCH} sc1\ns_mov_b64 exec, -1\ns_waitcnt vmcnt(0)\n{ne}:")
        free = [8, 12]
        loc = {}
        order = []

        def issue(n, t):
            f = free.pop(0)
            loc[(n, t)] = f
            i, u = n >> 2, n & 3
            for j in range(2):
                A(f"ds_read_b64 {vr(f+2*j,2)}, v{vO if t == 0 else 1} offset:{8192*i + 2048*u + 512*j}")
            order.append((n, t))

        todo = [(n, t) for n in range(16) for t in range(2)] + [(n, 1) for n in range(16, 20)] + [(n, 0) for n in range(16, 20)]
        nxt = 0
        done = {}
        lim = 0
        for k, (n, t) in enumerate(todo):
            if n in steps and t == 0:
                if n == 0:
                    fst(5, 1)
                A(f"s_waitcnt vmcnt({steps[n]})\ns_barrier")
                fst(5, 2 + list(steps).index(n))
                lim = {0: 8, 4: 24, 12: 40}[n]
            while nxt < lim and free and nxt - k < 6:
                issue(*todo[nxt]); nxt += 1
            pend = len(order) - 1 - order.index((n, t))
            if (n, t) == (17, 0):
                assert nxt == len(todo)
                A("s_nop 7\ns_waitcnt lgkmcnt(0)")
            elif t == 0 and n > 17:
                for g in (2 * (n - 18), 2 * (n - 18) + 1):
                    A(f"ds_write_b128 v7, {vr(ACC+16+4*g,4)} offset:{32*g}")
            else:
                A(f"s_waitcnt lgkmcnt({2*pend})")
            c = "0" if n == 0 else vr(ACC + 16 * t, 16)
            A(f"{MF} {vr(ACC+16*t,16)}, {vr(WF+4*n,4)}, {vr(loc[(n,t)],4)}, {c}")
            free.append(loc[(n, t)])
            done[n] = done.get(n, 0) + 1
            if done[n] == 2:
                free.append(WF + 4 * n)
        fst(5, 5)
        A("s_nop 11")
        for g in range(4):
            A(f"ds_write_b128 v2, {vr(ACC+4*g,4)} offset:{32*g}")
    else:
        first = True
        for si, (i0, i1) in enumerate(((0, 1), (1, 3), (3, 5))):
            A(f"s_waitcnt vmcnt({[8, 4, 0][si]})\ns_barrier")
            for i in range(i0, i1):
                f = 16 + 16 * (i & 1)
                for h in range(2):
                    for U in range(2):
                        for j in range(2):
                            A(f"ds_read_b64 {vr(f+8*h+4*U+2*j,2)}, v{vO+h} offset:{8192*i + 4096*U + 512*j}")
            for i in range(i0, i1):
                f = 16 + 16 * (i & 1)
                for h in range(2):
                    for U in range(2):
                        A(f"s_waitcnt lgkmcnt({8*(i1-1-i) + 6 - 4*h - 2*U})")
                        c = "0" if first else vr(ACC, 4)
                        first = False
                        A(f"{MF} {vr(ACC,4)}, {vr(WF+40*h+8*i+4*U,4)}, {vr(f+8*h+4*U,4)}, {c}")
        A(f"ds_write_b128 v2, v[8:11] offset:40960\ns_nop 6\nds_write_b128 v2, {vr(ACC,4)}")
    A("s_waitcnt lgkmcnt(0)\ns_barrier")
    fst(5, 6)
    if not big:
        A(f"s_cmp_ge_u32 s{S_W}, 5\ns_cbranch_scc1 L_B_DONE")
    for m in range(4):
        A(f"ds_read_b128 {vr(48+8*m,4)}, v3 offset:{16*PIT*m}\nds_read_b128 {vr(52+8*m,4)}, v3 offset:{40960 + 16*PIT*m}")
    for m in range(4):
        A(f"s_waitcnt lgkmcnt({6-2*m})")
        for c in range(2):
            A(f"v_pk_add_f32 {vr(48+8*m+2*c,2)}, {vr(48+8*m+2*c,2)}, {vr(52+8*m+2*c,2)}")
        A(f"buffer_store_dwordx4 {vr(48+8*m,4)}, v5, {S(R2)}, s47 offen {AUX[OPT['sto']]}")
        if m < 3:
            A(f"s_add_u32 s47, s47, {16*5120}")
    if not big:
        A("L_B_DONE:")
    fst(5, 7)
    stamp(9)
    if OPT["stamps"]:
        A("s_waitcnt vmcnt(0)")
        stamp(10); fst(5, 8)
    dump_stamps(12)
    A("s_endpgm")


def wrap_mfma():
    out, on, i = [], False, 0
    for k, l in enumerate(L):
        if l.startswith(";MLO_ON"):
            on = 2 if l.endswith("2") else 1
            continue
        if l == ";MLO_OFF":
            on = False
            continue
        if on and OPT["mlo"] and l.startswith("v_mfma"):
            if not L[k - 1].startswith("v_mfma"):
                out.append(f"s_setprio {OPT['mlv']}")
            out.append(l)
            if not L[k + 1].startswith("v_mfma"):
                out.append("s_setprio 3")
                if on == 1 and OPT.get("pace"):
                    out.append(f"s_sleep {OPT['pace']}")
            elif on == 1 and OPT.get("pace1"):
                out.append(f"s_sleep {OPT['pace1']}")
        else:
            out.append(l)
    L[:] = out


DOC = """\
;    softmax: p = exp2(s) is accumulated unshifted together with its row sum l (ones rows of the P.V product). The shift 0 is only
;  previous launch left at ws+0, advanced once every workgroup has read it); consumers spin (bounded) on the flags.
"""


def build():
    hdr = open("cdna_kernels/" + NAME + ".s.ref").read().split("\n")
    out = [l for l in hdr if l.startswith(";") and "@launch" not in l]
    out.append("; @launch grid=(512,1,1) block=(512,1,1) lds=81920")
    out.append('.amdgcn_target "amdgcn-amd-amdhsa--gfx950"')
    out.append(DOC)
    out.append(".text")
    out.append(f".globl {NAME}_kernel\n.p2align 8\n.type {NAME}_kernel,@function\n{NAME}_kernel:")
    qkv()
    attention()
    qkv_idle()
    role_b()
    A("L_END:\ns_endpgm")
    wrap_mfma()
    for l in L:
        out.append(l if l.endswith(":") or l.startswith(".") else "    " + l)
    out.append(f""".section .rodata,"a"
.p2align 6
.amdhsa_kernel {NAME}_kernel
  .amdhsa_next_free_vgpr 128
  .amdhsa_next_free_sgpr 102
  .amdhsa_accum_offset 128
  .amdhsa_group_segment_fixed_size 0
  .amdhsa_kernarg_size 120
  .amdhsa_user_sgpr_count 2
  .amdhsa_user_sgpr_kernarg_segment_ptr 1
  .amdhsa_system_sgpr_workgroup_id_x 1
.end_amdhsa_kernel""")
    return "\n".join(out) + "\n"


if __name__ == "__main__":
    txt = build()
    open(sys.argv[1], "w").write(txt)
    sys.path.insert(0, "gen")
    import hazard
    e = hazard.check(txt)
    print("\n".join(e) if e else "hazard check: clean")
```

```python
import sys, struct, math

NAME = "concat_heads__softmax_full_mha__ssm_conv_s5__prompt"

OPT = dict(stamps=0, spin=400000, force_fb=0, g2s=6, g2q=6, tog=2, stg=1, g1p=0, g2p=0, htouch=0, ctouch=1, sty=2, sto=2,
           cpre=1, lscan=0, brot=0, t1=1, prea=0, mlo=1, gk=0, hs=16, qst=0, qrot=1, pre=0, c1=2, cu=1, g1t=0, qil=1, ramp=3, pvt=0, gs=0, sp1=1, otouch=0, qord=1, lastw=1, mlv=0, wearly=1, fill0=16, nfill=4, post=1, q16=1, opord=1)
for a in sys.argv[2:]:
    k, v = a.split("=")
    OPT[k] = int(v)

PL = 16384
EPOCH = 0
F1 = 0x1000
F2 = 0x2000
F3 = 0x3000
F0 = 0x8000
F0B = 0x10000
F0C = 0x18000
STAMP = 0x20000
EB = 0x48000
PV1 = 0xA0000
PV4 = 0xB0000
PV2 = 0xC0000
PV3 = 0xD0000
QKVP = 0x100000
OP = 0xA00000
HB = 0xD00000
WS_USED = 0x1300000
OOB = 0x80000000
AUX = ['', 'nt', 'sc1', 'sc1 nt', 'sc0 sc1']

L = []


def A(s):
    for ln in s.strip("\n").split("\n"):
        L.append(ln.strip())


def f2u(x):
    return struct.unpack("<I", struct.pack("<f", x))[0]


def vr(a, n):
    return f"v[{a}:{a+n-1}]" if n > 1 else f"v{a}"


P_AX, P_WQKV, P_WO, P_BX, P_LRE, P_LIM, P_BRE, P_BIM, P_CRE, P_CIM, P_LDT, P_DSK, P_OUT, P_DBG = range(8, 36, 2)
S_E = 6
S_W = 40
R0, R1, R2, WS, R3 = 44, 48, 52, 56, 60
WSP = f"s[{WS}:{WS+1}]"
EP = f"s[{S_E}:{S_E+1}]"
ST0 = 70
_uid = [0]


def uid(p):
    _uid[0] += 1
    return f"{p}_{_uid[0]}"


def srd(r, p, n):
    A(f"s_mov_b32 s{r}, s{p}\ns_mov_b32 s{r+1}, s{p+1}\ns_mov_b32 s{r+2}, {n}\ns_mov_b32 s{r+3}, 0x20000")


def S(r):
    return f"s[{r}:{r+3}]"


def stamp(k):
    if OPT["stamps"] and not OPT.get("fm"):
        A(f"s_memrealtime s[{ST0+2*k}:{ST0+2*k+1}]")


def cstamp(k):
    if OPT["stamps"] and not OPT.get("fm"):
        A(f"s_memtime s[{ST0+2*k}:{ST0+2*k+1}]")


def fst(mode, k):
    if OPT.get("fm") == mode:
        A(f"s_memtime s[{ST0+2*k}:{ST0+2*k+1}]")


def rst(mode, k):
    if OPT.get("fm") == mode:
        A(f"s_memrealtime s[{ST0+2*k}:{ST0+2*k+1}]")


def dump_stamps(n, role="B"):
    if not OPT["stamps"]:
        return
    if OPT.get("amp"):
        if (role == "A") == (OPT["sel"] < 256):
            sk, lp = uid("AK"), uid("AL")
            A(f"s_waitcnt lgkmcnt(0)\ns_cmp_lg_u32 s2, {OPT['sel']}\ns_cbranch_scc1 {sk}\ns_cmp_lg_u32 s{S_W}, 0\ns_cbranch_scc1 {sk}")
            A(f"s_sub_u32 s64, s{ST0+2*OPT['k1']}, s{ST0+2*OPT['k0']}\ns_mul_i32 s64, s64, {OPT['amp']}\ns_min_u32 s64, s64, 100000\ns_add_u32 s64, s64, s{ST0}")
            A(f"{lp}:\ns_memrealtime s[66:67]\ns_waitcnt lgkmcnt(0)\ns_sub_u32 s66, s66, s64\ns_cmp_lt_i32 s66, 0\ns_cbranch_scc1 {lp}\n{sk}:")
        return
    sk = uid("SK")
    A(f"s_waitcnt lgkmcnt(0)\ns_cmp_lg_u32 s{S_W}, {OPT.get('fw', 0)}\ns_cbranch_scc1 {sk}")
    A(f"s_lshl_b32 s64, s2, 7\ns_add_u32 s64, s64, {STAMP}\ns_mov_b64 exec, 1")
    for k in range(n):
        A(f"v_mov_b32 v120, s{ST0+2*k}\nv_mov_b32 v121, s{ST0+2*k+1}")
        A(f"buffer_store_dwordx2 v[120:121], off, {S(WS)}, s64 offset:{8*k}")
        A("s_waitcnt vmcnt(0)")
    A(f"s_mov_b64 exec, -1\n{sk}:")


def flag_store(soff, t=120, wave=0):
    sk = uid("FS")
    A(f"s_cmp_lg_u32 s{S_W}, {wave}\ns_cbranch_scc1 {sk}")
    A(f"v_mov_b32 v{t}, s{S_E}\nv_mov_b32 v{t+1}, s{S_E+1}\ns_mov_b64 exec, 1")
    A(f"buffer_store_dwordx2 v[{t}:{t+1}], off, {S(WS)}, s{soff} sc1")
    A(f"s_mov_b64 exec, -1\n{sk}:")


def poll(vaddrs, t=120):
    lp, dn = uid("PL"), uid("PD")
    A(f"s_mov_b32 s64, {OPT['spin']}\n{lp}:")
    for i, va in enumerate(vaddrs):
        A(f"buffer_load_dwordx2 v[{t+2*i}:{t+2*i+1}], v{va}, {S(WS)}, 0 offen sc1")
    A("s_waitcnt vmcnt(0)")
    for i, va in enumerate(vaddrs):
        if i == 0:
            A(f"v_cmp_ne_u64 vcc, {EP}, v[{t}:{t+1}]")
        else:
            A(f"v_cmp_ne_u64 s[66:67], {EP}, v[{t+2*i}:{t+2*i+1}]\ns_or_b64 vcc, vcc, s[66:67]")
    A(f"s_cbranch_vccz {dn}\ns_sub_u32 s64, s64, 1\ns_cmp_lg_u32 s64, 0\ns_cbranch_scc1 {lp}\n{dn}:")


def spoll(blocks, soff, need=None, cnt=64, msk=65):
    lp, dn = uid("SP"), uid("SD")
    A(f"s_mov_b32 s{cnt}, {OPT['spin']}\n{lp}:")
    tot = 0
    for dst, n, off in blocks:
        A(f"s_load_dwordx{2*n} s[{dst}:{dst+2*n-1}], {WSP}, s{soff} offset:{off} glc")
        tot += n
    A(f"s_mov_b32 s{msk}, 0\ns_waitcnt lgkmcnt(0)")
    for dst, n, off in blocks:
        for i in range(n):
            A(f"s_cmp_eq_u64 s[{dst+2*i}:{dst+2*i+1}], {EP}\ns_addc_u32 s{msk}, s{msk}, s{msk}")
    if need is None:
        A(f"s_cmp_eq_u32 s{msk}, {(1 << tot) - 1}")
    else:
        A(f"s_andn2_b32 s{msk}, s{need}, s{msk}\ns_cmp_eq_u32 s{msk}, 0")
    A(f"s_cbranch_scc1 {dn}")
    if tot <= 8:
        A("s_sleep 2")
    A(f"s_sub_u32 s{cnt}, s{cnt}, 1\ns_cmp_lg_u32 s{cnt}, 0\ns_cbranch_scc1 {lp}\n{dn}:")


def bhi():
    A("s_setprio 3")


def blo():
    A("s_setprio 0")


def dma(vaddr, rsrc, soff, aux=""):
    A(f"buffer_load_dwordx4 v{vaddr}, {S(rsrc)}, s{soff} offen {aux} lds".replace("  ", " "))


def epoch_fix():
    A(f"s_mul_i32 s{S_E}, s{S_E}, 0x9E3779B1\ns_add_u32 s{S_E}, s{S_E}, 0x7F4A7C15\ns_xor_b32 s{S_E+1}, s{S_E}, 0x5bd1e995")


MF32 = "v_mfma_f32_32x32x16_bf16"
MF8 = "v_mfma_f32_32x32x8_bf16"
MF16 = "v_mfma_f32_16x16x32_bf16"

PS = 2080
SLOT = 11 * PS
RED = 2 * SLOT
BADW = 81912
sST0, sST1, sF1, sSC, sH, sQB, sG, sLd, sQ, sPV1, sNEED, sH1, sH2, sPass, sChk, sO0, sO1, sPV4 = \
    8, 9, 10, 12, 14, 15, 16, 19, 22, 25, 26, 27, 28, 29, 30, 31, 32, 33
vD, vTok, vK, vK1, vV, vF6, vF7, vPush, vQa, vOnes = 123, 124, 125, 126, 127, 121, 122, 120, 112, 116


def att_setup(sRB, sCB):
    G = []
    g = G.append
    g(f"s_and_b32 s34, s2, 7\ns_bfe_u32 s{sQB}, s2, 0x30003\ns_bfe_u32 s35, s2, 0x20006\ns_lshl_b32 s{sH}, s34, 2\ns_add_u32 s{sH}, s{sH}, s35")
    g(f"s_mul_i32 s36, s{sH}, 5\ns_add_u32 s37, s36, 4\ns_lshr_b32 s38, s36, 5\ns_lshr_b32 s37, s37, 5\ns_sub_u32 s37, s37, s38")
    g(f"s_lshl_b32 s{sPV1}, s{sH}, 3\ns_add_u32 s{sPV1}, s{sPV1}, s{sQB}\ns_lshl_b32 s{sPV1}, s{sPV1}, 8\ns_add_u32 s{sPV1}, s{sPV1}, {PV1}")
    g(f"s_mov_b32 s{sNEED}, 0xf0f0c\ns_cmp_eq_u32 s37, 0\ns_cselect_b32 s{sNEED}, s{sNEED}, 0xfffff\ns_mov_b32 s{sPass}, 0\ns_min_u32 s{sChk}, s{S_W}, 1")
    g(f"v_bfe_u32 v11, v1, 4, 1\nv_mul_u32_u24 v11, s37, v11\nv_add_u32 v11, s38, v11\nv_lshrrev_b32 v14, 5, v1\nv_mul_u32_u24 v12, 15, v14\nv_max_u32 v12, v11, v12")
    g(f"v_mul_u32_u24 v13, 5, v14\nv_add3_u32 v11, v11, v13, 5\nv_and_b32 v13, 15, v1\nv_lshlrev_b32 v15, 3, v13\nv_add_u32 v15, {F1}, v15")
    g(f"v_lshl_add_u32 v{vF6}, v11, 7, v15\nv_lshl_add_u32 v{vF7}, v12, 7, v15\nv_lshlrev_b32 v{vD}, 4, v1")
    g(f"s_lshl_b32 s{sH1}, s2, 7\ns_add_u32 s{sH2}, s{sH1}, {F0B}\ns_add_u32 s{sH1}, s{sH1}, {F0}")
    for m in range(3):
        g(f"s_add_u32 s34, s{S_W}, {8*m}\ns_lshr_b32 s35, s34, 1\ns_and_b32 s34, s34, 1\ns_lshl_b32 s34, s34, 10\ns_mul_i32 s{sLd+m}, s35, {PS}\ns_add_u32 s{sLd+m}, s{sLd+m}, s34")
        g(f"s_cmp_ge_u32 s35, 5\ns_cselect_b32 s39, 155, 0\ns_add_u32 s35, s35, s39\ns_add_u32 s35, s35, s36\ns_mul_i32 s35, s35, {PL}\ns_add_u32 s35, s35, s34\ns_add_u32 s{sG+m}, s35, {QKVP + 160*PL}")
    g(f"s_lshr_b32 s34, s{S_W}, 1\ns_min_u32 s34, s34, 2\ns_mul_i32 s34, s34, {SLOT}\ns_and_b32 s35, s{S_W}, 1\ns_lshl_b32 s35, s35, 10\ns_add_u32 s34, s34, s35\ns_add_u32 s34, s34, {10*PS}\nv_add_u32 v{vOnes}, s34, v{vD}")
    g(f"s_and_b32 s34, s{S_W}, 3\ns_lshl_b32 s34, s34, 6\ns_lshr_b32 s35, s{S_W}, 2\ns_lshl_b32 s39, s35, 5\ns_add_u32 s34, s34, s39\ns_lshl_b32 s35, s35, 7")
    g(f"v_lshl_add_u32 v15, v13, 1, s34\nv_lshlrev_b32 v{vTok}, 3, v15\nv_bfe_u32 v12, v1, 4, 1\nv_lshl_add_u32 v15, v12, 3, v{vTok}\nv_xor_b32 v16, 256, v15")
    g(f"v_mul_u32_u24 v17, {2*PL}, v14\nv_add_u32 v{vQa}, v17, v15\nv_add_u32 v{vQa+2}, v17, v16\nv_lshlrev_b32 v17, 31, v14\nv_or_b32 v{vQa+1}, v17, v15\nv_or_b32 v{vQa+3}, v17, v16")
    g(f"v_and_b32 v15, 31, v1\nv_add_u32 v15, s35, v15\nv_lshlrev_b32 v15, 3, v15\nv_mul_u32_u24 v16, {2*PS}, v14\nv_add_u32 v{vK}, v16, v15")
    g(f"v_mul_u32_u24 v16, {6*PS}, v14\nv_add_u32 v16, {4*PS}, v16\nv_add_u32 v{vK1}, v16, v15\nv_and_b32 v16, 3, v1\nv_lshl_add_u32 v16, v12, 2, v16\nv_min_u32 v16, 5, v16")
    g(f"v_add_u32 v16, 5, v16\nv_mul_u32_u24 v16, {PS}, v16\nv_bfe_u32 v17, v1, 2, 2\nv_lshl_add_u32 v17, v14, 2, v17\nv_add_u32 v17, s35, v17\nv_lshl_add_u32 v{vV}, v17, 3, v16")
    g(f"s_mul_i32 s34, s36, {PL}\ns_lshl_b32 s35, s{sQB}, 11\ns_add_u32 s34, s34, s35\ns_add_u32 s{sQ}, s34, {QKVP}\ns_add_u32 s{sQ+1}, s{sQ}, {PL}\ns_add_u32 s{sQ+2}, s{sQ}, {4*PL}")
    g(f"s_add_u32 s{sO0}, s34, {OP}\ns_add_u32 s{sO1}, s{sO0}, {4*PL}\ns_lshl_b32 s{sPV4}, s{sQB}, 13\ns_lshl_b32 s35, s{sH}, 3\ns_add_u32 s{sPV4}, s{sPV4}, s35\ns_add_u32 s{sPV4}, s{sPV4}, {PV4}")
    if sRB is None:
        g(f"v_mov_b32 v{vPush}, {OOB}\ns_sub_u32 s{sF1}, s2, 240\ns_lshl_b32 s{sF1}, s{sF1}, 3\ns_add_u32 s{sF1}, s{sF1}, {F1 + 15*128}")
        return G
    c = 20 ** -0.5 * math.log2(math.e)
    g(f"s_cmp_lt_u32 s{sCB}, 5\ns_cselect_b32 s{sSC}, {f2u(c)}, 1.0\ns_mov_b32 s{sSC+1}, s{sSC}\ns_lshl_b32 s{sF1}, s{sCB}, 7\ns_lshl_b32 s34, s{sRB}, 3\ns_add_u32 s{sF1}, s{sF1}, s34\ns_add_u32 s{sF1}, s{sF1}, {F1}")
    g(f"s_mul_i32 s{sST0}, s{sCB}, {32*PL}\ns_lshl_b32 s34, s{sRB}, 10\ns_add_u32 s{sST0}, s{sST0}, s34\ns_add_u32 s{sST0}, s{sST0}, {QKVP}\ns_add_u32 s{sST1}, s{sST0}, {4*PL}")
    g(f"s_cmp_ge_u32 s{sCB}, 10\ns_cselect_b32 s38, 10, 5\ns_cselect_b32 s35, 8, 0\ns_sub_u32 s34, s{sCB}, s38\ns_add_u32 s35, s35, s{sRB}\ns_cmp_lt_u32 s{sRB}, 4\ns_cselect_b32 s37, 1, 0")
    g(f"s_and_b32 s38, s{sRB}, 1\ns_add_u32 s38, s38, 16\ns_cmp_lt_u32 s{sCB}, 5\ns_cselect_b32 s34, s{sCB}, s34\ns_cselect_b32 s35, s38, s35\ns_cselect_b32 s36, 2, 4\ns_cselect_b32 s37, 2, s37")
    g(f"s_mul_i32 s38, s34, {6554*32}\ns_lshr_b32 s38, s38, 15\nv_lshrrev_b32 v11, 3, v1\nv_add_u32 v11, s38, v11\nv_mul_u32_u24 v12, 5, v11\nv_lshrrev_b32 v13, 5, v12\ns_lshr_b32 s39, s{sRB}, 1")
    g(f"v_cmp_ge_u32 s[68:69], s34, v13\nv_cmp_ne_u32 vcc, s34, v13\nv_and_b32 v13, 7, v1\nv_lshl_add_u32 v11, v11, 3, v13\nv_cndmask_b32 v12, 0, 1, vcc\nv_mul_u32_u24 v12, s36, v12\nv_add_u32 v12, s35, v12")
    g(f"v_cmp_eq_u32 vcc, s39, v13\ns_cmp_eq_u32 s37, 2\ns_cselect_b64 vcc, vcc, -1\ns_and_b64 s[68:69], s[68:69], vcc\ns_cmp_eq_u32 s37, 0\ns_cselect_b64 s[68:69], 0, s[68:69]")
    g(f"v_lshlrev_b32 v11, 8, v11\nv_lshl_add_u32 v11, v12, 3, v11\nv_add_u32 v11, {PV1}, v11\nv_mov_b32 v{vPush}, {OOB}\nv_cndmask_b32 v{vPush}, v{vPush}, v11, s[68:69]")
    return G


def qkv():
    sRB, sCB, sKX, sKW, sMX, sMW, sT = 41, 42, 43, 64, 65, 66, 67
    vX0, vX1, vWs, vWr, vXr = 2, 3, 4, 5, 6
    ACC = 32
    FR = [64, 88]
    A("s_cmp_ge_u32 s2, 256\ns_cbranch_scc1 L_ROLE_B")
    stamp(0); fst(7, 0)
    A(f"s_load_dwordx2 s[{R0}:{R0+1}], s[0:1], 0\ns_load_dwordx2 s[{R1}:{R1+1}], s[0:1], 8\ns_load_dwordx2 s[{WS}:{WS+1}], s[0:1], 112")
    A(f"v_lshrrev_b32 v2, 6, v0\nv_and_b32 v1, 63, v0\nv_readfirstlane_b32 s{S_W}, v2")
    A(f"s_lshr_b32 s{sCB}, s2, 4\ns_and_b32 s{sCB}, s{sCB}, 14\ns_bfe_u32 s{sT}, s2, 0x10002\ns_or_b32 s{sCB}, s{sCB}, s{sT}")
    A(f"s_lshr_b32 s{sRB}, s2, 1\ns_and_b32 s{sRB}, s{sRB}, 12\ns_and_b32 s{sT}, s2, 3\ns_or_b32 s{sRB}, s{sRB}, s{sT}")
    A(f"s_cmp_eq_u32 s{sCB}, 15\ns_cselect_b32 s{sT}, 8, 0\ns_add_u32 s{sRB}, s{sRB}, s{sT}\ns_min_u32 s{sCB}, s{sCB}, 14")
    if OPT["qst"]:
        A(f"s_mov_b32 s{sKX}, 0")
    else:
        if OPT["qrot"] == 2:
            A(f"s_and_b32 s{sKX}, s2, 7")
        elif OPT["qrot"] == 1:
            A(f"s_mul_i32 s{sKX}, s{sRB}, 3\ns_add_u32 s{sKX}, s{sKX}, s{sCB}\ns_mul_i32 s{sT}, s{sKX}, 205\ns_lshr_b32 s{sT}, s{sT}, 11\ns_mul_i32 s{sT}, s{sT}, 10\ns_sub_u32 s{sKX}, s{sKX}, s{sT}")
        else:
            A(f"s_bfe_u32 s{sKX}, s2, 0x10003\ns_mul_i32 s{sKX}, s{sKX}, 5")
        A(f"s_mul_i32 s{sKW}, s{sKX}, {2*122880}\ns_lshl_b32 s{sKX}, s{sKX}, 7")
    A(f"s_lshl_b32 s{sT}, s{sRB}, 7\ns_lshr_b32 s68, s{S_W}, 1\ns_lshl_b32 s68, s68, 5\ns_add_u32 s{sT}, s{sT}, s68\ns_and_b32 s68, s{S_W}, 1\ns_add_u32 s{sT}, s{sT}, s68")
    A(f"v_lshrrev_b32 v10, 3, v1\nv_lshl_add_u32 v10, v10, 1, s{sT}\nv_mul_u32_u24 v10, 1280, v10")
    A(f"v_lshrrev_b32 v11, 4, v1\nv_and_b32 v12, 7, v1\nv_xor_b32 v12, v12, v11\nv_lshl_add_u32 v{vX0}, v12, 4, v10")
    A(f"s_lshl_b32 s{sMX}, s{S_W}, 11\ns_mov_b32 s{R0+2}, 2621440\ns_mov_b32 s{R0+3}, 0x20000\ns_mov_b32 m0, s{sMX}")
    A("s_cmp_ge_u32 s2, 240\ns_cbranch_scc1 L_QKV_IDLE")
    fst(7, 1)
    A("s_waitcnt lgkmcnt(0)")
    issued = []

    def dmaX(Sx, between=None):
        if OPT["qst"]:
            for i in range(2):
                if Sx or i:
                    A(f"s_add_u32 m0, s{sMX}, {(Sx % 3) * 16384 + i * 1024}")
                    A(f"s_movk_i32 s{sKX}, {128 * Sx}" if i == 0 else "s_nop 0")
                dma(vX0 + i, R0, sKX, 'nt' if OPT.get('ntx') else '')
                issued.append(("X", Sx))
                if between and i == 0:
                    between()
            return
        for i in range(2):
            if Sx or i:
                A(f"s_add_u32 m0, s{sMX}, {(Sx % 3) * 16384 + i * 1024}\ns_nop 0")
            dma(vX0 + i, R0, sKX, 'nt' if OPT.get('ntx') else '')
            issued.append(("X", Sx))
            if between and i == 0:
                between()
        A(f"s_add_u32 s{sKX}, s{sKX}, 128\ns_cmp_eq_u32 s{sKX}, 1280\ns_cselect_b32 s{sKX}, 0, s{sKX}")

    def dmaW(s):
        if OPT["qst"]:
            A(f"s_add_u32 m0, s{sMW}, {(s % 4) * 8192}\ns_mov_b32 s{sKW}, {122880 * s}")
            dma(vWs, R1, sKW, 'nt' if OPT.get('ntw') else '')
            issued.append(("W", s))
            return
        A(f"s_add_u32 m0, s{sMW}, {(s % 4) * 8192}\ns_nop 0")
        dma(vWs, R1, sKW, 'nt' if OPT.get('ntw') else '')
        issued.append(("W", s))
        A(f"s_add_u32 s{sKW}, s{sKW}, 122880\ns_cmp_eq_u32 s{sKW}, 2457600\ns_cselect_b32 s{sKW}, 0, s{sKW}")

    dmaX(0, lambda: A(f"v_xor_b32 v{vX1}, 64, v{vX0}\nv_add_u32 v{vX1}, 20480, v{vX1}"))
    A(f"s_lshl_b32 s68, s{S_W}, 2\nv_add_u32 v10, s68, v11\nv_mul_u32_u24 v10, 3840, v10")
    if OPT["q16"]:
        A(f"s_and_b32 s68, s{S_W}, 2\ns_lshl_b32 s68, s68, 2\nv_and_b32 v12, 15, v1\nv_lshl_add_u32 v13, v11, 1, s68\nv_xor_b32 v12, v12, v13\nv_lshl_add_u32 v10, v12, 4, v10")
    else:
        A(f"v_and_b32 v12, 15, v1\nv_lshlrev_b32 v13, 2, v11\nv_xor_b32 v12, v12, v13\nv_lshl_add_u32 v10, v12, 4, v10")
    A(f"s_lshl_b32 s68, s{sCB}, 8\nv_add_u32 v{vWs}, s68, v10\ns_lshl_b32 s{sMW}, s{S_W}, 10\ns_add_u32 s{sMW}, s{sMW}, 49152")
    A(f"s_mov_b32 s{R1+2}, 2457600\ns_mov_b32 s{R1+3}, 0x20000")
    dmaW(0)
    fst(7, 2)
    A(f"s_load_dword s{S_E}, {WSP}, {EPOCH}\ns_mov_b32 s{WS+2}, {WS_USED}\ns_mov_b32 s{WS+3}, 0x20000\ns_barrier")
    fst(7, 3)
    ramp = {0: [], 1: [("W", 2), ("W", 3), ("X", 2)], 2: [("X", 1), ("W", 2), ("W", 3), ("X", 2)], 3: [("W", 3), ("X", 2)]}[OPT["ramp"]]
    for k_, n_ in (("W", 1), ("X", 1), ("W", 2), ("W", 3), ("X", 2)):
        if (k_, n_) not in ramp:
            (dmaW if k_ == "W" else dmaX)(n_)
    fst(7, 4)
    if OPT["q16"]:
        A(f"v_lshrrev_b32 v10, 4, v1\nv_bfe_u32 v11, v1, 2, 2\nv_lshl_add_u32 v12, v10, 3, v11\nv_lshlrev_b32 v12, 8, v12")
        A(f"s_and_b32 s68, s{S_W}, 3\ns_lshl_b32 s68, s68, 2\nv_bfe_u32 v13, v1, 1, 1\nv_add_u32 v13, s68, v13")
        A(f"v_and_b32 v14, 1, v10\nv_lshl_add_u32 v11, v14, 2, v11\nv_lshlrev_b32 v11, 1, v11\nv_xor_b32 v13, v13, v11\nv_lshl_add_u32 v12, v13, 4, v12")
        A(f"v_and_b32 v14, 1, v1\nv_lshl_add_u32 v12, v14, 3, v12\nv_add_u32 v5, 49152, v12\nv_xor_b32 v6, 32, v5")
        A(f"s_lshr_b32 s68, s{S_W}, 2\ns_lshl_b32 s68, s68, 6\nv_and_b32 v11, 15, v1\nv_add_u32 v12, s68, v11\nv_lshlrev_b32 v12, 7, v12")
        A(f"v_lshrrev_b32 v13, 1, v11\nv_xor_b32 v13, v13, v10\nv_lshl_add_u32 v7, v13, 4, v12\nv_xor_b32 v8, 64, v7")
        fst(7, 5)
        G = [f"s_and_b32 s34, s{S_W}, 3\ns_lshl_b32 s34, s34, 3\nv_add_u32 v10, s34, v10\nv_mul_u32_u24 v10, {PL}, v10",
             f"v_and_b32 v11, 15, v1\nv_lshl_add_u32 v10, v11, 4, v10\ns_lshr_b32 s34, s{S_W}, 2\ns_lshl_b32 s34, s34, 9\nv_add_u32 v10, s34, v10"]
    else:
        A(f"v_lshrrev_b32 v10, 5, v1\nv_bfe_u32 v11, v1, 2, 2\nv_lshl_add_u32 v12, v10, 3, v11\nv_lshlrev_b32 v12, 8, v12")
        A(f"s_and_b32 s68, s{S_W}, 3\ns_lshl_b32 s68, s68, 2")
        A(f"v_bfe_u32 v13, v1, 4, 1\nv_lshlrev_b32 v13, 1, v13\nv_bfe_u32 v14, v1, 1, 1\nv_add3_u32 v13, v13, v14, s68")
        A(f"v_lshlrev_b32 v11, 2, v11\nv_xor_b32 v13, v13, v11\nv_lshl_add_u32 v12, v13, 4, v12")
        A(f"v_and_b32 v14, 1, v1\nv_lshl_add_u32 v12, v14, 3, v12\nv_add_u32 v{vWr}, 49152, v12")
        A(f"s_lshr_b32 s68, s{S_W}, 2\ns_lshl_b32 s68, s68, 6\nv_and_b32 v11, 31, v1\nv_add_u32 v12, s68, v11\nv_lshlrev_b32 v12, 7, v12")
        A(f"v_bfe_u32 v13, v1, 1, 3\nv_xor_b32 v13, v13, v10\nv_lshl_add_u32 v{vXr}, v13, 4, v12")
        for k in range(1, 4):
            A(f"v_xor_b32 v{vXr+k}, {32*k}, v{vXr}")
        fst(7, 5)
        G = [f"s_and_b32 s34, s{S_W}, 3\ns_lshl_b32 s34, s34, 3\nv_bfe_u32 v11, v1, 4, 1\nv_lshl_add_u32 v10, v11, 1, v10\nv_add_u32 v10, s34, v10\nv_mul_u32_u24 v10, {PL}, v10",
             f"v_and_b32 v11, 15, v1\nv_lshl_add_u32 v10, v11, 4, v10\ns_lshr_b32 s34, s{S_W}, 2\ns_lshl_b32 s34, s34, 9\nv_add_u32 v10, s34, v10"]
    GA = att_setup(sRB, sCB)
    post = []
    if OPT["post"]:
        post, GA = GA[:-8], GA[-8:]
    G += GA
    nf = OPT["nfill"]
    per = [G[len(G) * i // nf:len(G) * (i + 1) // nf] for i in range(nf)]

    def pvt_a():
        A(f"s_cmp_lg_u32 s{S_W}, 1\ns_cbranch_scc1 L_NOPVT\ns_and_b32 s3, s2, 7\ns_lshl_b32 s3, s3, 5\ns_lshr_b32 s67, s2, 3\ns_add_u32 s3, s3, s67\ns_lshl_b32 s3, s3, 8\ns_add_u32 s3, s3, {PV1}")
        A(f"s_load_dword s67, {WSP}, s3 glc\ns_load_dword s67, {WSP}, s3 offset:128 glc\nL_NOPVT:")

    if OPT["pvt"] == 2:
        pvt_a()

    def reads(s):
        f = FR[s & 1]
        ws, xs, b = (s % 4) * 8192, ((s >> 1) % 3) * 16384, s & 1
        if OPT["q16"]:
            for mi in range(2):
                for j in range(2):
                    A(f"ds_read_b64_tr_b16 {vr(f+4*mi+2*j, 2)}, v{5+mi} offset:{ws + 1024*j}")
                for ni in (2 * mi, 2 * mi + 1):
                    A(f"ds_read_b128 {vr(f+8+4*ni, 4)}, v{7+b} offset:{xs + 2048*ni}")
            return
        for u in range(2):
            for j in range(2):
                A(f"ds_read_b64_tr_b16 {vr(f+4*u+2*j, 2)}, v{vWr} offset:{ws + (16*u+4*j)*256}")
            for nt in range(2):
                A(f"ds_read_b128 {vr(f+8+8*u+4*nt, 4)}, v{vXr+2*b+u} offset:{xs + 4096*nt}")

    def mfma1(s, i):
        if s < 0:
            return
        f = FR[s & 1]
        if OPT["q16"]:
            for mi in range(2):
                a = ACC + 16 * mi + 4 * i
                A(f"{MF16} {vr(a,4)}, {vr(f+4*mi,4)}, {vr(f+8+4*i,4)}, {'0' if s == 0 else vr(a,4)}")
            return
        u, nt = i >> 1, i & 1
        c = "0" if (s == 0 and u == 0) else vr(ACC + 16 * nt, 16)
        A(f"{MF32} {vr(ACC+16*nt,16)}, {vr(f+4*u,4)}, {vr(f+8+8*u+4*nt,4)}, {c}")

    for s in range(20):
        last = max(i for i, t in enumerate(issued) if t in (("X", s >> 1), ("W", s)))
        A(f"s_waitcnt vmcnt({len(issued) - 1 - last})\ns_barrier")
        if s == 0:
            stamp(1); cstamp(10)
        if s < 4:
            fst(7, 6 + s)
        fill = per[s - OPT["fill0"]] if 0 <= s - OPT["fill0"] < nf else []
        if OPT["qil"]:
            n0 = len(L)
            reads(s)
            rd = L[n0:]
            del L[n0:]
            cut = {1: (3, 6, 8), 2: (2, 5, 8), 3: (4, 8, 8)}[OPT["qil"]]
            mfma1(s - 1, 0)
            L.extend(rd[:cut[0]])
            mfma1(s - 1, 1)
            L.extend(rd[cut[0]:cut[1]])
            if OPT["qil"] == 3 and s >= 1 and s + 3 < 20:
                dmaW(s + 3)
            mfma1(s - 1, 2)
            L.extend(rd[cut[1]:])
            if OPT["qil"] != 3 and s >= 1 and s + 3 < 20:
                dmaW(s + 3)
            if s >= 2 and s % 2 == 0 and s // 2 + 2 < 10:
                dmaX(s // 2 + 2)
            if s & 1:
                for x in fill[:1]:
                    A(x)
        else:
            mfma1(s - 1, 0)
            reads(s)
            mfma1(s - 1, 1)
            if s >= 1 and s + 3 < 20:
                dmaW(s + 3)
            if s & 1 == 0:
                pass
            else:
                for x in fill[:1]:
                    A(x)
            mfma1(s - 1, 2)
            if s >= 2 and s % 2 == 0 and s // 2 + 2 < 10:
                dmaX(s // 2 + 2)
        if s == 0:
            for k_, n_ in ramp:
                (dmaW if k_ == "W" else dmaX)(n_)
        if s == 3 and OPT["pvt"] == 1:
            pvt_a()
        if s == 1:
            epoch_fix()
        if (OPT["gk"] and not OPT["gs"] or OPT["pre"] == 2) and s == OPT["hs"]:
            A(f"s_lshl_b32 s3, s2, 7\ns_lshl_b32 s67, s{S_W}, 3\ns_add_u32 s3, s3, s67\ns_add_u32 s3, s3, {F0C}")
            A(f"v_mov_b32 v118, s{S_E}\nv_mov_b32 v119, s{S_E+1}\ns_mov_b64 exec, 1\nbuffer_store_dwordx2 v[118:119], off, {S(WS)}, s3 sc1\ns_mov_b64 exec, -1")
            issued.append(("H", 0))
        for x in (fill[1:] if s & 1 else fill):
            A(x)
        mfma1(s - 1, 3)
        A("s_waitcnt lgkmcnt(0)")
    for i in range(4):
        mfma1(19, i)
    stamp(2); cstamp(11); fst(8, 0)
    if OPT["q16"]:
        A("s_nop 2")
        for p in range(2):
            for mi in range(2):
                d = 64 + 8 * p + 4 * mi
                for k in range(2):
                    a = ACC + 16 * mi + 4 * (2 * p + k)
                    A(f"v_pk_mul_f32 {vr(a,2)}, {vr(a,2)}, s[{sSC}:{sSC+1}]\nv_pk_mul_f32 {vr(a+2,2)}, {vr(a+2,2)}, s[{sSC}:{sSC+1}]")
                    A(f"v_cvt_pk_bf16_f32 v{d+2*k}, v{a}, v{a+1}\nv_cvt_pk_bf16_f32 v{d+2*k+1}, v{a+2}, v{a+3}")
                A(f"buffer_store_dwordx4 {vr(d,4)}, v10, {S(WS)}, s{sST0 + mi} offen offset:{256*p} sc1")
    else:
        A("s_nop 10")
    for nt in range(0 if OPT["q16"] else 2):
        for g in range(4):
            a = ACC + 16 * nt + 4 * g
            A(f"v_pk_mul_f32 {vr(a,2)}, {vr(a,2)}, s[{sSC}:{sSC+1}]\nv_pk_mul_f32 {vr(a+2,2)}, {vr(a+2,2)}, s[{sSC}:{sSC+1}]")
            d = 64 + 8 * nt + 2 * g
            A(f"v_cvt_pk_bf16_f32 v{d}, v{a}, v{a+1}\nv_cvt_pk_bf16_f32 v{d+1}, v{a+2}, v{a+3}")
            if g & 1:
                d -= 2
                A(f"s_nop 0\nv_permlane16_swap_b32 v{d}, v{d+2}\nv_permlane16_swap_b32 v{d+1}, v{d+3}")
                A(f"buffer_store_dwordx4 {vr(d,4)}, v10, {S(WS)}, s{sST0 + (g >> 1)} offen offset:{256*nt} sc1")
    fst(8, 1)
    for x in post:
        A(x)


def qkv_idle():
    A(f"L_QKV_IDLE:\ns_waitcnt lgkmcnt(0)\ns_load_dword s{S_E}, {WSP}, {EPOCH}\ns_mov_b32 s{WS+2}, {WS_USED}\ns_mov_b32 s{WS+3}, 0x20000")
    for x in att_setup(None, None):
        A(x)
    A("s_waitcnt lgkmcnt(0)")
    epoch_fix()
    if OPT["gk"] and not OPT["gs"] or OPT["pre"] == 2:
        A(f"s_lshl_b32 s34, s2, 7\ns_add_u32 s34, s34, {F0C}")
        flag_store(34, t=118)
    A("s_branch L_PUB")


def attention():
    Q = [8, 14]; O = [20, 36]; SS = [52, 68]; Kf = [84, 90]; Vf = [96, 104]; P = 112
    A("L_PUB:")
    for i in range(4):
        A(f"v_mov_b32 v{4+i}, {(0x3f80 if i % 2 == 0 else 0) if OPT['sp1'] else 0x3f803f80}")
    A(f"v_mov_b32 v2, s{S_E}\nv_mov_b32 v3, s{S_E+1}\nv_mov_b32 v8, {BADW}\nv_mov_b32 v9, 0")
    A("s_waitcnt vmcnt(0)")
    fst(8, 2)
    A("s_barrier")
    fst(8, 3)
    A(f"s_cmp_lg_u32 s{S_W}, 0\ns_cbranch_scc1 L_NOPUSH")
    A(f"buffer_store_dwordx2 v[2:3], v{vPush}, {S(WS)}, 0 offen sc1\ns_mov_b64 exec, 1\nbuffer_store_dwordx2 v[2:3], off, {S(WS)}, s{sF1} sc1\ns_mov_b64 exec, -1\nL_NOPUSH:")
    stamp(3)
    A(f"ds_write_b128 v{vOnes}, v[4:7]\nds_write_b32 v8, v9\nds_write_b32 v8, v9 offset:4")
    A(f"s_waitcnt lgkmcnt(0)\ns_cmp_lg_u32 s{S_W}, 1\ns_cbranch_scc1 L_NOPOLL")
    spoll([(68, 8, 0), (84, 8, 64), (44, 4, 128)], sPV1, need=sNEED)
    A("L_NOPOLL:\ns_barrier")
    stamp(4); fst(8, 4)

    def dma_static(st, m, blk=None):
        if m == 2:
            sk2 = uid("D3")
            A(f"s_cbranch_vccz {sk2}")
        A(f"s_add_u32 m0, s{sLd+m}, {(st % 3) * SLOT}\ns_add_u32 s68, s{sG+m}, {2048 * st if blk is None else blk}")
        dma(vD, WS, 68, "sc1")
        if m == 2:
            A(f"{sk2}:")

    def qload(x):
        A(f"buffer_load_dwordx2 {vr(Q[x],2)}, v{vQa+2*x}, {S(WS)}, s{sQ} offen sc1")
        A(f"buffer_load_dwordx2 {vr(Q[x]+2,2)}, v{vQa+2*x}, {S(WS)}, s{sQ+1} offen sc1")
        A(f"buffer_load_dwordx2 {vr(Q[x]+4,2)}, v{vQa+1+2*x}, {S(WS)}, s{sQ+2} offen sc1")

    if OPT["qord"]:
        A(f"s_cmp_lt_u32 s{S_W}, 4\ns_cselect_b64 vcc, -1, 0")
        for m in range(3):
            dma_static(0, m)
        qload(0); qload(1)
        flag_store(sH1, t=2, wave=7)
        A("s_branch L_ATT_GO\nL_ATT_MAIN:")
        A(f"s_cmp_lt_u32 s{S_W}, 4\ns_cselect_b64 vcc, -1, 0")
        for m in range(3):
            dma_static(0, m)
        A("L_ATT_GO:\ns_waitcnt vmcnt(0)\ns_barrier")
    else:
        qload(0); qload(1)
        A("L_ATT_MAIN:")
        A(f"s_cmp_lt_u32 s{S_W}, 4\ns_cselect_b64 vcc, -1, 0")
        for m in range(3):
            dma_static(0, m)
        flag_store(sH1, t=2, wave=7)
        A("s_waitcnt vmcnt(0)\ns_barrier")
    stamp(5); cstamp(8); fst(8, 5)

    def kreads(kl, off):
        A(f"ds_read_b64 {vr(kl,2)}, v{vK} offset:{off}\nds_read_b64 {vr(kl+2,2)}, v{vK} offset:{off+PS}\nds_read_b64 {vr(kl+4,2)}, v{vK1} offset:{off}")

    def vreads(vl, off):
        for j in range(4):
            A(f"ds_read_b64_tr_b16 {vr(vl+2*j,2)}, v{vV} offset:{off+64*j}")

    kreads(Kf[0], 0)
    vreads(Vf[0], 0)
    for m in range(2):
        dma_static(1, m)
    A("s_waitcnt lgkmcnt(4)")
    A(f"{MF32} {vr(SS[0],16)}, {vr(Kf[0],4)}, {vr(Q[0],4)}, 0\n{MF8} {vr(SS[0],16)}, {vr(Kf[0]+4,2)}, {vr(Q[0]+4,2)}, {vr(SS[0],16)}")
    dma_static(1, 2)
    A("s_nop 9")

    def tail_addr():
        A(f"s_lshl_b32 s64, s{S_W}, 12\ns_add_u32 s64, s64, {RED}\ns_xor_b32 s65, s{S_W}, 4\ns_lshl_b32 s65, s65, 12\ns_add_u32 s65, s65, {RED}")
        A(f"v_add_u32 v2, s64, v{vD}\nv_add_u32 v3, s65, v{vD}\ns_movk_i32 s69, 0x100\nv_cmp_gt_u32 s[66:67], s69, v{vD}")
        A(f"v_lshrrev_b32 v4, 9, v{vD}\nv_bfe_u32 v5, v{vD}, 8, 1\nv_lshl_add_u32 v5, v5, 1, v4\nv_mul_u32_u24 v5, {PL}, v5\nv_add_u32 v5, v5, v{vTok}")
        A(f"v_mov_b32 v4, {OOB}\nv_cndmask_b32 v4, v4, v{vTok}, s[66:67]")

    def unit(st, x, kt):
        s = SS[x]; sn = SS[1 - x]
        nk = kt if x == 0 else kt + 1
        kf = Kf[nk & 1]; qn = Q[1 - x]
        pk = kt - 1 if x == 0 else kt
        vprev = Vf[pk & 1]; v = Vf[kt & 1]
        last = st == 7 and kt == 3
        e = lambda i: A(f"v_exp_f32 v{s+i}, v{s+i}")
        c = lambda i: A(f"v_cvt_pk_bf16_f32 v{P+i}, v{s+2*i}, v{s+2*i+1}")
        nxt_off = ((st + 1) % 3) * SLOT if kt == 3 else (st % 3) * SLOT + 256 * (kt + 1)
        if x == 1 and not last:
            A("s_waitcnt lgkmcnt(0)")
        if not (last and x == 1):
            A(f"{MF32} {vr(sn,16)}, {vr(kf,4)}, {vr(qn,4)}, 0")
        e(0); e(1); e(2); e(3)
        if not (last and x == 1):
            A(f"{MF8} {vr(sn,16)}, {vr(kf+4,2)}, {vr(qn+4,2)}, {vr(sn,16)}")
        c(0); c(1); e(4); e(5); e(6); e(7)
        if (st, x, kt) != (0, 0, 0):
            A(f"{MF32} {vr(O[1-x],16)}, {vr(vprev+4,4)}, {vr(P+4,4)}, {vr(O[1-x],16)}")
        if not last:
            if x == 0:
                if kt == 3:
                    A("s_waitcnt vmcnt(0)")
                    if st == 0:
                        fc = uid("FC")
                        A(f"s_cmp_lg_u32 s{sChk}, 0\ns_cbranch_scc1 {fc}")
                        A(f"v_cmp_ne_u64 s[64:65], {EP}, v[2:3]\nv_cmp_ne_u64 s[66:67], {EP}, v[4:5]\ns_or_b64 s[64:65], s[64:65], s[66:67]\ns_cbranch_scc0 {fc}")
                        poll([vF6, vF7], t=2)
                        A(f"s_mov_b64 vcc, -1\n{fc}:")
                    A("s_barrier")
                kreads(Kf[(kt + 1) & 1], nxt_off)
            else:
                vreads(Vf[(kt + 1) & 1], nxt_off)
        site = {(1, 3): (0, st + 2), (0, 0): (1, st + 1), (1, 0): (2, st + 1)}.get((x, kt))
        if site and 2 <= site[1] < 8:
            dma_static(site[1], site[0])
        if st == OPT["g2s"] - 1 and 2 * kt + x == OPT["g2q"]:
            flag_store(sH2, t=6, wave=7)
        if (st, x, kt) == (1, 1, 1):
            tail_addr()
        if (st, x, kt) == (0, 0, 2):
            nf = uid("NF")
            A(f"s_cmp_lg_u32 s{sChk}, 0\ns_cbranch_scc1 {nf}")
            A(f"buffer_load_dwordx2 v[2:3], v{vF6}, {S(WS)}, 0 offen sc1\nbuffer_load_dwordx2 v[4:5], v{vF7}, {S(WS)}, 0 offen sc1\n{nf}:")
        if OPT["tog"] == 1:
            A(f"s_setprio {1 - x}")
        if OPT["tog"] >= 2:
            gu = 8 * st + 2 * kt + x
            top = 3 if OPT["tog"] == 2 else 2
            if gu < 6:
                lv = {0: top, 1: top - 1, 3: top - 2, 5: top - 3}.get(gu) if top == 3 else {0: 2, 2: 1, 4: 0}.get(gu)
            elif gu >= 54:
                lv = {54: 3, 57: 2, 60: 1, 62: 0}.get(gu) if top == 3 else {54: 2, 58: 1, 61: 0}.get(gu)
            else:
                ph = (gu - 6) % 8
                lv = {0: 3, 2: 2, 4: 1, 6: 0}.get(ph) if top == 3 else {0: 2, 3: 1, 6: 0}.get(ph)
            if lv is not None:
                A(f"s_setprio {lv}")
        c(2); c(3); e(8); e(9); e(10); e(11)
        if x == 0:
            A(f"s_waitcnt lgkmcnt({0 if last else 3})")
        A(f"{MF32} {vr(O[x],16)}, {vr(v,4)}, {vr(P,4)}, {'0' if (st, kt) == (0, 0) else vr(O[x],16)}")
        c(4); c(5); e(12); e(13); e(14); e(15); c(6); c(7)

    for st in range(8):
        fst(10, st); rst(11, st)
        for kt in range(4):
            unit(st, 0, kt)
            unit(st, 1, kt)
    A(f"s_setprio 3\ns_nop 0\n{MF32} {vr(O[1],16)}, {vr(Vf[1]+4,4)}, {vr(P+4,4)}, {vr(O[1],16)}")
    stamp(6); cstamp(9); fst(6, 0); fst(10, 8); rst(11, 8)
    assert RED + 8 * 4096 <= BADW
    o = O[0]
    lo, hi = f2u(2.0 ** -60), f2u(2.0 ** 60)
    if OPT["force_fb"]:
        hi = f2u(2.0 ** -59)
    A(f"v_mov_b32 v70, 0\nv_mov_b32 v71, 0\nv_mov_b32 v80, {lo}\nv_mov_b32 v81, {hi}\nv_mov_b32 v83, {BADW}")
    A(f"v_lshlrev_b32 v82, 4, v{vD}\nv_mov_b32 v84, s{S_E}\nv_mov_b32 v85, s{S_E+1}\ns_nop 3")
    for g in range(4):
        A(f"ds_write_b128 v2, {vr(O[1]+4*g,4)} offset:{1024*g}")
    fst(6, 1)
    A("s_waitcnt lgkmcnt(0)\ns_barrier")
    fst(6, 2)
    for g in (3, 0, 1, 2):
        A(f"ds_read_b128 {vr(52+4*g,4)}, v3 offset:{1024*g}")
    A(f"s_waitcnt lgkmcnt(3)\nv_add_f32 v{o+12}, v{o+12}, v{52+12}\nv_rcp_f32 v68, v{o+12}")
    for g in range(3):
        a = o + 4 * g
        A(f"s_waitcnt lgkmcnt({2-g})\nv_pk_add_f32 {vr(a,2)}, {vr(a,2)}, {vr(52+4*g,2)}\nv_pk_add_f32 {vr(a+2,2)}, {vr(a+2,2)}, {vr(54+4*g,2)}")
        A(f"v_pk_mul_f32 {vr(a,2)}, {vr(a,2)}, v[68:69] op_sel_hi:[1,0]\nv_pk_mul_f32 {vr(a+2,2)}, {vr(a+2,2)}, v[68:69] op_sel_hi:[1,0]")
        A(f"v_cvt_pk_bf16_f32 v{72+2*g}, v{a}, v{a+1}\nv_cvt_pk_bf16_f32 v{73+2*g}, v{a+2}, v{a+3}")
        if g == 1:
            A(f"s_nop 0\nv_permlane16_swap_b32 v72, v74\nv_permlane16_swap_b32 v73, v75")
            A(f"buffer_store_dwordx4 v[72:75], v5, {S(WS)}, s{sO0} offen sc1")
        if g == 2:
            A(f"v_mov_b32 v78, v76\nv_mov_b32 v79, v77\ns_nop 0\nv_permlane16_swap_b32 v76, v78\nv_permlane16_swap_b32 v77, v79")
            A(f"buffer_store_dwordx4 v[76:79], v4, {S(WS)}, s{sO1} offen sc1")
    for i in range(0, 12, 2):
        A(f"v_pk_fma_f32 v[70:71], {vr(o+i,2)}, 0, v[70:71] op_sel_hi:[1,0,1]")
    A(f"v_cmp_u_f32 vcc, v70, v71\nv_cmp_ngt_f32 s[66:67], v{o+12}, v80\ns_or_b64 vcc, vcc, s[66:67]\nv_cmp_nlt_f32 s[66:67], v{o+12}, v81\ns_or_b64 vcc, vcc, s[66:67]")
    A(f"s_cbranch_vccz L_NOBAD\nv_mov_b32 v81, 1\nds_write_b32 v83, v81\nL_NOBAD:")
    fst(6, 3)
    if OPT["lastw"]:
        A("s_waitcnt lgkmcnt(0)\ns_barrier\nds_read_b32 v81, v83\nv_mov_b32 v86, 1\ns_waitcnt lgkmcnt(0)\nv_readfirstlane_b32 s64, v81")
        A(f"s_cmp_gt_u32 s64, s{sPass}\ns_cbranch_scc1 L_ATT_FB0")
        A("s_mov_b64 exec, 1\ns_waitcnt vmcnt(0)")
        fst(6, 4)
        A("ds_add_rtn_u32 v86, v83, v86 offset:4\ns_waitcnt lgkmcnt(0)\nv_readfirstlane_b32 s64, v86\ns_mov_b64 exec, -1")
        fst(6, 5)
        A(f"s_cmp_lg_u32 s64, 7\ns_cbranch_scc1 L_A_DONE\ns_mov_b32 exec_hi, 0\nbuffer_store_dwordx2 v[84:85], v82, {S(WS)}, s{sPV4} offen sc1\ns_mov_b64 exec, -1")
    else:
        A("s_waitcnt lgkmcnt(0)\ns_barrier\nds_read_b32 v81, v83\ns_waitcnt vmcnt(0) lgkmcnt(0)\nv_readfirstlane_b32 s64, v81")
        fst(6, 4)
        A("s_barrier")
        fst(6, 5)
        A(f"s_cmp_gt_u32 s64, s{sPass}\ns_cbranch_scc1 L_ATT_FB")
        A(f"s_cmp_lg_u32 s{S_W}, 0\ns_cbranch_scc1 L_A_DONE\ns_mov_b32 exec_hi, 0\nbuffer_store_dwordx2 v[84:85], v82, {S(WS)}, s{sPV4} offen sc1\ns_mov_b64 exec, -1")
    A("L_A_DONE:")
    stamp(7)
    dump_stamps(12, "A")
    A("s_endpgm")

    A("L_ATT_FB0:\ns_waitcnt vmcnt(0)\nL_ATT_FB:")
    A(f"s_mov_b32 s{sPass}, 1\ns_mov_b32 s{sChk}, 1\ns_mov_b32 s34, 0\ns_cmp_lt_u32 s{S_W}, 4\ns_cselect_b64 vcc, -1, 0")
    A("v_mov_b32 v20, 0xff800000\nv_mov_b32 v21, 0xff800000")
    A("L_FB_LOOP:\ns_barrier")
    for m in range(3):
        dma_static(0, m, "s34")
    A("s_waitcnt vmcnt(0)\ns_barrier")
    for kt in range(4):
        kreads(Kf[0], 256 * kt)
        A("s_waitcnt lgkmcnt(0)")
        for x in range(2):
            A(f"{MF32} {vr(SS[x],16)}, {vr(Kf[0],4)}, {vr(Q[x],4)}, 0\n{MF8} {vr(SS[x],16)}, {vr(Kf[0]+4,2)}, {vr(Q[x]+4,2)}, {vr(SS[x],16)}")
        A("s_nop 15")
        for x in range(2):
            for i in range(0, 16, 2):
                A(f"v_max3_f32 v{20+x}, v{SS[x]+i}, v{SS[x]+i+1}, v{20+x}")
    A("s_add_u32 s34, s34, 2048\ns_cmp_lt_u32 s34, 16384\ns_cbranch_scc1 L_FB_LOOP")
    for x in range(2):
        A(f"v_mov_b32 v22, v{20+x}\ns_nop 1\nv_permlane32_swap_b32 v{20+x}, v22\nv_max_f32 v{20+x}, v{20+x}, v22")
    A(f"s_barrier\nds_write_b64 v2, v[20:21]\ns_waitcnt lgkmcnt(0)\ns_barrier\nds_read_b64 v[22:23], v3\ns_waitcnt lgkmcnt(0)")
    A("v_max_f32 v20, v20, v23\nv_max_f32 v21, v21, v22\nv_cmp_le_u32 vcc, 32, v1")
    for x in range(2):
        A(f"v_sub_f32 v24, 0, v{20+x}\nv_and_b32 v25, 0xffff0000, v24\nv_sub_f32 v24, v24, v25\nv_and_b32 v26, 0xffff0000, v24\nv_sub_f32 v24, v24, v26")
        A(f"v_lshrrev_b32 v25, 16, v25\nv_or_b32 v25, v25, v26\nv_lshrrev_b32 v24, 16, v24")
        A(f"v_cndmask_b32 v{Q[x]+4}, v{Q[x]+4}, v25, vcc\nv_cndmask_b32 v{Q[x]+5}, v{Q[x]+5}, v24, vcc")
    A(f"s_lshr_b32 s64, s{S_W}, 1\ns_min_u32 s64, s64, 2\ns_mul_i32 s64, s64, {SLOT}\ns_and_b32 s65, s{S_W}, 1\ns_lshl_b32 s65, s65, 10\ns_add_u32 s64, s64, s65\ns_add_u32 s64, s64, {10*PS}")
    A(f"v_add_u32 v24, s64, v{vD}")
    for i in range(4):
        A(f"v_mov_b32 v{28+i}, 0x3f803f80")
    A("s_barrier\nds_write_b128 v24, v[28:31]\ns_waitcnt lgkmcnt(0)\ns_branch L_ATT_MAIN")


def cmul(d, a, b, t):
    A(f"v_pk_mul_f32 {vr(t,2)}, {vr(a,2)}, {vr(b,2)} op_sel:[0,0] op_sel_hi:[1,0]")
    A(f"v_pk_fma_f32 {vr(d,2)}, {vr(a,2)}, {vr(b,2)}, {vr(t,2)} op_sel:[1,1,0] op_sel_hi:[0,1,1] neg_lo:[0,1,0]")


def cfma(d, a, b, c, t):
    A(f"v_pk_fma_f32 {vr(t,2)}, {vr(a,2)}, {vr(b,2)}, {vr(c,2)} op_sel:[0,0,0] op_sel_hi:[1,0,1]")
    A(f"v_pk_fma_f32 {vr(d,2)}, {vr(a,2)}, {vr(b,2)}, {vr(t,2)} op_sel:[1,1,0] op_sel_hi:[0,1,1] neg_lo:[0,1,0]")


def gather4(src, dst):
    if OPT["lscan"]:
        A(f"ds_write_b64 v0, {vr(src,2)}")
        for q in range(4):
            A(f"ds_read_b64 {vr(dst+2*q,2)}, v17 offset:{128*q}")
        A("s_waitcnt lgkmcnt(0)")
        return
    for c in range(2):
        A(f"v_mov_b32 v{dst+c}, v{src+c}\nv_mov_b32 v{dst+2+c}, v{src+c}")
    A("s_nop 0")
    for c in range(2):
        A(f"v_permlane16_swap_b32 v{dst+c}, v{dst+2+c}")
    for c in range(4):
        A(f"v_mov_b32 v{dst+4+c}, v{dst+c}")
    for c in range(4):
        A(f"v_permlane32_swap_b32 v{dst+c}, v{dst+4+c}")


sTC, sNB, sK, sROT, sCT = 41, 42, 43, 37, 36


def hoist():
    A(f"v_and_b32 v26, 15, v1\nv_add_u32 v123, s{sCT}, v26\nv_lshlrev_b32 v123, 3, v123")
    A(f"v_lshrrev_b32 v27, 4, v1\nv_mul_u32_u24 v28, {8*640}, v27\ns_sub_u32 s65, 32, s{sTC}\ns_mul_i32 s65, s65, 640\nv_add3_u32 v124, v123, v28, s65")
    A(f"v_mul_u32_u24 v28, 40960, v27\nv_lshl_add_u32 v125, v16, 4, v28")
    A(f"s_lshl_b32 s65, s{S_W}, 6\nv_add_u32 v28, s65, v1\nv_mul_u32_u24 v29, 6554, v28\nv_lshrrev_b32 v29, 16, v29\nv_mul_u32_u24 v30, 10, v29\nv_sub_u32 v30, v28, v30")
    A(f"v_and_b32 v28, 0x78, v29\nv_and_b32 v31, 1, v29\nv_lshl_add_u32 v28, v31, 2, v28\nv_bfe_u32 v31, v29, 1, 2\nv_add_u32 v28, v28, v31")
    A(f"v_mul_u32_u24 v28, 1280, v28\nv_lshl_add_u32 v28, v30, 4, v28\ns_mul_i32 s65, s{sNB}, 160\nv_add_u32 v117, s65, v28")
    A(f"v_lshrrev_b32 v28, 5, v1\nv_mul_u32_u24 v28, {PL}, v28\nv_and_b32 v29, 31, v1\nv_lshlrev_b32 v29, 4, v29\ns_and_b32 s65, s{S_W}, 1\ns_lshl_b32 s65, s65, 7\nv_xor_b32 v29, s65, v29\nv_add_u32 v119, v28, v29")
    A("v_bfe_u32 v30, v1, 2, 2\nv_and_b32 v31, 3, v1")
    sm, dn = uid("HS"), uid("HD")
    A(f"s_cmp_ge_u32 s{S_W}, 4\ns_cbranch_scc1 {sm}")
    for big in (True, False):
        if big:
            A(f"v_lshrrev_b32 v27, 5, v1\nv_and_b32 v26, 31, v1\ns_lshr_b32 s65, s{S_W}, 1\ns_and_b32 s66, s{S_W}, 1")
            A(f"s_lshl_b32 s67, s65, 5\ns_lshl_b32 s68, s66, 5")
            A(f"s_lshl_b32 s69, s65, 2\nv_bfe_u32 v28, v1, 4, 1\nv_lshlrev_b32 v28, 1, v28\nv_lshrrev_b32 v29, 1, v31\nv_add3_u32 v28, v28, v29, s69")
        else:
            A(f"{sm}:\ns_sub_u32 s65, s{S_W}, 4\ns_lshl_b32 s67, s65, 4\ns_mov_b32 s68, 64")
            A(f"s_lshl_b32 s69, s65, 1\nv_lshrrev_b32 v28, 1, v31\nv_add_u32 v28, s69, v28")
        A(f"v_mul_u32_u24 v28, 1088, v28\nv_lshl_add_u32 v29, v27, 3, v30\nv_lshl_add_u32 v28, v29, 4, v28\nv_and_b32 v29, 1, v31\nv_lshl_add_u32 v112, v29, 3, v28")
        A(f"v_add_u32 v28, s68, v26\nv_lshlrev_b32 v28, 7, v28\nv_add_u32 v28, 8704, v28\nv_bfe_u32 v29, v26, 1, 3\nv_xor_b32 v29, v29, v27\nv_lshl_add_u32 v113, v29, 4, v28")
        A(f"s_lshl_b32 s69, s{sTC}, 6\ns_add_u32 s69, s69, s67\nv_lshl_add_u32 v28, v27, 2, s69\ns_mul_i32 s69, s{sNB}, 80\ns_add_u32 s69, s69, s68\nv_add_u32 v29, s69, v26")
        A("v_mul_u32_u24 v114, 1280, v28\nv_lshl_add_u32 v114, v29, 1, v114\nv_mul_u32_u24 v115, 5120, v28\nv_lshl_add_u32 v115, v29, 2, v115\nv_lshlrev_b32 v126, 1, v29")
        A("v_lshlrev_b32 v28, 1, v30\nv_lshl_add_u32 v28, v27, 3, v28\nv_mul_u32_u24 v28, 160, v28\nv_lshl_add_u32 v28, v31, 3, v28")
        if big:
            A("v_bfe_u32 v29, v1, 4, 1\nv_lshl_add_u32 v28, v29, 5, v28\ns_lshl_b32 s69, s66, 6\nv_add_u32 v116, s69, v28")
            A("v_add_u32 v28, s67, v26\nv_lshlrev_b32 v28, 3, v28\nv_lshlrev_b32 v29, 7, v27\nv_xor_b32 v28, v28, v29\nv_lshl_add_u32 v28, v27, 10, v28\ns_mul_i32 s69, s65, 40960\nv_add_u32 v118, s69, v28")
            A(f"v_lshlrev_b32 v122, 4, v1\nv_mov_b32 v127, 0\nv_mov_b32 v26, 0\nv_mov_b32 v27, 0\nv_mov_b32 v28, 0\ns_branch {dn}")
        else:
            A("v_add_u32 v116, 128, v28")
            A("v_add_u32 v28, s67, v26\nv_lshlrev_b32 v28, 3, v28\nv_and_b32 v29, 1, v27\nv_lshlrev_b32 v29, 7, v29\nv_xor_b32 v28, v28, v29\nv_lshl_add_u32 v118, v27, 10, v28")
            A(f"v_lshrrev_b32 v28, 3, v1\ns_mul_i32 s69, s{sNB}, 80\ns_lshl_b32 s66, s65, 3\ns_add_u32 s69, s69, s66\nv_add_u32 v28, s69, v28\nv_mul_u32_u24 v28, 1280, v28")
            A(f"v_and_b32 v29, 7, v1\nv_xor_b32 v29, v29, v27\ns_and_b32 s69, s65, 1\ns_lshl_b32 s69, s69, 2\nv_xor_b32 v29, s69, v29\nv_lshl_add_u32 v122, v29, 4, v28")
            A("v_xor_b32 v127, 64, v113\nv_add_u32 v26, 40960, v122\nv_add_u32 v27, 81920, v122\nv_add_u32 v28, 40960, v118")
    A(f"{dn}:")


def wo_src(d, sj, t):
    A(f"v_add_u32 v{t}, s{sj}, v1\nv_mul_u32_u24 v{t+1}, 6554, v{t}\nv_lshrrev_b32 v{t+1}, 16, v{t+1}\nv_mul_u32_u24 v{t+2}, 10, v{t+1}\nv_sub_u32 v{t+2}, v{t}, v{t+2}")
    A(f"v_and_b32 v{t}, 0x78, v{t+1}\nv_and_b32 v{t+3}, 1, v{t+1}\nv_lshl_add_u32 v{t}, v{t+3}, 2, v{t}\nv_bfe_u32 v{t+3}, v{t+1}, 1, 2\nv_add_u32 v{t}, v{t}, v{t+3}")
    A(f"v_mul_u32_u24 v{t}, 1280, v{t}\nv_lshl_add_u32 v{t}, v{t+2}, 4, v{t}\ns_mul_i32 s69, s{sNB}, 160\nv_add_u32 v{d}, s69, v{t}")


def role_b():
    A("L_ROLE_B:\ns_cmp_ge_u32 s2, 512\ns_cbranch_scc1 L_END")
    if OPT.get("nob"):
        A("s_endpgm")
    stamp(0)
    A(f"s_load_dwordx16 s[8:23], s[0:1], 0\ns_load_dwordx8 s[24:31], s[0:1], 64\ns_load_dwordx2 s[{P_OUT}:{P_OUT+1}], s[0:1], 96\ns_load_dwordx2 s[{WS}:{WS+1}], s[0:1], 112")
    A(f"v_lshrrev_b32 v2, 6, v0\nv_and_b32 v1, 63, v0\nv_readfirstlane_b32 s{S_W}, v2")
    bhi()
    if OPT["prea"]:
        A(f"s_cmp_ge_u32 s{S_W}, 4\ns_cbranch_scc1 L_NOPREA\ns_and_b32 s64, s{S_W}, 2\ns_lshl_b32 s64, s64, 2\ns_load_dwordx2 s[{R3}:{R3+1}], s[0:1], s64")
        A(f"s_sub_u32 s66, s2, 256\ns_lshl_b32 s66, s66, 1\ns_and_b32 s67, s{S_W}, 1\ns_add_u32 s66, s66, s67\ns_cmp_lt_u32 s{S_W}, 2\ns_cselect_b32 s67, 40, 38\ns_mul_i32 s66, s66, s67\ns_lshl_b32 s66, s66, 7")
        A(f"s_mov_b32 s{R3+2}, 2457600\ns_cmp_lt_u32 s{S_W}, 2\ns_cselect_b32 s{R3+2}, 2621440, s{R3+2}\ns_mov_b32 s{R3+3}, 0x20000\nv_min_u32 v32, 39, v1\nv_lshlrev_b32 v32, 7, v32")
        if OPT["prea"] == 1:
            A(f"s_waitcnt lgkmcnt(0)\nbuffer_load_dword v33, v32, {S(R3)}, s66 offen")
        A(f"s_mov_b32 s3, s66\nL_NOPREA:")
    if OPT["cpre"]:
        cp = uid("CP")
        A(f"s_cmp_lg_u32 s{S_W}, 7\ns_cbranch_scc1 {cp}\ns_getpc_b64 s[64:65]\nL_PC:\ns_sub_u32 s64, s64, L_PC-{NAME}_kernel\ns_subb_u32 s65, s65, 0")
        A("s_bfe_u32 s66, s2, 0x50003\ns_lshl_b32 s66, s66, 11\nv_and_b32 v2, 15, v1\nv_lshlrev_b32 v2, 7, v2\nv_add_u32 v2, s66, v2")
        A(f"v_min_u32 v2, L_END-{NAME}_kernel, v2\nv_mov_b32 v3, s65\nv_add_co_u32 v2, vcc, s64, v2\ns_nop 1\nv_addc_co_u32 v3, vcc, 0, v3, vcc\nglobal_load_dword v4, v[2:3], off\n{cp}:")
    A(f"s_and_b32 s{sTC}, s2, 3\ns_lshl_b32 s{sTC}, s{sTC}, 3\ns_bfe_u32 s64, s2, 0x30003\ns_add_u32 s{sTC}, s{sTC}, s64")
    A(f"s_and_b32 s{sNB}, s2, 4\ns_bfe_u32 s64, s2, 0x20006\ns_add_u32 s{sNB}, s{sNB}, s64")
    A(f"s_mul_i32 s{sROT}, s{sNB}, 3\ns_add_u32 s{sROT}, s{sROT}, s{sTC}")
    A(f"s_mul_i32 s64, s{sROT}, 205\ns_lshr_b32 s64, s64, 11\ns_mul_i32 s64, s64, 10\ns_sub_u32 s{sROT}, s{sROT}, s64")
    if not OPT["brot"]:
        A(f"s_mov_b32 s{sROT}, 0")
    if OPT["pre"]:
        A(f"s_lshl_b32 s64, s{S_W}, 3\ns_add_u32 s64, s64, 48\ns_cmp_eq_u32 s{S_W}, 4\ns_cselect_b32 s64, 16, s64\ns_cmp_gt_u32 s{S_W}, 4\ns_cselect_b32 s64, 24, s64")
        A(f"s_load_dwordx2 s[{R3}:{R3+1}], s[0:1], s64\ns_cselect_b32 s{R3+2}, 2621440, 0\ns_cselect_b32 s65, 39, 24\ns_max_u32 s{R3+2}, s{R3+2}, 819200\ns_mov_b32 s{R3+3}, 0x20000")
        A(f"v_min_u32 v32, s65, v1\nv_lshlrev_b32 v32, 7, v32\ns_sub_u32 s66, s2, 256\ns_mul_i32 s38, s66, 3200\ns_mul_i32 s66, s66, 10240\ns_sub_u32 s67, s{S_W}, 5\ns_mul_i32 s67, s67, 5120\ns_add_u32 s66, s66, s67")
        A(f"s_cmp_gt_u32 s{S_W}, 4\ns_cselect_b32 s38, s66, s38\ns_cmp_eq_u32 s{S_W}, 7\ns_cselect_b32 s39, {OOB}, 0\nv_or_b32 v32, s39, v32")
    A(f"s_mov_b32 s{WS+2}, {WS_USED}\ns_mov_b32 s{WS+3}, 0x20000\ns_waitcnt lgkmcnt(0)\ns_load_dword s{S_E}, {WSP}, {EPOCH}")
    if OPT["pre"] == 1:
        A(f"buffer_load_dword v33, v32, {S(R3)}, s38 offen")
    MU, CF, MU16, PW, LAM, LAM8 = 2, 4, 6, 8, 10, 12
    A(f"s_min_u32 s{sCT}, s{S_W}, 4\ns_lshl_b32 s{sCT}, s{sCT}, 4\ns_mul_i32 s64, s{sNB}, 80\ns_add_u32 s64, s64, s{sCT}")
    vS0, vRA, vRB = 14, 18, 22
    SH = 12288

    def advK():
        A(f"s_add_u32 s{sK}, s{sK}, 128\ns_cmp_eq_u32 s{sK}, 1280\ns_cselect_b32 s{sK}, 0, s{sK}")

    def dmaB(Sx):
        for q in range(4):
            A(f"s_add_u32 m0, s38, {(Sx % 2) * 4096 + q * 1024}\ns_nop 0")
            dma(vS0 + (q & 1), R1 if q < 2 else R2, sK)
        advK()

    def dmaB4(Sx):
        for q in range(2):
            A(f"s_add_u32 m0, s38, {(Sx % 3) * SH + 8192 + q * 1024}\ns_nop 0")
            dma(vS0 + q, R3, sK)
        advK()

    def dmaX(Sx):
        for q in range(4):
            A(f"s_add_u32 m0, s38, {(Sx % 3) * SH + q * 1024}\ns_nop 0")
            dma([vS0, vS0 + 1, 54, 55][q], R0, sK)
        advK()

    def g1_common():
        srd(R0, P_BX, 2621440); srd(R1, P_BRE, 819200); srd(R2, P_BIM, 819200)
        A(f"s_cmp_eq_u32 s{S_W}, 5\ns_cselect_b32 s{R3}, s{R1}, s{R2}\ns_cselect_b32 s{R3+1}, s{R1+1}, s{R2+1}\ns_mov_b32 s{R3+2}, 819200\ns_mov_b32 s{R3+3}, 0x20000")
        A(f"s_lshl_b32 s{sK}, s{sROT}, 7\nv_mov_b32 v54, 0\nv_mov_b32 v55, 0")
        A("v_lshrrev_b32 v30, 4, v1\nv_and_b32 v31, 7, v1\nv_xor_b32 v31, v31, v30\nv_lshlrev_b32 v31, 4, v31")

    def src_b():
        A(f"v_lshrrev_b32 v30, 3, v1\nv_add_u32 v30, s64, v30\nv_mul_u32_u24 v30, 1280, v30\nv_add_u32 v{vS0}, v30, v31")
        A(f"v_xor_b32 v{vS0+1}, 64, v{vS0}\nv_add_u32 v{vS0+1}, 10240, v{vS0+1}")

    def src_main():
        src_b()
        A(f"s_lshl_b32 s38, s{S_W}, 13\ns_add_u32 s38, s38, {3*SH}")

    def src_aux():
        src_b()
        A(f"s_sub_u32 s38, s{S_W}, 5\ns_lshl_b32 s38, s38, 11")

    def src_ld():
        A(f"s_cmp_eq_u32 s{S_W}, 7\ns_cselect_b32 s38, 1, 0")
        A(f"v_lshrrev_b32 v30, 5, v1\nv_bfe_u32 v29, v1, 3, 1\nv_lshl_add_u32 v30, v30, 1, v29\nv_lshlrev_b32 v30, 4, v30\nv_bfe_u32 v29, v1, 4, 1\nv_add_u32 v30, v30, v29")
        A(f"s_lshl_b32 s66, s{sTC}, 6\ns_lshl_b32 s67, s38, 3\ns_add_u32 s66, s66, s67\nv_add_u32 v30, s66, v30\nv_mul_u32_u24 v30, 1280, v30\nv_add_u32 v{vS0}, v30, v31")
        A(f"v_xor_b32 v{vS0+1}, 64, v{vS0}\nv_add_u32 v{vS0+1}, 2560, v{vS0+1}\nv_add_u32 v54, 5120, v{vS0}\nv_add_u32 v55, 5120, v{vS0+1}\ns_lshl_b32 s38, s38, 12")

    EARLY = OPT["gs"] == 2
    if EARLY:
        g1_common()
        A(f"s_cmp_ge_u32 s{S_W}, 4\ns_cbranch_scc1 L_E1")
        src_main(); dmaB(0); dmaB(1)
        A(f"s_branch L_E3\nL_E1:\ns_cmp_eq_u32 s{S_W}, 4\ns_cbranch_scc1 L_E2\ns_cmp_eq_u32 s{S_W}, 7\ns_cbranch_scc1 L_E2")
        src_aux(); dmaB4(0); dmaB4(1)
        A("s_branch L_E3\nL_E2:")
        src_ld(); dmaX(0); dmaX(1)
        A("L_E3:")
    A(f"v_and_b32 v16, 15, v1\nv_add_u32 v16, s64, v16\nv_lshlrev_b32 v21, 1, v16")
    for k, p in enumerate((P_LRE, P_LIM, P_LDT)):
        srd(8, p, 1280)
        A(f"buffer_load_ushort v{22+k}, v21, {S(8)}, 0 offen")
    def prea_go(n):
        if OPT["prea"] == n:
            A(f"s_cmp_ge_u32 s{S_W}, 4\ns_cbranch_scc1 L_NOPREB\nbuffer_load_dword v33, v32, {S(R3)}, s3 offen\nL_NOPREB:")

    if OPT["prea"] == 4:
        A("s_waitcnt lgkmcnt(0)")
        prea_go(4)
    prea_go(2)
    A("s_waitcnt vmcnt(0) lgkmcnt(0)")
    prea_go(3)
    epoch_fix()
    LOG2E = f2u(math.log2(math.e))
    A("v_lshlrev_b32 v22, 16, v22\nv_lshlrev_b32 v23, 16, v23\nv_lshlrev_b32 v24, 16, v24")
    A(f"v_mul_f32 v24, {LOG2E}, v24\nv_exp_f32 v24, v24\ns_nop 0\nv_cvt_pk_bf16_f32 v24, v24, v24\nv_lshlrev_b32 v24, 16, v24")
    A(f"v_mul_f32 v25, v24, v22\nv_mul_f32 v26, v24, v23\nv_mul_f32 v25, {LOG2E}, v25\nv_exp_f32 v25, v25")
    A(f"v_mul_f32 v26, 0.15915494, v26\nv_fract_f32 v26, v26\nv_cos_f32 v27, v26\nv_sin_f32 v28, v26\ns_nop 0")
    A(f"v_mul_f32 v{MU}, v25, v27\nv_mul_f32 v28, v25, v28\nv_sub_f32 v{MU+1}, 0, v28")
    A(f"v_add_f32 v27, -1.0, v{MU}")
    A("v_mul_f32 v25, v22, v22\nv_fmac_f32 v25, v23, v23\nv_rcp_f32 v25, v25")
    A("v_mul_f32 v26, v27, v22\nv_fmac_f32 v26, v28, v23\nv_mul_f32 v29, v28, v22\nv_fma_f32 v29, -v27, v23, v29")
    A(f"v_add_f32 v25, v25, v25\nv_mul_f32 v{CF}, v26, v25\nv_mul_f32 v29, v29, v25\nv_sub_f32 v{CF+1}, 0, v29")
    cmul(MU16, MU, MU, 22)
    for _ in range(3):
        cmul(MU16, MU16, MU16, 22)
    cmul(24, MU16, MU16, 22)
    cmul(26, 24, MU16, 22)
    cmul(LAM, 24, 24, 22)
    cmul(LAM8, LAM, LAM, 22)
    cmul(LAM8, LAM8, LAM8, 22)
    cmul(LAM8, LAM8, LAM8, 22)
    A("v_lshrrev_b32 v28, 4, v1")
    A(f"v_cmp_eq_u32 s[96:97], 1, v28\nv_cmp_eq_u32 s[98:99], 2, v28\nv_cmp_eq_u32 s[100:101], 3, v28")
    A(f"v_mov_b32 v{PW}, 1.0\nv_mov_b32 v{PW+1}, 0")
    for src, m in ((MU16, 96), (24, 98), (26, 100)):
        for c in range(2):
            A(f"v_cndmask_b32 v{PW+c}, v{PW+c}, v{src+c}, s[{m}:{m+1}]")
    if OPT["pre"] == 3:
        A(f"buffer_load_dword v33, v32, {S(R3)}, s38 offen")
    if OPT["pre"] == 2:
        A(f"s_cmp_lg_u32 s{S_W}, 0\ns_cbranch_scc1 L_NOH0\ns_mov_b32 s39, s64\ns_sub_u32 s66, s2, 256\ns_lshl_b32 s66, s66, 7\ns_add_u32 s66, s66, {F0C}")
        spoll([(8, 1, 0)], 66)
        A(f"s_mov_b32 s64, s39\nL_NOH0:\ns_barrier\nbuffer_load_dword v33, v32, {S(R3)}, s38 offen")
    if OPT["pvt"]:
        A(f"s_cmp_lg_u32 s{S_W}, 6\ns_cbranch_scc1 L_NOPVB\ns_lshl_b32 s65, s{sNB}, 5\ns_add_u32 s65, s65, s{sTC}\ns_lshl_b32 s65, s65, 8\ns_add_u32 s65, s65, {PV2}")
        A(f"s_lshl_b32 s66, s{sTC}, 3\ns_add_u32 s66, s66, s{sNB}\ns_lshl_b32 s67, s66, 7\ns_add_u32 s67, s67, {PV3}\ns_lshl_b32 s66, s66, 8\ns_add_u32 s66, s66, {PV4}")
        A(f"s_load_dword s3, {WSP}, s65 glc\ns_load_dword s3, {WSP}, s65 offset:128 glc\ns_load_dword s3, {WSP}, s67 glc\ns_load_dword s3, {WSP}, s66 glc\ns_load_dword s3, {WSP}, s66 offset:128 glc")
        A(f"s_sub_u32 s65, s2, 256\ns_lshl_b32 s65, s65, 7\ns_add_u32 s65, s65, {F0B}\ns_load_dword s3, {WSP}, s65 glc\ns_waitcnt lgkmcnt(0)\nL_NOPVB:")
    hoist()
    if not EARLY:
        g1_common()
    A(f"v_and_b32 v30, 31, v1\nv_lshlrev_b32 v30, 7, v30\nv_lshrrev_b32 v17, 5, v1\nv_bfe_u32 v29, v1, 1, 3\nv_xor_b32 v29, v17, v29\nv_lshl_add_u32 v{vRA}, v29, 4, v30")

    def scan_addr():
        A(f"s_mul_i32 s66, s{sCT}, 576\ns_add_u32 s66, s66, 20480\ns_lshl_b32 s67, s{sCT}, 5\ns_add_u32 s67, s67, 66560")
        A(f"v_and_b32 v0, 15, v1\nv_lshl_add_u32 v29, v17, 5, v0\nv_mul_u32_u24 v29, 144, v29\nv_bfe_u32 v30, v1, 4, 1\nv_lshl_add_u32 v29, v30, 2, v29\nv_add_u32 v29, s66, v29\nv_add_u32 v30, 2304, v29")
        A(f"v_mul_u32_u24 v31, 144, v1\nv_add_u32 v31, s66, v31\nv_lshl_add_u32 v17, v0, 3, s67\nv_lshl_add_u32 v0, v1, 3, s67")

    def early_addr():
        if not OPT["wearly"]:
            return
        A(f"s_cmp_eq_u32 s{S_W}, 6\ns_cselect_b32 s34, 1, 4\ns_cselect_b32 s35, 2, 0\ns_cmp_eq_u32 s{S_W}, 7\ns_cselect_b32 s34, 3, s34")
        for k in range(2):
            A(f"s_lshl_b32 s68, s{34+k}, 6")
            wo_src(48 + k, 68, 50)
            A(f"s_lshl_b32 s{34+k}, s{34+k}, 10")

    def touch2():
        t1, t2 = uid("U1"), uid("U2")
        if OPT["wearly"]:
            srd(R1, P_WO, 819200)
            for k in range(2):
                if k:
                    A(f"s_cmp_eq_u32 s{S_W}, 7\ns_cbranch_scc1 {t1}")
                for m in range(16):
                    A(f"s_add_u32 m0, s{34+k}, {5120*m}\ns_mov_b32 s64, {32*m*1280}")
                    dma(48 + k, R1, 64)
        else:
            A(f"s_cmp_eq_u32 s{S_W}, 7\ns_cbranch_scc1 {t1}")
        if OPT["c1"] >= 0 and not OPT["cu"]:
            A(f"{t1}:")
            return
        A(f"s_and_b32 s66, s{sTC}, 7\ns_mul_i32 s39, s66, 10\ns_mul_i32 s68, s{sNB}, 80\ns_add_u32 s39, s39, s68\ns_mul_i32 s39, s39, 1280")
        A(f"s_cmp_eq_u32 s{S_W}, 5\ns_cselect_b32 s{R1}, s{P_CRE}, s{P_CIM}\ns_cselect_b32 s{R1+1}, s{P_CRE+1}, s{P_CIM+1}")
        A(f"v_lshlrev_b32 v66, 7, v1\nv_min_u32 v67, 35, v1\nv_lshlrev_b32 v67, 7, v67\nv_add_u32 v67, 8192, v67")
        A(f"buffer_load_dword v64, v66, {S(R1)}, s39 offen\nbuffer_load_dword v65, v67, {S(R1)}, s39 offen\ns_branch {t2}\n{t1}:")
        srd(R1, P_WO, 819200)
        A(f"s_and_b32 s66, s{sTC}, 7\ns_mul_i32 s66, s66, {16*1280}\ns_mul_i32 s67, s{sNB}, 160\ns_add_u32 s66, s66, s67\ns_add_u32 s66, s66, {512*1280}")
        A(f"v_bfe_u32 v66, v1, 1, 4\nv_mul_u32_u24 v66, 1280, v66\nv_and_b32 v67, 1, v1\nv_mul_u32_u24 v67, 156, v67\nv_add_u32 v66, v66, v67")
        A(f"buffer_load_dword v64, v66, {S(R1)}, s66 offen\n{t2}:")

    GK = OPT["gk"]

    def more(Sx):
        return Sx + 2 < 10 and not (GK and Sx < GK <= Sx + 2)

    def inflight(Sx):
        return 0 if Sx == 9 or (GK and Sx == GK - 1) else 1

    def gate(Sx, issue, poller):
        if GK and Sx == GK:
            if poller:
                A(f"s_cmp_lg_u32 s{S_W}, 4\ns_cbranch_scc1 L_NOGATE\ns_sub_u32 s66, s2, 256\ns_lshl_b32 s66, s66, 7\ns_add_u32 s66, s66, {F0}")
                spoll([(8, 1, 0)], 66)
                A("L_NOGATE:")
            A("s_barrier")
            issue(GK); issue(GK + 1)

    ACC, BF, AF = 32, 64, 80
    A(f"s_cmp_ge_u32 s{S_W}, 4\ns_cbranch_scc1 L_G1_AUX")
    if not EARLY:
        src_main()
    for u in range(1, 4):
        A(f"v_xor_b32 v{vRA+u}, {32*u}, v{vRA}")
    for u in range(4):
        A(f"v_add_u32 v{vRB+u}, s38, v{vRA+u}")
    scan_addr()
    if not OPT["gs"]:
        A(f"s_cmp_lg_u32 s{S_W}, 0\ns_cbranch_scc1 L_NOHINT\ns_sub_u32 s66, s2, 256\ns_lshl_b32 s66, s66, 7\ns_add_u32 s66, s66, {F0C if OPT['gk'] else F0}")
        spoll([(8, 1, 0)], 66)
    A("L_NOHINT:\ns_waitcnt vmcnt(0)\ns_barrier")
    stamp(1)
    A(f"s_setprio {3 if OPT['mlo'] else OPT['g1p']}\n;MLO_ON")

    def g1_mm(Sx, u, tts=(0, 1)):
        for tt in tts:
            c = "0" if (Sx == 0 and u == 0) else vr(ACC + 16 * tt, 16)
            A(f"{MF32} {vr(ACC+16*tt,16)}, {vr(AF+8*u+4*tt,4)}, {vr(BF+4*u,4)}, {c}")

    if not EARLY:
        dmaB(0); dmaB(1)
    for Sx in range(10):
        fst(1, Sx)
        gate(Sx, dmaB, False)
        A(f"s_waitcnt vmcnt({4 * inflight(Sx)})")
        for u in range(3):
            A(f"ds_read_b128 {vr(BF+4*u,4)}, v{vRB+u} offset:{(Sx % 2) * 4096}")
        A("s_barrier")
        if Sx:
            g1_mm(Sx - 1, 3, (0,))
        for u in range(3):
            for tt in range(2):
                A(f"ds_read_b128 {vr(AF+8*u+4*tt,4)}, v{vRA+u} offset:{(Sx % 3) * SH + 4096*tt}")
        if Sx:
            g1_mm(Sx - 1, 3, (1,))
        A(f"ds_read_b128 {vr(BF+12,4)}, v{vRB+3} offset:{(Sx % 2) * 4096}")
        for tt in range(2):
            A(f"ds_read_b128 {vr(AF+24+4*tt,4)}, v{vRA+3} offset:{(Sx % 3) * SH + 4096*tt}")
        A("s_waitcnt lgkmcnt(7)")
        g1_mm(Sx, 0)
        A("s_waitcnt lgkmcnt(5)")
        g1_mm(Sx, 1)
        A("s_waitcnt lgkmcnt(3)")
        g1_mm(Sx, 2)
        A("s_waitcnt lgkmcnt(0)")
        if more(Sx):
            dmaB(Sx + 2)
    g1_mm(9, 3)
    A(";MLO_OFF\ns_barrier\ns_nop 10\ns_branch L_SCAN")

    A("L_G1_AUX:")
    A(f"s_cmp_eq_u32 s{S_W}, 4\ns_cbranch_scc1 L_G1_LD\ns_cmp_eq_u32 s{S_W}, 7\ns_cbranch_scc1 L_G1_LD")
    if not EARLY:
        src_aux()
    A(f"s_lshl_b32 s66, s38, 1")
    for u in range(1, 4):
        A(f"v_xor_b32 v{vRA+u}, {32*u}, v{vRA}")
    for u in range(4):
        A(f"v_add_u32 v{vRB+u}, s66, v{vRA+u}")
    scan_addr()
    early_addr()
    A("s_waitcnt vmcnt(0)\ns_barrier")
    A(f"s_setprio {3 if OPT['mlo'] else OPT['g1p']}\n;MLO_ON")

    if not EARLY:
        dmaB4(0); dmaB4(1)
    for Sx in range(10):
        gate(Sx, dmaB4, False)
        A(f"s_waitcnt vmcnt({2 * inflight(Sx)})\ns_barrier")
        for u in range(4):
            A(f"ds_read_b128 {vr(BF+4*u,4)}, v{vRA+u} offset:{(Sx % 3) * SH + 8192}")
            A(f"ds_read_b128 {vr(AF+4*u,4)}, v{vRB+u} offset:{(Sx % 3) * SH}")
        for u in range(4):
            A(f"s_waitcnt lgkmcnt({6-2*u})")
            c = "0" if (Sx == 0 and u == 0) else vr(ACC, 16)
            A(f"{MF32} {vr(ACC,16)}, {vr(AF+4*u,4)}, {vr(BF+4*u,4)}, {c}")
        if more(Sx):
            dmaB4(Sx + 2)
    A(";MLO_OFF")
    if OPT["lscan"]:
        A(f"s_cmp_eq_u32 s{S_W}, 5\ns_cbranch_scc1 L_G1_RED\ns_barrier\ns_nop 8")
        for j in range(0, 16, 4):
            for p in range(2):
                A(f"ds_write2_b32 v{29+p}, v{ACC+j+p}, v{ACC+j+p+2} offset0:{16 + j} offset1:{18 + j}")
        A("s_waitcnt lgkmcnt(0)\ns_barrier")
        bhi()
        touch2()
        A("s_branch L_G1_AUX2")
    else:
        bhi()
        A(f"s_lshl_b32 s66, s{S_W}, 12\ns_add_u32 s66, s66, {69632 - 5*4096}\nv_lshlrev_b32 v30, 4, v1\nv_add_u32 v30, s66, v30\ns_nop 7")
        for g in range(4):
            A(f"ds_write_b128 v30, {vr(ACC+4*g,4)} offset:{1024*g}")
        A("s_waitcnt lgkmcnt(0)\ns_branch L_G1_AUXEND")

    A("L_G1_LD:")
    if not EARLY:
        src_ld()
    early_addr()
    if OPT["t1"]:
        t7, td = uid("T7"), uid("TD")
        A(f"v_lshrrev_b32 v52, 1, v1\nv_mul_u32_u24 v52, 1280, v52\nv_and_b32 v53, 1, v1\nv_lshl_add_u32 v52, v53, 7, v52\nv_add_u32 v52, {128 * OPT['gk']}, v52\ns_cmp_eq_u32 s{S_W}, 7\ns_cbranch_scc1 {t7}")
        A(f"s_and_b32 s66, s{sNB}, 3\ns_lshl_b32 s66, s66, 4\ns_lshl_b32 s67, s{sTC}, 6\ns_add_u32 s66, s66, s67\ns_mul_i32 s66, s66, 1280\ns_mov_b32 exec_hi, 0")
        A(f"buffer_load_dword v56, v52, {S(R0)}, s66 offen\ns_branch {td}\n{t7}:")
        A(f"s_and_b32 s66, s{sTC}, 7\ns_mul_i32 s66, s66, 10\ns_mul_i32 s67, s{sNB}, 80\ns_add_u32 s66, s66, s67\ns_mul_i32 s66, s66, 1280\ns_mov_b64 exec, 0xfffff")
        A(f"buffer_load_dword v56, v52, {S(R1)}, s66 offen\nbuffer_load_dword v57, v52, {S(R2)}, s66 offen\n{td}:\ns_mov_b64 exec, -1")
    A("s_waitcnt vmcnt(0)\ns_barrier")

    if not EARLY:
        dmaX(0); dmaX(1)
    if OPT["g1t"]:
        t7, td = uid("G7"), uid("GD")
        A(f"s_sub_u32 s66, s2, 256\ns_cmp_eq_u32 s{S_W}, 7\ns_cbranch_scc1 {t7}")
        A(f"s_mul_i32 s66, s66, 10240\nv_min_u32 v66, 39, v1\nv_lshlrev_b32 v66, 7, v66\nbuffer_load_dword v62, v66, {S(R0)}, s66 offen\ns_add_u32 s66, s66, 5120\nbuffer_load_dword v63, v66, {S(R0)}, s66 offen\ns_branch {td}")
        A(f"{t7}:\ns_mul_i32 s66, s66, 3200\nv_min_u32 v66, 24, v1\nv_lshlrev_b32 v66, 7, v66\nbuffer_load_dword v62, v66, {S(R1)}, s66 offen\nbuffer_load_dword v63, v66, {S(R2)}, s66 offen\n{td}:")
    for Sx in range(10):
        gate(Sx, dmaX, True)
        C1 = OPT["c1"]
        A(f"s_waitcnt vmcnt({4 * inflight(Sx) + ((2 if OPT['cu'] else 4) if C1 >= 0 and Sx in (C1 + 1, C1 + 2) else 0) + (2 if OPT['g1t'] and Sx < 2 else 0)})\ns_barrier")
        if more(Sx):
            dmaX(Sx + 2)
        if Sx == C1 and OPT["cu"]:
            A(f"s_sub_u32 s66, s2, 256\ns_mul_i32 s66, s66, 3200\nv_min_u32 v66, 24, v1\nv_lshlrev_b32 v66, 7, v66\ns_cmp_eq_u32 s{S_W}, 7")
            A(f"s_cselect_b32 s{R3}, s{P_WO}, s{P_CRE}\ns_cselect_b32 s{R3+1}, s{P_WO+1}, s{P_CRE+1}\ns_mov_b32 s{R3+2}, 819200\ns_mov_b32 s{R3+3}, 0x20000")
            A(f"buffer_load_dword v60, v66, {S(R3)}, s66 offen\ns_cselect_b32 s{R3}, s{P_WO}, s{P_CIM}\ns_cselect_b32 s{R3+1}, s{P_WO+1}, s{P_CIM+1}\nbuffer_load_dword v61, v66, {S(R3)}, s66 offen")
        elif Sx == C1:
            t1, t2 = uid("W1"), uid("W2")
            A(f"s_and_b32 s66, s{sTC}, 7\ns_cmp_eq_u32 s{S_W}, 7\ns_cbranch_scc1 {t1}")
            A(f"s_mul_i32 s66, s66, 10\ns_mul_i32 s68, s{sNB}, 80\ns_add_u32 s66, s66, s68\ns_mul_i32 s66, s66, 1280")
            A(f"v_lshlrev_b32 v66, 7, v1\nv_min_u32 v67, 35, v1\nv_lshlrev_b32 v67, 7, v67\nv_add_u32 v67, 8192, v67")
            for k, p in enumerate((P_CRE, P_CIM)):
                srd(R3, p, 819200)
                A(f"buffer_load_dword v{60+2*k}, v66, {S(R3)}, s66 offen\nbuffer_load_dword v{61+2*k}, v67, {S(R3)}, s66 offen")
            A(f"s_branch {t2}\n{t1}:")
            srd(R3, P_WO, 819200)
            A(f"s_mul_i32 s66, s66, {80*1280}\ns_mul_i32 s67, s{sNB}, 160\ns_add_u32 s66, s66, s67")
            A(f"v_lshrrev_b32 v66, 1, v1\nv_min_u32 v66, 19, v66\nv_mul_u32_u24 v66, 1280, v66\nv_and_b32 v67, 1, v1\nv_mul_u32_u24 v67, 156, v67\nv_add_u32 v66, v66, v67")
            for k in range(4):
                A(f"buffer_load_dword v{60+k}, v66, {S(R3)}, s66 offen")
                if k < 3:
                    A(f"s_add_u32 s66, s66, {20*1280}")
            A(f"{t2}:")
    A(f"v_lshlrev_b32 v30, 4, v1\nv_add_u32 v30, 69632, v30\ns_cmp_eq_u32 s{S_W}, 4\ns_cbranch_scc1 L_G1_RED")
    A("L_G1_AUXEND:")
    A("s_barrier\ns_barrier")
    A(f"s_cmp_lg_u32 s{S_W}, 6\ns_cbranch_scc1 L_F2POLL")
    touch2()
    A("s_barrier\ns_waitcnt vmcnt(0)\ns_branch L_B_H\nL_F2POLL:")
    A(f"s_cmp_eq_u32 s{S_W}, 7\ns_cselect_b32 s66, 16, 0\ns_sub_i32 s67, s{sTC}, s66\ns_max_i32 s67, s67, 0\ns_min_i32 s67, s67, 16\ns_lshr_b32 s67, 0xffff0000, s67\ns_and_b32 s67, s67, 0xffff")
    A(f"s_lshl_b32 s66, s66, 3\ns_lshl_b32 s65, s{sNB}, 5\ns_add_u32 s65, s65, s{sTC}\ns_lshl_b32 s65, s65, 8\ns_add_u32 s66, s66, s65\ns_add_u32 s66, s66, {PV2}")
    spoll([(68, 8, 0), (84, 8, 64)], 66, need=67)
    A("s_barrier")
    touch2()
    A("s_waitcnt vmcnt(0)\ns_branch L_B_H")
    A("L_G1_RED:\ns_barrier")
    if OPT["lscan"]:
        A("s_nop 8")
        for j in range(0, 16, 4):
            for p in range(2):
                A(f"ds_write2_b32 v{29+p}, v{ACC+j+p}, v{ACC+j+p+2} offset0:{j} offset1:{2 + j}")
        A("s_branch L_SCAN2")
    else:
        for g in range(8):
            A(f"ds_read_b128 {vr(ACC+4*g,4)}, v30 offset:{1024*g}")
        A("s_waitcnt lgkmcnt(0)")
    A("L_SCAN:")
    stamp(2)
    if OPT["lscan"]:
        for tt in range(2):
            for j in range(0, 16, 4):
                for p in range(2):
                    A(f"ds_write2_b32 v{29+p}, v{ACC+16*tt+j+p}, v{ACC+16*tt+j+p+2} offset0:{16*tt + j} offset1:{16*tt + 2 + j}")
        A("L_SCAN2:\ns_waitcnt lgkmcnt(0)\ns_barrier")
        for i in range(8):
            A(f"ds_read_b128 {vr(ACC+4*i,4)}, v31 offset:{16*i}")
        bhi()
    else:
        bhi()
        for i in range(16):
            A(f"v_permlane16_swap_b32 v{ACC+2*i}, v{ACC+2*i+1}")
    for i in range(16):
        u = ACC + 2 * i
        t = 64 + 2 * (i & 1)
        if OPT["lscan"] and i % 2 == 0:
            A(f"s_waitcnt lgkmcnt({7 - i // 2})")
        A(f"v_pk_mul_f32 {vr(t,2)}, {vr(u,2)}, {vr(CF,2)} op_sel:[0,0] op_sel_hi:[0,1]")
        A(f"v_pk_fma_f32 {vr(u,2)}, {vr(u,2)}, {vr(CF,2)}, {vr(t,2)} op_sel:[1,1,0] op_sel_hi:[1,0,1] neg_hi:[0,1,0]")
    G, T = 68, 70
    cfma(G, ACC, MU, ACC + 2, T)
    for i in range(2, 16):
        cfma(G, G, MU, ACC + 2 * i, T)
    E4 = 72
    A(f"s_mul_i32 s64, s{sNB}, 20480\ns_add_u32 s64, s64, {EB}\ns_add_u32 s{R3}, s{WS}, s64\ns_addc_u32 s{R3+1}, s{WS+1}, 0\ns_mov_b32 s{R3+2}, 20480\ns_mov_b32 s{R3+3}, 0x20000")
    gather4(G, E4)
    PRE = 80
    cfma(82, E4, MU16, E4 + 2, T)
    cfma(84, 82, MU16, E4 + 4, T)
    cfma(86, 84, MU16, E4 + 6, T)
    A(f"s_sub_u32 s64, 31, s{sTC}\ns_mul_i32 s64, s64, 640\ns_mov_b64 exec, 0xffff")
    A(f"buffer_store_dwordx2 v[86:87], v123, {S(R3)}, s64 offen sc1\ns_mov_b64 exec, -1")
    A(f"v_mov_b32 v{PRE}, 0\nv_mov_b32 v{PRE+1}, 0")
    for src, m in ((E4, 96), (82, 98), (84, 100)):
        for c in range(2):
            A(f"v_cndmask_b32 v{PRE+c}, v{PRE+c}, v{src+c}, s[{m}:{m+1}]")
    A(f"s_lshl_b32 s68, s{sNB}, 13\ns_lshl_b32 s69, s{sTC}, 3\ns_add_u32 s68, s68, s69\ns_add_u32 s68, s68, {PV2}")
    A(f"v_lshlrev_b32 v88, 8, v1\nv_mov_b32 v90, s{S_E}\nv_mov_b32 v91, s{S_E+1}\ns_lshl_b32 s69, -2, s{sTC}")
    A("s_waitcnt vmcnt(0)\ns_barrier")
    A(f"s_cmp_lg_u32 s{S_W}, 0\ns_cbranch_scc1 L_NOP2\ns_cmp_eq_u32 s69, 0\ns_cbranch_scc1 L_NOP2\ns_mov_b32 exec_lo, s69\ns_mov_b32 exec_hi, 0")
    A(f"buffer_store_dwordx2 v[90:91], v88, {S(WS)}, s68 offen sc1\ns_mov_b64 exec, -1\nL_NOP2:")
    stamp(3)
    A(f"s_cmp_ge_u32 s{S_W}, 4\ns_cbranch_scc1 L_NOSKIP")
    srd(R1, P_DSK, 1280)
    A(f"buffer_load_ushort v14, v126, {S(R1)}, 0 offen")
    for i in range(16):
        A(f"s_mov_b32 s64, {(8 * (i >> 2) + (i & 3))*1280}\nbuffer_load_ushort v{16+i}, v114, {S(R0)}, s64 offen")
    A("L_NOSKIP:\ns_movk_i32 s64, 4480\ns_barrier")
    stamp(4)
    EL = 96
    for u in range(8):
        d = 7 - u
        A(f"buffer_load_dwordx2 {vr(EL+2*u,2)}, v124, {S(R3)}, {'s64' if d == 7 else '0'} offen offset:{0 if d == 7 else 640*d} sc1")
    A("s_waitcnt vmcnt(6)")
    cfma(G, EL, LAM, EL + 2, T)
    for u in range(2, 8):
        A(f"s_waitcnt vmcnt({7-u})")
        cfma(G, G, LAM, EL + 2 * u, T)
    gather4(G, E4)
    cfma(G, E4 + 6, LAM8, E4 + 4, T)
    cfma(G, G, LAM8, E4 + 2, T)
    cfma(G, G, LAM8, E4, T)
    cfma(G, G, PW, PRE, T)
    PK = 72
    A(f"s_mul_i32 s64, s{sTC}, 163840\ns_add_u32 s64, s64, {HB}")
    for tt in range(2):
        for i in range(8 * tt, 8 * tt + 8):
            cfma(ACC + 2 * i, G if i == 0 else ACC + 2 * i - 2, MU, ACC + 2 * i, T)
        for c in range(2):
            d = PK + 8 * tt + 4 * c
            for m in range(4):
                a = ACC + 16 * tt + 4 * m + c
                A(f"v_cvt_pk_bf16_f32 v{d+m}, v{a}, v{a+2}")
            A(f"s_add_u32 s65, s64, {tt*20480 + c*10240}")
            A(f"buffer_store_dwordx4 {vr(d,4)}, v125, {S(WS)}, s65 offen sc1")
    A("s_waitcnt vmcnt(0)")
    A("L_B_H:")
    bhi()
    A("s_barrier")
    A(f"s_cmp_lg_u32 s{S_W}, 0\ns_cbranch_scc1 L_NOP3\ns_lshl_b32 s68, s{sTC}, 10\ns_lshl_b32 s69, s{sNB}, 3\ns_add_u32 s68, s68, s69\ns_add_u32 s68, s68, {PV3}")
    A(f"v_lshlrev_b32 v88, 7, v1\ns_mov_b64 exec, 0xff\nbuffer_store_dwordx2 v[90:91], v88, {S(WS)}, s68 offen sc1\ns_mov_b64 exec, -1\nL_NOP3:")
    stamp(5)
    A(f"s_cmp_ge_u32 s{S_W}, 4\ns_cbranch_scc1 L_B_SMALL")
    tail(True)
    A("L_B_SMALL:")
    tail(False)


def tail(big):
    nacc = 16 if big else 4
    ACC = 16 if big else 12
    WF = 48
    MF = MF32 if big else MF16
    rows = [8 * (i >> 2) + (i & 3) for i in range(nacc)]
    fst(9, 0)
    if big:
        vA, vB, vS, vOut, vO, vOs, vW, vWs = 2, 3, 4, 5, 6, 7, 8, 9
        mv = ((8, 116), (2, 112), (3, 113), (4, 122), (5, 115), (6, 118), (9, 117))
        A(f"s_lshr_b32 s64, s{S_W}, 1\ns_mul_i32 s64, s64, 51200\nv_add_u32 v10, s64, v116")
    else:
        vA, vB, vS, vOut, vO, vOs, vW, vWs = 2, 3, 9, 5, 6, 10, 16, 17
        mv = ((16, 116), (2, 112), (3, 113), (4, 127), (5, 115), (6, 118), (7, 28), (9, 122), (10, 119), (8, 26), (11, 27), (17, 117))
        srd(R3, P_DSK, 1280)
        A(f"buffer_load_ushort v0, v126, {S(R3)}, 0 offen")
        for i in range(nacc):
            A(f"s_mov_b32 s64, {rows[i]*1280}\nbuffer_load_ushort v{32+i}, v114, {S(R0)}, s64 offen")
        A(f"s_sub_u32 s95, s{S_W}, 4\nv_add_u32 v18, 40960, v116")
    for d, sreg in mv:
        A(f"v_mov_b32 v{d}, v{sreg}")
    fst(9, 1)
    if big:
        for u in range(20):
            if u == 12:
                A(f"s_cmp_ge_u32 s{S_W}, 2\ns_cbranch_scc1 L_WR0")
            for j in range(2):
                A(f"ds_read_b64_tr_b16 {vr(WF+4*u+2*j,2)}, v10 offset:{2560*u + 160*j}")
        A("L_WR0:")
        for i in range(nacc):
            A(f"v_dot2_f32_bf16 v{ACC+i}, v{ACC+i}, v14, 0")
        A(f"s_lshl_b32 s45, s{sTC}, 3\ns_add_u32 s45, s45, s{sNB}\ns_lshl_b32 s45, s45, 7\ns_add_u32 s45, s45, {PV3}")
    else:
        for U in range(16):
            for j in range(2):
                A(f"ds_read_b64_tr_b16 {vr(WF+4*U+2*j,2)}, v{vW if U < 8 else 18} offset:{5120*(U & 7) + 160*j}")
    srd(R1, P_WO, 819200)
    A(f"s_lshl_b32 s46, s{S_W}, 10\ns_waitcnt lgkmcnt(0)\ns_barrier")
    fst(9, 2)
    if big:
        A(f"s_load_dwordx16 s[8:23], {WSP}, s45 glc")
    sk = uid("WD")
    if not big:
        A(f"s_cmp_ge_u32 s{S_W}, 5\ns_cbranch_scc1 {sk}")
    for m in range(4):
        A(f"s_add_u32 m0, s46, {5120*m}\ns_mov_b32 s64, {(512 + 32*m) * 1280}")
        dma(vWs, R1, 64)
    A(f"{sk}:")
    fst(9, 3)
    if not big:
        A("s_waitcnt vmcnt(0)")
        for i in range(nacc):
            A(f"v_dot2_f32_bf16 v{ACC+i}, v{32+i}, v0, 0")

    def wo_reads1():
        if big:
            A(f"s_cmp_lt_u32 s{S_W}, 2\ns_cbranch_scc1 L_WR1")
            for u in range(8):
                for j in range(2):
                    A(f"ds_read_b64_tr_b16 {vr(WF+4*(12+u)+2*j,2)}, v{vW} offset:{2560*u + 160*j}")
            A("L_WR1:")
        else:
            for U in range(4):
                for j in range(2):
                    A(f"ds_read_b64_tr_b16 {vr(WF+4*(16+U)+2*j,2)}, v{vW} offset:{5120*U + 160*j}")
        A("s_waitcnt lgkmcnt(0)\ns_barrier")

    SL = 18944
    vSs = [vS, 8, 11]

    def slot(Sx):
        return ((Sx + 3) % 4) * SL

    def g2_dma(Sx):
        sb = slot(Sx)
        if big:
            for i in range(2):
                A(f"s_add_u32 m0, s39, {sb + 1088*i}\ns_add_u32 s64, s44, s{sK}")
                if i or Sx >= 10:
                    A(f"s_add_u32 s64, s64, {20480*i + (10240 if Sx >= 10 else 0)}")
                dma(vS, WS, 64, "sc1")
            A(f"s_add_u32 s{sK}, s{sK}, 1024\ns_cmp_eq_u32 s{sK}, 10240\ns_cselect_b32 s{sK}, 0, s{sK}")
        else:
            for m in range(3):
                if m == 2:
                    sk = uid("SD")
                    A(f"s_cmp_ge_u32 s95, 2\ns_cbranch_scc1 {sk}")
                A(f"s_add_u32 m0, s39, {sb + 8704 + 4096*m}\ns_nop 0")
                dma(vSs[m], R1 if Sx < 10 else R2, sK)
            A(f"{sk}:")
            A(f"s_add_u32 s{sK}, s{sK}, 128\ns_cmp_eq_u32 s{sK}, 1280\ns_cselect_b32 s{sK}, 0, s{sK}")

    srd(R1, P_CRE, 819200); srd(R2, P_CIM, 819200)
    if big:
        A(f"s_mul_i32 s44, s{sTC}, 163840\ns_mul_i32 s64, s{S_W}, 40960\ns_add_u32 s44, s44, s64\ns_add_u32 s44, s44, {HB}")
        A(f"v_xor_b32 v0, 32, v{vB}\nv_xor_b32 v1, 64, v{vB}\nv_xor_b32 v7, 96, v{vB}")
        A(f"s_mul_i32 s39, s{S_W}, 2176\ns_lshl_b32 s{sK}, s{sROT}, 10")
        fst(9, 4)
        A("s_waitcnt lgkmcnt(0)\ns_mov_b32 s65, 0")
        for i in range(8):
            A(f"s_cmp_eq_u64 s[{8+2*i}:{9+2*i}], {EP}\ns_addc_u32 s65, s65, s65")
        A("s_cmp_eq_u32 s65, 255\ns_cbranch_scc1 L_F3OK")
        spoll([(8, 8, 0)], 45)
        A("L_F3OK:")
        stamp(6); fst(9, 5)
        g2_dma(0)
        A(f"s_waitcnt vmcnt(2)")
        fst(9, 6)
        A("s_barrier")
        fst(9, 7)
    else:
        A(f"s_lshl_b32 s39, s95, 10\ns_lshl_b32 s{sK}, s{sROT}, 7")
        g2_dma(0)
        A("s_barrier")
    if big:
        A(f"s_sub_u32 s66, s2, 256\ns_lshl_b32 s66, s66, 7\ns_add_u32 s66, s66, {F0B}\ns_load_dwordx2 s[8:9], {WSP}, s66 glc")
    wo_reads1()
    fst(9, 8)
    A("s_waitcnt vmcnt(0)")
    for Sx in range(1, 4):
        g2_dma(Sx)
    if big:
        sk = uid("G2W")
        A(f"s_cmp_eq_u64 s[8:9], {EP}\ns_cbranch_scc1 {sk}\ns_cmp_lg_u32 s{S_W}, 0\ns_cbranch_scc1 {sk}")
        fst(9, 9)
        spoll([(8, 1, 0)], 66)
        A(f"{sk}:")
        fst(9, 10)
    A(f"s_setprio {3 if OPT['mlo'] else OPT['g2p']}\n;MLO_ON2")
    if big:
        SET = [32, 40, 8]

        def rd(n):
            Sx, u = n >> 2, n & 3
            f, sb = SET[n % 3], slot(Sx)
            for j in range(2):
                A(f"ds_read_b64_tr_b16 {vr(f+2*j,2)}, v{vA} offset:{sb + 256*u + 64*j}")
            A(f"ds_read_b128 {vr(f+4,4)}, v{[vB, 0, 1, 7][u]} offset:{sb}")

        def mm(n):
            if n >= 0:
                f = SET[n % 3]
                A(f"{MF} {vr(ACC,16)}, {vr(f,4)}, {vr(f+4,4)}, {vr(ACC,16)}")

        for Sx in range(20):
            infl = 3 if Sx == 0 else min(Sx + 3, 20) - Sx - 1
            n = 4 * Sx
            A(f"s_waitcnt vmcnt({2*infl})\ns_barrier" if Sx else "s_barrier")
            if Sx == 0:
                stamp(11); fst(9, 11)
            rd(n); rd(n + 1)
            mm(n - 1)
            rd(n + 2)
            A("s_waitcnt lgkmcnt(6)")
            mm(n)
            rd(n + 3)
            if 0 < Sx < 17:
                g2_dma(Sx + 3)
            A("s_waitcnt lgkmcnt(6)")
            mm(n + 1)
            A("s_waitcnt lgkmcnt(3)")
            mm(n + 2)
            A("s_waitcnt lgkmcnt(0)")
        mm(79)
    else:
        FR = [16, 32]

        def mm(Sx, u):
            if Sx >= 0:
                f = FR[Sx & 1]
                A(f"{MF} {vr(ACC,4)}, {vr(f+8*u,4)}, {vr(f+8*u+4,4)}, {vr(ACC,4)}")

        for Sx in range(20):
            infl = 3 if Sx == 0 else min(Sx + 3, 20) - Sx - 1
            f, sb = FR[Sx & 1], slot(Sx)
            A(f"s_waitcnt vmcnt({2*infl})\ns_barrier" if Sx else "s_barrier")
            if 0 < Sx < 17:
                g2_dma(Sx + 3)
            mm(Sx - 1, 0)
            for u in range(2):
                for j in range(2):
                    A(f"ds_read_b64_tr_b16 {vr(f+8*u+2*j,2)}, v{vA} offset:{sb + 512*u + 64*j}")
                A(f"ds_read_b128 {vr(f+8*u+4,4)}, v{vB + u} offset:{sb}")
            mm(Sx - 1, 1)
            A("s_waitcnt lgkmcnt(0)")
        mm(19, 0); mm(19, 1)
    A(";MLO_OFF")
    stamp(7)
    bhi()
    srd(R2, P_OUT, 10485760)
    A(f"s_mul_i32 s44, s{S_W}, {2*PL}\ns_lshl_b32 s64, s{sTC}, 9\ns_add_u32 s44, s44, s64\ns_add_u32 s44, s44, {OP}\ns_lshl_b32 s46, s{S_W}, 10")
    if big:
        A(f"s_lshl_b32 s45, s{sTC}, 3\ns_add_u32 s45, s45, s{sNB}\ns_lshl_b32 s45, s45, 8\ns_lshl_b32 s64, s{S_W}, 6\ns_add_u32 s45, s45, s64\ns_add_u32 s45, s45, {PV4}")
        A(f"v_lshrrev_b32 v0, 9, v4\nv_mul_u32_u24 v0, {PL}, v0\nv_and_b32 v7, 0x1f0, v4\ns_and_b32 s64, s{S_W}, 1\ns_lshl_b32 s64, s64, 7\nv_xor_b32 v7, s64, v7\nv_add_u32 v7, v0, v7")
    for i in range(nacc):
        A(f"s_mov_b32 s64, {rows[i]*5120}\nbuffer_store_dword v{ACC+i}, v{vOut}, {S(R2)}, s64 offen offset:2560 {AUX[OPT['sty']]}")
    PIT = 336
    if big:
        if OPT["otouch"]:
            A(f"v_lshrrev_b32 v0, 6, v4\nv_min_u32 v0, 9, v0\nv_mul_u32_u24 v0, {PL}, v0\nv_and_b32 v1, 0x30, v4\nv_lshl_add_u32 v0, v1, 3, v0")
            A(f"s_and_b32 s64, s{sNB}, 3\ns_mul_i32 s64, s64, {10*PL}\ns_mul_i32 s65, s{S_W}, {38*PL}\ns_add_u32 s47, s64, s65\ns_add_u32 s47, s47, s44")
        spoll([(8, 8, 0)], 45)
        if OPT["otouch"]:
            A(f"buffer_load_dword v8, v0, {S(WS)}, s47 offen sc1")
    A("s_barrier")
    stamp(8); fst(5, 0)
    def odma(i):
        for st in (i, 5 + i):
            A(f"s_add_u32 m0, s46, {8192*st}\ns_add_u32 s64, s44, {16*PL*st}")
            dma(vOs, WS, 64, "sc1")

    odma(0)
    if OPT["opord"]:
        A("s_barrier")
    for i in range(1, 5):
        odma(i)
    A(f"v_mbcnt_lo_u32_b32 v0, -1, 0\nv_mbcnt_hi_u32_b32 v0, -1, v0")
    if big:
        A(f"s_lshr_b32 s64, s{S_W}, 1\ns_mul_i32 s65, s64, {40960 + 32*PIT}\ns_and_b32 s66, s{S_W}, 1\ns_lshl_b32 s66, s66, 7\ns_add_u32 s65, s65, s66")
        A(f"v_and_b32 v2, 31, v0\nv_mul_u32_u24 v2, {PIT}, v2\nv_lshrrev_b32 v3, 5, v0\nv_lshl_add_u32 v2, v3, 4, v2\nv_add_u32 v2, s65, v2")
        A(f"s_mul_i32 s67, s64, {-64*PIT & 0xffffffff}\ns_add_u32 s67, s67, {32*PIT}\nv_add_u32 v7, s67, v2")
        A(f"v_xor_b32 v1, 256, v{vO}")
    else:
        A(f"s_mul_i32 s65, s95, {16*PIT}\ns_add_u32 s65, s65, 256\nv_and_b32 v2, 15, v0\nv_mul_u32_u24 v2, {PIT}, v2\nv_lshrrev_b32 v3, 4, v0\nv_lshl_add_u32 v2, v3, 4, v2\nv_add_u32 v2, s65, v2")
        for i in range(4):
            A(f"v_mov_b32 v{8+i}, 0")
    A(f"s_lshl_b32 s64, s{S_W}, 6\nv_add_u32 v0, s64, v0\nv_mul_u32_u24 v3, 3277, v0\nv_lshrrev_b32 v3, 16, v3\nv_mul_u32_u24 v5, 20, v3\nv_sub_u32 v0, v0, v5\nv_lshlrev_b32 v0, 4, v0")
    A(f"s_mul_i32 s64, s{sTC}, {64*5120}\ns_mul_i32 s65, s{sNB}, 320\ns_add_u32 s47, s64, s65\nv_mul_u32_u24 v5, 5120, v3\nv_add_u32 v5, v5, v0\nv_mul_u32_u24 v3, {PIT}, v3\nv_add_u32 v3, v3, v0")
    steps = {0: 8, 4: 4, 12: 0}
    if big:
        ne = uid("NE")
        A(f"s_cmp_lg_u32 s{sTC}, 31\ns_cbranch_scc1 {ne}\ns_or_b32 s64, s{sNB}, s{S_W}\ns_cmp_lg_u32 s64, 0\ns_cbranch_scc1 {ne}")
        A(f"s_waitcnt vmcnt(0)\nv_mov_b32 v8, s{S_E}\ns_mov_b64 exec, 1\nbuffer_store_dword v8, off, {S(WS)}, 0 offset:{EPOCH} sc1\ns_mov_b64 exec, -1\ns_waitcnt vmcnt(0)\n{ne}:")
        free = [8, 12]
        loc = {}
        order = []

        def issue(n, t):
            f = free.pop(0)
            loc[(n, t)] = f
            i, u = n >> 2, n & 3
            for j in range(2):
                A(f"ds_read_b64 {vr(f+2*j,2)}, v{vO if t == 0 else 1} offset:{8192*i + 2048*u + 512*j}")
            order.append((n, t))

        todo = [(n, t) for n in range(16) for t in range(2)] + [(n, 1) for n in range(16, 20)] + [(n, 0) for n in range(16, 20)]
        nxt = 0
        done = {}
        lim = 0
        for k, (n, t) in enumerate(todo):
            if n in steps and t == 0:
                if n == 0:
                    fst(5, 1)
                A(f"s_waitcnt vmcnt({steps[n]})\ns_barrier")
                fst(5, 2 + list(steps).index(n))
                lim = {0: 8, 4: 24, 12: 40}[n]
            while nxt < lim and free and nxt - k < 6:
                issue(*todo[nxt]); nxt += 1
            pend = len(order) - 1 - order.index((n, t))
            if (n, t) == (17, 0):
                assert nxt == len(todo)
                A("s_nop 7\ns_waitcnt lgkmcnt(0)")
            elif t == 0 and n > 17:
                for g in (2 * (n - 18), 2 * (n - 18) + 1):
                    A(f"ds_write_b128 v7, {vr(ACC+16+4*g,4)} offset:{32*g}")
            else:
                A(f"s_waitcnt lgkmcnt({2*pend})")
            c = "0" if n == 0 else vr(ACC + 16 * t, 16)
            A(f"{MF} {vr(ACC+16*t,16)}, {vr(WF+4*n,4)}, {vr(loc[(n,t)],4)}, {c}")
            free.append(loc[(n, t)])
            done[n] = done.get(n, 0) + 1
            if done[n] == 2:
                free.append(WF + 4 * n)
        fst(5, 5)
        A("s_nop 11")
        for g in range(4):
            A(f"ds_write_b128 v2, {vr(ACC+4*g,4)} offset:{32*g}")
    else:
        first = True
        for si, (i0, i1) in enumerate(((0, 1), (1, 3), (3, 5))):
            A(f"s_waitcnt vmcnt({[8, 4, 0][si]})\ns_barrier")
            for i in range(i0, i1):
                f = 16 + 16 * (i & 1)
                for h in range(2):
                    for U in range(2):
                        for j in range(2):
                            A(f"ds_read_b64 {vr(f+8*h+4*U+2*j,2)}, v{vO+h} offset:{8192*i + 4096*U + 512*j}")
            for i in range(i0, i1):
                f = 16 + 16 * (i & 1)
                for h in range(2):
                    for U in range(2):
                        A(f"s_waitcnt lgkmcnt({8*(i1-1-i) + 6 - 4*h - 2*U})")
                        c = "0" if first else vr(ACC, 4)
                        first = False
                        A(f"{MF} {vr(ACC,4)}, {vr(WF+40*h+8*i+4*U,4)}, {vr(f+8*h+4*U,4)}, {c}")
        A(f"ds_write_b128 v2, v[8:11] offset:40960\ns_nop 6\nds_write_b128 v2, {vr(ACC,4)}")
    A("s_waitcnt lgkmcnt(0)\ns_barrier")
    fst(5, 6)
    if not big:
        A(f"s_cmp_ge_u32 s{S_W}, 5\ns_cbranch_scc1 L_B_DONE")
    for m in range(4):
        A(f"ds_read_b128 {vr(48+8*m,4)}, v3 offset:{16*PIT*m}\nds_read_b128 {vr(52+8*m,4)}, v3 offset:{40960 + 16*PIT*m}")
    for m in range(4):
        A(f"s_waitcnt lgkmcnt({6-2*m})")
        for c in range(2):
            A(f"v_pk_add_f32 {vr(48+8*m+2*c,2)}, {vr(48+8*m+2*c,2)}, {vr(52+8*m+2*c,2)}")
        A(f"buffer_store_dwordx4 {vr(48+8*m,4)}, v5, {S(R2)}, s47 offen {AUX[OPT['sto']]}")
        if m < 3:
            A(f"s_add_u32 s47, s47, {16*5120}")
    if not big:
        A("L_B_DONE:")
    fst(5, 7)
    stamp(9)
    if OPT["stamps"]:
        A("s_waitcnt vmcnt(0)")
        stamp(10); fst(5, 8)
    dump_stamps(12)
    A("s_endpgm")


def wrap_mfma():
    out, on, i = [], False, 0
    for k, l in enumerate(L):
        if l.startswith(";MLO_ON"):
            on = 2 if l.endswith("2") else 1
            continue
        if l == ";MLO_OFF":
            on = False
            continue
        if on and OPT["mlo"] and l.startswith("v_mfma"):
            if not L[k - 1].startswith("v_mfma"):
                out.append(f"s_setprio {OPT['mlv']}")
            out.append(l)
            if not L[k + 1].startswith("v_mfma"):
                out.append("s_setprio 3")
                if on == 1 and OPT.get("pace"):
                    out.append(f"s_sleep {OPT['pace']}")
            elif on == 1 and OPT.get("pace1"):
                out.append(f"s_sleep {OPT['pace1']}")
        else:
            out.append(l)
    L[:] = out


DOC = """\
;    softmax: p = exp2(s) is accumulated unshifted together with its row sum l (ones rows of the P.V product). The shift 0 is only
;  previous launch left at ws+0, advanced once every workgroup has read it); consumers spin (bounded) on the flags.
"""


def build():
    hdr = open("cdna_kernels/" + NAME + ".s.ref").read().split("\n")
    out = [l for l in hdr if l.startswith(";") and "@launch" not in l]
    out.append("; @launch grid=(512,1,1) block=(512,1,1) lds=81920")
    out.append('.amdgcn_target "amdgcn-amd-amdhsa--gfx950"')
    out.append(DOC)
    out.append(".text")
    out.append(f".globl {NAME}_kernel\n.p2align 8\n.type {NAME}_kernel,@function\n{NAME}_kernel:")
    qkv()
    attention()
    qkv_idle()
    role_b()
    A("L_END:\ns_endpgm")
    wrap_mfma()
    for l in L:
        out.append(l if l.endswith(":") or l.startswith(".") else "    " + l)
    out.append(f""".section .rodata,"a"
.p2align 6
.amdhsa_kernel {NAME}_kernel
  .amdhsa_next_free_vgpr 128
  .amdhsa_next_free_sgpr 102
  .amdhsa_accum_offset 128
  .amdhsa_group_segment_fixed_size 0
  .amdhsa_kernarg_size 120
  .amdhsa_user_sgpr_count 2
  .amdhsa_user_sgpr_kernarg_segment_ptr 1
  .amdhsa_system_sgpr_workgroup_id_x 1
.end_amdhsa_kernel""")
    return "\n".join(out) + "\n"


if __name__ == "__main__":
    txt = build()
    open(sys.argv[1], "w").write(txt)
    sys.path.insert(0, "gen")
    import hazard
    e = hazard.check(txt)
    print("\n".join(e) if e else "hazard check: clean")
```

```python
import sys, struct, math

NAME = "concat_heads__softmax_full_mha__ssm_conv_s5__prompt"

OPT = dict(stamps=0, spin=400000, force_fb=0, g2s=6, g2q=6, tog=2, stg=1, g1p=0, g2p=0, htouch=0, ctouch=1, sty=2, sto=2,
           cpre=1, lscan=0, brot=0, t1=1, prea=0, mlo=1, gk=2, hs=16, qst=0, qrot=1, pre=0, c1=5, cu=1, g1t=0, qil=1, ramp=3, pvt=0, gs=0, post2=1, hu=-1, h3=1, sp1=1, otouch=0, qord=1, lastw=1, mlv=0, wearly=1, fill0=16, nfill=4, post=1, q16=1, opord=1)
for a in sys.argv[2:]:
    k, v = a.split("=")
    OPT[k] = int(v)

PL = 16384
EPOCH = 0
F1 = 0x1000
F2 = 0x2000
F3 = 0x3000
F0 = 0x8000
F0B = 0x10000
F0C = 0x18000
STAMP = 0x20000
EB = 0x48000
PV1 = 0xA0000
PV4 = 0xB0000
PV2 = 0xC0000
PV3 = 0xD0000
QKVP = 0x100000
OP = 0xA00000
HB = 0xD00000
WS_USED = 0x1300000
OOB = 0x80000000
AUX = ['', 'nt', 'sc1', 'sc1 nt', 'sc0 sc1']

L = []


def A(s):
    for ln in s.strip("\n").split("\n"):
        L.append(ln.strip())


def f2u(x):
    return struct.unpack("<I", struct.pack("<f", x))[0]


def vr(a, n):
    return f"v[{a}:{a+n-1}]" if n > 1 else f"v{a}"


P_AX, P_WQKV, P_WO, P_BX, P_LRE, P_LIM, P_BRE, P_BIM, P_CRE, P_CIM, P_LDT, P_DSK, P_OUT, P_DBG = range(8, 36, 2)
S_E = 6
S_W = 40
R0, R1, R2, WS, R3 = 44, 48, 52, 56, 60
WSP = f"s[{WS}:{WS+1}]"
EP = f"s[{S_E}:{S_E+1}]"
ST0 = 70
_uid = [0]


def uid(p):
    _uid[0] += 1
    return f"{p}_{_uid[0]}"


def srd(r, p, n):
    A(f"s_mov_b32 s{r}, s{p}\ns_mov_b32 s{r+1}, s{p+1}\ns_mov_b32 s{r+2}, {n}\ns_mov_b32 s{r+3}, 0x20000")


def S(r):
    return f"s[{r}:{r+3}]"


def stamp(k):
    if OPT["stamps"] and not OPT.get("fm"):
        A(f"s_memrealtime s[{ST0+2*k}:{ST0+2*k+1}]")


def cstamp(k):
    if OPT["stamps"] and not OPT.get("fm"):
        A(f"s_memtime s[{ST0+2*k}:{ST0+2*k+1}]")


def fst(mode, k):
    if OPT.get("fm") == mode:
        A(f"s_memtime s[{ST0+2*k}:{ST0+2*k+1}]")


def rst(mode, k):
    if OPT.get("fm") == mode:
        A(f"s_memrealtime s[{ST0+2*k}:{ST0+2*k+1}]")


def dump_stamps(n, role="B"):
    if not OPT["stamps"]:
        return
    if OPT.get("amp"):
        if (role == "A") == (OPT["sel"] < 256):
            sk, lp = uid("AK"), uid("AL")
            A(f"s_waitcnt lgkmcnt(0)\ns_cmp_lg_u32 s2, {OPT['sel']}\ns_cbranch_scc1 {sk}\ns_cmp_lg_u32 s{S_W}, 0\ns_cbranch_scc1 {sk}")
            A(f"s_sub_u32 s64, s{ST0+2*OPT['k1']}, s{ST0+2*OPT['k0']}\ns_mul_i32 s64, s64, {OPT['amp']}\ns_min_u32 s64, s64, 100000\ns_add_u32 s64, s64, s{ST0}")
            A(f"{lp}:\ns_memrealtime s[66:67]\ns_waitcnt lgkmcnt(0)\ns_sub_u32 s66, s66, s64\ns_cmp_lt_i32 s66, 0\ns_cbranch_scc1 {lp}\n{sk}:")
        return
    sk = uid("SK")
    A(f"s_waitcnt lgkmcnt(0)\ns_cmp_lg_u32 s{S_W}, {OPT.get('fw', 0)}\ns_cbranch_scc1 {sk}")
    A(f"s_lshl_b32 s64, s2, 7\ns_add_u32 s64, s64, {STAMP}\ns_mov_b64 exec, 1")
    for k in range(n):
        A(f"v_mov_b32 v120, s{ST0+2*k}\nv_mov_b32 v121, s{ST0+2*k+1}")
        A(f"buffer_store_dwordx2 v[120:121], off, {S(WS)}, s64 offset:{8*k}")
        A("s_waitcnt vmcnt(0)")
    A(f"s_mov_b64 exec, -1\n{sk}:")


def flag_store(soff, t=120, wave=0):
    sk = uid("FS")
    A(f"s_cmp_lg_u32 s{S_W}, {wave}\ns_cbranch_scc1 {sk}")
    A(f"v_mov_b32 v{t}, s{S_E}\nv_mov_b32 v{t+1}, s{S_E+1}\ns_mov_b64 exec, 1")
    A(f"buffer_store_dwordx2 v[{t}:{t+1}], off, {S(WS)}, s{soff} sc1")
    A(f"s_mov_b64 exec, -1\n{sk}:")


def poll(vaddrs, t=120):
    lp, dn = uid("PL"), uid("PD")
    A(f"s_mov_b32 s64, {OPT['spin']}\n{lp}:")
    for i, va in enumerate(vaddrs):
        A(f"buffer_load_dwordx2 v[{t+2*i}:{t+2*i+1}], v{va}, {S(WS)}, 0 offen sc1")
    A("s_waitcnt vmcnt(0)")
    for i, va in enumerate(vaddrs):
        if i == 0:
            A(f"v_cmp_ne_u64 vcc, {EP}, v[{t}:{t+1}]")
        else:
            A(f"v_cmp_ne_u64 s[66:67], {EP}, v[{t+2*i}:{t+2*i+1}]\ns_or_b64 vcc, vcc, s[66:67]")
    A(f"s_cbranch_vccz {dn}\ns_sub_u32 s64, s64, 1\ns_cmp_lg_u32 s64, 0\ns_cbranch_scc1 {lp}\n{dn}:")


def spoll(blocks, soff, need=None, cnt=64, msk=65):
    lp, dn = uid("SP"), uid("SD")
    A(f"s_mov_b32 s{cnt}, {OPT['spin']}\n{lp}:")
    tot = 0
    for dst, n, off in blocks:
        A(f"s_load_dwordx{2*n} s[{dst}:{dst+2*n-1}], {WSP}, s{soff} offset:{off} glc")
        tot += n
    A(f"s_mov_b32 s{msk}, 0\ns_waitcnt lgkmcnt(0)")
    for dst, n, off in blocks:
        for i in range(n):
            A(f"s_cmp_eq_u64 s[{dst+2*i}:{dst+2*i+1}], {EP}\ns_addc_u32 s{msk}, s{msk}, s{msk}")
    if need is None:
        A(f"s_cmp_eq_u32 s{msk}, {(1 << tot) - 1}")
    else:
        A(f"s_andn2_b32 s{msk}, s{need}, s{msk}\ns_cmp_eq_u32 s{msk}, 0")
    A(f"s_cbranch_scc1 {dn}")
    if tot <= 8:
        A("s_sleep 2")
    A(f"s_sub_u32 s{cnt}, s{cnt}, 1\ns_cmp_lg_u32 s{cnt}, 0\ns_cbranch_scc1 {lp}\n{dn}:")


def bhi():
    A("s_setprio 3")


def blo():
    A("s_setprio 0")


def dma(vaddr, rsrc, soff, aux=""):
    A(f"buffer_load_dwordx4 v{vaddr}, {S(rsrc)}, s{soff} offen {aux} lds".replace("  ", " "))


def epoch_fix():
    A(f"s_mul_i32 s{S_E}, s{S_E}, 0x9E3779B1\ns_add_u32 s{S_E}, s{S_E}, 0x7F4A7C15\ns_xor_b32 s{S_E+1}, s{S_E}, 0x5bd1e995")


MF32 = "v_mfma_f32_32x32x16_bf16"
MF8 = "v_mfma_f32_32x32x8_bf16"
MF16 = "v_mfma_f32_16x16x32_bf16"

PS = 2080
SLOT = 11 * PS
RED = 2 * SLOT
BADW = 81912
sST0, sST1, sF1, sSC, sH, sQB, sG, sLd, sQ, sPV1, sNEED, sH1, sH2, sPass, sChk, sO0, sO1, sPV4 = \
    8, 9, 10, 12, 14, 15, 16, 19, 22, 25, 26, 27, 28, 29, 30, 31, 32, 33
vD, vTok, vK, vK1, vV, vF6, vF7, vPush, vQa, vOnes = 123, 124, 125, 126, 127, 121, 122, 120, 112, 116


def att_setup(sRB, sCB):
    G = []
    g = G.append
    g(f"s_and_b32 s34, s2, 7\ns_bfe_u32 s{sQB}, s2, 0x30003\ns_bfe_u32 s35, s2, 0x20006\ns_lshl_b32 s{sH}, s34, 2\ns_add_u32 s{sH}, s{sH}, s35")
    g(f"s_mul_i32 s36, s{sH}, 5\ns_add_u32 s37, s36, 4\ns_lshr_b32 s38, s36, 5\ns_lshr_b32 s37, s37, 5\ns_sub_u32 s37, s37, s38")
    g(f"s_lshl_b32 s{sPV1}, s{sH}, 3\ns_add_u32 s{sPV1}, s{sPV1}, s{sQB}\ns_lshl_b32 s{sPV1}, s{sPV1}, 8\ns_add_u32 s{sPV1}, s{sPV1}, {PV1}")
    g(f"s_mov_b32 s{sNEED}, 0xf0f0c\ns_cmp_eq_u32 s37, 0\ns_cselect_b32 s{sNEED}, s{sNEED}, 0xfffff\ns_mov_b32 s{sPass}, 0\ns_min_u32 s{sChk}, s{S_W}, 1")
    g(f"v_bfe_u32 v11, v1, 4, 1\nv_mul_u32_u24 v11, s37, v11\nv_add_u32 v11, s38, v11\nv_lshrrev_b32 v14, 5, v1\nv_mul_u32_u24 v12, 15, v14\nv_max_u32 v12, v11, v12")
    g(f"v_mul_u32_u24 v13, 5, v14\nv_add3_u32 v11, v11, v13, 5\nv_and_b32 v13, 15, v1\nv_lshlrev_b32 v15, 3, v13\nv_add_u32 v15, {F1}, v15")
    g(f"v_lshl_add_u32 v{vF6}, v11, 7, v15\nv_lshl_add_u32 v{vF7}, v12, 7, v15\nv_lshlrev_b32 v{vD}, 4, v1")
    g(f"s_lshl_b32 s{sH1}, s2, 7\ns_add_u32 s{sH2}, s{sH1}, {F0B}\ns_add_u32 s{sH1}, s{sH1}, {F0}")
    for m in range(3):
        g(f"s_add_u32 s34, s{S_W}, {8*m}\ns_lshr_b32 s35, s34, 1\ns_and_b32 s34, s34, 1\ns_lshl_b32 s34, s34, 10\ns_mul_i32 s{sLd+m}, s35, {PS}\ns_add_u32 s{sLd+m}, s{sLd+m}, s34")
        g(f"s_cmp_ge_u32 s35, 5\ns_cselect_b32 s39, 155, 0\ns_add_u32 s35, s35, s39\ns_add_u32 s35, s35, s36\ns_mul_i32 s35, s35, {PL}\ns_add_u32 s35, s35, s34\ns_add_u32 s{sG+m}, s35, {QKVP + 160*PL}")
    g(f"s_lshr_b32 s34, s{S_W}, 1\ns_min_u32 s34, s34, 2\ns_mul_i32 s34, s34, {SLOT}\ns_and_b32 s35, s{S_W}, 1\ns_lshl_b32 s35, s35, 10\ns_add_u32 s34, s34, s35\ns_add_u32 s34, s34, {10*PS}\nv_add_u32 v{vOnes}, s34, v{vD}")
    g(f"s_and_b32 s34, s{S_W}, 3\ns_lshl_b32 s34, s34, 6\ns_lshr_b32 s35, s{S_W}, 2\ns_lshl_b32 s39, s35, 5\ns_add_u32 s34, s34, s39\ns_lshl_b32 s35, s35, 7")
    g(f"v_lshl_add_u32 v15, v13, 1, s34\nv_lshlrev_b32 v{vTok}, 3, v15\nv_bfe_u32 v12, v1, 4, 1\nv_lshl_add_u32 v15, v12, 3, v{vTok}\nv_xor_b32 v16, 256, v15")
    g(f"v_mul_u32_u24 v17, {2*PL}, v14\nv_add_u32 v{vQa}, v17, v15\nv_add_u32 v{vQa+2}, v17, v16\nv_lshlrev_b32 v17, 31, v14\nv_or_b32 v{vQa+1}, v17, v15\nv_or_b32 v{vQa+3}, v17, v16")
    g(f"v_and_b32 v15, 31, v1\nv_add_u32 v15, s35, v15\nv_lshlrev_b32 v15, 3, v15\nv_mul_u32_u24 v16, {2*PS}, v14\nv_add_u32 v{vK}, v16, v15")
    g(f"v_mul_u32_u24 v16, {6*PS}, v14\nv_add_u32 v16, {4*PS}, v16\nv_add_u32 v{vK1}, v16, v15\nv_and_b32 v16, 3, v1\nv_lshl_add_u32 v16, v12, 2, v16\nv_min_u32 v16, 5, v16")
    g(f"v_add_u32 v16, 5, v16\nv_mul_u32_u24 v16, {PS}, v16\nv_bfe_u32 v17, v1, 2, 2\nv_lshl_add_u32 v17, v14, 2, v17\nv_add_u32 v17, s35, v17\nv_lshl_add_u32 v{vV}, v17, 3, v16")
    g(f"s_mul_i32 s34, s36, {PL}\ns_lshl_b32 s35, s{sQB}, 11\ns_add_u32 s34, s34, s35\ns_add_u32 s{sQ}, s34, {QKVP}\ns_add_u32 s{sQ+1}, s{sQ}, {PL}\ns_add_u32 s{sQ+2}, s{sQ}, {4*PL}")
    g(f"s_add_u32 s{sO0}, s34, {OP}\ns_add_u32 s{sO1}, s{sO0}, {4*PL}\ns_lshl_b32 s{sPV4}, s{sQB}, 13\ns_lshl_b32 s35, s{sH}, 3\ns_add_u32 s{sPV4}, s{sPV4}, s35\ns_add_u32 s{sPV4}, s{sPV4}, {PV4}")
    if sRB is None:
        g(f"v_mov_b32 v{vPush}, {OOB}\ns_sub_u32 s{sF1}, s2, 240\ns_lshl_b32 s{sF1}, s{sF1}, 3\ns_add_u32 s{sF1}, s{sF1}, {F1 + 15*128}")
        return G
    c = 20 ** -0.5 * math.log2(math.e)
    g(f"s_cmp_lt_u32 s{sCB}, 5\ns_cselect_b32 s{sSC}, {f2u(c)}, 1.0\ns_mov_b32 s{sSC+1}, s{sSC}\ns_lshl_b32 s{sF1}, s{sCB}, 7\ns_lshl_b32 s34, s{sRB}, 3\ns_add_u32 s{sF1}, s{sF1}, s34\ns_add_u32 s{sF1}, s{sF1}, {F1}")
    g(f"s_mul_i32 s{sST0}, s{sCB}, {32*PL}\ns_lshl_b32 s34, s{sRB}, 10\ns_add_u32 s{sST0}, s{sST0}, s34\ns_add_u32 s{sST0}, s{sST0}, {QKVP}\ns_add_u32 s{sST1}, s{sST0}, {4*PL}")
    g(f"s_cmp_ge_u32 s{sCB}, 10\ns_cselect_b32 s38, 10, 5\ns_cselect_b32 s35, 8, 0\ns_sub_u32 s34, s{sCB}, s38\ns_add_u32 s35, s35, s{sRB}\ns_cmp_lt_u32 s{sRB}, 4\ns_cselect_b32 s37, 1, 0")
    g(f"s_and_b32 s38, s{sRB}, 1\ns_add_u32 s38, s38, 16\ns_cmp_lt_u32 s{sCB}, 5\ns_cselect_b32 s34, s{sCB}, s34\ns_cselect_b32 s35, s38, s35\ns_cselect_b32 s36, 2, 4\ns_cselect_b32 s37, 2, s37")
    g(f"s_mul_i32 s38, s34, {6554*32}\ns_lshr_b32 s38, s38, 15\nv_lshrrev_b32 v11, 3, v1\nv_add_u32 v11, s38, v11\nv_mul_u32_u24 v12, 5, v11\nv_lshrrev_b32 v13, 5, v12\ns_lshr_b32 s39, s{sRB}, 1")
    g(f"v_cmp_ge_u32 s[68:69], s34, v13\nv_cmp_ne_u32 vcc, s34, v13\nv_and_b32 v13, 7, v1\nv_lshl_add_u32 v11, v11, 3, v13\nv_cndmask_b32 v12, 0, 1, vcc\nv_mul_u32_u24 v12, s36, v12\nv_add_u32 v12, s35, v12")
    g(f"v_cmp_eq_u32 vcc, s39, v13\ns_cmp_eq_u32 s37, 2\ns_cselect_b64 vcc, vcc, -1\ns_and_b64 s[68:69], s[68:69], vcc\ns_cmp_eq_u32 s37, 0\ns_cselect_b64 s[68:69], 0, s[68:69]")
    g(f"v_lshlrev_b32 v11, 8, v11\nv_lshl_add_u32 v11, v12, 3, v11\nv_add_u32 v11, {PV1}, v11\nv_mov_b32 v{vPush}, {OOB}\nv_cndmask_b32 v{vPush}, v{vPush}, v11, s[68:69]")
    return G


def qkv():
    sRB, sCB, sKX, sKW, sMX, sMW, sT = 41, 42, 43, 64, 65, 66, 67
    vX0, vX1, vWs, vWr, vXr = 2, 3, 4, 5, 6
    ACC = 32
    FR = [64, 88]
    A("s_cmp_ge_u32 s2, 256\ns_cbranch_scc1 L_ROLE_B")
    stamp(0); fst(7, 0)
    A(f"s_load_dwordx2 s[{R0}:{R0+1}], s[0:1], 0\ns_load_dwordx2 s[{R1}:{R1+1}], s[0:1], 8\ns_load_dwordx2 s[{WS}:{WS+1}], s[0:1], 112")
    A(f"v_lshrrev_b32 v2, 6, v0\nv_and_b32 v1, 63, v0\nv_readfirstlane_b32 s{S_W}, v2")
    A(f"s_lshr_b32 s{sCB}, s2, 4\ns_and_b32 s{sCB}, s{sCB}, 14\ns_bfe_u32 s{sT}, s2, 0x10002\ns_or_b32 s{sCB}, s{sCB}, s{sT}")
    A(f"s_lshr_b32 s{sRB}, s2, 1\ns_and_b32 s{sRB}, s{sRB}, 12\ns_and_b32 s{sT}, s2, 3\ns_or_b32 s{sRB}, s{sRB}, s{sT}")
    A(f"s_cmp_eq_u32 s{sCB}, 15\ns_cselect_b32 s{sT}, 8, 0\ns_add_u32 s{sRB}, s{sRB}, s{sT}\ns_min_u32 s{sCB}, s{sCB}, 14")
    if OPT["qst"]:
        A(f"s_mov_b32 s{sKX}, 0")
    else:
        if OPT["qrot"] == 2:
            A(f"s_and_b32 s{sKX}, s2, 7")
        elif OPT["qrot"] == 1:
            A(f"s_mul_i32 s{sKX}, s{sRB}, 3\ns_add_u32 s{sKX}, s{sKX}, s{sCB}\ns_mul_i32 s{sT}, s{sKX}, 205\ns_lshr_b32 s{sT}, s{sT}, 11\ns_mul_i32 s{sT}, s{sT}, 10\ns_sub_u32 s{sKX}, s{sKX}, s{sT}")
        else:
            A(f"s_bfe_u32 s{sKX}, s2, 0x10003\ns_mul_i32 s{sKX}, s{sKX}, 5")
        A(f"s_mul_i32 s{sKW}, s{sKX}, {2*122880}\ns_lshl_b32 s{sKX}, s{sKX}, 7")
    A(f"s_lshl_b32 s{sT}, s{sRB}, 7\ns_lshr_b32 s68, s{S_W}, 1\ns_lshl_b32 s68, s68, 5\ns_add_u32 s{sT}, s{sT}, s68\ns_and_b32 s68, s{S_W}, 1\ns_add_u32 s{sT}, s{sT}, s68")
    A(f"v_lshrrev_b32 v10, 3, v1\nv_lshl_add_u32 v10, v10, 1, s{sT}\nv_mul_u32_u24 v10, 1280, v10")
    A(f"v_lshrrev_b32 v11, 4, v1\nv_and_b32 v12, 7, v1\nv_xor_b32 v12, v12, v11\nv_lshl_add_u32 v{vX0}, v12, 4, v10")
    A(f"s_lshl_b32 s{sMX}, s{S_W}, 11\ns_mov_b32 s{R0+2}, 2621440\ns_mov_b32 s{R0+3}, 0x20000\ns_mov_b32 m0, s{sMX}")
    A("s_cmp_ge_u32 s2, 240\ns_cbranch_scc1 L_QKV_IDLE")
    fst(7, 1)
    A("s_waitcnt lgkmcnt(0)")
    issued = []

    def dmaX(Sx, between=None):
        if OPT["qst"]:
            for i in range(2):
                if Sx or i:
                    A(f"s_add_u32 m0, s{sMX}, {(Sx % 3) * 16384 + i * 1024}")
                    A(f"s_movk_i32 s{sKX}, {128 * Sx}" if i == 0 else "s_nop 0")
                dma(vX0 + i, R0, sKX, 'nt' if OPT.get('ntx') else '')
                issued.append(("X", Sx))
                if between and i == 0:
                    between()
            return
        for i in range(2):
            if Sx or i:
                A(f"s_add_u32 m0, s{sMX}, {(Sx % 3) * 16384 + i * 1024}\ns_nop 0")
            dma(vX0 + i, R0, sKX, 'nt' if OPT.get('ntx') else '')
            issued.append(("X", Sx))
            if between and i == 0:
                between()
        A(f"s_add_u32 s{sKX}, s{sKX}, 128\ns_cmp_eq_u32 s{sKX}, 1280\ns_cselect_b32 s{sKX}, 0, s{sKX}")

    def dmaW(s):
        if OPT["qst"]:
            A(f"s_add_u32 m0, s{sMW}, {(s % 4) * 8192}\ns_mov_b32 s{sKW}, {122880 * s}")
            dma(vWs, R1, sKW, 'nt' if OPT.get('ntw') else '')
            issued.append(("W", s))
            return
        A(f"s_add_u32 m0, s{sMW}, {(s % 4) * 8192}\ns_nop 0")
        dma(vWs, R1, sKW, 'nt' if OPT.get('ntw') else '')
        issued.append(("W", s))
        A(f"s_add_u32 s{sKW}, s{sKW}, 122880\ns_cmp_eq_u32 s{sKW}, 2457600\ns_cselect_b32 s{sKW}, 0, s{sKW}")

    dmaX(0, lambda: A(f"v_xor_b32 v{vX1}, 64, v{vX0}\nv_add_u32 v{vX1}, 20480, v{vX1}"))
    A(f"s_lshl_b32 s68, s{S_W}, 2\nv_add_u32 v10, s68, v11\nv_mul_u32_u24 v10, 3840, v10")
    if OPT["q16"]:
        A(f"s_and_b32 s68, s{S_W}, 2\ns_lshl_b32 s68, s68, 2\nv_and_b32 v12, 15, v1\nv_lshl_add_u32 v13, v11, 1, s68\nv_xor_b32 v12, v12, v13\nv_lshl_add_u32 v10, v12, 4, v10")
    else:
        A(f"v_and_b32 v12, 15, v1\nv_lshlrev_b32 v13, 2, v11\nv_xor_b32 v12, v12, v13\nv_lshl_add_u32 v10, v12, 4, v10")
    A(f"s_lshl_b32 s68, s{sCB}, 8\nv_add_u32 v{vWs}, s68, v10\ns_lshl_b32 s{sMW}, s{S_W}, 10\ns_add_u32 s{sMW}, s{sMW}, 49152")
    A(f"s_mov_b32 s{R1+2}, 2457600\ns_mov_b32 s{R1+3}, 0x20000")
    dmaW(0)
    fst(7, 2)
    A(f"s_load_dword s{S_E}, {WSP}, {EPOCH}\ns_mov_b32 s{WS+2}, {WS_USED}\ns_mov_b32 s{WS+3}, 0x20000\ns_barrier")
    fst(7, 3)
    ramp = {0: [], 1: [("W", 2), ("W", 3), ("X", 2)], 2: [("X", 1), ("W", 2), ("W", 3), ("X", 2)], 3: [("W", 3), ("X", 2)]}[OPT["ramp"]]
    for k_, n_ in (("W", 1), ("X", 1), ("W", 2), ("W", 3), ("X", 2)):
        if (k_, n_) not in ramp:
            (dmaW if k_ == "W" else dmaX)(n_)
    fst(7, 4)
    if OPT["q16"]:
        A(f"v_lshrrev_b32 v10, 4, v1\nv_bfe_u32 v11, v1, 2, 2\nv_lshl_add_u32 v12, v10, 3, v11\nv_lshlrev_b32 v12, 8, v12")
        A(f"s_and_b32 s68, s{S_W}, 3\ns_lshl_b32 s68, s68, 2\nv_bfe_u32 v13, v1, 1, 1\nv_add_u32 v13, s68, v13")
        A(f"v_and_b32 v14, 1, v10\nv_lshl_add_u32 v11, v14, 2, v11\nv_lshlrev_b32 v11, 1, v11\nv_xor_b32 v13, v13, v11\nv_lshl_add_u32 v12, v13, 4, v12")
        A(f"v_and_b32 v14, 1, v1\nv_lshl_add_u32 v12, v14, 3, v12\nv_add_u32 v5, 49152, v12\nv_xor_b32 v6, 32, v5")
        A(f"s_lshr_b32 s68, s{S_W}, 2\ns_lshl_b32 s68, s68, 6\nv_and_b32 v11, 15, v1\nv_add_u32 v12, s68, v11\nv_lshlrev_b32 v12, 7, v12")
        A(f"v_lshrrev_b32 v13, 1, v11\nv_xor_b32 v13, v13, v10\nv_lshl_add_u32 v7, v13, 4, v12\nv_xor_b32 v8, 64, v7")
        fst(7, 5)
        G = [f"s_and_b32 s34, s{S_W}, 3\ns_lshl_b32 s34, s34, 3\nv_add_u32 v10, s34, v10\nv_mul_u32_u24 v10, {PL}, v10",
             f"v_and_b32 v11, 15, v1\nv_lshl_add_u32 v10, v11, 4, v10\ns_lshr_b32 s34, s{S_W}, 2\ns_lshl_b32 s34, s34, 9\nv_add_u32 v10, s34, v10"]
    else:
        A(f"v_lshrrev_b32 v10, 5, v1\nv_bfe_u32 v11, v1, 2, 2\nv_lshl_add_u32 v12, v10, 3, v11\nv_lshlrev_b32 v12, 8, v12")
        A(f"s_and_b32 s68, s{S_W}, 3\ns_lshl_b32 s68, s68, 2")
        A(f"v_bfe_u32 v13, v1, 4, 1\nv_lshlrev_b32 v13, 1, v13\nv_bfe_u32 v14, v1, 1, 1\nv_add3_u32 v13, v13, v14, s68")
        A(f"v_lshlrev_b32 v11, 2, v11\nv_xor_b32 v13, v13, v11\nv_lshl_add_u32 v12, v13, 4, v12")
        A(f"v_and_b32 v14, 1, v1\nv_lshl_add_u32 v12, v14, 3, v12\nv_add_u32 v{vWr}, 49152, v12")
        A(f"s_lshr_b32 s68, s{S_W}, 2\ns_lshl_b32 s68, s68, 6\nv_and_b32 v11, 31, v1\nv_add_u32 v12, s68, v11\nv_lshlrev_b32 v12, 7, v12")
        A(f"v_bfe_u32 v13, v1, 1, 3\nv_xor_b32 v13, v13, v10\nv_lshl_add_u32 v{vXr}, v13, 4, v12")
        for k in range(1, 4):
            A(f"v_xor_b32 v{vXr+k}, {32*k}, v{vXr}")
        fst(7, 5)
        G = [f"s_and_b32 s34, s{S_W}, 3\ns_lshl_b32 s34, s34, 3\nv_bfe_u32 v11, v1, 4, 1\nv_lshl_add_u32 v10, v11, 1, v10\nv_add_u32 v10, s34, v10\nv_mul_u32_u24 v10, {PL}, v10",
             f"v_and_b32 v11, 15, v1\nv_lshl_add_u32 v10, v11, 4, v10\ns_lshr_b32 s34, s{S_W}, 2\ns_lshl_b32 s34, s34, 9\nv_add_u32 v10, s34, v10"]
    GA = att_setup(sRB, sCB)
    post = []
    if OPT["post"]:
        post, GA = GA[:-8], GA[-8:]
    G += GA
    nf = OPT["nfill"]
    per = [G[len(G) * i // nf:len(G) * (i + 1) // nf] for i in range(nf)]

    def pvt_a():
        A(f"s_cmp_lg_u32 s{S_W}, 1\ns_cbranch_scc1 L_NOPVT\ns_and_b32 s3, s2, 7\ns_lshl_b32 s3, s3, 5\ns_lshr_b32 s67, s2, 3\ns_add_u32 s3, s3, s67\ns_lshl_b32 s3, s3, 8\ns_add_u32 s3, s3, {PV1}")
        A(f"s_load_dword s67, {WSP}, s3 glc\ns_load_dword s67, {WSP}, s3 offset:128 glc\nL_NOPVT:")

    if OPT["pvt"] == 2:
        pvt_a()

    def reads(s):
        f = FR[s & 1]
        ws, xs, b = (s % 4) * 8192, ((s >> 1) % 3) * 16384, s & 1
        if OPT["q16"]:
            for mi in range(2):
                for j in range(2):
                    A(f"ds_read_b64_tr_b16 {vr(f+4*mi+2*j, 2)}, v{5+mi} offset:{ws + 1024*j}")
                for ni in (2 * mi, 2 * mi + 1):
                    A(f"ds_read_b128 {vr(f+8+4*ni, 4)}, v{7+b} offset:{xs + 2048*ni}")
            return
        for u in range(2):
            for j in range(2):
                A(f"ds_read_b64_tr_b16 {vr(f+4*u+2*j, 2)}, v{vWr} offset:{ws + (16*u+4*j)*256}")
            for nt in range(2):
                A(f"ds_read_b128 {vr(f+8+8*u+4*nt, 4)}, v{vXr+2*b+u} offset:{xs + 4096*nt}")

    def mfma1(s, i):
        if s < 0:
            return
        f = FR[s & 1]
        if OPT["q16"]:
            for mi in range(2):
                a = ACC + 16 * mi + 4 * i
                A(f"{MF16} {vr(a,4)}, {vr(f+4*mi,4)}, {vr(f+8+4*i,4)}, {'0' if s == 0 else vr(a,4)}")
            return
        u, nt = i >> 1, i & 1
        c = "0" if (s == 0 and u == 0) else vr(ACC + 16 * nt, 16)
        A(f"{MF32} {vr(ACC+16*nt,16)}, {vr(f+4*u,4)}, {vr(f+8+8*u+4*nt,4)}, {c}")

    for s in range(20):
        last = max(i for i, t in enumerate(issued) if t in (("X", s >> 1), ("W", s)))
        A(f"s_waitcnt vmcnt({len(issued) - 1 - last})\ns_barrier")
        if s == 0:
            stamp(1); cstamp(10)
        if s < 4:
            fst(7, 6 + s)
        fill = per[s - OPT["fill0"]] if 0 <= s - OPT["fill0"] < nf else []
        if OPT["qil"]:
            n0 = len(L)
            reads(s)
            rd = L[n0:]
            del L[n0:]
            cut = {1: (3, 6, 8), 2: (2, 5, 8), 3: (4, 8, 8)}[OPT["qil"]]
            mfma1(s - 1, 0)
            L.extend(rd[:cut[0]])
            mfma1(s - 1, 1)
            L.extend(rd[cut[0]:cut[1]])
            if OPT["qil"] == 3 and s >= 1 and s + 3 < 20:
                dmaW(s + 3)
            mfma1(s - 1, 2)
            L.extend(rd[cut[1]:])
            if OPT["qil"] != 3 and s >= 1 and s + 3 < 20:
                dmaW(s + 3)
            if s >= 2 and s % 2 == 0 and s // 2 + 2 < 10:
                dmaX(s // 2 + 2)
            if s & 1:
                for x in fill[:1]:
                    A(x)
        else:
            mfma1(s - 1, 0)
            reads(s)
            mfma1(s - 1, 1)
            if s >= 1 and s + 3 < 20:
                dmaW(s + 3)
            if s & 1 == 0:
                pass
            else:
                for x in fill[:1]:
                    A(x)
            mfma1(s - 1, 2)
            if s >= 2 and s % 2 == 0 and s // 2 + 2 < 10:
                dmaX(s // 2 + 2)
        if s == 0:
            for k_, n_ in ramp:
                (dmaW if k_ == "W" else dmaX)(n_)
        if s == 3 and OPT["pvt"] == 1:
            pvt_a()
        if s == 1:
            epoch_fix()
        if (OPT["gk"] and not OPT["gs"] and not OPT["h3"] or OPT["pre"] == 2) and s == OPT["hs"]:
            A(f"s_lshl_b32 s3, s2, 7\ns_lshl_b32 s67, s{S_W}, 3\ns_add_u32 s3, s3, s67\ns_add_u32 s3, s3, {F0C}")
            A(f"v_mov_b32 v118, s{S_E}\nv_mov_b32 v119, s{S_E+1}\ns_mov_b64 exec, 1\nbuffer_store_dwordx2 v[118:119], off, {S(WS)}, s3 sc1\ns_mov_b64 exec, -1")
            issued.append(("H", 0))
        for x in (fill[1:] if s & 1 else fill):
            A(x)
        mfma1(s - 1, 3)
        A("s_waitcnt lgkmcnt(0)")
    for i in range(4):
        mfma1(19, i)
    stamp(2); cstamp(11); fst(8, 0)
    if OPT["q16"]:
        A("s_nop 2")
        for p in range(2):
            for mi in range(2):
                d = 64 + 8 * p + 4 * mi
                for k in range(2):
                    a = ACC + 16 * mi + 4 * (2 * p + k)
                    A(f"v_pk_mul_f32 {vr(a,2)}, {vr(a,2)}, s[{sSC}:{sSC+1}]\nv_pk_mul_f32 {vr(a+2,2)}, {vr(a+2,2)}, s[{sSC}:{sSC+1}]")
                    A(f"v_cvt_pk_bf16_f32 v{d+2*k}, v{a}, v{a+1}\nv_cvt_pk_bf16_f32 v{d+2*k+1}, v{a+2}, v{a+3}")
                A(f"buffer_store_dwordx4 {vr(d,4)}, v10, {S(WS)}, s{sST0 + mi} offen offset:{256*p} sc1")
    else:
        A("s_nop 10")
    for nt in range(0 if OPT["q16"] else 2):
        for g in range(4):
            a = ACC + 16 * nt + 4 * g
            A(f"v_pk_mul_f32 {vr(a,2)}, {vr(a,2)}, s[{sSC}:{sSC+1}]\nv_pk_mul_f32 {vr(a+2,2)}, {vr(a+2,2)}, s[{sSC}:{sSC+1}]")
            d = 64 + 8 * nt + 2 * g
            A(f"v_cvt_pk_bf16_f32 v{d}, v{a}, v{a+1}\nv_cvt_pk_bf16_f32 v{d+1}, v{a+2}, v{a+3}")
            if g & 1:
                d -= 2
                A(f"s_nop 0\nv_permlane16_swap_b32 v{d}, v{d+2}\nv_permlane16_swap_b32 v{d+1}, v{d+3}")
                A(f"buffer_store_dwordx4 {vr(d,4)}, v10, {S(WS)}, s{sST0 + (g >> 1)} offen offset:{256*nt} sc1")
    fst(8, 1)
    if not OPT["post2"]:
        for x in post:
            A(x)


def qkv_idle():
    A(f"L_QKV_IDLE:\ns_waitcnt lgkmcnt(0)\ns_load_dword s{S_E}, {WSP}, {EPOCH}\ns_mov_b32 s{WS+2}, {WS_USED}\ns_mov_b32 s{WS+3}, 0x20000")
    for x in att_setup(None, None)[-1 if OPT["post2"] else 0:]:
        A(x)
    A("s_waitcnt lgkmcnt(0)")
    epoch_fix()
    if OPT["gk"] and not OPT["gs"] and not OPT["h3"] or OPT["pre"] == 2:
        A(f"s_lshl_b32 s34, s2, 7\ns_add_u32 s34, s34, {F0C}")
        flag_store(34, t=118)
    A("s_branch L_PUB")


def attention():
    Q = [8, 14]; O = [20, 36]; SS = [52, 68]; Kf = [84, 90]; Vf = [96, 104]; P = 112
    A("L_PUB:")
    for i in range(4):
        A(f"v_mov_b32 v{4+i}, {(0x3f80 if i % 2 == 0 else 0) if OPT['sp1'] else 0x3f803f80}")
    A(f"v_mov_b32 v2, s{S_E}\nv_mov_b32 v3, s{S_E+1}\nv_mov_b32 v8, {BADW}\nv_mov_b32 v9, 0")
    if OPT["h3"] == 2:
        A(f"s_lshl_b32 s3, s2, 7\ns_add_u32 s3, s3, {F0C}")
        flag_store(3, t=10, wave=7)
    A("s_waitcnt vmcnt(0)")
    fst(8, 2)
    A("s_barrier")
    if OPT["h3"] == 1:
        A(f"s_lshl_b32 s3, s2, 7\ns_add_u32 s3, s3, {F0C}")
        flag_store(3, t=10, wave=7)
    fst(8, 3)
    A(f"s_cmp_lg_u32 s{S_W}, 0\ns_cbranch_scc1 L_NOPUSH")
    A(f"buffer_store_dwordx2 v[2:3], v{vPush}, {S(WS)}, 0 offen sc1\ns_mov_b64 exec, 1\nbuffer_store_dwordx2 v[2:3], off, {S(WS)}, s{sF1} sc1\ns_mov_b64 exec, -1\nL_NOPUSH:")
    stamp(3)
    if OPT["post2"]:
        for x in att_setup(None, None)[:-1]:
            A(x)
    A(f"ds_write_b128 v{vOnes}, v[4:7]\nds_write_b32 v8, v9\nds_write_b32 v8, v9 offset:4")
    A(f"s_waitcnt lgkmcnt(0)\ns_cmp_lg_u32 s{S_W}, 1\ns_cbranch_scc1 L_NOPOLL")
    spoll([(68, 8, 0), (84, 8, 64), (44, 4, 128)], sPV1, need=sNEED)
    A("L_NOPOLL:\ns_barrier")
    stamp(4); fst(8, 4)

    def dma_static(st, m, blk=None):
        if m == 2:
            sk2 = uid("D3")
            A(f"s_cbranch_vccz {sk2}")
        A(f"s_add_u32 m0, s{sLd+m}, {(st % 3) * SLOT}\ns_add_u32 s68, s{sG+m}, {2048 * st if blk is None else blk}")
        dma(vD, WS, 68, "sc1")
        if m == 2:
            A(f"{sk2}:")

    def qload(x):
        A(f"buffer_load_dwordx2 {vr(Q[x],2)}, v{vQa+2*x}, {S(WS)}, s{sQ} offen sc1")
        A(f"buffer_load_dwordx2 {vr(Q[x]+2,2)}, v{vQa+2*x}, {S(WS)}, s{sQ+1} offen sc1")
        A(f"buffer_load_dwordx2 {vr(Q[x]+4,2)}, v{vQa+1+2*x}, {S(WS)}, s{sQ+2} offen sc1")

    if OPT["qord"]:
        A(f"s_cmp_lt_u32 s{S_W}, 4\ns_cselect_b64 vcc, -1, 0")
        for m in range(3):
            dma_static(0, m)
        qload(0); qload(1)
        if OPT["hu"] < 0:
            flag_store(sH1, t=2, wave=7)
        A("s_branch L_ATT_GO\nL_ATT_MAIN:")
        A(f"s_cmp_lt_u32 s{S_W}, 4\ns_cselect_b64 vcc, -1, 0")
        for m in range(3):
            dma_static(0, m)
        A("L_ATT_GO:\ns_waitcnt vmcnt(0)\ns_barrier")
    else:
        qload(0); qload(1)
        A("L_ATT_MAIN:")
        A(f"s_cmp_lt_u32 s{S_W}, 4\ns_cselect_b64 vcc, -1, 0")
        for m in range(3):
            dma_static(0, m)
        flag_store(sH1, t=2, wave=7)
        A("s_waitcnt vmcnt(0)\ns_barrier")
    stamp(5); cstamp(8); fst(8, 5)

    def kreads(kl, off):
        A(f"ds_read_b64 {vr(kl,2)}, v{vK} offset:{off}\nds_read_b64 {vr(kl+2,2)}, v{vK} offset:{off+PS}\nds_read_b64 {vr(kl+4,2)}, v{vK1} offset:{off}")

    def vreads(vl, off):
        for j in range(4):
            A(f"ds_read_b64_tr_b16 {vr(vl+2*j,2)}, v{vV} offset:{off+64*j}")

    kreads(Kf[0], 0)
    vreads(Vf[0], 0)
    for m in range(2):
        dma_static(1, m)
    A("s_waitcnt lgkmcnt(4)")
    A(f"{MF32} {vr(SS[0],16)}, {vr(Kf[0],4)}, {vr(Q[0],4)}, 0\n{MF8} {vr(SS[0],16)}, {vr(Kf[0]+4,2)}, {vr(Q[0]+4,2)}, {vr(SS[0],16)}")
    dma_static(1, 2)
    A("s_nop 9")

    def tail_addr():
        A(f"s_lshl_b32 s64, s{S_W}, 12\ns_add_u32 s64, s64, {RED}\ns_xor_b32 s65, s{S_W}, 4\ns_lshl_b32 s65, s65, 12\ns_add_u32 s65, s65, {RED}")
        A(f"v_add_u32 v2, s64, v{vD}\nv_add_u32 v3, s65, v{vD}\ns_movk_i32 s69, 0x100\nv_cmp_gt_u32 s[66:67], s69, v{vD}")
        A(f"v_lshrrev_b32 v4, 9, v{vD}\nv_bfe_u32 v5, v{vD}, 8, 1\nv_lshl_add_u32 v5, v5, 1, v4\nv_mul_u32_u24 v5, {PL}, v5\nv_add_u32 v5, v5, v{vTok}")
        A(f"v_mov_b32 v4, {OOB}\nv_cndmask_b32 v4, v4, v{vTok}, s[66:67]")

    def unit(st, x, kt):
        s = SS[x]; sn = SS[1 - x]
        nk = kt if x == 0 else kt + 1
        kf = Kf[nk & 1]; qn = Q[1 - x]
        pk = kt - 1 if x == 0 else kt
        vprev = Vf[pk & 1]; v = Vf[kt & 1]
        last = st == 7 and kt == 3
        e = lambda i: A(f"v_exp_f32 v{s+i}, v{s+i}")
        c = lambda i: A(f"v_cvt_pk_bf16_f32 v{P+i}, v{s+2*i}, v{s+2*i+1}")
        nxt_off = ((st + 1) % 3) * SLOT if kt == 3 else (st % 3) * SLOT + 256 * (kt + 1)
        if x == 1 and not last:
            A("s_waitcnt lgkmcnt(0)")
        if not (last and x == 1):
            A(f"{MF32} {vr(sn,16)}, {vr(kf,4)}, {vr(qn,4)}, 0")
        e(0); e(1); e(2); e(3)
        if not (last and x == 1):
            A(f"{MF8} {vr(sn,16)}, {vr(kf+4,2)}, {vr(qn+4,2)}, {vr(sn,16)}")
        c(0); c(1); e(4); e(5); e(6); e(7)
        if (st, x, kt) != (0, 0, 0):
            A(f"{MF32} {vr(O[1-x],16)}, {vr(vprev+4,4)}, {vr(P+4,4)}, {vr(O[1-x],16)}")
        if not last:
            if x == 0:
                if kt == 3:
                    A("s_waitcnt vmcnt(0)")
                    if st == 0:
                        fc = uid("FC")
                        A(f"s_cmp_lg_u32 s{sChk}, 0\ns_cbranch_scc1 {fc}")
                        A(f"v_cmp_ne_u64 s[64:65], {EP}, v[2:3]\nv_cmp_ne_u64 s[66:67], {EP}, v[4:5]\ns_or_b64 s[64:65], s[64:65], s[66:67]\ns_cbranch_scc0 {fc}")
                        poll([vF6, vF7], t=2)
                        A(f"s_mov_b64 vcc, -1\n{fc}:")
                    A("s_barrier")
                kreads(Kf[(kt + 1) & 1], nxt_off)
            else:
                vreads(Vf[(kt + 1) & 1], nxt_off)
        site = {(1, 3): (0, st + 2), (0, 0): (1, st + 1), (1, 0): (2, st + 1)}.get((x, kt))
        if site and 2 <= site[1] < 8:
            dma_static(site[1], site[0])
        if st == OPT["g2s"] - 1 and 2 * kt + x == OPT["g2q"]:
            flag_store(sH2, t=6, wave=7)
        if 8 * st + 2 * kt + x == OPT["hu"]:
            flag_store(sH1, t=6, wave=7)
        if (st, x, kt) == (1, 1, 1):
            tail_addr()
        if (st, x, kt) == (0, 0, 2):
            nf = uid("NF")
            A(f"s_cmp_lg_u32 s{sChk}, 0\ns_cbranch_scc1 {nf}")
            A(f"buffer_load_dwordx2 v[2:3], v{vF6}, {S(WS)}, 0 offen sc1\nbuffer_load_dwordx2 v[4:5], v{vF7}, {S(WS)}, 0 offen sc1\n{nf}:")
        if OPT["tog"] == 1:
            A(f"s_setprio {1 - x}")
        if OPT["tog"] >= 2:
            gu = 8 * st + 2 * kt + x
            top = 3 if OPT["tog"] == 2 else 2
            if gu < 6:
                lv = {0: top, 1: top - 1, 3: top - 2, 5: top - 3}.get(gu) if top == 3 else {0: 2, 2: 1, 4: 0}.get(gu)
            elif gu >= 54:
                lv = {54: 3, 57: 2, 60: 1, 62: 0}.get(gu) if top == 3 else {54: 2, 58: 1, 61: 0}.get(gu)
            else:
                ph = (gu - 6) % 8
                lv = {0: 3, 2: 2, 4: 1, 6: 0}.get(ph) if top == 3 else {0: 2, 3: 1, 6: 0}.get(ph)
            if lv is not None:
                A(f"s_setprio {lv}")
        c(2); c(3); e(8); e(9); e(10); e(11)
        if x == 0:
            A(f"s_waitcnt lgkmcnt({0 if last else 3})")
        A(f"{MF32} {vr(O[x],16)}, {vr(v,4)}, {vr(P,4)}, {'0' if (st, kt) == (0, 0) else vr(O[x],16)}")
        c(4); c(5); e(12); e(13); e(14); e(15); c(6); c(7)

    for st in range(8):
        fst(10, st); rst(11, st)
        for kt in range(4):
            unit(st, 0, kt)
            unit(st, 1, kt)
    A(f"s_setprio 3\ns_nop 0\n{MF32} {vr(O[1],16)}, {vr(Vf[1]+4,4)}, {vr(P+4,4)}, {vr(O[1],16)}")
    stamp(6); cstamp(9); fst(6, 0); fst(10, 8); rst(11, 8)
    assert RED + 8 * 4096 <= BADW
    o = O[0]
    lo, hi = f2u(2.0 ** -60), f2u(2.0 ** 60)
    if OPT["force_fb"]:
        hi = f2u(2.0 ** -59)
    A(f"v_mov_b32 v70, 0\nv_mov_b32 v71, 0\nv_mov_b32 v80, {lo}\nv_mov_b32 v81, {hi}\nv_mov_b32 v83, {BADW}")
    A(f"v_lshlrev_b32 v82, 4, v{vD}\nv_mov_b32 v84, s{S_E}\nv_mov_b32 v85, s{S_E+1}\ns_nop 3")
    for g in range(4):
        A(f"ds_write_b128 v2, {vr(O[1]+4*g,4)} offset:{1024*g}")
    fst(6, 1)
    A("s_waitcnt lgkmcnt(0)\ns_barrier")
    fst(6, 2)
    for g in (3, 0, 1, 2):
        A(f"ds_read_b128 {vr(52+4*g,4)}, v3 offset:{1024*g}")
    A(f"s_waitcnt lgkmcnt(3)\nv_add_f32 v{o+12}, v{o+12}, v{52+12}\nv_rcp_f32 v68, v{o+12}")
    for g in range(3):
        a = o + 4 * g
        A(f"s_waitcnt lgkmcnt({2-g})\nv_pk_add_f32 {vr(a,2)}, {vr(a,2)}, {vr(52+4*g,2)}\nv_pk_add_f32 {vr(a+2,2)}, {vr(a+2,2)}, {vr(54+4*g,2)}")
        A(f"v_pk_mul_f32 {vr(a,2)}, {vr(a,2)}, v[68:69] op_sel_hi:[1,0]\nv_pk_mul_f32 {vr(a+2,2)}, {vr(a+2,2)}, v[68:69] op_sel_hi:[1,0]")
        A(f"v_cvt_pk_bf16_f32 v{72+2*g}, v{a}, v{a+1}\nv_cvt_pk_bf16_f32 v{73+2*g}, v{a+2}, v{a+3}")
        if g == 1:
            A(f"s_nop 0\nv_permlane16_swap_b32 v72, v74\nv_permlane16_swap_b32 v73, v75")
            A(f"buffer_store_dwordx4 v[72:75], v5, {S(WS)}, s{sO0} offen sc1")
        if g == 2:
            A(f"v_mov_b32 v78, v76\nv_mov_b32 v79, v77\ns_nop 0\nv_permlane16_swap_b32 v76, v78\nv_permlane16_swap_b32 v77, v79")
            A(f"buffer_store_dwordx4 v[76:79], v4, {S(WS)}, s{sO1} offen sc1")
    for i in range(0, 12, 2):
        A(f"v_pk_fma_f32 v[70:71], {vr(o+i,2)}, 0, v[70:71] op_sel_hi:[1,0,1]")
    A(f"v_cmp_u_f32 vcc, v70, v71\nv_cmp_ngt_f32 s[66:67], v{o+12}, v80\ns_or_b64 vcc, vcc, s[66:67]\nv_cmp_nlt_f32 s[66:67], v{o+12}, v81\ns_or_b64 vcc, vcc, s[66:67]")
    A(f"s_cbranch_vccz L_NOBAD\nv_mov_b32 v81, 1\nds_write_b32 v83, v81\nL_NOBAD:")
    fst(6, 3)
    if OPT["lastw"]:
        A("s_waitcnt lgkmcnt(0)\ns_barrier\nds_read_b32 v81, v83\nv_mov_b32 v86, 1\ns_waitcnt lgkmcnt(0)\nv_readfirstlane_b32 s64, v81")
        A(f"s_cmp_gt_u32 s64, s{sPass}\ns_cbranch_scc1 L_ATT_FB0")
        A("s_mov_b64 exec, 1\ns_waitcnt vmcnt(0)")
        fst(6, 4)
        A("ds_add_rtn_u32 v86, v83, v86 offset:4\ns_waitcnt lgkmcnt(0)\nv_readfirstlane_b32 s64, v86\ns_mov_b64 exec, -1")
        fst(6, 5)
        A(f"s_cmp_lg_u32 s64, 7\ns_cbranch_scc1 L_A_DONE\ns_mov_b32 exec_hi, 0\nbuffer_store_dwordx2 v[84:85], v82, {S(WS)}, s{sPV4} offen sc1\ns_mov_b64 exec, -1")
    else:
        A("s_waitcnt lgkmcnt(0)\ns_barrier\nds_read_b32 v81, v83\ns_waitcnt vmcnt(0) lgkmcnt(0)\nv_readfirstlane_b32 s64, v81")
        fst(6, 4)
        A("s_barrier")
        fst(6, 5)
        A(f"s_cmp_gt_u32 s64, s{sPass}\ns_cbranch_scc1 L_ATT_FB")
        A(f"s_cmp_lg_u32 s{S_W}, 0\ns_cbranch_scc1 L_A_DONE\ns_mov_b32 exec_hi, 0\nbuffer_store_dwordx2 v[84:85], v82, {S(WS)}, s{sPV4} offen sc1\ns_mov_b64 exec, -1")
    A("L_A_DONE:")
    stamp(7)
    dump_stamps(12, "A")
    A("s_endpgm")

    A("L_ATT_FB0:\ns_waitcnt vmcnt(0)\nL_ATT_FB:")
    A(f"s_mov_b32 s{sPass}, 1\ns_mov_b32 s{sChk}, 1\ns_mov_b32 s34, 0\ns_cmp_lt_u32 s{S_W}, 4\ns_cselect_b64 vcc, -1, 0")
    A("v_mov_b32 v20, 0xff800000\nv_mov_b32 v21, 0xff800000")
    A("L_FB_LOOP:\ns_barrier")
    for m in range(3):
        dma_static(0, m, "s34")
    A("s_waitcnt vmcnt(0)\ns_barrier")
    for kt in range(4):
        kreads(Kf[0], 256 * kt)
        A("s_waitcnt lgkmcnt(0)")
        for x in range(2):
            A(f"{MF32} {vr(SS[x],16)}, {vr(Kf[0],4)}, {vr(Q[x],4)}, 0\n{MF8} {vr(SS[x],16)}, {vr(Kf[0]+4,2)}, {vr(Q[x]+4,2)}, {vr(SS[x],16)}")
        A("s_nop 15")
        for x in range(2):
            for i in range(0, 16, 2):
                A(f"v_max3_f32 v{20+x}, v{SS[x]+i}, v{SS[x]+i+1}, v{20+x}")
    A("s_add_u32 s34, s34, 2048\ns_cmp_lt_u32 s34, 16384\ns_cbranch_scc1 L_FB_LOOP")
    for x in range(2):
        A(f"v_mov_b32 v22, v{20+x}\ns_nop 1\nv_permlane32_swap_b32 v{20+x}, v22\nv_max_f32 v{20+x}, v{20+x}, v22")
    A(f"s_barrier\nds_write_b64 v2, v[20:21]\ns_waitcnt lgkmcnt(0)\ns_barrier\nds_read_b64 v[22:23], v3\ns_waitcnt lgkmcnt(0)")
    A("v_max_f32 v20, v20, v23\nv_max_f32 v21, v21, v22\nv_cmp_le_u32 vcc, 32, v1")
    for x in range(2):
        A(f"v_sub_f32 v24, 0, v{20+x}\nv_and_b32 v25, 0xffff0000, v24\nv_sub_f32 v24, v24, v25\nv_and_b32 v26, 0xffff0000, v24\nv_sub_f32 v24, v24, v26")
        A(f"v_lshrrev_b32 v25, 16, v25\nv_or_b32 v25, v25, v26\nv_lshrrev_b32 v24, 16, v24")
        A(f"v_cndmask_b32 v{Q[x]+4}, v{Q[x]+4}, v25, vcc\nv_cndmask_b32 v{Q[x]+5}, v{Q[x]+5}, v24, vcc")
    A(f"s_lshr_b32 s64, s{S_W}, 1\ns_min_u32 s64, s64, 2\ns_mul_i32 s64, s64, {SLOT}\ns_and_b32 s65, s{S_W}, 1\ns_lshl_b32 s65, s65, 10\ns_add_u32 s64, s64, s65\ns_add_u32 s64, s64, {10*PS}")
    A(f"v_add_u32 v24, s64, v{vD}")
    for i in range(4):
        A(f"v_mov_b32 v{28+i}, 0x3f803f80")
    A("s_barrier\nds_write_b128 v24, v[28:31]\ns_waitcnt lgkmcnt(0)\ns_branch L_ATT_MAIN")


def cmul(d, a, b, t):
    A(f"v_pk_mul_f32 {vr(t,2)}, {vr(a,2)}, {vr(b,2)} op_sel:[0,0] op_sel_hi:[1,0]")
    A(f"v_pk_fma_f32 {vr(d,2)}, {vr(a,2)}, {vr(b,2)}, {vr(t,2)} op_sel:[1,1,0] op_sel_hi:[0,1,1] neg_lo:[0,1,0]")


def cfma(d, a, b, c, t):
    A(f"v_pk_fma_f32 {vr(t,2)}, {vr(a,2)}, {vr(b,2)}, {vr(c,2)} op_sel:[0,0,0] op_sel_hi:[1,0,1]")
    A(f"v_pk_fma_f32 {vr(d,2)}, {vr(a,2)}, {vr(b,2)}, {vr(t,2)} op_sel:[1,1,0] op_sel_hi:[0,1,1] neg_lo:[0,1,0]")


def gather4(src, dst):
    if OPT["lscan"]:
        A(f"ds_write_b64 v0, {vr(src,2)}")
        for q in range(4):
            A(f"ds_read_b64 {vr(dst+2*q,2)}, v17 offset:{128*q}")
        A("s_waitcnt lgkmcnt(0)")
        return
    for c in range(2):
        A(f"v_mov_b32 v{dst+c}, v{src+c}\nv_mov_b32 v{dst+2+c}, v{src+c}")
    A("s_nop 0")
    for c in range(2):
        A(f"v_permlane16_swap_b32 v{dst+c}, v{dst+2+c}")
    for c in range(4):
        A(f"v_mov_b32 v{dst+4+c}, v{dst+c}")
    for c in range(4):
        A(f"v_permlane32_swap_b32 v{dst+c}, v{dst+4+c}")


sTC, sNB, sK, sROT, sCT = 41, 42, 43, 37, 36


def hoist():
    A(f"v_and_b32 v26, 15, v1\nv_add_u32 v123, s{sCT}, v26\nv_lshlrev_b32 v123, 3, v123")
    A(f"v_lshrrev_b32 v27, 4, v1\nv_mul_u32_u24 v28, {8*640}, v27\ns_sub_u32 s65, 32, s{sTC}\ns_mul_i32 s65, s65, 640\nv_add3_u32 v124, v123, v28, s65")
    A(f"v_mul_u32_u24 v28, 40960, v27\nv_lshl_add_u32 v125, v16, 4, v28")
    A(f"s_lshl_b32 s65, s{S_W}, 6\nv_add_u32 v28, s65, v1\nv_mul_u32_u24 v29, 6554, v28\nv_lshrrev_b32 v29, 16, v29\nv_mul_u32_u24 v30, 10, v29\nv_sub_u32 v30, v28, v30")
    A(f"v_and_b32 v28, 0x78, v29\nv_and_b32 v31, 1, v29\nv_lshl_add_u32 v28, v31, 2, v28\nv_bfe_u32 v31, v29, 1, 2\nv_add_u32 v28, v28, v31")
    A(f"v_mul_u32_u24 v28, 1280, v28\nv_lshl_add_u32 v28, v30, 4, v28\ns_mul_i32 s65, s{sNB}, 160\nv_add_u32 v117, s65, v28")
    A(f"v_lshrrev_b32 v28, 5, v1\nv_mul_u32_u24 v28, {PL}, v28\nv_and_b32 v29, 31, v1\nv_lshlrev_b32 v29, 4, v29\ns_and_b32 s65, s{S_W}, 1\ns_lshl_b32 s65, s65, 7\nv_xor_b32 v29, s65, v29\nv_add_u32 v119, v28, v29")
    A("v_bfe_u32 v30, v1, 2, 2\nv_and_b32 v31, 3, v1")
    sm, dn = uid("HS"), uid("HD")
    A(f"s_cmp_ge_u32 s{S_W}, 4\ns_cbranch_scc1 {sm}")
    for big in (True, False):
        if big:
            A(f"v_lshrrev_b32 v27, 5, v1\nv_and_b32 v26, 31, v1\ns_lshr_b32 s65, s{S_W}, 1\ns_and_b32 s66, s{S_W}, 1")
            A(f"s_lshl_b32 s67, s65, 5\ns_lshl_b32 s68, s66, 5")
            A(f"s_lshl_b32 s69, s65, 2\nv_bfe_u32 v28, v1, 4, 1\nv_lshlrev_b32 v28, 1, v28\nv_lshrrev_b32 v29, 1, v31\nv_add3_u32 v28, v28, v29, s69")
        else:
            A(f"{sm}:\ns_sub_u32 s65, s{S_W}, 4\ns_lshl_b32 s67, s65, 4\ns_mov_b32 s68, 64")
            A(f"s_lshl_b32 s69, s65, 1\nv_lshrrev_b32 v28, 1, v31\nv_add_u32 v28, s69, v28")
        A(f"v_mul_u32_u24 v28, 1088, v28\nv_lshl_add_u32 v29, v27, 3, v30\nv_lshl_add_u32 v28, v29, 4, v28\nv_and_b32 v29, 1, v31\nv_lshl_add_u32 v112, v29, 3, v28")
        A(f"v_add_u32 v28, s68, v26\nv_lshlrev_b32 v28, 7, v28\nv_add_u32 v28, 8704, v28\nv_bfe_u32 v29, v26, 1, 3\nv_xor_b32 v29, v29, v27\nv_lshl_add_u32 v113, v29, 4, v28")
        A(f"s_lshl_b32 s69, s{sTC}, 6\ns_add_u32 s69, s69, s67\nv_lshl_add_u32 v28, v27, 2, s69\ns_mul_i32 s69, s{sNB}, 80\ns_add_u32 s69, s69, s68\nv_add_u32 v29, s69, v26")
        A("v_mul_u32_u24 v114, 1280, v28\nv_lshl_add_u32 v114, v29, 1, v114\nv_mul_u32_u24 v115, 5120, v28\nv_lshl_add_u32 v115, v29, 2, v115\nv_lshlrev_b32 v126, 1, v29")
        A("v_lshlrev_b32 v28, 1, v30\nv_lshl_add_u32 v28, v27, 3, v28\nv_mul_u32_u24 v28, 160, v28\nv_lshl_add_u32 v28, v31, 3, v28")
        if big:
            A("v_bfe_u32 v29, v1, 4, 1\nv_lshl_add_u32 v28, v29, 5, v28\ns_lshl_b32 s69, s66, 6\nv_add_u32 v116, s69, v28")
            A("v_add_u32 v28, s67, v26\nv_lshlrev_b32 v28, 3, v28\nv_lshlrev_b32 v29, 7, v27\nv_xor_b32 v28, v28, v29\nv_lshl_add_u32 v28, v27, 10, v28\ns_mul_i32 s69, s65, 40960\nv_add_u32 v118, s69, v28")
            A(f"v_lshlrev_b32 v122, 4, v1\nv_mov_b32 v127, 0\nv_mov_b32 v26, 0\nv_mov_b32 v27, 0\nv_mov_b32 v28, 0\ns_branch {dn}")
        else:
            A("v_add_u32 v116, 128, v28")
            A("v_add_u32 v28, s67, v26\nv_lshlrev_b32 v28, 3, v28\nv_and_b32 v29, 1, v27\nv_lshlrev_b32 v29, 7, v29\nv_xor_b32 v28, v28, v29\nv_lshl_add_u32 v118, v27, 10, v28")
            A(f"v_lshrrev_b32 v28, 3, v1\ns_mul_i32 s69, s{sNB}, 80\ns_lshl_b32 s66, s65, 3\ns_add_u32 s69, s69, s66\nv_add_u32 v28, s69, v28\nv_mul_u32_u24 v28, 1280, v28")
            A(f"v_and_b32 v29, 7, v1\nv_xor_b32 v29, v29, v27\ns_and_b32 s69, s65, 1\ns_lshl_b32 s69, s69, 2\nv_xor_b32 v29, s69, v29\nv_lshl_add_u32 v122, v29, 4, v28")
            A("v_xor_b32 v127, 64, v113\nv_add_u32 v26, 40960, v122\nv_add_u32 v27, 81920, v122\nv_add_u32 v28, 40960, v118")
    A(f"{dn}:")


def wo_src(d, sj, t):
    A(f"v_add_u32 v{t}, s{sj}, v1\nv_mul_u32_u24 v{t+1}, 6554, v{t}\nv_lshrrev_b32 v{t+1}, 16, v{t+1}\nv_mul_u32_u24 v{t+2}, 10, v{t+1}\nv_sub_u32 v{t+2}, v{t}, v{t+2}")
    A(f"v_and_b32 v{t}, 0x78, v{t+1}\nv_and_b32 v{t+3}, 1, v{t+1}\nv_lshl_add_u32 v{t}, v{t+3}, 2, v{t}\nv_bfe_u32 v{t+3}, v{t+1}, 1, 2\nv_add_u32 v{t}, v{t}, v{t+3}")
    A(f"v_mul_u32_u24 v{t}, 1280, v{t}\nv_lshl_add_u32 v{t}, v{t+2}, 4, v{t}\ns_mul_i32 s69, s{sNB}, 160\nv_add_u32 v{d}, s69, v{t}")


def role_b():
    A("L_ROLE_B:\ns_cmp_ge_u32 s2, 512\ns_cbranch_scc1 L_END")
    if OPT.get("nob"):
        A("s_endpgm")
    stamp(0)
    A(f"s_load_dwordx16 s[8:23], s[0:1], 0\ns_load_dwordx8 s[24:31], s[0:1], 64\ns_load_dwordx2 s[{P_OUT}:{P_OUT+1}], s[0:1], 96\ns_load_dwordx2 s[{WS}:{WS+1}], s[0:1], 112")
    A(f"v_lshrrev_b32 v2, 6, v0\nv_and_b32 v1, 63, v0\nv_readfirstlane_b32 s{S_W}, v2")
    bhi()
    if OPT["prea"]:
        A(f"s_cmp_ge_u32 s{S_W}, 4\ns_cbranch_scc1 L_NOPREA\ns_and_b32 s64, s{S_W}, 2\ns_lshl_b32 s64, s64, 2\ns_load_dwordx2 s[{R3}:{R3+1}], s[0:1], s64")
        A(f"s_sub_u32 s66, s2, 256\ns_lshl_b32 s66, s66, 1\ns_and_b32 s67, s{S_W}, 1\ns_add_u32 s66, s66, s67\ns_cmp_lt_u32 s{S_W}, 2\ns_cselect_b32 s67, 40, 38\ns_mul_i32 s66, s66, s67\ns_lshl_b32 s66, s66, 7")
        A(f"s_mov_b32 s{R3+2}, 2457600\ns_cmp_lt_u32 s{S_W}, 2\ns_cselect_b32 s{R3+2}, 2621440, s{R3+2}\ns_mov_b32 s{R3+3}, 0x20000\nv_min_u32 v32, 39, v1\nv_lshlrev_b32 v32, 7, v32")
        if OPT["prea"] == 1:
            A(f"s_waitcnt lgkmcnt(0)\nbuffer_load_dword v33, v32, {S(R3)}, s66 offen")
        A(f"s_mov_b32 s3, s66\nL_NOPREA:")
    if OPT["cpre"]:
        cp = uid("CP")
        A(f"s_cmp_lg_u32 s{S_W}, 7\ns_cbranch_scc1 {cp}\ns_getpc_b64 s[64:65]\nL_PC:\ns_sub_u32 s64, s64, L_PC-{NAME}_kernel\ns_subb_u32 s65, s65, 0")
        A("s_bfe_u32 s66, s2, 0x50003\ns_lshl_b32 s66, s66, 11\nv_and_b32 v2, 15, v1\nv_lshlrev_b32 v2, 7, v2\nv_add_u32 v2, s66, v2")
        A(f"v_min_u32 v2, L_END-{NAME}_kernel, v2\nv_mov_b32 v3, s65\nv_add_co_u32 v2, vcc, s64, v2\ns_nop 1\nv_addc_co_u32 v3, vcc, 0, v3, vcc\nglobal_load_dword v4, v[2:3], off\n{cp}:")
    A(f"s_and_b32 s{sTC}, s2, 3\ns_lshl_b32 s{sTC}, s{sTC}, 3\ns_bfe_u32 s64, s2, 0x30003\ns_add_u32 s{sTC}, s{sTC}, s64")
    A(f"s_and_b32 s{sNB}, s2, 4\ns_bfe_u32 s64, s2, 0x20006\ns_add_u32 s{sNB}, s{sNB}, s64")
    A(f"s_mul_i32 s{sROT}, s{sNB}, 3\ns_add_u32 s{sROT}, s{sROT}, s{sTC}")
    A(f"s_mul_i32 s64, s{sROT}, 205\ns_lshr_b32 s64, s64, 11\ns_mul_i32 s64, s64, 10\ns_sub_u32 s{sROT}, s{sROT}, s64")
    if not OPT["brot"]:
        A(f"s_mov_b32 s{sROT}, 0")
    if OPT["pre"]:
        A(f"s_lshl_b32 s64, s{S_W}, 3\ns_add_u32 s64, s64, 48\ns_cmp_eq_u32 s{S_W}, 4\ns_cselect_b32 s64, 16, s64\ns_cmp_gt_u32 s{S_W}, 4\ns_cselect_b32 s64, 24, s64")
        A(f"s_load_dwordx2 s[{R3}:{R3+1}], s[0:1], s64\ns_cselect_b32 s{R3+2}, 2621440, 0\ns_cselect_b32 s65, 39, 24\ns_max_u32 s{R3+2}, s{R3+2}, 819200\ns_mov_b32 s{R3+3}, 0x20000")
        A(f"v_min_u32 v32, s65, v1\nv_lshlrev_b32 v32, 7, v32\ns_sub_u32 s66, s2, 256\ns_mul_i32 s38, s66, 3200\ns_mul_i32 s66, s66, 10240\ns_sub_u32 s67, s{S_W}, 5\ns_mul_i32 s67, s67, 5120\ns_add_u32 s66, s66, s67")
        A(f"s_cmp_gt_u32 s{S_W}, 4\ns_cselect_b32 s38, s66, s38\ns_cmp_eq_u32 s{S_W}, 7\ns_cselect_b32 s39, {OOB}, 0\nv_or_b32 v32, s39, v32")
    A(f"s_mov_b32 s{WS+2}, {WS_USED}\ns_mov_b32 s{WS+3}, 0x20000\ns_waitcnt lgkmcnt(0)\ns_load_dword s{S_E}, {WSP}, {EPOCH}")
    if OPT["pre"] == 1:
        A(f"buffer_load_dword v33, v32, {S(R3)}, s38 offen")
    MU, CF, MU16, PW, LAM, LAM8 = 2, 4, 6, 8, 10, 12
    A(f"s_min_u32 s{sCT}, s{S_W}, 4\ns_lshl_b32 s{sCT}, s{sCT}, 4\ns_mul_i32 s64, s{sNB}, 80\ns_add_u32 s64, s64, s{sCT}")
    vS0, vRA, vRB = 14, 18, 22
    SH = 12288

    def advK():
        A(f"s_add_u32 s{sK}, s{sK}, 128\ns_cmp_eq_u32 s{sK}, 1280\ns_cselect_b32 s{sK}, 0, s{sK}")

    def dmaB(Sx):
        for q in range(4):
            A(f"s_add_u32 m0, s38, {(Sx % 2) * 4096 + q * 1024}\ns_nop 0")
            dma(vS0 + (q & 1), R1 if q < 2 else R2, sK)
        advK()

    def dmaB4(Sx):
        for q in range(2):
            A(f"s_add_u32 m0, s38, {(Sx % 3) * SH + 8192 + q * 1024}\ns_nop 0")
            dma(vS0 + q, R3, sK)
        advK()

    def dmaX(Sx):
        for q in range(4):
            A(f"s_add_u32 m0, s38, {(Sx % 3) * SH + q * 1024}\ns_nop 0")
            dma([vS0, vS0 + 1, 54, 55][q], R0, sK)
        advK()

    def g1_common():
        srd(R0, P_BX, 2621440); srd(R1, P_BRE, 819200); srd(R2, P_BIM, 819200)
        A(f"s_cmp_eq_u32 s{S_W}, 5\ns_cselect_b32 s{R3}, s{R1}, s{R2}\ns_cselect_b32 s{R3+1}, s{R1+1}, s{R2+1}\ns_mov_b32 s{R3+2}, 819200\ns_mov_b32 s{R3+3}, 0x20000")
        A(f"s_lshl_b32 s{sK}, s{sROT}, 7\nv_mov_b32 v54, 0\nv_mov_b32 v55, 0")
        A("v_lshrrev_b32 v30, 4, v1\nv_and_b32 v31, 7, v1\nv_xor_b32 v31, v31, v30\nv_lshlrev_b32 v31, 4, v31")

    def src_b():
        A(f"v_lshrrev_b32 v30, 3, v1\nv_add_u32 v30, s64, v30\nv_mul_u32_u24 v30, 1280, v30\nv_add_u32 v{vS0}, v30, v31")
        A(f"v_xor_b32 v{vS0+1}, 64, v{vS0}\nv_add_u32 v{vS0+1}, 10240, v{vS0+1}")

    def src_main():
        src_b()
        A(f"s_lshl_b32 s38, s{S_W}, 13\ns_add_u32 s38, s38, {3*SH}")

    def src_aux():
        src_b()
        A(f"s_sub_u32 s38, s{S_W}, 5\ns_lshl_b32 s38, s38, 11")

    def src_ld():
        A(f"s_cmp_eq_u32 s{S_W}, 7\ns_cselect_b32 s38, 1, 0")
        A(f"v_lshrrev_b32 v30, 5, v1\nv_bfe_u32 v29, v1, 3, 1\nv_lshl_add_u32 v30, v30, 1, v29\nv_lshlrev_b32 v30, 4, v30\nv_bfe_u32 v29, v1, 4, 1\nv_add_u32 v30, v30, v29")
        A(f"s_lshl_b32 s66, s{sTC}, 6\ns_lshl_b32 s67, s38, 3\ns_add_u32 s66, s66, s67\nv_add_u32 v30, s66, v30\nv_mul_u32_u24 v30, 1280, v30\nv_add_u32 v{vS0}, v30, v31")
        A(f"v_xor_b32 v{vS0+1}, 64, v{vS0}\nv_add_u32 v{vS0+1}, 2560, v{vS0+1}\nv_add_u32 v54, 5120, v{vS0}\nv_add_u32 v55, 5120, v{vS0+1}\ns_lshl_b32 s38, s38, 12")

    EARLY = OPT["gs"] == 2
    if EARLY:
        g1_common()
        A(f"s_cmp_ge_u32 s{S_W}, 4\ns_cbranch_scc1 L_E1")
        src_main(); dmaB(0); dmaB(1)
        A(f"s_branch L_E3\nL_E1:\ns_cmp_eq_u32 s{S_W}, 4\ns_cbranch_scc1 L_E2\ns_cmp_eq_u32 s{S_W}, 7\ns_cbranch_scc1 L_E2")
        src_aux(); dmaB4(0); dmaB4(1)
        A("s_branch L_E3\nL_E2:")
        src_ld(); dmaX(0); dmaX(1)
        A("L_E3:")
    A(f"v_and_b32 v16, 15, v1\nv_add_u32 v16, s64, v16\nv_lshlrev_b32 v21, 1, v16")
    for k, p in enumerate((P_LRE, P_LIM, P_LDT)):
        srd(8, p, 1280)
        A(f"buffer_load_ushort v{22+k}, v21, {S(8)}, 0 offen")
    def prea_go(n):
        if OPT["prea"] == n:
            A(f"s_cmp_ge_u32 s{S_W}, 4\ns_cbranch_scc1 L_NOPREB\nbuffer_load_dword v33, v32, {S(R3)}, s3 offen\nL_NOPREB:")

    if OPT["prea"] == 4:
        A("s_waitcnt lgkmcnt(0)")
        prea_go(4)
    prea_go(2)
    A("s_waitcnt vmcnt(0) lgkmcnt(0)")
    prea_go(3)
    epoch_fix()
    LOG2E = f2u(math.log2(math.e))
    A("v_lshlrev_b32 v22, 16, v22\nv_lshlrev_b32 v23, 16, v23\nv_lshlrev_b32 v24, 16, v24")
    A(f"v_mul_f32 v24, {LOG2E}, v24\nv_exp_f32 v24, v24\ns_nop 0\nv_cvt_pk_bf16_f32 v24, v24, v24\nv_lshlrev_b32 v24, 16, v24")
    A(f"v_mul_f32 v25, v24, v22\nv_mul_f32 v26, v24, v23\nv_mul_f32 v25, {LOG2E}, v25\nv_exp_f32 v25, v25")
    A(f"v_mul_f32 v26, 0.15915494, v26\nv_fract_f32 v26, v26\nv_cos_f32 v27, v26\nv_sin_f32 v28, v26\ns_nop 0")
    A(f"v_mul_f32 v{MU}, v25, v27\nv_mul_f32 v28, v25, v28\nv_sub_f32 v{MU+1}, 0, v28")
    A(f"v_add_f32 v27, -1.0, v{MU}")
    A("v_mul_f32 v25, v22, v22\nv_fmac_f32 v25, v23, v23\nv_rcp_f32 v25, v25")
    A("v_mul_f32 v26, v27, v22\nv_fmac_f32 v26, v28, v23\nv_mul_f32 v29, v28, v22\nv_fma_f32 v29, -v27, v23, v29")
    A(f"v_add_f32 v25, v25, v25\nv_mul_f32 v{CF}, v26, v25\nv_mul_f32 v29, v29, v25\nv_sub_f32 v{CF+1}, 0, v29")
    cmul(MU16, MU, MU, 22)
    for _ in range(3):
        cmul(MU16, MU16, MU16, 22)
    cmul(24, MU16, MU16, 22)
    cmul(26, 24, MU16, 22)
    cmul(LAM, 24, 24, 22)
    cmul(LAM8, LAM, LAM, 22)
    cmul(LAM8, LAM8, LAM8, 22)
    cmul(LAM8, LAM8, LAM8, 22)
    A("v_lshrrev_b32 v28, 4, v1")
    A(f"v_cmp_eq_u32 s[96:97], 1, v28\nv_cmp_eq_u32 s[98:99], 2, v28\nv_cmp_eq_u32 s[100:101], 3, v28")
    A(f"v_mov_b32 v{PW}, 1.0\nv_mov_b32 v{PW+1}, 0")
    for src, m in ((MU16, 96), (24, 98), (26, 100)):
        for c in range(2):
            A(f"v_cndmask_b32 v{PW+c}, v{PW+c}, v{src+c}, s[{m}:{m+1}]")
    if OPT["pre"] == 3:
        A(f"buffer_load_dword v33, v32, {S(R3)}, s38 offen")
    if OPT["pre"] == 2:
        A(f"s_cmp_lg_u32 s{S_W}, 0\ns_cbranch_scc1 L_NOH0\ns_mov_b32 s39, s64\ns_sub_u32 s66, s2, 256\ns_lshl_b32 s66, s66, 7\ns_add_u32 s66, s66, {F0C}")
        spoll([(8, 1, 0)], 66)
        A(f"s_mov_b32 s64, s39\nL_NOH0:\ns_barrier\nbuffer_load_dword v33, v32, {S(R3)}, s38 offen")
    if OPT["pvt"]:
        A(f"s_cmp_lg_u32 s{S_W}, 6\ns_cbranch_scc1 L_NOPVB\ns_lshl_b32 s65, s{sNB}, 5\ns_add_u32 s65, s65, s{sTC}\ns_lshl_b32 s65, s65, 8\ns_add_u32 s65, s65, {PV2}")
        A(f"s_lshl_b32 s66, s{sTC}, 3\ns_add_u32 s66, s66, s{sNB}\ns_lshl_b32 s67, s66, 7\ns_add_u32 s67, s67, {PV3}\ns_lshl_b32 s66, s66, 8\ns_add_u32 s66, s66, {PV4}")
        A(f"s_load_dword s3, {WSP}, s65 glc\ns_load_dword s3, {WSP}, s65 offset:128 glc\ns_load_dword s3, {WSP}, s67 glc\ns_load_dword s3, {WSP}, s66 glc\ns_load_dword s3, {WSP}, s66 offset:128 glc")
        A(f"s_sub_u32 s65, s2, 256\ns_lshl_b32 s65, s65, 7\ns_add_u32 s65, s65, {F0B}\ns_load_dword s3, {WSP}, s65 glc\ns_waitcnt lgkmcnt(0)\nL_NOPVB:")
    hoist()
    if not EARLY:
        g1_common()
    A(f"v_and_b32 v30, 31, v1\nv_lshlrev_b32 v30, 7, v30\nv_lshrrev_b32 v17, 5, v1\nv_bfe_u32 v29, v1, 1, 3\nv_xor_b32 v29, v17, v29\nv_lshl_add_u32 v{vRA}, v29, 4, v30")

    def scan_addr():
        A(f"s_mul_i32 s66, s{sCT}, 576\ns_add_u32 s66, s66, 20480\ns_lshl_b32 s67, s{sCT}, 5\ns_add_u32 s67, s67, 66560")
        A(f"v_and_b32 v0, 15, v1\nv_lshl_add_u32 v29, v17, 5, v0\nv_mul_u32_u24 v29, 144, v29\nv_bfe_u32 v30, v1, 4, 1\nv_lshl_add_u32 v29, v30, 2, v29\nv_add_u32 v29, s66, v29\nv_add_u32 v30, 2304, v29")
        A(f"v_mul_u32_u24 v31, 144, v1\nv_add_u32 v31, s66, v31\nv_lshl_add_u32 v17, v0, 3, s67\nv_lshl_add_u32 v0, v1, 3, s67")

    def early_addr():
        if not OPT["wearly"]:
            return
        A(f"s_cmp_eq_u32 s{S_W}, 6\ns_cselect_b32 s34, 1, 4\ns_cselect_b32 s35, 2, 0\ns_cmp_eq_u32 s{S_W}, 7\ns_cselect_b32 s34, 3, s34")
        for k in range(2):
            A(f"s_lshl_b32 s68, s{34+k}, 6")
            wo_src(48 + k, 68, 50)
            A(f"s_lshl_b32 s{34+k}, s{34+k}, 10")

    def touch2():
        t1, t2 = uid("U1"), uid("U2")
        if OPT["wearly"]:
            srd(R1, P_WO, 819200)
            for k in range(2):
                if k:
                    A(f"s_cmp_eq_u32 s{S_W}, 7\ns_cbranch_scc1 {t1}")
                for m in range(16):
                    A(f"s_add_u32 m0, s{34+k}, {5120*m}\ns_mov_b32 s64, {32*m*1280}")
                    dma(48 + k, R1, 64)
        else:
            A(f"s_cmp_eq_u32 s{S_W}, 7\ns_cbranch_scc1 {t1}")
        if OPT["c1"] >= 0 and not OPT["cu"]:
            A(f"{t1}:")
            return
        A(f"s_and_b32 s66, s{sTC}, 7\ns_mul_i32 s39, s66, 10\ns_mul_i32 s68, s{sNB}, 80\ns_add_u32 s39, s39, s68\ns_mul_i32 s39, s39, 1280")
        A(f"s_cmp_eq_u32 s{S_W}, 5\ns_cselect_b32 s{R1}, s{P_CRE}, s{P_CIM}\ns_cselect_b32 s{R1+1}, s{P_CRE+1}, s{P_CIM+1}")
        A(f"v_lshlrev_b32 v66, 7, v1\nv_min_u32 v67, 35, v1\nv_lshlrev_b32 v67, 7, v67\nv_add_u32 v67, 8192, v67")
        A(f"buffer_load_dword v64, v66, {S(R1)}, s39 offen\nbuffer_load_dword v65, v67, {S(R1)}, s39 offen\ns_branch {t2}\n{t1}:")
        srd(R1, P_WO, 819200)
        A(f"s_and_b32 s66, s{sTC}, 7\ns_mul_i32 s66, s66, {16*1280}\ns_mul_i32 s67, s{sNB}, 160\ns_add_u32 s66, s66, s67\ns_add_u32 s66, s66, {512*1280}")
        A(f"v_bfe_u32 v66, v1, 1, 4\nv_mul_u32_u24 v66, 1280, v66\nv_and_b32 v67, 1, v1\nv_mul_u32_u24 v67, 156, v67\nv_add_u32 v66, v66, v67")
        A(f"buffer_load_dword v64, v66, {S(R1)}, s66 offen\n{t2}:")

    GK = OPT["gk"]

    def more(Sx):
        return Sx + 2 < 10 and not (GK and Sx < GK <= Sx + 2)

    def inflight(Sx):
        return 0 if Sx == 9 or (GK and Sx == GK - 1) else 1

    def gate(Sx, issue, poller):
        if GK and Sx == GK:
            if poller:
                A(f"s_cmp_lg_u32 s{S_W}, 4\ns_cbranch_scc1 L_NOGATE\ns_sub_u32 s66, s2, 256\ns_lshl_b32 s66, s66, 7\ns_add_u32 s66, s66, {F0}")
                spoll([(8, 1, 0)], 66)
                A("L_NOGATE:")
            A("s_barrier")
            issue(GK); issue(GK + 1)

    ACC, BF, AF = 32, 64, 80
    A(f"s_cmp_ge_u32 s{S_W}, 4\ns_cbranch_scc1 L_G1_AUX")
    if not EARLY:
        src_main()
    for u in range(1, 4):
        A(f"v_xor_b32 v{vRA+u}, {32*u}, v{vRA}")
    for u in range(4):
        A(f"v_add_u32 v{vRB+u}, s38, v{vRA+u}")
    scan_addr()
    if not OPT["gs"]:
        A(f"s_cmp_lg_u32 s{S_W}, 0\ns_cbranch_scc1 L_NOHINT\ns_sub_u32 s66, s2, 256\ns_lshl_b32 s66, s66, 7\ns_add_u32 s66, s66, {F0C if OPT['gk'] else F0}")
        spoll([(8, 1, 0)], 66)
    A("L_NOHINT:\ns_waitcnt vmcnt(0)\ns_barrier")
    stamp(1)
    A(f"s_setprio {3 if OPT['mlo'] else OPT['g1p']}\n;MLO_ON")

    def g1_mm(Sx, u, tts=(0, 1)):
        for tt in tts:
            c = "0" if (Sx == 0 and u == 0) else vr(ACC + 16 * tt, 16)
            A(f"{MF32} {vr(ACC+16*tt,16)}, {vr(AF+8*u+4*tt,4)}, {vr(BF+4*u,4)}, {c}")

    if not EARLY:
        dmaB(0); dmaB(1)
    for Sx in range(10):
        fst(1, Sx)
        gate(Sx, dmaB, False)
        A(f"s_waitcnt vmcnt({4 * inflight(Sx)})")
        for u in range(3):
            A(f"ds_read_b128 {vr(BF+4*u,4)}, v{vRB+u} offset:{(Sx % 2) * 4096}")
        A("s_barrier")
        if Sx:
            g1_mm(Sx - 1, 3, (0,))
        for u in range(3):
            for tt in range(2):
                A(f"ds_read_b128 {vr(AF+8*u+4*tt,4)}, v{vRA+u} offset:{(Sx % 3) * SH + 4096*tt}")
        if Sx:
            g1_mm(Sx - 1, 3, (1,))
        A(f"ds_read_b128 {vr(BF+12,4)}, v{vRB+3} offset:{(Sx % 2) * 4096}")
        for tt in range(2):
            A(f"ds_read_b128 {vr(AF+24+4*tt,4)}, v{vRA+3} offset:{(Sx % 3) * SH + 4096*tt}")
        A("s_waitcnt lgkmcnt(7)")
        g1_mm(Sx, 0)
        A("s_waitcnt lgkmcnt(5)")
        g1_mm(Sx, 1)
        A("s_waitcnt lgkmcnt(3)")
        g1_mm(Sx, 2)
        A("s_waitcnt lgkmcnt(0)")
        if more(Sx):
            dmaB(Sx + 2)
    g1_mm(9, 3)
    A(";MLO_OFF\ns_barrier\ns_nop 10\ns_branch L_SCAN")

    A("L_G1_AUX:")
    A(f"s_cmp_eq_u32 s{S_W}, 4\ns_cbranch_scc1 L_G1_LD\ns_cmp_eq_u32 s{S_W}, 7\ns_cbranch_scc1 L_G1_LD")
    if not EARLY:
        src_aux()
    A(f"s_lshl_b32 s66, s38, 1")
    for u in range(1, 4):
        A(f"v_xor_b32 v{vRA+u}, {32*u}, v{vRA}")
    for u in range(4):
        A(f"v_add_u32 v{vRB+u}, s66, v{vRA+u}")
    scan_addr()
    early_addr()
    A("s_waitcnt vmcnt(0)\ns_barrier")
    A(f"s_setprio {3 if OPT['mlo'] else OPT['g1p']}\n;MLO_ON")

    if not EARLY:
        dmaB4(0); dmaB4(1)
    for Sx in range(10):
        gate(Sx, dmaB4, False)
        A(f"s_waitcnt vmcnt({2 * inflight(Sx)})\ns_barrier")
        for u in range(4):
            A(f"ds_read_b128 {vr(BF+4*u,4)}, v{vRA+u} offset:{(Sx % 3) * SH + 8192}")
            A(f"ds_read_b128 {vr(AF+4*u,4)}, v{vRB+u} offset:{(Sx % 3) * SH}")
        for u in range(4):
            A(f"s_waitcnt lgkmcnt({6-2*u})")
            c = "0" if (Sx == 0 and u == 0) else vr(ACC, 16)
            A(f"{MF32} {vr(ACC,16)}, {vr(AF+4*u,4)}, {vr(BF+4*u,4)}, {c}")
        if more(Sx):
            dmaB4(Sx + 2)
    A(";MLO_OFF")
    if OPT["lscan"]:
        A(f"s_cmp_eq_u32 s{S_W}, 5\ns_cbranch_scc1 L_G1_RED\ns_barrier\ns_nop 8")
        for j in range(0, 16, 4):
            for p in range(2):
                A(f"ds_write2_b32 v{29+p}, v{ACC+j+p}, v{ACC+j+p+2} offset0:{16 + j} offset1:{18 + j}")
        A("s_waitcnt lgkmcnt(0)\ns_barrier")
        bhi()
        touch2()
        A("s_branch L_G1_AUX2")
    else:
        bhi()
        A(f"s_lshl_b32 s66, s{S_W}, 12\ns_add_u32 s66, s66, {69632 - 5*4096}\nv_lshlrev_b32 v30, 4, v1\nv_add_u32 v30, s66, v30\ns_nop 7")
        for g in range(4):
            A(f"ds_write_b128 v30, {vr(ACC+4*g,4)} offset:{1024*g}")
        A("s_waitcnt lgkmcnt(0)\ns_branch L_G1_AUXEND")

    A("L_G1_LD:")
    if not EARLY:
        src_ld()
    early_addr()
    if OPT["t1"]:
        t7, td = uid("T7"), uid("TD")
        if OPT["h3"]:
            A(f"v_lshrrev_b32 v52, 2, v1\nv_mul_u32_u24 v52, 1280, v52\nv_and_b32 v53, 3, v1\nv_lshl_add_u32 v52, v53, 7, v52\ns_cmp_eq_u32 s{S_W}, 7\ns_cbranch_scc1 {t7}")
        else:
            A(f"v_lshrrev_b32 v52, 1, v1\nv_mul_u32_u24 v52, 1280, v52\nv_and_b32 v53, 1, v1\nv_lshl_add_u32 v52, v53, 7, v52\nv_add_u32 v52, {128 * OPT['gk']}, v52\ns_cmp_eq_u32 s{S_W}, 7\ns_cbranch_scc1 {t7}")
        A(f"s_and_b32 s66, s{sNB}, 3\ns_lshl_b32 s66, s66, 4\ns_lshl_b32 s67, s{sTC}, 6\ns_add_u32 s66, s66, s67\ns_mul_i32 s66, s66, 1280\ns_mov_b32 exec_hi, {-1 if OPT['h3'] else 0}")
        A(f"buffer_load_dword v56, v52, {S(R0)}, s66 offen\ns_branch {td}\n{t7}:")
        A(f"s_and_b32 s66, s{sTC}, 7\ns_mul_i32 s66, s66, 10\ns_mul_i32 s67, s{sNB}, 80\ns_add_u32 s66, s66, s67\ns_mul_i32 s66, s66, 1280\ns_mov_b64 exec, 0xfffff")
        if OPT["h3"]:
            A("s_mov_b32 exec_lo, -1\ns_mov_b32 exec_hi, 0xff")
        A(f"buffer_load_dword v56, v52, {S(R1)}, s66 offen\nbuffer_load_dword v57, v52, {S(R2)}, s66 offen\n{td}:\ns_mov_b64 exec, -1")
    A("s_waitcnt vmcnt(0)\ns_barrier")

    if not EARLY:
        dmaX(0); dmaX(1)
    if OPT["g1t"]:
        t7, td = uid("G7"), uid("GD")
        A(f"s_sub_u32 s66, s2, 256\ns_cmp_eq_u32 s{S_W}, 7\ns_cbranch_scc1 {t7}")
        A(f"s_mul_i32 s66, s66, 10240\nv_min_u32 v66, 39, v1\nv_lshlrev_b32 v66, 7, v66\nbuffer_load_dword v62, v66, {S(R0)}, s66 offen\ns_add_u32 s66, s66, 5120\nbuffer_load_dword v63, v66, {S(R0)}, s66 offen\ns_branch {td}")
        A(f"{t7}:\ns_mul_i32 s66, s66, 3200\nv_min_u32 v66, 24, v1\nv_lshlrev_b32 v66, 7, v66\nbuffer_load_dword v62, v66, {S(R1)}, s66 offen\nbuffer_load_dword v63, v66, {S(R2)}, s66 offen\n{td}:")
    for Sx in range(10):
        gate(Sx, dmaX, True)
        C1 = OPT["c1"]
        A(f"s_waitcnt vmcnt({4 * inflight(Sx) + ((2 if OPT['cu'] else 4) if C1 >= 0 and Sx in (C1 + 1, C1 + 2) else 0) + (2 if OPT['g1t'] and Sx < 2 else 0)})\ns_barrier")
        if more(Sx):
            dmaX(Sx + 2)
        if Sx == C1 and OPT["cu"]:
            A(f"s_sub_u32 s66, s2, 256\ns_mul_i32 s66, s66, 3200\nv_min_u32 v66, 24, v1\nv_lshlrev_b32 v66, 7, v66\ns_cmp_eq_u32 s{S_W}, 7")
            A(f"s_cselect_b32 s{R3}, s{P_WO}, s{P_CRE}\ns_cselect_b32 s{R3+1}, s{P_WO+1}, s{P_CRE+1}\ns_mov_b32 s{R3+2}, 819200\ns_mov_b32 s{R3+3}, 0x20000")
            A(f"buffer_load_dword v60, v66, {S(R3)}, s66 offen\ns_cselect_b32 s{R3}, s{P_WO}, s{P_CIM}\ns_cselect_b32 s{R3+1}, s{P_WO+1}, s{P_CIM+1}\nbuffer_load_dword v61, v66, {S(R3)}, s66 offen")
        elif Sx == C1:
            t1, t2 = uid("W1"), uid("W2")
            A(f"s_and_b32 s66, s{sTC}, 7\ns_cmp_eq_u32 s{S_W}, 7\ns_cbranch_scc1 {t1}")
            A(f"s_mul_i32 s66, s66, 10\ns_mul_i32 s68, s{sNB}, 80\ns_add_u32 s66, s66, s68\ns_mul_i32 s66, s66, 1280")
            A(f"v_lshlrev_b32 v66, 7, v1\nv_min_u32 v67, 35, v1\nv_lshlrev_b32 v67, 7, v67\nv_add_u32 v67, 8192, v67")
            for k, p in enumerate((P_CRE, P_CIM)):
                srd(R3, p, 819200)
                A(f"buffer_load_dword v{60+2*k}, v66, {S(R3)}, s66 offen\nbuffer_load_dword v{61+2*k}, v67, {S(R3)}, s66 offen")
            A(f"s_branch {t2}\n{t1}:")
            srd(R3, P_WO, 819200)
            A(f"s_mul_i32 s66, s66, {80*1280}\ns_mul_i32 s67, s{sNB}, 160\ns_add_u32 s66, s66, s67")
            A(f"v_lshrrev_b32 v66, 1, v1\nv_min_u32 v66, 19, v66\nv_mul_u32_u24 v66, 1280, v66\nv_and_b32 v67, 1, v1\nv_mul_u32_u24 v67, 156, v67\nv_add_u32 v66, v66, v67")
            for k in range(4):
                A(f"buffer_load_dword v{60+k}, v66, {S(R3)}, s66 offen")
                if k < 3:
                    A(f"s_add_u32 s66, s66, {20*1280}")
            A(f"{t2}:")
    A(f"v_lshlrev_b32 v30, 4, v1\nv_add_u32 v30, 69632, v30\ns_cmp_eq_u32 s{S_W}, 4\ns_cbranch_scc1 L_G1_RED")
    A("L_G1_AUXEND:")
    A("s_barrier\ns_barrier")
    A(f"s_cmp_lg_u32 s{S_W}, 6\ns_cbranch_scc1 L_F2POLL")
    touch2()
    A("s_barrier\ns_waitcnt vmcnt(0)\ns_branch L_B_H\nL_F2POLL:")
    A(f"s_cmp_eq_u32 s{S_W}, 7\ns_cselect_b32 s66, 16, 0\ns_sub_i32 s67, s{sTC}, s66\ns_max_i32 s67, s67, 0\ns_min_i32 s67, s67, 16\ns_lshr_b32 s67, 0xffff0000, s67\ns_and_b32 s67, s67, 0xffff")
    A(f"s_lshl_b32 s66, s66, 3\ns_lshl_b32 s65, s{sNB}, 5\ns_add_u32 s65, s65, s{sTC}\ns_lshl_b32 s65, s65, 8\ns_add_u32 s66, s66, s65\ns_add_u32 s66, s66, {PV2}")
    spoll([(68, 8, 0), (84, 8, 64)], 66, need=67)
    A("s_barrier")
    touch2()
    A("s_waitcnt vmcnt(0)\ns_branch L_B_H")
    A("L_G1_RED:\ns_barrier")
    if OPT["lscan"]:
        A("s_nop 8")
        for j in range(0, 16, 4):
            for p in range(2):
                A(f"ds_write2_b32 v{29+p}, v{ACC+j+p}, v{ACC+j+p+2} offset0:{j} offset1:{2 + j}")
        A("s_branch L_SCAN2")
    else:
        for g in range(8):
            A(f"ds_read_b128 {vr(ACC+4*g,4)}, v30 offset:{1024*g}")
        A("s_waitcnt lgkmcnt(0)")
    A("L_SCAN:")
    stamp(2)
    if OPT["lscan"]:
        for tt in range(2):
            for j in range(0, 16, 4):
                for p in range(2):
                    A(f"ds_write2_b32 v{29+p}, v{ACC+16*tt+j+p}, v{ACC+16*tt+j+p+2} offset0:{16*tt + j} offset1:{16*tt + 2 + j}")
        A("L_SCAN2:\ns_waitcnt lgkmcnt(0)\ns_barrier")
        for i in range(8):
            A(f"ds_read_b128 {vr(ACC+4*i,4)}, v31 offset:{16*i}")
        bhi()
    else:
        bhi()
        for i in range(16):
            A(f"v_permlane16_swap_b32 v{ACC+2*i}, v{ACC+2*i+1}")
    for i in range(16):
        u = ACC + 2 * i
        t = 64 + 2 * (i & 1)
        if OPT["lscan"] and i % 2 == 0:
            A(f"s_waitcnt lgkmcnt({7 - i // 2})")
        A(f"v_pk_mul_f32 {vr(t,2)}, {vr(u,2)}, {vr(CF,2)} op_sel:[0,0] op_sel_hi:[0,1]")
        A(f"v_pk_fma_f32 {vr(u,2)}, {vr(u,2)}, {vr(CF,2)}, {vr(t,2)} op_sel:[1,1,0] op_sel_hi:[1,0,1] neg_hi:[0,1,0]")
    G, T = 68, 70
    cfma(G, ACC, MU, ACC + 2, T)
    for i in range(2, 16):
        cfma(G, G, MU, ACC + 2 * i, T)
    E4 = 72
    A(f"s_mul_i32 s64, s{sNB}, 20480\ns_add_u32 s64, s64, {EB}\ns_add_u32 s{R3}, s{WS}, s64\ns_addc_u32 s{R3+1}, s{WS+1}, 0\ns_mov_b32 s{R3+2}, 20480\ns_mov_b32 s{R3+3}, 0x20000")
    gather4(G, E4)
    PRE = 80
    cfma(82, E4, MU16, E4 + 2, T)
    cfma(84, 82, MU16, E4 + 4, T)
    cfma(86, 84, MU16, E4 + 6, T)
    A(f"s_sub_u32 s64, 31, s{sTC}\ns_mul_i32 s64, s64, 640\ns_mov_b64 exec, 0xffff")
    A(f"buffer_store_dwordx2 v[86:87], v123, {S(R3)}, s64 offen sc1\ns_mov_b64 exec, -1")
    A(f"v_mov_b32 v{PRE}, 0\nv_mov_b32 v{PRE+1}, 0")
    for src, m in ((E4, 96), (82, 98), (84, 100)):
        for c in range(2):
            A(f"v_cndmask_b32 v{PRE+c}, v{PRE+c}, v{src+c}, s[{m}:{m+1}]")
    A(f"s_lshl_b32 s68, s{sNB}, 13\ns_lshl_b32 s69, s{sTC}, 3\ns_add_u32 s68, s68, s69\ns_add_u32 s68, s68, {PV2}")
    A(f"v_lshlrev_b32 v88, 8, v1\nv_mov_b32 v90, s{S_E}\nv_mov_b32 v91, s{S_E+1}\ns_lshl_b32 s69, -2, s{sTC}")
    A("s_waitcnt vmcnt(0)\ns_barrier")
    A(f"s_cmp_lg_u32 s{S_W}, 0\ns_cbranch_scc1 L_NOP2\ns_cmp_eq_u32 s69, 0\ns_cbranch_scc1 L_NOP2\ns_mov_b32 exec_lo, s69\ns_mov_b32 exec_hi, 0")
    A(f"buffer_store_dwordx2 v[90:91], v88, {S(WS)}, s68 offen sc1\ns_mov_b64 exec, -1\nL_NOP2:")
    stamp(3)
    A(f"s_cmp_ge_u32 s{S_W}, 4\ns_cbranch_scc1 L_NOSKIP")
    srd(R1, P_DSK, 1280)
    A(f"buffer_load_ushort v14, v126, {S(R1)}, 0 offen")
    for i in range(16):
        A(f"s_mov_b32 s64, {(8 * (i >> 2) + (i & 3))*1280}\nbuffer_load_ushort v{16+i}, v114, {S(R0)}, s64 offen")
    A("L_NOSKIP:\ns_movk_i32 s64, 4480\ns_barrier")
    stamp(4)
    EL = 96
    for u in range(8):
        d = 7 - u
        A(f"buffer_load_dwordx2 {vr(EL+2*u,2)}, v124, {S(R3)}, {'s64' if d == 7 else '0'} offen offset:{0 if d == 7 else 640*d} sc1")
    A("s_waitcnt vmcnt(6)")
    cfma(G, EL, LAM, EL + 2, T)
    for u in range(2, 8):
        A(f"s_waitcnt vmcnt({7-u})")
        cfma(G, G, LAM, EL + 2 * u, T)
    gather4(G, E4)
    cfma(G, E4 + 6, LAM8, E4 + 4, T)
    cfma(G, G, LAM8, E4 + 2, T)
    cfma(G, G, LAM8, E4, T)
    cfma(G, G, PW, PRE, T)
    PK = 72
    A(f"s_mul_i32 s64, s{sTC}, 163840\ns_add_u32 s64, s64, {HB}")
    for tt in range(2):
        for i in range(8 * tt, 8 * tt + 8):
            cfma(ACC + 2 * i, G if i == 0 else ACC + 2 * i - 2, MU, ACC + 2 * i, T)
        for c in range(2):
            d = PK + 8 * tt + 4 * c
            for m in range(4):
                a = ACC + 16 * tt + 4 * m + c
                A(f"v_cvt_pk_bf16_f32 v{d+m}, v{a}, v{a+2}")
            A(f"s_add_u32 s65, s64, {tt*20480 + c*10240}")
            A(f"buffer_store_dwordx4 {vr(d,4)}, v125, {S(WS)}, s65 offen sc1")
    A("s_waitcnt vmcnt(0)")
    A("L_B_H:")
    bhi()
    A("s_barrier")
    A(f"s_cmp_lg_u32 s{S_W}, 0\ns_cbranch_scc1 L_NOP3\ns_lshl_b32 s68, s{sTC}, 10\ns_lshl_b32 s69, s{sNB}, 3\ns_add_u32 s68, s68, s69\ns_add_u32 s68, s68, {PV3}")
    A(f"v_lshlrev_b32 v88, 7, v1\ns_mov_b64 exec, 0xff\nbuffer_store_dwordx2 v[90:91], v88, {S(WS)}, s68 offen sc1\ns_mov_b64 exec, -1\nL_NOP3:")
    stamp(5)
    A(f"s_cmp_ge_u32 s{S_W}, 4\ns_cbranch_scc1 L_B_SMALL")
    tail(True)
    A("L_B_SMALL:")
    tail(False)


def tail(big):
    nacc = 16 if big else 4
    ACC = 16 if big else 12
    WF = 48
    MF = MF32 if big else MF16
    rows = [8 * (i >> 2) + (i & 3) for i in range(nacc)]
    fst(9, 0)
    if big:
        vA, vB, vS, vOut, vO, vOs, vW, vWs = 2, 3, 4, 5, 6, 7, 8, 9
        mv = ((8, 116), (2, 112), (3, 113), (4, 122), (5, 115), (6, 118), (9, 117))
        A(f"s_lshr_b32 s64, s{S_W}, 1\ns_mul_i32 s64, s64, 51200\nv_add_u32 v10, s64, v116")
    else:
        vA, vB, vS, vOut, vO, vOs, vW, vWs = 2, 3, 9, 5, 6, 10, 16, 17
        mv = ((16, 116), (2, 112), (3, 113), (4, 127), (5, 115), (6, 118), (7, 28), (9, 122), (10, 119), (8, 26), (11, 27), (17, 117))
        srd(R3, P_DSK, 1280)
        A(f"buffer_load_ushort v0, v126, {S(R3)}, 0 offen")
        for i in range(nacc):
            A(f"s_mov_b32 s64, {rows[i]*1280}\nbuffer_load_ushort v{32+i}, v114, {S(R0)}, s64 offen")
        A(f"s_sub_u32 s95, s{S_W}, 4\nv_add_u32 v18, 40960, v116")
    for d, sreg in mv:
        A(f"v_mov_b32 v{d}, v{sreg}")
    fst(9, 1)
    if big:
        for u in range(20):
            if u == 12:
                A(f"s_cmp_ge_u32 s{S_W}, 2\ns_cbranch_scc1 L_WR0")
            for j in range(2):
                A(f"ds_read_b64_tr_b16 {vr(WF+4*u+2*j,2)}, v10 offset:{2560*u + 160*j}")
        A("L_WR0:")
        for i in range(nacc):
            A(f"v_dot2_f32_bf16 v{ACC+i}, v{ACC+i}, v14, 0")
        A(f"s_lshl_b32 s45, s{sTC}, 3\ns_add_u32 s45, s45, s{sNB}\ns_lshl_b32 s45, s45, 7\ns_add_u32 s45, s45, {PV3}")
    else:
        for U in range(16):
            for j in range(2):
                A(f"ds_read_b64_tr_b16 {vr(WF+4*U+2*j,2)}, v{vW if U < 8 else 18} offset:{5120*(U & 7) + 160*j}")
    srd(R1, P_WO, 819200)
    A(f"s_lshl_b32 s46, s{S_W}, 10\ns_waitcnt lgkmcnt(0)\ns_barrier")
    fst(9, 2)
    if big:
        A(f"s_load_dwordx16 s[8:23], {WSP}, s45 glc")
    sk = uid("WD")
    if not big:
        A(f"s_cmp_ge_u32 s{S_W}, 5\ns_cbranch_scc1 {sk}")
    for m in range(4):
        A(f"s_add_u32 m0, s46, {5120*m}\ns_mov_b32 s64, {(512 + 32*m) * 1280}")
        dma(vWs, R1, 64)
    A(f"{sk}:")
    fst(9, 3)
    if not big:
        A("s_waitcnt vmcnt(0)")
        for i in range(nacc):
            A(f"v_dot2_f32_bf16 v{ACC+i}, v{32+i}, v0, 0")

    def wo_reads1():
        if big:
            A(f"s_cmp_lt_u32 s{S_W}, 2\ns_cbranch_scc1 L_WR1")
            for u in range(8):
                for j in range(2):
                    A(f"ds_read_b64_tr_b16 {vr(WF+4*(12+u)+2*j,2)}, v{vW} offset:{2560*u + 160*j}")
            A("L_WR1:")
        else:
            for U in range(4):
                for j in range(2):
                    A(f"ds_read_b64_tr_b16 {vr(WF+4*(16+U)+2*j,2)}, v{vW} offset:{5120*U + 160*j}")
        A("s_waitcnt lgkmcnt(0)\ns_barrier")

    SL = 18944
    vSs = [vS, 8, 11]

    def slot(Sx):
        return ((Sx + 3) % 4) * SL

    def g2_dma(Sx):
        sb = slot(Sx)
        if big:
            for i in range(2):
                A(f"s_add_u32 m0, s39, {sb + 1088*i}\ns_add_u32 s64, s44, s{sK}")
                if i or Sx >= 10:
                    A(f"s_add_u32 s64, s64, {20480*i + (10240 if Sx >= 10 else 0)}")
                dma(vS, WS, 64, "sc1")
            A(f"s_add_u32 s{sK}, s{sK}, 1024\ns_cmp_eq_u32 s{sK}, 10240\ns_cselect_b32 s{sK}, 0, s{sK}")
        else:
            for m in range(3):
                if m == 2:
                    sk = uid("SD")
                    A(f"s_cmp_ge_u32 s95, 2\ns_cbranch_scc1 {sk}")
                A(f"s_add_u32 m0, s39, {sb + 8704 + 4096*m}\ns_nop 0")
                dma(vSs[m], R1 if Sx < 10 else R2, sK)
            A(f"{sk}:")
            A(f"s_add_u32 s{sK}, s{sK}, 128\ns_cmp_eq_u32 s{sK}, 1280\ns_cselect_b32 s{sK}, 0, s{sK}")

    srd(R1, P_CRE, 819200); srd(R2, P_CIM, 819200)
    if big:
        A(f"s_mul_i32 s44, s{sTC}, 163840\ns_mul_i32 s64, s{S_W}, 40960\ns_add_u32 s44, s44, s64\ns_add_u32 s44, s44, {HB}")
        A(f"v_xor_b32 v0, 32, v{vB}\nv_xor_b32 v1, 64, v{vB}\nv_xor_b32 v7, 96, v{vB}")
        A(f"s_mul_i32 s39, s{S_W}, 2176\ns_lshl_b32 s{sK}, s{sROT}, 10")
        fst(9, 4)
        A("s_waitcnt lgkmcnt(0)\ns_mov_b32 s65, 0")
        for i in range(8):
            A(f"s_cmp_eq_u64 s[{8+2*i}:{9+2*i}], {EP}\ns_addc_u32 s65, s65, s65")
        A("s_cmp_eq_u32 s65, 255\ns_cbranch_scc1 L_F3OK")
        spoll([(8, 8, 0)], 45)
        A("L_F3OK:")
        stamp(6); fst(9, 5)
        g2_dma(0)
        A(f"s_waitcnt vmcnt(2)")
        fst(9, 6)
        A("s_barrier")
        fst(9, 7)
    else:
        A(f"s_lshl_b32 s39, s95, 10\ns_lshl_b32 s{sK}, s{sROT}, 7")
        g2_dma(0)
        A("s_barrier")
    if big:
        A(f"s_sub_u32 s66, s2, 256\ns_lshl_b32 s66, s66, 7\ns_add_u32 s66, s66, {F0B}\ns_load_dwordx2 s[8:9], {WSP}, s66 glc")
    wo_reads1()
    fst(9, 8)
    A("s_waitcnt vmcnt(0)")
    for Sx in range(1, 4):
        g2_dma(Sx)
    if big:
        sk = uid("G2W")
        A(f"s_cmp_eq_u64 s[8:9], {EP}\ns_cbranch_scc1 {sk}\ns_cmp_lg_u32 s{S_W}, 0\ns_cbranch_scc1 {sk}")
        fst(9, 9)
        spoll([(8, 1, 0)], 66)
        A(f"{sk}:")
        fst(9, 10)
    A(f"s_setprio {3 if OPT['mlo'] else OPT['g2p']}\n;MLO_ON2")
    if big:
        SET = [32, 40, 8]

        def rd(n):
            Sx, u = n >> 2, n & 3
            f, sb = SET[n % 3], slot(Sx)
            for j in range(2):
                A(f"ds_read_b64_tr_b16 {vr(f+2*j,2)}, v{vA} offset:{sb + 256*u + 64*j}")
            A(f"ds_read_b128 {vr(f+4,4)}, v{[vB, 0, 1, 7][u]} offset:{sb}")

        def mm(n):
            if n >= 0:
                f = SET[n % 3]
                A(f"{MF} {vr(ACC,16)}, {vr(f,4)}, {vr(f+4,4)}, {vr(ACC,16)}")

        for Sx in range(20):
            infl = 3 if Sx == 0 else min(Sx + 3, 20) - Sx - 1
            n = 4 * Sx
            A(f"s_waitcnt vmcnt({2*infl})\ns_barrier" if Sx else "s_barrier")
            if Sx == 0:
                stamp(11); fst(9, 11)
            rd(n); rd(n + 1)
            mm(n - 1)
            rd(n + 2)
            A("s_waitcnt lgkmcnt(6)")
            mm(n)
            rd(n + 3)
            if 0 < Sx < 17:
                g2_dma(Sx + 3)
            A("s_waitcnt lgkmcnt(6)")
            mm(n + 1)
            A("s_waitcnt lgkmcnt(3)")
            mm(n + 2)
            A("s_waitcnt lgkmcnt(0)")
        mm(79)
    else:
        FR = [16, 32]

        def mm(Sx, u):
            if Sx >= 0:
                f = FR[Sx & 1]
                A(f"{MF} {vr(ACC,4)}, {vr(f+8*u,4)}, {vr(f+8*u+4,4)}, {vr(ACC,4)}")

        for Sx in range(20):
            infl = 3 if Sx == 0 else min(Sx + 3, 20) - Sx - 1
            f, sb = FR[Sx & 1], slot(Sx)
            A(f"s_waitcnt vmcnt({2*infl})\ns_barrier" if Sx else "s_barrier")
            if 0 < Sx < 17:
                g2_dma(Sx + 3)
            mm(Sx - 1, 0)
            for u in range(2):
                for j in range(2):
                    A(f"ds_read_b64_tr_b16 {vr(f+8*u+2*j,2)}, v{vA} offset:{sb + 512*u + 64*j}")
                A(f"ds_read_b128 {vr(f+8*u+4,4)}, v{vB + u} offset:{sb}")
            mm(Sx - 1, 1)
            A("s_waitcnt lgkmcnt(0)")
        mm(19, 0); mm(19, 1)
    A(";MLO_OFF")
    stamp(7)
    bhi()
    srd(R2, P_OUT, 10485760)
    A(f"s_mul_i32 s44, s{S_W}, {2*PL}\ns_lshl_b32 s64, s{sTC}, 9\ns_add_u32 s44, s44, s64\ns_add_u32 s44, s44, {OP}\ns_lshl_b32 s46, s{S_W}, 10")
    if big:
        A(f"s_lshl_b32 s45, s{sTC}, 3\ns_add_u32 s45, s45, s{sNB}\ns_lshl_b32 s45, s45, 8\ns_lshl_b32 s64, s{S_W}, 6\ns_add_u32 s45, s45, s64\ns_add_u32 s45, s45, {PV4}")
        A(f"v_lshrrev_b32 v0, 9, v4\nv_mul_u32_u24 v0, {PL}, v0\nv_and_b32 v7, 0x1f0, v4\ns_and_b32 s64, s{S_W}, 1\ns_lshl_b32 s64, s64, 7\nv_xor_b32 v7, s64, v7\nv_add_u32 v7, v0, v7")
    for i in range(nacc):
        A(f"s_mov_b32 s64, {rows[i]*5120}\nbuffer_store_dword v{ACC+i}, v{vOut}, {S(R2)}, s64 offen offset:2560 {AUX[OPT['sty']]}")
    PIT = 336
    if big:
        if OPT["otouch"]:
            A(f"v_lshrrev_b32 v0, 6, v4\nv_min_u32 v0, 9, v0\nv_mul_u32_u24 v0, {PL}, v0\nv_and_b32 v1, 0x30, v4\nv_lshl_add_u32 v0, v1, 3, v0")
            A(f"s_and_b32 s64, s{sNB}, 3\ns_mul_i32 s64, s64, {10*PL}\ns_mul_i32 s65, s{S_W}, {38*PL}\ns_add_u32 s47, s64, s65\ns_add_u32 s47, s47, s44")
        spoll([(8, 8, 0)], 45)
        if OPT["otouch"]:
            A(f"buffer_load_dword v8, v0, {S(WS)}, s47 offen sc1")
    A("s_barrier")
    stamp(8); fst(5, 0)
    def odma(i):
        for st in (i, 5 + i):
            A(f"s_add_u32 m0, s46, {8192*st}\ns_add_u32 s64, s44, {16*PL*st}")
            dma(vOs, WS, 64, "sc1")

    odma(0)
    if OPT["opord"]:
        A("s_barrier")
    for i in range(1, 5):
        odma(i)
    A(f"v_mbcnt_lo_u32_b32 v0, -1, 0\nv_mbcnt_hi_u32_b32 v0, -1, v0")
    if big:
        A(f"s_lshr_b32 s64, s{S_W}, 1\ns_mul_i32 s65, s64, {40960 + 32*PIT}\ns_and_b32 s66, s{S_W}, 1\ns_lshl_b32 s66, s66, 7\ns_add_u32 s65, s65, s66")
        A(f"v_and_b32 v2, 31, v0\nv_mul_u32_u24 v2, {PIT}, v2\nv_lshrrev_b32 v3, 5, v0\nv_lshl_add_u32 v2, v3, 4, v2\nv_add_u32 v2, s65, v2")
        A(f"s_mul_i32 s67, s64, {-64*PIT & 0xffffffff}\ns_add_u32 s67, s67, {32*PIT}\nv_add_u32 v7, s67, v2")
        A(f"v_xor_b32 v1, 256, v{vO}")
    else:
        A(f"s_mul_i32 s65, s95, {16*PIT}\ns_add_u32 s65, s65, 256\nv_and_b32 v2, 15, v0\nv_mul_u32_u24 v2, {PIT}, v2\nv_lshrrev_b32 v3, 4, v0\nv_lshl_add_u32 v2, v3, 4, v2\nv_add_u32 v2, s65, v2")
        for i in range(4):
            A(f"v_mov_b32 v{8+i}, 0")
    A(f"s_lshl_b32 s64, s{S_W}, 6\nv_add_u32 v0, s64, v0\nv_mul_u32_u24 v3, 3277, v0\nv_lshrrev_b32 v3, 16, v3\nv_mul_u32_u24 v5, 20, v3\nv_sub_u32 v0, v0, v5\nv_lshlrev_b32 v0, 4, v0")
    A(f"s_mul_i32 s64, s{sTC}, {64*5120}\ns_mul_i32 s65, s{sNB}, 320\ns_add_u32 s47, s64, s65\nv_mul_u32_u24 v5, 5120, v3\nv_add_u32 v5, v5, v0\nv_mul_u32_u24 v3, {PIT}, v3\nv_add_u32 v3, v3, v0")
    steps = {0: 8, 4: 4, 12: 0}
    if big:
        ne = uid("NE")
        A(f"s_cmp_lg_u32 s{sTC}, 31\ns_cbranch_scc1 {ne}\ns_or_b32 s64, s{sNB}, s{S_W}\ns_cmp_lg_u32 s64, 0\ns_cbranch_scc1 {ne}")
        A(f"s_waitcnt vmcnt(0)\nv_mov_b32 v8, s{S_E}\ns_mov_b64 exec, 1\nbuffer_store_dword v8, off, {S(WS)}, 0 offset:{EPOCH} sc1\ns_mov_b64 exec, -1\ns_waitcnt vmcnt(0)\n{ne}:")
        free = [8, 12]
        loc = {}
        order = []

        def issue(n, t):
            f = free.pop(0)
            loc[(n, t)] = f
            i, u = n >> 2, n & 3
            for j in range(2):
                A(f"ds_read_b64 {vr(f+2*j,2)}, v{vO if t == 0 else 1} offset:{8192*i + 2048*u + 512*j}")
            order.append((n, t))

        todo = [(n, t) for n in range(16) for t in range(2)] + [(n, 1) for n in range(16, 20)] + [(n, 0) for n in range(16, 20)]
        nxt = 0
        done = {}
        lim = 0
        for k, (n, t) in enumerate(todo):
            if n in steps and t == 0:
                if n == 0:
                    fst(5, 1)
                A(f"s_waitcnt vmcnt({steps[n]})\ns_barrier")
                fst(5, 2 + list(steps).index(n))
                lim = {0: 8, 4: 24, 12: 40}[n]
            while nxt < lim and free and nxt - k < 6:
                issue(*todo[nxt]); nxt += 1
            pend = len(order) - 1 - order.index((n, t))
            if (n, t) == (17, 0):
                assert nxt == len(todo)
                A("s_nop 7\ns_waitcnt lgkmcnt(0)")
            elif t == 0 and n > 17:
                for g in (2 * (n - 18), 2 * (n - 18) + 1):
                    A(f"ds_write_b128 v7, {vr(ACC+16+4*g,4)} offset:{32*g}")
            else:
                A(f"s_waitcnt lgkmcnt({2*pend})")
            c = "0" if n == 0 else vr(ACC + 16 * t, 16)
            A(f"{MF} {vr(ACC+16*t,16)}, {vr(WF+4*n,4)}, {vr(loc[(n,t)],4)}, {c}")
            free.append(loc[(n, t)])
            done[n] = done.get(n, 0) + 1
            if done[n] == 2:
                free.append(WF + 4 * n)
        fst(5, 5)
        A("s_nop 11")
        for g in range(4):
            A(f"ds_write_b128 v2, {vr(ACC+4*g,4)} offset:{32*g}")
    else:
        first = True
        for si, (i0, i1) in enumerate(((0, 1), (1, 3), (3, 5))):
            A(f"s_waitcnt vmcnt({[8, 4, 0][si]})\ns_barrier")
            for i in range(i0, i1):
                f = 16 + 16 * (i & 1)
                for h in range(2):
                    for U in range(2):
                        for j in range(2):
                            A(f"ds_read_b64 {vr(f+8*h+4*U+2*j,2)}, v{vO+h} offset:{8192*i + 4096*U + 512*j}")
            for i in range(i0, i1):
                f = 16 + 16 * (i & 1)
                for h in range(2):
                    for U in range(2):
                        A(f"s_waitcnt lgkmcnt({8*(i1-1-i) + 6 - 4*h - 2*U})")
                        c = "0" if first else vr(ACC, 4)
                        first = False
                        A(f"{MF} {vr(ACC,4)}, {vr(WF+40*h+8*i+4*U,4)}, {vr(f+8*h+4*U,4)}, {c}")
        A(f"ds_write_b128 v2, v[8:11] offset:40960\ns_nop 6\nds_write_b128 v2, {vr(ACC,4)}")
    A("s_waitcnt lgkmcnt(0)\ns_barrier")
    fst(5, 6)
    if not big:
        A(f"s_cmp_ge_u32 s{S_W}, 5\ns_cbranch_scc1 L_B_DONE")
    for m in range(4):
        A(f"ds_read_b128 {vr(48+8*m,4)}, v3 offset:{16*PIT*m}\nds_read_b128 {vr(52+8*m,4)}, v3 offset:{40960 + 16*PIT*m}")
    for m in range(4):
        A(f"s_waitcnt lgkmcnt({6-2*m})")
        for c in range(2):
            A(f"v_pk_add_f32 {vr(48+8*m+2*c,2)}, {vr(48+8*m+2*c,2)}, {vr(52+8*m+2*c,2)}")
        A(f"buffer_store_dwordx4 {vr(48+8*m,4)}, v5, {S(R2)}, s47 offen {AUX[OPT['sto']]}")
        if m < 3:
            A(f"s_add_u32 s47, s47, {16*5120}")
    if not big:
        A("L_B_DONE:")
    fst(5, 7)
    stamp(9)
    if OPT["stamps"]:
        A("s_waitcnt vmcnt(0)")
        stamp(10); fst(5, 8)
    dump_stamps(12)
    A("s_endpgm")


def wrap_mfma():
    out, on, i = [], False, 0
    for k, l in enumerate(L):
        if l.startswith(";MLO_ON"):
            on = 2 if l.endswith("2") else 1
            continue
        if l == ";MLO_OFF":
            on = False
            continue
        if on and OPT["mlo"] and l.startswith("v_mfma"):
            if not L[k - 1].startswith("v_mfma"):
                out.append(f"s_setprio {OPT['mlv']}")
            out.append(l)
            if not L[k + 1].startswith("v_mfma"):
                out.append("s_setprio 3")
                if on == 1 and OPT.get("pace"):
                    out.append(f"s_sleep {OPT['pace']}")
            elif on == 1 and OPT.get("pace1"):
                out.append(f"s_sleep {OPT['pace1']}")
        else:
            out.append(l)
    L[:] = out


DOC = """\
;    softmax: p = exp2(s) is accumulated unshifted together with its row sum l (ones rows of the P.V product). The shift 0 is only
;  role B (id >= 256): x@B^T tile -> chunked scan (chunk end states exchanged through ws) -> h in ws -> y = Re(C h) + x*D,
;  previous launch left at ws+0, advanced once every workgroup has read it); consumers spin (bounded) on the flags.
"""


def build():
    hdr = open("cdna_kernels/" + NAME + ".s.ref").read().split("\n")
    out = [l for l in hdr if l.startswith(";") and "@launch" not in l]
    out.append("; @launch grid=(512,1,1) block=(512,1,1) lds=81920")
    out.append('.amdgcn_target "amdgcn-amd-amdhsa--gfx950"')
    out.append(DOC)
    out.append(".text")
    out.append(f".globl {NAME}_kernel\n.p2align 8\n.type {NAME}_kernel,@function\n{NAME}_kernel:")
    qkv()
    attention()
    qkv_idle()
    role_b()
    A("L_END:\ns_endpgm")
    wrap_mfma()
    for l in L:
        out.append(l if l.endswith(":") or l.startswith(".") else "    " + l)
    out.append(f""".section .rodata,"a"
.p2align 6
.amdhsa_kernel {NAME}_kernel
  .amdhsa_next_free_vgpr 128
  .amdhsa_next_free_sgpr 102
  .amdhsa_accum_offset 128
  .amdhsa_group_segment_fixed_size 0
  .amdhsa_kernarg_size 120
  .amdhsa_user_sgpr_count 2
  .amdhsa_user_sgpr_kernarg_segment_ptr 1
  .amdhsa_system_sgpr_workgroup_id_x 1
.end_amdhsa_kernel""")
    return "\n".join(out) + "\n"


if __name__ == "__main__":
    txt = build()
    open(sys.argv[1], "w").write(txt)
    sys.path.insert(0, "gen")
    import hazard
    e = hazard.check(txt)
    print("\n".join(e) if e else "hazard check: clean")
```
